```python
import torch

def _softmax(x, axis=-1):
    return torch.softmax(x, dim=axis)
def _gelu(x):
    return torch.nn.functional.gelu(x, approximate="tanh")
def _silu(x):
    return torch.nn.functional.silu(x)
def _sigmoid(x):
    return torch.sigmoid(x)
def _layernorm(x, axis=-1, eps=1e-5):
    m = x.mean(dim=axis, keepdim=True)
    v = x.var(dim=axis, keepdim=True, unbiased=False)
    return (x - m) / torch.sqrt(v + eps)
def _scatter_add(tgt, idx, src, axis=0):
    return tgt.clone().index_add_(axis, idx, src)
def _segment_sum(src, seg, n):
    out = torch.zeros((n,) + src.shape[1:], dtype=src.dtype)
    return out.index_add_(0, seg, src)
def _pad(x, pw):
    flat = tuple(v for pair in reversed(pw) for v in pair)
    return torch.nn.functional.pad(x, flat)

kernel_name = 'parallel_sum__ssm_conv_s4__geglu_ffn__prompt'

def setup_inputs():

    _w = (lambda a: (lambda t: t.to(torch.bfloat16) if t.is_floating_point() else t)(torch.as_tensor(a)))
    def _A_setup():
        B, L, D, N = 1, 2048, 512, 128
        A_re = -(lambda _x: torch.exp(torch.as_tensor(_x)))((lambda *s: torch.randn(*s, dtype=torch.bfloat16) * 3.2)(D, N))
        A_im = torch.pi * (lambda *s: torch.randn(*s, dtype=torch.bfloat16) * 0.1)(D, N)
        B_re = (lambda *s: torch.randn(*s, dtype=torch.bfloat16) * 0.4)(D, N)
        B_im = (lambda *s: torch.randn(*s, dtype=torch.bfloat16) * 0.4)(D, N)
        C_re = (lambda *s: torch.randn(*s, dtype=torch.bfloat16) * 0.4)(D, N)
        C_im = (lambda *s: torch.randn(*s, dtype=torch.bfloat16) * 0.4)(D, N)
        log_dt = (lambda *s: torch.randn(*s, dtype=torch.bfloat16) * 0.1)(D) * 0.5 - 4.0
        Dskip = (lambda *s: torch.randn(*s, dtype=torch.bfloat16) * 0.2)(D)
        return {
            "u": _w((lambda *s: torch.randn(*s, dtype=torch.bfloat16) * 0.05)(B, L, D)),
            "A_re": _w(A_re),
            "A_im": _w(A_im),
            "B_re": _w(B_re),
            "B_im": _w(B_im),
            "C_re": _w(C_re),
            "C_im": _w(C_im),
            "log_dt": _w(log_dt),
            "Dskip": _w(Dskip),
        }
    _A_in = _A_setup()

    def _B_setup():
        B, S, D, F = 1, 2048, 512, 1376
        return {
            "x": _w((lambda *s: torch.randn(*s, dtype=torch.bfloat16) * 0.05)(B, S, D)),
            "w_gate": _w((lambda *s: torch.randn(*s, dtype=torch.bfloat16) * 0.05)(D, F)),
            "w_up": _w((lambda *s: torch.randn(*s, dtype=torch.bfloat16) * 0.05)(D, F)),
            "w_down": _w((lambda *s: torch.randn(*s, dtype=torch.bfloat16) * 0.05)(F, D)),
        }
    _B_in = _B_setup()

    return {
        "A_u": _A_in["u"],
        "A_A_re": _A_in["A_re"],
        "A_A_im": _A_in["A_im"],
        "A_B_re": _A_in["B_re"],
        "A_B_im": _A_in["B_im"],
        "A_C_re": _A_in["C_re"],
        "A_C_im": _A_in["C_im"],
        "A_log_dt": _A_in["log_dt"],
        "A_Dskip": _A_in["Dskip"],
        "B_x": _B_in["x"],
        "B_w_gate": _B_in["w_gate"],
        "B_w_up": _B_in["w_up"],
        "B_w_down": _B_in["w_down"],
    }

def reference(A_u, A_A_re, A_A_im, A_B_re, A_B_im, A_C_re, A_C_im, A_log_dt, A_Dskip, B_x, B_w_gate, B_w_up, B_w_down):
    def _A_ref(u, A_re, A_im, B_re, B_im, C_re, C_im, log_dt, Dskip):
        Bsz, L, D = u.shape
        dt = torch.exp(log_dt)[:, None]
        A = A_re + 1j * A_im
        Bc = B_re + 1j * B_im
        Cc = C_re + 1j * C_im
        logdA = dt * A
        dB = dt * Bc
        l = (lambda x, dt: x.to(dt))(torch.arange(L), A_re.dtype)
        P = torch.exp(logdA[:, :, None] * l[None, None, :])
        K = torch.einsum("dn,dnl,dn->dl", Cc, P, dB).real
        L2 = 2 * L
        Kp = _pad(K, ((0, 0), (0, L)))
        up = (lambda x, *d: x.permute(*d))(u, 0, 2, 1)
        up = _pad(up, ((0, 0), (0, 0), (0, L)))
        Kf = (lambda x, axes=(-2,-1): torch.fft.rfft2(x.float(), dim=axes))(Kp[:, None, :], axes=(-2, -1))
        Uf = (lambda x, axes=(-2,-1): torch.fft.rfft2(x.float(), dim=axes))(up[:, :, None, :], axes=(-2, -1))
        Yf = Uf * Kf[None, :, :, :]
        y = (lambda x, s, axes=(-2,-1): torch.fft.irfft2(x, s=s, dim=axes).to(torch.bfloat16))(Yf, (1, L2), axes=(-2, -1))[:, :, 0, :L]
        y = (lambda x, *d: x.permute(*d))(y, 0, 2, 1) + u * Dskip[None, None, :]
        return y

    def _B_ref(x, w_gate, w_up, w_down):
        return (_gelu(x @ w_gate) * (x @ w_up)) @ w_down

    x = A_u
    xn = _layernorm(x, axis=-1)
    return x + _A_ref(xn, A_A_re, A_A_im, A_B_re, A_B_im, A_C_re, A_C_im, A_log_dt, A_Dskip) + _B_ref(xn, B_w_gate, B_w_up, B_w_down)
```

```python
import struct, math

def f2u(x):
    return struct.unpack('<I', struct.pack('<f', x))[0]
def fhex(x):
    return hex(f2u(x))

class Asm:
    def __init__(self):
        self.lines = []
        self.vmq = []
        self.nlabel = 0
    def e(self, s):
        for l in s.split('\n'):
            l = l.strip()
            if l:
                self.lines.append(('' if l.endswith(':') or l.startswith('.') else '  ') + l)
    def c(self, s):
        self.lines.append('  ; ' + s)
    def label(self, base):
        self.nlabel += 1
        return f"L_{base}_{self.nlabel}"
    def vm(self, instr, tag):
        self.e(instr)
        self.vmq.append(tag)
    def vm_wait(self, *tags, extra=''):
        last = -1
        for n, t in enumerate(self.vmq):
            if t in tags:
                last = n
        if last < 0:
            return
        n_after = len(self.vmq) - 1 - last
        assert n_after <= 63, f"vmcnt overflow {n_after}"
        self.e(f"s_waitcnt vmcnt({n_after}) {extra}")
        self.vmq = self.vmq[last + 1:]
    def vm_wait_all(self):
        self.e("s_waitcnt vmcnt(0)")
        self.vmq = []
    def text(self):
        return '\n'.join(self.lines) + '\n'

def vr(a, n=1):
    return f"v{a}" if n == 1 else f"v[{a}:{a+n-1}]"
def ar(a, n=1):
    return f"a{a}" if n == 1 else f"a[{a}:{a+n-1}]"
def sr(a, n=1):
    return f"s{a}" if n == 1 else f"s[{a}:{a+n-1}]"

def kd(name, vgpr_arch=256, agpr=0, sgpr=102):
    acc = (vgpr_arch + 3) // 4 * 4
    return f""".p2align 6
.amdhsa_kernel {name}
  .amdhsa_next_free_vgpr {acc + agpr}
  .amdhsa_next_free_sgpr {sgpr}
  .amdhsa_accum_offset {acc}
  .amdhsa_group_segment_fixed_size 0
  .amdhsa_kernarg_size 128
  .amdhsa_user_sgpr_count 2
  .amdhsa_user_sgpr_kernarg_segment_ptr 1
  .amdhsa_system_sgpr_workgroup_id_x 1
  .amdhsa_float_denorm_mode_32 3
.end_amdhsa_kernel
"""
```

```python
import sys, math
from asmlib import *

WS_EPOCH  = 0
WS_FLAG_LN = 4096
WS_FLAG_H  = 8192
WS_FLAG_Y  = 12288
WS_STATS  = 65536
WS_CS     = 131072
WS_XT     = 1 << 20
WS_Y      = 4 << 20
WS_H      = 8 << 20

S_WG = 2
S_W = 3
S_I, S_J = 4, 5
S_TW, S_FW = 6, 7
S_U0 = 8
S_KC = 9
S_T0, S_T1, S_T2, S_T3 = 10, 11, 12, 13
S_TAG = 14
S_T4 = 15
P_X, P_ARE, P_AIM, P_BRE, P_BIM, P_CRE, P_CIM, P_LDT = 16, 18, 20, 22, 24, 26, 28, 30
P_DSK, P_BX, P_WG, P_WU, P_WD, P_OUT, P_DBG, P_WS = 32, 34, 36, 38, 40, 42, 44, 46
SRD_X, SRD_WG, SRD_WU, SRD_WD = 48, 52, 56, 60
S_XW = 64
S_WW = 65
S_XO, S_WO = 66, 67
S_LX, S_LW = 68, 69
S_EXEC = 70
S_NU = 72
S_CSH = 73
S_TMP = 74

SLOT = 41216
L_X, L_G, L_U = 0, 16384, 28704
L_LN = 3 * SLOT
L_CSUM = L_LN + 8 * 1088
LDS_BYTES = 163840

V_TID, V_LANE = 0, 1
V_ACC = 64
def acc(tt, a): return V_ACC + 16 * (3 * tt + a)
V_FR = [160, 180]
def fB(st, tt): return V_FR[st] + 4 * tt
def fA(st, a): return V_FR[st] + 8 + 4 * a
V_XOFF = 200
V_WOFF = 204
V_BADDR = 208
V_AADDR = 212
V_CS = 216
V_CSACC = 16
V_ONES = 220

def prologue(a, name):
    a.e(f".globl {name}\n.p2align 8\n.type {name},@function\n{name}:")
    a.e(f"s_cmp_ge_u32 s{S_WG}, 256")
    a.e(f"s_cbranch_scc1 L_end_{name}")
    a.e("s_load_dwordx16 s[16:31], s[0:1], 0")
    a.e("s_load_dwordx16 s[32:47], s[0:1], 64")
    a.e(f"v_and_b32 v{V_LANE}, 63, v0")
    a.e(f"v_lshrrev_b32 v2, 6, v0")
    a.e(f"s_and_b32 s{S_T0}, s{S_WG}, 7")
    a.e(f"v_readfirstlane_b32 s{S_W}, v2")
    a.e(f"s_lshr_b32 s{S_T1}, s{S_WG}, 3")
    a.e(f"s_lshr_b32 s{S_I}, s{S_T0}, 1")
    a.e(f"s_lshl_b32 s{S_I}, s{S_I}, 2")
    a.e(f"s_lshr_b32 s{S_T2}, s{S_T1}, 3")
    a.e(f"s_add_u32 s{S_I}, s{S_I}, s{S_T2}")
    a.e(f"s_and_b32 s{S_J}, s{S_T0}, 1")
    a.e(f"s_lshl_b32 s{S_J}, s{S_J}, 3")
    a.e(f"s_and_b32 s{S_T2}, s{S_T1}, 7")
    a.e(f"s_add_u32 s{S_J}, s{S_J}, s{S_T2}")
    a.e(f"s_lshr_b32 s{S_TW}, s{S_W}, 1")
    a.e(f"s_and_b32 s{S_FW}, s{S_W}, 1")
    a.e(f"s_mul_i32 s{S_U0}, s{S_J}, 3")
    a.e(f"s_lshl_b32 s{S_T2}, s{S_J}, 1")
    a.e(f"s_add_u32 s{S_T2}, s{S_T2}, 11")
    a.e(f"s_min_u32 s{S_U0}, s{S_U0}, s{S_T2}")
    a.e(f"s_cmp_lt_u32 s{S_J}, 11")
    a.e(f"s_cselect_b32 s{S_NU}, 6, 4")

def ln_loads(a):
    a.e(f"s_lshl_b32 s{S_T0}, s{S_I}, 7")
    a.e(f"s_lshl_b32 s{S_T1}, s{S_J}, 3")
    a.e(f"s_add_u32 s{S_T0}, s{S_T0}, s{S_T1}")
    a.e(f"s_lshl_b32 s{S_T1}, s{S_W}, 1")
    a.e(f"s_add_u32 s{S_T0}, s{S_T0}, s{S_T1}")
    a.e(f"s_lshl_b32 s{S_T0}, s{S_T0}, 10")
    a.e(f"v_lshl_add_u32 v2, v{V_LANE}, 4, s{S_T0}")
    a.e("s_waitcnt lgkmcnt(0)")
    a.vm(f"global_load_dwordx4 v[4:7], v2, s[{P_X}:{P_X+1}]", "ln")
    a.vm(f"global_load_dwordx4 v[8:11], v2, s[{P_X}:{P_X+1}] offset:1024", "ln")

def mk_srd(a, srd, ptr, nbytes):
    a.e(f"s_mov_b32 s{srd}, s{ptr}")
    a.e(f"s_and_b32 s{srd+1}, s{ptr+1}, 0xffff")
    a.e(f"s_mov_b32 s{srd+2}, {nbytes}")
    a.e(f"s_mov_b32 s{srd+3}, 0x20000")

def g1_setup(a):
    mk_srd(a, SRD_X, P_X, 2048 * 1024)
    mk_srd(a, SRD_WG, P_WG, 512 * 2752)
    mk_srd(a, SRD_WU, P_WU, 512 * 2752)
    a.e(f"s_lshl_b32 s{S_T0}, s{S_I}, 7")
    a.e(f"s_lshl_b32 s{S_T1}, s{S_W}, 5")
    a.e(f"s_add_u32 s{S_T0}, s{S_T0}, s{S_T1}")
    a.e(f"s_lshl_b32 s{S_XW}, s{S_T0}, 10")
    a.e(f"s_mul_i32 s{S_WW}, s{S_W}, {16 * 2752}")
    a.e(f"s_lshl_b32 s{S_T0}, s{S_U0}, 6")
    a.e(f"s_add_u32 s{S_WW}, s{S_WW}, s{S_T0}")
    a.e(f"s_lshl_b32 s{S_LX}, s{S_W}, 12")
    a.e(f"s_mul_i32 s{S_LW}, s{S_W}, 3072")
    a.e(f"s_add_u32 s{S_KC}, s{S_I}, s{S_J}")
    a.e(f"s_and_b32 s{S_KC}, s{S_KC}, 7")
    a.e(f"s_lshr_b32 s{S_CSH}, s{S_I}, 3")
    a.e(f"v_lshrrev_b32 v12, 3, v{V_LANE}")
    a.e(f"v_and_b32 v13, 7, v{V_LANE}")
    a.e(f"v_lshrrev_b32 v14, 1, v12")
    for q in range(4):
        a.e(f"v_xor_b32 v15, v14, v13") if q % 2 == 0 else None
        if q % 2 == 1:
            a.e(f"v_xor_b32 v15, 4, v15")
        a.e(f"v_lshlrev_b32 v16, 4, v15")
        a.e(f"v_add_u32 v17, {8*q}, v12")
        a.e(f"v_lshl_add_u32 v{V_XOFF+q}, v17, 10, v16")
    for q in range(3):
        a.e(f"v_add_u32 v12, {64*q}, v{V_LANE}")
        a.e(f"v_mul_u32_u24 v13, 5462, v12")
        a.e(f"v_lshrrev_b32 v13, 16, v13")
        a.e(f"v_mul_u32_u24 v14, 12, v13")
        a.e(f"v_sub_u32 v14, v12, v14")
        a.e(f"v_mul_u32_u24 v13, 2752, v13")
        a.e(f"v_lshl_add_u32 v{V_WOFF+q}, v14, 4, v13")
    a.e(f"v_and_b32 v12, 31, v{V_LANE}")
    a.e(f"v_lshrrev_b32 v13, 5, v{V_LANE}")
    a.e(f"v_bfe_u32 v14, v12, 1, 3")
    a.e(f"s_lshl_b32 s{S_T0}, s{S_TW}, 13")
    a.e(f"v_lshl_add_u32 v15, v12, 7, s{S_T0}")
    for s in range(4):
        a.e(f"v_add_u32 v16, {2*s}, v13")
        a.e(f"v_xor_b32 v16, v16, v14")
        a.e(f"v_lshl_add_u32 v{V_BADDR+s}, v16, 4, v15")
    a.e(f"v_lshrrev_b32 v12, 4, v{V_LANE}")
    a.e(f"v_and_b32 v13, 1, v12")
    a.e(f"v_lshrrev_b32 v12, 1, v12")
    a.e(f"v_bfe_u32 v14, v{V_LANE}, 2, 2")
    a.e(f"v_lshl_add_u32 v14, v12, 3, v14")
    a.e(f"v_mul_u32_u24 v14, 192, v14")
    a.e(f"v_and_b32 v15, 3, v{V_LANE}")
    a.e(f"v_lshl_add_u32 v14, v15, 3, v14")
    a.e(f"v_mul_u32_u24 v13, {L_U - L_G}, v13")
    a.e(f"v_add_u32 v14, v14, v13")
    a.e(f"s_mul_i32 s{S_T0}, s{S_FW}, 96")
    a.e(f"s_add_u32 s{S_T0}, s{S_T0}, {L_G}")
    a.e(f"v_add_u32 v{V_AADDR}, s{S_T0}, v14")

def g1_stage_offsets(a):
    a.e(f"s_lshl_b32 s{S_XO}, s{S_KC}, 7")
    a.e(f"s_add_u32 s{S_XO}, s{S_XO}, s{S_XW}")
    a.e(f"s_mul_i32 s{S_WO}, s{S_KC}, {64 * 2752}")
    a.e(f"s_add_u32 s{S_WO}, s{S_WO}, s{S_WW}")
    a.e(f"s_add_u32 s{S_KC}, s{S_KC}, 1")
    a.e(f"s_and_b32 s{S_KC}, s{S_KC}, 7")

def g1_dma_list(slot, tag):
    S = slot * SLOT
    out = []
    for q in range(4):
        out.append((f"s_add_u32 m0, s{S_LX}, {S + L_X + q * 1024}",
                    f"buffer_load_dwordx4 v{V_XOFF+q}, s[{SRD_X}:{SRD_X+3}], s{S_XO} offen lds"))
    for q in range(3):
        out.append((f"s_add_u32 m0, s{S_LW}, {S + L_G + q * 1024}",
                    f"buffer_load_dwordx4 v{V_WOFF+q}, s[{SRD_WG}:{SRD_WG+3}], s{S_WO} offen lds"))
        out.append((f"s_add_u32 m0, s{S_LW}, {S + L_U + q * 1024}",
                    f"buffer_load_dwordx4 v{V_WOFF+q}, s[{SRD_WU}:{SRD_WU+3}], s{S_WO} offen lds"))
    return out

def g1_dma_stage(a, stage):
    g1_stage_offsets(a)
    for m0, ld in g1_dma_list(stage % 3, f"st{stage}"):
        a.e(m0)
        a.e("s_nop 0")
        a.vm(ld, f"st{stage}")

def dpp_reduce(a, regs):
    steps = ["quad_perm:[1,0,3,2] row_mask:0xf bank_mask:0xf", "quad_perm:[2,3,0,1] row_mask:0xf bank_mask:0xf",
             "row_half_mirror row_mask:0xf bank_mask:0xf", "row_mirror row_mask:0xf bank_mask:0xf",
             "row_bcast:15 row_mask:0xa bank_mask:0xf", "row_bcast:31 row_mask:0xc bank_mask:0xf"]
    for st in steps:
        pad = 3 - len(regs)
        if pad > 0:
            a.e(f"s_nop {pad - 1}") if pad >= 1 else None
        for r in regs:
            a.e(f"v_add_f32_dpp v{r}, v{r}, v{r} {st}")
    a.e("s_nop 1")

def bf16r(a, v):
    a.e(f"v_cvt_pk_bf16_f32 v{v}, v{v}, v{v}")
    a.e(f"v_lshlrev_b32 v{v}, 16, v{v}")

def ln_compute(a):
    a.vm_wait("ln")
    for r in range(2):
        for d in range(4):
            a.e(f"v_lshlrev_b32 v{16+8*r+2*d}, 16, v{4+4*r+d}")
            a.e(f"v_and_b32 v{17+8*r+2*d}, 0xffff0000, v{4+4*r+d}")
    for r in range(2):
        b = 16 + 8 * r
        a.e(f"v_add_f32 v{32+r}, v{b}, v{b+1}")
        a.e(f"v_add_f32 v{34+r}, v{b+2}, v{b+3}")
        a.e(f"v_add_f32 v{36+r}, v{b+4}, v{b+5}")
        a.e(f"v_add_f32 v{38+r}, v{b+6}, v{b+7}")
    for r in range(2):
        a.e(f"v_add_f32 v{32+r}, v{32+r}, v{34+r}")
        a.e(f"v_add_f32 v{36+r}, v{36+r}, v{38+r}")
    for r in range(2):
        a.e(f"v_add_f32 v{32+r}, v{32+r}, v{36+r}")
    dpp_reduce(a, [32, 33])
    for r in range(2):
        a.e(f"v_readlane_b32 s{S_TMP+r}, v{32+r}, 63")
    a.e("s_nop 1")
    for r in range(2):
        a.e(f"v_mov_b32 v{32+r}, s{S_TMP+r}")
        a.e(f"v_mul_f32 v{32+r}, 0x3b000000, v{32+r}")
    for r in range(2):
        b = 16 + 8 * r
        a.e(f"v_sub_f32 v36, v{b}, v{32+r}")
        a.e(f"v_mul_f32 v{34+r}, v36, v36")
        for d in range(1, 8):
            a.e(f"v_sub_f32 v{36+(d&1)}, v{b+d}, v{32+r}")
            a.e(f"v_fmac_f32 v{34+r}, v{36+(d&1)}, v{36+(d&1)}")
    dpp_reduce(a, [34, 35])
    for r in range(2):
        a.e(f"v_readlane_b32 s{S_TMP+r}, v{34+r}, 63")
    a.e("s_nop 1")
    for r in range(2):
        a.e(f"v_mov_b32 v{34+r}, s{S_TMP+r}")
        a.e(f"v_mul_f32 v{34+r}, 0x3b000000, v{34+r}")
    for r in range(2):
        bf16r(a, 34 + r)
        a.e(f"v_add_f32 v{34+r}, 0x3727c5ac, v{34+r}")
    for r in range(2):
        bf16r(a, 34 + r)
    for r in range(2):
        a.e(f"v_sqrt_f32 v{34+r}, v{34+r}")
    a.e("s_nop 0")
    for r in range(2):
        bf16r(a, 34 + r)
    for r in range(2):
        a.e(f"v_rcp_f32 v{34+r}, v{34+r}")
    for r in range(2):
        bf16r(a, 32 + r)
    for r in range(2):
        b = 16 + 8 * r
        for d in range(8):
            a.e(f"v_sub_f32 v{b+d}, v{b+d}, v{32+r}")
        for d in range(4):
            a.e(f"v_cvt_pk_bf16_f32 v{4+4*r+d}, v{b+2*d}, v{b+2*d+1}")
        for d in range(4):
            a.e(f"v_lshlrev_b32 v{b+2*d}, 16, v{4+4*r+d}")
            a.e(f"v_and_b32 v{b+2*d+1}, 0xffff0000, v{4+4*r+d}")
        for d in range(8):
            a.e(f"v_mul_f32 v{b+d}, v{b+d}, v{34+r}")
        for d in range(4):
            a.e(f"v_cvt_pk_bf16_f32 v{4+4*r+d}, v{b+2*d}, v{b+2*d+1}")
    a.e(f"s_mul_i32 s{S_T0}, s{S_W}, {2*1088}")
    a.e(f"s_add_u32 s{S_T0}, s{S_T0}, {L_LN}")
    a.e(f"v_lshl_add_u32 v2, v{V_LANE}, 4, s{S_T0}")
    a.e("ds_write_b128 v2, v[4:7]")
    a.e("ds_write_b128 v2, v[8:11] offset:1088")
    a.e("v_mov_b32 v12, v34")
    a.e("v_cvt_pk_bf16_f32 v13, -v32, -v32")
    a.e("v_mov_b32 v14, v35")
    a.e("v_cvt_pk_bf16_f32 v15, -v33, -v33")
    a.e(f"s_lshl_b32 s{S_T0}, s{S_I}, 7")
    a.e(f"s_lshl_b32 s{S_T1}, s{S_J}, 3")
    a.e(f"s_add_u32 s{S_T0}, s{S_T0}, s{S_T1}")
    a.e(f"s_lshl_b32 s{S_T1}, s{S_W}, 1")
    a.e(f"s_add_u32 s{S_T1}, s{S_T0}, s{S_T1}")
    a.e(f"s_lshl_b32 s{S_T1}, s{S_T1}, 3")
    a.e(f"s_add_u32 s{S_T1}, s{S_T1}, {WS_STATS}")
    a.e(f"v_mov_b32 v3, s{S_T1}")
    a.e(f"s_mov_b64 s[{S_EXEC}:{S_EXEC+1}], exec")
    a.e("s_mov_b64 exec, 1")
    a.vm(f"global_store_dwordx4 v3, v[12:15], s[{P_WS}:{P_WS+1}] sc1", "pubA")
    a.e(f"s_mov_b64 exec, s[{S_EXEC}:{S_EXEC+1}]")
    a.e("s_waitcnt lgkmcnt(0)")
    a.e("s_barrier")
    a.e(f"v_bfe_u32 v2, v{V_LANE}, 2, 2")
    a.e(f"v_mul_u32_u24 v2, 1088, v2")
    a.e(f"v_lshrrev_b32 v3, 4, v{V_LANE}")
    a.e(f"v_lshl_add_u32 v2, v3, 5, v2")
    a.e(f"v_and_b32 v3, 3, v{V_LANE}")
    a.e(f"v_lshl_add_u32 v2, v3, 3, v2")
    a.e(f"s_lshl_b32 s{S_T1}, s{S_W}, 8")
    a.e(f"s_add_u32 s{S_T1}, s{S_T1}, {L_LN}")
    a.e(f"v_add_u32 v2, s{S_T1}, v2")
    for q in range(2):
        a.e(f"ds_read_b64_tr_b16 v[{4+4*q}:{5+4*q}], v2 offset:{128*q}")
        a.e(f"ds_read_b64_tr_b16 v[{6+4*q}:{7+4*q}], v2 offset:{128*q + 4*1088}")
    a.e(f"s_lshl_b32 s{S_T0}, s{S_T0}, 10")
    a.e(f"s_lshl_b32 s{S_T1}, s{S_W}, 11")
    a.e(f"s_add_u32 s{S_T0}, s{S_T0}, s{S_T1}")
    a.e(f"s_add_u32 s{S_T0}, s{S_T0}, {WS_XT}")
    a.e(f"v_lshl_add_u32 v3, v{V_LANE}, 4, s{S_T0}")
    a.e("s_waitcnt lgkmcnt(0)")
    a.vm(f"global_store_dwordx4 v3, v[4:7], s[{P_WS}:{P_WS+1}] sc1", "pubA")
    a.vm(f"global_store_dwordx4 v3, v[8:11], s[{P_WS}:{P_WS+1}] offset:1024 sc1", "pubA")

def g1_reads(st, s):
    r = []
    for tt in range(2):
        r.append(f"ds_read_b128 {vr(fB(st,tt),4)}, v{V_BADDR+s} offset:{tt*4096}")
    for ap in range(3):
        for h in range(2):
            r.append(f"ds_read_b64_tr_b16 {vr(fA(st,ap)+2*h,2)}, v{V_AADDR} offset:{s*3072 + h*768 + ap*32}")
    return r

def g1_mfmas(st, first):
    m = []
    for ap in range(3):
        for tt in range(2):
            c = "0" if first else vr(acc(tt, ap), 16)
            m.append(f"v_mfma_f32_32x32x16_bf16 {vr(acc(tt,ap),16)}, {vr(fA(st,ap),4)}, {vr(fB(st,tt),4)}, {c}")
    return m

def interleave(a, mf, others):
    n = len(mf)
    k = 0
    for idx, m in enumerate(mf):
        a.e(m)
        upto = (len(others) * (idx + 1) + n - 1) // n
        while k < upto:
            t = others[k]
            if isinstance(t, tuple):
                a.vm(t[0], t[1])
            else:
                a.e(t)
            k += 1

def g1_main(a, hooks):
    for r in range(4):
        a.e(f"v_mov_b32 v{V_ONES+r}, 0x3f803f80")
    a.vm_wait("st0")
    a.e("s_barrier")
    for x in g1_reads(0, 0):
        a.e(x)
    st = 0
    for stage in range(8):
        for s in range(4):
            others = []
            last = (stage == 7 and s == 3)
            if s == 3 and not last:
                a.e("s_waitcnt lgkmcnt(0)")
                a.vm_wait(f"st{stage+1}")
                for hk in hooks.get(("pre_barrier", stage), []):
                    hk(a)
                a.e("s_barrier")
                for hk in hooks.get(("post_barrier", stage), []):
                    hk(a)
                d = SLOT if (stage + 1) % 3 != 0 else -2 * SLOT
                for q in range(4):
                    a.e(f"v_add_u32 v{V_BADDR+q}, {d & 0xffffffff}, v{V_BADDR+q}")
                a.e(f"v_add_u32 v{V_AADDR}, {d & 0xffffffff}, v{V_AADDR}")
                others += g1_reads(st ^ 1, 0)
                if stage + 3 < 8:
                    g1_stage_offsets(a)
                    for m0, ld in g1_dma_list(stage % 3, f"st{stage+3}"):
                        others.append(m0)
                        others.append("s_nop 0")
                        others.append((ld, f"st{stage+3}"))
            else:
                a.e("s_waitcnt lgkmcnt(0)")
                if not last:
                    others += g1_reads(st ^ 1, s + 1)
            mf = g1_mfmas(st, stage == 0 and s == 0)
            if stage == 0:
                lab = a.label("nocs")
                a.e(f"s_lshl_b32 s{S_T0}, s{S_TW}, 1")
                a.e(f"s_or_b32 s{S_T0}, s{S_T0}, s{S_CSH}")
                a.e(f"s_cmp_lg_u32 s{S_T0}, {s >> 1}")
                a.e(f"s_cbranch_scc1 {lab}")
                for ap in range(3):
                    c = "0" if s % 2 == 0 else vr(V_CSACC + 16 * ap, 16)
                    a.e(f"v_mfma_f32_32x32x16_bf16 {vr(V_CSACC+16*ap,16)}, {vr(V_ONES,4)}, {vr(fA(st,ap),4)}, {c}")
                a.e(f"{lab}:")
            interleave(a, mf, others)
            st ^= 1
        for hk in hooks.get(("stage_end", stage), []):
            hk(a)

def cs_store(a):
    lab = a.label("nocsst")
    a.e(f"s_cmp_lg_u32 s{S_TW}, 0")
    a.e(f"s_cbranch_scc1 {lab}")
    a.e(f"s_mul_i32 s{S_T0}, s{S_J}, 6")
    a.e(f"s_mul_i32 s{S_T1}, s{S_FW}, 3")
    a.e(f"s_add_u32 s{S_T0}, s{S_T0}, s{S_T1}")
    a.e(f"s_lshl_b32 s{S_T0}, s{S_T0}, 11")
    a.e(f"s_lshl_b32 s{S_T1}, s{S_I}, 2")
    a.e(f"s_add_u32 s{S_T0}, s{S_T0}, s{S_T1}")
    a.e(f"s_add_u32 s{S_T0}, s{S_T0}, {WS_CS}")
    a.e(f"v_lshl_add_u32 v3, v{V_LANE}, 6, s{S_T0}")
    a.e(f"s_mov_b64 s[{S_EXEC}:{S_EXEC+1}], exec")
    a.e("s_mov_b64 exec, 0xffffffff")
    for ap in range(3):
        a.e(f"global_store_dword v3, v{V_CSACC+16*ap}, s[{P_WS}:{P_WS+1}] offset:{2048*ap if ap < 2 else 0} sc1" if ap < 2 else
            f"v_add_u32 v3, 4096, v3\nglobal_store_dword v3, v{V_CSACC+16*ap}, s[{P_WS}:{P_WS+1}] sc1")
    a.e(f"s_mov_b64 exec, s[{S_EXEC}:{S_EXEC+1}]")
    a.e(f"{lab}:")

V_ST = 2
def g1_post_loads(a):
    a.e(f"s_lshl_b32 s{S_T0}, s{S_I}, 7")
    a.e(f"s_lshl_b32 s{S_T1}, s{S_TW}, 6")
    a.e(f"s_add_u32 s{S_T0}, s{S_T0}, s{S_T1}")
    a.e(f"s_lshl_b32 s{S_T0}, s{S_T0}, 3")
    a.e(f"s_add_u32 s{S_T0}, s{S_T0}, {WS_STATS}")
    a.e(f"v_and_b32 v6, 31, v{V_LANE}")
    a.e(f"v_lshl_add_u32 v7, v6, 3, s{S_T0}")
    a.vm(f"global_load_dwordx2 v[2:3], v7, s[{P_WS}:{P_WS+1}] sc1", "post")
    a.vm(f"global_load_dwordx2 v[4:5], v7, s[{P_WS}:{P_WS+1}] offset:256 sc1", "post")
    a.e(f"s_mul_i32 s{S_T0}, s{S_J}, 6")
    a.e(f"s_mul_i32 s{S_T1}, s{S_FW}, 3")
    a.e(f"s_add_u32 s{S_T0}, s{S_T0}, s{S_T1}")
    a.e(f"s_lshl_b32 s{S_T0}, s{S_T0}, 11")
    a.e(f"s_add_u32 s{S_T0}, s{S_T0}, {WS_CS}")
    a.e(f"v_lshl_add_u32 v7, v6, 6, s{S_T0}")
    a.e(f"v_lshrrev_b32 v8, 5, v{V_LANE}")
    a.e(f"v_lshl_add_u32 v7, v8, 5, v7")
    for ap in range(3):
        if ap == 2:
            a.e("v_add_u32 v7, 4096, v7")
        off = 2048 * ap if ap < 2 else 0
        a.vm(f"global_load_dwordx4 {vr(16+8*ap,4)}, v7, s[{P_WS}:{P_WS+1}] offset:{off} sc1", "post")
        a.vm(f"global_load_dwordx4 {vr(20+8*ap,4)}, v7, s[{P_WS}:{P_WS+1}] offset:{off+16} sc1", "post")

def g1_correction(a):
    a.vm_wait("post")
    for ap in range(3):
        b = 16 + 8 * ap
        for x, y in ((0, 1), (2, 3), (4, 5), (6, 7), (0, 2), (4, 6), (0, 4)):
            a.e(f"v_add_f32 v{b+x}, v{b+x}, v{b+y}")
    for ap in range(3):
        b = 16 + 8 * ap
        a.e(f"v_mov_b32 v{b+1}, v{b}")
    a.e("s_nop 1")
    for ap in range(3):
        b = 16 + 8 * ap
        a.e(f"v_permlane32_swap_b32 v{b}, v{b+1}")
    for ap in range(3):
        b = 16 + 8 * ap
        a.e(f"v_add_f32 v{b}, v{b}, v{b+1}")
    a.e(f"v_cmp_gt_u32 vcc, 32, v{V_LANE}")
    for ap in range(3):
        b = 16 + 8 * ap
        a.e(f"v_cvt_pk_bf16_f32 v{b+1}, v{b}, v{b}")
        a.e(f"v_lshlrev_b32 v{b+2}, 16, v{b+1}")
        a.e(f"v_sub_f32 v{b+2}, v{b}, v{b+2}")
        a.e(f"v_cvt_pk_bf16_f32 v{b+1}, v{b+1-1+0}, v{b+2}") if False else None
        a.e(f"v_cvt_pk_bf16_f32 v{b+4}, v{b}, v{b+2}")
        a.e(f"v_cndmask_b32 v{b+4}, 0, v{b+4}, vcc")
        a.e(f"v_mov_b32 v{b+5}, 0")
        a.e(f"v_mov_b32 v{b+6}, 0")
        a.e(f"v_mov_b32 v{b+7}, 0")
    for tt in range(2):
        a.e(f"v_cndmask_b32 v{44+4*tt}, 0, v{3+2*tt}, vcc")
        for d in range(1, 4):
            a.e(f"v_mov_b32 v{44+4*tt+d}, 0")
    a.e("s_nop 1")
    for ap in range(3):
        for tt in range(2):
            a.e(f"v_mfma_f32_32x32x16_bf16 {vr(acc(tt,ap),16)}, {vr(20+8*ap,4)}, {vr(44+4*tt,4)}, {vr(acc(tt,ap),16)}")

C1 = -2.0 * math.sqrt(2.0 / math.pi) * math.log2(math.e)
C2 = C1 * 0.044715
def g1_epilogue(a):
    a.e(f"v_mov_b32 v52, {fhex(C1)}")
    a.e(f"v_mov_b32 v53, {fhex(C2)}")
    a.e("v_rcp_f32 v54, v2")
    a.e("v_rcp_f32 v56, v4")
    a.e(f"s_lshl_b32 s{S_T0}, s{S_I}, 2")
    a.e(f"s_lshl_b32 s{S_T1}, s{S_TW}, 1")
    a.e(f"s_add_u32 s{S_T0}, s{S_T0}, s{S_T1}")
    a.e(f"s_mul_i32 s{S_T0}, s{S_T0}, 86")
    a.e(f"s_lshl_b32 s{S_T1}, s{S_U0}, 1")
    a.e(f"s_add_u32 s{S_T0}, s{S_T0}, s{S_T1}")
    a.e(f"s_mul_i32 s{S_T1}, s{S_FW}, 3")
    a.e(f"s_add_u32 s{S_T0}, s{S_T0}, s{S_T1}")
    a.e(f"s_lshl_b32 s{S_T0}, s{S_T0}, 10")
    a.e(f"s_add_u32 s{S_T0}, s{S_T0}, {WS_H}")
    a.e(f"v_lshl_add_u32 v58, v{V_LANE}, 4, s{S_T0}")
    a.e(f"v_add_u32 v59, {86*1024}, v58")
    a.e(f"s_sub_u32 s{S_T2}, s{S_NU}, s{S_T1}")
    a.e("s_nop 7")
    a.e("s_nop 3")
    done = a.label("epi_done")
    for ap in range(3):
        if ap > 0:
            a.e(f"s_cmp_le_u32 s{S_T2}, {ap}")
            a.e(f"s_cbranch_scc1 {done}")
        for tt in range(2):
            c = acc(tt, ap)
            R = 2 + 2 * tt
            Sg = 54 + 2 * tt
            G, T, X = 6, 14, 22
            for p in range(4):
                a.e(f"v_pk_mul_f32 {vr(G+2*p,2)}, {vr(c+2*p,2)}, {vr(R,2)} op_sel_hi:[1,0]")
            for p in range(4):
                a.e(f"v_pk_mul_f32 {vr(T+2*p,2)}, {vr(G+2*p,2)}, {vr(G+2*p,2)}")
            for p in range(4):
                a.e(f"v_pk_fma_f32 {vr(T+2*p,2)}, {vr(T+2*p,2)}, {vr(52,2)}, {vr(52,2)} op_sel:[0,1,0] op_sel_hi:[1,1,0]")
            for p in range(4):
                a.e(f"v_pk_mul_f32 {vr(T+2*p,2)}, {vr(T+2*p,2)}, {vr(G+2*p,2)}")
            for p in range(8):
                a.e(f"v_exp_f32 v{T+p}, v{T+p}")
            for p in range(4):
                a.e(f"v_pk_mul_f32 {vr(G+2*p,2)}, {vr(G+2*p,2)}, {vr(c+8+2*p,2)}")
            for p in range(4):
                a.e(f"v_pk_fma_f32 {vr(T+2*p,2)}, {vr(T+2*p,2)}, {vr(Sg,2)}, {vr(Sg,2)} op_sel_hi:[1,0,0]")
            for p in range(8):
                a.e(f"v_rcp_f32 v{T+p}, v{T+p}")
            a.e("s_nop 0")
            for p in range(4):
                a.e(f"v_pk_mul_f32 {vr(G+2*p,2)}, {vr(G+2*p,2)}, {vr(T+2*p,2)}")
            O = X + 4 * ((2 * ap + tt) % 2)
            for p in range(4):
                a.e(f"v_cvt_pk_bf16_f32 v{O+p}, v{G+2*p}, v{G+2*p+1}")
            a.e(f"global_store_dwordx4 v{58+tt}, {vr(O,4)}, s[{P_WS}:{P_WS+1}] offset:{1024*ap} sc1")
    a.e(f"{done}:")


L_KV = 0
KV_CH = 64 * 528
L_KX = 2 * KV_CH
L_KR = L_KX + 4 * 2048
KR_CH = 4608
L_UU = L_KR + 2 * KR_CH
UU_CH = 8320
L_CX = L_UU + 2 * UU_CH
S_D = 76
S_CH, S_MH = 77, 78
V_P = 224
V_XT = 232

def conv_ids(a):
    a.e(f"s_and_b32 s{S_T0}, s{S_WG}, 7")
    a.e(f"s_lshr_b32 s{S_T1}, s{S_WG}, 3")
    a.e(f"s_lshl_b32 s{S_D}, s{S_T0}, 6")
    a.e(f"s_lshl_b32 s{S_T1}, s{S_T1}, 1")
    a.e(f"s_add_u32 s{S_D}, s{S_D}, s{S_T1}")
    a.e(f"s_lshr_b32 s{S_CH}, s{S_W}, 1")
    a.e(f"s_and_b32 s{S_MH}, s{S_W}, 1")
    a.e(f"s_add_u32 s{S_D}, s{S_D}, s{S_CH}")

def kgen_loads(a):
    a.e(f"s_lshl_b32 s{S_T0}, s{S_D}, 8")
    a.e(f"s_lshl_b32 s{S_T1}, s{S_MH}, 7")
    a.e(f"s_add_u32 s{S_T0}, s{S_T0}, s{S_T1}")
    a.e(f"v_lshl_add_u32 v2, v{V_LANE}, 1, s{S_T0}")
    for q, p in enumerate([P_ARE, P_AIM, P_BRE, P_BIM, P_CRE, P_CIM]):
        a.vm(f"global_load_ushort v{V_P+q}, v2, s[{p}:{p+1}]", "kp")
    a.e(f"s_lshl_b32 s{S_T0}, s{S_D}, 1")
    a.e(f"v_mov_b32 v3, s{S_T0}")
    a.vm(f"global_load_ushort v{V_P+6}, v3, s[{P_LDT}:{P_LDT+1}]", "kp")
    a.vm(f"global_load_ushort v{V_P+7}, v3, s[{P_DSK}:{P_DSK+1}]", "kp")

def xt_loads(a):
    a.e(f"s_lshl_b32 s{S_T0}, s{S_MH}, 20")
    a.e(f"s_lshl_b32 s{S_T1}, s{S_D}, 4")
    a.e(f"s_add_u32 s{S_T0}, s{S_T0}, s{S_T1}")
    a.e(f"s_add_u32 s{S_T0}, s{S_T0}, {WS_XT}")
    a.e(f"v_lshl_add_u32 v2, v{V_LANE}, 13, s{S_T0}")
    for q in range(2):
        a.vm(f"global_load_dwordx4 {vr(V_XT+ 6*q, 4)}, v2, s[{P_WS}:{P_WS+1}] sc1", "xt")
        a.e(f"v_add_u32 v3, 8192, v2")
        a.vm(f"global_load_dword v{V_XT+6*q+4}, v3, s[{P_WS}:{P_WS+1}] sc1", "xt")
        if q == 0:
            a.e(f"v_add_u32 v2, {64*8192}, v2")

def cexp(a, dst, al, be, p, t):
    a.e(f"v_mul_f32 v{t}, {fhex(float(p))}, v{al}")
    a.e(f"v_mul_f32 v{t+1}, {fhex(float(p))}, v{be}")
    a.e(f"v_exp_f32 v{t}, v{t}")
    a.e(f"v_fract_f32 v{t+1}, v{t+1}")
    a.e(f"v_cos_f32 v{dst}, v{t+1}")
    a.e(f"v_sin_f32 v{dst+1}, v{t+1}")
    a.e("s_nop 0")
    a.e(f"v_mul_f32 v{dst}, v{dst}, v{t}")
    a.e(f"v_mul_f32 v{dst+1}, v{dst+1}, v{t}")

def cmul(a, dst, x, y):
    a.e(f"v_pk_mul_f32 {vr(dst,2)}, {vr(x,2)}, {vr(y,2)} op_sel_hi:[0,1]")
    a.e(f"v_pk_fma_f32 {vr(dst,2)}, {vr(x,2)}, {vr(y,2)}, {vr(dst,2)} op_sel:[1,1,0] op_sel_hi:[1,0,1] neg_lo:[0,1,0]")

ROWS = [0,1,2,3,4,5,6,7, 256,258,260,None, 260,262,264,None, 512,516,768,772, 516,520,772,776, 1024,1280,1536,1792, 1032,1288,1544,1800]

def kgen(a, pre_b=None, post_b=None):
    a.vm_wait("kp")
    P = V_P
    for q in range(8):
        a.e(f"v_lshlrev_b32 v{P+q}, 16, v{P+q}")
    a.e(f"v_mul_f32 v2, 0x3fb8aa3b, v{P+6}")
    a.e("v_exp_f32 v2, v2")
    a.e("s_nop 0")
    bf16r(a, 2)
    AL, BE, CO = 4, 5, 6
    a.e(f"v_mul_f32 v{AL}, v2, v{P}")
    a.e(f"v_mul_f32 v{AL}, 0x3fb8aa3b, v{AL}")
    a.e(f"v_mul_f32 v{BE}, v2, v{P+1}")
    a.e(f"v_mul_f32 v{BE}, 0.15915494, v{BE}")
    a.e(f"v_mul_f32 v8, v2, v{P+2}")
    a.e(f"v_mul_f32 v9, v2, v{P+3}")
    a.e(f"v_mul_f32 v{CO}, v{P+4}, v8")
    a.e(f"v_fma_f32 v{CO}, -v{P+5}, v9, v{CO}")
    a.e(f"v_mul_f32 v{CO+1}, v{P+4}, v9")
    a.e(f"v_fma_f32 v{CO+1}, v{P+5}, v8, v{CO+1}")
    Z1, Z2, Z4, Z8, Z256 = 10, 12, 14, 16, 18
    cexp(a, Z1, AL, BE, 1, 20)
    cexp(a, Z8, AL, BE, 8, 20)
    cexp(a, Z256, AL, BE, 256, 20)
    cmul(a, Z2, Z1, Z1)
    cmul(a, Z4, Z2, Z2)
    a.e(f"s_mul_i32 s{S_T0}, s{S_CH}, {KV_CH}")
    a.e(f"s_lshl_b32 s{S_T1}, s{S_MH}, 8")
    a.e(f"s_add_u32 s{S_T0}, s{S_T0}, s{S_T1}")
    a.e(f"s_add_u32 s{S_T0}, s{S_T0}, {L_KV}")
    a.e(f"v_lshl_add_u32 v24, v{V_LANE}, 2, s{S_T0}")
    WA = 24
    pk = [25, 26]
    npk = [0]
    def put(vec, pair, row):
        r = pk[npk[0] % 2]; npk[0] += 1
        a.e(f"v_cvt_pk_bf16_f32 v{r}, v{pair}, {'-' if row else ''}v{pair+1}")
        a.e(f"ds_write_b32 v{WA}, v{r} offset:{vec*528}")
    W = [28, 30]
    a.e(f"v_mov_b32 v{W[0]}, 1.0")
    a.e(f"v_mov_b32 v{W[0]+1}, 0")
    colops = []
    for b in range(32):
        cur = W[b % 2]; nxt = W[(b + 1) % 2]
        colops.append(("put", 32 + b, cur))
        if b < 31:
            colops.append(("mul", nxt, cur, Z8))
    R = [32, 34, 36, 38]
    rowops = []
    rowops.append(("put", 0, CO))
    cur = CO
    for e in range(1, 8):
        d = R[e % 2]; rowops.append(("mul", d, cur, Z1)); rowops.append(("put", e, d)); cur = d
    B0, B1 = R[2], R[3]
    rowops.append(("mul", B0, CO, Z256)); rowops.append(("put", 8, B0))
    rowops.append(("mul", R[0], B0, Z2)); rowops.append(("put", 9, R[0]))
    rowops.append(("mul", R[1], R[0], Z2)); rowops.append(("put", 10, R[1])); rowops.append(("put", 12, R[1]))
    rowops.append(("mul", R[0], R[1], Z2)); rowops.append(("put", 13, R[0]))
    rowops.append(("mul", R[1], R[0], Z2)); rowops.append(("put", 14, R[1]))
    rowops.append(("mul", B1, B0, Z256)); rowops.append(("put", 16, B1))
    rowops.append(("mul", R[0], B1, Z4)); rowops.append(("put", 17, R[0])); rowops.append(("put", 20, R[0]))
    rowops.append(("mul", R[1], R[0], Z4)); rowops.append(("put", 21, R[1]))
    rowops.append(("mul", B0, B1, Z256)); rowops.append(("put", 18, B0))
    rowops.append(("mul", R[0], B0, Z4)); rowops.append(("put", 19, R[0])); rowops.append(("put", 22, R[0]))
    rowops.append(("mul", R[1], R[0], Z4)); rowops.append(("put", 23, R[1]))
    bases = [B1, B0, B1, B0]; prev = B0
    for q in range(4):
        rowops.append(("mul", bases[q], prev, Z256)); rowops.append(("put", 24 + q, bases[q]))
        rowops.append(("mul", R[q % 2], bases[q], Z8)); rowops.append(("put", 28 + q, R[q % 2]))
        prev = bases[q]
    n = max(len(colops), len(rowops))
    for q in range(n):
        for ops in (colops, rowops):
            if q < len(ops):
                o = ops[q]
                if o[0] == "put":
                    put(o[1], o[2], o[1] < 32)
                else:
                    cmul(a, o[1], o[2], o[3])
    a.e("v_mov_b32 v25, 0")
    a.e(f"ds_write_b32 v{WA}, v25 offset:{11*528}")
    a.e(f"ds_write_b32 v{WA}, v25 offset:{15*528}")
    a.e(f"v_and_b32 v2, 31, v{V_LANE}")
    a.e(f"v_mul_u32_u24 v2, 528, v2")
    a.e(f"v_lshrrev_b32 v3, 5, v{V_LANE}")
    a.e(f"v_lshl_add_u32 v2, v3, 4, v2")
    a.e(f"v_add_u32 v2, s{S_T0}, v2")
    KD = 64
    FA, FB = 80, 112
    a.e("s_waitcnt lgkmcnt(0)")
    for k in range(8):
        a.e(f"ds_read_b128 {vr(FA+4*k,4)}, v2 offset:{k*32}")
        a.e(f"ds_read_b128 {vr(FB+4*k,4)}, v2 offset:{32*528 + k*32}")
    for k in range(8):
        a.e(f"s_waitcnt lgkmcnt({14 - 2*k})")
        a.e(f"v_mfma_f32_32x32x16_bf16 {vr(KD,16)}, {vr(FA+4*k,4)}, {vr(FB+4*k,4)}, {'0' if k == 0 else vr(KD,16)}")
    a.e(f"s_lshl_b32 s{S_T0}, s{S_W}, 11")
    a.e(f"s_add_u32 s{S_T0}, s{S_T0}, {L_KX}")
    a.e(f"v_lshl_add_u32 v2, v{V_LANE}, 4, s{S_T0}")
    a.e(f"s_xor_b32 s{S_T1}, s{S_W}, 1")
    a.e(f"s_lshl_b32 s{S_T1}, s{S_T1}, 11")
    a.e(f"s_add_u32 s{S_T1}, s{S_T1}, {L_KX}")
    a.e(f"v_lshl_add_u32 v3, v{V_LANE}, 4, s{S_T1}")
    a.e("s_nop 7")
    a.e("s_nop 3")
    lab1, lab2 = a.label("kx1"), a.label("kx2")
    a.e(f"s_cmp_eq_u32 s{S_MH}, 0")
    a.e(f"s_cbranch_scc1 {lab1}")
    a.e(f"ds_write_b128 v2, {vr(KD,4)}")
    a.e(f"ds_write_b128 v2, {vr(KD+4,4)} offset:1024")
    for q in range(8):
        a.e(f"v_mov_b32 v{KD+q}, v{KD+8+q}")
    a.e(f"s_branch {lab2}")
    a.e(f"{lab1}:")
    a.e(f"ds_write_b128 v2, {vr(KD+8,4)}")
    a.e(f"ds_write_b128 v2, {vr(KD+12,4)} offset:1024")
    a.e(f"{lab2}:")
    if pre_b: pre_b(a)
    a.e("s_waitcnt lgkmcnt(0)")
    a.e("s_barrier")
    a.e(f"ds_read_b128 {vr(80,4)}, v3")
    a.e(f"ds_read_b128 {vr(84,4)}, v3 offset:1024")
    if post_b:
        a.e("s_waitcnt lgkmcnt(0)")
        a.e("v_mov_b32 v30, v3")
        post_b(a)
    a.e(f"s_mul_i32 s{S_T0}, s{S_CH}, {KR_CH}")
    a.e(f"s_add_u32 s{S_T0}, s{S_T0}, {L_KR + 504}")
    a.e(f"v_and_b32 v4, 31, v{V_LANE}")
    a.e(f"v_lshlrev_b32 v5, 4, v4")
    a.e(f"v_lshrrev_b32 v6, 5, v{V_LANE}")
    a.e(f"v_lshl_add_u32 v5, v6, 3, v5")
    a.e(f"v_sub_u32 v5, s{S_T0}, v5")
    a.e("s_waitcnt lgkmcnt(0)")
    for q in range(8):
        a.e(f"v_add_f32 v{KD+q}, v{KD+q}, v{80+q}")
    D = KD
    lab1, lab2 = a.label("ex1"), a.label("ex2")
    a.e(f"s_cmp_eq_u32 s{S_MH}, 0")
    a.e(f"s_cbranch_scc0 {lab1}")
    a.e(f"v_cvt_pk_bf16_f32 v8, v{D+3}, v{D+2}")
    a.e(f"v_cvt_pk_bf16_f32 v9, v{D+1}, v{D}")
    a.e(f"v_cvt_pk_bf16_f32 v10, v{D+6}, v{D+5}")
    a.e(f"v_cvt_pk_bf16_f32 v11, v{D+4}, v{D+4}")
    a.e("ds_write_b64 v5, v[8:9] offset:3584")
    a.e("ds_write_b64 v5, v[10:11] offset:3072")
    a.e(f"s_sub_u32 s{S_T0}, s{S_T0}, {504 - 4096}" if False else f"s_add_u32 s{S_T0}, s{S_T0}, {4096 - 504}")
    a.e(f"v_lshl_add_u32 v4, v{V_LANE}, 4, s{S_T0}")
    for q in range(4):
        a.e(f"v_mov_b32 v{12+q}, 0")
    a.e(f"s_mov_b64 s[{S_EXEC}:{S_EXEC+1}], exec")
    a.e("s_mov_b64 exec, 0x3fffffff")
    a.e("ds_write_b128 v4, v[12:15]")
    a.e(f"s_mov_b64 exec, s[{S_EXEC}:{S_EXEC+1}]")
    a.e(f"s_branch {lab2}")
    a.e(f"{lab1}:")
    a.e(f"v_cmp_le_u32 vcc, 32, v{V_LANE}")
    a.e(f"v_and_b32 v7, 1, v{V_LANE}")
    a.e(f"v_cmp_eq_u32 s[{S_TMP}:{S_TMP+1}], 1, v7")
    for q in range(2):
        A_, B_ = D + 2*q, D + 2*q + 1
        a.e(f"v_cndmask_b32 v12, v{A_}, v{B_}, vcc")
        a.e(f"v_cvt_pk_bf16_f32 v{8+2*q+0}, v{B_}, v12")
        a.e(f"v_cvt_pk_bf16_f32 v{8+2*q+1}, v{A_}, v{A_}")
    a.e("ds_write_b64 v5, v[8:9] offset:2560")
    a.e("ds_write_b64 v5, v[10:11] offset:2048")
    for q in range(4):
        a.e(f"v_mov_b32 v{16+2*q}, v{D+4+q}")
        a.e(f"v_mov_b32 v{17+2*q}, v{D+4+q}")
    a.e("s_nop 1")
    for q in range(4):
        a.e(f"v_permlane32_swap_b32 v{16+2*q}, v{17+2*q}")
    for q in range(4):
        a.e(f"v_cndmask_b32 v{16+2*q}, v{16+2*q}, v{D+4+q}, s[{S_TMP}:{S_TMP+1}]")
    for q in range(4):
        a.e(f"v_cvt_pk_bf16_f32 v{24+2*q}, v{D+4+q}, v{D+4+q}")
        a.e(f"v_cvt_pk_bf16_f32 v{25+2*q}, v{D+4+q}, v{16+2*q}")
    for q in range(4):
        a.e(f"ds_write_b64 v5, {vr(24+2*q,2)} offset:{1536 - 512*q}")
    a.e(f"{lab2}:")

def conv_build_u(a):
    a.vm_wait("xt")
    a.e(f"s_mul_i32 s{S_T0}, s{S_CH}, {UU_CH}")
    a.e(f"s_add_u32 s{S_T0}, s{S_T0}, {L_UU}")
    a.e(f"s_lshl_b32 s{S_T1}, s{S_MH}, 11")
    a.e(f"s_add_u32 s{S_T1}, s{S_T1}, s{S_T0}")
    a.e(f"s_add_u32 s{S_T1}, s{S_T1}, 32")
    a.e(f"v_lshl_add_u32 v2, v{V_LANE}, 4, s{S_T1}")
    for q in range(2):
        X = V_XT + 6*q
        for k in range(4):
            a.e(f"v_alignbit_b32 v{8+4*q+k}, v{X+k+1}, v{X+k}, 16")
        a.e(f"ds_write_b128 v2, {vr(X,4)} offset:{1024*q}")
        a.e(f"ds_write_b128 v2, {vr(8+4*q,4)} offset:{4160 + 1024*q}")
    lab = a.label("nopad")
    a.e(f"s_cmp_lg_u32 s{S_MH}, 0")
    a.e(f"s_cbranch_scc1 {lab}")
    a.e(f"v_readlane_b32 s{S_T1}, v{V_XT}, 0")
    a.e("v_mov_b32 v16, 0")
    a.e("s_nop 3")
    a.e(f"s_lshl_b32 s{S_T1}, s{S_T1}, 16")
    a.e(f"v_mov_b32 v17, s{S_T1}")
    a.e(f"v_cmp_eq_u32 vcc, 7, v{V_LANE}")
    a.e(f"v_lshl_add_u32 v18, v{V_LANE}, 2, s{S_T0}")
    a.e(f"v_cndmask_b32 v17, 0, v17, vcc")
    a.e(f"s_mov_b64 s[{S_EXEC}:{S_EXEC+1}], exec")
    a.e("s_mov_b64 exec, 0xff")
    a.e("ds_write_b32 v18, v16")
    a.e("ds_write_b32 v18, v17 offset:4160")
    a.e(f"s_mov_b64 exec, s[{S_EXEC}:{S_EXEC+1}]")
    a.e(f"{lab}:")

CV_A = [64, 128]
CV_B = [96, 160]
CV_ACC = 192
CV_AA = 8
CV_BA = 16
def conv_main(a):
    a.e("s_waitcnt lgkmcnt(0)")
    a.e("s_barrier")
    a.e(f"v_and_b32 v2, 15, v{V_LANE}")
    a.e(f"v_lshrrev_b32 v3, 4, v{V_LANE}")
    a.e(f"v_and_b32 v4, 1, v3")
    a.e(f"v_lshrrev_b32 v3, 1, v3")
    a.e(f"v_lshlrev_b32 v5, 5, v3")
    a.e(f"v_lshlrev_b32 v6, 4, v4")
    a.e(f"v_sub_u32 v5, v5, v6")
    a.e(f"s_lshl_b32 s{S_T2}, s{S_MH}, 6")
    a.e(f"s_mul_i32 s{S_T0}, s{S_CH}, {KR_CH}")
    a.e(f"s_add_u32 s{S_T0}, s{S_T0}, {L_KR + 496}")
    a.e(f"s_add_u32 s{S_T0}, s{S_T0}, s{S_T2}")
    a.e(f"v_lshlrev_b32 v6, 5, v2")
    a.e(f"v_sub_u32 v6, v5, v6")
    a.e(f"v_add_u32 v{CV_BA}, s{S_T0}, v6")
    a.e(f"s_mul_i32 s{S_T0}, s{S_CH}, {UU_CH}")
    a.e(f"s_add_u32 s{S_T0}, s{S_T0}, {L_UU}")
    a.e(f"s_add_u32 s{S_T0}, s{S_T0}, s{S_T2}")
    a.e(f"v_and_b32 v6, 1, v2")
    a.e(f"v_cmp_eq_u32 vcc, 1, v6")
    a.e(f"v_mov_b32 v6, {4160+16}")
    a.e(f"v_lshl_add_u32 v7, v2, 1, v5")
    a.e(f"v_cndmask_b32 v6, v6, 18, vcc") if False else None
    a.e(f"v_mov_b32 v17, 18")
    a.e(f"v_cndmask_b32 v6, v6, v17, vcc")
    a.e(f"v_add_u32 v7, v7, v6")
    a.e(f"v_add_u32 v{CV_AA}, s{S_T0}, v7")
    for al in range(1, 8):
        a.e(f"v_add_u32 v{CV_AA+al}, {512*al}, v{CV_AA}")
    def reads(st, q):
        r = []
        for al in range(8):
            r.append(f"ds_read2_b32 {vr(CV_A[st]+4*al,2)}, v{CV_AA+al} offset0:{32*q} offset1:{32*q+1}")
            r.append(f"ds_read2_b32 {vr(CV_A[st]+4*al+2,2)}, v{CV_AA+al} offset0:{32*q+2} offset1:{32*q+3}")
            r.append(f"ds_read_b128 {vr(CV_B[st]+4*al,4)}, v{CV_BA} offset:{512*(7-al) + 128*q}")
        return r
    for x in reads(0, 0):
        a.e(x)
    st = 0
    for q in range(4):
        a.e("s_waitcnt lgkmcnt(0)")
        mf = []
        for al in range(8):
            for be in range(8 - al):
                I = al + be
                c = "0" if (q == 0 and al == 0) else vr(CV_ACC + 4*I, 4)
                mf.append(f"v_mfma_f32_16x16x32_bf16 {vr(CV_ACC+4*I,4)}, {vr(CV_A[st]+4*al,4)}, {vr(CV_B[st]+4*be,4)}, {c}")
        others = reads(st ^ 1, q + 1) if q < 3 else []
        interleave(a, mf, others)
        st ^= 1

def conv_finish(a):
    a.e(f"s_lshl_b32 s{S_T0}, s{S_W}, 12")
    a.e(f"s_add_u32 s{S_T0}, s{S_T0}, {L_CX}")
    a.e(f"v_lshl_add_u32 v2, v{V_LANE}, 4, s{S_T0}")
    a.e(f"s_xor_b32 s{S_T1}, s{S_W}, 1")
    a.e(f"s_lshl_b32 s{S_T1}, s{S_T1}, 12")
    a.e(f"s_add_u32 s{S_T1}, s{S_T1}, {L_CX}")
    a.e(f"v_lshl_add_u32 v3, v{V_LANE}, 4, s{S_T1}")
    a.e(f"s_mul_i32 s{S_T0}, s{S_CH}, {UU_CH}")
    a.e(f"s_add_u32 s{S_T0}, s{S_T0}, {L_UU + 32}")
    a.e(f"s_lshl_b32 s{S_T1}, s{S_MH}, 11")
    a.e(f"s_add_u32 s{S_T0}, s{S_T0}, s{S_T1}")
    a.e(f"v_and_b32 v4, 15, v{V_LANE}")
    a.e(f"v_lshrrev_b32 v5, 4, v{V_LANE}")
    a.e(f"v_lshlrev_b32 v6, 5, v4")
    a.e(f"v_lshl_add_u32 v6, v5, 3, v6")
    a.e(f"v_add_u32 v6, s{S_T0}, v6")
    for k in range(4):
        a.e(f"ds_read_b64 {vr(40+2*k,2)}, v6 offset:{512*k}")
    a.e("s_nop 4")
    lab1, lab2 = a.label("cx1"), a.label("cx2")
    a.e(f"s_cmp_eq_u32 s{S_MH}, 0")
    a.e(f"s_cbranch_scc1 {lab1}")
    for k in range(4):
        a.e(f"ds_write_b128 v2, {vr(CV_ACC+4*k,4)} offset:{1024*k}")
    for q in range(16):
        a.e(f"v_mov_b32 v{CV_ACC+q}, v{CV_ACC+16+q}")
    a.e(f"s_branch {lab2}")
    a.e(f"{lab1}:")
    for k in range(4):
        a.e(f"ds_write_b128 v2, {vr(CV_ACC+16+4*k,4)} offset:{1024*k}")
    a.e(f"{lab2}:")
    a.e("s_waitcnt lgkmcnt(0)")
    a.e("s_barrier")
    for k in range(4):
        a.e(f"ds_read_b128 {vr(48+4*k,4)}, v3 offset:{1024*k}")
    a.e(f"s_lshl_b32 s{S_T0}, s{S_MH}, 20")
    a.e(f"s_lshl_b32 s{S_T1}, s{S_D}, 7")
    a.e(f"s_add_u32 s{S_T0}, s{S_T0}, s{S_T1}")
    a.e(f"s_add_u32 s{S_T0}, s{S_T0}, {WS_Y}")
    a.e(f"v_lshrrev_b32 v7, 2, v4")
    a.e(f"v_lshlrev_b32 v7, 16, v7")
    a.e(f"v_and_b32 v8, 3, v4")
    a.e(f"v_lshl_add_u32 v7, v8, 5, v7")
    a.e(f"v_lshl_add_u32 v7, v5, 3, v7")
    a.e(f"v_add_u32 v7, s{S_T0}, v7")
    a.e("s_waitcnt lgkmcnt(0)")
    DS = V_P + 7
    for k in range(4):
        y = CV_ACC + 4*k
        for r in range(4):
            a.e(f"v_add_f32 v{y+r}, v{y+r}, v{48+4*k+r}")
        a.e(f"v_lshlrev_b32 v8, 16, v{40+2*k}")
        a.e(f"v_and_b32 v9, 0xffff0000, v{40+2*k}")
        a.e(f"v_lshlrev_b32 v10, 16, v{41+2*k}")
        a.e(f"v_and_b32 v11, 0xffff0000, v{41+2*k}")
        for r in range(4):
            a.e(f"v_mul_f32 v{8+r}, v{8+r}, v{DS}")
        a.e(f"v_cvt_pk_bf16_f32 v12, v8, v9")
        a.e(f"v_cvt_pk_bf16_f32 v13, v10, v11")
        a.e(f"v_cvt_pk_bf16_f32 v14, v{y}, v{y+1}")
        a.e(f"v_cvt_pk_bf16_f32 v15, v{y+2}, v{y+3}")
        for h, (pu, py) in enumerate(((12, 14), (13, 15))):
            a.e(f"v_lshlrev_b32 v{8+2*h}, 16, v{pu}")
            a.e(f"v_and_b32 v{9+2*h}, 0xffff0000, v{pu}")
            a.e(f"v_lshlrev_b32 v{16+2*h}, 16, v{py}")
            a.e(f"v_and_b32 v{17+2*h}, 0xffff0000, v{py}")
        for r in range(4):
            a.e(f"v_add_f32 v{8+r}, v{8+r}, v{16+r}")
        o = 20 + 2*(k % 2)
        a.e(f"v_cvt_pk_bf16_f32 v{o}, v8, v9")
        a.e(f"v_cvt_pk_bf16_f32 v{o+1}, v10, v11")
        a.vm(f"global_store_dwordx2 v7, {vr(o,2)}, s[{P_WS}:{P_WS+1}] sc1", "pubY")
        if k < 3:
            a.e(f"v_add_u32 v7, {4*65536}, v7")

def build_k2(a, name="k2_kernel"):
    prologue(a, name)
    conv_ids(a)
    a.e("s_waitcnt lgkmcnt(0)")
    kgen_loads(a)
    xt_loads(a)
    kgen(a)
    conv_build_u(a)
    conv_main(a)
    conv_finish(a)
    a.e("s_waitcnt vmcnt(0)")
    a.e(f"L_end_{name}:")
    a.e("s_endpgm")


S_TH, S_NT = 79, 80
S_WDO = 81
V_WDOFF = 244
V_WDA = 245
V_HA = 247
L_WD = 0
WD_W = 24576
G2_ACC = 64
def acc2(a_, tt): return G2_ACC + 16 * (2 * a_ + tt)
G2_H = 128
G2_RING = 14
L_RED = 0
L_YB = 49152

def g2_ids(a):
    a.e(f"s_lshr_b32 s{S_TH}, s{S_J}, 3")
    a.e(f"s_and_b32 s{S_NT}, s{S_J}, 7")

def wd_setup(a):
    mk_srd(a, SRD_WD, P_WD, 1376 * 1024)
    a.e(f"s_mul_i32 s{S_WDO}, s{S_W}, {352 * 1024}")
    a.e(f"s_lshl_b32 s{S_T0}, s{S_NT}, 7")
    a.e(f"s_add_u32 s{S_WDO}, s{S_WDO}, s{S_T0}")
    a.e(f"v_lshrrev_b32 v2, 3, v{V_LANE}")
    a.e(f"v_and_b32 v3, 7, v{V_LANE}")
    a.e(f"v_bfe_u32 v4, v2, 1, 1")
    a.e(f"v_lshlrev_b32 v4, 2, v4")
    a.e(f"v_xor_b32 v3, v3, v4")
    a.e(f"v_lshlrev_b32 v3, 4, v3")
    a.e(f"v_lshl_add_u32 v{V_WDOFF}, v2, 10, v3")
    a.e(f"v_lshrrev_b32 v2, 4, v{V_LANE}")
    a.e(f"v_and_b32 v3, 1, v2")
    a.e(f"v_lshrrev_b32 v2, 1, v2")
    a.e(f"v_bfe_u32 v4, v{V_LANE}, 2, 2")
    a.e(f"v_lshl_add_u32 v4, v2, 2, v4")
    a.e(f"v_lshlrev_b32 v4, 7, v4")
    a.e(f"v_lshl_add_u32 v4, v3, 5, v4")
    a.e(f"v_and_b32 v3, 3, v{V_LANE}")
    a.e(f"v_lshl_add_u32 v4, v3, 3, v4")
    a.e(f"s_mul_i32 s{S_T0}, s{S_W}, {WD_W}")
    a.e(f"s_add_u32 s{S_T0}, s{S_T0}, {L_WD}")
    a.e(f"v_add_u32 v4, s{S_T0}, v4")
    a.e(f"v_bfe_u32 v3, v{V_LANE}, 3, 1")
    a.e(f"v_lshlrev_b32 v3, 6, v3")
    a.e(f"v_add_u32 v{V_WDA}, v4, v3")
    a.e(f"v_xor_b32 v3, 64, v3")
    a.e(f"v_add_u32 v{V_WDA+1}, v4, v3")

def wd_dma_list(ks0, n):
    out = []
    for q in range(2 * n):
        out.append([f"s_mul_i32 s{S_T4}, s{S_W}, {WD_W}", f"s_add_u32 m0, s{S_T4}, {L_WD + q*1024}",
                    f"s_add_u32 s{S_T4}, s{S_WDO}, {(16*ks0 + 8*q) * 1024}",
                    f"buffer_load_dwordx4 v{V_WDOFF}, s[{SRD_WD}:{SRD_WD+3}], s{S_T4} offen lds"])
    return out
def wd_dma(a, ks0, n, tag):
    for m in wd_dma_list(ks0, n):
        for x in m[:-1]: a.e(x)
        a.vm(m[-1], tag)
def wd_tr_list(ks0, n):
    out = []
    for k in range(n):
        for t in range(2):
            for h in range(2):
                out.append(f"ds_read_b64_tr_b16 {ar(8*(ks0+k) + 4*t + 2*h, 2)}, v{V_WDA+t} offset:{k*2048 + h*1024}")
    return out

def h_setup(a):
    a.e(f"s_lshl_b32 s{S_T0}, s{S_I}, 2")
    a.e(f"s_lshl_b32 s{S_T1}, s{S_TH}, 1")
    a.e(f"s_add_u32 s{S_T0}, s{S_T0}, s{S_T1}")
    a.e(f"s_mul_i32 s{S_T0}, s{S_T0}, {86*1024}")
    a.e(f"s_add_u32 s{S_T0}, s{S_T0}, {WS_H}")
    a.e(f"v_lshl_add_u32 v{V_HA}, v{V_LANE}, 4, s{S_T0}")
    a.e(f"v_add_u32 v{V_HA+1}, {86*1024}, v{V_HA}")
def h_load(a, q):
    R = G2_H + 8 * (q % G2_RING)
    a.e(f"s_mul_i32 s{S_T0}, s{S_W}, 22")
    a.e(f"s_add_u32 s{S_T0}, s{S_T0}, {q}")
    a.e(f"s_min_u32 s{S_T0}, s{S_T0}, 85")
    a.e(f"s_lshl_b32 s{S_T0}, s{S_T0}, 10")
    a.e(f"v_add_u32 v249, s{S_T0}, v{V_HA}")
    a.e(f"v_add_u32 v250, s{S_T0}, v{V_HA+1}")
    a.vm(f"global_load_dwordx4 {vr(R,4)}, v249, s[{P_WS}:{P_WS+1}] sc1", f"h{q}")
    a.vm(f"global_load_dwordx4 {vr(R+4,4)}, v250, s[{P_WS}:{P_WS+1}] sc1", f"h{q}")

def g2_main(a):
    for q in range(G2_RING):
        h_load(a, q)
    for q in range(22):
        a.vm_wait(f"h{q}")
        R = G2_H + 8 * (q % G2_RING)
        for t in range(2):
            for tt in range(2):
                c = "0" if q == 0 else vr(acc2(t, tt), 16)
                a.e(f"v_mfma_f32_32x32x16_bf16 {vr(acc2(t,tt),16)}, {ar(8*q+4*t,4)}, {vr(R+4*tt,4)}, {c}")
        if q + G2_RING < 22:
            h_load(a, q + G2_RING)

def g2_final_loads(a):
    a.e(f"s_lshl_b32 s{S_T0}, s{S_I}, 7")
    a.e(f"s_lshl_b32 s{S_T1}, s{S_TH}, 6")
    a.e(f"s_add_u32 s{S_T0}, s{S_T0}, s{S_T1}")
    a.e(f"s_and_b32 s{S_T1}, s{S_W}, 1")
    a.e(f"s_lshl_b32 s{S_T1}, s{S_T1}, 5")
    a.e(f"s_add_u32 s{S_T0}, s{S_T0}, s{S_T1}")
    a.e(f"s_lshl_b32 s{S_T0}, s{S_T0}, 10")
    a.e(f"s_lshl_b32 s{S_T1}, s{S_NT}, 7")
    a.e(f"s_add_u32 s{S_T0}, s{S_T0}, s{S_T1}")
    a.e(f"s_lshr_b32 s{S_T1}, s{S_W}, 1")
    a.e(f"s_lshl_b32 s{S_T1}, s{S_T1}, 6")
    a.e(f"s_add_u32 s{S_T0}, s{S_T0}, s{S_T1}")
    a.e(f"v_and_b32 v2, 31, v{V_LANE}")
    a.e(f"v_lshlrev_b32 v2, 10, v2")
    a.e(f"v_lshrrev_b32 v3, 5, v{V_LANE}")
    a.e(f"v_lshl_add_u32 v2, v3, 3, v2")
    a.e(f"v_add_u32 v251, s{S_T0}, v2")
    for q in range(4):
        a.vm(f"global_load_dwordx2 {vr(8+2*q,2)}, v251, s[{P_X}:{P_X+1}] offset:{16*q}", "fx")
def g2_y_loads(a):
    a.e(f"s_lshl_b32 s{S_T0}, s{S_I}, 1")
    a.e(f"s_add_u32 s{S_T0}, s{S_T0}, s{S_TH}")
    a.e(f"s_lshl_b32 s{S_T0}, s{S_T0}, 16")
    a.e(f"s_lshl_b32 s{S_T1}, s{S_NT}, 13")
    a.e(f"s_add_u32 s{S_T0}, s{S_T0}, s{S_T1}")
    a.e(f"s_add_u32 s{S_T0}, s{S_T0}, {WS_Y}")
    a.e(f"v_lshl_add_u32 v2, v0, 4, s{S_T0}")
    a.vm(f"global_load_dwordx4 v[16:19], v2, s[{P_WS}:{P_WS+1}] sc1", "fy")
    a.e(f"v_add_u32 v2, 4096, v2")
    a.vm(f"global_load_dwordx4 v[20:23], v2, s[{P_WS}:{P_WS+1}] sc1", "fy")

def g2_reduce_final(a):
    a.e(f"v_lshlrev_b32 v2, 4, v{V_LANE}")
    a.e("s_nop 7")
    a.e("s_nop 3")
    for o in range(4):
        lab = a.label("red")
        a.e(f"s_cmp_eq_u32 s{S_W}, {o}")
        a.e(f"s_cbranch_scc1 {lab}")
        a.e(f"s_sub_u32 s{S_T0}, s{S_W}, {o+1}")
        a.e(f"s_and_b32 s{S_T0}, s{S_T0}, 3")
        a.e(f"s_lshl_b32 s{S_T0}, s{S_T0}, 12")
        a.e(f"s_add_u32 s{S_T0}, s{S_T0}, {L_RED + o*3*4096}")
        a.e(f"v_add_u32 v3, s{S_T0}, v2")
        for q in range(4):
            a.e(f"ds_write_b128 v3, {vr(G2_ACC+16*o+4*q,4)} offset:{1024*q}")
        a.e(f"{lab}:")
    for o in range(4):
        lab = a.label("own")
        a.e(f"s_cmp_lg_u32 s{S_W}, {o}")
        a.e(f"s_cbranch_scc1 {lab}")
        for q in range(16):
            a.e(f"v_mov_b32 v{24+q}, v{G2_ACC+16*o+q}")
        a.e(f"{lab}:")
    a.vm_wait("fy")
    a.e(f"v_lshrrev_b32 v3, 3, v0")
    a.e(f"v_mul_u32_u24 v3, 192, v3")
    a.e(f"v_and_b32 v4, 7, v0")
    a.e(f"v_lshl_add_u32 v3, v4, 4, v3")
    a.e(f"ds_write_b128 v3, v[16:19] offset:{L_YB}")
    a.e(f"ds_write_b128 v3, v[20:23] offset:{L_YB + 32*192}")
    a.e("s_waitcnt lgkmcnt(0)")
    a.e("s_barrier")
    a.e(f"s_mul_i32 s{S_T0}, s{S_W}, {3*4096}")
    a.e(f"s_add_u32 s{S_T0}, s{S_T0}, {L_RED}")
    a.e(f"v_add_u32 v3, s{S_T0}, v2")
    for sl in range(3):
        for q in range(4):
            a.e(f"ds_read_b128 {vr(64+16*sl+4*q,4)}, v3 offset:{4096*sl + 1024*q}")
    a.e(f"v_lshrrev_b32 v4, 4, v{V_LANE}")
    a.e(f"v_and_b32 v5, 1, v4")
    a.e(f"v_lshrrev_b32 v4, 1, v4")
    a.e(f"v_bfe_u32 v6, v{V_LANE}, 2, 2")
    a.e(f"v_lshl_add_u32 v6, v4, 2, v6")
    a.e(f"v_mul_u32_u24 v6, 192, v6")
    a.e(f"v_lshl_add_u32 v6, v5, 5, v6")
    a.e(f"v_and_b32 v5, 3, v{V_LANE}")
    a.e(f"v_lshl_add_u32 v6, v5, 3, v6")
    a.e(f"s_lshr_b32 s{S_T0}, s{S_W}, 1")
    a.e(f"s_mul_i32 s{S_T0}, s{S_T0}, {32*192}")
    a.e(f"s_and_b32 s{S_T1}, s{S_W}, 1")
    a.e(f"s_lshl_b32 s{S_T1}, s{S_T1}, 6")
    a.e(f"s_add_u32 s{S_T0}, s{S_T0}, s{S_T1}")
    a.e(f"s_add_u32 s{S_T0}, s{S_T0}, {L_YB}")
    a.e(f"v_add_u32 v6, s{S_T0}, v6")
    for q in range(4):
        a.e(f"ds_read_b64_tr_b16 {vr(16+2*q,2)}, v6 offset:{1536*q}")
    a.vm_wait("fx")
    a.e("s_waitcnt lgkmcnt(4)")
    for sl in range(3):
        for q in range(16):
            a.e(f"v_add_f32 v{24+q}, v{24+q}, v{64+16*sl+q}")
    a.e("s_waitcnt lgkmcnt(0)")
    for q in range(4):
        a.e(f"v_cvt_pk_bf16_f32 v40, v{24+4*q}, v{25+4*q}")
        a.e(f"v_cvt_pk_bf16_f32 v41, v{26+4*q}, v{27+4*q}")
        for h in range(2):
            a.e(f"v_lshlrev_b32 v{44+2*h}, 16, v{8+2*q+h}")
            a.e(f"v_and_b32 v{45+2*h}, 0xffff0000, v{8+2*q+h}")
            a.e(f"v_lshlrev_b32 v{48+2*h}, 16, v{16+2*q+h}")
            a.e(f"v_and_b32 v{49+2*h}, 0xffff0000, v{16+2*q+h}")
        for r in range(4):
            a.e(f"v_add_f32 v{44+r}, v{44+r}, v{48+r}")
        a.e(f"v_cvt_pk_bf16_f32 v42, v44, v45")
        a.e(f"v_cvt_pk_bf16_f32 v43, v46, v47")
        for h in range(2):
            a.e(f"v_lshlrev_b32 v{44+2*h}, 16, v{42+h}")
            a.e(f"v_and_b32 v{45+2*h}, 0xffff0000, v{42+h}")
            a.e(f"v_lshlrev_b32 v{48+2*h}, 16, v{40+h}")
            a.e(f"v_and_b32 v{49+2*h}, 0xffff0000, v{40+h}")
        for r in range(4):
            a.e(f"v_add_f32 v{44+r}, v{44+r}, v{48+r}")
        o = 52 + 2*(q % 2)
        a.e(f"v_cvt_pk_bf16_f32 v{o}, v44, v45")
        a.e(f"v_cvt_pk_bf16_f32 v{o+1}, v46, v47")
        a.vm(f"global_store_dwordx2 v251, {vr(o,2)}, s[{P_OUT}:{P_OUT+1}] offset:{16*q}", "out")

def build_k3(a, name="k3_kernel"):
    prologue(a, name)
    g2_ids(a)
    a.e("s_waitcnt lgkmcnt(0)")
    wd_setup(a)
    wd_dma(a, 0, 12, "wd0")
    h_setup(a)
    a.vm_wait("wd0")
    for x in wd_tr_list(0, 12): a.e(x)
    a.e("s_waitcnt lgkmcnt(0)")
    wd_dma(a, 12, 10, "wd1")
    a.vm_wait("wd1")
    for x in wd_tr_list(12, 10): a.e(x)
    a.e("s_waitcnt lgkmcnt(0)")
    g2_final_loads(a)
    g2_y_loads(a)
    g2_main(a)
    a.e("s_barrier")
    g2_reduce_final(a)
    a.e("s_waitcnt vmcnt(0)")
    a.e(f"L_end_{name}:")
    a.e("s_endpgm")

def build_k1(a, name="k1_kernel"):
    stamp(a, 0, real=True) if False else None
    prologue(a, name)
    stamp(a, 0, real=True)
    stamp(a, 1)
    ln_loads(a)
    g1_setup(a)
    for stg in range(3):
        g1_dma_stage(a, stg)
    stamp(a, 2)
    ln_compute(a)
    stamp(a, 3)
    hooks = {("stage_end", 1): [cs_store], ("post_barrier", 0): [lambda a: stamp(a, 4)], ("post_barrier", 3): [lambda a: stamp(a, 5)]}
    g1_main(a, hooks)
    stamp(a, 6)
    g1_post_loads(a)
    g1_correction(a)
    stamp(a, 7)
    g1_epilogue(a)
    stamp(a, 8)
    a.e("s_waitcnt vmcnt(0)")
    stamp(a, 9)
    prof_store(a)
    a.e(f"L_end_{name}:")
    a.e("s_endpgm")

def build_touch(a, name, ws_too=False):
    prologue(a, name)
    a.e("s_waitcnt lgkmcnt(0)")
    bufs = [(P_X, 2048*1024), (P_WG, 512*2752), (P_WU, 512*2752), (P_WD, 1376*1024)] + [(p, 131072) for p in (P_ARE, P_AIM, P_BRE, P_BIM, P_CRE, P_CIM)]
    if ws_too: bufs.append((P_WS, 14 << 20))
    a.e(f"s_lshl_b32 s{S_T0}, s{S_WG}, 8")
    a.e(f"v_add_u32 v2, s{S_T0}, v0")
    a.e(f"v_lshlrev_b32 v2, 4, v2")
    r = 8
    for p, n in bufs:
        mk_srd(a, SRD_X, p, n)
        a.e("v_mov_b32 v3, v2")
        for rep in range((n + (1 << 20) - 1) >> 20):
            a.e(f"buffer_load_dwordx4 v[{r}:{r+3}], v3, s[{SRD_X}:{SRD_X+3}], 0 offen")
            a.e(f"v_add_u32 v3, {1 << 20}, v3")
            r = 8 + ((r - 8 + 4) % 128)
        a.e("s_nop 4")
    a.e("s_waitcnt vmcnt(0)")
    a.e(f"L_end_{name}:")
    a.e("s_endpgm")

WS_PROF = 16 << 20
S_PROF = 82
PROF = False
def stamp(a, idx, real=False):
    if PROF:
        a.e(f"{'s_memrealtime' if real else 's_memtime'} s[{S_PROF+2*idx}:{S_PROF+2*idx+1}]")
def prof_store(a):
    if not PROF: return
    a.e("s_waitcnt lgkmcnt(0)")
    for q in range(10):
        a.e(f"v_mov_b32 v{4+q}, s{S_PROF+2*q}")
    a.e(f"s_lshl_b32 s{S_T0}, s{S_WG}, 2")
    a.e(f"s_add_u32 s{S_T0}, s{S_T0}, s{S_W}")
    a.e(f"s_lshl_b32 s{S_T0}, s{S_T0}, 6")
    a.e(f"s_add_u32 s{S_T0}, s{S_T0}, {WS_PROF}")
    a.e(f"v_mov_b32 v2, s{S_T0}")
    a.e("s_mov_b64 exec, 1")
    a.e(f"global_store_dwordx4 v2, v[4:7], s[{P_WS}:{P_WS+1}]")
    a.e(f"global_store_dwordx4 v2, v[8:11], s[{P_WS}:{P_WS+1}] offset:16")
    a.e(f"global_store_dwordx2 v2, v[12:13], s[{P_WS}:{P_WS+1}] offset:32")

HDR = open('parallel_sum__ssm_conv_s4__geglu_ffn__prompt.s.ref').read().split('; Override')[0].rstrip()

def assemble(kernels, launches):
    out = [HDR]
    for n, g, b, l in launches:
        out.append(f"; @launch kernel={n} grid=({g},1,1) block=({b},1,1) lds={l}")
    out.append('.amdgcn_target "amdgcn-amd-amdhsa--gfx950"')
    out.append('.text')
    for n, bld, v, ag in kernels:
        a = Asm()
        bld(a, n)
        out.append(a.text())
    out.append('.section .rodata,"a"')
    for n, bld, v, ag in kernels:
        out.append(kd(n, v, ag))
    return '\n'.join(out)

if __name__ == "__main__":
    which = sys.argv[1]
    PROF = "prof" in sys.argv
    if which == "k1":
        txt = assemble([("k1_kernel", build_k1, 256, 0)], [("k1_kernel", 256, 256, LDS_BYTES)] * (1 if "one" in sys.argv else 2))
    if which == "k12":
        txt = assemble([("k1_kernel", build_k1, 256, 0), ("k2_kernel", build_k2, 256, 0)],
                       [("k1_kernel", 256, 256, LDS_BYTES)] * 2 + [("k2_kernel", 256, 256, LDS_BYTES)])
    if which == "k123":
        txt = assemble([("k1_kernel", build_k1, 256, 0), ("k2_kernel", build_k2, 256, 0), ("k3_kernel", build_k3, 256, 176)],
                       [("k1_kernel", 256, 256, LDS_BYTES)] * 2 + [("k2_kernel", 256, 256, LDS_BYTES), ("k3_kernel", 256, 256, LDS_BYTES)])
    if which == "list":
        seq = sys.argv[2].split(",")
        def nop(a, name):
            a.e(f".globl {name}\n.p2align 8\n.type {name},@function\n{name}:\ns_endpgm")
        allk = {"k1": ("k1_kernel", build_k1, 256, 0), "k2": ("k2_kernel", build_k2, 256, 0), "k3": ("k3_kernel", build_k3, 256, 176), "nop": ("nop_kernel", nop, 8, 0),
                "t1": ("t1_kernel", lambda a, n: build_touch(a, n, False), 256, 0), "t2": ("t2_kernel", lambda a, n: build_touch(a, n, True), 256, 0)}
        ks = [allk[k] for k in dict.fromkeys(seq)]
        txt = assemble(ks, [(allk[k][0], 256 if k != "nop" else 1, 256 if k != "nop" else 64, LDS_BYTES if k[0] == "k" else 0) for k in seq])
    print(txt)
```

```python
import sys, math
from asmlib import *
import gen as G
from gen import *

NAME = "parallel_sum__ssm_conv_s4__geglu_ffn__prompt_kernel"
S_EP = 34
S_SPIN = 35
WS_DUMMY = 15 << 20
V_POLL = 252
SPIN_MAX = 1 << 17
OPT = {}


class Rec:
    def __init__(self, a):
        self.ops = []
        self.a = a
    def e(self, s):
        for l in s.split('\n'):
            if l.strip():
                self.ops.append(('e', l.strip()))
    def c(self, s): pass
    def vm(self, s, tag): self.ops.append(('vm', s, tag))
    def vm_wait(self, *tags): self.ops.append(('wait', tags))
    def label(self, b): return self.a.label(b)
    def nofill(self, on): self.ops.append(('nofill', on))


def replay(a, ops, fillers, every, start=0):
    fill = list(fillers)
    nof = False
    n = 0
    for o in ops:
        if o[0] == 'nofill':
            nof = o[1]
            continue
        if o[0] == 'e':
            a.e(o[1])
        elif o[0] == 'vm':
            a.vm(o[1], o[2])
        elif o[0] == 'wait':
            a.vm_wait(*o[1])
        n += 1
        if fill and not nof and n >= start and (n - start) % every == 0:
            emit_group(a, fill.pop(0))
    for g in fill:
        emit_group(a, g)


def emit_group(a, g):
    for t in g:
        if isinstance(t, tuple):
            a.vm(t[0], t[1])
        else:
            a.e(t)


def dma_groups(slot, tag):
    return [[m0, "s_nop 0", (ld, tag)] for m0, ld in g1_dma_list(slot, tag)]


def entry(a):
    a.e(f".globl {NAME}\n.p2align 8\n.type {NAME},@function\n{NAME}:")
    a.e(f"s_cmp_ge_u32 s{S_WG}, 256")
    a.e(f"s_cbranch_scc1 L_end")
    a.e("s_load_dwordx16 s[16:31], s[0:1], 0")
    a.e("s_load_dwordx16 s[32:47], s[0:1], 64")
    if not OPT.get("nopf"):
        a.e("s_getpc_b64 s[74:75]")
        a.e("L_pc:")
        a.e(f"s_lshr_b32 s{S_T1}, s{S_WG}, 3")
        a.e(f"s_and_b32 s{S_T1}, s{S_T1}, 15")
        a.e(f"s_lshl_b32 s{S_T1}, s{S_T1}, 11")
        a.e(f"v_lshl_add_u32 v2, v0, 3, s{S_T1}")
        for q in range(OPT.get("pfn", 1)):
            a.vm(f"global_load_dwordx2 v[4:5], v2, s[74:75] offset:{0}", "pf")
    a.e(f"v_and_b32 v{V_LANE}, 63, v0")
    a.e(f"v_lshrrev_b32 v3, 6, v0")
    a.e(f"s_and_b32 s{S_T0}, s{S_WG}, 7")
    a.e(f"v_readfirstlane_b32 s{S_W}, v3")
    a.e(f"s_lshr_b32 s{S_T1}, s{S_WG}, 3")
    a.e(f"s_lshr_b32 s{S_I}, s{S_T0}, 1")
    a.e(f"s_lshl_b32 s{S_I}, s{S_I}, 2")
    a.e(f"s_lshr_b32 s{S_T2}, s{S_T1}, 3")
    a.e(f"s_add_u32 s{S_I}, s{S_I}, s{S_T2}")
    a.e(f"s_and_b32 s{S_J}, s{S_T0}, 1")
    a.e(f"s_lshl_b32 s{S_J}, s{S_J}, 3")
    a.e(f"s_and_b32 s{S_T2}, s{S_T1}, 7")
    a.e(f"s_add_u32 s{S_J}, s{S_J}, s{S_T2}")
    a.e(f"s_lshr_b32 s{S_TW}, s{S_W}, 1")
    a.e(f"s_and_b32 s{S_FW}, s{S_W}, 1")
    a.e(f"s_mul_i32 s{S_U0}, s{S_J}, 3")
    a.e(f"s_lshl_b32 s{S_T2}, s{S_J}, 1")
    a.e(f"s_add_u32 s{S_T2}, s{S_T2}, 11")
    a.e(f"s_min_u32 s{S_U0}, s{S_U0}, s{S_T2}")
    a.e(f"s_cmp_lt_u32 s{S_J}, 11")
    a.e(f"s_cselect_b32 s{S_NU}, 6, 4")
    conv_ids(a)
    g2_ids(a)


def epoch_load(a):
    a.e("v_mov_b32 v3, 0")
    a.vm(f"global_load_dword v6, v3, s[{P_WS}:{P_WS+1}] sc1", "ep")


def epoch_finish(a):
    a.vm_wait("ep")
    a.e("s_nop 0")
    a.e(f"v_readfirstlane_b32 s{S_EP}, v6")
    a.e("s_nop 3")
    a.e(f"s_mul_i32 s{S_TAG}, s{S_EP}, 0x9e3779b1")
    a.e(f"s_add_u32 s{S_TAG}, s{S_TAG}, 0x3c6ef373")


def flag_store(a, region, idx_code):
    lab = a.label("nofl")
    a.e(f"s_cmp_lg_u32 s{S_W}, 0")
    a.e(f"s_cbranch_scc1 {lab}")
    idx_code(a)
    a.e(f"s_lshl_b32 s{S_T0}, s{S_T0}, 2")
    a.e(f"s_add_u32 s{S_T0}, s{S_T0}, {region}")
    a.e(f"v_mov_b32 v2, s{S_T0}")
    a.e(f"v_mov_b32 v3, s{S_TAG}")
    a.e(f"s_mov_b64 s[{S_EXEC}:{S_EXEC+1}], exec")
    a.e("s_mov_b64 exec, 1")
    a.e(f"global_store_dword v2, v3, s[{P_WS}:{P_WS+1}] sc1")
    a.e(f"s_mov_b64 exec, s[{S_EXEC}:{S_EXEC+1}]")
    a.e(f"{lab}:")


def idx_ln(a): a.e(f"s_mov_b32 s{S_T0}, s{S_WG}")
def idx_h(a):
    a.e(f"s_lshl_b32 s{S_T0}, s{S_I}, 4")
    a.e(f"s_add_u32 s{S_T0}, s{S_T0}, s{S_J}")
def idx_y(a):
    a.e(f"s_and_b32 s{S_T0}, s{S_WG}, 7")
    a.e(f"s_lshl_b32 s{S_T0}, s{S_T0}, 5")
    a.e(f"s_lshr_b32 s{S_T1}, s{S_WG}, 3")
    a.e(f"s_add_u32 s{S_T0}, s{S_T0}, s{S_T1}")


def poll_addr(a, kind, vreg):
    if kind == "ln":
        a.e(f"v_lshlrev_b32 v{vreg}, 4, v{V_LANE}")
        a.e(f"v_add_u32 v{vreg}, {WS_FLAG_LN}, v{vreg}")
    elif kind == "h":
        a.e(f"s_lshl_b32 s{S_T0}, s{S_I}, 6")
        a.e(f"s_add_u32 s{S_T0}, s{S_T0}, {WS_FLAG_H}")
        a.e(f"v_and_b32 v{vreg}, 15, v{V_LANE}")
        a.e(f"v_lshl_add_u32 v{vreg}, v{vreg}, 2, s{S_T0}")
    elif kind == "y":
        a.e(f"s_lshl_b32 s{S_T0}, s{S_NT}, 7")
        a.e(f"s_add_u32 s{S_T0}, s{S_T0}, {WS_FLAG_Y}")
        a.e(f"v_and_b32 v{vreg}, 31, v{V_LANE}")
        a.e(f"v_lshl_add_u32 v{vreg}, v{vreg}, 2, s{S_T0}")


def poll_issue(a, kind, vreg, tag):
    if kind == "ln":
        a.vm(f"global_load_dwordx4 {vr(V_POLL,4)}, v{vreg}, s[{P_WS}:{P_WS+1}] sc1", tag)
    else:
        a.vm(f"global_load_dword v{V_POLL}, v{vreg}, s[{P_WS}:{P_WS+1}] sc1", tag)


def poll_check(a, kind, vreg):
    top, ok = a.label("poll"), a.label("pollok")
    a.e(f"s_mov_b32 s{S_SPIN}, 0")
    a.e(f"{top}:")
    a.e(f"v_cmp_ne_u32 vcc, s{S_TAG}, v{V_POLL}")
    if kind == "ln":
        for q in range(1, 4):
            a.e(f"v_cmp_ne_u32 s[74:75], s{S_TAG}, v{V_POLL+q}")
            a.e("s_nop 0")
            a.e("s_or_b64 vcc, vcc, s[74:75]")
    a.e("s_nop 1")
    a.e(f"s_cmp_eq_u64 vcc, 0")
    a.e(f"s_cbranch_scc1 {ok}")
    a.e(f"s_add_u32 s{S_SPIN}, s{S_SPIN}, 1")
    a.e(f"s_cmp_gt_u32 s{S_SPIN}, {SPIN_MAX}")
    a.e(f"s_cbranch_scc1 {ok}")
    a.e("s_sleep 1")
    if kind == "ln":
        a.e(f"global_load_dwordx4 {vr(V_POLL,4)}, v{vreg}, s[{P_WS}:{P_WS+1}] sc1")
    else:
        a.e(f"global_load_dword v{V_POLL}, v{vreg}, s[{P_WS}:{P_WS+1}] sc1")
    a.e("s_waitcnt vmcnt(0)")
    a.e(f"s_branch {top}")
    a.e(f"{ok}:")


def epoch_bump(a):
    lab = a.label("nobump")
    a.e(f"s_or_b32 s{S_T0}, s{S_WG}, s{S_W}")
    a.e(f"s_cmp_lg_u32 s{S_T0}, 0")
    a.e(f"s_cbranch_scc1 {lab}")
    a.e(f"s_add_u32 s{S_T0}, s{S_EP}, 1")
    a.e("v_mov_b32 v2, 0")
    a.e(f"v_mov_b32 v3, s{S_T0}")
    a.e(f"s_mov_b64 s[{S_EXEC}:{S_EXEC+1}], exec")
    a.e("s_mov_b64 exec, 1")
    a.e(f"global_store_dword v2, v3, s[{P_WS}:{P_WS+1}] sc1")
    a.e(f"s_mov_b64 exec, s[{S_EXEC}:{S_EXEC+1}]")
    a.e(f"{lab}:")


def ln_loads2(a):
    a.e(f"s_lshl_b32 s{S_T0}, s{S_I}, 7")
    a.e(f"s_lshl_b32 s{S_T1}, s{S_J}, 3")
    a.e(f"s_add_u32 s{S_T0}, s{S_T0}, s{S_T1}")
    a.e(f"s_lshl_b32 s{S_T1}, s{S_W}, 1")
    a.e(f"s_add_u32 s{S_T0}, s{S_T0}, s{S_T1}")
    a.e(f"s_lshl_b32 s{S_T0}, s{S_T0}, 10")
    a.e(f"v_lshl_add_u32 v7, v{V_LANE}, 4, s{S_T0}")
    a.vm(f"global_load_dwordx4 v[44:47], v7, s[{P_X}:{P_X+1}]", "ln")
    a.vm(f"global_load_dwordx4 v[48:51], v7, s[{P_X}:{P_X+1}] offset:1024", "ln")


def ln_compute2(a):
    a.vm_wait("ln")
    for r in range(2):
        for d in range(4):
            a.e(f"v_lshlrev_b32 v{16+8*r+2*d}, 16, v{44+4*r+d}")
            a.e(f"v_and_b32 v{17+8*r+2*d}, 0xffff0000, v{44+4*r+d}")
    for r in range(2):
        b = 16 + 8*r
        t = 36 + 4*r
        a.e(f"v_pk_add_f32 {vr(t,2)}, {vr(b,2)}, {vr(b+2,2)}")
        a.e(f"v_pk_mul_f32 {vr(t+2,2)}, {vr(b,2)}, {vr(b,2)}")
    for r in range(2):
        b = 16 + 8*r
        t = 36 + 4*r
        a.e(f"v_pk_add_f32 {vr(t,2)}, {vr(t,2)}, {vr(b+4,2)}")
        a.e(f"v_pk_fma_f32 {vr(t+2,2)}, {vr(b+2,2)}, {vr(b+2,2)}, {vr(t+2,2)}")
    for r in range(2):
        b = 16 + 8*r
        t = 36 + 4*r
        a.e(f"v_pk_add_f32 {vr(t,2)}, {vr(t,2)}, {vr(b+6,2)}")
        a.e(f"v_pk_fma_f32 {vr(t+2,2)}, {vr(b+4,2)}, {vr(b+4,2)}, {vr(t+2,2)}")
    for r in range(2):
        b = 16 + 8*r
        t = 36 + 4*r
        a.e(f"v_pk_fma_f32 {vr(t+2,2)}, {vr(b+6,2)}, {vr(b+6,2)}, {vr(t+2,2)}")
        a.e(f"v_add_f32 v{32+r}, v{t}, v{t+1}")
    for r in range(2):
        t = 36 + 4*r
        a.e(f"v_add_f32 v{34+r}, v{t+2}, v{t+3}")
    a.e("s_nop 0")
    dpp_reduce(a, [32, 33, 34, 35])
    for q in range(4):
        a.e(f"v_readlane_b32 s{74+q if q < 2 else 10+q}, v{32+q}, 63")
    a.e("s_nop 1")
    a.e("v_mov_b32 v32, s74")
    a.e("v_mov_b32 v33, s75")
    a.e("v_mov_b32 v34, s12")
    a.e("v_mov_b32 v35, s13")
    a.e("v_mov_b32 v36, 0x3b000000")
    a.e("v_pk_mul_f32 v[32:33], v[32:33], v[36:37] op_sel_hi:[1,0]")
    a.e("v_pk_mul_f32 v[34:35], v[34:35], v[36:37] op_sel_hi:[1,0]")
    a.e("v_pk_fma_f32 v[34:35], v[32:33], v[32:33], v[34:35] neg_lo:[1,0,0] neg_hi:[1,0,0]")
    a.e("v_max_f32 v34, 0, v34")
    a.e("v_max_f32 v35, 0, v35")
    a.e("v_cvt_pk_bf16_f32 v36, v34, v35")
    a.e("v_cvt_pk_bf16_f32 v37, v32, v33")
    a.e("v_lshlrev_b32 v34, 16, v36")
    a.e("v_and_b32 v35, 0xffff0000, v36")
    a.e("v_lshlrev_b32 v32, 16, v37")
    a.e("v_and_b32 v33, 0xffff0000, v37")
    a.e("v_add_f32 v34, 0x3727c5ac, v34")
    a.e("v_add_f32 v35, 0x3727c5ac, v35")
    a.e("v_cvt_pk_bf16_f32 v36, v34, v35")
    a.e("v_lshlrev_b32 v34, 16, v36")
    a.e("v_and_b32 v35, 0xffff0000, v36")
    a.e("v_sqrt_f32 v34, v34")
    a.e("v_sqrt_f32 v35, v35")
    a.e("s_nop 0")
    a.e("v_cvt_pk_bf16_f32 v36, v34, v35")
    a.e("v_lshlrev_b32 v34, 16, v36")
    a.e("v_and_b32 v35, 0xffff0000, v36")
    a.e("v_rcp_f32 v34, v34")
    a.e("v_rcp_f32 v35, v35")
    for r in range(2):
        b = 16 + 8*r
        sel = "op_sel_hi:[1,0]" if r == 0 else "op_sel:[0,1] op_sel_hi:[1,1]"
        for d in range(4):
            a.e(f"v_pk_add_f32 {vr(b+2*d,2)}, {vr(b+2*d,2)}, v[32:33] {sel} neg_lo:[0,1] neg_hi:[0,1]")
    for r in range(2):
        b = 16 + 8*r
        for d in range(4):
            a.e(f"v_cvt_pk_bf16_f32 v{44+4*r+d}, v{b+2*d}, v{b+2*d+1}")
    for r in range(2):
        b = 16 + 8*r
        for d in range(4):
            a.e(f"v_lshlrev_b32 v{b+2*d}, 16, v{44+4*r+d}")
            a.e(f"v_and_b32 v{b+2*d+1}, 0xffff0000, v{44+4*r+d}")
    for r in range(2):
        b = 16 + 8*r
        sel = "op_sel_hi:[1,0]" if r == 0 else "op_sel:[0,1] op_sel_hi:[1,1]"
        for d in range(4):
            a.e(f"v_pk_mul_f32 {vr(b+2*d,2)}, {vr(b+2*d,2)}, v[34:35] {sel}")
    for r in range(2):
        b = 16 + 8*r
        for d in range(4):
            a.e(f"v_cvt_pk_bf16_f32 v{44+4*r+d}, v{b+2*d}, v{b+2*d+1}")
    a.e(f"s_mul_i32 s{S_T0}, s{S_W}, {2*1088}")
    a.e(f"s_add_u32 s{S_T0}, s{S_T0}, {L_LN}")
    a.e(f"v_lshl_add_u32 v2, v{V_LANE}, 4, s{S_T0}")
    a.e("ds_write_b128 v2, v[44:47]")
    a.e("ds_write_b128 v2, v[48:51] offset:1088")
    a.e("v_mov_b32 v40, v34")
    a.e("v_cvt_pk_bf16_f32 v41, -v32, -v32")
    a.e("v_mov_b32 v42, v35")
    a.e("v_cvt_pk_bf16_f32 v43, -v33, -v33")
    a.e(f"s_lshl_b32 s{S_T0}, s{S_I}, 7")
    a.e(f"s_lshl_b32 s{S_T1}, s{S_J}, 3")
    a.e(f"s_add_u32 s{S_T0}, s{S_T0}, s{S_T1}")
    a.e(f"s_lshl_b32 s{S_T1}, s{S_W}, 1")
    a.e(f"s_add_u32 s{S_T1}, s{S_T0}, s{S_T1}")
    a.e(f"s_lshl_b32 s{S_T1}, s{S_T1}, 3")
    a.e(f"s_add_u32 s{S_T1}, s{S_T1}, {WS_STATS}")
    a.e(f"v_mov_b32 v3, s{S_T1}")
    a.nofill(True)
    a.e(f"s_mov_b64 s[{S_EXEC}:{S_EXEC+1}], exec")
    a.e("s_mov_b64 exec, 1")
    a.vm(f"global_store_dwordx4 v3, v[40:43], s[{P_WS}:{P_WS+1}] sc1", "pubA")
    a.e(f"s_mov_b64 exec, s[{S_EXEC}:{S_EXEC+1}]")
    a.nofill(False)
    a.e(f"v_bfe_u32 v2, v{V_LANE}, 2, 2")
    a.e(f"v_mul_u32_u24 v2, 1088, v2")
    a.e(f"v_lshrrev_b32 v3, 4, v{V_LANE}")
    a.e(f"v_lshl_add_u32 v2, v3, 5, v2")
    a.e(f"v_and_b32 v3, 3, v{V_LANE}")
    a.e(f"v_lshl_add_u32 v2, v3, 3, v2")
    a.e(f"s_lshl_b32 s{S_T1}, s{S_W}, 8")
    a.e(f"s_add_u32 s{S_T1}, s{S_T1}, {L_LN}")
    a.e(f"v_add_u32 v2, s{S_T1}, v2")
    a.e(f"s_lshl_b32 s{S_T0}, s{S_T0}, 10")
    a.e(f"s_lshl_b32 s{S_T1}, s{S_W}, 11")
    a.e(f"s_add_u32 s{S_T0}, s{S_T0}, s{S_T1}")
    a.e(f"s_add_u32 s{S_T0}, s{S_T0}, {WS_XT}")
    a.e(f"v_lshl_add_u32 v3, v{V_LANE}, 4, s{S_T0}")
    a.e("s_waitcnt lgkmcnt(0)")
    a.e("s_barrier")
    for q in range(2):
        a.e(f"ds_read_b64_tr_b16 v[{8+4*q}:{9+4*q}], v2 offset:{128*q}")
        a.e(f"ds_read_b64_tr_b16 v[{10+4*q}:{11+4*q}], v2 offset:{128*q + 4*1088}")
    a.e("s_waitcnt lgkmcnt(0)")
    a.vm(f"global_store_dwordx4 v3, v[8:11], s[{P_WS}:{P_WS+1}] sc1", "pubA")
    a.vm(f"global_store_dwordx4 v3, v[12:15], s[{P_WS}:{P_WS+1}] offset:1024 sc1", "pubA")


def g1_main2(a, hooks):
    for r in range(4):
        a.e(f"v_mov_b32 v{V_ONES+r}, 0x3f803f80")
    a.vm_wait("st0")
    a.e("s_barrier")
    for x in g1_reads(0, 0):
        a.e(x)
    st = 0
    pend = []
    share = {3: 3, 0: 3, 1: 2, 2: 2}
    for stage in range(8):
        for s in range(4):
            others = []
            last = (stage == 7 and s == 3)
            a.e("s_waitcnt lgkmcnt(0)")
            if s == 3 and not last:
                assert not pend
                a.vm_wait(f"st{stage+1}")
                for hk in hooks.get(("pre_barrier", stage), []):
                    hk(a)
                a.e("s_barrier")
                for hk in hooks.get(("post_barrier", stage), []):
                    hk(a)
                d = SLOT if (stage + 1) % 3 != 0 else -2 * SLOT
                for q in range(4):
                    a.e(f"v_add_u32 v{V_BADDR+q}, {d & 0xffffffff}, v{V_BADDR+q}")
                a.e(f"v_add_u32 v{V_AADDR}, {d & 0xffffffff}, v{V_AADDR}")
                others += g1_reads(st ^ 1, 0)
                if stage + 3 < 8:
                    g1_stage_offsets(a)
                    pend = dma_groups(stage % 3, f"st{stage+3}")
            elif last:
                a.e("s_barrier")
                for hk in hooks.get(("ring_free",), []):
                    hk(a)
            else:
                others += g1_reads(st ^ 1, s + 1)
            for q in range(min(share[s], len(pend))):
                others += pend.pop(0)
            for hk in hooks.get(("fill", stage, s), []):
                others += hk(a)
            mf = g1_mfmas(st, stage == 0 and s == 0)
            if stage == 0:
                lab = a.label("nocs")
                a.e(f"s_lshl_b32 s{S_T0}, s{S_TW}, 1")
                a.e(f"s_or_b32 s{S_T0}, s{S_T0}, s{S_CSH}")
                a.e(f"s_cmp_lg_u32 s{S_T0}, {s >> 1}")
                a.e(f"s_cbranch_scc1 {lab}")
                for ap in range(3):
                    c = "0" if s % 2 == 0 else vr(V_CSACC + 16 * ap, 16)
                    a.e(f"v_mfma_f32_32x32x16_bf16 {vr(V_CSACC+16*ap,16)}, {vr(V_ONES,4)}, {vr(fA(st,ap),4)}, {c}")
                a.e(f"{lab}:")
            interleave(a, mf, others)
            st ^= 1
        for hk in hooks.get(("stage_end", stage), []):
            hk(a)


def g1_epilogue2(a):
    a.e(f"v_mov_b32 v52, {fhex(C1)}")
    a.e(f"v_mov_b32 v53, {fhex(C2)}")
    a.e("v_rcp_f32 v54, v2")
    a.e("v_rcp_f32 v56, v4")
    a.e(f"s_lshl_b32 s{S_T0}, s{S_I}, 2")
    a.e(f"s_lshl_b32 s{S_T1}, s{S_TW}, 1")
    a.e(f"s_add_u32 s{S_T0}, s{S_T0}, s{S_T1}")
    a.e(f"s_mul_i32 s{S_T0}, s{S_T0}, 86")
    a.e(f"s_lshl_b32 s{S_T1}, s{S_U0}, 1")
    a.e(f"s_add_u32 s{S_T0}, s{S_T0}, s{S_T1}")
    a.e(f"s_mul_i32 s{S_T1}, s{S_FW}, 3")
    a.e(f"s_add_u32 s{S_T0}, s{S_T0}, s{S_T1}")
    a.e(f"s_lshl_b32 s{S_T0}, s{S_T0}, 10")
    a.e(f"s_add_u32 s{S_T0}, s{S_T0}, {WS_H}")
    a.e(f"v_lshl_add_u32 v58, v{V_LANE}, 4, s{S_T0}")
    a.e(f"v_add_u32 v59, {86*1024}, v58")
    a.e(f"s_sub_u32 s{S_T2}, s{S_NU}, s{S_T1}")
    a.e(f"s_lshl_b32 s{S_T0}, s{S_WG}, 12")
    a.e(f"s_add_u32 s{S_T0}, s{S_T0}, {WS_DUMMY}")
    a.e(f"v_lshl_add_u32 v60, v{V_LANE}, 4, s{S_T0}")
    a.e(f"s_cmp_gt_u32 s{S_T2}, 1")
    a.e(f"s_cselect_b64 s[74:75], -1, 0")
    a.e(f"v_cndmask_b32 v61, v60, v59, s[74:75]")
    a.e(f"v_cndmask_b32 v60, v60, v58, s[74:75]")
    a.e("s_nop 7")
    for ap in range(3):
        for tt in range(2):
            c = acc(tt, ap)
            R = 2 + 2 * tt
            Sg = 54 + 2 * tt
            Gq, T, X = 6, 14, 22
            for p in range(4):
                a.e(f"v_pk_mul_f32 {vr(Gq+2*p,2)}, {vr(c+2*p,2)}, {vr(R,2)} op_sel_hi:[1,0]")
            for p in range(4):
                a.e(f"v_pk_mul_f32 {vr(T+2*p,2)}, {vr(Gq+2*p,2)}, {vr(Gq+2*p,2)}")
            for p in range(4):
                a.e(f"v_pk_fma_f32 {vr(T+2*p,2)}, {vr(T+2*p,2)}, {vr(52,2)}, {vr(52,2)} op_sel:[0,1,0] op_sel_hi:[1,1,0]")
            for p in range(4):
                a.e(f"v_pk_mul_f32 {vr(T+2*p,2)}, {vr(T+2*p,2)}, {vr(Gq+2*p,2)}")
            for p in range(8):
                a.e(f"v_exp_f32 v{T+p}, v{T+p}")
            for p in range(4):
                a.e(f"v_pk_mul_f32 {vr(Gq+2*p,2)}, {vr(Gq+2*p,2)}, {vr(c+8+2*p,2)}")
            for p in range(4):
                a.e(f"v_pk_fma_f32 {vr(T+2*p,2)}, {vr(T+2*p,2)}, {vr(Sg,2)}, {vr(Sg,2)} op_sel_hi:[1,0,0]")
            for p in range(8):
                a.e(f"v_rcp_f32 v{T+p}, v{T+p}")
            a.e("s_nop 0")
            for p in range(4):
                a.e(f"v_pk_mul_f32 {vr(Gq+2*p,2)}, {vr(Gq+2*p,2)}, {vr(T+2*p,2)}")
            O = X + 4 * ((2 * ap + tt) % 2)
            for p in range(4):
                a.e(f"v_cvt_pk_bf16_f32 v{O+p}, v{Gq+2*p}, v{Gq+2*p+1}")
            adr = (58 + tt) if ap == 0 else (60 + tt)
            a.vm(f"global_store_dwordx4 v{adr}, {vr(O,4)}, s[{P_WS}:{P_WS+1}] offset:{1024*ap} sc1", "pubH")


WD_R1 = 15
WD_R2 = 7
L_WD1, WD1_W = 0, WD_R1 * 2048
L_WD2, WD2_W = 102400, WD_R2 * 2048
V_WDA2 = 240
S_WDL = 15
S_WDS = 73

def wd_setup2(a):
    mk_srd(a, SRD_WD, P_WD, 1376 * 1024)
    a.e(f"s_mul_i32 s{S_WDO}, s{S_W}, {352 * 1024}")
    a.e(f"s_lshl_b32 s{S_T0}, s{S_NT}, 7")
    a.e(f"s_add_u32 s{S_WDO}, s{S_WDO}, s{S_T0}")
    a.e(f"v_lshrrev_b32 v6, 3, v{V_LANE}")
    a.e(f"v_and_b32 v7, 7, v{V_LANE}")
    a.e(f"v_bfe_u32 v8, v6, 1, 1")
    a.e(f"v_lshlrev_b32 v8, 2, v8")
    a.e(f"v_xor_b32 v7, v7, v8")
    a.e(f"v_lshlrev_b32 v7, 4, v7")
    a.e(f"v_lshl_add_u32 v{V_WDOFF}, v6, 10, v7")
    a.e(f"v_lshrrev_b32 v6, 4, v{V_LANE}")
    a.e(f"v_and_b32 v7, 1, v6")
    a.e(f"v_lshrrev_b32 v6, 1, v6")
    a.e(f"v_bfe_u32 v8, v{V_LANE}, 2, 2")
    a.e(f"v_lshl_add_u32 v8, v6, 2, v8")
    a.e(f"v_lshlrev_b32 v8, 7, v8")
    a.e(f"v_lshl_add_u32 v8, v7, 5, v8")
    a.e(f"v_and_b32 v7, 3, v{V_LANE}")
    a.e(f"v_lshl_add_u32 v8, v7, 3, v8")
    a.e(f"v_bfe_u32 v7, v{V_LANE}, 3, 1")
    a.e(f"v_lshlrev_b32 v7, 6, v7")
    a.e(f"v_add_u32 v9, v8, v7")
    a.e(f"v_xor_b32 v7, 64, v7")
    a.e(f"v_add_u32 v10, v8, v7")
    a.e(f"s_mul_i32 s{S_T0}, s{S_W}, {WD1_W}")
    a.e(f"s_add_u32 s{S_T0}, s{S_T0}, {L_WD1}")
    a.e(f"v_add_u32 v{V_WDA}, s{S_T0}, v9")
    a.e(f"v_add_u32 v{V_WDA+1}, s{S_T0}, v10")
    a.e(f"s_mul_i32 s{S_T0}, s{S_W}, {WD2_W}")
    a.e(f"s_add_u32 s{S_T0}, s{S_T0}, {L_WD2}")
    a.e(f"v_add_u32 v{V_WDA2}, s{S_T0}, v9")
    a.e(f"v_add_u32 v{V_WDA2+1}, s{S_T0}, v10")

def wd_groups(rnd):
    ks0, n, lb, wsz = (0, WD_R1, L_WD1, WD1_W) if rnd == 1 else (WD_R1, WD_R2, L_WD2, WD2_W)
    out = []
    for q in range(2 * n):
        g = []
        if q == 0:
            g += [f"s_mul_i32 s{S_WDL}, s{S_W}, {wsz}", f"s_add_u32 s{S_WDS}, s{S_WDO}, {16*ks0*1024}"]
        g += [f"s_add_u32 m0, s{S_WDL}, {lb + q*1024}"]
        g += ["s_nop 0" if q == 0 else f"s_add_u32 s{S_WDS}, s{S_WDS}, 8192"]
        g += [(f"buffer_load_dwordx4 v{V_WDOFF}, s[{SRD_WD}:{SRD_WD+3}], s{S_WDS} offen lds", f"wd{rnd}")]
        out.append(g)
    return out

def wd_tr(a, rnd):
    ks0, n, va = (0, WD_R1, V_WDA) if rnd == 1 else (WD_R1, WD_R2, V_WDA2)
    out = []
    for k in range(n):
        for t in range(2):
            for h in range(2):
                out.append(f"ds_read_b64_tr_b16 {ar(8*(ks0+k) + 4*t + 2*h, 2)}, v{va+t} offset:{k*2048 + h*1024}")
    return out


def xt_loads2(a):
    a.e(f"s_and_b32 s{S_T0}, s{S_WG}, 7")
    a.e(f"s_lshr_b32 s{S_T1}, s{S_WG}, 3")
    a.e(f"s_lshl_b32 s{S_T0}, s{S_T0}, 6")
    a.e(f"s_lshl_b32 s{S_T1}, s{S_T1}, 1")
    a.e(f"s_add_u32 s{S_T0}, s{S_T0}, s{S_T1}")
    a.e(f"s_lshl_b32 s{S_T0}, s{S_T0}, 4")
    a.e(f"s_lshl_b32 s{S_T1}, s{S_W}, 19")
    a.e(f"s_add_u32 s{S_T0}, s{S_T0}, s{S_T1}")
    a.e(f"s_add_u32 s{S_T0}, s{S_T0}, {WS_XT}")
    a.e(f"v_lshrrev_b32 v6, 1, v{V_LANE}")
    a.e(f"v_lshlrev_b32 v6, 13, v6")
    a.e(f"v_and_b32 v7, 1, v{V_LANE}")
    a.e(f"v_lshl_add_u32 v6, v7, 4, v6")
    a.e(f"v_add_u32 v6, s{S_T0}, v6")
    a.vm(f"global_load_dwordx4 {vr(V_XT,4)}, v6, s[{P_WS}:{P_WS+1}] sc1", "xt")
    a.e(f"v_add_u32 v6, {32*8192}, v6")
    a.vm(f"global_load_dwordx4 {vr(V_XT+4,4)}, v6, s[{P_WS}:{P_WS+1}] sc1", "xt")

V_UA = 242
def u_write_e(a):
    a.vm_wait("xt")
    a.e(f"v_and_b32 v6, 1, v{V_LANE}")
    a.e(f"v_mul_u32_u24 v6, {UU_CH}, v6")
    a.e(f"v_lshrrev_b32 v7, 1, v{V_LANE}")
    a.e(f"v_lshl_add_u32 v6, v7, 4, v6")
    a.e(f"s_lshl_b32 s{S_T0}, s{S_W}, 10")
    a.e(f"s_add_u32 s{S_T0}, s{S_T0}, {L_UU + 32}")
    a.e(f"v_add_u32 v{V_UA}, s{S_T0}, v6")
    a.e(f"ds_write_b128 v{V_UA}, {vr(V_XT,4)}")
    a.e(f"ds_write_b128 v{V_UA}, {vr(V_XT+4,4)} offset:512")
    lab = a.label("nopad")
    a.e(f"s_cmp_lg_u32 s{S_W}, 0")
    a.e(f"s_cbranch_scc1 {lab}")
    a.e(f"v_lshrrev_b32 v6, 3, v{V_LANE}")
    a.e(f"v_mul_u32_u24 v6, {UU_CH}, v6")
    a.e(f"v_and_b32 v7, 7, v{V_LANE}")
    a.e(f"v_lshl_add_u32 v6, v7, 2, v6")
    a.e(f"v_add_u32 v6, {L_UU}, v6")
    a.e("v_mov_b32 v7, 0")
    a.e(f"s_mov_b64 s[{S_EXEC}:{S_EXEC+1}], exec")
    a.e("s_mov_b64 exec, 0xffff")
    a.e("ds_write_b32 v6, v7")
    a.e("s_mov_b64 exec, 0x7f7f")
    a.e("ds_write_b32 v6, v7 offset:4160")
    a.e(f"s_mov_b64 exec, s[{S_EXEC}:{S_EXEC+1}]")
    a.e(f"{lab}:")

def u_write_o(a):
    a.e(f"ds_read_b32 v6, v{V_UA} offset:16")
    a.e(f"ds_read_b32 v7, v{V_UA} offset:{512+16}")
    for q in range(2):
        X = V_XT + 4*q
        for k in range(3):
            a.e(f"v_alignbit_b32 v{8+4*q+k}, v{X+k+1}, v{X+k}, 16")
    a.e("s_waitcnt lgkmcnt(0)")
    a.e(f"v_alignbit_b32 v11, v6, v{V_XT+3}, 16")
    a.e(f"v_alignbit_b32 v15, v7, v{V_XT+7}, 16")
    a.e(f"ds_write_b128 v{V_UA}, v[8:11] offset:4160")
    a.e(f"ds_write_b128 v{V_UA}, v[12:15] offset:{4160+512}")
    lab = a.label("noo7")
    a.e(f"s_cmp_lg_u32 s{S_W}, 0")
    a.e(f"s_cbranch_scc1 {lab}")
    a.e(f"v_lshlrev_b32 v6, 16, v{V_XT}")
    a.e(f"s_mov_b64 s[{S_EXEC}:{S_EXEC+1}], exec")
    a.e("s_mov_b64 exec, 3")
    a.e(f"ds_write_b32 v{V_UA}, v6 offset:{4160 - 4}")
    a.e(f"s_mov_b64 exec, s[{S_EXEC}:{S_EXEC+1}]")
    a.e(f"{lab}:")


def build(a):
    entry(a)
    stamp(a, 0, real=True)
    stamp(a, 1)
    a.e("s_waitcnt lgkmcnt(0)")
    ln_loads2(a)
    epoch_load(a)
    kgen_loads(a)
    g1_setup(a)
    g1_stage_offsets(a)
    for g in dma_groups(0, "st0"):
        emit_group(a, g)
    epoch_finish(a)
    r = Rec(a)
    ln_compute2(r)
    g1_stage_offsets(a)
    off1 = dma_groups(1, "st1")
    upd = Rec(a); g1_stage_offsets(upd)
    off2 = dma_groups(2, "st2")
    off2[0] = [o[1] for o in upd.ops] + off2[0]
    replay(a, r.ops, off1 + off2, every=OPT.get("lnevery", 8), start=4)
    stamp(a, 2)

    def ln_publish(a):
        flag_store(a, WS_FLAG_LN, idx_ln)
    def ln_poll_issue(a):
        poll_addr(a, "ln", 243)
        poll_issue(a, "ln", 243, "pl")
    def ln_poll_check(a):
        a.vm_wait("pl")
        poll_check(a, "ln", 243)
        epoch_bump(a)
        g1_post_loads(a)
        xt_loads2(a)
    def wd_prep(a):
        wd_setup2(a)
    PS = OPT.get("pubstage", 2)
    QS = OPT.get("pollstage", 5)
    hooks = {
        ("stage_end", 0): [cs_store],
        ("post_barrier", PS): [ln_publish],
        ("post_barrier", 3): [wd_prep],
        ("post_barrier", QS): [ln_poll_issue],
        ("post_barrier", 6): [ln_poll_check],
    }
    if PS == 1:
        hooks[("pre_barrier", 1)] = [lambda a: a.e("s_waitcnt vmcnt(0)")]
    g1_main2(a, hooks)
    stamp(a, 3)
    g1_correction(a)
    r = Rec(a)
    g1_epilogue2(r)
    replay(a, r.ops, wd_groups(1), every=OPT.get("epevery", 7), start=30)
    stamp(a, 4)
    a.vm_wait("wd1")
    for x in wd_tr(a, 1):
        a.e(x)
    a.e("s_waitcnt lgkmcnt(0)")
    a.e("s_barrier")
    for g in wd_groups(2):
        emit_group(a, g)
    u_write_e(a)
    stamp(a, 5)
    def pre_b(a):
        a.vm_wait("pubH")
    def post_b(a):
        flag_store(a, WS_FLAG_H, idx_h)
        u_write_o(a)
    kgen(a, pre_b, post_b)
    stamp(a, 6)
    conv_main(a)
    conv_finish(a)
    poll_addr(a, "h", 243)
    poll_issue(a, "h", 243, "ph")
    h_setup(a)
    g2_final_loads(a)
    a.vm_wait("wd2")
    for x in wd_tr(a, 2):
        a.e(x)
    a.vm_wait("pubY")
    a.e("s_waitcnt lgkmcnt(0)")
    a.e("s_barrier")
    flag_store(a, WS_FLAG_Y, idx_y)
    stamp(a, 7)
    a.vm_wait("ph")
    poll_check(a, "h", 243)
    g2_main(a)
    stamp(a, 8) if not OPT.get("endcyc") else None
    poll_addr(a, "y", 243)
    poll_issue(a, "y", 243, "py")
    a.vm_wait("py")
    poll_check(a, "y", 243)
    g2_y_loads(a)
    a.e("s_barrier")
    g2_reduce_final(a)
    a.e("s_waitcnt vmcnt(0)")
    stamp(a, 8) if OPT.get("endcyc") else None
    stamp(a, 9, real=True)
    prof_store(a)
    a.e("L_end:")
    a.e("s_endpgm")


def main():
    G.PROF = "prof" in sys.argv
    G.L_CX = 0
    for x in sys.argv[1:]:
        if "=" in x:
            k, v = x.split("=")
            OPT[k] = int(v)
    a = Asm()
    build(a)
    nl = OPT.get("nlaunch", 0)
    launch = f"; @launch grid=(256,1,1) block=(256,1,1) lds={LDS_BYTES}" if not nl else "\n".join([f"; @launch kernel={NAME} grid=(256,1,1) block=(256,1,1) lds={LDS_BYTES}"] * nl)
    out = [HDR, launch,
           '.amdgcn_target "amdgcn-amd-amdhsa--gfx950"', '.text', a.text(),
           "  .fill 8448, 4, 0xbf800000", '.section .rodata,"a"', kd(NAME, 256, 176)]
    print('\n'.join(out))

if __name__ == "__main__":
    main()
```

```python
import sys, math
from asmlib import *

WS_EPOCH  = 0
WS_FLAG_LN = 4096
WS_FLAG_H  = 8192
WS_FLAG_Y  = 12288
WS_STATS  = 65536
WS_CS     = 131072
WS_XT     = 1 << 20
WS_Y      = 4 << 20
WS_H      = 8 << 20

S_WG = 2
S_W = 3
S_I, S_J = 4, 5
S_TW, S_FW = 6, 7
S_U0 = 8
S_KC = 9
S_T0, S_T1, S_T2, S_T3 = 10, 11, 12, 13
S_TAG = 14
S_T4 = 15
P_X, P_ARE, P_AIM, P_BRE, P_BIM, P_CRE, P_CIM, P_LDT = 16, 18, 20, 22, 24, 26, 28, 30
P_DSK, P_BX, P_WG, P_WU, P_WD, P_OUT, P_DBG, P_WS = 32, 34, 36, 38, 40, 42, 44, 46
SRD_X, SRD_WG, SRD_WU, SRD_WD = 48, 52, 56, 60
S_XW = 64
S_WW = 65
S_XO, S_WO = 66, 67
S_LX, S_LW = 68, 69
S_EXEC = 70
S_NU = 72
S_CSH = 73
S_TMP = 74

SLOT = 41216
L_X, L_G, L_U = 0, 16384, 28704
L_LN = 3 * SLOT
L_CSUM = L_LN + 8 * 1088
LDS_BYTES = 163840

V_TID, V_LANE = 0, 1
V_ACC = 64
def acc(tt, a): return V_ACC + 16 * (3 * tt + a)
V_FR = [160, 180]
def fB(st, tt): return V_FR[st] + 4 * tt
def fA(st, a): return V_FR[st] + 8 + 4 * a
V_XOFF = 200
V_WOFF = 204
V_BADDR = 208
V_AADDR = 212
V_CS = 216
V_CSACC = 16
V_ONES = 220

def prologue(a, name):
    a.e(f".globl {name}\n.p2align 8\n.type {name},@function\n{name}:")
    a.e(f"s_cmp_ge_u32 s{S_WG}, 256")
    a.e(f"s_cbranch_scc1 L_end_{name}")
    a.e("s_load_dwordx16 s[16:31], s[0:1], 0")
    a.e("s_load_dwordx16 s[32:47], s[0:1], 64")
    a.e(f"v_and_b32 v{V_LANE}, 63, v0")
    a.e(f"v_lshrrev_b32 v2, 6, v0")
    a.e(f"s_and_b32 s{S_T0}, s{S_WG}, 7")
    a.e(f"v_readfirstlane_b32 s{S_W}, v2")
    a.e(f"s_lshr_b32 s{S_T1}, s{S_WG}, 3")
    a.e(f"s_lshr_b32 s{S_I}, s{S_T0}, 1")
    a.e(f"s_lshl_b32 s{S_I}, s{S_I}, 2")
    a.e(f"s_lshr_b32 s{S_T2}, s{S_T1}, 3")
    a.e(f"s_add_u32 s{S_I}, s{S_I}, s{S_T2}")
    a.e(f"s_and_b32 s{S_J}, s{S_T0}, 1")
    a.e(f"s_lshl_b32 s{S_J}, s{S_J}, 3")
    a.e(f"s_and_b32 s{S_T2}, s{S_T1}, 7")
    a.e(f"s_add_u32 s{S_J}, s{S_J}, s{S_T2}")
    a.e(f"s_lshr_b32 s{S_TW}, s{S_W}, 1")
    a.e(f"s_and_b32 s{S_FW}, s{S_W}, 1")
    a.e(f"s_mul_i32 s{S_U0}, s{S_J}, 3")
    a.e(f"s_lshl_b32 s{S_T2}, s{S_J}, 1")
    a.e(f"s_add_u32 s{S_T2}, s{S_T2}, 11")
    a.e(f"s_min_u32 s{S_U0}, s{S_U0}, s{S_T2}")
    a.e(f"s_cmp_lt_u32 s{S_J}, 11")
    a.e(f"s_cselect_b32 s{S_NU}, 6, 4")

def ln_loads(a):
    a.e(f"s_lshl_b32 s{S_T0}, s{S_I}, 7")
    a.e(f"s_lshl_b32 s{S_T1}, s{S_J}, 3")
    a.e(f"s_add_u32 s{S_T0}, s{S_T0}, s{S_T1}")
    a.e(f"s_lshl_b32 s{S_T1}, s{S_W}, 1")
    a.e(f"s_add_u32 s{S_T0}, s{S_T0}, s{S_T1}")
    a.e(f"s_lshl_b32 s{S_T0}, s{S_T0}, 10")
    a.e(f"v_lshl_add_u32 v2, v{V_LANE}, 4, s{S_T0}")
    a.e("s_waitcnt lgkmcnt(0)")
    a.vm(f"global_load_dwordx4 v[4:7], v2, s[{P_X}:{P_X+1}]", "ln")
    a.vm(f"global_load_dwordx4 v[8:11], v2, s[{P_X}:{P_X+1}] offset:1024", "ln")

def mk_srd(a, srd, ptr, nbytes):
    a.e(f"s_mov_b32 s{srd}, s{ptr}")
    a.e(f"s_and_b32 s{srd+1}, s{ptr+1}, 0xffff")
    a.e(f"s_mov_b32 s{srd+2}, {nbytes}")
    a.e(f"s_mov_b32 s{srd+3}, 0x20000")

def g1_setup(a):
    mk_srd(a, SRD_X, P_X, 2048 * 1024)
    mk_srd(a, SRD_WG, P_WG, 512 * 2752)
    mk_srd(a, SRD_WU, P_WU, 512 * 2752)
    a.e(f"s_lshl_b32 s{S_T0}, s{S_I}, 7")
    a.e(f"s_lshl_b32 s{S_T1}, s{S_W}, 5")
    a.e(f"s_add_u32 s{S_T0}, s{S_T0}, s{S_T1}")
    a.e(f"s_lshl_b32 s{S_XW}, s{S_T0}, 10")
    a.e(f"s_mul_i32 s{S_WW}, s{S_W}, {16 * 2752}")
    a.e(f"s_lshl_b32 s{S_T0}, s{S_U0}, 6")
    a.e(f"s_add_u32 s{S_WW}, s{S_WW}, s{S_T0}")
    a.e(f"s_lshl_b32 s{S_LX}, s{S_W}, 12")
    a.e(f"s_mul_i32 s{S_LW}, s{S_W}, 3072")
    a.e(f"s_add_u32 s{S_KC}, s{S_I}, s{S_J}")
    a.e(f"s_and_b32 s{S_KC}, s{S_KC}, 7")
    a.e(f"s_lshr_b32 s{S_CSH}, s{S_I}, 3")
    a.e(f"v_lshrrev_b32 v12, 3, v{V_LANE}")
    a.e(f"v_and_b32 v13, 7, v{V_LANE}")
    a.e(f"v_lshrrev_b32 v14, 1, v12")
    for q in range(4):
        a.e(f"v_xor_b32 v15, v14, v13") if q % 2 == 0 else None
        if q % 2 == 1:
            a.e(f"v_xor_b32 v15, 4, v15")
        a.e(f"v_lshlrev_b32 v16, 4, v15")
        a.e(f"v_add_u32 v17, {8*q}, v12")
        a.e(f"v_lshl_add_u32 v{V_XOFF+q}, v17, 10, v16")
    for q in range(3):
        a.e(f"v_add_u32 v12, {64*q}, v{V_LANE}")
        a.e(f"v_mul_u32_u24 v13, 5462, v12")
        a.e(f"v_lshrrev_b32 v13, 16, v13")
        a.e(f"v_mul_u32_u24 v14, 12, v13")
        a.e(f"v_sub_u32 v14, v12, v14")
        a.e(f"v_mul_u32_u24 v13, 2752, v13")
        a.e(f"v_lshl_add_u32 v{V_WOFF+q}, v14, 4, v13")
    a.e(f"v_and_b32 v12, 31, v{V_LANE}")
    a.e(f"v_lshrrev_b32 v13, 5, v{V_LANE}")
    a.e(f"v_bfe_u32 v14, v12, 1, 3")
    a.e(f"s_lshl_b32 s{S_T0}, s{S_TW}, 13")
    a.e(f"v_lshl_add_u32 v15, v12, 7, s{S_T0}")
    for s in range(4):
        a.e(f"v_add_u32 v16, {2*s}, v13")
        a.e(f"v_xor_b32 v16, v16, v14")
        a.e(f"v_lshl_add_u32 v{V_BADDR+s}, v16, 4, v15")
    a.e(f"v_lshrrev_b32 v12, 4, v{V_LANE}")
    a.e(f"v_and_b32 v13, 1, v12")
    a.e(f"v_lshrrev_b32 v12, 1, v12")
    a.e(f"v_bfe_u32 v14, v{V_LANE}, 2, 2")
    a.e(f"v_lshl_add_u32 v14, v12, 3, v14")
    a.e(f"v_mul_u32_u24 v14, 192, v14")
    a.e(f"v_and_b32 v15, 3, v{V_LANE}")
    a.e(f"v_lshl_add_u32 v14, v15, 3, v14")
    a.e(f"v_mul_u32_u24 v13, {L_U - L_G}, v13")
    a.e(f"v_add_u32 v14, v14, v13")
    a.e(f"s_mul_i32 s{S_T0}, s{S_FW}, 96")
    a.e(f"s_add_u32 s{S_T0}, s{S_T0}, {L_G}")
    a.e(f"v_add_u32 v{V_AADDR}, s{S_T0}, v14")

def g1_stage_offsets(a):
    a.e(f"s_lshl_b32 s{S_XO}, s{S_KC}, 7")
    a.e(f"s_add_u32 s{S_XO}, s{S_XO}, s{S_XW}")
    a.e(f"s_mul_i32 s{S_WO}, s{S_KC}, {64 * 2752}")
    a.e(f"s_add_u32 s{S_WO}, s{S_WO}, s{S_WW}")
    a.e(f"s_add_u32 s{S_KC}, s{S_KC}, 1")
    a.e(f"s_and_b32 s{S_KC}, s{S_KC}, 7")

def g1_dma_list(slot, tag):
    S = slot * SLOT
    out = []
    for q in range(4):
        out.append((f"s_add_u32 m0, s{S_LX}, {S + L_X + q * 1024}",
                    f"buffer_load_dwordx4 v{V_XOFF+q}, s[{SRD_X}:{SRD_X+3}], s{S_XO} offen lds"))
    for q in range(3):
        out.append((f"s_add_u32 m0, s{S_LW}, {S + L_G + q * 1024}",
                    f"buffer_load_dwordx4 v{V_WOFF+q}, s[{SRD_WG}:{SRD_WG+3}], s{S_WO} offen lds"))
        out.append((f"s_add_u32 m0, s{S_LW}, {S + L_U + q * 1024}",
                    f"buffer_load_dwordx4 v{V_WOFF+q}, s[{SRD_WU}:{SRD_WU+3}], s{S_WO} offen lds"))
    return out

def g1_dma_stage(a, stage):
    g1_stage_offsets(a)
    for m0, ld in g1_dma_list(stage % 3, f"st{stage}"):
        a.e(m0)
        a.e("s_nop 0")
        a.vm(ld, f"st{stage}")

def dpp_reduce(a, regs):
    steps = ["quad_perm:[1,0,3,2] row_mask:0xf bank_mask:0xf", "quad_perm:[2,3,0,1] row_mask:0xf bank_mask:0xf",
             "row_half_mirror row_mask:0xf bank_mask:0xf", "row_mirror row_mask:0xf bank_mask:0xf",
             "row_bcast:15 row_mask:0xa bank_mask:0xf", "row_bcast:31 row_mask:0xc bank_mask:0xf"]
    for st in steps:
        pad = 3 - len(regs)
        if pad > 0:
            a.e(f"s_nop {pad - 1}") if pad >= 1 else None
        for r in regs:
            a.e(f"v_add_f32_dpp v{r}, v{r}, v{r} {st}")
    a.e("s_nop 1")

def bf16r(a, v):
    a.e(f"v_cvt_pk_bf16_f32 v{v}, v{v}, v{v}")
    a.e(f"v_lshlrev_b32 v{v}, 16, v{v}")

def ln_compute(a):
    a.vm_wait("ln")
    for r in range(2):
        for d in range(4):
            a.e(f"v_lshlrev_b32 v{16+8*r+2*d}, 16, v{4+4*r+d}")
            a.e(f"v_and_b32 v{17+8*r+2*d}, 0xffff0000, v{4+4*r+d}")
    for r in range(2):
        b = 16 + 8 * r
        a.e(f"v_add_f32 v{32+r}, v{b}, v{b+1}")
        a.e(f"v_add_f32 v{34+r}, v{b+2}, v{b+3}")
        a.e(f"v_add_f32 v{36+r}, v{b+4}, v{b+5}")
        a.e(f"v_add_f32 v{38+r}, v{b+6}, v{b+7}")
    for r in range(2):
        a.e(f"v_add_f32 v{32+r}, v{32+r}, v{34+r}")
        a.e(f"v_add_f32 v{36+r}, v{36+r}, v{38+r}")
    for r in range(2):
        a.e(f"v_add_f32 v{32+r}, v{32+r}, v{36+r}")
    dpp_reduce(a, [32, 33])
    for r in range(2):
        a.e(f"v_readlane_b32 s{S_TMP+r}, v{32+r}, 63")
    a.e("s_nop 1")
    for r in range(2):
        a.e(f"v_mov_b32 v{32+r}, s{S_TMP+r}")
        a.e(f"v_mul_f32 v{32+r}, 0x3b000000, v{32+r}")
    for r in range(2):
        b = 16 + 8 * r
        a.e(f"v_sub_f32 v36, v{b}, v{32+r}")
        a.e(f"v_mul_f32 v{34+r}, v36, v36")
        for d in range(1, 8):
            a.e(f"v_sub_f32 v{36+(d&1)}, v{b+d}, v{32+r}")
            a.e(f"v_fmac_f32 v{34+r}, v{36+(d&1)}, v{36+(d&1)}")
    dpp_reduce(a, [34, 35])
    for r in range(2):
        a.e(f"v_readlane_b32 s{S_TMP+r}, v{34+r}, 63")
    a.e("s_nop 1")
    for r in range(2):
        a.e(f"v_mov_b32 v{34+r}, s{S_TMP+r}")
        a.e(f"v_mul_f32 v{34+r}, 0x3b000000, v{34+r}")
    for r in range(2):
        bf16r(a, 34 + r)
        a.e(f"v_add_f32 v{34+r}, 0x3727c5ac, v{34+r}")
    for r in range(2):
        bf16r(a, 34 + r)
    for r in range(2):
        a.e(f"v_sqrt_f32 v{34+r}, v{34+r}")
    a.e("s_nop 0")
    for r in range(2):
        bf16r(a, 34 + r)
    for r in range(2):
        a.e(f"v_rcp_f32 v{34+r}, v{34+r}")
    for r in range(2):
        bf16r(a, 32 + r)
    for r in range(2):
        b = 16 + 8 * r
        for d in range(8):
            a.e(f"v_sub_f32 v{b+d}, v{b+d}, v{32+r}")
        for d in range(4):
            a.e(f"v_cvt_pk_bf16_f32 v{4+4*r+d}, v{b+2*d}, v{b+2*d+1}")
        for d in range(4):
            a.e(f"v_lshlrev_b32 v{b+2*d}, 16, v{4+4*r+d}")
            a.e(f"v_and_b32 v{b+2*d+1}, 0xffff0000, v{4+4*r+d}")
        for d in range(8):
            a.e(f"v_mul_f32 v{b+d}, v{b+d}, v{34+r}")
        for d in range(4):
            a.e(f"v_cvt_pk_bf16_f32 v{4+4*r+d}, v{b+2*d}, v{b+2*d+1}")
    a.e(f"s_mul_i32 s{S_T0}, s{S_W}, {2*1088}")
    a.e(f"s_add_u32 s{S_T0}, s{S_T0}, {L_LN}")
    a.e(f"v_lshl_add_u32 v2, v{V_LANE}, 4, s{S_T0}")
    a.e("ds_write_b128 v2, v[4:7]")
    a.e("ds_write_b128 v2, v[8:11] offset:1088")
    a.e("v_mov_b32 v12, v34")
    a.e("v_cvt_pk_bf16_f32 v13, -v32, -v32")
    a.e("v_mov_b32 v14, v35")
    a.e("v_cvt_pk_bf16_f32 v15, -v33, -v33")
    a.e(f"s_lshl_b32 s{S_T0}, s{S_I}, 7")
    a.e(f"s_lshl_b32 s{S_T1}, s{S_J}, 3")
    a.e(f"s_add_u32 s{S_T0}, s{S_T0}, s{S_T1}")
    a.e(f"s_lshl_b32 s{S_T1}, s{S_W}, 1")
    a.e(f"s_add_u32 s{S_T1}, s{S_T0}, s{S_T1}")
    a.e(f"s_lshl_b32 s{S_T1}, s{S_T1}, 3")
    a.e(f"s_add_u32 s{S_T1}, s{S_T1}, {WS_STATS}")
    a.e(f"v_mov_b32 v3, s{S_T1}")
    a.e(f"s_mov_b64 s[{S_EXEC}:{S_EXEC+1}], exec")
    a.e("s_mov_b64 exec, 1")
    a.vm(f"global_store_dwordx4 v3, v[12:15], s[{P_WS}:{P_WS+1}] sc1", "pubA")
    a.e(f"s_mov_b64 exec, s[{S_EXEC}:{S_EXEC+1}]")
    a.e("s_waitcnt lgkmcnt(0)")
    a.e("s_barrier")
    a.e(f"v_bfe_u32 v2, v{V_LANE}, 2, 2")
    a.e(f"v_mul_u32_u24 v2, 1088, v2")
    a.e(f"v_lshrrev_b32 v3, 4, v{V_LANE}")
    a.e(f"v_lshl_add_u32 v2, v3, 5, v2")
    a.e(f"v_and_b32 v3, 3, v{V_LANE}")
    a.e(f"v_lshl_add_u32 v2, v3, 3, v2")
    a.e(f"s_lshl_b32 s{S_T1}, s{S_W}, 8")
    a.e(f"s_add_u32 s{S_T1}, s{S_T1}, {L_LN}")
    a.e(f"v_add_u32 v2, s{S_T1}, v2")
    for q in range(2):
        a.e(f"ds_read_b64_tr_b16 v[{4+4*q}:{5+4*q}], v2 offset:{128*q}")
        a.e(f"ds_read_b64_tr_b16 v[{6+4*q}:{7+4*q}], v2 offset:{128*q + 4*1088}")
    a.e(f"s_lshl_b32 s{S_T0}, s{S_T0}, 10")
    a.e(f"s_lshl_b32 s{S_T1}, s{S_W}, 11")
    a.e(f"s_add_u32 s{S_T0}, s{S_T0}, s{S_T1}")
    a.e(f"s_add_u32 s{S_T0}, s{S_T0}, {WS_XT}")
    a.e(f"v_lshl_add_u32 v3, v{V_LANE}, 4, s{S_T0}")
    a.e("s_waitcnt lgkmcnt(0)")
    a.vm(f"global_store_dwordx4 v3, v[4:7], s[{P_WS}:{P_WS+1}] sc1", "pubA")
    a.vm(f"global_store_dwordx4 v3, v[8:11], s[{P_WS}:{P_WS+1}] offset:1024 sc1", "pubA")

def g1_reads(st, s):
    r = []
    for tt in range(2):
        r.append(f"ds_read_b128 {vr(fB(st,tt),4)}, v{V_BADDR+s} offset:{tt*4096}")
    for ap in range(3):
        for h in range(2):
            r.append(f"ds_read_b64_tr_b16 {vr(fA(st,ap)+2*h,2)}, v{V_AADDR} offset:{s*3072 + h*768 + ap*32}")
    return r

def g1_mfmas(st, first):
    m = []
    for ap in range(3):
        for tt in range(2):
            c = "0" if first else vr(acc(tt, ap), 16)
            m.append(f"v_mfma_f32_32x32x16_bf16 {vr(acc(tt,ap),16)}, {vr(fA(st,ap),4)}, {vr(fB(st,tt),4)}, {c}")
    return m

def interleave(a, mf, others):
    n = len(mf)
    k = 0
    for idx, m in enumerate(mf):
        a.e(m)
        upto = (len(others) * (idx + 1) + n - 1) // n
        while k < upto:
            t = others[k]
            if isinstance(t, tuple):
                a.vm(t[0], t[1])
            else:
                a.e(t)
            k += 1

def g1_main(a, hooks):
    for r in range(4):
        a.e(f"v_mov_b32 v{V_ONES+r}, 0x3f803f80")
    a.vm_wait("st0")
    a.e("s_barrier")
    for x in g1_reads(0, 0):
        a.e(x)
    st = 0
    for stage in range(8):
        for s in range(4):
            others = []
            last = (stage == 7 and s == 3)
            if s == 3 and not last:
                a.e("s_waitcnt lgkmcnt(0)")
                a.vm_wait(f"st{stage+1}")
                for hk in hooks.get(("pre_barrier", stage), []):
                    hk(a)
                a.e("s_barrier")
                for hk in hooks.get(("post_barrier", stage), []):
                    hk(a)
                d = SLOT if (stage + 1) % 3 != 0 else -2 * SLOT
                for q in range(4):
                    a.e(f"v_add_u32 v{V_BADDR+q}, {d & 0xffffffff}, v{V_BADDR+q}")
                a.e(f"v_add_u32 v{V_AADDR}, {d & 0xffffffff}, v{V_AADDR}")
                others += g1_reads(st ^ 1, 0)
                if stage + 3 < 8:
                    g1_stage_offsets(a)
                    for m0, ld in g1_dma_list(stage % 3, f"st{stage+3}"):
                        others.append(m0)
                        others.append("s_nop 0")
                        others.append((ld, f"st{stage+3}"))
            else:
                a.e("s_waitcnt lgkmcnt(0)")
                if not last:
                    others += g1_reads(st ^ 1, s + 1)
            mf = g1_mfmas(st, stage == 0 and s == 0)
            if stage == 0:
                lab = a.label("nocs")
                a.e(f"s_lshl_b32 s{S_T0}, s{S_TW}, 1")
                a.e(f"s_or_b32 s{S_T0}, s{S_T0}, s{S_CSH}")
                a.e(f"s_cmp_lg_u32 s{S_T0}, {s >> 1}")
                a.e(f"s_cbranch_scc1 {lab}")
                for ap in range(3):
                    c = "0" if s % 2 == 0 else vr(V_CSACC + 16 * ap, 16)
                    a.e(f"v_mfma_f32_32x32x16_bf16 {vr(V_CSACC+16*ap,16)}, {vr(V_ONES,4)}, {vr(fA(st,ap),4)}, {c}")
                a.e(f"{lab}:")
            interleave(a, mf, others)
            st ^= 1
        for hk in hooks.get(("stage_end", stage), []):
            hk(a)

def cs_store(a):
    lab = a.label("nocsst")
    a.e(f"s_cmp_lg_u32 s{S_TW}, 0")
    a.e(f"s_cbranch_scc1 {lab}")
    a.e(f"s_mul_i32 s{S_T0}, s{S_J}, 6")
    a.e(f"s_mul_i32 s{S_T1}, s{S_FW}, 3")
    a.e(f"s_add_u32 s{S_T0}, s{S_T0}, s{S_T1}")
    a.e(f"s_lshl_b32 s{S_T0}, s{S_T0}, 11")
    a.e(f"s_lshl_b32 s{S_T1}, s{S_I}, 2")
    a.e(f"s_add_u32 s{S_T0}, s{S_T0}, s{S_T1}")
    a.e(f"s_add_u32 s{S_T0}, s{S_T0}, {WS_CS}")
    a.e(f"v_lshl_add_u32 v3, v{V_LANE}, 6, s{S_T0}")
    a.e(f"s_mov_b64 s[{S_EXEC}:{S_EXEC+1}], exec")
    a.e("s_mov_b64 exec, 0xffffffff")
    for ap in range(3):
        a.e(f"global_store_dword v3, v{V_CSACC+16*ap}, s[{P_WS}:{P_WS+1}] offset:{2048*ap if ap < 2 else 0} sc1" if ap < 2 else
            f"v_add_u32 v3, 4096, v3\nglobal_store_dword v3, v{V_CSACC+16*ap}, s[{P_WS}:{P_WS+1}] sc1")
    a.e(f"s_mov_b64 exec, s[{S_EXEC}:{S_EXEC+1}]")
    a.e(f"{lab}:")

V_ST = 2
def g1_post_loads(a):
    a.e(f"s_lshl_b32 s{S_T0}, s{S_I}, 7")
    a.e(f"s_lshl_b32 s{S_T1}, s{S_TW}, 6")
    a.e(f"s_add_u32 s{S_T0}, s{S_T0}, s{S_T1}")
    a.e(f"s_lshl_b32 s{S_T0}, s{S_T0}, 3")
    a.e(f"s_add_u32 s{S_T0}, s{S_T0}, {WS_STATS}")
    a.e(f"v_and_b32 v6, 31, v{V_LANE}")
    a.e(f"v_lshl_add_u32 v7, v6, 3, s{S_T0}")
    a.vm(f"global_load_dwordx2 v[2:3], v7, s[{P_WS}:{P_WS+1}] sc1", "post")
    a.vm(f"global_load_dwordx2 v[4:5], v7, s[{P_WS}:{P_WS+1}] offset:256 sc1", "post")
    a.e(f"s_mul_i32 s{S_T0}, s{S_J}, 6")
    a.e(f"s_mul_i32 s{S_T1}, s{S_FW}, 3")
    a.e(f"s_add_u32 s{S_T0}, s{S_T0}, s{S_T1}")
    a.e(f"s_lshl_b32 s{S_T0}, s{S_T0}, 11")
    a.e(f"s_add_u32 s{S_T0}, s{S_T0}, {WS_CS}")
    a.e(f"v_lshl_add_u32 v7, v6, 6, s{S_T0}")
    a.e(f"v_lshrrev_b32 v8, 5, v{V_LANE}")
    a.e(f"v_lshl_add_u32 v7, v8, 5, v7")
    for ap in range(3):
        if ap == 2:
            a.e("v_add_u32 v7, 4096, v7")
        off = 2048 * ap if ap < 2 else 0
        a.vm(f"global_load_dwordx4 {vr(16+8*ap,4)}, v7, s[{P_WS}:{P_WS+1}] offset:{off} sc1", "post")
        a.vm(f"global_load_dwordx4 {vr(20+8*ap,4)}, v7, s[{P_WS}:{P_WS+1}] offset:{off+16} sc1", "post")

def g1_correction(a):
    a.vm_wait("post")
    for ap in range(3):
        b = 16 + 8 * ap
        for x, y in ((0, 1), (2, 3), (4, 5), (6, 7), (0, 2), (4, 6), (0, 4)):
            a.e(f"v_add_f32 v{b+x}, v{b+x}, v{b+y}")
    for ap in range(3):
        b = 16 + 8 * ap
        a.e(f"v_mov_b32 v{b+1}, v{b}")
    a.e("s_nop 1")
    for ap in range(3):
        b = 16 + 8 * ap
        a.e(f"v_permlane32_swap_b32 v{b}, v{b+1}")
    for ap in range(3):
        b = 16 + 8 * ap
        a.e(f"v_add_f32 v{b}, v{b}, v{b+1}")
    a.e(f"v_cmp_gt_u32 vcc, 32, v{V_LANE}")
    for ap in range(3):
        b = 16 + 8 * ap
        a.e(f"v_cvt_pk_bf16_f32 v{b+1}, v{b}, v{b}")
        a.e(f"v_lshlrev_b32 v{b+2}, 16, v{b+1}")
        a.e(f"v_sub_f32 v{b+2}, v{b}, v{b+2}")
        a.e(f"v_cvt_pk_bf16_f32 v{b+1}, v{b+1-1+0}, v{b+2}") if False else None
        a.e(f"v_cvt_pk_bf16_f32 v{b+4}, v{b}, v{b+2}")
        a.e(f"v_cndmask_b32 v{b+4}, 0, v{b+4}, vcc")
        a.e(f"v_mov_b32 v{b+5}, 0")
        a.e(f"v_mov_b32 v{b+6}, 0")
        a.e(f"v_mov_b32 v{b+7}, 0")
    for tt in range(2):
        a.e(f"v_cndmask_b32 v{44+4*tt}, 0, v{3+2*tt}, vcc")
        for d in range(1, 4):
            a.e(f"v_mov_b32 v{44+4*tt+d}, 0")
    a.e("s_nop 1")
    for ap in range(3):
        for tt in range(2):
            a.e(f"v_mfma_f32_32x32x16_bf16 {vr(acc(tt,ap),16)}, {vr(20+8*ap,4)}, {vr(44+4*tt,4)}, {vr(acc(tt,ap),16)}")

C1 = -2.0 * math.sqrt(2.0 / math.pi) * math.log2(math.e)
C2 = C1 * 0.044715
def g1_epilogue(a):
    a.e(f"v_mov_b32 v52, {fhex(C1)}")
    a.e(f"v_mov_b32 v53, {fhex(C2)}")
    a.e("v_rcp_f32 v54, v2")
    a.e("v_rcp_f32 v56, v4")
    a.e(f"s_lshl_b32 s{S_T0}, s{S_I}, 2")
    a.e(f"s_lshl_b32 s{S_T1}, s{S_TW}, 1")
    a.e(f"s_add_u32 s{S_T0}, s{S_T0}, s{S_T1}")
    a.e(f"s_mul_i32 s{S_T0}, s{S_T0}, 86")
    a.e(f"s_lshl_b32 s{S_T1}, s{S_U0}, 1")
    a.e(f"s_add_u32 s{S_T0}, s{S_T0}, s{S_T1}")
    a.e(f"s_mul_i32 s{S_T1}, s{S_FW}, 3")
    a.e(f"s_add_u32 s{S_T0}, s{S_T0}, s{S_T1}")
    a.e(f"s_lshl_b32 s{S_T0}, s{S_T0}, 10")
    a.e(f"s_add_u32 s{S_T0}, s{S_T0}, {WS_H}")
    a.e(f"v_lshl_add_u32 v58, v{V_LANE}, 4, s{S_T0}")
    a.e(f"v_add_u32 v59, {86*1024}, v58")
    a.e(f"s_sub_u32 s{S_T2}, s{S_NU}, s{S_T1}")
    a.e("s_nop 7")
    a.e("s_nop 3")
    done = a.label("epi_done")
    for ap in range(3):
        if ap > 0:
            a.e(f"s_cmp_le_u32 s{S_T2}, {ap}")
            a.e(f"s_cbranch_scc1 {done}")
        for tt in range(2):
            c = acc(tt, ap)
            R = 2 + 2 * tt
            Sg = 54 + 2 * tt
            G, T, X = 6, 14, 22
            for p in range(4):
                a.e(f"v_pk_mul_f32 {vr(G+2*p,2)}, {vr(c+2*p,2)}, {vr(R,2)} op_sel_hi:[1,0]")
            for p in range(4):
                a.e(f"v_pk_mul_f32 {vr(T+2*p,2)}, {vr(G+2*p,2)}, {vr(G+2*p,2)}")
            for p in range(4):
                a.e(f"v_pk_fma_f32 {vr(T+2*p,2)}, {vr(T+2*p,2)}, {vr(52,2)}, {vr(52,2)} op_sel:[0,1,0] op_sel_hi:[1,1,0]")
            for p in range(4):
                a.e(f"v_pk_mul_f32 {vr(T+2*p,2)}, {vr(T+2*p,2)}, {vr(G+2*p,2)}")
            for p in range(8):
                a.e(f"v_exp_f32 v{T+p}, v{T+p}")
            for p in range(4):
                a.e(f"v_pk_mul_f32 {vr(G+2*p,2)}, {vr(G+2*p,2)}, {vr(c+8+2*p,2)}")
            for p in range(4):
                a.e(f"v_pk_fma_f32 {vr(T+2*p,2)}, {vr(T+2*p,2)}, {vr(Sg,2)}, {vr(Sg,2)} op_sel_hi:[1,0,0]")
            for p in range(8):
                a.e(f"v_rcp_f32 v{T+p}, v{T+p}")
            a.e("s_nop 0")
            for p in range(4):
                a.e(f"v_pk_mul_f32 {vr(G+2*p,2)}, {vr(G+2*p,2)}, {vr(T+2*p,2)}")
            O = X + 4 * ((2 * ap + tt) % 2)
            for p in range(4):
                a.e(f"v_cvt_pk_bf16_f32 v{O+p}, v{G+2*p}, v{G+2*p+1}")
            a.e(f"global_store_dwordx4 v{58+tt}, {vr(O,4)}, s[{P_WS}:{P_WS+1}] offset:{1024*ap} sc1")
    a.e(f"{done}:")


L_KV = 0
KV_CH = 64 * 528
L_KX = 2 * KV_CH
L_KR = L_KX + 4 * 2048
KR_CH = 4608
L_UU = L_KR + 2 * KR_CH
UU_CH = 8320
L_CX = L_UU + 2 * UU_CH
S_D = 76
S_CH, S_MH = 77, 78
V_P = 224
V_XT = 232

def conv_ids(a):
    a.e(f"s_and_b32 s{S_T0}, s{S_WG}, 7")
    a.e(f"s_lshr_b32 s{S_T1}, s{S_WG}, 3")
    a.e(f"s_lshl_b32 s{S_D}, s{S_T0}, 6")
    a.e(f"s_lshl_b32 s{S_T1}, s{S_T1}, 1")
    a.e(f"s_add_u32 s{S_D}, s{S_D}, s{S_T1}")
    a.e(f"s_lshr_b32 s{S_CH}, s{S_W}, 1")
    a.e(f"s_and_b32 s{S_MH}, s{S_W}, 1")
    a.e(f"s_add_u32 s{S_D}, s{S_D}, s{S_CH}")

def kgen_loads(a):
    a.e(f"s_lshl_b32 s{S_T0}, s{S_D}, 8")
    a.e(f"s_lshl_b32 s{S_T1}, s{S_MH}, 7")
    a.e(f"s_add_u32 s{S_T0}, s{S_T0}, s{S_T1}")
    a.e(f"v_lshl_add_u32 v2, v{V_LANE}, 1, s{S_T0}")
    for q, p in enumerate([P_ARE, P_AIM, P_BRE, P_BIM, P_CRE, P_CIM]):
        a.vm(f"global_load_ushort v{V_P+q}, v2, s[{p}:{p+1}]", "kp")
    a.e(f"s_lshl_b32 s{S_T0}, s{S_D}, 1")
    a.e(f"v_mov_b32 v3, s{S_T0}")
    a.vm(f"global_load_ushort v{V_P+6}, v3, s[{P_LDT}:{P_LDT+1}]", "kp")
    a.vm(f"global_load_ushort v{V_P+7}, v3, s[{P_DSK}:{P_DSK+1}]", "kp")

def xt_loads(a):
    a.e(f"s_lshl_b32 s{S_T0}, s{S_MH}, 20")
    a.e(f"s_lshl_b32 s{S_T1}, s{S_D}, 4")
    a.e(f"s_add_u32 s{S_T0}, s{S_T0}, s{S_T1}")
    a.e(f"s_add_u32 s{S_T0}, s{S_T0}, {WS_XT}")
    a.e(f"v_lshl_add_u32 v2, v{V_LANE}, 13, s{S_T0}")
    for q in range(2):
        a.vm(f"global_load_dwordx4 {vr(V_XT+ 6*q, 4)}, v2, s[{P_WS}:{P_WS+1}] sc1", "xt")
        a.e(f"v_add_u32 v3, 8192, v2")
        a.vm(f"global_load_dword v{V_XT+6*q+4}, v3, s[{P_WS}:{P_WS+1}] sc1", "xt")
        if q == 0:
            a.e(f"v_add_u32 v2, {64*8192}, v2")

def cexp(a, dst, al, be, p, t):
    a.e(f"v_mul_f32 v{t}, {fhex(float(p))}, v{al}")
    a.e(f"v_mul_f32 v{t+1}, {fhex(float(p))}, v{be}")
    a.e(f"v_exp_f32 v{t}, v{t}")
    a.e(f"v_fract_f32 v{t+1}, v{t+1}")
    a.e(f"v_cos_f32 v{dst}, v{t+1}")
    a.e(f"v_sin_f32 v{dst+1}, v{t+1}")
    a.e("s_nop 0")
    a.e(f"v_mul_f32 v{dst}, v{dst}, v{t}")
    a.e(f"v_mul_f32 v{dst+1}, v{dst+1}, v{t}")

def cmul(a, dst, x, y):
    a.e(f"v_pk_mul_f32 {vr(dst,2)}, {vr(x,2)}, {vr(y,2)} op_sel_hi:[0,1]")
    a.e(f"v_pk_fma_f32 {vr(dst,2)}, {vr(x,2)}, {vr(y,2)}, {vr(dst,2)} op_sel:[1,1,0] op_sel_hi:[1,0,1] neg_lo:[0,1,0]")

ROWS = [0,1,2,3,4,5,6,7, 256,258,260,None, 260,262,264,None, 512,516,768,772, 516,520,772,776, 1024,1280,1536,1792, 1032,1288,1544,1800]

def kgen(a, pre_b=None, post_b=None):
    a.vm_wait("kp")
    P = V_P
    for q in range(8):
        a.e(f"v_lshlrev_b32 v{P+q}, 16, v{P+q}")
    a.e(f"v_mul_f32 v2, 0x3fb8aa3b, v{P+6}")
    a.e("v_exp_f32 v2, v2")
    a.e("s_nop 0")
    bf16r(a, 2)
    AL, BE, CO = 4, 5, 6
    a.e(f"v_mul_f32 v{AL}, v2, v{P}")
    a.e(f"v_mul_f32 v{AL}, 0x3fb8aa3b, v{AL}")
    a.e(f"v_mul_f32 v{BE}, v2, v{P+1}")
    a.e(f"v_mul_f32 v{BE}, 0.15915494, v{BE}")
    a.e(f"v_mul_f32 v8, v2, v{P+2}")
    a.e(f"v_mul_f32 v9, v2, v{P+3}")
    a.e(f"v_mul_f32 v{CO}, v{P+4}, v8")
    a.e(f"v_fma_f32 v{CO}, -v{P+5}, v9, v{CO}")
    a.e(f"v_mul_f32 v{CO+1}, v{P+4}, v9")
    a.e(f"v_fma_f32 v{CO+1}, v{P+5}, v8, v{CO+1}")
    Z1, Z2, Z4, Z8, Z256 = 10, 12, 14, 16, 18
    cexp(a, Z1, AL, BE, 1, 20)
    cexp(a, Z8, AL, BE, 8, 20)
    cexp(a, Z256, AL, BE, 256, 20)
    cmul(a, Z2, Z1, Z1)
    cmul(a, Z4, Z2, Z2)
    a.e(f"s_mul_i32 s{S_T0}, s{S_CH}, {KV_CH}")
    a.e(f"s_lshl_b32 s{S_T1}, s{S_MH}, 8")
    a.e(f"s_add_u32 s{S_T0}, s{S_T0}, s{S_T1}")
    a.e(f"s_add_u32 s{S_T0}, s{S_T0}, {L_KV}")
    a.e(f"v_lshl_add_u32 v24, v{V_LANE}, 2, s{S_T0}")
    WA = 24
    pk = [25, 26]
    npk = [0]
    def put(vec, pair, row):
        r = pk[npk[0] % 2]; npk[0] += 1
        a.e(f"v_cvt_pk_bf16_f32 v{r}, v{pair}, {'-' if row else ''}v{pair+1}")
        a.e(f"ds_write_b32 v{WA}, v{r} offset:{vec*528}")
    W = [28, 30]
    a.e(f"v_mov_b32 v{W[0]}, 1.0")
    a.e(f"v_mov_b32 v{W[0]+1}, 0")
    colops = []
    for b in range(32):
        cur = W[b % 2]; nxt = W[(b + 1) % 2]
        colops.append(("put", 32 + b, cur))
        if b < 31:
            colops.append(("mul", nxt, cur, Z8))
    R = [32, 34, 36, 38]
    rowops = []
    rowops.append(("put", 0, CO))
    cur = CO
    for e in range(1, 8):
        d = R[e % 2]; rowops.append(("mul", d, cur, Z1)); rowops.append(("put", e, d)); cur = d
    B0, B1 = R[2], R[3]
    rowops.append(("mul", B0, CO, Z256)); rowops.append(("put", 8, B0))
    rowops.append(("mul", R[0], B0, Z2)); rowops.append(("put", 9, R[0]))
    rowops.append(("mul", R[1], R[0], Z2)); rowops.append(("put", 10, R[1])); rowops.append(("put", 12, R[1]))
    rowops.append(("mul", R[0], R[1], Z2)); rowops.append(("put", 13, R[0]))
    rowops.append(("mul", R[1], R[0], Z2)); rowops.append(("put", 14, R[1]))
    rowops.append(("mul", B1, B0, Z256)); rowops.append(("put", 16, B1))
    rowops.append(("mul", R[0], B1, Z4)); rowops.append(("put", 17, R[0])); rowops.append(("put", 20, R[0]))
    rowops.append(("mul", R[1], R[0], Z4)); rowops.append(("put", 21, R[1]))
    rowops.append(("mul", B0, B1, Z256)); rowops.append(("put", 18, B0))
    rowops.append(("mul", R[0], B0, Z4)); rowops.append(("put", 19, R[0])); rowops.append(("put", 22, R[0]))
    rowops.append(("mul", R[1], R[0], Z4)); rowops.append(("put", 23, R[1]))
    bases = [B1, B0, B1, B0]; prev = B0
    for q in range(4):
        rowops.append(("mul", bases[q], prev, Z256)); rowops.append(("put", 24 + q, bases[q]))
        rowops.append(("mul", R[q % 2], bases[q], Z8)); rowops.append(("put", 28 + q, R[q % 2]))
        prev = bases[q]
    n = max(len(colops), len(rowops))
    for q in range(n):
        for ops in (colops, rowops):
            if q < len(ops):
                o = ops[q]
                if o[0] == "put":
                    put(o[1], o[2], o[1] < 32)
                else:
                    cmul(a, o[1], o[2], o[3])
    a.e("v_mov_b32 v25, 0")
    a.e(f"ds_write_b32 v{WA}, v25 offset:{11*528}")
    a.e(f"ds_write_b32 v{WA}, v25 offset:{15*528}")
    a.e(f"v_and_b32 v2, 31, v{V_LANE}")
    a.e(f"v_mul_u32_u24 v2, 528, v2")
    a.e(f"v_lshrrev_b32 v3, 5, v{V_LANE}")
    a.e(f"v_lshl_add_u32 v2, v3, 4, v2")
    a.e(f"v_add_u32 v2, s{S_T0}, v2")
    KD = 64
    FA, FB = 80, 112
    a.e("s_waitcnt lgkmcnt(0)")
    for k in range(8):
        a.e(f"ds_read_b128 {vr(FA+4*k,4)}, v2 offset:{k*32}")
        a.e(f"ds_read_b128 {vr(FB+4*k,4)}, v2 offset:{32*528 + k*32}")
    for k in range(8):
        a.e(f"s_waitcnt lgkmcnt({14 - 2*k})")
        a.e(f"v_mfma_f32_32x32x16_bf16 {vr(KD,16)}, {vr(FA+4*k,4)}, {vr(FB+4*k,4)}, {'0' if k == 0 else vr(KD,16)}")
    a.e(f"s_lshl_b32 s{S_T0}, s{S_W}, 11")
    a.e(f"s_add_u32 s{S_T0}, s{S_T0}, {L_KX}")
    a.e(f"v_lshl_add_u32 v2, v{V_LANE}, 4, s{S_T0}")
    a.e(f"s_xor_b32 s{S_T1}, s{S_W}, 1")
    a.e(f"s_lshl_b32 s{S_T1}, s{S_T1}, 11")
    a.e(f"s_add_u32 s{S_T1}, s{S_T1}, {L_KX}")
    a.e(f"v_lshl_add_u32 v3, v{V_LANE}, 4, s{S_T1}")
    a.e("s_nop 7")
    a.e("s_nop 3")
    lab1, lab2 = a.label("kx1"), a.label("kx2")
    a.e(f"s_cmp_eq_u32 s{S_MH}, 0")
    a.e(f"s_cbranch_scc1 {lab1}")
    a.e(f"ds_write_b128 v2, {vr(KD,4)}")
    a.e(f"ds_write_b128 v2, {vr(KD+4,4)} offset:1024")
    for q in range(8):
        a.e(f"v_mov_b32 v{KD+q}, v{KD+8+q}")
    a.e(f"s_branch {lab2}")
    a.e(f"{lab1}:")
    a.e(f"ds_write_b128 v2, {vr(KD+8,4)}")
    a.e(f"ds_write_b128 v2, {vr(KD+12,4)} offset:1024")
    a.e(f"{lab2}:")
    if pre_b: pre_b(a)
    a.e("s_waitcnt lgkmcnt(0)")
    a.e("s_barrier")
    a.e(f"ds_read_b128 {vr(80,4)}, v3")
    a.e(f"ds_read_b128 {vr(84,4)}, v3 offset:1024")
    if post_b:
        a.e("s_waitcnt lgkmcnt(0)")
        a.e("v_mov_b32 v30, v3")
        post_b(a)
    a.e(f"s_mul_i32 s{S_T0}, s{S_CH}, {KR_CH}")
    a.e(f"s_add_u32 s{S_T0}, s{S_T0}, {L_KR + 504}")
    a.e(f"v_and_b32 v4, 31, v{V_LANE}")
    a.e(f"v_lshlrev_b32 v5, 4, v4")
    a.e(f"v_lshrrev_b32 v6, 5, v{V_LANE}")
    a.e(f"v_lshl_add_u32 v5, v6, 3, v5")
    a.e(f"v_sub_u32 v5, s{S_T0}, v5")
    a.e("s_waitcnt lgkmcnt(0)")
    for q in range(8):
        a.e(f"v_add_f32 v{KD+q}, v{KD+q}, v{80+q}")
    D = KD
    lab1, lab2 = a.label("ex1"), a.label("ex2")
    a.e(f"s_cmp_eq_u32 s{S_MH}, 0")
    a.e(f"s_cbranch_scc0 {lab1}")
    a.e(f"v_cvt_pk_bf16_f32 v8, v{D+3}, v{D+2}")
    a.e(f"v_cvt_pk_bf16_f32 v9, v{D+1}, v{D}")
    a.e(f"v_cvt_pk_bf16_f32 v10, v{D+6}, v{D+5}")
    a.e(f"v_cvt_pk_bf16_f32 v11, v{D+4}, v{D+4}")
    a.e("ds_write_b64 v5, v[8:9] offset:3584")
    a.e("ds_write_b64 v5, v[10:11] offset:3072")
    a.e(f"s_sub_u32 s{S_T0}, s{S_T0}, {504 - 4096}" if False else f"s_add_u32 s{S_T0}, s{S_T0}, {4096 - 504}")
    a.e(f"v_lshl_add_u32 v4, v{V_LANE}, 4, s{S_T0}")
    for q in range(4):
        a.e(f"v_mov_b32 v{12+q}, 0")
    a.e(f"s_mov_b64 s[{S_EXEC}:{S_EXEC+1}], exec")
    a.e("s_mov_b64 exec, 0x3fffffff")
    a.e("ds_write_b128 v4, v[12:15]")
    a.e(f"s_mov_b64 exec, s[{S_EXEC}:{S_EXEC+1}]")
    a.e(f"s_branch {lab2}")
    a.e(f"{lab1}:")
    a.e(f"v_cmp_le_u32 vcc, 32, v{V_LANE}")
    a.e(f"v_and_b32 v7, 1, v{V_LANE}")
    a.e(f"v_cmp_eq_u32 s[{S_TMP}:{S_TMP+1}], 1, v7")
    for q in range(2):
        A_, B_ = D + 2*q, D + 2*q + 1
        a.e(f"v_cndmask_b32 v12, v{A_}, v{B_}, vcc")
        a.e(f"v_cvt_pk_bf16_f32 v{8+2*q+0}, v{B_}, v12")
        a.e(f"v_cvt_pk_bf16_f32 v{8+2*q+1}, v{A_}, v{A_}")
    a.e("ds_write_b64 v5, v[8:9] offset:2560")
    a.e("ds_write_b64 v5, v[10:11] offset:2048")
    for q in range(4):
        a.e(f"v_mov_b32 v{16+2*q}, v{D+4+q}")
        a.e(f"v_mov_b32 v{17+2*q}, v{D+4+q}")
    a.e("s_nop 1")
    for q in range(4):
        a.e(f"v_permlane32_swap_b32 v{16+2*q}, v{17+2*q}")
    for q in range(4):
        a.e(f"v_cndmask_b32 v{16+2*q}, v{16+2*q}, v{D+4+q}, s[{S_TMP}:{S_TMP+1}]")
    for q in range(4):
        a.e(f"v_cvt_pk_bf16_f32 v{24+2*q}, v{D+4+q}, v{D+4+q}")
        a.e(f"v_cvt_pk_bf16_f32 v{25+2*q}, v{D+4+q}, v{16+2*q}")
    for q in range(4):
        a.e(f"ds_write_b64 v5, {vr(24+2*q,2)} offset:{1536 - 512*q}")
    a.e(f"{lab2}:")

def conv_build_u(a):
    a.vm_wait("xt")
    a.e(f"s_mul_i32 s{S_T0}, s{S_CH}, {UU_CH}")
    a.e(f"s_add_u32 s{S_T0}, s{S_T0}, {L_UU}")
    a.e(f"s_lshl_b32 s{S_T1}, s{S_MH}, 11")
    a.e(f"s_add_u32 s{S_T1}, s{S_T1}, s{S_T0}")
    a.e(f"s_add_u32 s{S_T1}, s{S_T1}, 32")
    a.e(f"v_lshl_add_u32 v2, v{V_LANE}, 4, s{S_T1}")
    for q in range(2):
        X = V_XT + 6*q
        for k in range(4):
            a.e(f"v_alignbit_b32 v{8+4*q+k}, v{X+k+1}, v{X+k}, 16")
        a.e(f"ds_write_b128 v2, {vr(X,4)} offset:{1024*q}")
        a.e(f"ds_write_b128 v2, {vr(8+4*q,4)} offset:{4160 + 1024*q}")
    lab = a.label("nopad")
    a.e(f"s_cmp_lg_u32 s{S_MH}, 0")
    a.e(f"s_cbranch_scc1 {lab}")
    a.e(f"v_readlane_b32 s{S_T1}, v{V_XT}, 0")
    a.e("v_mov_b32 v16, 0")
    a.e("s_nop 3")
    a.e(f"s_lshl_b32 s{S_T1}, s{S_T1}, 16")
    a.e(f"v_mov_b32 v17, s{S_T1}")
    a.e(f"v_cmp_eq_u32 vcc, 7, v{V_LANE}")
    a.e(f"v_lshl_add_u32 v18, v{V_LANE}, 2, s{S_T0}")
    a.e(f"v_cndmask_b32 v17, 0, v17, vcc")
    a.e(f"s_mov_b64 s[{S_EXEC}:{S_EXEC+1}], exec")
    a.e("s_mov_b64 exec, 0xff")
    a.e("ds_write_b32 v18, v16")
    a.e("ds_write_b32 v18, v17 offset:4160")
    a.e(f"s_mov_b64 exec, s[{S_EXEC}:{S_EXEC+1}]")
    a.e(f"{lab}:")

CV_A = [64, 128]
CV_B = [96, 160]
CV_ACC = 192
CV_AA = 8
CV_BA = 16
def conv_main(a):
    a.e("s_waitcnt lgkmcnt(0)")
    a.e("s_barrier")
    a.e(f"v_and_b32 v2, 15, v{V_LANE}")
    a.e(f"v_lshrrev_b32 v3, 4, v{V_LANE}")
    a.e(f"v_and_b32 v4, 1, v3")
    a.e(f"v_lshrrev_b32 v3, 1, v3")
    a.e(f"v_lshlrev_b32 v5, 5, v3")
    a.e(f"v_lshlrev_b32 v6, 4, v4")
    a.e(f"v_sub_u32 v5, v5, v6")
    a.e(f"s_lshl_b32 s{S_T2}, s{S_MH}, 6")
    a.e(f"s_mul_i32 s{S_T0}, s{S_CH}, {KR_CH}")
    a.e(f"s_add_u32 s{S_T0}, s{S_T0}, {L_KR + 496}")
    a.e(f"s_add_u32 s{S_T0}, s{S_T0}, s{S_T2}")
    a.e(f"v_lshlrev_b32 v6, 5, v2")
    a.e(f"v_sub_u32 v6, v5, v6")
    a.e(f"v_add_u32 v{CV_BA}, s{S_T0}, v6")
    a.e(f"s_mul_i32 s{S_T0}, s{S_CH}, {UU_CH}")
    a.e(f"s_add_u32 s{S_T0}, s{S_T0}, {L_UU}")
    a.e(f"s_add_u32 s{S_T0}, s{S_T0}, s{S_T2}")
    a.e(f"v_and_b32 v6, 1, v2")
    a.e(f"v_cmp_eq_u32 vcc, 1, v6")
    a.e(f"v_mov_b32 v6, {4160+16}")
    a.e(f"v_lshl_add_u32 v7, v2, 1, v5")
    a.e(f"v_cndmask_b32 v6, v6, 18, vcc") if False else None
    a.e(f"v_mov_b32 v17, 18")
    a.e(f"v_cndmask_b32 v6, v6, v17, vcc")
    a.e(f"v_add_u32 v7, v7, v6")
    a.e(f"v_add_u32 v{CV_AA}, s{S_T0}, v7")
    for al in range(1, 8):
        a.e(f"v_add_u32 v{CV_AA+al}, {512*al}, v{CV_AA}")
    def reads(st, q):
        r = []
        for al in range(8):
            r.append(f"ds_read2_b32 {vr(CV_A[st]+4*al,2)}, v{CV_AA+al} offset0:{32*q} offset1:{32*q+1}")
            r.append(f"ds_read2_b32 {vr(CV_A[st]+4*al+2,2)}, v{CV_AA+al} offset0:{32*q+2} offset1:{32*q+3}")
            r.append(f"ds_read_b128 {vr(CV_B[st]+4*al,4)}, v{CV_BA} offset:{512*(7-al) + 128*q}")
        return r
    for x in reads(0, 0):
        a.e(x)
    st = 0
    for q in range(4):
        a.e("s_waitcnt lgkmcnt(0)")
        mf = []
        for al in range(8):
            for be in range(8 - al):
                I = al + be
                c = "0" if (q == 0 and al == 0) else vr(CV_ACC + 4*I, 4)
                mf.append(f"v_mfma_f32_16x16x32_bf16 {vr(CV_ACC+4*I,4)}, {vr(CV_A[st]+4*al,4)}, {vr(CV_B[st]+4*be,4)}, {c}")
        others = reads(st ^ 1, q + 1) if q < 3 else []
        interleave(a, mf, others)
        st ^= 1

def conv_finish(a):
    a.e(f"s_lshl_b32 s{S_T0}, s{S_W}, 12")
    a.e(f"s_add_u32 s{S_T0}, s{S_T0}, {L_CX}")
    a.e(f"v_lshl_add_u32 v2, v{V_LANE}, 4, s{S_T0}")
    a.e(f"s_xor_b32 s{S_T1}, s{S_W}, 1")
    a.e(f"s_lshl_b32 s{S_T1}, s{S_T1}, 12")
    a.e(f"s_add_u32 s{S_T1}, s{S_T1}, {L_CX}")
    a.e(f"v_lshl_add_u32 v3, v{V_LANE}, 4, s{S_T1}")
    a.e(f"s_mul_i32 s{S_T0}, s{S_CH}, {UU_CH}")
    a.e(f"s_add_u32 s{S_T0}, s{S_T0}, {L_UU + 32}")
    a.e(f"s_lshl_b32 s{S_T1}, s{S_MH}, 11")
    a.e(f"s_add_u32 s{S_T0}, s{S_T0}, s{S_T1}")
    a.e(f"v_and_b32 v4, 15, v{V_LANE}")
    a.e(f"v_lshrrev_b32 v5, 4, v{V_LANE}")
    a.e(f"v_lshlrev_b32 v6, 5, v4")
    a.e(f"v_lshl_add_u32 v6, v5, 3, v6")
    a.e(f"v_add_u32 v6, s{S_T0}, v6")
    for k in range(4):
        a.e(f"ds_read_b64 {vr(40+2*k,2)}, v6 offset:{512*k}")
    a.e("s_nop 4")
    lab1, lab2 = a.label("cx1"), a.label("cx2")
    a.e(f"s_cmp_eq_u32 s{S_MH}, 0")
    a.e(f"s_cbranch_scc1 {lab1}")
    for k in range(4):
        a.e(f"ds_write_b128 v2, {vr(CV_ACC+4*k,4)} offset:{1024*k}")
    for q in range(16):
        a.e(f"v_mov_b32 v{CV_ACC+q}, v{CV_ACC+16+q}")
    a.e(f"s_branch {lab2}")
    a.e(f"{lab1}:")
    for k in range(4):
        a.e(f"ds_write_b128 v2, {vr(CV_ACC+16+4*k,4)} offset:{1024*k}")
    a.e(f"{lab2}:")
    a.e("s_waitcnt lgkmcnt(0)")
    a.e("s_barrier")
    for k in range(4):
        a.e(f"ds_read_b128 {vr(48+4*k,4)}, v3 offset:{1024*k}")
    a.e(f"s_lshl_b32 s{S_T0}, s{S_MH}, 20")
    a.e(f"s_lshl_b32 s{S_T1}, s{S_D}, 7")
    a.e(f"s_add_u32 s{S_T0}, s{S_T0}, s{S_T1}")
    a.e(f"s_add_u32 s{S_T0}, s{S_T0}, {WS_Y}")
    a.e(f"v_lshrrev_b32 v7, 2, v4")
    a.e(f"v_lshlrev_b32 v7, 16, v7")
    a.e(f"v_and_b32 v8, 3, v4")
    a.e(f"v_lshl_add_u32 v7, v8, 5, v7")
    a.e(f"v_lshl_add_u32 v7, v5, 3, v7")
    a.e(f"v_add_u32 v7, s{S_T0}, v7")
    a.e("s_waitcnt lgkmcnt(0)")
    DS = V_P + 7
    for k in range(4):
        y = CV_ACC + 4*k
        for r in range(4):
            a.e(f"v_add_f32 v{y+r}, v{y+r}, v{48+4*k+r}")
        a.e(f"v_lshlrev_b32 v8, 16, v{40+2*k}")
        a.e(f"v_and_b32 v9, 0xffff0000, v{40+2*k}")
        a.e(f"v_lshlrev_b32 v10, 16, v{41+2*k}")
        a.e(f"v_and_b32 v11, 0xffff0000, v{41+2*k}")
        for r in range(4):
            a.e(f"v_mul_f32 v{8+r}, v{8+r}, v{DS}")
        a.e(f"v_cvt_pk_bf16_f32 v12, v8, v9")
        a.e(f"v_cvt_pk_bf16_f32 v13, v10, v11")
        a.e(f"v_cvt_pk_bf16_f32 v14, v{y}, v{y+1}")
        a.e(f"v_cvt_pk_bf16_f32 v15, v{y+2}, v{y+3}")
        for h, (pu, py) in enumerate(((12, 14), (13, 15))):
            a.e(f"v_lshlrev_b32 v{8+2*h}, 16, v{pu}")
            a.e(f"v_and_b32 v{9+2*h}, 0xffff0000, v{pu}")
            a.e(f"v_lshlrev_b32 v{16+2*h}, 16, v{py}")
            a.e(f"v_and_b32 v{17+2*h}, 0xffff0000, v{py}")
        for r in range(4):
            a.e(f"v_add_f32 v{8+r}, v{8+r}, v{16+r}")
        o = 20 + 2*(k % 2)
        a.e(f"v_cvt_pk_bf16_f32 v{o}, v8, v9")
        a.e(f"v_cvt_pk_bf16_f32 v{o+1}, v10, v11")
        a.vm(f"global_store_dwordx2 v7, {vr(o,2)}, s[{P_WS}:{P_WS+1}] sc1", "pubY")
        if k < 3:
            a.e(f"v_add_u32 v7, {4*65536}, v7")

def build_k2(a, name="k2_kernel"):
    prologue(a, name)
    conv_ids(a)
    a.e("s_waitcnt lgkmcnt(0)")
    kgen_loads(a)
    xt_loads(a)
    kgen(a)
    conv_build_u(a)
    conv_main(a)
    conv_finish(a)
    a.e("s_waitcnt vmcnt(0)")
    a.e(f"L_end_{name}:")
    a.e("s_endpgm")


S_TH, S_NT = 79, 80
S_WDO = 81
V_WDOFF = 244
V_WDA = 245
V_HA = 247
L_WD = 0
WD_W = 24576
G2_ACC = 64
def acc2(a_, tt): return G2_ACC + 16 * (2 * a_ + tt)
G2_H = 128
G2_RING = 14
L_RED = 0
L_YB = 49152

def g2_ids(a):
    a.e(f"s_lshr_b32 s{S_TH}, s{S_J}, 3")
    a.e(f"s_and_b32 s{S_NT}, s{S_J}, 7")

def wd_setup(a):
    mk_srd(a, SRD_WD, P_WD, 1376 * 1024)
    a.e(f"s_mul_i32 s{S_WDO}, s{S_W}, {352 * 1024}")
    a.e(f"s_lshl_b32 s{S_T0}, s{S_NT}, 7")
    a.e(f"s_add_u32 s{S_WDO}, s{S_WDO}, s{S_T0}")
    a.e(f"v_lshrrev_b32 v2, 3, v{V_LANE}")
    a.e(f"v_and_b32 v3, 7, v{V_LANE}")
    a.e(f"v_bfe_u32 v4, v2, 1, 1")
    a.e(f"v_lshlrev_b32 v4, 2, v4")
    a.e(f"v_xor_b32 v3, v3, v4")
    a.e(f"v_lshlrev_b32 v3, 4, v3")
    a.e(f"v_lshl_add_u32 v{V_WDOFF}, v2, 10, v3")
    a.e(f"v_lshrrev_b32 v2, 4, v{V_LANE}")
    a.e(f"v_and_b32 v3, 1, v2")
    a.e(f"v_lshrrev_b32 v2, 1, v2")
    a.e(f"v_bfe_u32 v4, v{V_LANE}, 2, 2")
    a.e(f"v_lshl_add_u32 v4, v2, 2, v4")
    a.e(f"v_lshlrev_b32 v4, 7, v4")
    a.e(f"v_lshl_add_u32 v4, v3, 5, v4")
    a.e(f"v_and_b32 v3, 3, v{V_LANE}")
    a.e(f"v_lshl_add_u32 v4, v3, 3, v4")
    a.e(f"s_mul_i32 s{S_T0}, s{S_W}, {WD_W}")
    a.e(f"s_add_u32 s{S_T0}, s{S_T0}, {L_WD}")
    a.e(f"v_add_u32 v4, s{S_T0}, v4")
    a.e(f"v_bfe_u32 v3, v{V_LANE}, 3, 1")
    a.e(f"v_lshlrev_b32 v3, 6, v3")
    a.e(f"v_add_u32 v{V_WDA}, v4, v3")
    a.e(f"v_xor_b32 v3, 64, v3")
    a.e(f"v_add_u32 v{V_WDA+1}, v4, v3")

def wd_dma_list(ks0, n):
    out = []
    for q in range(2 * n):
        out.append([f"s_mul_i32 s{S_T4}, s{S_W}, {WD_W}", f"s_add_u32 m0, s{S_T4}, {L_WD + q*1024}",
                    f"s_add_u32 s{S_T4}, s{S_WDO}, {(16*ks0 + 8*q) * 1024}",
                    f"buffer_load_dwordx4 v{V_WDOFF}, s[{SRD_WD}:{SRD_WD+3}], s{S_T4} offen lds"])
    return out
def wd_dma(a, ks0, n, tag):
    for m in wd_dma_list(ks0, n):
        for x in m[:-1]: a.e(x)
        a.vm(m[-1], tag)
def wd_tr_list(ks0, n):
    out = []
    for k in range(n):
        for t in range(2):
            for h in range(2):
                out.append(f"ds_read_b64_tr_b16 {ar(8*(ks0+k) + 4*t + 2*h, 2)}, v{V_WDA+t} offset:{k*2048 + h*1024}")
    return out

def h_setup(a):
    a.e(f"s_lshl_b32 s{S_T0}, s{S_I}, 2")
    a.e(f"s_lshl_b32 s{S_T1}, s{S_TH}, 1")
    a.e(f"s_add_u32 s{S_T0}, s{S_T0}, s{S_T1}")
    a.e(f"s_mul_i32 s{S_T0}, s{S_T0}, {86*1024}")
    a.e(f"s_add_u32 s{S_T0}, s{S_T0}, {WS_H}")
    a.e(f"v_lshl_add_u32 v{V_HA}, v{V_LANE}, 4, s{S_T0}")
    a.e(f"v_add_u32 v{V_HA+1}, {86*1024}, v{V_HA}")
def h_load(a, q):
    R = G2_H + 8 * (q % G2_RING)
    a.e(f"s_mul_i32 s{S_T0}, s{S_W}, 22")
    a.e(f"s_add_u32 s{S_T0}, s{S_T0}, {q}")
    a.e(f"s_min_u32 s{S_T0}, s{S_T0}, 85")
    a.e(f"s_lshl_b32 s{S_T0}, s{S_T0}, 10")
    a.e(f"v_add_u32 v249, s{S_T0}, v{V_HA}")
    a.e(f"v_add_u32 v250, s{S_T0}, v{V_HA+1}")
    a.vm(f"global_load_dwordx4 {vr(R,4)}, v249, s[{P_WS}:{P_WS+1}] sc1", f"h{q}")
    a.vm(f"global_load_dwordx4 {vr(R+4,4)}, v250, s[{P_WS}:{P_WS+1}] sc1", f"h{q}")

def g2_main(a):
    for q in range(G2_RING):
        h_load(a, q)
    for q in range(22):
        a.vm_wait(f"h{q}")
        R = G2_H + 8 * (q % G2_RING)
        for t in range(2):
            for tt in range(2):
                c = "0" if q == 0 else vr(acc2(t, tt), 16)
                a.e(f"v_mfma_f32_32x32x16_bf16 {vr(acc2(t,tt),16)}, {ar(8*q+4*t,4)}, {vr(R+4*tt,4)}, {c}")
        if q + G2_RING < 22:
            h_load(a, q + G2_RING)

def g2_final_loads(a):
    a.e(f"s_lshl_b32 s{S_T0}, s{S_I}, 7")
    a.e(f"s_lshl_b32 s{S_T1}, s{S_TH}, 6")
    a.e(f"s_add_u32 s{S_T0}, s{S_T0}, s{S_T1}")
    a.e(f"s_and_b32 s{S_T1}, s{S_W}, 1")
    a.e(f"s_lshl_b32 s{S_T1}, s{S_T1}, 5")
    a.e(f"s_add_u32 s{S_T0}, s{S_T0}, s{S_T1}")
    a.e(f"s_lshl_b32 s{S_T0}, s{S_T0}, 10")
    a.e(f"s_lshl_b32 s{S_T1}, s{S_NT}, 7")
    a.e(f"s_add_u32 s{S_T0}, s{S_T0}, s{S_T1}")
    a.e(f"s_lshr_b32 s{S_T1}, s{S_W}, 1")
    a.e(f"s_lshl_b32 s{S_T1}, s{S_T1}, 6")
    a.e(f"s_add_u32 s{S_T0}, s{S_T0}, s{S_T1}")
    a.e(f"v_and_b32 v2, 31, v{V_LANE}")
    a.e(f"v_lshlrev_b32 v2, 10, v2")
    a.e(f"v_lshrrev_b32 v3, 5, v{V_LANE}")
    a.e(f"v_lshl_add_u32 v2, v3, 3, v2")
    a.e(f"v_add_u32 v251, s{S_T0}, v2")
    for q in range(4):
        a.vm(f"global_load_dwordx2 {vr(8+2*q,2)}, v251, s[{P_X}:{P_X+1}] offset:{16*q}", "fx")
def g2_y_loads(a):
    a.e(f"s_lshl_b32 s{S_T0}, s{S_I}, 1")
    a.e(f"s_add_u32 s{S_T0}, s{S_T0}, s{S_TH}")
    a.e(f"s_lshl_b32 s{S_T0}, s{S_T0}, 16")
    a.e(f"s_lshl_b32 s{S_T1}, s{S_NT}, 13")
    a.e(f"s_add_u32 s{S_T0}, s{S_T0}, s{S_T1}")
    a.e(f"s_add_u32 s{S_T0}, s{S_T0}, {WS_Y}")
    a.e(f"v_lshl_add_u32 v2, v0, 4, s{S_T0}")
    a.vm(f"global_load_dwordx4 v[16:19], v2, s[{P_WS}:{P_WS+1}] sc1", "fy")
    a.e(f"v_add_u32 v2, 4096, v2")
    a.vm(f"global_load_dwordx4 v[20:23], v2, s[{P_WS}:{P_WS+1}] sc1", "fy")

def g2_reduce_final(a):
    a.e(f"v_lshlrev_b32 v2, 4, v{V_LANE}")
    a.e("s_nop 7")
    a.e("s_nop 3")
    for o in range(4):
        lab = a.label("red")
        a.e(f"s_cmp_eq_u32 s{S_W}, {o}")
        a.e(f"s_cbranch_scc1 {lab}")
        a.e(f"s_sub_u32 s{S_T0}, s{S_W}, {o+1}")
        a.e(f"s_and_b32 s{S_T0}, s{S_T0}, 3")
        a.e(f"s_lshl_b32 s{S_T0}, s{S_T0}, 12")
        a.e(f"s_add_u32 s{S_T0}, s{S_T0}, {L_RED + o*3*4096}")
        a.e(f"v_add_u32 v3, s{S_T0}, v2")
        for q in range(4):
            a.e(f"ds_write_b128 v3, {vr(G2_ACC+16*o+4*q,4)} offset:{1024*q}")
        a.e(f"{lab}:")
    for o in range(4):
        lab = a.label("own")
        a.e(f"s_cmp_lg_u32 s{S_W}, {o}")
        a.e(f"s_cbranch_scc1 {lab}")
        for q in range(16):
            a.e(f"v_mov_b32 v{24+q}, v{G2_ACC+16*o+q}")
        a.e(f"{lab}:")
    a.vm_wait("fy")
    a.e(f"v_lshrrev_b32 v3, 3, v0")
    a.e(f"v_mul_u32_u24 v3, 192, v3")
    a.e(f"v_and_b32 v4, 7, v0")
    a.e(f"v_lshl_add_u32 v3, v4, 4, v3")
    a.e(f"ds_write_b128 v3, v[16:19] offset:{L_YB}")
    a.e(f"ds_write_b128 v3, v[20:23] offset:{L_YB + 32*192}")
    a.e("s_waitcnt lgkmcnt(0)")
    a.e("s_barrier")
    a.e(f"s_mul_i32 s{S_T0}, s{S_W}, {3*4096}")
    a.e(f"s_add_u32 s{S_T0}, s{S_T0}, {L_RED}")
    a.e(f"v_add_u32 v3, s{S_T0}, v2")
    for sl in range(3):
        for q in range(4):
            a.e(f"ds_read_b128 {vr(64+16*sl+4*q,4)}, v3 offset:{4096*sl + 1024*q}")
    a.e(f"v_lshrrev_b32 v4, 4, v{V_LANE}")
    a.e(f"v_and_b32 v5, 1, v4")
    a.e(f"v_lshrrev_b32 v4, 1, v4")
    a.e(f"v_bfe_u32 v6, v{V_LANE}, 2, 2")
    a.e(f"v_lshl_add_u32 v6, v4, 2, v6")
    a.e(f"v_mul_u32_u24 v6, 192, v6")
    a.e(f"v_lshl_add_u32 v6, v5, 5, v6")
    a.e(f"v_and_b32 v5, 3, v{V_LANE}")
    a.e(f"v_lshl_add_u32 v6, v5, 3, v6")
    a.e(f"s_lshr_b32 s{S_T0}, s{S_W}, 1")
    a.e(f"s_mul_i32 s{S_T0}, s{S_T0}, {32*192}")
    a.e(f"s_and_b32 s{S_T1}, s{S_W}, 1")
    a.e(f"s_lshl_b32 s{S_T1}, s{S_T1}, 6")
    a.e(f"s_add_u32 s{S_T0}, s{S_T0}, s{S_T1}")
    a.e(f"s_add_u32 s{S_T0}, s{S_T0}, {L_YB}")
    a.e(f"v_add_u32 v6, s{S_T0}, v6")
    for q in range(4):
        a.e(f"ds_read_b64_tr_b16 {vr(16+2*q,2)}, v6 offset:{1536*q}")
    a.vm_wait("fx")
    a.e("s_waitcnt lgkmcnt(4)")
    for sl in range(3):
        for q in range(16):
            a.e(f"v_add_f32 v{24+q}, v{24+q}, v{64+16*sl+q}")
    a.e("s_waitcnt lgkmcnt(0)")
    for q in range(4):
        a.e(f"v_cvt_pk_bf16_f32 v40, v{24+4*q}, v{25+4*q}")
        a.e(f"v_cvt_pk_bf16_f32 v41, v{26+4*q}, v{27+4*q}")
        for h in range(2):
            a.e(f"v_lshlrev_b32 v{44+2*h}, 16, v{8+2*q+h}")
            a.e(f"v_and_b32 v{45+2*h}, 0xffff0000, v{8+2*q+h}")
            a.e(f"v_lshlrev_b32 v{48+2*h}, 16, v{16+2*q+h}")
            a.e(f"v_and_b32 v{49+2*h}, 0xffff0000, v{16+2*q+h}")
        for r in range(4):
            a.e(f"v_add_f32 v{44+r}, v{44+r}, v{48+r}")
        a.e(f"v_cvt_pk_bf16_f32 v42, v44, v45")
        a.e(f"v_cvt_pk_bf16_f32 v43, v46, v47")
        for h in range(2):
            a.e(f"v_lshlrev_b32 v{44+2*h}, 16, v{42+h}")
            a.e(f"v_and_b32 v{45+2*h}, 0xffff0000, v{42+h}")
            a.e(f"v_lshlrev_b32 v{48+2*h}, 16, v{40+h}")
            a.e(f"v_and_b32 v{49+2*h}, 0xffff0000, v{40+h}")
        for r in range(4):
            a.e(f"v_add_f32 v{44+r}, v{44+r}, v{48+r}")
        o = 52 + 2*(q % 2)
        a.e(f"v_cvt_pk_bf16_f32 v{o}, v44, v45")
        a.e(f"v_cvt_pk_bf16_f32 v{o+1}, v46, v47")
        a.vm(f"global_store_dwordx2 v251, {vr(o,2)}, s[{P_OUT}:{P_OUT+1}] offset:{16*q}", "out")

def build_k3(a, name="k3_kernel"):
    prologue(a, name)
    g2_ids(a)
    a.e("s_waitcnt lgkmcnt(0)")
    wd_setup(a)
    wd_dma(a, 0, 12, "wd0")
    h_setup(a)
    a.vm_wait("wd0")
    for x in wd_tr_list(0, 12): a.e(x)
    a.e("s_waitcnt lgkmcnt(0)")
    wd_dma(a, 12, 10, "wd1")
    a.vm_wait("wd1")
    for x in wd_tr_list(12, 10): a.e(x)
    a.e("s_waitcnt lgkmcnt(0)")
    g2_final_loads(a)
    g2_y_loads(a)
    g2_main(a)
    a.e("s_barrier")
    g2_reduce_final(a)
    a.e("s_waitcnt vmcnt(0)")
    a.e(f"L_end_{name}:")
    a.e("s_endpgm")

def build_k1(a, name="k1_kernel"):
    stamp(a, 0, real=True) if False else None
    prologue(a, name)
    stamp(a, 0, real=True)
    stamp(a, 1)
    ln_loads(a)
    g1_setup(a)
    for stg in range(3):
        g1_dma_stage(a, stg)
    stamp(a, 2)
    ln_compute(a)
    stamp(a, 3)
    hooks = {("stage_end", 1): [cs_store], ("post_barrier", 0): [lambda a: stamp(a, 4)], ("post_barrier", 3): [lambda a: stamp(a, 5)]}
    g1_main(a, hooks)
    stamp(a, 6)
    g1_post_loads(a)
    g1_correction(a)
    stamp(a, 7)
    g1_epilogue(a)
    stamp(a, 8)
    a.e("s_waitcnt vmcnt(0)")
    stamp(a, 9)
    prof_store(a)
    a.e(f"L_end_{name}:")
    a.e("s_endpgm")

def build_touch(a, name, ws_too=False):
    prologue(a, name)
    a.e("s_waitcnt lgkmcnt(0)")
    bufs = [(P_X, 2048*1024), (P_WG, 512*2752), (P_WU, 512*2752), (P_WD, 1376*1024)] + [(p, 131072) for p in (P_ARE, P_AIM, P_BRE, P_BIM, P_CRE, P_CIM)]
    if ws_too: bufs.append((P_WS, 14 << 20))
    a.e(f"s_lshl_b32 s{S_T0}, s{S_WG}, 8")
    a.e(f"v_add_u32 v2, s{S_T0}, v0")
    a.e(f"v_lshlrev_b32 v2, 4, v2")
    r = 8
    for p, n in bufs:
        mk_srd(a, SRD_X, p, n)
        a.e("v_mov_b32 v3, v2")
        for rep in range((n + (1 << 20) - 1) >> 20):
            a.e(f"buffer_load_dwordx4 v[{r}:{r+3}], v3, s[{SRD_X}:{SRD_X+3}], 0 offen")
            a.e(f"v_add_u32 v3, {1 << 20}, v3")
            r = 8 + ((r - 8 + 4) % 128)
        a.e("s_nop 4")
    a.e("s_waitcnt vmcnt(0)")
    a.e(f"L_end_{name}:")
    a.e("s_endpgm")

WS_PROF = 16 << 20
S_PROF = 82
PROF = False
STAMPS = []
def stamp(a, idx, real=False):
    if PROF:
        if isinstance(idx, str):
            if idx not in STAMPS: return
            idx = 2 + STAMPS.index(idx)
        a.e(f"{'s_memrealtime' if real else 's_memtime'} s[{S_PROF+2*idx}:{S_PROF+2*idx+1}]")
def prof_store(a):
    if not PROF: return
    a.e("s_waitcnt lgkmcnt(0)")
    for q in range(10):
        a.e(f"v_mov_b32 v{4+q}, s{S_PROF+2*q}")
    a.e(f"s_lshl_b32 s{S_T0}, s{S_WG}, 2")
    a.e(f"s_add_u32 s{S_T0}, s{S_T0}, s{S_W}")
    a.e(f"s_lshl_b32 s{S_T0}, s{S_T0}, 6")
    a.e(f"s_add_u32 s{S_T0}, s{S_T0}, {WS_PROF}")
    a.e(f"v_mov_b32 v2, s{S_T0}")
    a.e("s_mov_b64 exec, 1")
    a.e(f"global_store_dwordx4 v2, v[4:7], s[{P_WS}:{P_WS+1}]")
    a.e(f"global_store_dwordx4 v2, v[8:11], s[{P_WS}:{P_WS+1}] offset:16")
    a.e(f"global_store_dwordx2 v2, v[12:13], s[{P_WS}:{P_WS+1}] offset:32")

HDR = open('parallel_sum__ssm_conv_s4__geglu_ffn__prompt.s.ref').read().split('; Override')[0].rstrip()

def assemble(kernels, launches):
    out = [HDR]
    for n, g, b, l in launches:
        out.append(f"; @launch kernel={n} grid=({g},1,1) block=({b},1,1) lds={l}")
    out.append('.amdgcn_target "amdgcn-amd-amdhsa--gfx950"')
    out.append('.text')
    for n, bld, v, ag in kernels:
        a = Asm()
        bld(a, n)
        out.append(a.text())
    out.append('.section .rodata,"a"')
    for n, bld, v, ag in kernels:
        out.append(kd(n, v, ag))
    return '\n'.join(out)

if __name__ == "__main__":
    which = sys.argv[1]
    PROF = "prof" in sys.argv
    if which == "k1":
        txt = assemble([("k1_kernel", build_k1, 256, 0)], [("k1_kernel", 256, 256, LDS_BYTES)] * (1 if "one" in sys.argv else 2))
    if which == "k12":
        txt = assemble([("k1_kernel", build_k1, 256, 0), ("k2_kernel", build_k2, 256, 0)],
                       [("k1_kernel", 256, 256, LDS_BYTES)] * 2 + [("k2_kernel", 256, 256, LDS_BYTES)])
    if which == "k123":
        txt = assemble([("k1_kernel", build_k1, 256, 0), ("k2_kernel", build_k2, 256, 0), ("k3_kernel", build_k3, 256, 176)],
                       [("k1_kernel", 256, 256, LDS_BYTES)] * 2 + [("k2_kernel", 256, 256, LDS_BYTES), ("k3_kernel", 256, 256, LDS_BYTES)])
    if which == "list":
        seq = sys.argv[2].split(",")
        def nop(a, name):
            a.e(f".globl {name}\n.p2align 8\n.type {name},@function\n{name}:\ns_endpgm")
        allk = {"k1": ("k1_kernel", build_k1, 256, 0), "k2": ("k2_kernel", build_k2, 256, 0), "k3": ("k3_kernel", build_k3, 256, 176), "nop": ("nop_kernel", nop, 8, 0),
                "t1": ("t1_kernel", lambda a, n: build_touch(a, n, False), 256, 0), "t2": ("t2_kernel", lambda a, n: build_touch(a, n, True), 256, 0)}
        ks = [allk[k] for k in dict.fromkeys(seq)]
        txt = assemble(ks, [(allk[k][0], 256 if k != "nop" else 1, 256 if k != "nop" else 64, LDS_BYTES if k[0] == "k" else 0) for k in seq])
    print(txt)
```

```python
import sys, math
from asmlib import *
import gen as G
from gen import *

NAME = "parallel_sum__ssm_conv_s4__geglu_ffn__prompt_kernel"
S_EP = 34
S_SPIN = 13
WS_DUMMY = 15 << 20
V_POLL = 252
SPIN_MAX = 1 << 17
OPT = {}


class Rec:
    def __init__(self, a):
        self.ops = []
        self.a = a
    def e(self, s):
        for l in s.split('\n'):
            if l.strip():
                self.ops.append(('e', l.strip()))
    def c(self, s): pass
    def vm(self, s, tag): self.ops.append(('vm', s, tag))
    def vm_wait(self, *tags): self.ops.append(('wait', tags))
    def label(self, b): return self.a.label(b)
    def nofill(self, on): self.ops.append(('nofill', on))


def replay(a, ops, fillers, every, start=0):
    fill = list(fillers)
    nof = False
    n = 0
    for o in ops:
        if o[0] == 'nofill':
            nof = o[1]
            continue
        if o[0] == 'e':
            if o[1].startswith("STAMP:"):
                stamp(a, o[1][6:]); continue
            a.e(o[1])
        elif o[0] == 'vm':
            a.vm(o[1], o[2])
        elif o[0] == 'wait':
            a.vm_wait(*o[1])
        n += 1
        if fill and not nof and n >= start and (n - start) % every == 0:
            emit_group(a, fill.pop(0))
    for g in fill:
        emit_group(a, g)


def emit_group(a, g):
    if callable(g):
        g(a); return
    for t in g:
        if isinstance(t, tuple):
            a.vm(t[0], t[1])
        elif callable(t):
            t(a)
        else:
            a.e(t)

def t2_groups(t):
    return [[x] if callable(x) else x for x in t]


def sched(a, mf, slots):
    for i, m in enumerate(mf):
        a.e(m)
        for it in slots.get(i, []):
            if isinstance(it, list):
                emit_group(a, it)
            elif isinstance(it, tuple):
                a.vm(it[0], it[1])
            elif callable(it):
                it(a)
            else:
                a.e(it)


def g1_setup_x(a):
    mk_srd(a, SRD_X, P_X, 2048 * 1024)
    a.e(f"s_lshl_b32 s{S_T0}, s{S_I}, 7")
    a.e(f"s_lshl_b32 s{S_T1}, s{S_W}, 5")
    a.e(f"s_add_u32 s{S_T0}, s{S_T0}, s{S_T1}")
    a.e(f"s_lshl_b32 s{S_XW}, s{S_T0}, 10")
    a.e(f"s_lshl_b32 s{S_LX}, s{S_W}, 12")
    rm = OPT.get("rotmode", 0)
    a.e(f"s_add_u32 s{S_KC}, s{S_I}, s{S_J}")
    if rm == 0:
        a.e(f"s_and_b32 s{S_KC}, s{S_KC}, 7")
    elif rm == 1:
        a.e(f"s_mov_b32 s{S_KC}, 0")
    elif rm == 2:
        a.e(f"s_and_b32 s{S_KC}, s{S_KC}, 1")
        a.e(f"s_lshl_b32 s{S_KC}, s{S_KC}, 2")
    elif rm == 3:
        a.e(f"s_and_b32 s{S_KC}, s{S_KC}, 3")
        a.e(f"s_lshl_b32 s{S_KC}, s{S_KC}, 1")
    a.e(f"s_lshr_b32 s{S_CSH}, s{S_I}, 3")
    a.e(f"s_mul_i32 s{S_WW}, s{S_W}, {16 * 2752}")
    a.e(f"s_lshl_b32 s{S_T0}, s{S_U0}, 6")
    a.e(f"s_add_u32 s{S_WW}, s{S_WW}, s{S_T0}")
    a.e(f"s_mul_i32 s{S_LW}, s{S_W}, 3072")
    g1_stage_offsets(a)
    a.e(f"v_lshrrev_b32 v12, 3, v{V_LANE}")
    a.e(f"v_and_b32 v13, 7, v{V_LANE}")
    a.e(f"v_lshrrev_b32 v14, 1, v12")
    a.e(f"v_xor_b32 v15, v14, v13")
    a.e(f"v_lshlrev_b32 v16, 4, v15")
    a.e(f"v_lshl_add_u32 v{V_XOFF}, v12, 10, v16")
    a.e(f"v_xor_b32 v17, 64, v{V_XOFF}")
    a.e(f"v_add_u32 v{V_XOFF+1}, 8192, v17")
    a.e(f"v_add_u32 v{V_XOFF+2}, 16384, v{V_XOFF}")
    a.e(f"v_add_u32 v{V_XOFF+3}, 16384, v{V_XOFF+1}")

def g1_setup_w(a):
    mk_srd(a, SRD_WG, P_WG, 512 * 2752)
    mk_srd(a, SRD_WU, P_WU, 512 * 2752)
    for q in range(3):
        a.e(f"v_add_u32 v12, {64*q}, v{V_LANE}")
        a.e(f"v_mul_u32_u24 v13, 5462, v12")
        a.e(f"v_lshrrev_b32 v13, 16, v13")
        a.e(f"v_mul_u32_u24 v14, 12, v13")
        a.e(f"v_sub_u32 v14, v12, v14")
        a.e(f"v_mul_u32_u24 v13, 2752, v13")
        a.e(f"v_lshl_add_u32 v{V_WOFF+q}, v14, 4, v13")

def g1_setup_r(a):
    a.e(f"v_and_b32 v12, 31, v{V_LANE}")
    a.e(f"v_lshrrev_b32 v13, 5, v{V_LANE}")
    a.e(f"v_bfe_u32 v14, v12, 1, 3")
    a.e(f"s_lshl_b32 s{S_T0}, s{S_TW}, 13")
    a.e(f"v_lshl_add_u32 v15, v12, 7, s{S_T0}")
    for s_ in range(4):
        a.e(f"v_add_u32 v16, {2*s_}, v13")
        a.e(f"v_xor_b32 v16, v16, v14")
        a.e(f"v_lshl_add_u32 v{V_BADDR+s_}, v16, 4, v15")
    a.e(f"v_lshrrev_b32 v12, 4, v{V_LANE}")
    a.e(f"v_and_b32 v13, 1, v12")
    a.e(f"v_lshrrev_b32 v12, 1, v12")
    a.e(f"v_bfe_u32 v14, v{V_LANE}, 2, 2")
    a.e(f"v_lshl_add_u32 v14, v12, 3, v14")
    a.e(f"v_mul_u32_u24 v14, 192, v14")
    a.e(f"v_and_b32 v15, 3, v{V_LANE}")
    a.e(f"v_lshl_add_u32 v14, v15, 3, v14")
    a.e(f"v_mul_u32_u24 v13, {L_U - L_G}, v13")
    a.e(f"v_add_u32 v14, v14, v13")
    a.e(f"s_mul_i32 s{S_T0}, s{S_FW}, 96")
    a.e(f"s_add_u32 s{S_T0}, s{S_T0}, {L_G}")
    a.e(f"v_add_u32 v{V_AADDR}, s{S_T0}, v14")


def dma_groups(slot, tag):
    return [[m0, "s_nop 0", (ld, tag)] for m0, ld in g1_dma_list(slot, tag)]


def entry(a):
    a.e(f".globl {NAME}\n.p2align 8\n.type {NAME},@function\n{NAME}:")
    a.e(f"s_cmp_ge_u32 s{S_WG}, 256")
    a.e(f"s_cbranch_scc1 L_end")
    a.e("s_load_dwordx16 s[16:31], s[0:1], 0")
    a.e("s_load_dwordx16 s[32:47], s[0:1], 64")
    if not OPT.get("nopf"):
        a.e("s_getpc_b64 s[74:75]")
        a.e("L_pc:")
        a.e(f"s_lshr_b32 s{S_T1}, s{S_WG}, 3")
        a.e(f"s_and_b32 s{S_T1}, s{S_T1}, 15")
        a.e(f"s_lshl_b32 s{S_T1}, s{S_T1}, 11")
        a.e(f"v_lshl_add_u32 v2, v0, 3, s{S_T1}")
        for q in range(OPT.get("pfn", 1)):
            a.vm(f"global_load_dwordx2 v[4:5], v2, s[74:75] offset:{0}", "pf")
    a.e(f"v_and_b32 v{V_LANE}, 63, v0")
    a.e(f"v_lshrrev_b32 v3, 6, v0")
    a.e(f"s_and_b32 s{S_T0}, s{S_WG}, 7")
    a.e(f"v_readfirstlane_b32 s{S_W}, v3")
    a.e(f"s_lshr_b32 s{S_T1}, s{S_WG}, 3")
    a.e(f"s_lshr_b32 s{S_I}, s{S_T0}, 1")
    a.e(f"s_lshl_b32 s{S_I}, s{S_I}, 2")
    a.e(f"s_lshr_b32 s{S_T2}, s{S_T1}, 3")
    a.e(f"s_add_u32 s{S_I}, s{S_I}, s{S_T2}")
    a.e(f"s_and_b32 s{S_J}, s{S_T0}, 1")
    a.e(f"s_lshl_b32 s{S_J}, s{S_J}, 3")
    a.e(f"s_and_b32 s{S_T2}, s{S_T1}, 7")
    a.e(f"s_add_u32 s{S_J}, s{S_J}, s{S_T2}")
    a.e(f"s_lshr_b32 s{S_TW}, s{S_W}, 1")
    a.e(f"s_and_b32 s{S_FW}, s{S_W}, 1")
    a.e(f"s_mul_i32 s{S_U0}, s{S_J}, 3")
    a.e(f"s_lshl_b32 s{S_T2}, s{S_J}, 1")
    a.e(f"s_add_u32 s{S_T2}, s{S_T2}, 11")
    a.e(f"s_min_u32 s{S_U0}, s{S_U0}, s{S_T2}")
    a.e(f"s_cmp_lt_u32 s{S_J}, 11")
    a.e(f"s_cselect_b32 s{S_NU}, 6, 4")
    conv_ids(a)
    g2_ids(a)


def epoch_load(a):
    a.e("v_mov_b32 v3, 0")
    a.vm(f"global_load_dword v6, v3, s[{P_WS}:{P_WS+1}] sc1", "ep")


def epoch_finish(a):
    a.vm_wait("ep")
    a.e("s_nop 0")
    a.e(f"v_readfirstlane_b32 s{S_EP}, v6")
    a.e("s_nop 3")
    a.e(f"s_mul_i32 s{S_TAG}, s{S_EP}, 0x9e3779b1")
    a.e(f"s_add_u32 s{S_TAG}, s{S_TAG}, 0x3c6ef373")


def flag_store(a, region, idx_code):
    lab = a.label("nofl")
    a.e(f"s_cmp_lg_u32 s{S_W}, 0")
    a.e(f"s_cbranch_scc1 {lab}")
    idx_code(a)
    a.e(f"s_lshl_b32 s{S_T0}, s{S_T0}, 2")
    a.e(f"s_add_u32 s{S_T0}, s{S_T0}, {region}")
    a.e(f"v_mov_b32 v2, s{S_T0}")
    a.e(f"v_mov_b32 v3, s{S_TAG}")
    a.e(f"s_mov_b64 s[{S_EXEC}:{S_EXEC+1}], exec")
    a.e("s_mov_b64 exec, 1")
    a.e(f"global_store_dword v2, v3, s[{P_WS}:{P_WS+1}] sc1")
    a.e(f"s_mov_b64 exec, s[{S_EXEC}:{S_EXEC+1}]")
    a.e(f"{lab}:")


def idx_ln(a): a.e(f"s_mov_b32 s{S_T0}, s{S_WG}")
def idx_h(a):
    a.e(f"s_lshl_b32 s{S_T0}, s{S_I}, 4")
    a.e(f"s_add_u32 s{S_T0}, s{S_T0}, s{S_J}")
def idx_y(a):
    a.e(f"s_and_b32 s{S_T0}, s{S_WG}, 7")
    a.e(f"s_lshl_b32 s{S_T0}, s{S_T0}, 5")
    a.e(f"s_lshr_b32 s{S_T1}, s{S_WG}, 3")
    a.e(f"s_add_u32 s{S_T0}, s{S_T0}, s{S_T1}")


def poll_addr(a, kind, vreg):
    if kind == "ln":
        a.e(f"v_lshlrev_b32 v{vreg}, 4, v{V_LANE}")
        a.e(f"v_add_u32 v{vreg}, {WS_FLAG_LN}, v{vreg}")
    elif kind == "h":
        a.e(f"s_lshl_b32 s{S_T0}, s{S_I}, 6")
        a.e(f"s_add_u32 s{S_T0}, s{S_T0}, {WS_FLAG_H}")
        a.e(f"v_and_b32 v{vreg}, 15, v{V_LANE}")
        a.e(f"v_lshl_add_u32 v{vreg}, v{vreg}, 2, s{S_T0}")
    elif kind == "y":
        a.e(f"s_lshl_b32 s{S_T0}, s{S_NT}, 7")
        a.e(f"s_add_u32 s{S_T0}, s{S_T0}, {WS_FLAG_Y}")
        a.e(f"v_and_b32 v{vreg}, 31, v{V_LANE}")
        a.e(f"v_lshl_add_u32 v{vreg}, v{vreg}, 2, s{S_T0}")


def poll_issue(a, kind, vreg, tag):
    if kind == "ln":
        a.vm(f"global_load_dwordx4 {vr(V_POLL,4)}, v{vreg}, s[{P_WS}:{P_WS+1}] sc1", tag)
    else:
        a.vm(f"global_load_dword v{V_POLL}, v{vreg}, s[{P_WS}:{P_WS+1}] sc1", tag)


def poll_check(a, kind, vreg):
    top, ok = a.label("poll"), a.label("pollok")
    a.e(f"s_mov_b32 s{S_SPIN}, 0")
    a.e(f"{top}:")
    a.e(f"v_cmp_ne_u32 vcc, s{S_TAG}, v{V_POLL}")
    if kind == "ln":
        for q in range(1, 4):
            a.e(f"v_cmp_ne_u32 s[74:75], s{S_TAG}, v{V_POLL+q}")
            a.e("s_nop 0")
            a.e("s_or_b64 vcc, vcc, s[74:75]")
    a.e("s_nop 1")
    a.e(f"s_cmp_eq_u64 vcc, 0")
    a.e(f"s_cbranch_scc1 {ok}")
    a.e(f"s_add_u32 s{S_SPIN}, s{S_SPIN}, 1")
    a.e(f"s_cmp_gt_u32 s{S_SPIN}, {SPIN_MAX}")
    a.e(f"s_cbranch_scc1 {ok}")
    a.e(f"s_sleep {OPT.get('sleep', 1)}")
    if kind == "ln":
        a.e(f"global_load_dwordx4 {vr(V_POLL,4)}, v{vreg}, s[{P_WS}:{P_WS+1}] sc1")
    else:
        a.e(f"global_load_dword v{V_POLL}, v{vreg}, s[{P_WS}:{P_WS+1}] sc1")
    a.e("s_waitcnt vmcnt(0)")
    a.e(f"s_branch {top}")
    a.e(f"{ok}:")


def epoch_bump(a):
    lab = a.label("nobump")
    a.e(f"s_or_b32 s{S_T0}, s{S_WG}, s{S_W}")
    a.e(f"s_cmp_lg_u32 s{S_T0}, 0")
    a.e(f"s_cbranch_scc1 {lab}")
    a.e(f"s_add_u32 s{S_T0}, s{S_EP}, 1")
    a.e("v_mov_b32 v2, 0")
    a.e(f"v_mov_b32 v3, s{S_T0}")
    a.e(f"s_mov_b64 s[{S_EXEC}:{S_EXEC+1}], exec")
    a.e("s_mov_b64 exec, 1")
    a.e(f"global_store_dword v2, v3, s[{P_WS}:{P_WS+1}] sc1")
    a.e(f"s_mov_b64 exec, s[{S_EXEC}:{S_EXEC+1}]")
    a.e(f"{lab}:")


def ln_loads2(a):
    a.e(f"s_lshl_b32 s{S_T0}, s{S_I}, 7")
    a.e(f"s_lshl_b32 s{S_T1}, s{S_J}, 3")
    a.e(f"s_add_u32 s{S_T0}, s{S_T0}, s{S_T1}")
    a.e(f"s_lshl_b32 s{S_T1}, s{S_W}, 1")
    a.e(f"s_add_u32 s{S_T0}, s{S_T0}, s{S_T1}")
    a.e(f"s_lshl_b32 s{S_T0}, s{S_T0}, 10")
    a.e(f"v_lshl_add_u32 v7, v{V_LANE}, 4, s{S_T0}")
    a.vm(f"global_load_dwordx4 v[44:47], v7, s[{P_X}:{P_X+1}]", "ln")
    a.vm(f"global_load_dwordx4 v[48:51], v7, s[{P_X}:{P_X+1}] offset:1024", "ln")


def ln_compute2(a):
    a.vm_wait("ln")
    for r in range(2):
        for d in range(4):
            a.e(f"v_lshlrev_b32 v{16+8*r+2*d}, 16, v{44+4*r+d}")
            a.e(f"v_and_b32 v{17+8*r+2*d}, 0xffff0000, v{44+4*r+d}")
    for r in range(2):
        b = 16 + 8*r
        t = 36 + 4*r
        a.e(f"v_pk_add_f32 {vr(t,2)}, {vr(b,2)}, {vr(b+2,2)}")
        a.e(f"v_pk_mul_f32 {vr(t+2,2)}, {vr(b,2)}, {vr(b,2)}")
    for r in range(2):
        b = 16 + 8*r
        t = 36 + 4*r
        a.e(f"v_pk_add_f32 {vr(t,2)}, {vr(t,2)}, {vr(b+4,2)}")
        a.e(f"v_pk_fma_f32 {vr(t+2,2)}, {vr(b+2,2)}, {vr(b+2,2)}, {vr(t+2,2)}")
    for r in range(2):
        b = 16 + 8*r
        t = 36 + 4*r
        a.e(f"v_pk_add_f32 {vr(t,2)}, {vr(t,2)}, {vr(b+6,2)}")
        a.e(f"v_pk_fma_f32 {vr(t+2,2)}, {vr(b+4,2)}, {vr(b+4,2)}, {vr(t+2,2)}")
    for r in range(2):
        b = 16 + 8*r
        t = 36 + 4*r
        a.e(f"v_pk_fma_f32 {vr(t+2,2)}, {vr(b+6,2)}, {vr(b+6,2)}, {vr(t+2,2)}")
        a.e(f"v_add_f32 v{32+r}, v{t}, v{t+1}")
    for r in range(2):
        t = 36 + 4*r
        a.e(f"v_add_f32 v{34+r}, v{t+2}, v{t+3}")
    a.e("s_nop 0")
    dpp_reduce(a, [32, 33, 34, 35])
    for q in range(4):
        a.e(f"v_readlane_b32 s{74+q if q < 2 else 10+q}, v{32+q}, 63")
    a.e("s_nop 1")
    a.e("v_mov_b32 v32, s74")
    a.e("v_mov_b32 v33, s75")
    a.e("v_mov_b32 v34, s12")
    a.e("v_mov_b32 v35, s13")
    a.e("v_mov_b32 v36, 0x3b000000")
    a.e("v_pk_mul_f32 v[32:33], v[32:33], v[36:37] op_sel_hi:[1,0]")
    a.e("v_pk_mul_f32 v[34:35], v[34:35], v[36:37] op_sel_hi:[1,0]")
    a.e("v_pk_fma_f32 v[34:35], v[32:33], v[32:33], v[34:35] neg_lo:[1,0,0] neg_hi:[1,0,0]")
    a.e("v_max_f32 v34, 0, v34")
    a.e("v_max_f32 v35, 0, v35")
    a.e("v_cvt_pk_bf16_f32 v36, v34, v35")
    a.e("v_cvt_pk_bf16_f32 v37, v32, v33")
    a.e("v_lshlrev_b32 v34, 16, v36")
    a.e("v_and_b32 v35, 0xffff0000, v36")
    a.e("v_lshlrev_b32 v32, 16, v37")
    a.e("v_and_b32 v33, 0xffff0000, v37")
    a.e("v_add_f32 v34, 0x3727c5ac, v34")
    a.e("v_add_f32 v35, 0x3727c5ac, v35")
    a.e("v_cvt_pk_bf16_f32 v36, v34, v35")
    a.e("v_lshlrev_b32 v34, 16, v36")
    a.e("v_and_b32 v35, 0xffff0000, v36")
    a.e("v_sqrt_f32 v34, v34")
    a.e("v_sqrt_f32 v35, v35")
    a.e("s_nop 0")
    a.e("v_cvt_pk_bf16_f32 v36, v34, v35")
    a.e("v_lshlrev_b32 v34, 16, v36")
    a.e("v_and_b32 v35, 0xffff0000, v36")
    a.e("v_rcp_f32 v34, v34")
    a.e("v_rcp_f32 v35, v35")
    for r in range(2):
        b = 16 + 8*r
        sel = "op_sel_hi:[1,0]" if r == 0 else "op_sel:[0,1] op_sel_hi:[1,1]"
        for d in range(4):
            a.e(f"v_pk_add_f32 {vr(b+2*d,2)}, {vr(b+2*d,2)}, v[32:33] {sel} neg_lo:[0,1] neg_hi:[0,1]")
    for r in range(2):
        b = 16 + 8*r
        for d in range(4):
            a.e(f"v_cvt_pk_bf16_f32 v{44+4*r+d}, v{b+2*d}, v{b+2*d+1}")
    for r in range(2):
        b = 16 + 8*r
        for d in range(4):
            a.e(f"v_lshlrev_b32 v{b+2*d}, 16, v{44+4*r+d}")
            a.e(f"v_and_b32 v{b+2*d+1}, 0xffff0000, v{44+4*r+d}")
    for r in range(2):
        b = 16 + 8*r
        sel = "op_sel_hi:[1,0]" if r == 0 else "op_sel:[0,1] op_sel_hi:[1,1]"
        for d in range(4):
            a.e(f"v_pk_mul_f32 {vr(b+2*d,2)}, {vr(b+2*d,2)}, v[34:35] {sel}")
    for r in range(2):
        b = 16 + 8*r
        for d in range(4):
            a.e(f"v_cvt_pk_bf16_f32 v{44+4*r+d}, v{b+2*d}, v{b+2*d+1}")
    a.e(f"s_mul_i32 s{S_T0}, s{S_W}, {2*1088}")
    a.e(f"s_add_u32 s{S_T0}, s{S_T0}, {L_LN}")
    a.e(f"v_lshl_add_u32 v2, v{V_LANE}, 4, s{S_T0}")
    a.e("ds_write_b128 v2, v[44:47]")
    a.e("ds_write_b128 v2, v[48:51] offset:1088")
    a.e("v_mov_b32 v40, v34")
    a.e("v_cvt_pk_bf16_f32 v41, -v32, -v32")
    a.e("v_mov_b32 v42, v35")
    a.e("v_cvt_pk_bf16_f32 v43, -v33, -v33")
    a.e(f"s_lshl_b32 s{S_T0}, s{S_I}, 7")
    a.e(f"s_lshl_b32 s{S_T1}, s{S_J}, 3")
    a.e(f"s_add_u32 s{S_T0}, s{S_T0}, s{S_T1}")
    a.e(f"s_lshl_b32 s{S_T1}, s{S_W}, 1")
    a.e(f"s_add_u32 s{S_T1}, s{S_T0}, s{S_T1}")
    a.e(f"s_lshl_b32 s{S_T1}, s{S_T1}, 3")
    a.e(f"s_add_u32 s{S_T1}, s{S_T1}, {WS_STATS}")
    a.e(f"v_mov_b32 v3, s{S_T1}")
    a.nofill(True)
    a.e(f"s_mov_b64 s[{S_EXEC}:{S_EXEC+1}], exec")
    a.e("s_mov_b64 exec, 1")
    a.vm(f"global_store_dwordx4 v3, v[40:43], s[{P_WS}:{P_WS+1}] sc1", "pubA")
    a.e(f"s_mov_b64 exec, s[{S_EXEC}:{S_EXEC+1}]")
    a.nofill(False)
    a.e(f"v_bfe_u32 v2, v{V_LANE}, 2, 2")
    a.e(f"v_mul_u32_u24 v2, 1088, v2")
    a.e(f"v_lshrrev_b32 v3, 4, v{V_LANE}")
    a.e(f"v_lshl_add_u32 v2, v3, 5, v2")
    a.e(f"v_and_b32 v3, 3, v{V_LANE}")
    a.e(f"v_lshl_add_u32 v2, v3, 3, v2")
    a.e(f"s_lshl_b32 s{S_T1}, s{S_W}, 8")
    a.e(f"s_add_u32 s{S_T1}, s{S_T1}, {L_LN}")
    a.e(f"v_add_u32 v2, s{S_T1}, v2")
    a.e(f"s_lshl_b32 s{S_T0}, s{S_T0}, 10")
    a.e(f"s_lshl_b32 s{S_T1}, s{S_W}, 11")
    a.e(f"s_add_u32 s{S_T0}, s{S_T0}, s{S_T1}")
    a.e(f"s_add_u32 s{S_T0}, s{S_T0}, {WS_XT}")
    a.e(f"v_lshl_add_u32 v3, v{V_LANE}, 4, s{S_T0}")
    a.e("s_waitcnt lgkmcnt(0)")
    a.e("s_barrier")
    for q in range(2):
        a.e(f"ds_read_b64_tr_b16 v[{8+4*q}:{9+4*q}], v2 offset:{128*q}")
        a.e(f"ds_read_b64_tr_b16 v[{10+4*q}:{11+4*q}], v2 offset:{128*q + 4*1088}")
    a.e("s_waitcnt lgkmcnt(0)")
    a.vm(f"global_store_dwordx4 v3, v[8:11], s[{P_WS}:{P_WS+1}] sc1", "pubA")
    a.vm(f"global_store_dwordx4 v3, v[12:15], s[{P_WS}:{P_WS+1}] offset:1024 sc1", "pubA")


def g1_main2(a, hooks, pend0):
    for r in range(4):
        a.e(f"v_mov_b32 v{V_ONES+r}, 0x3f803f80")
    a.vm_wait("st0")
    a.e("s_barrier")
    stamp(a, "st0")
    for x in g1_reads(0, 0):
        a.e(x)
    st = 0
    pend = list(pend0)
    for stage in range(8):
        for s in range(4):
            last = (stage == 7 and s == 3)
            a.e("s_waitcnt lgkmcnt(0)")
            mf = g1_mfmas(st, stage == 0 and s == 0)
            slots = {i: [] for i in range(6)}
            if stage == 0:
                lab = a.label("nocs")
                a.e(f"s_or_b32 s{S_T0}, s{S_TW}, s{S_CSH}")
                a.e(f"s_cmp_lg_u32 s{S_T0}, 0")
                a.e(f"s_cbranch_scc1 {lab}")
                for ap in range(3):
                    c = "0" if s == 0 else vr(V_CSACC + 16 * ap, 16)
                    a.e(f"v_mfma_f32_32x32x16_bf16 {vr(V_CSACC+16*ap,16)}, {vr(V_ONES,4)}, {vr(fA(st,ap),4)}, {c}")
                a.e(f"{lab}:")
            ldsw = hooks.get(("ldsw", stage, s), [])
            if s == 3 and not last:
                assert not pend, (stage, len(pend))
                d = SLOT if (stage + 1) % 3 != 0 else -2 * SLOT
                slots[0] += [f"v_add_u32 v{V_BADDR+q}, {d & 0xffffffff}, v{V_BADDR+q}" for q in range(4)]
                slots[0] += [f"v_add_u32 v{V_AADDR}, {d & 0xffffffff}, v{V_AADDR}"]
                def boundary(a, stage=stage):
                    a.vm_wait(f"st{stage+1}")
                    for hk in hooks.get(("pre_barrier", stage), []):
                        hk(a)
                    a.e("s_barrier")
                slots[1].append(boundary)
                rd = g1_reads(st ^ 1, 0)
                slots[1] += rd[:3]
                slots[2] += rd[3:6]
                slots[3] += rd[6:]
                for hk in hooks.get(("post_barrier", stage), []):
                    slots[4].append(hk)
                if stage + 3 < 8:
                    slots[1].append(g1_stage_offsets)
                    pend = dma_groups(stage % 3, f"st{stage+3}")
                elif ("extra_dma", stage) in hooks:
                    pend = list(hooks[("extra_dma", stage)])
                if pend:
                    slots[3].append(pend.pop(0))
                    slots[5].append(pend.pop(0))
            elif last:
                slots[0].append("s_barrier")
                for hk in hooks.get(("ring_free",), []):
                    slots[1].append(hk)
            else:
                rd = g1_reads(st ^ 1, s + 1)
                slots[0] += rd[:3]
                slots[1] += rd[3:6]
                slots[2] += rd[6:]
                n = (len(pend) + (2 - s)) // (3 - s)
                pos = {0: [], 1: [3], 2: [1, 4], 3: [1, 3, 5], 4: [1, 2, 4, 5], 5: [1, 2, 3, 4, 5]}[n]
                for q in range(n):
                    slots[pos[q]].append(pend.pop(0))
            for k, x in enumerate(ldsw):
                slots[min(5, 1 + (k * 5) // max(1, len(ldsw)))].append(x)
            for k, hk in enumerate(hooks.get(("fill", stage, s), [])):
                slots[min(5, 2 + k)].append(hk)
            sh = hooks.get(("shadow", stage, s), [])
            lo = 3
            for k, x in enumerate(sh):
                slots[lo + (k * (6 - lo)) // len(sh)].append(x)
            sched(a, mf, slots)
            st ^= 1
        for hk in hooks.get(("stage_end", stage), []):
            hk(a)


def cs_store8(a):
    lab = a.label("nocsst")
    a.e(f"s_or_b32 s{S_T0}, s{S_TW}, s{S_CSH}")
    a.e(f"s_cmp_lg_u32 s{S_T0}, 0")
    a.e(f"s_cbranch_scc1 {lab}")
    a.e(f"s_mul_i32 s{S_T0}, s{S_J}, 6")
    a.e(f"s_mul_i32 s{S_T1}, s{S_FW}, 3")
    a.e(f"s_add_u32 s{S_T0}, s{S_T0}, s{S_T1}")
    a.e(f"s_lshl_b32 s{S_T0}, s{S_T0}, 10")
    a.e(f"s_lshl_b32 s{S_T1}, s{S_I}, 2")
    a.e(f"s_add_u32 s{S_T0}, s{S_T0}, s{S_T1}")
    a.e(f"s_add_u32 s{S_T0}, s{S_T0}, {WS_CS}")
    a.e(f"v_lshl_add_u32 v3, v{V_LANE}, 5, s{S_T0}")
    a.e(f"s_mov_b64 s[{S_EXEC}:{S_EXEC+1}], exec")
    a.e("s_mov_b64 exec, 0xffffffff")
    for ap in range(3):
        a.e(f"global_store_dword v3, v{V_CSACC+16*ap}, s[{P_WS}:{P_WS+1}] offset:{1024*ap} sc1")
    a.e(f"s_mov_b64 exec, s[{S_EXEC}:{S_EXEC+1}]")
    a.e(f"{lab}:")

def g1_post_loads8(a):
    a.e(f"s_lshl_b32 s{S_T0}, s{S_I}, 7")
    a.e(f"s_lshl_b32 s{S_T1}, s{S_TW}, 6")
    a.e(f"s_add_u32 s{S_T0}, s{S_T0}, s{S_T1}")
    a.e(f"s_lshl_b32 s{S_T0}, s{S_T0}, 3")
    a.e(f"s_add_u32 s{S_T0}, s{S_T0}, {WS_STATS}")
    a.e(f"v_and_b32 v6, 31, v{V_LANE}")
    a.e(f"v_lshl_add_u32 v7, v6, 3, s{S_T0}")
    a.vm(f"global_load_dwordx2 v[2:3], v7, s[{P_WS}:{P_WS+1}] sc1", "post")
    a.vm(f"global_load_dwordx2 v[4:5], v7, s[{P_WS}:{P_WS+1}] offset:256 sc1", "post")
    a.e(f"s_mul_i32 s{S_T0}, s{S_J}, 6")
    a.e(f"s_mul_i32 s{S_T1}, s{S_FW}, 3")
    a.e(f"s_add_u32 s{S_T0}, s{S_T0}, s{S_T1}")
    a.e(f"s_lshl_b32 s{S_T0}, s{S_T0}, 10")
    a.e(f"s_add_u32 s{S_T0}, s{S_T0}, {WS_CS}")
    a.e(f"v_lshl_add_u32 v7, v6, 5, s{S_T0}")
    a.e(f"v_lshrrev_b32 v8, 5, v{V_LANE}")
    a.e(f"v_lshl_add_u32 v7, v8, 4, v7")
    for ap in range(3):
        a.vm(f"global_load_dwordx4 {vr(16+8*ap,4)}, v7, s[{P_WS}:{P_WS+1}] offset:{1024*ap} sc1", "post")

def g1_correction8(a):
    a.vm_wait("post")
    for ap in range(3):
        b = 16 + 8 * ap
        a.e(f"v_pk_add_f32 {vr(b,2)}, {vr(b,2)}, {vr(b+2,2)}")
    for ap in range(3):
        b = 16 + 8 * ap
        a.e(f"v_add_f32 v{b}, v{b}, v{b+1}")
    for ap in range(3):
        b = 16 + 8 * ap
        a.e(f"v_mov_b32 v{b+1}, v{b}")
    a.e(f"v_cmp_gt_u32 vcc, 32, v{V_LANE}")
    a.e("s_nop 0")
    for ap in range(3):
        b = 16 + 8 * ap
        a.e(f"v_permlane32_swap_b32 v{b}, v{b+1}")
    for ap in range(3):
        b = 16 + 8 * ap
        a.e(f"v_add_f32 v{b}, v{b}, v{b+1}")
    for ap in range(3):
        b = 16 + 8 * ap
        a.e(f"v_cvt_pk_bf16_f32 v{b+1}, v{b}, v{b}")
    for ap in range(3):
        b = 16 + 8 * ap
        a.e(f"v_lshlrev_b32 v{b+2}, 16, v{b+1}")
    for ap in range(3):
        b = 16 + 8 * ap
        a.e(f"v_sub_f32 v{b+2}, v{b}, v{b+2}")
    for ap in range(3):
        b = 16 + 8 * ap
        a.e(f"v_cvt_pk_bf16_f32 v{b+4}, v{b}, v{b+2}")
    for ap in range(3):
        b = 16 + 8 * ap
        a.e(f"v_cndmask_b32 v{b+4}, 0, v{b+4}, vcc")
        a.e(f"v_mov_b32 v{b+5}, 0")
        a.e(f"v_mov_b32 v{b+6}, 0")
        a.e(f"v_mov_b32 v{b+7}, 0")
    for tt in range(2):
        a.e(f"v_cndmask_b32 v{44+4*tt}, 0, v{3+2*tt}, vcc")
        for d in range(1, 4):
            a.e(f"v_mov_b32 v{44+4*tt+d}, 0")
    a.e("s_nop 1")
    for ap in range(3):
        for tt in range(2):
            a.e(f"v_mfma_f32_32x32x16_bf16 {vr(acc(tt,ap),16)}, {vr(20+8*ap,4)}, {vr(44+4*tt,4)}, {vr(acc(tt,ap),16)}")

def g1_epilogue2(a):
    a.e(f"v_mov_b32 v52, {fhex(C1)}")
    a.e(f"v_mov_b32 v53, {fhex(C2)}")
    a.e("v_rcp_f32 v54, v2")
    a.e("v_rcp_f32 v56, v4")
    a.e(f"s_lshl_b32 s{S_T0}, s{S_I}, 2")
    a.e(f"s_lshl_b32 s{S_T1}, s{S_TW}, 1")
    a.e(f"s_add_u32 s{S_T0}, s{S_T0}, s{S_T1}")
    a.e(f"s_mul_i32 s{S_T0}, s{S_T0}, 86")
    a.e(f"s_lshl_b32 s{S_T1}, s{S_U0}, 1")
    a.e(f"s_add_u32 s{S_T0}, s{S_T0}, s{S_T1}")
    a.e(f"s_mul_i32 s{S_T1}, s{S_FW}, 3")
    a.e(f"s_add_u32 s{S_T0}, s{S_T0}, s{S_T1}")
    a.e(f"s_lshl_b32 s{S_T0}, s{S_T0}, 10")
    a.e(f"s_add_u32 s{S_T0}, s{S_T0}, {WS_H}")
    a.e(f"v_lshl_add_u32 v58, v{V_LANE}, 4, s{S_T0}")
    a.e(f"v_add_u32 v59, {86*1024}, v58")
    a.e(f"s_sub_u32 s{S_T2}, s{S_NU}, s{S_T1}")
    a.e(f"s_lshl_b32 s{S_T0}, s{S_WG}, 12")
    a.e(f"s_add_u32 s{S_T0}, s{S_T0}, {WS_DUMMY}")
    a.e(f"v_lshl_add_u32 v60, v{V_LANE}, 4, s{S_T0}")
    a.e(f"s_cmp_gt_u32 s{S_T2}, 1")
    a.e(f"s_cselect_b64 s[74:75], -1, 0")
    a.e(f"v_cndmask_b32 v61, v60, v59, s[74:75]")
    a.e(f"v_cndmask_b32 v60, v60, v58, s[74:75]")
    a.e("s_nop 7")
    for ap in range(3):
        for tt in range(2):
            c = acc(tt, ap)
            R = 2 + 2 * tt
            Sg = 54 + 2 * tt
            Gq, T, X = 6, 14, 22
            for p in range(4):
                a.e(f"v_pk_mul_f32 {vr(Gq+2*p,2)}, {vr(c+2*p,2)}, {vr(R,2)} op_sel_hi:[1,0]")
            for p in range(4):
                a.e(f"v_pk_mul_f32 {vr(T+2*p,2)}, {vr(Gq+2*p,2)}, {vr(Gq+2*p,2)}")
            for p in range(4):
                a.e(f"v_pk_fma_f32 {vr(T+2*p,2)}, {vr(T+2*p,2)}, {vr(52,2)}, {vr(52,2)} op_sel:[0,1,0] op_sel_hi:[1,1,0]")
            for p in range(4):
                a.e(f"v_pk_mul_f32 {vr(T+2*p,2)}, {vr(T+2*p,2)}, {vr(Gq+2*p,2)}")
            for p in range(8):
                a.e(f"v_exp_f32 v{T+p}, v{T+p}")
            for p in range(4):
                a.e(f"v_pk_mul_f32 {vr(Gq+2*p,2)}, {vr(Gq+2*p,2)}, {vr(c+8+2*p,2)}")
            for p in range(4):
                a.e(f"v_pk_fma_f32 {vr(T+2*p,2)}, {vr(T+2*p,2)}, {vr(Sg,2)}, {vr(Sg,2)} op_sel_hi:[1,0,0]")
            for p in range(8):
                a.e(f"v_rcp_f32 v{T+p}, v{T+p}")
            a.e("s_nop 0")
            for p in range(4):
                a.e(f"v_pk_mul_f32 {vr(Gq+2*p,2)}, {vr(Gq+2*p,2)}, {vr(T+2*p,2)}")
            O = X + 4 * ((2 * ap + tt) % 2)
            for p in range(4):
                a.e(f"v_cvt_pk_bf16_f32 v{O+p}, v{Gq+2*p}, v{Gq+2*p+1}")
            adr = (58 + tt) if ap == 0 else (60 + tt)
            a.vm(f"global_store_dwordx4 v{adr}, {vr(O,4)}, s[{P_WS}:{P_WS+1}] offset:{1024*ap} sc1", "pubH")


WD_N = {1: 5, 2: 5, 3: 5, 4: 7}
WD_K0 = {1: 0, 2: 5, 3: 10, 4: 15}
WD_L = {1: (0, 10240), 2: (SLOT, 10240), 3: (25856, 10240), 4: (2*SLOT, 7*2048)}
V_WDL = 240
S_WDL = 15
S_WDS = 73

def wd_setup2(a):
    mk_srd(a, SRD_WD, P_WD, 1376 * 1024)
    a.e(f"s_mul_i32 s{S_ROT}, s{S_NT}, {OPT.get('rot', 3)}")
    a.e(f"s_cmp_ge_u32 s{S_ROT}, 22")
    a.e(f"s_cselect_b32 s{S_T0}, 22, 0")
    a.e(f"s_sub_u32 s{S_ROT}, s{S_ROT}, s{S_T0}")
    a.e(f"s_mul_i32 s{S_WDO}, s{S_W}, {352 * 1024}")
    a.e(f"s_lshl_b32 s{S_T0}, s{S_NT}, 7")
    a.e(f"s_add_u32 s{S_WDO}, s{S_WDO}, s{S_T0}")
    a.e(f"s_lshl_b32 s{S_WDS}, s{S_ROT}, 14")
    a.e(f"s_add_u32 s{S_WDS}, s{S_WDS}, s{S_WDO}")
    a.e(f"s_add_u32 s{S_WENDR}, s{S_WDO}, {22*16384}")
    a.e(f"v_lshrrev_b32 v6, 3, v{V_LANE}")
    a.e(f"v_and_b32 v7, 7, v{V_LANE}")
    a.e(f"v_bfe_u32 v8, v6, 1, 1")
    a.e(f"v_lshlrev_b32 v8, 2, v8")
    a.e(f"v_xor_b32 v7, v7, v8")
    a.e(f"v_lshlrev_b32 v7, 4, v7")
    a.e(f"v_lshl_add_u32 v{V_WDOFF}, v6, 10, v7")
    a.e(f"v_lshrrev_b32 v6, 4, v{V_LANE}")
    a.e(f"v_and_b32 v7, 1, v6")
    a.e(f"v_lshrrev_b32 v6, 1, v6")
    a.e(f"v_bfe_u32 v8, v{V_LANE}, 2, 2")
    a.e(f"v_lshl_add_u32 v8, v6, 2, v8")
    a.e(f"v_lshlrev_b32 v8, 7, v8")
    a.e(f"v_lshl_add_u32 v8, v7, 5, v8")
    a.e(f"v_and_b32 v7, 3, v{V_LANE}")
    a.e(f"v_lshl_add_u32 v8, v7, 3, v8")
    a.e(f"v_bfe_u32 v7, v{V_LANE}, 3, 1")
    a.e(f"v_lshlrev_b32 v7, 6, v7")
    a.e(f"v_add_u32 v{V_WDL}, v8, v7")
    a.e(f"v_xor_b32 v7, 64, v7")
    a.e(f"v_add_u32 v{V_WDL+1}, v8, v7")

S_KR = 9
S_RHO = 72
S_ROT = 35
S_WEND = S_WENDR = 64
def wd_groups(rnd):
    ks0, n = WD_K0[rnd], WD_N[rnd]
    lb, wsz = WD_L[rnd]
    out = []
    for q in range(2 * n):
        g = []
        if q == 0:
            g += [f"s_mul_i32 s{S_WDL}, s{S_W}, {wsz}"]
        g += [f"s_add_u32 m0, s{S_WDL}, {lb + q*1024}", "s_nop 0"] if q == 0 else [f"s_add_u32 m0, s{S_WDL}, {lb + q*1024}"]
        if q > 0 or True:
            pass
        g2 = [(f"buffer_load_dwordx4 v{V_WDOFF}, s[{SRD_WD}:{SRD_WD+3}], s{S_WDS} offen lds", f"wd{rnd}"),
              f"s_add_u32 s{S_WDS}, s{S_WDS}, 8192"]
        if q % 2 == 1:
            g2 += [f"s_cmp_ge_u32 s{S_WDS}, s{S_WEND}", f"s_cselect_b32 s{S_KR}, {22*16384}, 0", f"s_sub_u32 s{S_WDS}, s{S_WDS}, s{S_KR}"]
        if q > 0:
            g += ["s_nop 0"]
        out.append(g + g2)
    return out

def wd_tr(rnd):
    ks0, n = WD_K0[rnd], WD_N[rnd]
    lb, wsz = WD_L[rnd]
    out = [f"s_mul_i32 s{S_T0}, s{S_W}, {wsz}", f"s_add_u32 s{S_T0}, s{S_T0}, {lb}",
           f"v_add_u32 v{V_WDA}, s{S_T0}, v{V_WDL}", f"v_add_u32 v{V_WDA+1}, s{S_T0}, v{V_WDL+1}"]
    for k in range(n):
        for t in range(2):
            for h in range(2):
                out.append(f"ds_read_b64_tr_b16 {ar(8*(ks0+k) + 4*t + 2*h, 2)}, v{V_WDA+t} offset:{k*2048 + h*1024}")
    return out


def xt_loads2(a):
    a.e(f"s_and_b32 s{S_T0}, s{S_WG}, 7")
    a.e(f"s_lshr_b32 s{S_T1}, s{S_WG}, 3")
    a.e(f"s_lshl_b32 s{S_T0}, s{S_T0}, 6")
    a.e(f"s_lshl_b32 s{S_T1}, s{S_T1}, 1")
    a.e(f"s_add_u32 s{S_T0}, s{S_T0}, s{S_T1}")
    a.e(f"s_lshl_b32 s{S_T0}, s{S_T0}, 4")
    a.e(f"s_lshl_b32 s{S_T1}, s{S_W}, 19")
    a.e(f"s_add_u32 s{S_T0}, s{S_T0}, s{S_T1}")
    a.e(f"s_add_u32 s{S_T0}, s{S_T0}, {WS_XT}")
    a.e(f"v_lshrrev_b32 v30, 1, v{V_LANE}")
    a.e(f"v_lshlrev_b32 v30, 13, v30")
    a.e(f"v_and_b32 v31, 1, v{V_LANE}")
    a.e(f"v_lshl_add_u32 v30, v31, 4, v30")
    a.e(f"v_add_u32 v30, s{S_T0}, v30")
    a.vm(f"global_load_dwordx4 {vr(V_XT,4)}, v30, s[{P_WS}:{P_WS+1}] sc1", "xt")
    a.e(f"v_add_u32 v30, {32*8192}, v30")
    a.vm(f"global_load_dwordx4 {vr(V_XT+4,4)}, v30, s[{P_WS}:{P_WS+1}] sc1", "xt")

V_UA = 242
def u_write_e(a):
    a.vm_wait("xt")
    a.e(f"v_and_b32 v6, 1, v{V_LANE}")
    a.e(f"v_mul_u32_u24 v6, {UU_CH}, v6")
    a.e(f"v_lshrrev_b32 v7, 1, v{V_LANE}")
    a.e(f"v_lshl_add_u32 v6, v7, 4, v6")
    a.e(f"s_lshl_b32 s{S_T0}, s{S_W}, 10")
    a.e(f"s_add_u32 s{S_T0}, s{S_T0}, {L_UU + 32}")
    a.e(f"v_add_u32 v{V_UA}, s{S_T0}, v6")
    a.e(f"ds_write_b128 v{V_UA}, {vr(V_XT,4)}")
    a.e(f"ds_write_b128 v{V_UA}, {vr(V_XT+4,4)} offset:512")
    lab = a.label("nopad")
    a.e(f"s_cmp_lg_u32 s{S_W}, 0")
    a.e(f"s_cbranch_scc1 {lab}")
    a.e(f"v_lshrrev_b32 v6, 3, v{V_LANE}")
    a.e(f"v_mul_u32_u24 v6, {UU_CH}, v6")
    a.e(f"v_and_b32 v7, 7, v{V_LANE}")
    a.e(f"v_lshl_add_u32 v6, v7, 2, v6")
    a.e(f"v_add_u32 v6, {L_UU}, v6")
    a.e("v_mov_b32 v7, 0")
    a.e(f"s_mov_b64 s[{S_EXEC}:{S_EXEC+1}], exec")
    a.e("s_mov_b64 exec, 0xffff")
    a.e("ds_write_b32 v6, v7")
    a.e("s_mov_b64 exec, 0x7f7f")
    a.e("ds_write_b32 v6, v7 offset:4160")
    a.e(f"s_mov_b64 exec, s[{S_EXEC}:{S_EXEC+1}]")
    a.e(f"{lab}:")

def u_write_o(a):
    a.e(f"ds_read_b32 v6, v{V_UA} offset:16")
    a.e(f"ds_read_b32 v7, v{V_UA} offset:{512+16}")
    for q in range(2):
        X = V_XT + 4*q
        for k in range(3):
            a.e(f"v_alignbit_b32 v{8+4*q+k}, v{X+k+1}, v{X+k}, 16")
    a.e("s_waitcnt lgkmcnt(0)")
    a.e(f"v_alignbit_b32 v11, v6, v{V_XT+3}, 16")
    a.e(f"v_alignbit_b32 v15, v7, v{V_XT+7}, 16")
    a.e(f"ds_write_b128 v{V_UA}, v[8:11] offset:4160")
    a.e(f"ds_write_b128 v{V_UA}, v[12:15] offset:{4160+512}")
    lab = a.label("noo7")
    a.e(f"s_cmp_lg_u32 s{S_W}, 0")
    a.e(f"s_cbranch_scc1 {lab}")
    a.e(f"v_lshlrev_b32 v6, 16, v{V_XT}")
    a.e(f"s_mov_b64 s[{S_EXEC}:{S_EXEC+1}], exec")
    a.e("s_mov_b64 exec, 3")
    a.e(f"ds_write_b32 v{V_UA}, v6 offset:{4160 - 4}")
    a.e(f"s_mov_b64 exec, s[{S_EXEC}:{S_EXEC+1}]")
    a.e(f"{lab}:")


KS = 176
L_KV2 = 2 * SLOT
L_KX2 = L_KV2 + 2 * KV_CH
L_KR2, L_UU2, L_CX2 = 0, 9216, 139776
V_KWA = 62

def kgen_shadow():
    out = []
    e = out.append
    P = V_P
    AL, BE, CO = 10, 11, 12
    Z1, Z2, Z4, Z8, Z256, Z512 = 14, 16, 18, 20, 22, 24
    A0, A1, B0, B1, C0, C1, CB, D0, D1, DB0, DB1 = 26, 28, 30, 32, 34, 36, 38, 40, 42, 44, 46
    T = 48
    for q in range(8):
        e(f"v_lshlrev_b32 v{P+q}, 16, v{P+q}")
    e(f"v_mul_f32 v58, 0x3fb8aa3b, v{P+6}")
    e("v_exp_f32 v58, v58")
    e(f"v_mov_b32 v{A0}, 1.0")
    e(f"v_cvt_pk_bf16_f32 v58, v58, v58")
    e(f"v_mov_b32 v{A0+1}, 0")
    e(f"v_lshlrev_b32 v58, 16, v58")
    e(f"v_mul_f32 v{AL}, v58, v{P}")
    e(f"v_mul_f32 v{BE}, v58, v{P+1}")
    e(f"v_mul_f32 v56, v58, v{P+2}")
    e(f"v_mul_f32 v57, v58, v{P+3}")
    e(f"v_mul_f32 v{AL}, 0x3fb8aa3b, v{AL}")
    e(f"v_mul_f32 v{BE}, 0.15915494, v{BE}")
    e(f"v_mul_f32 v{CO}, v{P+4}, v56")
    e(f"v_mul_f32 v{CO+1}, v{P+4}, v57")
    e(f"v_fma_f32 v{CO}, -v{P+5}, v57, v{CO}")
    e(f"v_fma_f32 v{CO+1}, v{P+5}, v56, v{CO+1}")
    items = [(Z1, 1, T), (Z8, 8, T+2), (Z256, 256, T+4), (B0, 128, T+6)]
    for d, p, t in items:
        e(f"v_mul_f32 v{t}, {fhex(float(p))}, v{AL}")
        e(f"v_mul_f32 v{t+1}, {fhex(float(p))}, v{BE}")
    for d, p, t in items:
        e(f"v_exp_f32 v{t}, v{t}")
        e(f"v_fract_f32 v{t+1}, v{t+1}")
    for d, p, t in items:
        e(f"v_cos_f32 v{d}, v{t+1}")
        e(f"v_sin_f32 v{d+1}, v{t+1}")
    e("v_nop")
    for d, p, t in items:
        e(f"v_mul_f32 v{d}, v{d}, v{t}")
        e(f"v_mul_f32 v{d+1}, v{d+1}, v{t}")
    def cm(d, x, y):
        return [f"v_mul_f32 v{d}, v{x}, v{y}", f"v_mul_f32 v{d+1}, v{x}, v{y+1}",
                f"v_fma_f32 v{d}, -v{x+1}, v{y+1}, v{d}", f"v_fma_f32 v{d+1}, v{x+1}, v{y}, v{d+1}"]
    pk = [0]
    def put(vec, pr):
        r = 56 + (pk[0] % 2); pk[0] += 1
        return [f"v_cvt_pk_bf16_f32 v{r}, v{pr}, {'-' if vec < 32 else ''}v{pr+1}", f"v_accvgpr_write_b32 a{KS+vec}, v{r}"]
    for d, x, y in ((Z2, Z1, Z1), (Z512, Z256, Z256), (CB, CO, Z256), (Z4, Z2, Z2), (DB0, CO, Z512)):
        out += cm(d, x, y)
    sA = [('p', 32, A0)]
    cur, oth = A0, A1
    for b in range(1, 16):
        sA += [('m', oth, cur, Z8), ('p', 32 + b, oth)]; cur, oth = oth, cur
    sB = [('p', 48, B0)]
    cur, oth = B0, B1
    for b in range(17, 32):
        sB += [('m', oth, cur, Z8), ('p', 32 + b, oth)]; cur, oth = oth, cur
    sC = [('p', 0, CO)]
    cur = CO
    for ee in range(1, 8):
        d = (C0, C1)[ee % 2]; sC += [('m', d, cur, Z1), ('p', ee, d)]; cur = d
    sC += [('p', 8, CB), ('m', C0, CB, Z2), ('p', 9, C0), ('m', C1, C0, Z2), ('p', 10, C1), ('p', 12, C1),
           ('m', C0, C1, Z2), ('p', 13, C0), ('m', C1, C0, Z2), ('p', 14, C1)]
    sD = [('p', 16, DB0), ('m', D0, DB0, Z4), ('p', 17, D0), ('p', 20, D0), ('m', D1, D0, Z4), ('p', 21, D1),
          ('m', DB1, DB0, Z256), ('p', 18, DB1), ('m', D0, DB1, Z4), ('p', 19, D0), ('p', 22, D0), ('m', D1, D0, Z4), ('p', 23, D1)]
    prev, nxt = DB1, DB0
    for q in range(4):
        sD += [('m', nxt, prev, Z256), ('p', 24 + q, nxt), ('m', (D0, D1)[q % 2], nxt, Z8), ('p', 28 + q, (D0, D1)[q % 2])]
        prev, nxt = nxt, prev
    seqs = [sA, sB, sC, sD]
    pos = [0]*4
    while any(pos[q] < len(seqs[q]) for q in range(4)):
        for q in range(4):
            if pos[q] < len(seqs[q]):
                st = seqs[q][pos[q]]; pos[q] += 1
                out += put(st[1], st[2]) if st[0] == 'p' else cm(st[1], st[2], st[3])
    return out

KV_VECS = [v for v in range(64) if v not in (11, 15)]
def kv_addr(a):
    a.e(f"s_mul_i32 s{S_T0}, s{S_CH}, {KV_CH}")
    a.e(f"s_lshl_b32 s{S_T1}, s{S_MH}, 8")
    a.e(f"s_add_u32 s{S_T0}, s{S_T0}, s{S_T1}")
    a.e(f"s_add_u32 s{S_T0}, s{S_T0}, {L_KV2}")
    a.e(f"v_lshl_add_u32 v{V_KWA}, v{V_LANE}, 2, s{S_T0}")
def kv_writes():
    return [[f"ds_write_b32 v{V_KWA}, a{KS+v} offset:{v*528}"] for v in KV_VECS]


def kgen5_mfma(a, pre_b, post_b, extra_reads):
    a.e(f"v_and_b32 v2, 31, v{V_LANE}")
    a.e(f"v_mul_u32_u24 v2, 528, v2")
    a.e(f"v_lshrrev_b32 v3, 5, v{V_LANE}")
    a.e(f"v_lshl_add_u32 v2, v3, 4, v2")
    a.e(f"s_mul_i32 s{S_T0}, s{S_CH}, {KV_CH}")
    a.e(f"s_lshl_b32 s{S_T1}, s{S_MH}, 8")
    a.e(f"s_add_u32 s{S_T0}, s{S_T0}, s{S_T1}")
    a.e(f"s_add_u32 s{S_T0}, s{S_T0}, {L_KV2}")
    a.e(f"v_add_u32 v2, s{S_T0}, v2")
    KD = 64
    FA, FB = 80, 112
    a.e("s_waitcnt lgkmcnt(0)")
    for k in range(8):
        a.e(f"ds_read_b128 {vr(FA+4*k,4)}, v2 offset:{k*32}")
        a.e(f"ds_read_b128 {vr(FB+4*k,4)}, v2 offset:{32*528 + k*32}")
    a.e(f"s_lshl_b32 s{S_T0}, s{S_W}, 11")
    a.e(f"s_add_u32 s{S_T0}, s{S_T0}, {L_KX2}")
    a.e(f"v_lshl_add_u32 v2, v{V_LANE}, 4, s{S_T0}")
    a.e(f"s_xor_b32 s{S_T1}, s{S_W}, 1")
    a.e(f"s_lshl_b32 s{S_T1}, s{S_T1}, 11")
    a.e(f"s_add_u32 s{S_T1}, s{S_T1}, {L_KX2}")
    a.e(f"v_lshl_add_u32 v3, v{V_LANE}, 4, s{S_T1}")
    for k in range(8):
        a.e(f"s_waitcnt lgkmcnt({14 - 2*k})")
        a.e(f"v_mfma_f32_32x32x16_bf16 {vr(KD,16)}, {vr(FA+4*k,4)}, {vr(FB+4*k,4)}, {'0' if k == 0 else vr(KD,16)}")
    for x in extra_reads:
        emit_group(a, x if isinstance(x, list) or callable(x) else [x])
    a.e(f"s_mul_i32 s{S_T0}, s{S_CH}, {KR_CH}")
    a.e(f"s_add_u32 s{S_T0}, s{S_T0}, {L_KR2 + 504}")
    a.e(f"v_and_b32 v4, 31, v{V_LANE}")
    a.e(f"v_lshlrev_b32 v5, 4, v4")
    a.e(f"v_lshrrev_b32 v6, 5, v{V_LANE}")
    a.e(f"v_lshl_add_u32 v5, v6, 3, v5")
    a.e(f"v_sub_u32 v5, s{S_T0}, v5")
    a.e(f"s_add_u32 s{S_T2}, s{S_T0}, {4096 - 504}")
    a.e(f"v_lshl_add_u32 v4, v{V_LANE}, 4, s{S_T2}")
    lab1, lab2 = a.label("kx1"), a.label("kx2")
    a.e(f"s_cmp_eq_u32 s{S_MH}, 0")
    a.e(f"s_cbranch_scc1 {lab1}")
    a.e(f"ds_write_b128 v2, {vr(KD,4)}")
    a.e(f"ds_write_b128 v2, {vr(KD+4,4)} offset:1024")
    for q in range(4):
        a.e(f"v_pk_mul_f32 {vr(KD+2*q,2)}, {vr(KD+8+2*q,2)}, 1.0 op_sel_hi:[1,0]")
    a.e(f"s_branch {lab2}")
    a.e(f"{lab1}:")
    a.e(f"ds_write_b128 v2, {vr(KD+8,4)}")
    a.e(f"ds_write_b128 v2, {vr(KD+12,4)} offset:1024")
    a.e(f"{lab2}:")
    stamp(a, "km0")
    pre_b(a)
    stamp(a, "km1")
    a.e("s_waitcnt lgkmcnt(0)")
    a.e("s_barrier")
    a.e(f"ds_read_b128 {vr(80,4)}, v3")
    a.e(f"ds_read_b128 {vr(84,4)}, v3 offset:1024")
    stamp(a, "km2")
    post_b(a)
    a.e("s_waitcnt lgkmcnt(0)")
    for q in range(4):
        a.e(f"v_pk_add_f32 {vr(KD+2*q,2)}, {vr(KD+2*q,2)}, {vr(80+2*q,2)}")
    D = KD
    lab1, lab2 = a.label("ex1"), a.label("ex2")
    a.e(f"s_cmp_eq_u32 s{S_MH}, 0")
    a.e(f"s_cbranch_scc0 {lab1}")
    a.e(f"v_cvt_pk_bf16_f32 v8, v{D+3}, v{D+2}")
    a.e(f"v_cvt_pk_bf16_f32 v9, v{D+1}, v{D}")
    a.e(f"v_cvt_pk_bf16_f32 v10, v{D+6}, v{D+5}")
    a.e(f"v_cvt_pk_bf16_f32 v11, v{D+4}, v{D+4}")
    a.e("ds_write_b64 v5, v[8:9] offset:3584")
    a.e("ds_write_b64 v5, v[10:11] offset:3072")
    for q in range(4):
        a.e(f"v_mov_b32 v{12+q}, 0")
    a.e(f"s_mov_b64 s[{S_EXEC}:{S_EXEC+1}], exec")
    a.e("s_mov_b64 exec, 0x3fffffff")
    a.e("ds_write_b128 v4, v[12:15]")
    a.e(f"s_mov_b64 exec, s[{S_EXEC}:{S_EXEC+1}]")
    a.e(f"s_branch {lab2}")
    a.e(f"{lab1}:")
    a.e(f"v_cmp_le_u32 vcc, 32, v{V_LANE}")
    a.e(f"v_and_b32 v7, 1, v{V_LANE}")
    a.e(f"v_cmp_eq_u32 s[{S_TMP}:{S_TMP+1}], 1, v7")
    for q in range(4):
        a.e(f"v_mov_b32 v{16+2*q}, v{D+4+q}")
        a.e(f"v_mov_b32 v{17+2*q}, v{D+4+q}")
    for q in range(2):
        A_, B_ = D + 2*q, D + 2*q + 1
        a.e(f"v_cndmask_b32 v12, v{A_}, v{B_}, vcc")
        a.e(f"v_cvt_pk_bf16_f32 v{8+2*q+0}, v{B_}, v12")
        a.e(f"v_cvt_pk_bf16_f32 v{8+2*q+1}, v{A_}, v{A_}")
    for q in range(4):
        a.e(f"v_permlane32_swap_b32 v{16+2*q}, v{17+2*q}")
    a.e("ds_write_b64 v5, v[8:9] offset:2560")
    a.e("ds_write_b64 v5, v[10:11] offset:2048")
    for q in range(4):
        a.e(f"v_cndmask_b32 v{16+2*q}, v{16+2*q}, v{D+4+q}, s[{S_TMP}:{S_TMP+1}]")
    for q in range(4):
        a.e(f"v_cvt_pk_bf16_f32 v{24+2*q}, v{D+4+q}, v{D+4+q}")
        a.e(f"v_cvt_pk_bf16_f32 v{25+2*q}, v{D+4+q}, v{16+2*q}")
    for q in range(4):
        a.e(f"ds_write_b64 v5, {vr(24+2*q,2)} offset:{1536 - 512*q}")
    a.e(f"{lab2}:")


V_XE = 240 + 3
def xt_extra(a):
    a.e(f"v_and_b32 v31, 1, v{V_LANE}")
    a.e(f"s_add_u32 s{S_T0}, s{S_T0}, {64*8192}")
    a.e(f"v_lshl_add_u32 v31, v31, 4, s{S_T0}")
    a.vm(f"global_load_dword v242, v31, s[{P_WS}:{P_WS+1}] sc1", "xt")

def u_prep(a):
    a.vm_wait("xt")
    a.e(f"v_add_u32 v6, 2, v{V_LANE}")
    a.e(f"v_and_b32 v6, 63, v6")
    a.e(f"v_lshlrev_b32 v6, 2, v6")
    a.e(f"ds_bpermute_b32 v7, v6, v{V_XT}")
    a.e(f"ds_bpermute_b32 v8, v6, v{V_XT+4}")
    for q in range(2):
        X = V_XT + 4*q
        for k in range(3):
            a.e(f"v_alignbit_b32 v{144+4*q+k}, v{X+k+1}, v{X+k}, 16")
    a.e(f"v_cmp_gt_u32 vcc, 62, v{V_LANE}")
    a.e("s_waitcnt lgkmcnt(0)")
    a.e(f"v_cndmask_b32 v7, v8, v7, vcc")
    a.e(f"v_cndmask_b32 v8, v242, v8, vcc")
    a.e(f"v_alignbit_b32 v147, v7, v{V_XT+3}, 16")
    a.e(f"v_alignbit_b32 v151, v8, v{V_XT+7}, 16")

def u_write(a):
    a.e(f"v_and_b32 v6, 1, v{V_LANE}")
    a.e(f"v_mul_u32_u24 v6, {UU_CH}, v6")
    a.e(f"v_lshrrev_b32 v7, 1, v{V_LANE}")
    a.e(f"v_lshl_add_u32 v6, v7, 4, v6")
    a.e(f"s_lshl_b32 s{S_T0}, s{S_W}, 10")
    a.e(f"s_add_u32 s{S_T0}, s{S_T0}, {L_UU2 + 32}")
    a.e(f"v_add_u32 v6, s{S_T0}, v6")
    a.e(f"ds_write_b128 v6, {vr(V_XT,4)}")
    a.e(f"ds_write_b128 v6, {vr(V_XT+4,4)} offset:512")
    a.e(f"ds_write_b128 v6, v[144:147] offset:4160")
    a.e(f"ds_write_b128 v6, v[148:151] offset:{4160+512}")
    lab = a.label("nopad")
    a.e(f"s_cmp_lg_u32 s{S_W}, 0")
    a.e(f"s_cbranch_scc1 {lab}")
    a.e(f"v_lshlrev_b32 v8, 16, v{V_XT}")
    a.e(f"v_lshrrev_b32 v9, 3, v{V_LANE}")
    a.e(f"v_mul_u32_u24 v9, {UU_CH}, v9")
    a.e(f"v_and_b32 v7, 7, v{V_LANE}")
    a.e(f"v_lshl_add_u32 v9, v7, 2, v9")
    a.e(f"v_add_u32 v9, {L_UU2}, v9")
    a.e("v_mov_b32 v7, 0")
    a.e(f"s_mov_b64 s[{S_EXEC}:{S_EXEC+1}], exec")
    a.e("s_mov_b64 exec, 0xffff")
    a.e("ds_write_b32 v9, v7")
    a.e("s_mov_b64 exec, 0x7f7f")
    a.e("ds_write_b32 v9, v7 offset:4160")
    a.e("s_mov_b64 exec, 3")
    a.e(f"ds_write_b32 v6, v8 offset:{4160 - 4}")
    a.e(f"s_mov_b64 exec, s[{S_EXEC}:{S_EXEC+1}]")
    a.e(f"{lab}:")


def conv_addr(a):
    a.e(f"v_and_b32 v2, 15, v{V_LANE}")
    a.e(f"v_lshrrev_b32 v3, 4, v{V_LANE}")
    a.e(f"v_and_b32 v4, 1, v3")
    a.e(f"v_lshrrev_b32 v3, 1, v3")
    a.e(f"v_lshlrev_b32 v5, 5, v3")
    a.e(f"v_lshlrev_b32 v6, 4, v4")
    a.e(f"v_sub_u32 v5, v5, v6")
    a.e(f"s_lshl_b32 s{S_T2}, s{S_MH}, 6")
    a.e(f"s_mul_i32 s{S_T0}, s{S_CH}, {KR_CH}")
    a.e(f"s_add_u32 s{S_T0}, s{S_T0}, {L_KR2 + 496}")
    a.e(f"s_add_u32 s{S_T0}, s{S_T0}, s{S_T2}")
    a.e(f"v_lshlrev_b32 v6, 5, v2")
    a.e(f"v_sub_u32 v6, v5, v6")
    a.e(f"v_add_u32 v{CVB}, s{S_T0}, v6")
    a.e(f"s_mul_i32 s{S_T0}, s{S_CH}, {UU_CH}")
    a.e(f"s_add_u32 s{S_T0}, s{S_T0}, {L_UU2}")
    a.e(f"s_add_u32 s{S_T0}, s{S_T0}, s{S_T2}")
    a.e(f"v_and_b32 v6, 1, v2")
    a.e(f"v_cmp_eq_u32 vcc, 1, v6")
    a.e(f"v_mov_b32 v6, {4160+16}")
    a.e(f"v_lshl_add_u32 v7, v2, 1, v5")
    a.e(f"v_mov_b32 v3, 18")
    a.e(f"v_cndmask_b32 v6, v6, v3, vcc")
    a.e(f"v_add_u32 v7, v7, v6")
    a.e(f"v_add_u32 v{CVA}, s{S_T0}, v7")
    for al in range(1, 8):
        a.e(f"v_add_u32 v{CVA+al}, {512*al}, v{CVA}")

CVA, CVB = 44, 52

def conv_main3(a, fillers, late):
    a.e("s_waitcnt lgkmcnt(0)")
    a.e("s_barrier")
    def reads(st, q):
        r = []
        for al in range(8):
            r.append(f"ds_read2_b32 {vr(CV_A[st]+4*al,2)}, v{CVA+al} offset0:{32*q} offset1:{32*q+1}")
            r.append(f"ds_read2_b32 {vr(CV_A[st]+4*al+2,2)}, v{CVA+al} offset0:{32*q+2} offset1:{32*q+3}")
            r.append(f"ds_read_b128 {vr(CV_B[st]+4*al,4)}, v{CVB} offset:{512*(7-al) + 128*q}")
        return r
    r0 = reads(0, 0)
    order = [x for x in r0 if "b128" in x] + [x for x in r0 if "b128" not in x]
    for x in order:
        a.e(x)
    st = 0
    fill = list(fillers)
    for q in range(4):
        a.e("s_waitcnt lgkmcnt(0)" if q else "s_waitcnt lgkmcnt(14)")
        mf = []
        for al in range(8):
            for be in range(8 - al):
                I = al + be
                c = "0" if (q == 0 and al == 0) else vr(CV_ACC + 4*I, 4)
                mf.append(f"v_mfma_f32_16x16x32_bf16 {vr(CV_ACC+4*I,4)}, {vr(CV_A[st]+4*al,4)}, {vr(CV_B[st]+4*be,4)}, {c}")
        slots = {i: [] for i in range(36)}
        if q == 0:
            slots[7].append("s_waitcnt lgkmcnt(0)")
        if q < 3:
            rd = reads(st ^ 1, q + 1)
            rd = [x for x in rd if "b128" in x] + [x for x in rd if "b128" not in x]
            base = 8 if q == 0 else 0
            for k, x in enumerate(rd):
                slots[base + k].append(x)
        nf = (len(fill) + (2 - q)) // (3 - q) if q < 3 else len(fill)
        for k in range(nf):
            slots[min(35, 1 + 4*k)].append(fill.pop(0))
        for k, it in enumerate(late.get(q, [])):
            slots[min(35, 2 + 2*k)].append(it)
        stamp(a, f"cv{q}")
        sched(a, mf, slots)
        st ^= 1


def conv_finish3(a):
    a.e(f"s_lshl_b32 s{S_T0}, s{S_W}, 12")
    a.e(f"s_add_u32 s{S_T0}, s{S_T0}, {L_CX2}")
    a.e(f"v_lshl_add_u32 v2, v{V_LANE}, 4, s{S_T0}")
    a.e(f"s_xor_b32 s{S_T1}, s{S_W}, 1")
    a.e(f"s_lshl_b32 s{S_T1}, s{S_T1}, 12")
    a.e(f"s_add_u32 s{S_T1}, s{S_T1}, {L_CX2}")
    a.e(f"v_lshl_add_u32 v3, v{V_LANE}, 4, s{S_T1}")
    a.e(f"s_mul_i32 s{S_T0}, s{S_CH}, {UU_CH}")
    a.e(f"s_add_u32 s{S_T0}, s{S_T0}, {L_UU2 + 32}")
    a.e(f"s_lshl_b32 s{S_T1}, s{S_MH}, 11")
    a.e(f"s_add_u32 s{S_T0}, s{S_T0}, s{S_T1}")
    a.e(f"v_and_b32 v4, 15, v{V_LANE}")
    a.e(f"v_lshrrev_b32 v5, 4, v{V_LANE}")
    a.e(f"v_lshlrev_b32 v6, 5, v4")
    a.e(f"v_lshl_add_u32 v6, v5, 3, v6")
    a.e(f"v_add_u32 v6, s{S_T0}, v6")
    lab1, lab2 = a.label("cx1"), a.label("cx2")
    a.e(f"s_cmp_eq_u32 s{S_MH}, 0")
    a.e(f"s_cbranch_scc1 {lab1}")
    for k in range(4):
        a.e(f"ds_write_b128 v2, {vr(CV_ACC+4*k,4)} offset:{1024*k}")
    for q in range(8):
        a.e(f"v_pk_mul_f32 {vr(CV_ACC+2*q,2)}, {vr(CV_ACC+16+2*q,2)}, 1.0 op_sel_hi:[1,0]")
    a.e(f"s_branch {lab2}")
    a.e(f"{lab1}:")
    for k in range(4):
        a.e(f"ds_write_b128 v2, {vr(CV_ACC+16+4*k,4)} offset:{1024*k}")
    a.e(f"{lab2}:")
    for k in range(4):
        a.e(f"ds_read_b64 {vr(40+2*k,2)}, v6 offset:{512*k}")
    a.e(f"s_lshl_b32 s{S_T0}, s{S_MH}, 20")
    a.e(f"s_lshl_b32 s{S_T1}, s{S_D}, 7")
    a.e(f"s_add_u32 s{S_T0}, s{S_T0}, s{S_T1}")
    a.e(f"s_add_u32 s{S_T0}, s{S_T0}, {WS_Y}")
    a.e(f"v_lshrrev_b32 v7, 2, v4")
    a.e(f"v_lshlrev_b32 v7, 16, v7")
    a.e(f"v_and_b32 v8, 3, v4")
    a.e(f"v_lshl_add_u32 v7, v8, 5, v7")
    a.e(f"v_lshl_add_u32 v7, v5, 3, v7")
    a.e(f"v_add_u32 v7, s{S_T0}, v7")
    a.e("s_waitcnt lgkmcnt(0)")
    a.e("s_barrier")
    for k in range(4):
        a.e(f"ds_read_b128 {vr(64+4*k,4)}, v3 offset:{1024*k}")
    DS = V_P + 6
    U = 16
    for k in range(4):
        a.e(f"v_lshlrev_b32 v{U+4*k}, 16, v{40+2*k}")
        a.e(f"v_and_b32 v{U+4*k+1}, 0xffff0000, v{40+2*k}")
        a.e(f"v_lshlrev_b32 v{U+4*k+2}, 16, v{41+2*k}")
        a.e(f"v_and_b32 v{U+4*k+3}, 0xffff0000, v{41+2*k}")
    for k in range(8):
        a.e(f"v_pk_fma_f32 {vr(CV_ACC+2*k,2)}, {vr(U+2*k,2)}, {vr(DS,2)}, {vr(CV_ACC+2*k,2)} op_sel:[0,1,0] op_sel_hi:[1,1,1]")
    a.e("s_waitcnt lgkmcnt(0)")
    for k in range(8):
        a.e(f"v_pk_add_f32 {vr(CV_ACC+2*k,2)}, {vr(CV_ACC+2*k,2)}, {vr(64+2*k,2)}")
    for k in range(8):
        a.e(f"v_cvt_pk_bf16_f32 v{40+k}, v{CV_ACC+2*k}, v{CV_ACC+2*k+1}")
    for k in range(4):
        a.vm(f"global_store_dwordx2 v7, {vr(40+2*k,2)}, s[{P_WS}:{P_WS+1}] sc1", "pubY")
        if k < 3:
            a.e(f"v_add_u32 v7, {4*65536}, v7")


def h_setup3(a):
    mk_srd(a, SRD_X, P_WS, 16 << 20)
    a.e(f"s_lshl_b32 s{S_T0}, s{S_I}, 2")
    a.e(f"s_lshl_b32 s{S_T1}, s{S_TH}, 1")
    a.e(f"s_add_u32 s{S_T0}, s{S_T0}, s{S_T1}")
    a.e(f"s_mul_i32 s{S_T0}, s{S_T0}, {86*1024}")
    a.e(f"s_add_u32 s{S_T0}, s{S_T0}, {WS_H}")
    a.e(f"v_lshl_add_u32 v{V_HA}, v{V_LANE}, 4, s{S_T0}")
    a.e(f"v_add_u32 v{V_HA+1}, {86*1024}, v{V_HA}")
    a.e(f"s_mul_i32 s66, s{S_W}, 22")

def h_load3(q):
    R = G2_H + 8 * (q % G2_RING)
    return [f"s_add_u32 s67, s{S_ROT}, {q}", "s_cmp_ge_u32 s67, 22", f"s_cselect_b32 s{S_KR}, 22, 0", f"s_sub_u32 s67, s67, s{S_KR}",
            "s_add_u32 s67, s67, s66", "s_min_u32 s67, s67, 85", "s_lshl_b32 s67, s67, 10",
            (f"buffer_load_dwordx4 {vr(R,4)}, v{V_HA}, s[{SRD_X}:{SRD_X+3}], s67 offen sc1", f"h{q}"),
            (f"buffer_load_dwordx4 {vr(R+4,4)}, v{V_HA+1}, s[{SRD_X}:{SRD_X+3}], s67 offen sc1", f"h{q}")]

def g2_first(a, n0):
    for q in range(n0):
        emit_group(a, h_load3(q))

def g2_main3(a, hooks, n0, pre):
    stamp(a, "g2start")
    la = OPT.get("g2la", 12)
    nxt = n0
    for x in pre:
        emit_group(a, x if (isinstance(x, list) or callable(x)) else [x])
    stamp(a, "g2issued")
    for q in range(22):
        a.vm_wait(f"h{q}")
        if q == 0:
            a.e("s_waitcnt lgkmcnt(0)")
        stamp(a, f"g2q{q}")
        R = G2_H + 8 * (q % G2_RING)
        mf = []
        for t in range(2):
            for tt in range(2):
                c = "0" if q == 0 else vr(acc2(t, tt), 16)
                mf.append(f"v_mfma_f32_32x32x16_bf16 {vr(acc2(t,tt),16)}, {ar(8*q+4*t,4)}, {vr(R+4*tt,4)}, {c}")
        slots = {i: [] for i in range(4)}
        k = 0
        while nxt < 22 and nxt - q <= la and k < 2 and nxt < q + G2_RING:
            slots[1 if k == 0 else 3].append(h_load3(nxt)); nxt += 1; k += 1
        for hk in hooks.get(q, []):
            slots[0].append(hk)
        sched(a, mf, slots)


V_FA = 240
def final_prep(a):
    a.e(f"v_lshlrev_b32 v240, 4, v{V_LANE}")
    a.e(f"v_lshrrev_b32 v3, 3, v0")
    a.e(f"v_mul_u32_u24 v3, 192, v3")
    a.e(f"v_and_b32 v4, 7, v0")
    a.e(f"v_lshl_add_u32 v241, v4, 4, v3")
    a.e(f"v_lshrrev_b32 v4, 4, v{V_LANE}")
    a.e(f"v_and_b32 v5, 1, v4")
    a.e(f"v_lshrrev_b32 v4, 1, v4")
    a.e(f"v_bfe_u32 v6, v{V_LANE}, 2, 2")
    a.e(f"v_lshl_add_u32 v6, v4, 2, v6")
    a.e(f"v_mul_u32_u24 v6, 192, v6")
    a.e(f"v_lshl_add_u32 v6, v5, 5, v6")
    a.e(f"v_and_b32 v5, 3, v{V_LANE}")
    a.e(f"v_lshl_add_u32 v6, v5, 3, v6")
    a.e(f"s_lshr_b32 s{S_T0}, s{S_W}, 1")
    a.e(f"s_mul_i32 s{S_T0}, s{S_T0}, {32*192}")
    a.e(f"s_and_b32 s{S_T1}, s{S_W}, 1")
    a.e(f"s_lshl_b32 s{S_T1}, s{S_T1}, 6")
    a.e(f"s_add_u32 s{S_T0}, s{S_T0}, s{S_T1}")
    a.e(f"s_add_u32 s{S_T0}, s{S_T0}, {L_YB}")
    a.e(f"v_add_u32 v245, s{S_T0}, v6")
    a.e(f"s_mul_i32 s{S_T0}, s{S_W}, {3*4096}")
    a.e(f"s_add_u32 s{S_T0}, s{S_T0}, {L_RED}")
    a.e(f"v_add_u32 v246, s{S_T0}, v240")

def final3(a):
    end = a.label("redend")
    labs = [a.label("redw") for _ in range(4)]
    for w in range(1, 4):
        a.e(f"s_cmp_eq_u32 s{S_W}, {w}")
        a.e(f"s_cbranch_scc1 {labs[w]}")
    for w in range(4):
        a.e(f"{labs[w]}:")
        a.e("s_nop 9")
        for o in range(4):
            if o == w: continue
            slot = (w - o - 1) & 3
            for q in range(4):
                a.e(f"ds_write_b128 v240, {vr(G2_ACC+16*o+4*q,4)} offset:{L_RED + o*3*4096 + slot*4096 + 1024*q}")
        for q in range(8):
            a.e(f"v_pk_mul_f32 {vr(24+2*q,2)}, {vr(G2_ACC+16*w+2*q,2)}, 1.0 op_sel_hi:[1,0]")
        if w < 3:
            a.e(f"s_branch {end}")
    a.e(f"{end}:")
    a.vm_wait("fy")
    stamp(a, "fy")
    a.e(f"ds_write_b128 v241, v[16:19] offset:{L_YB}")
    a.e(f"ds_write_b128 v241, v[20:23] offset:{L_YB + 32*192}")
    a.vm_wait("fx")
    for q in range(8):
        a.e(f"v_lshlrev_b32 v{112+2*q}, 16, v{8+q}")
        a.e(f"v_and_b32 v{113+2*q}, 0xffff0000, v{8+q}")
    for q in range(8):
        a.e(f"v_pk_add_f32 {vr(24+2*q,2)}, {vr(24+2*q,2)}, {vr(112+2*q,2)}")
    stamp(a, "f0")
    a.e("s_waitcnt lgkmcnt(0)")
    a.e("s_barrier")
    stamp(a, "f2")
    for q in range(4):
        a.e(f"ds_read_b64_tr_b16 {vr(16+2*q,2)}, v245 offset:{1536*q}")
    for sl in range(3):
        for q in range(4):
            a.e(f"ds_read_b128 {vr(64+16*sl+4*q,4)}, v246 offset:{4096*sl + 1024*q}")
    a.e(f"v_lshrrev_b32 v3, 5, v{V_LANE}")
    a.e(f"v_lshl_add_u32 v251, v3, 3, v251")
    a.e("s_waitcnt lgkmcnt(12)")
    for q in range(8):
        a.e(f"v_lshlrev_b32 v{112+2*q}, 16, v{16+q}")
        a.e(f"v_and_b32 v{113+2*q}, 0xffff0000, v{16+q}")
    for q in range(8):
        a.e(f"v_pk_add_f32 {vr(24+2*q,2)}, {vr(24+2*q,2)}, {vr(112+2*q,2)}")
    for sl in range(3):
        a.e(f"s_waitcnt lgkmcnt({8 - 4*sl})")
        for q in range(8):
            a.e(f"v_pk_add_f32 {vr(24+2*q,2)}, {vr(24+2*q,2)}, {vr(64+16*sl+2*q,2)}")
    for q in range(8):
        a.e(f"v_cvt_pk_bf16_f32 v{8+q}, v{24+2*q}, v{25+2*q}")
    a.e("s_nop 1")
    for p in range(2):
        a.e(f"v_permlane32_swap_b32 v{8+4*p}, v{10+4*p}")
        a.e(f"v_permlane32_swap_b32 v{9+4*p}, v{11+4*p}")
    fl = "sc1" if OPT.get("outsc1") else ("nt" if OPT.get("outnt", 1) else "")
    for p in range(2):
        a.vm(f"global_store_dwordx4 v251, {vr(8+4*p,4)}, s[{P_OUT}:{P_OUT+1}] offset:{32*p} {fl}", "out")


def tlb_touch(a):
    lab = a.label("notlb")
    a.e(f"s_cmp_lg_u32 s{S_W}, {OPT.get('tlbwave', 3)}")
    a.e(f"s_cbranch_scc1 {lab}")
    a.e(f"s_mov_b64 s[{S_EXEC}:{S_EXEC+1}], exec")
    a.e("s_mov_b64 exec, 0xff")
    a.e(f"v_lshlrev_b32 v253, 21, v{V_LANE}")
    a.e(f"global_load_dword v252, v253, s[{P_WS}:{P_WS+1}]")
    a.e("s_mov_b64 exec, 1")
    a.e("v_mov_b32 v253, 0")
    for p in (P_ARE, P_AIM, P_BRE, P_BIM, P_CRE, P_CIM, P_LDT, P_DSK, P_WD, P_OUT):
        a.e(f"global_load_dword v252, v253, s[{p}:{p+1}]")
    a.e(f"s_mov_b64 exec, s[{S_EXEC}:{S_EXEC+1}]")
    a.e(f"{lab}:")

def kgen_loads_late(a):
    kgen_loads(a)

def wd_touch(a):
    a.e(f"s_mul_i32 s{S_T0}, s{S_WG}, 5504")
    a.e(f"v_lshl_add_u32 v2, v0, 4, s{S_T0}")
    mk_srd(a, SRD_WD, P_WD, 1376 * 1024)
    a.vm(f"buffer_load_dwordx4 v[252:255], v2, s[{SRD_WD}:{SRD_WD+3}], 0 offen", "pf")
    a.e(f"v_add_u32 v2, 4096, v2")
    a.e(f"s_mov_b64 s[{S_EXEC}:{S_EXEC+1}], exec")
    a.e(f"v_cmp_gt_u32 vcc, 96, v0")
    a.e(f"s_and_b64 exec, exec, vcc")
    lab = a.label("wt")
    a.e(f"s_cbranch_execz {lab}")
    a.e(f"buffer_load_dwordx4 v[252:255], v2, s[{SRD_WD}:{SRD_WD+3}], 0 offen")
    a.e(f"{lab}:")
    a.e(f"s_mov_b64 exec, s[{S_EXEC}:{S_EXEC+1}]")


def build(a):
    entry(a)
    stamp(a, 0, real=True)
    stamp(a, 1)
    a.e("s_waitcnt lgkmcnt(0)")
    stamp(a, "ptr")
    ln_loads2(a)
    epoch_load(a)
    g1_setup_x(a)
    st0 = dma_groups(0, "st0")
    for g in st0[:4]:
        emit_group(a, g)
    stamp(a, "xdma")
    g1_setup_w(a)
    for g in st0[4:]:
        emit_group(a, g)
    stamp(a, "wdma")
    if OPT.get("tlb", 1):
        tlb_touch(a)
    g1_setup_r(a)
    stamp(a, "setup")
    epoch_finish(a)
    stamp(a, "epoch")
    r = Rec(a)
    ln_compute2(r)
    g1_stage_offsets(a)
    off1 = dma_groups(1, "st1")
    upd = Rec(a); g1_stage_offsets(upd)
    off2 = dma_groups(2, "st2")
    off2[0] = [o[1] for o in upd.ops] + off2[0]
    allf = off1 + off2
    nln = OPT.get("nln", 10)
    replay(a, r.ops, allf[:nln], every=OPT.get("lnevery", 14), start=10)
    kgen_loads(a)
    stamp(a, "ln")

    def ln_publish(a):
        flag_store(a, WS_FLAG_LN, idx_ln)
    def ln_poll_issue(a):
        poll_addr(a, "ln", 243)
        poll_issue(a, "ln", 243, "pl")
    def ln_poll_check(a):
        a.vm_wait("pl")
        poll_check(a, "ln", 243)
        epoch_bump(a)
        g1_post_loads8(a)
    PS = OPT.get("pubstage", 2)
    def tr_round(rnd):
        t = wd_tr(rnd)
        return [lambda a, rnd=rnd: a.vm_wait(f"wd{rnd}"), t[:4]] + [t[4+4*k:8+4*k] for k in range(WD_N[rnd])]
    hooks = {
        ("stage_end", 0): [cs_store8],
        ("post_barrier", PS): [ln_publish],
        ("post_barrier", 5): [wd_setup2, kv_addr],
        ("post_barrier", 6): [ln_poll_issue],
        ("extra_dma", 6): wd_groups(1),
    }
    hooks[("fill", 7, OPT.get("chkk", 1))] = [ln_poll_check]
    if OPT.get("wdtouch", 1):
        hooks[("fill", OPT.get("touchstage", 1), 1)] = [wd_touch]
    ks = kgen_shadow()
    nk = 24
    per = (len(ks) + nk - 1) // nk
    ks = [lambda a: a.vm_wait("kp")] + ks
    idx = 0
    done_at = {}
    for stg in range(1, 7):
        for s_ in range(4):
            n = per + (1 if idx == 0 else 0)
            part = ks[idx:idx + n]; idx += n
            hooks[("shadow", stg, s_)] = part
            for x in part:
                if isinstance(x, str) and x.startswith("v_accvgpr_write"):
                    done_at[int(x.split()[1][1:].rstrip(",")) - KS] = (stg, s_)
    assert idx >= len(ks)
    order = sorted(done_at, key=lambda v: done_at[v])
    steps = [(6, 0), (6, 1), (6, 2), (6, 3), (7, 0), (7, 1), (7, 2), (7, 3)]
    perw = (len(order) + len(steps) - 1) // len(steps)
    p = 0
    for stp in steps:
        lst = []
        while p < len(order) and len(lst) < perw and done_at[order[p]] < stp:
            lst.append(f"ds_write_b32 v{V_KWA}, a{KS+order[p]} offset:{order[p]*528}"); p += 1
        if stp == steps[-1]:
            while p < len(order):
                lst.append(f"ds_write_b32 v{V_KWA}, a{KS+order[p]} offset:{order[p]*528}"); p += 1
        hooks[("ldsw",) + stp] = lst
    for nm, stg in (("s0", 0), ("s3", 3), ("s5", 5), ("s6", 6)):
        hooks.setdefault(("post_barrier", stg), []).append(lambda a, nm=nm: stamp(a, nm))
    g1_main2(a, hooks, allf[nln:])
    stamp(a, "loop")
    g1_correction8(a)
    stamp(a, "corr")
    r = Rec(a)
    g1_epilogue2(r)
    def xtl(a):
        xt_loads2(a); xt_extra(a)
    replay(a, r.ops, [[xtl]] + wd_groups(2), every=OPT.get("epevery", 24), start=26)
    stamp(a, "epi")
    u_prep(a)
    def pre_b(a):
        a.vm_wait("pubH")
    def post_b(a):
        flag_store(a, WS_FLAG_H, idx_h)
        u_write(a)
    kgen5_mfma(a, pre_b, post_b, tr_round(1) + tr_round(2))
    stamp(a, "kgen")
    conv_addr(a)
    late = {2: [lambda a: (poll_addr(a, "h", 243), poll_issue(a, "h", 243, "ph"))],
            3: [h_setup3]}
    conv_main3(a, wd_groups(3) + wd_groups(4), late)
    stamp(a, "convm")
    a.vm_wait("ph")
    poll_check(a, "h", 243)
    N0 = OPT.get("g2n0", 6)
    g2_first(a, N0)
    stamp(a, "hflag")
    conv_finish3(a)
    stamp(a, "conv")
    def y_publish(a):
        a.vm_wait("pubY")
        a.e("s_barrier")
        flag_store(a, WS_FLAG_Y, idx_y)
    def y_poll_issue(a):
        poll_addr(a, "y", 243)
        poll_issue(a, "y", 243, "py")
    def y_poll_check(a):
        a.vm_wait("py")
        poll_check(a, "y", 243)
        g2_y_loads(a)
    hk = {}
    for q, f in ((OPT.get("ypub", 5), y_publish), (OPT.get("xld", 8), g2_final_loads), (OPT.get("fprep", 10), final_prep),
                 (OPT.get("ypoll", 14), y_poll_issue), (OPT.get("ychk", 17), y_poll_check)):
        hk.setdefault(q, []).append(f)
    g2_main3(a, hk, N0, tr_round(3) + tr_round(4))
    stamp(a, "g2")
    final3(a)
    stamp(a, "fin")
    a.e("s_waitcnt vmcnt(0)")
    stamp(a, 9, real=True)
    prof_store(a)
    a.e("L_end:")
    a.e("s_endpgm")


def main():
    G.PROF = "prof" in sys.argv
    G.L_CX = 0
    for x in sys.argv[1:]:
        if "=" in x:
            k, v = x.split("=")
            if k == "stamps": G.STAMPS[:] = v.split(",")
            else: OPT[k] = int(v)
    a = Asm()
    build(a)
    nl = OPT.get("nlaunch", 0)
    launch = f"; @launch grid=(256,1,1) block=(256,1,1) lds={LDS_BYTES}" if not nl else "\n".join([f"; @launch kernel={NAME} grid=(256,1,1) block=(256,1,1) lds={LDS_BYTES}"] * nl)
    out = [HDR, launch,
           '.amdgcn_target "amdgcn-amd-amdhsa--gfx950"', '.text', a.text(),
           "  .fill 8448, 4, 0xbf800000", '.section .rodata,"a"', kd(NAME, 256, 240)]
    print('\n'.join(out))

if __name__ == "__main__":
    main()
```

```python
import sys, math
from asmlib import *
import gen as G
from gen import *

NAME = "parallel_sum__ssm_conv_s4__geglu_ffn__prompt_kernel"
S_EP = 34
S_SPIN = 13
WS_DUMMY = 15 << 20
V_POLL = 252
SPIN_MAX = 1 << 17
OPT = {}


class Rec:
    def __init__(self, a):
        self.ops = []
        self.a = a
    def e(self, s):
        for l in s.split('\n'):
            if l.strip():
                self.ops.append(('e', l.strip()))
    def c(self, s): pass
    def vm(self, s, tag): self.ops.append(('vm', s, tag))
    def vm_wait(self, *tags): self.ops.append(('wait', tags))
    def label(self, b): return self.a.label(b)
    def nofill(self, on): self.ops.append(('nofill', on))


def replay(a, ops, fillers, every, start=0):
    fill = list(fillers)
    nof = False
    n = 0
    for o in ops:
        if o[0] == 'nofill':
            nof = o[1]
            continue
        if o[0] == 'e':
            if o[1].startswith("STAMP:"):
                stamp(a, o[1][6:]); continue
            a.e(o[1])
        elif o[0] == 'vm':
            a.vm(o[1], o[2])
        elif o[0] == 'wait':
            a.vm_wait(*o[1])
        n += 1
        if fill and not nof and n >= start and (n - start) % every == 0:
            emit_group(a, fill.pop(0))
    for g in fill:
        emit_group(a, g)


def emit_group(a, g):
    if callable(g):
        g(a); return
    for t in g:
        if isinstance(t, tuple):
            a.vm(t[0], t[1])
        elif callable(t):
            t(a)
        else:
            a.e(t)

def t2_groups(t):
    return [[x] if callable(x) else x for x in t]


def sched(a, mf, slots):
    for i, m in enumerate(mf):
        a.e(m)
        for it in slots.get(i, []):
            if isinstance(it, list):
                emit_group(a, it)
            elif isinstance(it, tuple):
                a.vm(it[0], it[1])
            elif callable(it):
                it(a)
            else:
                a.e(it)


def g1_setup_x(a):
    mk_srd(a, SRD_X, P_X, 2048 * 1024)
    a.e(f"s_lshl_b32 s{S_T0}, s{S_I}, 7")
    a.e(f"s_lshl_b32 s{S_T1}, s{S_W}, 5")
    a.e(f"s_add_u32 s{S_T0}, s{S_T0}, s{S_T1}")
    a.e(f"s_lshl_b32 s{S_XW}, s{S_T0}, 10")
    a.e(f"s_lshl_b32 s{S_LX}, s{S_W}, 12")
    rm = OPT.get("rotmode", 0)
    a.e(f"s_add_u32 s{S_KC}, s{S_I}, s{S_J}")
    if rm == 0:
        a.e(f"s_and_b32 s{S_KC}, s{S_KC}, 7")
    elif rm == 1:
        a.e(f"s_mov_b32 s{S_KC}, 0")
    elif rm == 2:
        a.e(f"s_and_b32 s{S_KC}, s{S_KC}, 1")
        a.e(f"s_lshl_b32 s{S_KC}, s{S_KC}, 2")
    elif rm == 3:
        a.e(f"s_and_b32 s{S_KC}, s{S_KC}, 3")
        a.e(f"s_lshl_b32 s{S_KC}, s{S_KC}, 1")
    a.e(f"s_lshr_b32 s{S_CSH}, s{S_I}, 3")
    a.e(f"s_mul_i32 s{S_WW}, s{S_W}, {16 * 2752}")
    a.e(f"s_lshl_b32 s{S_T0}, s{S_U0}, 6")
    a.e(f"s_add_u32 s{S_WW}, s{S_WW}, s{S_T0}")
    a.e(f"s_mul_i32 s{S_LW}, s{S_W}, 3072")
    g1_stage_offsets(a)
    a.e(f"v_lshrrev_b32 v12, 3, v{V_LANE}")
    a.e(f"v_and_b32 v13, 7, v{V_LANE}")
    a.e(f"v_lshrrev_b32 v14, 1, v12")
    a.e(f"v_xor_b32 v15, v14, v13")
    a.e(f"v_lshlrev_b32 v16, 4, v15")
    a.e(f"v_lshl_add_u32 v{V_XOFF}, v12, 10, v16")
    a.e(f"v_xor_b32 v17, 64, v{V_XOFF}")
    a.e(f"v_add_u32 v{V_XOFF+1}, 8192, v17")
    a.e(f"v_add_u32 v{V_XOFF+2}, 16384, v{V_XOFF}")
    a.e(f"v_add_u32 v{V_XOFF+3}, 16384, v{V_XOFF+1}")

def g1_setup_w(a):
    mk_srd(a, SRD_WG, P_WG, 512 * 2752)
    mk_srd(a, SRD_WU, P_WU, 512 * 2752)
    for q in range(3):
        a.e(f"v_add_u32 v12, {64*q}, v{V_LANE}")
        a.e(f"v_mul_u32_u24 v13, 5462, v12")
        a.e(f"v_lshrrev_b32 v13, 16, v13")
        a.e(f"v_mul_u32_u24 v14, 12, v13")
        a.e(f"v_sub_u32 v14, v12, v14")
        a.e(f"v_mul_u32_u24 v13, 2752, v13")
        a.e(f"v_lshl_add_u32 v{V_WOFF+q}, v14, 4, v13")

def g1_setup_r(a):
    a.e(f"v_and_b32 v12, 31, v{V_LANE}")
    a.e(f"v_lshrrev_b32 v13, 5, v{V_LANE}")
    a.e(f"v_bfe_u32 v14, v12, 1, 3")
    a.e(f"s_lshl_b32 s{S_T0}, s{S_TW}, 13")
    a.e(f"v_lshl_add_u32 v15, v12, 7, s{S_T0}")
    for s_ in range(4):
        a.e(f"v_add_u32 v16, {2*s_}, v13")
        a.e(f"v_xor_b32 v16, v16, v14")
        a.e(f"v_lshl_add_u32 v{V_BADDR+s_}, v16, 4, v15")
    a.e(f"v_lshrrev_b32 v12, 4, v{V_LANE}")
    a.e(f"v_and_b32 v13, 1, v12")
    a.e(f"v_lshrrev_b32 v12, 1, v12")
    a.e(f"v_bfe_u32 v14, v{V_LANE}, 2, 2")
    a.e(f"v_lshl_add_u32 v14, v12, 3, v14")
    a.e(f"v_mul_u32_u24 v14, 192, v14")
    a.e(f"v_and_b32 v15, 3, v{V_LANE}")
    a.e(f"v_lshl_add_u32 v14, v15, 3, v14")
    a.e(f"v_mul_u32_u24 v13, {L_U - L_G}, v13")
    a.e(f"v_add_u32 v14, v14, v13")
    a.e(f"s_mul_i32 s{S_T0}, s{S_FW}, 96")
    a.e(f"s_add_u32 s{S_T0}, s{S_T0}, {L_G}")
    a.e(f"v_add_u32 v{V_AADDR}, s{S_T0}, v14")


def dma_groups(slot, tag):
    return [[m0, "s_nop 0", (ld, tag)] for m0, ld in g1_dma_list(slot, tag)]


def entry(a):
    a.e(f".globl {NAME}\n.p2align 8\n.type {NAME},@function\n{NAME}:")
    a.e(f"s_cmp_ge_u32 s{S_WG}, 256")
    a.e(f"s_cbranch_scc1 L_end")
    a.e("s_load_dwordx16 s[16:31], s[0:1], 0")
    a.e("s_load_dwordx16 s[32:47], s[0:1], 64")
    if not OPT.get("nopf"):
        a.e("s_getpc_b64 s[74:75]")
        a.e("L_pc:")
        a.e(f"s_lshr_b32 s{S_T1}, s{S_WG}, 3")
        a.e(f"s_and_b32 s{S_T1}, s{S_T1}, 15")
        a.e(f"s_lshl_b32 s{S_T1}, s{S_T1}, 11")
        a.e(f"v_lshl_add_u32 v2, v0, 3, s{S_T1}")
        for q in range(OPT.get("pfn", 1)):
            a.vm(f"global_load_dwordx2 v[4:5], v2, s[74:75] offset:{0}", "pf")
    a.e(f"v_and_b32 v{V_LANE}, 63, v0")
    a.e(f"v_lshrrev_b32 v3, 6, v0")
    a.e(f"s_and_b32 s{S_T0}, s{S_WG}, 7")
    a.e(f"v_readfirstlane_b32 s{S_W}, v3")
    a.e(f"s_lshr_b32 s{S_T1}, s{S_WG}, 3")
    a.e(f"s_lshr_b32 s{S_I}, s{S_T0}, 1")
    a.e(f"s_lshl_b32 s{S_I}, s{S_I}, 2")
    a.e(f"s_lshr_b32 s{S_T2}, s{S_T1}, 3")
    a.e(f"s_add_u32 s{S_I}, s{S_I}, s{S_T2}")
    a.e(f"s_and_b32 s{S_J}, s{S_T0}, 1")
    a.e(f"s_lshl_b32 s{S_J}, s{S_J}, 3")
    a.e(f"s_and_b32 s{S_T2}, s{S_T1}, 7")
    a.e(f"s_add_u32 s{S_J}, s{S_J}, s{S_T2}")
    a.e(f"s_lshr_b32 s{S_TW}, s{S_W}, 1")
    a.e(f"s_and_b32 s{S_FW}, s{S_W}, 1")
    a.e(f"s_mul_i32 s{S_U0}, s{S_J}, 3")
    a.e(f"s_lshl_b32 s{S_T2}, s{S_J}, 1")
    a.e(f"s_add_u32 s{S_T2}, s{S_T2}, 11")
    a.e(f"s_min_u32 s{S_U0}, s{S_U0}, s{S_T2}")
    a.e(f"s_cmp_lt_u32 s{S_J}, 11")
    a.e(f"s_cselect_b32 s{S_NU}, 6, 4")
    conv_ids(a)
    g2_ids(a)


def epoch_load(a):
    a.e("v_mov_b32 v3, 0")
    a.vm(f"global_load_dword v6, v3, s[{P_WS}:{P_WS+1}] sc1", "ep")


def epoch_finish(a):
    a.vm_wait("ep")
    a.e("s_nop 0")
    a.e(f"v_readfirstlane_b32 s{S_EP}, v6")
    a.e("s_nop 3")
    a.e(f"s_mul_i32 s{S_TAG}, s{S_EP}, 0x9e3779b1")
    a.e(f"s_add_u32 s{S_TAG}, s{S_TAG}, 0x3c6ef373")


def flag_store(a, region, idx_code):
    lab = a.label("nofl")
    a.e(f"s_cmp_lg_u32 s{S_W}, 0")
    a.e(f"s_cbranch_scc1 {lab}")
    idx_code(a)
    a.e(f"s_lshl_b32 s{S_T0}, s{S_T0}, 2")
    a.e(f"s_add_u32 s{S_T0}, s{S_T0}, {region}")
    a.e(f"v_mov_b32 v2, s{S_T0}")
    a.e(f"v_mov_b32 v3, s{S_TAG}")
    a.e(f"s_mov_b64 s[{S_EXEC}:{S_EXEC+1}], exec")
    a.e("s_mov_b64 exec, 1")
    a.e(f"global_store_dword v2, v3, s[{P_WS}:{P_WS+1}] sc1")
    a.e(f"s_mov_b64 exec, s[{S_EXEC}:{S_EXEC+1}]")
    a.e(f"{lab}:")


def idx_ln(a): a.e(f"s_mov_b32 s{S_T0}, s{S_WG}")
def idx_h(a):
    a.e(f"s_lshl_b32 s{S_T0}, s{S_I}, 4")
    a.e(f"s_add_u32 s{S_T0}, s{S_T0}, s{S_J}")
def idx_y(a):
    a.e(f"s_and_b32 s{S_T0}, s{S_WG}, 7")
    a.e(f"s_lshl_b32 s{S_T0}, s{S_T0}, 5")
    a.e(f"s_lshr_b32 s{S_T1}, s{S_WG}, 3")
    a.e(f"s_add_u32 s{S_T0}, s{S_T0}, s{S_T1}")


def poll_addr(a, kind, vreg):
    if kind == "ln":
        a.e(f"v_lshlrev_b32 v{vreg}, 4, v{V_LANE}")
        a.e(f"v_add_u32 v{vreg}, {WS_FLAG_LN}, v{vreg}")
    elif kind == "h":
        a.e(f"s_lshl_b32 s{S_T0}, s{S_I}, 6")
        a.e(f"s_add_u32 s{S_T0}, s{S_T0}, {WS_FLAG_H}")
        a.e(f"v_and_b32 v{vreg}, 15, v{V_LANE}")
        a.e(f"v_lshl_add_u32 v{vreg}, v{vreg}, 2, s{S_T0}")
    elif kind == "y":
        a.e(f"s_lshl_b32 s{S_T0}, s{S_NT}, 7")
        a.e(f"s_add_u32 s{S_T0}, s{S_T0}, {WS_FLAG_Y}")
        a.e(f"v_and_b32 v{vreg}, 31, v{V_LANE}")
        a.e(f"v_lshl_add_u32 v{vreg}, v{vreg}, 2, s{S_T0}")


def poll_issue(a, kind, vreg, tag):
    if kind == "ln":
        a.vm(f"global_load_dwordx4 {vr(V_POLL,4)}, v{vreg}, s[{P_WS}:{P_WS+1}] sc1", tag)
    else:
        a.vm(f"global_load_dword v{V_POLL}, v{vreg}, s[{P_WS}:{P_WS+1}] sc1", tag)


def poll_check(a, kind, vreg):
    top, ok = a.label("poll"), a.label("pollok")
    a.e(f"s_mov_b32 s{S_SPIN}, 0")
    a.e(f"{top}:")
    a.e(f"v_cmp_ne_u32 vcc, s{S_TAG}, v{V_POLL}")
    if kind == "ln":
        for q in range(1, 4):
            a.e(f"v_cmp_ne_u32 s[74:75], s{S_TAG}, v{V_POLL+q}")
            a.e("s_nop 0")
            a.e("s_or_b64 vcc, vcc, s[74:75]")
    a.e("s_nop 1")
    a.e(f"s_cmp_eq_u64 vcc, 0")
    a.e(f"s_cbranch_scc1 {ok}")
    a.e(f"s_add_u32 s{S_SPIN}, s{S_SPIN}, 1")
    a.e(f"s_cmp_gt_u32 s{S_SPIN}, {SPIN_MAX}")
    a.e(f"s_cbranch_scc1 {ok}")
    a.e(f"s_sleep {OPT.get('sleep', 1)}")
    if kind == "ln":
        a.e(f"global_load_dwordx4 {vr(V_POLL,4)}, v{vreg}, s[{P_WS}:{P_WS+1}] sc1")
    else:
        a.e(f"global_load_dword v{V_POLL}, v{vreg}, s[{P_WS}:{P_WS+1}] sc1")
    a.e("s_waitcnt vmcnt(0)")
    a.e(f"s_branch {top}")
    a.e(f"{ok}:")


def epoch_bump(a):
    lab = a.label("nobump")
    a.e(f"s_or_b32 s{S_T0}, s{S_WG}, s{S_W}")
    a.e(f"s_cmp_lg_u32 s{S_T0}, 0")
    a.e(f"s_cbranch_scc1 {lab}")
    a.e(f"s_add_u32 s{S_T0}, s{S_EP}, 1")
    a.e("v_mov_b32 v2, 0")
    a.e(f"v_mov_b32 v3, s{S_T0}")
    a.e(f"s_mov_b64 s[{S_EXEC}:{S_EXEC+1}], exec")
    a.e("s_mov_b64 exec, 1")
    a.e(f"global_store_dword v2, v3, s[{P_WS}:{P_WS+1}] sc1")
    a.e(f"s_mov_b64 exec, s[{S_EXEC}:{S_EXEC+1}]")
    a.e(f"{lab}:")


def ln_loads2(a):
    a.e(f"s_lshl_b32 s{S_T0}, s{S_I}, 7")
    a.e(f"s_lshl_b32 s{S_T1}, s{S_J}, 3")
    a.e(f"s_add_u32 s{S_T0}, s{S_T0}, s{S_T1}")
    a.e(f"s_lshl_b32 s{S_T1}, s{S_W}, 1")
    a.e(f"s_add_u32 s{S_T0}, s{S_T0}, s{S_T1}")
    a.e(f"s_lshl_b32 s{S_T0}, s{S_T0}, 10")
    a.e(f"v_lshl_add_u32 v7, v{V_LANE}, 4, s{S_T0}")
    a.vm(f"global_load_dwordx4 v[44:47], v7, s[{P_X}:{P_X+1}]", "ln")
    a.vm(f"global_load_dwordx4 v[48:51], v7, s[{P_X}:{P_X+1}] offset:1024", "ln")


def ln_compute2(a):
    a.vm_wait("ln")
    for r in range(2):
        for d in range(4):
            a.e(f"v_lshlrev_b32 v{16+8*r+2*d}, 16, v{44+4*r+d}")
            a.e(f"v_and_b32 v{17+8*r+2*d}, 0xffff0000, v{44+4*r+d}")
    for r in range(2):
        b = 16 + 8*r
        t = 36 + 4*r
        a.e(f"v_pk_add_f32 {vr(t,2)}, {vr(b,2)}, {vr(b+2,2)}")
        a.e(f"v_pk_mul_f32 {vr(t+2,2)}, {vr(b,2)}, {vr(b,2)}")
    for r in range(2):
        b = 16 + 8*r
        t = 36 + 4*r
        a.e(f"v_pk_add_f32 {vr(t,2)}, {vr(t,2)}, {vr(b+4,2)}")
        a.e(f"v_pk_fma_f32 {vr(t+2,2)}, {vr(b+2,2)}, {vr(b+2,2)}, {vr(t+2,2)}")
    for r in range(2):
        b = 16 + 8*r
        t = 36 + 4*r
        a.e(f"v_pk_add_f32 {vr(t,2)}, {vr(t,2)}, {vr(b+6,2)}")
        a.e(f"v_pk_fma_f32 {vr(t+2,2)}, {vr(b+4,2)}, {vr(b+4,2)}, {vr(t+2,2)}")
    for r in range(2):
        b = 16 + 8*r
        t = 36 + 4*r
        a.e(f"v_pk_fma_f32 {vr(t+2,2)}, {vr(b+6,2)}, {vr(b+6,2)}, {vr(t+2,2)}")
        a.e(f"v_add_f32 v{32+r}, v{t}, v{t+1}")
    for r in range(2):
        t = 36 + 4*r
        a.e(f"v_add_f32 v{34+r}, v{t+2}, v{t+3}")
    a.e("s_nop 0")
    dpp_reduce(a, [32, 33, 34, 35])
    for q in range(4):
        a.e(f"v_readlane_b32 s{74+q if q < 2 else 10+q}, v{32+q}, 63")
    a.e("s_nop 1")
    a.e("v_mov_b32 v32, s74")
    a.e("v_mov_b32 v33, s75")
    a.e("v_mov_b32 v34, s12")
    a.e("v_mov_b32 v35, s13")
    a.e("v_mov_b32 v36, 0x3b000000")
    a.e("v_pk_mul_f32 v[32:33], v[32:33], v[36:37] op_sel_hi:[1,0]")
    a.e("v_pk_mul_f32 v[34:35], v[34:35], v[36:37] op_sel_hi:[1,0]")
    a.e("v_pk_fma_f32 v[34:35], v[32:33], v[32:33], v[34:35] neg_lo:[1,0,0] neg_hi:[1,0,0]")
    a.e("v_max_f32 v34, 0, v34")
    a.e("v_max_f32 v35, 0, v35")
    a.e("v_cvt_pk_bf16_f32 v36, v34, v35")
    a.e("v_cvt_pk_bf16_f32 v37, v32, v33")
    a.e("v_lshlrev_b32 v34, 16, v36")
    a.e("v_and_b32 v35, 0xffff0000, v36")
    a.e("v_lshlrev_b32 v32, 16, v37")
    a.e("v_and_b32 v33, 0xffff0000, v37")
    a.e("v_add_f32 v34, 0x3727c5ac, v34")
    a.e("v_add_f32 v35, 0x3727c5ac, v35")
    a.e("v_cvt_pk_bf16_f32 v36, v34, v35")
    a.e("v_lshlrev_b32 v34, 16, v36")
    a.e("v_and_b32 v35, 0xffff0000, v36")
    a.e("v_sqrt_f32 v34, v34")
    a.e("v_sqrt_f32 v35, v35")
    a.e("s_nop 0")
    a.e("v_cvt_pk_bf16_f32 v36, v34, v35")
    a.e("v_lshlrev_b32 v34, 16, v36")
    a.e("v_and_b32 v35, 0xffff0000, v36")
    a.e("v_rcp_f32 v34, v34")
    a.e("v_rcp_f32 v35, v35")
    for r in range(2):
        b = 16 + 8*r
        sel = "op_sel_hi:[1,0]" if r == 0 else "op_sel:[0,1] op_sel_hi:[1,1]"
        for d in range(4):
            a.e(f"v_pk_add_f32 {vr(b+2*d,2)}, {vr(b+2*d,2)}, v[32:33] {sel} neg_lo:[0,1] neg_hi:[0,1]")
    for r in range(2):
        b = 16 + 8*r
        for d in range(4):
            a.e(f"v_cvt_pk_bf16_f32 v{44+4*r+d}, v{b+2*d}, v{b+2*d+1}")
    for r in range(2):
        b = 16 + 8*r
        for d in range(4):
            a.e(f"v_lshlrev_b32 v{b+2*d}, 16, v{44+4*r+d}")
            a.e(f"v_and_b32 v{b+2*d+1}, 0xffff0000, v{44+4*r+d}")
    for r in range(2):
        b = 16 + 8*r
        sel = "op_sel_hi:[1,0]" if r == 0 else "op_sel:[0,1] op_sel_hi:[1,1]"
        for d in range(4):
            a.e(f"v_pk_mul_f32 {vr(b+2*d,2)}, {vr(b+2*d,2)}, v[34:35] {sel}")
    for r in range(2):
        b = 16 + 8*r
        for d in range(4):
            a.e(f"v_cvt_pk_bf16_f32 v{44+4*r+d}, v{b+2*d}, v{b+2*d+1}")
    a.e(f"s_mul_i32 s{S_T0}, s{S_W}, {2*1088}")
    a.e(f"s_add_u32 s{S_T0}, s{S_T0}, {L_LN}")
    a.e(f"v_lshl_add_u32 v2, v{V_LANE}, 4, s{S_T0}")
    a.e("ds_write_b128 v2, v[44:47]")
    a.e("ds_write_b128 v2, v[48:51] offset:1088")
    a.e("v_mov_b32 v40, v34")
    a.e("v_cvt_pk_bf16_f32 v41, -v32, -v32")
    a.e("v_mov_b32 v42, v35")
    a.e("v_cvt_pk_bf16_f32 v43, -v33, -v33")
    a.e(f"s_lshl_b32 s{S_T0}, s{S_I}, 7")
    a.e(f"s_lshl_b32 s{S_T1}, s{S_J}, 3")
    a.e(f"s_add_u32 s{S_T0}, s{S_T0}, s{S_T1}")
    a.e(f"s_lshl_b32 s{S_T1}, s{S_W}, 1")
    a.e(f"s_add_u32 s{S_T1}, s{S_T0}, s{S_T1}")
    a.e(f"s_lshl_b32 s{S_T1}, s{S_T1}, 3")
    a.e(f"s_add_u32 s{S_T1}, s{S_T1}, {WS_STATS}")
    a.e(f"v_mov_b32 v3, s{S_T1}")
    a.nofill(True)
    a.e(f"s_mov_b64 s[{S_EXEC}:{S_EXEC+1}], exec")
    a.e("s_mov_b64 exec, 1")
    a.vm(f"global_store_dwordx4 v3, v[40:43], s[{P_WS}:{P_WS+1}] sc1", "pubA")
    a.e(f"s_mov_b64 exec, s[{S_EXEC}:{S_EXEC+1}]")
    a.nofill(False)
    a.e(f"v_bfe_u32 v2, v{V_LANE}, 2, 2")
    a.e(f"v_mul_u32_u24 v2, 1088, v2")
    a.e(f"v_lshrrev_b32 v3, 4, v{V_LANE}")
    a.e(f"v_lshl_add_u32 v2, v3, 5, v2")
    a.e(f"v_and_b32 v3, 3, v{V_LANE}")
    a.e(f"v_lshl_add_u32 v2, v3, 3, v2")
    a.e(f"s_lshl_b32 s{S_T1}, s{S_W}, 8")
    a.e(f"s_add_u32 s{S_T1}, s{S_T1}, {L_LN}")
    a.e(f"v_add_u32 v2, s{S_T1}, v2")
    a.e(f"s_lshl_b32 s{S_T0}, s{S_T0}, 10")
    a.e(f"s_lshl_b32 s{S_T1}, s{S_W}, 11")
    a.e(f"s_add_u32 s{S_T0}, s{S_T0}, s{S_T1}")
    a.e(f"s_add_u32 s{S_T0}, s{S_T0}, {WS_XT}")
    a.e(f"v_lshl_add_u32 v3, v{V_LANE}, 4, s{S_T0}")
    a.e("s_waitcnt lgkmcnt(0)")
    a.e("s_barrier")
    for q in range(2):
        a.e(f"ds_read_b64_tr_b16 v[{8+4*q}:{9+4*q}], v2 offset:{128*q}")
        a.e(f"ds_read_b64_tr_b16 v[{10+4*q}:{11+4*q}], v2 offset:{128*q + 4*1088}")
    a.e("s_waitcnt lgkmcnt(0)")
    a.vm(f"global_store_dwordx4 v3, v[8:11], s[{P_WS}:{P_WS+1}] sc1", "pubA")
    a.vm(f"global_store_dwordx4 v3, v[12:15], s[{P_WS}:{P_WS+1}] offset:1024 sc1", "pubA")


def g1_main2(a, hooks, pend0):
    for r in range(4):
        a.e(f"v_mov_b32 v{V_ONES+r}, 0x3f803f80")
    a.vm_wait("st0")
    a.e("s_barrier")
    stamp(a, "st0")
    for x in g1_reads(0, 0):
        a.e(x)
    st = 0
    pend = list(pend0)
    for stage in range(8):
        for s in range(4):
            last = (stage == 7 and s == 3)
            a.e("s_waitcnt lgkmcnt(0)")
            mf = g1_mfmas(st, stage == 0 and s == 0)
            slots = {i: [] for i in range(6)}
            if stage == 0:
                lab = a.label("nocs")
                a.e(f"s_or_b32 s{S_T0}, s{S_TW}, s{S_CSH}")
                a.e(f"s_cmp_lg_u32 s{S_T0}, 0")
                a.e(f"s_cbranch_scc1 {lab}")
                for ap in range(3):
                    c = "0" if s == 0 else vr(V_CSACC + 16 * ap, 16)
                    a.e(f"v_mfma_f32_32x32x16_bf16 {vr(V_CSACC+16*ap,16)}, {vr(V_ONES,4)}, {vr(fA(st,ap),4)}, {c}")
                a.e(f"{lab}:")
            ldsw = hooks.get(("ldsw", stage, s), [])
            if s == 3 and not last:
                assert not pend, (stage, len(pend))
                d = SLOT if (stage + 1) % 3 != 0 else -2 * SLOT
                slots[0] += [f"v_add_u32 v{V_BADDR+q}, {d & 0xffffffff}, v{V_BADDR+q}" for q in range(4)]
                slots[0] += [f"v_add_u32 v{V_AADDR}, {d & 0xffffffff}, v{V_AADDR}"]
                def boundary(a, stage=stage):
                    a.vm_wait(f"st{stage+1}")
                    for hk in hooks.get(("pre_barrier", stage), []):
                        hk(a)
                    a.e("s_barrier")
                slots[1].append(boundary)
                rd = g1_reads(st ^ 1, 0)
                slots[1] += rd[:3]
                slots[2] += rd[3:6]
                slots[3] += rd[6:]
                for hk in hooks.get(("post_barrier", stage), []):
                    slots[4].append(hk)
                if stage + 3 < 8:
                    slots[1].append(g1_stage_offsets)
                    pend = dma_groups(stage % 3, f"st{stage+3}")
                elif ("extra_dma", stage) in hooks:
                    pend = list(hooks[("extra_dma", stage)])
                if pend:
                    slots[3].append(pend.pop(0))
                    slots[5].append(pend.pop(0))
            elif last:
                slots[0].append("s_barrier")
                for hk in hooks.get(("ring_free",), []):
                    slots[1].append(hk)
            else:
                rd = g1_reads(st ^ 1, s + 1)
                slots[0] += rd[:3]
                slots[1] += rd[3:6]
                slots[2] += rd[6:]
                n = (len(pend) + (2 - s)) // (3 - s)
                pos = {0: [], 1: [3], 2: [1, 4], 3: [1, 3, 5], 4: [1, 2, 4, 5], 5: [1, 2, 3, 4, 5]}[n]
                for q in range(n):
                    slots[pos[q]].append(pend.pop(0))
            for k, x in enumerate(ldsw):
                slots[min(5, 1 + (k * 5) // max(1, len(ldsw)))].append(x)
            for k, hk in enumerate(hooks.get(("fill", stage, s), [])):
                slots[min(5, 2 + k)].append(hk)
            sh = hooks.get(("shadow", stage, s), [])
            lo = 3
            for k, x in enumerate(sh):
                slots[lo + (k * (6 - lo)) // len(sh)].append(x)
            sched(a, mf, slots)
            st ^= 1
        for hk in hooks.get(("stage_end", stage), []):
            hk(a)


def cs_store8(a):
    lab = a.label("nocsst")
    a.e(f"s_or_b32 s{S_T0}, s{S_TW}, s{S_CSH}")
    a.e(f"s_cmp_lg_u32 s{S_T0}, 0")
    a.e(f"s_cbranch_scc1 {lab}")
    a.e(f"s_mul_i32 s{S_T0}, s{S_J}, 6")
    a.e(f"s_mul_i32 s{S_T1}, s{S_FW}, 3")
    a.e(f"s_add_u32 s{S_T0}, s{S_T0}, s{S_T1}")
    a.e(f"s_lshl_b32 s{S_T0}, s{S_T0}, 10")
    a.e(f"s_lshl_b32 s{S_T1}, s{S_I}, 2")
    a.e(f"s_add_u32 s{S_T0}, s{S_T0}, s{S_T1}")
    a.e(f"s_add_u32 s{S_T0}, s{S_T0}, {WS_CS}")
    a.e(f"v_lshl_add_u32 v3, v{V_LANE}, 5, s{S_T0}")
    a.e(f"s_mov_b64 s[{S_EXEC}:{S_EXEC+1}], exec")
    a.e("s_mov_b64 exec, 0xffffffff")
    for ap in range(3):
        a.e(f"global_store_dword v3, v{V_CSACC+16*ap}, s[{P_WS}:{P_WS+1}] offset:{1024*ap} sc1")
    a.e(f"s_mov_b64 exec, s[{S_EXEC}:{S_EXEC+1}]")
    a.e(f"{lab}:")

def g1_post_loads8(a):
    a.e(f"s_lshl_b32 s{S_T0}, s{S_I}, 7")
    a.e(f"s_lshl_b32 s{S_T1}, s{S_TW}, 6")
    a.e(f"s_add_u32 s{S_T0}, s{S_T0}, s{S_T1}")
    a.e(f"s_lshl_b32 s{S_T0}, s{S_T0}, 3")
    a.e(f"s_add_u32 s{S_T0}, s{S_T0}, {WS_STATS}")
    a.e(f"v_and_b32 v6, 31, v{V_LANE}")
    a.e(f"v_lshl_add_u32 v7, v6, 3, s{S_T0}")
    a.vm(f"global_load_dwordx2 v[2:3], v7, s[{P_WS}:{P_WS+1}] sc1", "post")
    a.vm(f"global_load_dwordx2 v[4:5], v7, s[{P_WS}:{P_WS+1}] offset:256 sc1", "post")
    a.e(f"s_mul_i32 s{S_T0}, s{S_J}, 6")
    a.e(f"s_mul_i32 s{S_T1}, s{S_FW}, 3")
    a.e(f"s_add_u32 s{S_T0}, s{S_T0}, s{S_T1}")
    a.e(f"s_lshl_b32 s{S_T0}, s{S_T0}, 10")
    a.e(f"s_add_u32 s{S_T0}, s{S_T0}, {WS_CS}")
    a.e(f"v_lshl_add_u32 v7, v6, 5, s{S_T0}")
    a.e(f"v_lshrrev_b32 v8, 5, v{V_LANE}")
    a.e(f"v_lshl_add_u32 v7, v8, 4, v7")
    for ap in range(3):
        a.vm(f"global_load_dwordx4 {vr(16+8*ap,4)}, v7, s[{P_WS}:{P_WS+1}] offset:{1024*ap} sc1", "post")

def g1_correction8(a):
    a.vm_wait("post")
    for ap in range(3):
        b = 16 + 8 * ap
        a.e(f"v_pk_add_f32 {vr(b,2)}, {vr(b,2)}, {vr(b+2,2)}")
    for ap in range(3):
        b = 16 + 8 * ap
        a.e(f"v_add_f32 v{b}, v{b}, v{b+1}")
    for ap in range(3):
        b = 16 + 8 * ap
        a.e(f"v_mov_b32 v{b+1}, v{b}")
    a.e(f"v_cmp_gt_u32 vcc, 32, v{V_LANE}")
    a.e("s_nop 0")
    for ap in range(3):
        b = 16 + 8 * ap
        a.e(f"v_permlane32_swap_b32 v{b}, v{b+1}")
    for ap in range(3):
        b = 16 + 8 * ap
        a.e(f"v_add_f32 v{b}, v{b}, v{b+1}")
    for ap in range(3):
        b = 16 + 8 * ap
        a.e(f"v_cvt_pk_bf16_f32 v{b+1}, v{b}, v{b}")
    for ap in range(3):
        b = 16 + 8 * ap
        a.e(f"v_lshlrev_b32 v{b+2}, 16, v{b+1}")
    for ap in range(3):
        b = 16 + 8 * ap
        a.e(f"v_sub_f32 v{b+2}, v{b}, v{b+2}")
    for ap in range(3):
        b = 16 + 8 * ap
        a.e(f"v_cvt_pk_bf16_f32 v{b+4}, v{b}, v{b+2}")
    for ap in range(3):
        b = 16 + 8 * ap
        a.e(f"v_cndmask_b32 v{b+4}, 0, v{b+4}, vcc")
        a.e(f"v_mov_b32 v{b+5}, 0")
        a.e(f"v_mov_b32 v{b+6}, 0")
        a.e(f"v_mov_b32 v{b+7}, 0")
    for tt in range(2):
        a.e(f"v_cndmask_b32 v{44+4*tt}, 0, v{3+2*tt}, vcc")
        for d in range(1, 4):
            a.e(f"v_mov_b32 v{44+4*tt+d}, 0")
    a.e("s_nop 1")
    for ap in range(3):
        for tt in range(2):
            a.e(f"v_mfma_f32_32x32x16_bf16 {vr(acc(tt,ap),16)}, {vr(20+8*ap,4)}, {vr(44+4*tt,4)}, {vr(acc(tt,ap),16)}")

def g1_epilogue2(a):
    a.e(f"v_mov_b32 v52, {fhex(C1)}")
    a.e(f"v_mov_b32 v53, {fhex(C2)}")
    a.e("v_rcp_f32 v54, v2")
    a.e("v_rcp_f32 v56, v4")
    a.e(f"s_lshl_b32 s{S_T0}, s{S_I}, 2")
    a.e(f"s_lshl_b32 s{S_T1}, s{S_TW}, 1")
    a.e(f"s_add_u32 s{S_T0}, s{S_T0}, s{S_T1}")
    a.e(f"s_mul_i32 s{S_T0}, s{S_T0}, 86")
    a.e(f"s_lshl_b32 s{S_T1}, s{S_U0}, 1")
    a.e(f"s_add_u32 s{S_T0}, s{S_T0}, s{S_T1}")
    a.e(f"s_mul_i32 s{S_T1}, s{S_FW}, 3")
    a.e(f"s_add_u32 s{S_T0}, s{S_T0}, s{S_T1}")
    a.e(f"s_lshl_b32 s{S_T0}, s{S_T0}, 10")
    a.e(f"s_add_u32 s{S_T0}, s{S_T0}, {WS_H}")
    a.e(f"v_lshl_add_u32 v58, v{V_LANE}, 4, s{S_T0}")
    a.e(f"v_add_u32 v59, {86*1024}, v58")
    a.e(f"s_sub_u32 s{S_T2}, s{S_NU}, s{S_T1}")
    a.e(f"s_lshl_b32 s{S_T0}, s{S_WG}, 12")
    a.e(f"s_add_u32 s{S_T0}, s{S_T0}, {WS_DUMMY}")
    a.e(f"v_lshl_add_u32 v60, v{V_LANE}, 4, s{S_T0}")
    a.e(f"s_cmp_gt_u32 s{S_T2}, 1")
    a.e(f"s_cselect_b64 s[74:75], -1, 0")
    a.e(f"v_cndmask_b32 v61, v60, v59, s[74:75]")
    a.e(f"v_cndmask_b32 v60, v60, v58, s[74:75]")
    a.e("s_nop 7")
    for ap in range(3):
        for tt in range(2):
            c = acc(tt, ap)
            R = 2 + 2 * tt
            Sg = 54 + 2 * tt
            Gq, T, X = 6, 14, 22
            for p in range(4):
                a.e(f"v_pk_mul_f32 {vr(Gq+2*p,2)}, {vr(c+2*p,2)}, {vr(R,2)} op_sel_hi:[1,0]")
            for p in range(4):
                a.e(f"v_pk_mul_f32 {vr(T+2*p,2)}, {vr(Gq+2*p,2)}, {vr(Gq+2*p,2)}")
            for p in range(4):
                a.e(f"v_pk_fma_f32 {vr(T+2*p,2)}, {vr(T+2*p,2)}, {vr(52,2)}, {vr(52,2)} op_sel:[0,1,0] op_sel_hi:[1,1,0]")
            for p in range(4):
                a.e(f"v_pk_mul_f32 {vr(T+2*p,2)}, {vr(T+2*p,2)}, {vr(Gq+2*p,2)}")
            for p in range(8):
                a.e(f"v_exp_f32 v{T+p}, v{T+p}")
            for p in range(4):
                a.e(f"v_pk_mul_f32 {vr(Gq+2*p,2)}, {vr(Gq+2*p,2)}, {vr(c+8+2*p,2)}")
            for p in range(4):
                a.e(f"v_pk_fma_f32 {vr(T+2*p,2)}, {vr(T+2*p,2)}, {vr(Sg,2)}, {vr(Sg,2)} op_sel_hi:[1,0,0]")
            for p in range(8):
                a.e(f"v_rcp_f32 v{T+p}, v{T+p}")
            a.e("s_nop 0")
            for p in range(4):
                a.e(f"v_pk_mul_f32 {vr(Gq+2*p,2)}, {vr(Gq+2*p,2)}, {vr(T+2*p,2)}")
            O = X + 4 * ((2 * ap + tt) % 2)
            for p in range(4):
                a.e(f"v_cvt_pk_bf16_f32 v{O+p}, v{Gq+2*p}, v{Gq+2*p+1}")
            adr = (58 + tt) if ap == 0 else (60 + tt)
            a.vm(f"global_store_dwordx4 v{adr}, {vr(O,4)}, s[{P_WS}:{P_WS+1}] offset:{1024*ap} sc1", "pubH")


WD_N = {1: 5, 2: 5, 3: 5, 4: 7}
WD_K0 = {1: 0, 2: 5, 3: 10, 4: 15}
WD_L = {1: (0, 10240), 2: (SLOT, 10240), 3: (25856, 10240), 4: (2*SLOT, 7*2048)}
V_WDL = 240
S_WDL = 15
S_WDS = 73

def wd_setup2(a):
    mk_srd(a, SRD_WD, P_WD, 1376 * 1024)
    a.e(f"s_mul_i32 s{S_ROT}, s{S_NT}, {OPT.get('rot', 3)}")
    a.e(f"s_cmp_ge_u32 s{S_ROT}, 22")
    a.e(f"s_cselect_b32 s{S_T0}, 22, 0")
    a.e(f"s_sub_u32 s{S_ROT}, s{S_ROT}, s{S_T0}")
    a.e(f"s_mul_i32 s{S_WDO}, s{S_W}, {352 * 1024}")
    a.e(f"s_lshl_b32 s{S_T0}, s{S_NT}, 7")
    a.e(f"s_add_u32 s{S_WDO}, s{S_WDO}, s{S_T0}")
    a.e(f"s_lshl_b32 s{S_WDS}, s{S_ROT}, 14")
    a.e(f"s_add_u32 s{S_WDS}, s{S_WDS}, s{S_WDO}")
    a.e(f"s_add_u32 s{S_WENDR}, s{S_WDO}, {22*16384}")
    a.e(f"v_lshrrev_b32 v6, 3, v{V_LANE}")
    a.e(f"v_and_b32 v7, 7, v{V_LANE}")
    a.e(f"v_bfe_u32 v8, v6, 1, 1")
    a.e(f"v_lshlrev_b32 v8, 2, v8")
    a.e(f"v_xor_b32 v7, v7, v8")
    a.e(f"v_lshlrev_b32 v7, 4, v7")
    a.e(f"v_lshl_add_u32 v{V_WDOFF}, v6, 10, v7")
    a.e(f"v_lshrrev_b32 v6, 4, v{V_LANE}")
    a.e(f"v_and_b32 v7, 1, v6")
    a.e(f"v_lshrrev_b32 v6, 1, v6")
    a.e(f"v_bfe_u32 v8, v{V_LANE}, 2, 2")
    a.e(f"v_lshl_add_u32 v8, v6, 2, v8")
    a.e(f"v_lshlrev_b32 v8, 7, v8")
    a.e(f"v_lshl_add_u32 v8, v7, 5, v8")
    a.e(f"v_and_b32 v7, 3, v{V_LANE}")
    a.e(f"v_lshl_add_u32 v8, v7, 3, v8")
    a.e(f"v_bfe_u32 v7, v{V_LANE}, 3, 1")
    a.e(f"v_lshlrev_b32 v7, 6, v7")
    a.e(f"v_add_u32 v{V_WDL}, v8, v7")
    a.e(f"v_xor_b32 v7, 64, v7")
    a.e(f"v_add_u32 v{V_WDL+1}, v8, v7")

S_KR = 9
S_RHO = 72
S_ROT = 35
S_WEND = S_WENDR = 64
def wd_groups(rnd):
    ks0, n = WD_K0[rnd], WD_N[rnd]
    lb, wsz = WD_L[rnd]
    out = []
    for q in range(2 * n):
        g = []
        if q == 0:
            g += [f"s_mul_i32 s{S_WDL}, s{S_W}, {wsz}"]
        g += [f"s_add_u32 m0, s{S_WDL}, {lb + q*1024}", "s_nop 0"] if q == 0 else [f"s_add_u32 m0, s{S_WDL}, {lb + q*1024}"]
        if q > 0 or True:
            pass
        g2 = [(f"buffer_load_dwordx4 v{V_WDOFF}, s[{SRD_WD}:{SRD_WD+3}], s{S_WDS} offen lds", f"wd{rnd}"),
              f"s_add_u32 s{S_WDS}, s{S_WDS}, 8192"]
        if q % 2 == 1:
            g2 += [f"s_cmp_ge_u32 s{S_WDS}, s{S_WEND}", f"s_cselect_b32 s{S_KR}, {22*16384}, 0", f"s_sub_u32 s{S_WDS}, s{S_WDS}, s{S_KR}"]
        if q > 0:
            g += ["s_nop 0"]
        out.append(g + g2)
    return out

def wd_tr(rnd):
    ks0, n = WD_K0[rnd], WD_N[rnd]
    lb, wsz = WD_L[rnd]
    out = [f"s_mul_i32 s{S_T0}, s{S_W}, {wsz}", f"s_add_u32 s{S_T0}, s{S_T0}, {lb}",
           f"v_add_u32 v{V_WDA}, s{S_T0}, v{V_WDL}", f"v_add_u32 v{V_WDA+1}, s{S_T0}, v{V_WDL+1}"]
    for k in range(n):
        for t in range(2):
            for h in range(2):
                out.append(f"ds_read_b64_tr_b16 {ar(8*(ks0+k) + 4*t + 2*h, 2)}, v{V_WDA+t} offset:{k*2048 + h*1024}")
    return out


def xt_loads2(a):
    a.e(f"s_and_b32 s{S_T0}, s{S_WG}, 7")
    a.e(f"s_lshr_b32 s{S_T1}, s{S_WG}, 3")
    a.e(f"s_lshl_b32 s{S_T0}, s{S_T0}, 6")
    a.e(f"s_lshl_b32 s{S_T1}, s{S_T1}, 1")
    a.e(f"s_add_u32 s{S_T0}, s{S_T0}, s{S_T1}")
    a.e(f"s_lshl_b32 s{S_T0}, s{S_T0}, 4")
    a.e(f"s_lshl_b32 s{S_T1}, s{S_W}, 19")
    a.e(f"s_add_u32 s{S_T0}, s{S_T0}, s{S_T1}")
    a.e(f"s_add_u32 s{S_T0}, s{S_T0}, {WS_XT}")
    a.e(f"v_lshrrev_b32 v30, 1, v{V_LANE}")
    a.e(f"v_lshlrev_b32 v30, 13, v30")
    a.e(f"v_and_b32 v31, 1, v{V_LANE}")
    a.e(f"v_lshl_add_u32 v30, v31, 4, v30")
    a.e(f"v_add_u32 v30, s{S_T0}, v30")
    a.vm(f"global_load_dwordx4 {vr(V_XT,4)}, v30, s[{P_WS}:{P_WS+1}] sc1", "xt")
    a.e(f"v_add_u32 v30, {32*8192}, v30")
    a.vm(f"global_load_dwordx4 {vr(V_XT+4,4)}, v30, s[{P_WS}:{P_WS+1}] sc1", "xt")

V_UA = 242
def u_write_e(a):
    a.vm_wait("xt")
    a.e(f"v_and_b32 v6, 1, v{V_LANE}")
    a.e(f"v_mul_u32_u24 v6, {UU_CH}, v6")
    a.e(f"v_lshrrev_b32 v7, 1, v{V_LANE}")
    a.e(f"v_lshl_add_u32 v6, v7, 4, v6")
    a.e(f"s_lshl_b32 s{S_T0}, s{S_W}, 10")
    a.e(f"s_add_u32 s{S_T0}, s{S_T0}, {L_UU + 32}")
    a.e(f"v_add_u32 v{V_UA}, s{S_T0}, v6")
    a.e(f"ds_write_b128 v{V_UA}, {vr(V_XT,4)}")
    a.e(f"ds_write_b128 v{V_UA}, {vr(V_XT+4,4)} offset:512")
    lab = a.label("nopad")
    a.e(f"s_cmp_lg_u32 s{S_W}, 0")
    a.e(f"s_cbranch_scc1 {lab}")
    a.e(f"v_lshrrev_b32 v6, 3, v{V_LANE}")
    a.e(f"v_mul_u32_u24 v6, {UU_CH}, v6")
    a.e(f"v_and_b32 v7, 7, v{V_LANE}")
    a.e(f"v_lshl_add_u32 v6, v7, 2, v6")
    a.e(f"v_add_u32 v6, {L_UU}, v6")
    a.e("v_mov_b32 v7, 0")
    a.e(f"s_mov_b64 s[{S_EXEC}:{S_EXEC+1}], exec")
    a.e("s_mov_b64 exec, 0xffff")
    a.e("ds_write_b32 v6, v7")
    a.e("s_mov_b64 exec, 0x7f7f")
    a.e("ds_write_b32 v6, v7 offset:4160")
    a.e(f"s_mov_b64 exec, s[{S_EXEC}:{S_EXEC+1}]")
    a.e(f"{lab}:")

def u_write_o(a):
    a.e(f"ds_read_b32 v6, v{V_UA} offset:16")
    a.e(f"ds_read_b32 v7, v{V_UA} offset:{512+16}")
    for q in range(2):
        X = V_XT + 4*q
        for k in range(3):
            a.e(f"v_alignbit_b32 v{8+4*q+k}, v{X+k+1}, v{X+k}, 16")
    a.e("s_waitcnt lgkmcnt(0)")
    a.e(f"v_alignbit_b32 v11, v6, v{V_XT+3}, 16")
    a.e(f"v_alignbit_b32 v15, v7, v{V_XT+7}, 16")
    a.e(f"ds_write_b128 v{V_UA}, v[8:11] offset:4160")
    a.e(f"ds_write_b128 v{V_UA}, v[12:15] offset:{4160+512}")
    lab = a.label("noo7")
    a.e(f"s_cmp_lg_u32 s{S_W}, 0")
    a.e(f"s_cbranch_scc1 {lab}")
    a.e(f"v_lshlrev_b32 v6, 16, v{V_XT}")
    a.e(f"s_mov_b64 s[{S_EXEC}:{S_EXEC+1}], exec")
    a.e("s_mov_b64 exec, 3")
    a.e(f"ds_write_b32 v{V_UA}, v6 offset:{4160 - 4}")
    a.e(f"s_mov_b64 exec, s[{S_EXEC}:{S_EXEC+1}]")
    a.e(f"{lab}:")


KS = 176
L_KV2 = 2 * SLOT
L_KX2 = L_KV2 + 2 * KV_CH
L_KR2, L_UU2, L_CX2 = 0, 9216, 139776
V_KWA = 62

def kgen_shadow():
    out = []
    e = out.append
    P = V_P
    AL, BE, CO = 10, 11, 12
    Z1, Z2, Z4, Z8, Z256, Z512 = 14, 16, 18, 20, 22, 24
    A0, A1, B0, B1, C0, C1, CB, D0, D1, DB0, DB1 = 26, 28, 30, 32, 34, 36, 38, 40, 42, 44, 46
    T = 48
    for q in range(8):
        e(f"v_lshlrev_b32 v{P+q}, 16, v{P+q}")
    e(f"v_mul_f32 v58, 0x3fb8aa3b, v{P+6}")
    e("v_exp_f32 v58, v58")
    e(f"v_mov_b32 v{A0}, 1.0")
    e(f"v_cvt_pk_bf16_f32 v58, v58, v58")
    e(f"v_mov_b32 v{A0+1}, 0")
    e(f"v_lshlrev_b32 v58, 16, v58")
    e(f"v_mul_f32 v{AL}, v58, v{P}")
    e(f"v_mul_f32 v{BE}, v58, v{P+1}")
    e(f"v_mul_f32 v56, v58, v{P+2}")
    e(f"v_mul_f32 v57, v58, v{P+3}")
    e(f"v_mul_f32 v{AL}, 0x3fb8aa3b, v{AL}")
    e(f"v_mul_f32 v{BE}, 0.15915494, v{BE}")
    e(f"v_mul_f32 v{CO}, v{P+4}, v56")
    e(f"v_mul_f32 v{CO+1}, v{P+4}, v57")
    e(f"v_fma_f32 v{CO}, -v{P+5}, v57, v{CO}")
    e(f"v_fma_f32 v{CO+1}, v{P+5}, v56, v{CO+1}")
    items = [(Z1, 1, T), (Z8, 8, T+2), (Z256, 256, T+4), (B0, 128, T+6)]
    for d, p, t in items:
        e(f"v_mul_f32 v{t}, {fhex(float(p))}, v{AL}")
        e(f"v_mul_f32 v{t+1}, {fhex(float(p))}, v{BE}")
    for d, p, t in items:
        e(f"v_exp_f32 v{t}, v{t}")
        e(f"v_fract_f32 v{t+1}, v{t+1}")
    for d, p, t in items:
        e(f"v_cos_f32 v{d}, v{t+1}")
        e(f"v_sin_f32 v{d+1}, v{t+1}")
    e("v_nop")
    for d, p, t in items:
        e(f"v_mul_f32 v{d}, v{d}, v{t}")
        e(f"v_mul_f32 v{d+1}, v{d+1}, v{t}")
    def cm(d, x, y):
        return [f"v_mul_f32 v{d}, v{x}, v{y}", f"v_mul_f32 v{d+1}, v{x}, v{y+1}",
                f"v_fma_f32 v{d}, -v{x+1}, v{y+1}, v{d}", f"v_fma_f32 v{d+1}, v{x+1}, v{y}, v{d+1}"]
    pk = [0]
    def put(vec, pr):
        r = 56 + (pk[0] % 2); pk[0] += 1
        return [f"v_cvt_pk_bf16_f32 v{r}, v{pr}, {'-' if vec < 32 else ''}v{pr+1}", f"v_accvgpr_write_b32 a{KS+vec}, v{r}"]
    for d, x, y in ((Z2, Z1, Z1), (Z512, Z256, Z256), (CB, CO, Z256), (Z4, Z2, Z2), (DB0, CO, Z512)):
        out += cm(d, x, y)
    sA = [('p', 32, A0)]
    cur, oth = A0, A1
    for b in range(1, 16):
        sA += [('m', oth, cur, Z8), ('p', 32 + b, oth)]; cur, oth = oth, cur
    sB = [('p', 48, B0)]
    cur, oth = B0, B1
    for b in range(17, 32):
        sB += [('m', oth, cur, Z8), ('p', 32 + b, oth)]; cur, oth = oth, cur
    sC = [('p', 0, CO)]
    cur = CO
    for ee in range(1, 8):
        d = (C0, C1)[ee % 2]; sC += [('m', d, cur, Z1), ('p', ee, d)]; cur = d
    sC += [('p', 8, CB), ('m', C0, CB, Z2), ('p', 9, C0), ('m', C1, C0, Z2), ('p', 10, C1), ('p', 12, C1),
           ('m', C0, C1, Z2), ('p', 13, C0), ('m', C1, C0, Z2), ('p', 14, C1)]
    sD = [('p', 16, DB0), ('m', D0, DB0, Z4), ('p', 17, D0), ('p', 20, D0), ('m', D1, D0, Z4), ('p', 21, D1),
          ('m', DB1, DB0, Z256), ('p', 18, DB1), ('m', D0, DB1, Z4), ('p', 19, D0), ('p', 22, D0), ('m', D1, D0, Z4), ('p', 23, D1)]
    prev, nxt = DB1, DB0
    for q in range(4):
        sD += [('m', nxt, prev, Z256), ('p', 24 + q, nxt), ('m', (D0, D1)[q % 2], nxt, Z8), ('p', 28 + q, (D0, D1)[q % 2])]
        prev, nxt = nxt, prev
    seqs = [sA, sB, sC, sD]
    pos = [0]*4
    while any(pos[q] < len(seqs[q]) for q in range(4)):
        for q in range(4):
            if pos[q] < len(seqs[q]):
                st = seqs[q][pos[q]]; pos[q] += 1
                out += put(st[1], st[2]) if st[0] == 'p' else cm(st[1], st[2], st[3])
    return out

KV_VECS = [v for v in range(64) if v not in (11, 15)]
def kv_addr(a):
    a.e(f"s_mul_i32 s{S_T0}, s{S_CH}, {KV_CH}")
    a.e(f"s_lshl_b32 s{S_T1}, s{S_MH}, 8")
    a.e(f"s_add_u32 s{S_T0}, s{S_T0}, s{S_T1}")
    a.e(f"s_add_u32 s{S_T0}, s{S_T0}, {L_KV2}")
    a.e(f"v_lshl_add_u32 v{V_KWA}, v{V_LANE}, 2, s{S_T0}")
def kv_writes():
    return [[f"ds_write_b32 v{V_KWA}, a{KS+v} offset:{v*528}"] for v in KV_VECS]


def kgen5_mfma(a, pre_b, post_b, extra_reads):
    a.e(f"v_and_b32 v2, 31, v{V_LANE}")
    a.e(f"v_mul_u32_u24 v2, 528, v2")
    a.e(f"v_lshrrev_b32 v3, 5, v{V_LANE}")
    a.e(f"v_lshl_add_u32 v2, v3, 4, v2")
    a.e(f"s_mul_i32 s{S_T0}, s{S_CH}, {KV_CH}")
    a.e(f"s_lshl_b32 s{S_T1}, s{S_MH}, 8")
    a.e(f"s_add_u32 s{S_T0}, s{S_T0}, s{S_T1}")
    a.e(f"s_add_u32 s{S_T0}, s{S_T0}, {L_KV2}")
    a.e(f"v_add_u32 v2, s{S_T0}, v2")
    KD = 64
    FA, FB = 80, 112
    a.e("s_waitcnt lgkmcnt(0)")
    for k in range(8):
        a.e(f"ds_read_b128 {vr(FA+4*k,4)}, v2 offset:{k*32}")
        a.e(f"ds_read_b128 {vr(FB+4*k,4)}, v2 offset:{32*528 + k*32}")
    a.e(f"s_lshl_b32 s{S_T0}, s{S_W}, 11")
    a.e(f"s_add_u32 s{S_T0}, s{S_T0}, {L_KX2}")
    a.e(f"v_lshl_add_u32 v2, v{V_LANE}, 4, s{S_T0}")
    a.e(f"s_xor_b32 s{S_T1}, s{S_W}, 1")
    a.e(f"s_lshl_b32 s{S_T1}, s{S_T1}, 11")
    a.e(f"s_add_u32 s{S_T1}, s{S_T1}, {L_KX2}")
    a.e(f"v_lshl_add_u32 v3, v{V_LANE}, 4, s{S_T1}")
    for k in range(8):
        a.e(f"s_waitcnt lgkmcnt({14 - 2*k})")
        a.e(f"v_mfma_f32_32x32x16_bf16 {vr(KD,16)}, {vr(FA+4*k,4)}, {vr(FB+4*k,4)}, {'0' if k == 0 else vr(KD,16)}")
    for x in extra_reads:
        emit_group(a, x if isinstance(x, list) or callable(x) else [x])
    a.e(f"s_mul_i32 s{S_T0}, s{S_CH}, {KR_CH}")
    a.e(f"s_add_u32 s{S_T0}, s{S_T0}, {L_KR2 + 504}")
    a.e(f"v_and_b32 v4, 31, v{V_LANE}")
    a.e(f"v_lshlrev_b32 v5, 4, v4")
    a.e(f"v_lshrrev_b32 v6, 5, v{V_LANE}")
    a.e(f"v_lshl_add_u32 v5, v6, 3, v5")
    a.e(f"v_sub_u32 v5, s{S_T0}, v5")
    a.e(f"s_add_u32 s{S_T2}, s{S_T0}, {4096 - 504}")
    a.e(f"v_lshl_add_u32 v4, v{V_LANE}, 4, s{S_T2}")
    lab1, lab2 = a.label("kx1"), a.label("kx2")
    a.e(f"s_cmp_eq_u32 s{S_MH}, 0")
    a.e(f"s_cbranch_scc1 {lab1}")
    a.e(f"ds_write_b128 v2, {vr(KD,4)}")
    a.e(f"ds_write_b128 v2, {vr(KD+4,4)} offset:1024")
    for q in range(4):
        a.e(f"v_pk_mul_f32 {vr(KD+2*q,2)}, {vr(KD+8+2*q,2)}, 1.0 op_sel_hi:[1,0]")
    a.e(f"s_branch {lab2}")
    a.e(f"{lab1}:")
    a.e(f"ds_write_b128 v2, {vr(KD+8,4)}")
    a.e(f"ds_write_b128 v2, {vr(KD+12,4)} offset:1024")
    a.e(f"{lab2}:")
    stamp(a, "km0")
    pre_b(a)
    stamp(a, "km1")
    a.e("s_waitcnt lgkmcnt(0)")
    a.e("s_barrier")
    a.e(f"ds_read_b128 {vr(80,4)}, v3")
    a.e(f"ds_read_b128 {vr(84,4)}, v3 offset:1024")
    stamp(a, "km2")
    post_b(a)
    a.e("s_waitcnt lgkmcnt(0)")
    for q in range(4):
        a.e(f"v_pk_add_f32 {vr(KD+2*q,2)}, {vr(KD+2*q,2)}, {vr(80+2*q,2)}")
    D = KD
    lab1, lab2 = a.label("ex1"), a.label("ex2")
    a.e(f"s_cmp_eq_u32 s{S_MH}, 0")
    a.e(f"s_cbranch_scc0 {lab1}")
    a.e(f"v_cvt_pk_bf16_f32 v8, v{D+3}, v{D+2}")
    a.e(f"v_cvt_pk_bf16_f32 v9, v{D+1}, v{D}")
    a.e(f"v_cvt_pk_bf16_f32 v10, v{D+6}, v{D+5}")
    a.e(f"v_cvt_pk_bf16_f32 v11, v{D+4}, v{D+4}")
    a.e("ds_write_b64 v5, v[8:9] offset:3584")
    a.e("ds_write_b64 v5, v[10:11] offset:3072")
    for q in range(4):
        a.e(f"v_mov_b32 v{12+q}, 0")
    a.e(f"s_mov_b64 s[{S_EXEC}:{S_EXEC+1}], exec")
    a.e("s_mov_b64 exec, 0x3fffffff")
    a.e("ds_write_b128 v4, v[12:15]")
    a.e(f"s_mov_b64 exec, s[{S_EXEC}:{S_EXEC+1}]")
    a.e(f"s_branch {lab2}")
    a.e(f"{lab1}:")
    a.e(f"v_cmp_le_u32 vcc, 32, v{V_LANE}")
    a.e(f"v_and_b32 v7, 1, v{V_LANE}")
    a.e(f"v_cmp_eq_u32 s[{S_TMP}:{S_TMP+1}], 1, v7")
    for q in range(4):
        a.e(f"v_mov_b32 v{16+2*q}, v{D+4+q}")
        a.e(f"v_mov_b32 v{17+2*q}, v{D+4+q}")
    for q in range(2):
        A_, B_ = D + 2*q, D + 2*q + 1
        a.e(f"v_cndmask_b32 v12, v{A_}, v{B_}, vcc")
        a.e(f"v_cvt_pk_bf16_f32 v{8+2*q+0}, v{B_}, v12")
        a.e(f"v_cvt_pk_bf16_f32 v{8+2*q+1}, v{A_}, v{A_}")
    for q in range(4):
        a.e(f"v_permlane32_swap_b32 v{16+2*q}, v{17+2*q}")
    a.e("ds_write_b64 v5, v[8:9] offset:2560")
    a.e("ds_write_b64 v5, v[10:11] offset:2048")
    for q in range(4):
        a.e(f"v_cndmask_b32 v{16+2*q}, v{16+2*q}, v{D+4+q}, s[{S_TMP}:{S_TMP+1}]")
    for q in range(4):
        a.e(f"v_cvt_pk_bf16_f32 v{24+2*q}, v{D+4+q}, v{D+4+q}")
        a.e(f"v_cvt_pk_bf16_f32 v{25+2*q}, v{D+4+q}, v{16+2*q}")
    for q in range(4):
        a.e(f"ds_write_b64 v5, {vr(24+2*q,2)} offset:{1536 - 512*q}")
    a.e(f"{lab2}:")


V_XE = 240 + 3
def xt_extra(a):
    a.e(f"v_and_b32 v31, 1, v{V_LANE}")
    a.e(f"s_add_u32 s{S_T0}, s{S_T0}, {64*8192}")
    a.e(f"v_lshl_add_u32 v31, v31, 4, s{S_T0}")
    a.vm(f"global_load_dword v242, v31, s[{P_WS}:{P_WS+1}] sc1", "xt")

def u_prep(a):
    a.vm_wait("xt")
    a.e(f"v_add_u32 v6, 2, v{V_LANE}")
    a.e(f"v_and_b32 v6, 63, v6")
    a.e(f"v_lshlrev_b32 v6, 2, v6")
    a.e(f"ds_bpermute_b32 v7, v6, v{V_XT}")
    a.e(f"ds_bpermute_b32 v8, v6, v{V_XT+4}")
    for q in range(2):
        X = V_XT + 4*q
        for k in range(3):
            a.e(f"v_alignbit_b32 v{144+4*q+k}, v{X+k+1}, v{X+k}, 16")
    a.e(f"v_cmp_gt_u32 vcc, 62, v{V_LANE}")
    a.e("s_waitcnt lgkmcnt(0)")
    a.e(f"v_cndmask_b32 v7, v8, v7, vcc")
    a.e(f"v_cndmask_b32 v8, v242, v8, vcc")
    a.e(f"v_alignbit_b32 v147, v7, v{V_XT+3}, 16")
    a.e(f"v_alignbit_b32 v151, v8, v{V_XT+7}, 16")

def u_write(a):
    a.e(f"v_and_b32 v6, 1, v{V_LANE}")
    a.e(f"v_mul_u32_u24 v6, {UU_CH}, v6")
    a.e(f"v_lshrrev_b32 v7, 1, v{V_LANE}")
    a.e(f"v_lshl_add_u32 v6, v7, 4, v6")
    a.e(f"s_lshl_b32 s{S_T0}, s{S_W}, 10")
    a.e(f"s_add_u32 s{S_T0}, s{S_T0}, {L_UU2 + 32}")
    a.e(f"v_add_u32 v6, s{S_T0}, v6")
    a.e(f"ds_write_b128 v6, {vr(V_XT,4)}")
    a.e(f"ds_write_b128 v6, {vr(V_XT+4,4)} offset:512")
    a.e(f"ds_write_b128 v6, v[144:147] offset:4160")
    a.e(f"ds_write_b128 v6, v[148:151] offset:{4160+512}")
    lab = a.label("nopad")
    a.e(f"s_cmp_lg_u32 s{S_W}, 0")
    a.e(f"s_cbranch_scc1 {lab}")
    a.e(f"v_lshlrev_b32 v8, 16, v{V_XT}")
    a.e(f"v_lshrrev_b32 v9, 3, v{V_LANE}")
    a.e(f"v_mul_u32_u24 v9, {UU_CH}, v9")
    a.e(f"v_and_b32 v7, 7, v{V_LANE}")
    a.e(f"v_lshl_add_u32 v9, v7, 2, v9")
    a.e(f"v_add_u32 v9, {L_UU2}, v9")
    a.e("v_mov_b32 v7, 0")
    a.e(f"s_mov_b64 s[{S_EXEC}:{S_EXEC+1}], exec")
    a.e("s_mov_b64 exec, 0xffff")
    a.e("ds_write_b32 v9, v7")
    a.e("s_mov_b64 exec, 0x7f7f")
    a.e("ds_write_b32 v9, v7 offset:4160")
    a.e("s_mov_b64 exec, 3")
    a.e(f"ds_write_b32 v6, v8 offset:{4160 - 4}")
    a.e(f"s_mov_b64 exec, s[{S_EXEC}:{S_EXEC+1}]")
    a.e(f"{lab}:")


def conv_addr(a):
    a.e(f"v_and_b32 v2, 15, v{V_LANE}")
    a.e(f"v_lshrrev_b32 v3, 4, v{V_LANE}")
    a.e(f"v_and_b32 v4, 1, v3")
    a.e(f"v_lshrrev_b32 v3, 1, v3")
    a.e(f"v_lshlrev_b32 v5, 5, v3")
    a.e(f"v_lshlrev_b32 v6, 4, v4")
    a.e(f"v_sub_u32 v5, v5, v6")
    a.e(f"s_lshl_b32 s{S_T2}, s{S_MH}, 6")
    a.e(f"s_mul_i32 s{S_T0}, s{S_CH}, {KR_CH}")
    a.e(f"s_add_u32 s{S_T0}, s{S_T0}, {L_KR2 + 496}")
    a.e(f"s_add_u32 s{S_T0}, s{S_T0}, s{S_T2}")
    a.e(f"v_lshlrev_b32 v6, 5, v2")
    a.e(f"v_sub_u32 v6, v5, v6")
    a.e(f"v_add_u32 v{CVB}, s{S_T0}, v6")
    a.e(f"s_mul_i32 s{S_T0}, s{S_CH}, {UU_CH}")
    a.e(f"s_add_u32 s{S_T0}, s{S_T0}, {L_UU2}")
    a.e(f"s_add_u32 s{S_T0}, s{S_T0}, s{S_T2}")
    a.e(f"v_and_b32 v6, 1, v2")
    a.e(f"v_cmp_eq_u32 vcc, 1, v6")
    a.e(f"v_mov_b32 v6, {4160+16}")
    a.e(f"v_lshl_add_u32 v7, v2, 1, v5")
    a.e(f"v_mov_b32 v3, 18")
    a.e(f"v_cndmask_b32 v6, v6, v3, vcc")
    a.e(f"v_add_u32 v7, v7, v6")
    a.e(f"v_add_u32 v{CVA}, s{S_T0}, v7")
    for al in range(1, 8):
        a.e(f"v_add_u32 v{CVA+al}, {512*al}, v{CVA}")

CVA, CVB = 44, 52

def conv_main3(a, fillers, late):
    a.e("s_waitcnt lgkmcnt(0)")
    a.e("s_barrier")
    def reads(st, q):
        r = []
        for al in range(8):
            r.append(f"ds_read2_b32 {vr(CV_A[st]+4*al,2)}, v{CVA+al} offset0:{32*q} offset1:{32*q+1}")
            r.append(f"ds_read2_b32 {vr(CV_A[st]+4*al+2,2)}, v{CVA+al} offset0:{32*q+2} offset1:{32*q+3}")
            r.append(f"ds_read_b128 {vr(CV_B[st]+4*al,4)}, v{CVB} offset:{512*(7-al) + 128*q}")
        return r
    r0 = reads(0, 0)
    order = [x for x in r0 if "b128" in x] + [x for x in r0 if "b128" not in x]
    for x in order:
        a.e(x)
    st = 0
    fill = list(fillers)
    for q in range(4):
        a.e("s_waitcnt lgkmcnt(0)" if q else "s_waitcnt lgkmcnt(14)")
        mf = []
        for al in range(8):
            for be in range(8 - al):
                I = al + be
                c = "0" if (q == 0 and al == 0) else vr(CV_ACC + 4*I, 4)
                mf.append(f"v_mfma_f32_16x16x32_bf16 {vr(CV_ACC+4*I,4)}, {vr(CV_A[st]+4*al,4)}, {vr(CV_B[st]+4*be,4)}, {c}")
        slots = {i: [] for i in range(36)}
        if q == 0:
            slots[7].append("s_waitcnt lgkmcnt(0)")
        if q < 3:
            rd = reads(st ^ 1, q + 1)
            rd = [x for x in rd if "b128" in x] + [x for x in rd if "b128" not in x]
            base = 8 if q == 0 else 0
            for k, x in enumerate(rd):
                slots[base + k].append(x)
        nf = (len(fill) + (2 - q)) // (3 - q) if q < 3 else len(fill)
        for k in range(nf):
            slots[min(35, 1 + 4*k)].append(fill.pop(0))
        for k, it in enumerate(late.get(q, [])):
            slots[min(35, 2 + 2*k)].append(it)
        stamp(a, f"cv{q}")
        sched(a, mf, slots)
        st ^= 1


def conv_finish3(a):
    a.e(f"s_lshl_b32 s{S_T0}, s{S_W}, 12")
    a.e(f"s_add_u32 s{S_T0}, s{S_T0}, {L_CX2}")
    a.e(f"v_lshl_add_u32 v2, v{V_LANE}, 4, s{S_T0}")
    a.e(f"s_xor_b32 s{S_T1}, s{S_W}, 1")
    a.e(f"s_lshl_b32 s{S_T1}, s{S_T1}, 12")
    a.e(f"s_add_u32 s{S_T1}, s{S_T1}, {L_CX2}")
    a.e(f"v_lshl_add_u32 v3, v{V_LANE}, 4, s{S_T1}")
    a.e(f"s_mul_i32 s{S_T0}, s{S_CH}, {UU_CH}")
    a.e(f"s_add_u32 s{S_T0}, s{S_T0}, {L_UU2 + 32}")
    a.e(f"s_lshl_b32 s{S_T1}, s{S_MH}, 11")
    a.e(f"s_add_u32 s{S_T0}, s{S_T0}, s{S_T1}")
    a.e(f"v_and_b32 v4, 15, v{V_LANE}")
    a.e(f"v_lshrrev_b32 v5, 4, v{V_LANE}")
    a.e(f"v_lshlrev_b32 v6, 5, v4")
    a.e(f"v_lshl_add_u32 v6, v5, 3, v6")
    a.e(f"v_add_u32 v6, s{S_T0}, v6")
    lab1, lab2 = a.label("cx1"), a.label("cx2")
    a.e(f"s_cmp_eq_u32 s{S_MH}, 0")
    a.e(f"s_cbranch_scc1 {lab1}")
    for k in range(4):
        a.e(f"ds_write_b128 v2, {vr(CV_ACC+4*k,4)} offset:{1024*k}")
    for q in range(8):
        a.e(f"v_pk_mul_f32 {vr(CV_ACC+2*q,2)}, {vr(CV_ACC+16+2*q,2)}, 1.0 op_sel_hi:[1,0]")
    a.e(f"s_branch {lab2}")
    a.e(f"{lab1}:")
    for k in range(4):
        a.e(f"ds_write_b128 v2, {vr(CV_ACC+16+4*k,4)} offset:{1024*k}")
    a.e(f"{lab2}:")
    for k in range(4):
        a.e(f"ds_read_b64 {vr(40+2*k,2)}, v6 offset:{512*k}")
    a.e(f"s_lshl_b32 s{S_T0}, s{S_MH}, 20")
    a.e(f"s_lshl_b32 s{S_T1}, s{S_D}, 7")
    a.e(f"s_add_u32 s{S_T0}, s{S_T0}, s{S_T1}")
    a.e(f"s_add_u32 s{S_T0}, s{S_T0}, {WS_Y}")
    a.e(f"v_lshrrev_b32 v7, 2, v4")
    a.e(f"v_lshlrev_b32 v7, 16, v7")
    a.e(f"v_and_b32 v8, 3, v4")
    a.e(f"v_lshl_add_u32 v7, v8, 5, v7")
    a.e(f"v_lshl_add_u32 v7, v5, 3, v7")
    a.e(f"v_add_u32 v7, s{S_T0}, v7")
    a.e("s_waitcnt lgkmcnt(0)")
    a.e("s_barrier")
    for k in range(4):
        a.e(f"ds_read_b128 {vr(64+4*k,4)}, v3 offset:{1024*k}")
    DS = V_P + 6
    U = 16
    for k in range(4):
        a.e(f"v_lshlrev_b32 v{U+4*k}, 16, v{40+2*k}")
        a.e(f"v_and_b32 v{U+4*k+1}, 0xffff0000, v{40+2*k}")
        a.e(f"v_lshlrev_b32 v{U+4*k+2}, 16, v{41+2*k}")
        a.e(f"v_and_b32 v{U+4*k+3}, 0xffff0000, v{41+2*k}")
    for k in range(8):
        a.e(f"v_pk_fma_f32 {vr(CV_ACC+2*k,2)}, {vr(U+2*k,2)}, {vr(DS,2)}, {vr(CV_ACC+2*k,2)} op_sel:[0,1,0] op_sel_hi:[1,1,1]")
    a.e("s_waitcnt lgkmcnt(0)")
    for k in range(8):
        a.e(f"v_pk_add_f32 {vr(CV_ACC+2*k,2)}, {vr(CV_ACC+2*k,2)}, {vr(64+2*k,2)}")
    for k in range(8):
        a.e(f"v_cvt_pk_bf16_f32 v{40+k}, v{CV_ACC+2*k}, v{CV_ACC+2*k+1}")
    for k in range(4):
        a.vm(f"global_store_dwordx2 v7, {vr(40+2*k,2)}, s[{P_WS}:{P_WS+1}] sc1", "pubY")
        if k < 3:
            a.e(f"v_add_u32 v7, {4*65536}, v7")


def h_setup3(a):
    mk_srd(a, SRD_X, P_WS, 16 << 20)
    a.e(f"s_lshl_b32 s{S_T0}, s{S_I}, 2")
    a.e(f"s_lshl_b32 s{S_T1}, s{S_TH}, 1")
    a.e(f"s_add_u32 s{S_T0}, s{S_T0}, s{S_T1}")
    a.e(f"s_mul_i32 s{S_T0}, s{S_T0}, {86*1024}")
    a.e(f"s_add_u32 s{S_T0}, s{S_T0}, {WS_H}")
    a.e(f"v_lshl_add_u32 v{V_HA}, v{V_LANE}, 4, s{S_T0}")
    a.e(f"v_add_u32 v{V_HA+1}, {86*1024}, v{V_HA}")
    a.e(f"s_mul_i32 s66, s{S_W}, 22")

def h_load3(q):
    R = G2_H + 8 * (q % G2_RING)
    return [f"s_add_u32 s67, s{S_ROT}, {q}", "s_cmp_ge_u32 s67, 22", f"s_cselect_b32 s{S_KR}, 22, 0", f"s_sub_u32 s67, s67, s{S_KR}",
            "s_add_u32 s67, s67, s66", "s_min_u32 s67, s67, 85", "s_lshl_b32 s67, s67, 10",
            (f"buffer_load_dwordx4 {vr(R,4)}, v{V_HA}, s[{SRD_X}:{SRD_X+3}], s67 offen sc1", f"h{q}"),
            (f"buffer_load_dwordx4 {vr(R+4,4)}, v{V_HA+1}, s[{SRD_X}:{SRD_X+3}], s67 offen sc1", f"h{q}")]

def g2_first(a, n0):
    for q in range(n0):
        emit_group(a, h_load3(q))

def g2_main3(a, hooks, n0, pre):
    stamp(a, "g2start")
    la = OPT.get("g2la", 12)
    nxt = n0
    for x in pre:
        emit_group(a, x if (isinstance(x, list) or callable(x)) else [x])
    stamp(a, "g2issued")
    for q in range(22):
        a.vm_wait(f"h{q}")
        if q == 0:
            a.e("s_waitcnt lgkmcnt(0)")
        stamp(a, f"g2q{q}")
        R = G2_H + 8 * (q % G2_RING)
        mf = []
        for t in range(2):
            for tt in range(2):
                c = "0" if q == 0 else vr(acc2(t, tt), 16)
                mf.append(f"v_mfma_f32_32x32x16_bf16 {vr(acc2(t,tt),16)}, {ar(8*q+4*t,4)}, {vr(R+4*tt,4)}, {c}")
        slots = {i: [] for i in range(4)}
        k = 0
        while nxt < 22 and nxt - q <= la and k < 2 and nxt < q + G2_RING:
            slots[1 if k == 0 else 3].append(h_load3(nxt)); nxt += 1; k += 1
        for hk in hooks.get(q, []):
            slots[0].append(hk)
        sched(a, mf, slots)


V_FA = 240
def final_prep(a):
    a.e(f"v_lshlrev_b32 v240, 4, v{V_LANE}")
    a.e(f"v_lshrrev_b32 v3, 3, v0")
    a.e(f"v_mul_u32_u24 v3, 192, v3")
    a.e(f"v_and_b32 v4, 7, v0")
    a.e(f"v_lshl_add_u32 v241, v4, 4, v3")
    a.e(f"v_lshrrev_b32 v4, 4, v{V_LANE}")
    a.e(f"v_and_b32 v5, 1, v4")
    a.e(f"v_lshrrev_b32 v4, 1, v4")
    a.e(f"v_bfe_u32 v6, v{V_LANE}, 2, 2")
    a.e(f"v_lshl_add_u32 v6, v4, 2, v6")
    a.e(f"v_mul_u32_u24 v6, 192, v6")
    a.e(f"v_lshl_add_u32 v6, v5, 5, v6")
    a.e(f"v_and_b32 v5, 3, v{V_LANE}")
    a.e(f"v_lshl_add_u32 v6, v5, 3, v6")
    a.e(f"s_lshr_b32 s{S_T0}, s{S_W}, 1")
    a.e(f"s_mul_i32 s{S_T0}, s{S_T0}, {32*192}")
    a.e(f"s_and_b32 s{S_T1}, s{S_W}, 1")
    a.e(f"s_lshl_b32 s{S_T1}, s{S_T1}, 6")
    a.e(f"s_add_u32 s{S_T0}, s{S_T0}, s{S_T1}")
    a.e(f"s_add_u32 s{S_T0}, s{S_T0}, {L_YB}")
    a.e(f"v_add_u32 v245, s{S_T0}, v6")
    a.e(f"s_mul_i32 s{S_T0}, s{S_W}, {3*4096}")
    a.e(f"s_add_u32 s{S_T0}, s{S_T0}, {L_RED}")
    a.e(f"v_add_u32 v246, s{S_T0}, v240")

def final3(a):
    end = a.label("redend")
    labs = [a.label("redw") for _ in range(4)]
    for w in range(1, 4):
        a.e(f"s_cmp_eq_u32 s{S_W}, {w}")
        a.e(f"s_cbranch_scc1 {labs[w]}")
    for w in range(4):
        a.e(f"{labs[w]}:")
        a.e("s_nop 9")
        for o in range(4):
            if o == w: continue
            slot = (w - o - 1) & 3
            for q in range(4):
                a.e(f"ds_write_b128 v240, {vr(G2_ACC+16*o+4*q,4)} offset:{L_RED + o*3*4096 + slot*4096 + 1024*q}")
        for q in range(8):
            a.e(f"v_pk_mul_f32 {vr(24+2*q,2)}, {vr(G2_ACC+16*w+2*q,2)}, 1.0 op_sel_hi:[1,0]")
        if w < 3:
            a.e(f"s_branch {end}")
    a.e(f"{end}:")
    a.vm_wait("fy")
    stamp(a, "fy")
    a.e(f"ds_write_b128 v241, v[16:19] offset:{L_YB}")
    a.e(f"ds_write_b128 v241, v[20:23] offset:{L_YB + 32*192}")
    a.vm_wait("fx")
    for q in range(8):
        a.e(f"v_lshlrev_b32 v{112+2*q}, 16, v{8+q}")
        a.e(f"v_and_b32 v{113+2*q}, 0xffff0000, v{8+q}")
    for q in range(8):
        a.e(f"v_pk_add_f32 {vr(24+2*q,2)}, {vr(24+2*q,2)}, {vr(112+2*q,2)}")
    stamp(a, "f0")
    a.e("s_waitcnt lgkmcnt(0)")
    a.e("s_barrier")
    stamp(a, "f2")
    for q in range(4):
        a.e(f"ds_read_b64_tr_b16 {vr(16+2*q,2)}, v245 offset:{1536*q}")
    for sl in range(3):
        for q in range(4):
            a.e(f"ds_read_b128 {vr(64+16*sl+4*q,4)}, v246 offset:{4096*sl + 1024*q}")
    a.e(f"v_lshrrev_b32 v3, 5, v{V_LANE}")
    a.e(f"v_lshl_add_u32 v251, v3, 3, v251")
    a.e("s_waitcnt lgkmcnt(12)")
    for q in range(8):
        a.e(f"v_lshlrev_b32 v{112+2*q}, 16, v{16+q}")
        a.e(f"v_and_b32 v{113+2*q}, 0xffff0000, v{16+q}")
    for q in range(8):
        a.e(f"v_pk_add_f32 {vr(24+2*q,2)}, {vr(24+2*q,2)}, {vr(112+2*q,2)}")
    for sl in range(3):
        a.e(f"s_waitcnt lgkmcnt({8 - 4*sl})")
        for q in range(8):
            a.e(f"v_pk_add_f32 {vr(24+2*q,2)}, {vr(24+2*q,2)}, {vr(64+16*sl+2*q,2)}")
    for q in range(8):
        a.e(f"v_cvt_pk_bf16_f32 v{8+q}, v{24+2*q}, v{25+2*q}")
    a.e("s_nop 1")
    for p in range(2):
        a.e(f"v_permlane32_swap_b32 v{8+4*p}, v{10+4*p}")
        a.e(f"v_permlane32_swap_b32 v{9+4*p}, v{11+4*p}")
    fl = "sc1" if OPT.get("outsc1") else ("nt" if OPT.get("outnt", 1) else "")
    for p in range(2):
        a.vm(f"global_store_dwordx4 v251, {vr(8+4*p,4)}, s[{P_OUT}:{P_OUT+1}] offset:{32*p} {fl}", "out")


def tlb_touch(a):
    lab = a.label("notlb")
    a.e(f"s_cmp_lg_u32 s{S_W}, {OPT.get('tlbwave', 3)}")
    a.e(f"s_cbranch_scc1 {lab}")
    a.e(f"s_mov_b64 s[{S_EXEC}:{S_EXEC+1}], exec")
    a.e("s_mov_b64 exec, 0xff")
    a.e(f"v_lshlrev_b32 v253, 21, v{V_LANE}")
    a.e(f"global_load_dword v252, v253, s[{P_WS}:{P_WS+1}]")
    a.e("s_mov_b64 exec, 1")
    a.e("v_mov_b32 v253, 0")
    for p in (P_ARE, P_AIM, P_BRE, P_BIM, P_CRE, P_CIM, P_LDT, P_DSK, P_WD, P_OUT):
        a.e(f"global_load_dword v252, v253, s[{p}:{p+1}]")
    a.e(f"s_mov_b64 exec, s[{S_EXEC}:{S_EXEC+1}]")
    a.e(f"{lab}:")

def kgen_loads_late(a):
    kgen_loads(a)

def wd_touch(a):
    a.e(f"s_mul_i32 s{S_T0}, s{S_WG}, 5504")
    a.e(f"v_lshl_add_u32 v2, v0, 4, s{S_T0}")
    mk_srd(a, SRD_WD, P_WD, 1376 * 1024)
    a.vm(f"buffer_load_dwordx4 v[252:255], v2, s[{SRD_WD}:{SRD_WD+3}], 0 offen", "pf")
    a.e(f"v_add_u32 v2, 4096, v2")
    a.e(f"s_mov_b64 s[{S_EXEC}:{S_EXEC+1}], exec")
    a.e(f"v_cmp_gt_u32 vcc, 96, v0")
    a.e(f"s_and_b64 exec, exec, vcc")
    lab = a.label("wt")
    a.e(f"s_cbranch_execz {lab}")
    a.e(f"buffer_load_dwordx4 v[252:255], v2, s[{SRD_WD}:{SRD_WD+3}], 0 offen")
    a.e(f"{lab}:")
    a.e(f"s_mov_b64 exec, s[{S_EXEC}:{S_EXEC+1}]")


def build(a):
    entry(a)
    stamp(a, 0, real=True)
    stamp(a, 1)
    if OPT.get("delay0"):
        a.e(f"s_mov_b32 s{S_T0}, 0")
        a.e("L_delay0:")
        for q in range(16): a.e(f"v_fma_f32 v{200+q}, v{200+q}, v{200+q}, v{200+q}")
        a.e(f"s_add_u32 s{S_T0}, s{S_T0}, 1")
        a.e(f"s_cmp_lt_u32 s{S_T0}, {OPT['delay0']}")
        a.e("s_cbranch_scc1 L_delay0")
    a.e("s_waitcnt lgkmcnt(0)")
    stamp(a, "ptr")
    ln_loads2(a)
    epoch_load(a)
    g1_setup_x(a)
    st0 = dma_groups(0, "st0")
    for g in st0[:4]:
        emit_group(a, g)
    stamp(a, "xdma")
    g1_setup_w(a)
    for g in st0[4:]:
        emit_group(a, g)
    stamp(a, "wdma")
    if OPT.get("tlb", 1):
        tlb_touch(a)
    g1_setup_r(a)
    stamp(a, "setup")
    epoch_finish(a)
    stamp(a, "epoch")
    r = Rec(a)
    ln_compute2(r)
    g1_stage_offsets(a)
    off1 = dma_groups(1, "st1")
    upd = Rec(a); g1_stage_offsets(upd)
    off2 = dma_groups(2, "st2")
    off2[0] = [o[1] for o in upd.ops] + off2[0]
    allf = off1 + off2
    nln = OPT.get("nln", 10)
    replay(a, r.ops, allf[:nln], every=OPT.get("lnevery", 14), start=10)
    kgen_loads(a)
    stamp(a, "ln")

    def ln_publish(a):
        flag_store(a, WS_FLAG_LN, idx_ln)
    def ln_poll_issue(a):
        poll_addr(a, "ln", 243)
        poll_issue(a, "ln", 243, "pl")
    def ln_poll_check(a):
        a.vm_wait("pl")
        poll_check(a, "ln", 243)
        epoch_bump(a)
        g1_post_loads8(a)
    PS = OPT.get("pubstage", 2)
    def tr_round(rnd):
        t = wd_tr(rnd)
        return [lambda a, rnd=rnd: a.vm_wait(f"wd{rnd}"), t[:4]] + [t[4+4*k:8+4*k] for k in range(WD_N[rnd])]
    hooks = {
        ("stage_end", 0): [cs_store8],
        ("post_barrier", PS): [ln_publish],
        ("post_barrier", 5): [wd_setup2, kv_addr],
        ("post_barrier", 6): [ln_poll_issue],
        ("extra_dma", 6): wd_groups(1),
    }
    hooks[("fill", 7, OPT.get("chkk", 1))] = [ln_poll_check]
    if OPT.get("wdtouch", 1):
        hooks[("fill", OPT.get("touchstage", 1), 1)] = [wd_touch]
    ks = kgen_shadow()
    nk = 24
    per = (len(ks) + nk - 1) // nk
    ks = [lambda a: a.vm_wait("kp")] + ks
    idx = 0
    done_at = {}
    for stg in range(1, 7):
        for s_ in range(4):
            n = per + (1 if idx == 0 else 0)
            part = ks[idx:idx + n]; idx += n
            hooks[("shadow", stg, s_)] = part
            for x in part:
                if isinstance(x, str) and x.startswith("v_accvgpr_write"):
                    done_at[int(x.split()[1][1:].rstrip(",")) - KS] = (stg, s_)
    assert idx >= len(ks)
    order = sorted(done_at, key=lambda v: done_at[v])
    steps = [(6, 0), (6, 1), (6, 2), (6, 3), (7, 0), (7, 1), (7, 2), (7, 3)]
    perw = (len(order) + len(steps) - 1) // len(steps)
    p = 0
    for stp in steps:
        lst = []
        while p < len(order) and len(lst) < perw and done_at[order[p]] < stp:
            lst.append(f"ds_write_b32 v{V_KWA}, a{KS+order[p]} offset:{order[p]*528}"); p += 1
        if stp == steps[-1]:
            while p < len(order):
                lst.append(f"ds_write_b32 v{V_KWA}, a{KS+order[p]} offset:{order[p]*528}"); p += 1
        hooks[("ldsw",) + stp] = lst
    for nm, stg in (("s0", 0), ("s3", 3), ("s5", 5), ("s6", 6)):
        hooks.setdefault(("post_barrier", stg), []).append(lambda a, nm=nm: stamp(a, nm))
    g1_main2(a, hooks, allf[nln:])
    stamp(a, "loop")
    g1_correction8(a)
    stamp(a, "corr")
    r = Rec(a)
    g1_epilogue2(r)
    def xtl(a):
        xt_loads2(a); xt_extra(a)
    replay(a, r.ops, [[xtl]] + wd_groups(2), every=OPT.get("epevery", 24), start=26)
    stamp(a, "epi")
    u_prep(a)
    def pre_b(a):
        a.vm_wait("pubH")
    def post_b(a):
        flag_store(a, WS_FLAG_H, idx_h)
        u_write(a)
    kgen5_mfma(a, pre_b, post_b, tr_round(1) + tr_round(2))
    stamp(a, "kgen")
    conv_addr(a)
    late = {2: [lambda a: (poll_addr(a, "h", 243), poll_issue(a, "h", 243, "ph"))],
            3: [h_setup3]}
    conv_main3(a, wd_groups(3) + wd_groups(4), late)
    stamp(a, "convm")
    a.vm_wait("ph")
    poll_check(a, "h", 243)
    N0 = OPT.get("g2n0", 6)
    g2_first(a, N0)
    stamp(a, "hflag")
    conv_finish3(a)
    stamp(a, "conv")
    def y_publish(a):
        a.vm_wait("pubY")
        a.e("s_barrier")
        flag_store(a, WS_FLAG_Y, idx_y)
    def y_poll_issue(a):
        poll_addr(a, "y", 243)
        poll_issue(a, "y", 243, "py")
    def y_poll_check(a):
        a.vm_wait("py")
        poll_check(a, "y", 243)
        g2_y_loads(a)
    hk = {}
    for q, f in ((OPT.get("ypub", 5), y_publish), (OPT.get("xld", 8), g2_final_loads), (OPT.get("fprep", 10), final_prep),
                 (OPT.get("ypoll", 14), y_poll_issue), (OPT.get("ychk", 17), y_poll_check)):
        hk.setdefault(q, []).append(f)
    g2_main3(a, hk, N0, tr_round(3) + tr_round(4))
    stamp(a, "g2")
    final3(a)
    stamp(a, "fin")
    if OPT.get("delay1"):
        a.e(f"s_mov_b32 s{S_T0}, 0")
        a.e("L_delay1:")
        for q in range(16): a.e(f"v_fma_f32 v{200+q}, v{200+q}, v{200+q}, v{200+q}")
        a.e(f"s_add_u32 s{S_T0}, s{S_T0}, 1")
        a.e(f"s_cmp_lt_u32 s{S_T0}, {OPT['delay1']}")
        a.e("s_cbranch_scc1 L_delay1")
    a.e("s_waitcnt vmcnt(0)")
    stamp(a, 9, real=True)
    prof_store(a)
    a.e("L_end:")
    a.e("s_endpgm")


def main():
    G.PROF = "prof" in sys.argv
    G.L_CX = 0
    for x in sys.argv[1:]:
        if "=" in x:
            k, v = x.split("=")
            if k == "stamps": G.STAMPS[:] = v.split(",")
            else: OPT[k] = int(v)
    a = Asm()
    build(a)
    nl = OPT.get("nlaunch", 0)
    launch = f"; @launch grid=(256,1,1) block=(256,1,1) lds={LDS_BYTES}" if not nl else "\n".join([f"; @launch kernel={NAME} grid=(256,1,1) block=(256,1,1) lds={LDS_BYTES}"] * nl)
    out = [HDR, launch,
           '.amdgcn_target "amdgcn-amd-amdhsa--gfx950"', '.text', a.text(),
           "  .fill 8448, 4, 0xbf800000", '.section .rodata,"a"', kd(NAME, 256, 240)]
    print('\n'.join(out))

if __name__ == "__main__":
    main()
```

```python
import sys, math
from asmlib import *
import gen as G
from gen import *

NAME = "parallel_sum__ssm_conv_s4__geglu_ffn__prompt_kernel"
S_EP = 34
S_SPIN = 13
WS_DUMMY = 15 << 20
V_POLL = 252
SPIN_MAX = 1 << 17
OPT = {}


class Rec:
    def __init__(self, a):
        self.ops = []
        self.a = a
    def e(self, s):
        for l in s.split('\n'):
            if l.strip():
                self.ops.append(('e', l.strip()))
    def c(self, s): pass
    def vm(self, s, tag): self.ops.append(('vm', s, tag))
    def vm_wait(self, *tags): self.ops.append(('wait', tags))
    def label(self, b): return self.a.label(b)
    def nofill(self, on): self.ops.append(('nofill', on))


def replay(a, ops, fillers, every, start=0):
    fill = list(fillers)
    nof = False
    n = 0
    for o in ops:
        if o[0] == 'nofill':
            nof = o[1]
            continue
        if o[0] == 'e':
            if o[1].startswith("STAMP:"):
                stamp(a, o[1][6:]); continue
            a.e(o[1])
        elif o[0] == 'vm':
            a.vm(o[1], o[2])
        elif o[0] == 'wait':
            a.vm_wait(*o[1])
        n += 1
        if fill and not nof and n >= start and (n - start) % every == 0:
            emit_group(a, fill.pop(0))
    for g in fill:
        emit_group(a, g)


def emit_group(a, g):
    if callable(g):
        g(a); return
    for t in g:
        if isinstance(t, tuple):
            a.vm(t[0], t[1])
        elif callable(t):
            t(a)
        else:
            a.e(t)

def t2_groups(t):
    return [[x] if callable(x) else x for x in t]


def sched(a, mf, slots):
    for i, m in enumerate(mf):
        a.e(m)
        for it in slots.get(i, []):
            if isinstance(it, list):
                emit_group(a, it)
            elif isinstance(it, tuple):
                a.vm(it[0], it[1])
            elif callable(it):
                it(a)
            else:
                a.e(it)


def g1_setup_x(a, ptr=True):
    if ptr: mk_srd(a, SRD_X, P_X, 2048 * 1024)
    a.e(f"s_lshl_b32 s{S_T0}, s{S_I}, 7")
    a.e(f"s_lshl_b32 s{S_T1}, s{S_W}, 5")
    a.e(f"s_add_u32 s{S_T0}, s{S_T0}, s{S_T1}")
    a.e(f"s_lshl_b32 s{S_XW}, s{S_T0}, 10")
    a.e(f"s_lshl_b32 s{S_LX}, s{S_W}, 12")
    rm = OPT.get("rotmode", 0)
    a.e(f"s_add_u32 s{S_KC}, s{S_I}, s{S_J}")
    if rm == 0:
        a.e(f"s_and_b32 s{S_KC}, s{S_KC}, 7")
    elif rm == 1:
        a.e(f"s_mov_b32 s{S_KC}, 0")
    elif rm == 2:
        a.e(f"s_and_b32 s{S_KC}, s{S_KC}, 1")
        a.e(f"s_lshl_b32 s{S_KC}, s{S_KC}, 2")
    elif rm == 3:
        a.e(f"s_and_b32 s{S_KC}, s{S_KC}, 3")
        a.e(f"s_lshl_b32 s{S_KC}, s{S_KC}, 1")
    a.e(f"s_lshr_b32 s{S_CSH}, s{S_I}, 3")
    a.e(f"s_mul_i32 s{S_WW}, s{S_W}, {16 * 2752}")
    a.e(f"s_lshl_b32 s{S_T0}, s{S_U0}, 6")
    a.e(f"s_add_u32 s{S_WW}, s{S_WW}, s{S_T0}")
    a.e(f"s_mul_i32 s{S_LW}, s{S_W}, 3072")
    g1_stage_offsets(a)
    a.e(f"v_lshrrev_b32 v12, 3, v{V_LANE}")
    a.e(f"v_and_b32 v13, 7, v{V_LANE}")
    a.e(f"v_lshrrev_b32 v14, 1, v12")
    a.e(f"v_xor_b32 v15, v14, v13")
    a.e(f"v_lshlrev_b32 v16, 4, v15")
    a.e(f"v_lshl_add_u32 v{V_XOFF}, v12, 10, v16")
    a.e(f"v_xor_b32 v17, 64, v{V_XOFF}")
    a.e(f"v_add_u32 v{V_XOFF+1}, 8192, v17")
    a.e(f"v_add_u32 v{V_XOFF+2}, 16384, v{V_XOFF}")
    a.e(f"v_add_u32 v{V_XOFF+3}, 16384, v{V_XOFF+1}")

def g1_setup_w(a, ptr=True):
    if ptr:
        mk_srd(a, SRD_WG, P_WG, 512 * 2752)
        mk_srd(a, SRD_WU, P_WU, 512 * 2752)
    for q in range(3):
        a.e(f"v_add_u32 v12, {64*q}, v{V_LANE}")
        a.e(f"v_mul_u32_u24 v13, 5462, v12")
        a.e(f"v_lshrrev_b32 v13, 16, v13")
        a.e(f"v_mul_u32_u24 v14, 12, v13")
        a.e(f"v_sub_u32 v14, v12, v14")
        a.e(f"v_mul_u32_u24 v13, 2752, v13")
        a.e(f"v_lshl_add_u32 v{V_WOFF+q}, v14, 4, v13")

def g1_setup_r(a):
    a.e(f"v_and_b32 v12, 31, v{V_LANE}")
    a.e(f"v_lshrrev_b32 v13, 5, v{V_LANE}")
    a.e(f"v_bfe_u32 v14, v12, 1, 3")
    a.e(f"s_lshl_b32 s{S_T0}, s{S_TW}, 13")
    a.e(f"v_lshl_add_u32 v15, v12, 7, s{S_T0}")
    for s_ in range(4):
        a.e(f"v_add_u32 v16, {2*s_}, v13")
        a.e(f"v_xor_b32 v16, v16, v14")
        a.e(f"v_lshl_add_u32 v{V_BADDR+s_}, v16, 4, v15")
    a.e(f"v_lshrrev_b32 v12, 4, v{V_LANE}")
    a.e(f"v_and_b32 v13, 1, v12")
    a.e(f"v_lshrrev_b32 v12, 1, v12")
    a.e(f"v_bfe_u32 v14, v{V_LANE}, 2, 2")
    a.e(f"v_lshl_add_u32 v14, v12, 3, v14")
    a.e(f"v_mul_u32_u24 v14, 192, v14")
    a.e(f"v_and_b32 v15, 3, v{V_LANE}")
    a.e(f"v_lshl_add_u32 v14, v15, 3, v14")
    a.e(f"v_mul_u32_u24 v13, {L_U - L_G}, v13")
    a.e(f"v_add_u32 v14, v14, v13")
    a.e(f"s_mul_i32 s{S_T0}, s{S_FW}, 96")
    a.e(f"s_add_u32 s{S_T0}, s{S_T0}, {L_G}")
    a.e(f"v_add_u32 v{V_AADDR}, s{S_T0}, v14")


class Dma(list):
    def __init__(self, pre, m0, ld, post=()):
        super().__init__(list(pre) + [m0, "s_nop 0", ld] + list(post))
        self.head = list(pre) + [m0]
        self.tail = [ld] + list(post)

def dma_groups(slot, tag):
    return [Dma([], m0, (ld, tag)) for m0, ld in g1_dma_list(slot, tag)]

def place(slots, p, g):
    if isinstance(g, Dma) and p >= 1:
        slots[p - 1].append(g.head)
        slots[p].insert(0, g.tail)
    else:
        slots[p].append(g)


def entry(a):
    a.e(f".globl {NAME}\n.p2align 8\n.type {NAME},@function\n{NAME}:")
    a.e(f"s_cmp_ge_u32 s{S_WG}, 256")
    a.e(f"s_cbranch_scc1 L_end")
    a.e("s_load_dwordx16 s[16:31], s[0:1], 0")
    a.e("s_load_dwordx16 s[32:47], s[0:1], 64")
    if not OPT.get("nopf"):
        a.e("s_getpc_b64 s[74:75]")
        a.e("L_pc:")
        a.e(f"s_lshr_b32 s{S_T1}, s{S_WG}, 3")
        a.e(f"s_and_b32 s{S_T1}, s{S_T1}, 15")
        a.e(f"s_lshl_b32 s{S_T1}, s{S_T1}, 11")
        a.e(f"v_lshl_add_u32 v2, v0, 3, s{S_T1}")
        for q in range(OPT.get("pfn", 1)):
            a.vm(f"global_load_dwordx2 v[4:5], v2, s[74:75] offset:{0}", "pf")
    a.e(f"v_and_b32 v{V_LANE}, 63, v0")
    a.e(f"v_lshrrev_b32 v3, 6, v0")
    a.e(f"s_and_b32 s{S_T0}, s{S_WG}, 7")
    a.e(f"v_readfirstlane_b32 s{S_W}, v3")
    a.e(f"s_lshr_b32 s{S_T1}, s{S_WG}, 3")
    a.e(f"s_lshr_b32 s{S_I}, s{S_T0}, 1")
    a.e(f"s_lshl_b32 s{S_I}, s{S_I}, 2")
    a.e(f"s_lshr_b32 s{S_T2}, s{S_T1}, 3")
    a.e(f"s_add_u32 s{S_I}, s{S_I}, s{S_T2}")
    a.e(f"s_and_b32 s{S_J}, s{S_T0}, 1")
    a.e(f"s_lshl_b32 s{S_J}, s{S_J}, 3")
    a.e(f"s_and_b32 s{S_T2}, s{S_T1}, 7")
    a.e(f"s_add_u32 s{S_J}, s{S_J}, s{S_T2}")
    a.e(f"s_lshr_b32 s{S_TW}, s{S_W}, 1")
    a.e(f"s_and_b32 s{S_FW}, s{S_W}, 1")
    a.e(f"s_mul_i32 s{S_U0}, s{S_J}, 3")
    a.e(f"s_lshl_b32 s{S_T2}, s{S_J}, 1")
    a.e(f"s_add_u32 s{S_T2}, s{S_T2}, 11")
    a.e(f"s_min_u32 s{S_U0}, s{S_U0}, s{S_T2}")
    a.e(f"s_cmp_lt_u32 s{S_J}, 11")
    a.e(f"s_cselect_b32 s{S_NU}, 6, 4")
    conv_ids(a)
    g2_ids(a)


def epoch_load(a):
    a.e("v_mov_b32 v3, 0")
    a.vm(f"global_load_dword v6, v3, s[{P_WS}:{P_WS+1}] sc1", "ep")


def epoch_finish(a):
    a.vm_wait("ep")
    a.e("s_nop 0")
    a.e(f"v_readfirstlane_b32 s{S_EP}, v6")
    a.e("s_nop 3")
    a.e(f"s_mul_i32 s{S_TAG}, s{S_EP}, 0x9e3779b1")
    a.e(f"s_add_u32 s{S_TAG}, s{S_TAG}, 0x3c6ef373")


def flag_store(a, region, idx_code):
    lab = a.label("nofl")
    a.e(f"s_cmp_lg_u32 s{S_W}, 0")
    a.e(f"s_cbranch_scc1 {lab}")
    idx_code(a)
    a.e(f"s_lshl_b32 s{S_T0}, s{S_T0}, 2")
    a.e(f"s_add_u32 s{S_T0}, s{S_T0}, {region}")
    a.e(f"v_mov_b32 v2, s{S_T0}")
    a.e(f"v_mov_b32 v3, s{S_TAG}")
    a.e(f"s_mov_b64 s[{S_EXEC}:{S_EXEC+1}], exec")
    a.e("s_mov_b64 exec, 1")
    a.e(f"global_store_dword v2, v3, s[{P_WS}:{P_WS+1}] sc1")
    a.e(f"s_mov_b64 exec, s[{S_EXEC}:{S_EXEC+1}]")
    a.e(f"{lab}:")


def idx_ln(a): a.e(f"s_mov_b32 s{S_T0}, s{S_WG}")
def idx_h(a):
    a.e(f"s_lshl_b32 s{S_T0}, s{S_I}, 4")
    a.e(f"s_add_u32 s{S_T0}, s{S_T0}, s{S_J}")
def idx_y(a):
    a.e(f"s_and_b32 s{S_T0}, s{S_WG}, 7")
    a.e(f"s_lshl_b32 s{S_T0}, s{S_T0}, 5")
    a.e(f"s_lshr_b32 s{S_T1}, s{S_WG}, 3")
    a.e(f"s_add_u32 s{S_T0}, s{S_T0}, s{S_T1}")


def poll_addr(a, kind, vreg):
    if kind == "ln":
        a.e(f"v_lshlrev_b32 v{vreg}, 4, v{V_LANE}")
        a.e(f"v_add_u32 v{vreg}, {WS_FLAG_LN}, v{vreg}")
    elif kind == "h":
        a.e(f"s_lshl_b32 s{S_T0}, s{S_I}, 6")
        a.e(f"s_add_u32 s{S_T0}, s{S_T0}, {WS_FLAG_H}")
        a.e(f"v_and_b32 v{vreg}, 15, v{V_LANE}")
        a.e(f"v_lshl_add_u32 v{vreg}, v{vreg}, 2, s{S_T0}")
    elif kind == "y":
        a.e(f"s_lshl_b32 s{S_T0}, s{S_NT}, 7")
        a.e(f"s_add_u32 s{S_T0}, s{S_T0}, {WS_FLAG_Y}")
        a.e(f"v_and_b32 v{vreg}, 31, v{V_LANE}")
        a.e(f"v_lshl_add_u32 v{vreg}, v{vreg}, 2, s{S_T0}")


def poll_issue(a, kind, vreg, tag):
    if kind == "ln":
        a.vm(f"global_load_dwordx4 {vr(V_POLL,4)}, v{vreg}, s[{P_WS}:{P_WS+1}] sc1", tag)
    else:
        a.vm(f"global_load_dword v{V_POLL}, v{vreg}, s[{P_WS}:{P_WS+1}] sc1", tag)


def poll_check(a, kind, vreg):
    top, ok = a.label("poll"), a.label("pollok")
    a.e(f"s_mov_b32 s{S_SPIN}, 0")
    a.e(f"{top}:")
    a.e(f"v_cmp_ne_u32 vcc, s{S_TAG}, v{V_POLL}")
    if kind == "ln":
        for q in range(1, 4):
            a.e(f"v_cmp_ne_u32 s[74:75], s{S_TAG}, v{V_POLL+q}")
            a.e("s_nop 0")
            a.e("s_or_b64 vcc, vcc, s[74:75]")
    a.e("s_nop 1")
    a.e(f"s_cmp_eq_u64 vcc, 0")
    a.e(f"s_cbranch_scc1 {ok}")
    a.e(f"s_add_u32 s{S_SPIN}, s{S_SPIN}, 1")
    a.e(f"s_cmp_gt_u32 s{S_SPIN}, {SPIN_MAX}")
    a.e(f"s_cbranch_scc1 {ok}")
    a.e(f"s_sleep {OPT.get('sleep', 1)}")
    if kind == "ln":
        a.e(f"global_load_dwordx4 {vr(V_POLL,4)}, v{vreg}, s[{P_WS}:{P_WS+1}] sc1")
    else:
        a.e(f"global_load_dword v{V_POLL}, v{vreg}, s[{P_WS}:{P_WS+1}] sc1")
    a.e("s_waitcnt vmcnt(0)")
    a.e(f"s_branch {top}")
    a.e(f"{ok}:")


def epoch_bump(a):
    lab = a.label("nobump")
    a.e(f"s_or_b32 s{S_T0}, s{S_WG}, s{S_W}")
    a.e(f"s_cmp_lg_u32 s{S_T0}, 0")
    a.e(f"s_cbranch_scc1 {lab}")
    a.e(f"s_add_u32 s{S_T0}, s{S_EP}, 1")
    a.e("v_mov_b32 v2, 0")
    a.e(f"v_mov_b32 v3, s{S_T0}")
    a.e(f"s_mov_b64 s[{S_EXEC}:{S_EXEC+1}], exec")
    a.e("s_mov_b64 exec, 1")
    a.e(f"global_store_dword v2, v3, s[{P_WS}:{P_WS+1}] sc1")
    a.e(f"s_mov_b64 exec, s[{S_EXEC}:{S_EXEC+1}]")
    a.e(f"{lab}:")


def ln_addr(a):
    a.e(f"s_lshl_b32 s{S_T0}, s{S_I}, 7")
    a.e(f"s_lshl_b32 s{S_T1}, s{S_J}, 3")
    a.e(f"s_add_u32 s{S_T0}, s{S_T0}, s{S_T1}")
    a.e(f"s_lshl_b32 s{S_T1}, s{S_W}, 1")
    a.e(f"s_add_u32 s{S_T0}, s{S_T0}, s{S_T1}")
    a.e(f"s_lshl_b32 s{S_T0}, s{S_T0}, 10")
    a.e(f"v_lshl_add_u32 v7, v{V_LANE}, 4, s{S_T0}")

def ln_issue(a):
    a.vm(f"global_load_dwordx4 v[44:47], v7, s[{P_X}:{P_X+1}]", "ln")
    a.vm(f"global_load_dwordx4 v[48:51], v7, s[{P_X}:{P_X+1}] offset:1024", "ln")


def ln_compute2(a):
    a.vm_wait("ln")
    for r in range(2):
        for d in range(4):
            a.e(f"v_lshlrev_b32 v{16+8*r+2*d}, 16, v{44+4*r+d}")
            a.e(f"v_and_b32 v{17+8*r+2*d}, 0xffff0000, v{44+4*r+d}")
    for r in range(2):
        b = 16 + 8*r
        t = 36 + 4*r
        a.e(f"v_pk_add_f32 {vr(t,2)}, {vr(b,2)}, {vr(b+2,2)}")
        a.e(f"v_pk_mul_f32 {vr(t+2,2)}, {vr(b,2)}, {vr(b,2)}")
    for r in range(2):
        b = 16 + 8*r
        t = 36 + 4*r
        a.e(f"v_pk_add_f32 {vr(t,2)}, {vr(t,2)}, {vr(b+4,2)}")
        a.e(f"v_pk_fma_f32 {vr(t+2,2)}, {vr(b+2,2)}, {vr(b+2,2)}, {vr(t+2,2)}")
    for r in range(2):
        b = 16 + 8*r
        t = 36 + 4*r
        a.e(f"v_pk_add_f32 {vr(t,2)}, {vr(t,2)}, {vr(b+6,2)}")
        a.e(f"v_pk_fma_f32 {vr(t+2,2)}, {vr(b+4,2)}, {vr(b+4,2)}, {vr(t+2,2)}")
    for r in range(2):
        b = 16 + 8*r
        t = 36 + 4*r
        a.e(f"v_pk_fma_f32 {vr(t+2,2)}, {vr(b+6,2)}, {vr(b+6,2)}, {vr(t+2,2)}")
        a.e(f"v_add_f32 v{32+r}, v{t}, v{t+1}")
    for r in range(2):
        t = 36 + 4*r
        a.e(f"v_add_f32 v{34+r}, v{t+2}, v{t+3}")
    a.e("s_nop 0")
    dpp_reduce(a, [32, 33, 34, 35])
    for q in range(4):
        a.e(f"v_readlane_b32 s{74+q if q < 2 else 10+q}, v{32+q}, 63")
    a.e("s_nop 1")
    a.e("v_mov_b32 v32, s74")
    a.e("v_mov_b32 v33, s75")
    a.e("v_mov_b32 v34, s12")
    a.e("v_mov_b32 v35, s13")
    a.e("v_mov_b32 v36, 0x3b000000")
    a.e("v_pk_mul_f32 v[32:33], v[32:33], v[36:37] op_sel_hi:[1,0]")
    a.e("v_pk_mul_f32 v[34:35], v[34:35], v[36:37] op_sel_hi:[1,0]")
    a.e("v_pk_fma_f32 v[34:35], v[32:33], v[32:33], v[34:35] neg_lo:[1,0,0] neg_hi:[1,0,0]")
    a.e("v_max_f32 v34, 0, v34")
    a.e("v_max_f32 v35, 0, v35")
    a.e("v_cvt_pk_bf16_f32 v36, v34, v35")
    a.e("v_cvt_pk_bf16_f32 v37, v32, v33")
    a.e("v_lshlrev_b32 v34, 16, v36")
    a.e("v_and_b32 v35, 0xffff0000, v36")
    a.e("v_lshlrev_b32 v32, 16, v37")
    a.e("v_and_b32 v33, 0xffff0000, v37")
    a.e("v_add_f32 v34, 0x3727c5ac, v34")
    a.e("v_add_f32 v35, 0x3727c5ac, v35")
    a.e("v_cvt_pk_bf16_f32 v36, v34, v35")
    a.e("v_lshlrev_b32 v34, 16, v36")
    a.e("v_and_b32 v35, 0xffff0000, v36")
    a.e("v_sqrt_f32 v34, v34")
    a.e("v_sqrt_f32 v35, v35")
    a.e("s_nop 0")
    a.e("v_cvt_pk_bf16_f32 v36, v34, v35")
    a.e("v_lshlrev_b32 v34, 16, v36")
    a.e("v_and_b32 v35, 0xffff0000, v36")
    a.e("v_rcp_f32 v34, v34")
    a.e("v_rcp_f32 v35, v35")
    for r in range(2):
        b = 16 + 8*r
        sel = "op_sel_hi:[1,0]" if r == 0 else "op_sel:[0,1] op_sel_hi:[1,1]"
        for d in range(4):
            a.e(f"v_pk_add_f32 {vr(b+2*d,2)}, {vr(b+2*d,2)}, v[32:33] {sel} neg_lo:[0,1] neg_hi:[0,1]")
    for r in range(2):
        b = 16 + 8*r
        for d in range(4):
            a.e(f"v_cvt_pk_bf16_f32 v{44+4*r+d}, v{b+2*d}, v{b+2*d+1}")
    for r in range(2):
        b = 16 + 8*r
        for d in range(4):
            a.e(f"v_lshlrev_b32 v{b+2*d}, 16, v{44+4*r+d}")
            a.e(f"v_and_b32 v{b+2*d+1}, 0xffff0000, v{44+4*r+d}")
    for r in range(2):
        b = 16 + 8*r
        sel = "op_sel_hi:[1,0]" if r == 0 else "op_sel:[0,1] op_sel_hi:[1,1]"
        for d in range(4):
            a.e(f"v_pk_mul_f32 {vr(b+2*d,2)}, {vr(b+2*d,2)}, v[34:35] {sel}")
    for r in range(2):
        b = 16 + 8*r
        for d in range(4):
            a.e(f"v_cvt_pk_bf16_f32 v{44+4*r+d}, v{b+2*d}, v{b+2*d+1}")
    a.e(f"s_mul_i32 s{S_T0}, s{S_W}, {2*1088}")
    a.e(f"s_add_u32 s{S_T0}, s{S_T0}, {L_LN}")
    a.e(f"v_lshl_add_u32 v2, v{V_LANE}, 4, s{S_T0}")
    a.e("ds_write_b128 v2, v[44:47]")
    a.e("ds_write_b128 v2, v[48:51] offset:1088")
    a.e("v_mov_b32 v40, v34")
    a.e("v_cvt_pk_bf16_f32 v41, -v32, -v32")
    a.e("v_mov_b32 v42, v35")
    a.e("v_cvt_pk_bf16_f32 v43, -v33, -v33")
    a.e(f"s_lshl_b32 s{S_T0}, s{S_I}, 7")
    a.e(f"s_lshl_b32 s{S_T1}, s{S_J}, 3")
    a.e(f"s_add_u32 s{S_T0}, s{S_T0}, s{S_T1}")
    a.e(f"s_lshl_b32 s{S_T1}, s{S_W}, 1")
    a.e(f"s_add_u32 s{S_T1}, s{S_T0}, s{S_T1}")
    a.e(f"s_lshl_b32 s{S_T1}, s{S_T1}, 3")
    a.e(f"s_add_u32 s{S_T1}, s{S_T1}, {WS_STATS}")
    a.e(f"v_mov_b32 v3, s{S_T1}")
    a.nofill(True)
    a.e(f"s_mov_b64 s[{S_EXEC}:{S_EXEC+1}], exec")
    a.e("s_mov_b64 exec, 1")
    a.vm(f"global_store_dwordx4 v3, v[40:43], s[{P_WS}:{P_WS+1}] sc1", "pubA")
    a.e(f"s_mov_b64 exec, s[{S_EXEC}:{S_EXEC+1}]")
    a.nofill(False)
    a.e(f"v_bfe_u32 v2, v{V_LANE}, 2, 2")
    a.e(f"v_mul_u32_u24 v2, 1088, v2")
    a.e(f"v_lshrrev_b32 v3, 4, v{V_LANE}")
    a.e(f"v_lshl_add_u32 v2, v3, 5, v2")
    a.e(f"v_and_b32 v3, 3, v{V_LANE}")
    a.e(f"v_lshl_add_u32 v2, v3, 3, v2")
    a.e(f"s_lshl_b32 s{S_T1}, s{S_W}, 8")
    a.e(f"s_add_u32 s{S_T1}, s{S_T1}, {L_LN}")
    a.e(f"v_add_u32 v2, s{S_T1}, v2")
    a.e(f"s_lshl_b32 s{S_T0}, s{S_T0}, 10")
    a.e(f"s_lshl_b32 s{S_T1}, s{S_W}, 11")
    a.e(f"s_add_u32 s{S_T0}, s{S_T0}, s{S_T1}")
    a.e(f"s_add_u32 s{S_T0}, s{S_T0}, {WS_XT}")
    a.e(f"v_lshl_add_u32 v3, v{V_LANE}, 4, s{S_T0}")
    a.e("s_waitcnt lgkmcnt(0)")
    a.e("s_barrier")
    for q in range(2):
        a.e(f"ds_read_b64_tr_b16 v[{8+4*q}:{9+4*q}], v2 offset:{128*q}")
        a.e(f"ds_read_b64_tr_b16 v[{10+4*q}:{11+4*q}], v2 offset:{128*q + 4*1088}")
    a.e("s_waitcnt lgkmcnt(0)")
    a.vm(f"global_store_dwordx4 v3, v[8:11], s[{P_WS}:{P_WS+1}] sc1", "pubA")
    a.vm(f"global_store_dwordx4 v3, v[12:15], s[{P_WS}:{P_WS+1}] offset:1024 sc1", "pubA")


def g1_main2(a, hooks, pend0):
    for r in range(4):
        a.e(f"v_mov_b32 v{V_ONES+r}, 0x3f803f80")
    a.vm_wait("st0")
    a.e("s_barrier")
    stamp(a, "st0")
    for x in g1_reads(0, 0):
        a.e(x)
    st = 0
    pend = list(pend0)
    for stage in range(8):
        for s in range(4):
            last = (stage == 7 and s == 3)
            a.e("s_waitcnt lgkmcnt(0)")
            mf = g1_mfmas(st, stage == 0 and s == 0)
            slots = {i: [] for i in range(6)}
            if stage == 0:
                lab = a.label("nocs")
                a.e(f"s_or_b32 s{S_T0}, s{S_TW}, s{S_CSH}")
                a.e(f"s_cmp_lg_u32 s{S_T0}, 0")
                a.e(f"s_cbranch_scc1 {lab}")
                for ap in range(3):
                    c = "0" if s == 0 else vr(V_CSACC + 16 * ap, 16)
                    a.e(f"v_mfma_f32_32x32x16_bf16 {vr(V_CSACC+16*ap,16)}, {vr(V_ONES,4)}, {vr(fA(st,ap),4)}, {c}")
                a.e(f"{lab}:")
            ldsw = hooks.get(("ldsw", stage, s), [])
            if s == 3 and not last:
                assert not pend, (stage, len(pend))
                d = SLOT if (stage + 1) % 3 != 0 else -2 * SLOT
                slots[0] += [f"v_add_u32 v{V_BADDR+q}, {d & 0xffffffff}, v{V_BADDR+q}" for q in range(4)]
                slots[0] += [f"v_add_u32 v{V_AADDR}, {d & 0xffffffff}, v{V_AADDR}"]
                def boundary(a, stage=stage):
                    a.vm_wait(f"st{stage+1}")
                    for hk in hooks.get(("pre_barrier", stage), []):
                        hk(a)
                    a.e("s_barrier")
                slots[1].append(boundary)
                rd = g1_reads(st ^ 1, 0)
                slots[1] += rd[:3]
                slots[2] += rd[3:6]
                slots[3] += rd[6:]
                for hk in hooks.get(("post_barrier", stage), []):
                    slots[4].append(hk)
                if stage + 3 < 8:
                    slots[1].append(g1_stage_offsets)
                    pend = dma_groups(stage % 3, f"st{stage+3}")
                elif ("extra_dma", stage) in hooks:
                    pend = list(hooks[("extra_dma", stage)])
                if pend:
                    place(slots, 3, pend.pop(0))
                    place(slots, 5, pend.pop(0))
            elif last:
                slots[0].append("s_barrier")
                for hk in hooks.get(("ring_free",), []):
                    slots[1].append(hk)
            else:
                rd = g1_reads(st ^ 1, s + 1)
                slots[0] += rd[:3]
                slots[1] += rd[3:6]
                slots[2] += rd[6:]
                n = (len(pend) + (2 - s)) // (3 - s)
                if n <= 5:
                    pos = {0: [], 1: [3], 2: [1, 4], 3: [1, 3, 5], 4: [1, 2, 4, 5], 5: [1, 2, 3, 4, 5]}[n]
                    for q in range(n):
                        place(slots, pos[q], pend.pop(0))
                else:
                    for q in range(n):
                        slots[(q * 6) // n].append(list(pend.pop(0)))
            for k, x in enumerate(ldsw):
                slots[min(5, 1 + (k * 5) // max(1, len(ldsw)))].append(x)
            for k, hk in enumerate(hooks.get(("fill", stage, s), [])):
                slots[min(5, 2 + k)].append(hk)
            sh = hooks.get(("shadow", stage, s), [])
            lo = 3
            for k, x in enumerate(sh):
                slots[lo + (k * (6 - lo)) // len(sh)].append(x)
            sched(a, mf, slots)
            st ^= 1
        for hk in hooks.get(("stage_end", stage), []):
            hk(a)


def cs_store8(a):
    lab = a.label("nocsst")
    a.e(f"s_or_b32 s{S_T0}, s{S_TW}, s{S_CSH}")
    a.e(f"s_cmp_lg_u32 s{S_T0}, 0")
    a.e(f"s_cbranch_scc1 {lab}")
    a.e(f"s_mul_i32 s{S_T0}, s{S_J}, 6")
    a.e(f"s_mul_i32 s{S_T1}, s{S_FW}, 3")
    a.e(f"s_add_u32 s{S_T0}, s{S_T0}, s{S_T1}")
    a.e(f"s_lshl_b32 s{S_T0}, s{S_T0}, 10")
    a.e(f"s_lshl_b32 s{S_T1}, s{S_I}, 2")
    a.e(f"s_add_u32 s{S_T0}, s{S_T0}, s{S_T1}")
    a.e(f"s_add_u32 s{S_T0}, s{S_T0}, {WS_CS}")
    a.e(f"v_lshl_add_u32 v3, v{V_LANE}, 5, s{S_T0}")
    a.e(f"s_mov_b64 s[{S_EXEC}:{S_EXEC+1}], exec")
    a.e("s_mov_b64 exec, 0xffffffff")
    for ap in range(3):
        a.e(f"global_store_dword v3, v{V_CSACC+16*ap}, s[{P_WS}:{P_WS+1}] offset:{1024*ap} sc1")
    a.e(f"s_mov_b64 exec, s[{S_EXEC}:{S_EXEC+1}]")
    a.e(f"{lab}:")

def g1_post_loads8(a):
    a.e(f"s_lshl_b32 s{S_T0}, s{S_I}, 7")
    a.e(f"s_lshl_b32 s{S_T1}, s{S_TW}, 6")
    a.e(f"s_add_u32 s{S_T0}, s{S_T0}, s{S_T1}")
    a.e(f"s_lshl_b32 s{S_T0}, s{S_T0}, 3")
    a.e(f"s_add_u32 s{S_T0}, s{S_T0}, {WS_STATS}")
    a.e(f"v_and_b32 v6, 31, v{V_LANE}")
    a.e(f"v_lshl_add_u32 v7, v6, 3, s{S_T0}")
    a.vm(f"global_load_dwordx2 v[2:3], v7, s[{P_WS}:{P_WS+1}] sc1", "post")
    a.vm(f"global_load_dwordx2 v[4:5], v7, s[{P_WS}:{P_WS+1}] offset:256 sc1", "post")
    a.e(f"s_mul_i32 s{S_T0}, s{S_J}, 6")
    a.e(f"s_mul_i32 s{S_T1}, s{S_FW}, 3")
    a.e(f"s_add_u32 s{S_T0}, s{S_T0}, s{S_T1}")
    a.e(f"s_lshl_b32 s{S_T0}, s{S_T0}, 10")
    a.e(f"s_add_u32 s{S_T0}, s{S_T0}, {WS_CS}")
    a.e(f"v_lshl_add_u32 v7, v6, 5, s{S_T0}")
    a.e(f"v_lshrrev_b32 v8, 5, v{V_LANE}")
    a.e(f"v_lshl_add_u32 v7, v8, 4, v7")
    for ap in range(3):
        a.vm(f"global_load_dwordx4 {vr(16+8*ap,4)}, v7, s[{P_WS}:{P_WS+1}] offset:{1024*ap} sc1", "post")

def g1_correction8(a):
    a.vm_wait("post")
    for ap in range(3):
        b = 16 + 8 * ap
        a.e(f"v_pk_add_f32 {vr(b,2)}, {vr(b,2)}, {vr(b+2,2)}")
    for ap in range(3):
        b = 16 + 8 * ap
        a.e(f"v_add_f32 v{b}, v{b}, v{b+1}")
    for ap in range(3):
        b = 16 + 8 * ap
        a.e(f"v_mov_b32 v{b+1}, v{b}")
    a.e(f"v_cmp_gt_u32 vcc, 32, v{V_LANE}")
    a.e("s_nop 0")
    for ap in range(3):
        b = 16 + 8 * ap
        a.e(f"v_permlane32_swap_b32 v{b}, v{b+1}")
    for ap in range(3):
        b = 16 + 8 * ap
        a.e(f"v_add_f32 v{b}, v{b}, v{b+1}")
    for ap in range(3):
        b = 16 + 8 * ap
        a.e(f"v_cvt_pk_bf16_f32 v{b+1}, v{b}, v{b}")
    for ap in range(3):
        b = 16 + 8 * ap
        a.e(f"v_lshlrev_b32 v{b+2}, 16, v{b+1}")
    for ap in range(3):
        b = 16 + 8 * ap
        a.e(f"v_sub_f32 v{b+2}, v{b}, v{b+2}")
    for ap in range(3):
        b = 16 + 8 * ap
        a.e(f"v_cvt_pk_bf16_f32 v{b+4}, v{b}, v{b+2}")
    for ap in range(3):
        b = 16 + 8 * ap
        a.e(f"v_cndmask_b32 v{b+4}, 0, v{b+4}, vcc")
        a.e(f"v_mov_b32 v{b+5}, 0")
        a.e(f"v_mov_b32 v{b+6}, 0")
        a.e(f"v_mov_b32 v{b+7}, 0")
    for tt in range(2):
        a.e(f"v_cndmask_b32 v{44+4*tt}, 0, v{3+2*tt}, vcc")
        for d in range(1, 4):
            a.e(f"v_mov_b32 v{44+4*tt+d}, 0")
    a.e("s_nop 1")
    for ap in range(3):
        for tt in range(2):
            a.e(f"v_mfma_f32_32x32x16_bf16 {vr(acc(tt,ap),16)}, {vr(20+8*ap,4)}, {vr(44+4*tt,4)}, {vr(acc(tt,ap),16)}")

def g1_epilogue2(a):
    a.e(f"v_mov_b32 v52, {fhex(C1)}")
    a.e(f"v_mov_b32 v53, {fhex(C2)}")
    a.e("v_rcp_f32 v54, v2")
    a.e("v_rcp_f32 v56, v4")
    a.e(f"s_lshl_b32 s{S_T0}, s{S_I}, 2")
    a.e(f"s_lshl_b32 s{S_T1}, s{S_TW}, 1")
    a.e(f"s_add_u32 s{S_T0}, s{S_T0}, s{S_T1}")
    a.e(f"s_mul_i32 s{S_T0}, s{S_T0}, 86")
    a.e(f"s_lshl_b32 s{S_T1}, s{S_U0}, 1")
    a.e(f"s_add_u32 s{S_T0}, s{S_T0}, s{S_T1}")
    a.e(f"s_mul_i32 s{S_T1}, s{S_FW}, 3")
    a.e(f"s_add_u32 s{S_T0}, s{S_T0}, s{S_T1}")
    a.e(f"s_lshl_b32 s{S_T0}, s{S_T0}, 10")
    a.e(f"s_add_u32 s{S_T0}, s{S_T0}, {WS_H}")
    a.e(f"v_lshl_add_u32 v58, v{V_LANE}, 4, s{S_T0}")
    a.e(f"v_add_u32 v59, {86*1024}, v58")
    a.e(f"s_sub_u32 s{S_T2}, s{S_NU}, s{S_T1}")
    a.e(f"s_lshl_b32 s{S_T0}, s{S_WG}, 12")
    a.e(f"s_add_u32 s{S_T0}, s{S_T0}, {WS_DUMMY}")
    a.e(f"v_lshl_add_u32 v60, v{V_LANE}, 4, s{S_T0}")
    a.e(f"s_cmp_gt_u32 s{S_T2}, 1")
    a.e(f"s_cselect_b64 s[74:75], -1, 0")
    a.e(f"v_cndmask_b32 v61, v60, v59, s[74:75]")
    a.e(f"v_cndmask_b32 v60, v60, v58, s[74:75]")
    a.e("s_nop 7")
    for ap in range(3):
        for tt in range(2):
            c = acc(tt, ap)
            R = 2 + 2 * tt
            Sg = 54 + 2 * tt
            Gq, T, X = 6, 14, 22
            for p in range(4):
                a.e(f"v_pk_mul_f32 {vr(Gq+2*p,2)}, {vr(c+2*p,2)}, {vr(R,2)} op_sel_hi:[1,0]")
            for p in range(4):
                a.e(f"v_pk_mul_f32 {vr(T+2*p,2)}, {vr(Gq+2*p,2)}, {vr(Gq+2*p,2)}")
            for p in range(4):
                a.e(f"v_pk_fma_f32 {vr(T+2*p,2)}, {vr(T+2*p,2)}, {vr(52,2)}, {vr(52,2)} op_sel:[0,1,0] op_sel_hi:[1,1,0]")
            for p in range(4):
                a.e(f"v_pk_mul_f32 {vr(T+2*p,2)}, {vr(T+2*p,2)}, {vr(Gq+2*p,2)}")
            for p in range(8):
                a.e(f"v_exp_f32 v{T+p}, v{T+p}")
            for p in range(4):
                a.e(f"v_pk_mul_f32 {vr(Gq+2*p,2)}, {vr(Gq+2*p,2)}, {vr(c+8+2*p,2)}")
            for p in range(4):
                a.e(f"v_pk_fma_f32 {vr(T+2*p,2)}, {vr(T+2*p,2)}, {vr(Sg,2)}, {vr(Sg,2)} op_sel_hi:[1,0,0]")
            for p in range(8):
                a.e(f"v_rcp_f32 v{T+p}, v{T+p}")
            a.e("s_nop 0")
            for p in range(4):
                a.e(f"v_pk_mul_f32 {vr(Gq+2*p,2)}, {vr(Gq+2*p,2)}, {vr(T+2*p,2)}")
            O = X + 4 * ((2 * ap + tt) % 2)
            for p in range(4):
                a.e(f"v_cvt_pk_bf16_f32 v{O+p}, v{Gq+2*p}, v{Gq+2*p+1}")
            adr = (58 + tt) if ap == 0 else (60 + tt)
            a.vm(f"global_store_dwordx4 v{adr}, {vr(O,4)}, s[{P_WS}:{P_WS+1}] offset:{1024*ap} sc1", "pubH")


WD_N = {1: 5, 2: 5, 3: 5, 4: 7}
WD_K0 = {1: 0, 2: 5, 3: 10, 4: 15}
WD_L = {1: (0, 10240), 2: (SLOT, 10240), 3: (25856, 10240), 4: (2*SLOT, 7*2048)}
V_WDL = 240
S_WDL = 15
S_WDS = 73

def wd_setup2(a):
    mk_srd(a, SRD_WD, P_WD, 1376 * 1024)
    a.e(f"s_mul_i32 s{S_WDO}, s{S_W}, {352 * 1024}")
    a.e(f"s_lshl_b32 s{S_T0}, s{S_NT}, 7")
    a.e(f"s_add_u32 s{S_WDO}, s{S_WDO}, s{S_T0}")
    a.e(f"s_mov_b32 s{S_WDS}, s{S_WDO}")
    a.e(f"v_lshrrev_b32 v6, 3, v{V_LANE}")
    a.e(f"v_and_b32 v7, 7, v{V_LANE}")
    a.e(f"v_bfe_u32 v8, v6, 1, 1")
    a.e(f"v_lshlrev_b32 v8, 2, v8")
    a.e(f"v_xor_b32 v7, v7, v8")
    a.e(f"v_lshlrev_b32 v7, 4, v7")
    a.e(f"v_lshl_add_u32 v{V_WDOFF}, v6, 10, v7")
    a.e(f"v_lshrrev_b32 v6, 4, v{V_LANE}")
    a.e(f"v_and_b32 v7, 1, v6")
    a.e(f"v_lshrrev_b32 v6, 1, v6")
    a.e(f"v_bfe_u32 v8, v{V_LANE}, 2, 2")
    a.e(f"v_lshl_add_u32 v8, v6, 2, v8")
    a.e(f"v_lshlrev_b32 v8, 7, v8")
    a.e(f"v_lshl_add_u32 v8, v7, 5, v8")
    a.e(f"v_and_b32 v7, 3, v{V_LANE}")
    a.e(f"v_lshl_add_u32 v8, v7, 3, v8")
    a.e(f"v_bfe_u32 v7, v{V_LANE}, 3, 1")
    a.e(f"v_lshlrev_b32 v7, 6, v7")
    a.e(f"v_add_u32 v{V_WDL}, v8, v7")
    a.e(f"v_xor_b32 v7, 64, v7")
    a.e(f"v_add_u32 v{V_WDL+1}, v8, v7")

S_KR = 9
S_RHO = 72
S_ROT = 35
def wd_groups(rnd):
    ks0, n = WD_K0[rnd], WD_N[rnd]
    lb, wsz = WD_L[rnd]
    out = []
    for q in range(2 * n):
        pre = [f"s_mul_i32 s{S_WDL}, s{S_W}, {wsz}"] if q == 0 else []
        out.append(Dma(pre, f"s_add_u32 m0, s{S_WDL}, {lb + q*1024}",
                       (f"buffer_load_dwordx4 v{V_WDOFF}, s[{SRD_WD}:{SRD_WD+3}], s{S_WDS} offen lds", f"wd{rnd}"),
                       [f"s_add_u32 s{S_WDS}, s{S_WDS}, 8192"]))
    return out

def wd_tr(rnd):
    ks0, n = WD_K0[rnd], WD_N[rnd]
    lb, wsz = WD_L[rnd]
    out = [f"s_mul_i32 s{S_T0}, s{S_W}, {wsz}", f"s_add_u32 s{S_T0}, s{S_T0}, {lb}",
           f"v_add_u32 v{V_WDA}, s{S_T0}, v{V_WDL}", f"v_add_u32 v{V_WDA+1}, s{S_T0}, v{V_WDL+1}"]
    for k in range(n):
        for t in range(2):
            for h in range(2):
                out.append(f"ds_read_b64_tr_b16 {ar(8*(ks0+k) + 4*t + 2*h, 2)}, v{V_WDA+t} offset:{k*2048 + h*1024}")
    return out


def xt_loads2(a):
    a.e(f"s_and_b32 s{S_T0}, s{S_WG}, 7")
    a.e(f"s_lshr_b32 s{S_T1}, s{S_WG}, 3")
    a.e(f"s_lshl_b32 s{S_T0}, s{S_T0}, 6")
    a.e(f"s_lshl_b32 s{S_T1}, s{S_T1}, 1")
    a.e(f"s_add_u32 s{S_T0}, s{S_T0}, s{S_T1}")
    a.e(f"s_lshl_b32 s{S_T0}, s{S_T0}, 4")
    a.e(f"s_lshl_b32 s{S_T1}, s{S_W}, 19")
    a.e(f"s_add_u32 s{S_T0}, s{S_T0}, s{S_T1}")
    a.e(f"s_add_u32 s{S_T0}, s{S_T0}, {WS_XT}")
    a.e(f"v_lshrrev_b32 v30, 1, v{V_LANE}")
    a.e(f"v_lshlrev_b32 v30, 13, v30")
    a.e(f"v_and_b32 v31, 1, v{V_LANE}")
    a.e(f"v_lshl_add_u32 v30, v31, 4, v30")
    a.e(f"v_add_u32 v30, s{S_T0}, v30")
    a.vm(f"global_load_dwordx4 {vr(V_XT,4)}, v30, s[{P_WS}:{P_WS+1}] sc1", "xt")
    a.e(f"v_add_u32 v30, {32*8192}, v30")
    a.vm(f"global_load_dwordx4 {vr(V_XT+4,4)}, v30, s[{P_WS}:{P_WS+1}] sc1", "xt")

V_UA = 242
def u_write_e(a):
    a.vm_wait("xt")
    a.e(f"v_and_b32 v6, 1, v{V_LANE}")
    a.e(f"v_mul_u32_u24 v6, {UU_CH}, v6")
    a.e(f"v_lshrrev_b32 v7, 1, v{V_LANE}")
    a.e(f"v_lshl_add_u32 v6, v7, 4, v6")
    a.e(f"s_lshl_b32 s{S_T0}, s{S_W}, 10")
    a.e(f"s_add_u32 s{S_T0}, s{S_T0}, {L_UU + 32}")
    a.e(f"v_add_u32 v{V_UA}, s{S_T0}, v6")
    a.e(f"ds_write_b128 v{V_UA}, {vr(V_XT,4)}")
    a.e(f"ds_write_b128 v{V_UA}, {vr(V_XT+4,4)} offset:512")
    lab = a.label("nopad")
    a.e(f"s_cmp_lg_u32 s{S_W}, 0")
    a.e(f"s_cbranch_scc1 {lab}")
    a.e(f"v_lshrrev_b32 v6, 3, v{V_LANE}")
    a.e(f"v_mul_u32_u24 v6, {UU_CH}, v6")
    a.e(f"v_and_b32 v7, 7, v{V_LANE}")
    a.e(f"v_lshl_add_u32 v6, v7, 2, v6")
    a.e(f"v_add_u32 v6, {L_UU}, v6")
    a.e("v_mov_b32 v7, 0")
    a.e(f"s_mov_b64 s[{S_EXEC}:{S_EXEC+1}], exec")
    a.e("s_mov_b64 exec, 0xffff")
    a.e("ds_write_b32 v6, v7")
    a.e("s_mov_b64 exec, 0x7f7f")
    a.e("ds_write_b32 v6, v7 offset:4160")
    a.e(f"s_mov_b64 exec, s[{S_EXEC}:{S_EXEC+1}]")
    a.e(f"{lab}:")

def u_write_o(a):
    a.e(f"ds_read_b32 v6, v{V_UA} offset:16")
    a.e(f"ds_read_b32 v7, v{V_UA} offset:{512+16}")
    for q in range(2):
        X = V_XT + 4*q
        for k in range(3):
            a.e(f"v_alignbit_b32 v{8+4*q+k}, v{X+k+1}, v{X+k}, 16")
    a.e("s_waitcnt lgkmcnt(0)")
    a.e(f"v_alignbit_b32 v11, v6, v{V_XT+3}, 16")
    a.e(f"v_alignbit_b32 v15, v7, v{V_XT+7}, 16")
    a.e(f"ds_write_b128 v{V_UA}, v[8:11] offset:4160")
    a.e(f"ds_write_b128 v{V_UA}, v[12:15] offset:{4160+512}")
    lab = a.label("noo7")
    a.e(f"s_cmp_lg_u32 s{S_W}, 0")
    a.e(f"s_cbranch_scc1 {lab}")
    a.e(f"v_lshlrev_b32 v6, 16, v{V_XT}")
    a.e(f"s_mov_b64 s[{S_EXEC}:{S_EXEC+1}], exec")
    a.e("s_mov_b64 exec, 3")
    a.e(f"ds_write_b32 v{V_UA}, v6 offset:{4160 - 4}")
    a.e(f"s_mov_b64 exec, s[{S_EXEC}:{S_EXEC+1}]")
    a.e(f"{lab}:")


KS = 176
L_KV2 = 2 * SLOT
L_KX2 = L_KV2 + 2 * KV_CH
L_KR2, L_UU2, L_CX2 = 0, 9216, 139776
V_KWA = 62

def kgen_shadow():
    out = []
    e = out.append
    P = V_P
    AL, BE, CO = 10, 11, 12
    Z1, Z2, Z4, Z8, Z256, Z512 = 14, 16, 18, 20, 22, 24
    A0, A1, B0, B1, C0, C1, CB, D0, D1, DB0, DB1 = 26, 28, 30, 32, 34, 36, 38, 40, 42, 44, 46
    T = 48
    for q in range(8):
        e(f"v_lshlrev_b32 v{P+q}, 16, v{P+q}")
    e(f"v_mul_f32 v58, 0x3fb8aa3b, v{P+6}")
    e("v_exp_f32 v58, v58")
    e(f"v_mov_b32 v{A0}, 1.0")
    e(f"v_cvt_pk_bf16_f32 v58, v58, v58")
    e(f"v_mov_b32 v{A0+1}, 0")
    e(f"v_lshlrev_b32 v58, 16, v58")
    e(f"v_mul_f32 v{AL}, v58, v{P}")
    e(f"v_mul_f32 v{BE}, v58, v{P+1}")
    e(f"v_mul_f32 v56, v58, v{P+2}")
    e(f"v_mul_f32 v57, v58, v{P+3}")
    e(f"v_mul_f32 v{AL}, 0x3fb8aa3b, v{AL}")
    e(f"v_mul_f32 v{BE}, 0.15915494, v{BE}")
    e(f"v_mul_f32 v{CO}, v{P+4}, v56")
    e(f"v_mul_f32 v{CO+1}, v{P+4}, v57")
    e(f"v_fma_f32 v{CO}, -v{P+5}, v57, v{CO}")
    e(f"v_fma_f32 v{CO+1}, v{P+5}, v56, v{CO+1}")
    items = [(Z1, 1, T), (Z8, 8, T+2), (Z256, 256, T+4), (B0, 128, T+6)]
    for d, p, t in items:
        e(f"v_mul_f32 v{t}, {fhex(float(p))}, v{AL}")
        e(f"v_mul_f32 v{t+1}, {fhex(float(p))}, v{BE}")
    for d, p, t in items:
        e(f"v_exp_f32 v{t}, v{t}")
        e(f"v_fract_f32 v{t+1}, v{t+1}")
    for d, p, t in items:
        e(f"v_cos_f32 v{d}, v{t+1}")
        e(f"v_sin_f32 v{d+1}, v{t+1}")
    e("v_nop")
    for d, p, t in items:
        e(f"v_mul_f32 v{d}, v{d}, v{t}")
        e(f"v_mul_f32 v{d+1}, v{d+1}, v{t}")
    def cm(d, x, y):
        return [f"v_mul_f32 v{d}, v{x}, v{y}", f"v_mul_f32 v{d+1}, v{x}, v{y+1}",
                f"v_fma_f32 v{d}, -v{x+1}, v{y+1}, v{d}", f"v_fma_f32 v{d+1}, v{x+1}, v{y}, v{d+1}"]
    pk = [0]
    def put(vec, pr):
        r = 56 + (pk[0] % 2); pk[0] += 1
        return [f"v_cvt_pk_bf16_f32 v{r}, v{pr}, {'-' if vec < 32 else ''}v{pr+1}", f"v_accvgpr_write_b32 a{KS+vec}, v{r}"]
    for d, x, y in ((Z2, Z1, Z1), (Z512, Z256, Z256), (CB, CO, Z256), (Z4, Z2, Z2), (DB0, CO, Z512)):
        out += cm(d, x, y)
    sA = [('p', 32, A0)]
    cur, oth = A0, A1
    for b in range(1, 16):
        sA += [('m', oth, cur, Z8), ('p', 32 + b, oth)]; cur, oth = oth, cur
    sB = [('p', 48, B0)]
    cur, oth = B0, B1
    for b in range(17, 32):
        sB += [('m', oth, cur, Z8), ('p', 32 + b, oth)]; cur, oth = oth, cur
    sC = [('p', 0, CO)]
    cur = CO
    for ee in range(1, 8):
        d = (C0, C1)[ee % 2]; sC += [('m', d, cur, Z1), ('p', ee, d)]; cur = d
    sC += [('p', 8, CB), ('m', C0, CB, Z2), ('p', 9, C0), ('m', C1, C0, Z2), ('p', 10, C1), ('p', 12, C1),
           ('m', C0, C1, Z2), ('p', 13, C0), ('m', C1, C0, Z2), ('p', 14, C1)]
    sD = [('p', 16, DB0), ('m', D0, DB0, Z4), ('p', 17, D0), ('p', 20, D0), ('m', D1, D0, Z4), ('p', 21, D1),
          ('m', DB1, DB0, Z256), ('p', 18, DB1), ('m', D0, DB1, Z4), ('p', 19, D0), ('p', 22, D0), ('m', D1, D0, Z4), ('p', 23, D1)]
    prev, nxt = DB1, DB0
    for q in range(4):
        sD += [('m', nxt, prev, Z256), ('p', 24 + q, nxt), ('m', (D0, D1)[q % 2], nxt, Z8), ('p', 28 + q, (D0, D1)[q % 2])]
        prev, nxt = nxt, prev
    seqs = [sA, sB, sC, sD]
    pos = [0]*4
    while any(pos[q] < len(seqs[q]) for q in range(4)):
        for q in range(4):
            if pos[q] < len(seqs[q]):
                st = seqs[q][pos[q]]; pos[q] += 1
                out += put(st[1], st[2]) if st[0] == 'p' else cm(st[1], st[2], st[3])
    return out

KV_VECS = [v for v in range(64) if v not in (11, 15)]
def kv_addr(a):
    a.e(f"s_mul_i32 s{S_T0}, s{S_CH}, {KV_CH}")
    a.e(f"s_lshl_b32 s{S_T1}, s{S_MH}, 8")
    a.e(f"s_add_u32 s{S_T0}, s{S_T0}, s{S_T1}")
    a.e(f"s_add_u32 s{S_T0}, s{S_T0}, {L_KV2}")
    a.e(f"v_lshl_add_u32 v{V_KWA}, v{V_LANE}, 2, s{S_T0}")
def kv_writes():
    return [[f"ds_write_b32 v{V_KWA}, a{KS+v} offset:{v*528}"] for v in KV_VECS]


def kgen5_mfma(a, pre_b, post_b, extra_reads):
    a.e(f"v_and_b32 v2, 31, v{V_LANE}")
    a.e(f"v_mul_u32_u24 v2, 528, v2")
    a.e(f"v_lshrrev_b32 v3, 5, v{V_LANE}")
    a.e(f"v_lshl_add_u32 v2, v3, 4, v2")
    a.e(f"s_mul_i32 s{S_T0}, s{S_CH}, {KV_CH}")
    a.e(f"s_lshl_b32 s{S_T1}, s{S_MH}, 8")
    a.e(f"s_add_u32 s{S_T0}, s{S_T0}, s{S_T1}")
    a.e(f"s_add_u32 s{S_T0}, s{S_T0}, {L_KV2}")
    a.e(f"v_add_u32 v2, s{S_T0}, v2")
    KD = 64
    FA, FB = 80, 112
    a.e("s_waitcnt lgkmcnt(0)")
    for k in range(8):
        a.e(f"ds_read_b128 {vr(FA+4*k,4)}, v2 offset:{k*32}")
        a.e(f"ds_read_b128 {vr(FB+4*k,4)}, v2 offset:{32*528 + k*32}")
    a.e(f"s_lshl_b32 s{S_T0}, s{S_W}, 11")
    a.e(f"s_add_u32 s{S_T0}, s{S_T0}, {L_KX2}")
    a.e(f"v_lshl_add_u32 v2, v{V_LANE}, 4, s{S_T0}")
    a.e(f"s_xor_b32 s{S_T1}, s{S_W}, 1")
    a.e(f"s_lshl_b32 s{S_T1}, s{S_T1}, 11")
    a.e(f"s_add_u32 s{S_T1}, s{S_T1}, {L_KX2}")
    a.e(f"v_lshl_add_u32 v3, v{V_LANE}, 4, s{S_T1}")
    pre, body = extra_reads
    for x in pre:
        emit_group(a, x if (isinstance(x, list) or callable(x)) else [x])
    a.e("s_waitcnt lgkmcnt(0)")
    mf = [f"v_mfma_f32_32x32x16_bf16 {vr(KD,16)}, {vr(FA+4*k,4)}, {vr(FB+4*k,4)}, {'0' if k == 0 else vr(KD,16)}" for k in range(8)]
    slots = {i: [] for i in range(8)}
    for k, x in enumerate(body):
        slots[(k * 8) // len(body)].append(x)
    sched(a, mf, slots)
    a.e(f"s_mul_i32 s{S_T0}, s{S_CH}, {KR_CH}")
    a.e(f"s_add_u32 s{S_T0}, s{S_T0}, {L_KR2 + 504}")
    a.e(f"v_and_b32 v4, 31, v{V_LANE}")
    a.e(f"v_lshlrev_b32 v5, 4, v4")
    a.e(f"v_lshrrev_b32 v6, 5, v{V_LANE}")
    a.e(f"v_lshl_add_u32 v5, v6, 3, v5")
    a.e(f"v_sub_u32 v5, s{S_T0}, v5")
    a.e(f"s_add_u32 s{S_T2}, s{S_T0}, {4096 - 504}")
    a.e(f"v_lshl_add_u32 v4, v{V_LANE}, 4, s{S_T2}")
    lab1, lab2 = a.label("kx1"), a.label("kx2")
    a.e(f"s_cmp_eq_u32 s{S_MH}, 0")
    a.e(f"s_cbranch_scc1 {lab1}")
    a.e(f"ds_write_b128 v2, {vr(KD,4)}")
    a.e(f"ds_write_b128 v2, {vr(KD+4,4)} offset:1024")
    for q in range(4):
        a.e(f"v_pk_mul_f32 {vr(KD+2*q,2)}, {vr(KD+8+2*q,2)}, 1.0 op_sel_hi:[1,0]")
    a.e(f"s_branch {lab2}")
    a.e(f"{lab1}:")
    a.e(f"ds_write_b128 v2, {vr(KD+8,4)}")
    a.e(f"ds_write_b128 v2, {vr(KD+12,4)} offset:1024")
    a.e(f"{lab2}:")
    stamp(a, "km0")
    pre_b(a)
    stamp(a, "km1")
    a.e("s_waitcnt lgkmcnt(0)")
    a.e("s_barrier")
    a.e(f"ds_read_b128 {vr(80,4)}, v3")
    a.e(f"ds_read_b128 {vr(84,4)}, v3 offset:1024")
    stamp(a, "km2")
    post_b(a)
    a.e("s_waitcnt lgkmcnt(0)")
    for q in range(4):
        a.e(f"v_pk_add_f32 {vr(KD+2*q,2)}, {vr(KD+2*q,2)}, {vr(80+2*q,2)}")
    D = KD
    lab1, lab2 = a.label("ex1"), a.label("ex2")
    a.e(f"s_cmp_eq_u32 s{S_MH}, 0")
    a.e(f"s_cbranch_scc0 {lab1}")
    a.e(f"v_cvt_pk_bf16_f32 v8, v{D+3}, v{D+2}")
    a.e(f"v_cvt_pk_bf16_f32 v9, v{D+1}, v{D}")
    a.e(f"v_cvt_pk_bf16_f32 v10, v{D+6}, v{D+5}")
    a.e(f"v_cvt_pk_bf16_f32 v11, v{D+4}, v{D+4}")
    a.e("ds_write_b64 v5, v[8:9] offset:3584")
    a.e("ds_write_b64 v5, v[10:11] offset:3072")
    for q in range(4):
        a.e(f"v_mov_b32 v{12+q}, 0")
    a.e(f"s_mov_b64 s[{S_EXEC}:{S_EXEC+1}], exec")
    a.e("s_mov_b64 exec, 0x3fffffff")
    a.e("ds_write_b128 v4, v[12:15]")
    a.e(f"s_mov_b64 exec, s[{S_EXEC}:{S_EXEC+1}]")
    a.e(f"s_branch {lab2}")
    a.e(f"{lab1}:")
    a.e(f"v_cmp_le_u32 vcc, 32, v{V_LANE}")
    a.e(f"v_and_b32 v7, 1, v{V_LANE}")
    a.e(f"v_cmp_eq_u32 s[{S_TMP}:{S_TMP+1}], 1, v7")
    for q in range(4):
        a.e(f"v_mov_b32 v{16+2*q}, v{D+4+q}")
        a.e(f"v_mov_b32 v{17+2*q}, v{D+4+q}")
    for q in range(2):
        A_, B_ = D + 2*q, D + 2*q + 1
        a.e(f"v_cndmask_b32 v12, v{A_}, v{B_}, vcc")
        a.e(f"v_cvt_pk_bf16_f32 v{8+2*q+0}, v{B_}, v12")
        a.e(f"v_cvt_pk_bf16_f32 v{8+2*q+1}, v{A_}, v{A_}")
    for q in range(4):
        a.e(f"v_permlane32_swap_b32 v{16+2*q}, v{17+2*q}")
    a.e("ds_write_b64 v5, v[8:9] offset:2560")
    a.e("ds_write_b64 v5, v[10:11] offset:2048")
    for q in range(4):
        a.e(f"v_cndmask_b32 v{16+2*q}, v{16+2*q}, v{D+4+q}, s[{S_TMP}:{S_TMP+1}]")
    for q in range(4):
        a.e(f"v_cvt_pk_bf16_f32 v{24+2*q}, v{D+4+q}, v{D+4+q}")
        a.e(f"v_cvt_pk_bf16_f32 v{25+2*q}, v{D+4+q}, v{16+2*q}")
    for q in range(4):
        a.e(f"ds_write_b64 v5, {vr(24+2*q,2)} offset:{1536 - 512*q}")
    a.e(f"{lab2}:")


V_XE = 240 + 3
def xt_extra(a):
    a.e(f"v_and_b32 v31, 1, v{V_LANE}")
    a.e(f"s_add_u32 s{S_T0}, s{S_T0}, {64*8192}")
    a.e(f"v_lshl_add_u32 v31, v31, 4, s{S_T0}")
    a.vm(f"global_load_dword v242, v31, s[{P_WS}:{P_WS+1}] sc1", "xt")

def u_prep(a):
    a.vm_wait("xt")
    a.e(f"v_add_u32 v6, 2, v{V_LANE}")
    a.e(f"v_and_b32 v6, 63, v6")
    a.e(f"v_lshlrev_b32 v6, 2, v6")
    a.e(f"ds_bpermute_b32 v7, v6, v{V_XT}")
    a.e(f"ds_bpermute_b32 v8, v6, v{V_XT+4}")
    for q in range(2):
        X = V_XT + 4*q
        for k in range(3):
            a.e(f"v_alignbit_b32 v{144+4*q+k}, v{X+k+1}, v{X+k}, 16")
    a.e(f"v_cmp_gt_u32 vcc, 62, v{V_LANE}")
    a.e("s_waitcnt lgkmcnt(0)")
    a.e(f"v_cndmask_b32 v7, v8, v7, vcc")
    a.e(f"v_cndmask_b32 v8, v242, v8, vcc")
    a.e(f"v_alignbit_b32 v147, v7, v{V_XT+3}, 16")
    a.e(f"v_alignbit_b32 v151, v8, v{V_XT+7}, 16")

def u_write(a):
    a.e(f"v_and_b32 v6, 1, v{V_LANE}")
    a.e(f"v_mul_u32_u24 v6, {UU_CH}, v6")
    a.e(f"v_lshrrev_b32 v7, 1, v{V_LANE}")
    a.e(f"v_lshl_add_u32 v6, v7, 4, v6")
    a.e(f"s_lshl_b32 s{S_T0}, s{S_W}, 10")
    a.e(f"s_add_u32 s{S_T0}, s{S_T0}, {L_UU2 + 32}")
    a.e(f"v_add_u32 v6, s{S_T0}, v6")
    a.e(f"ds_write_b128 v6, {vr(V_XT,4)}")
    a.e(f"ds_write_b128 v6, {vr(V_XT+4,4)} offset:512")
    a.e(f"ds_write_b128 v6, v[144:147] offset:4160")
    a.e(f"ds_write_b128 v6, v[148:151] offset:{4160+512}")
    lab = a.label("nopad")
    a.e(f"s_cmp_lg_u32 s{S_W}, 0")
    a.e(f"s_cbranch_scc1 {lab}")
    a.e(f"v_lshlrev_b32 v8, 16, v{V_XT}")
    a.e(f"v_lshrrev_b32 v9, 3, v{V_LANE}")
    a.e(f"v_mul_u32_u24 v9, {UU_CH}, v9")
    a.e(f"v_and_b32 v7, 7, v{V_LANE}")
    a.e(f"v_lshl_add_u32 v9, v7, 2, v9")
    a.e(f"v_add_u32 v9, {L_UU2}, v9")
    a.e("v_mov_b32 v7, 0")
    a.e(f"s_mov_b64 s[{S_EXEC}:{S_EXEC+1}], exec")
    a.e("s_mov_b64 exec, 0xffff")
    a.e("ds_write_b32 v9, v7")
    a.e("s_mov_b64 exec, 0x7f7f")
    a.e("ds_write_b32 v9, v7 offset:4160")
    a.e("s_mov_b64 exec, 3")
    a.e(f"ds_write_b32 v6, v8 offset:{4160 - 4}")
    a.e(f"s_mov_b64 exec, s[{S_EXEC}:{S_EXEC+1}]")
    a.e(f"{lab}:")


def conv_addr(a):
    a.e(f"v_and_b32 v2, 15, v{V_LANE}")
    a.e(f"v_lshrrev_b32 v3, 4, v{V_LANE}")
    a.e(f"v_and_b32 v4, 1, v3")
    a.e(f"v_lshrrev_b32 v3, 1, v3")
    a.e(f"v_lshlrev_b32 v5, 5, v3")
    a.e(f"v_lshlrev_b32 v6, 4, v4")
    a.e(f"v_sub_u32 v5, v5, v6")
    a.e(f"s_lshl_b32 s{S_T2}, s{S_MH}, 6")
    a.e(f"s_mul_i32 s{S_T0}, s{S_CH}, {KR_CH}")
    a.e(f"s_add_u32 s{S_T0}, s{S_T0}, {L_KR2 + 496}")
    a.e(f"s_add_u32 s{S_T0}, s{S_T0}, s{S_T2}")
    a.e(f"v_lshlrev_b32 v6, 5, v2")
    a.e(f"v_sub_u32 v6, v5, v6")
    a.e(f"v_add_u32 v{CVB}, s{S_T0}, v6")
    a.e(f"s_mul_i32 s{S_T0}, s{S_CH}, {UU_CH}")
    a.e(f"s_add_u32 s{S_T0}, s{S_T0}, {L_UU2}")
    a.e(f"s_add_u32 s{S_T0}, s{S_T0}, s{S_T2}")
    a.e(f"v_and_b32 v6, 1, v2")
    a.e(f"v_cmp_eq_u32 vcc, 1, v6")
    a.e(f"v_mov_b32 v6, {4160+16}")
    a.e(f"v_lshl_add_u32 v7, v2, 1, v5")
    a.e(f"v_mov_b32 v3, 18")
    a.e(f"v_cndmask_b32 v6, v6, v3, vcc")
    a.e(f"v_add_u32 v7, v7, v6")
    a.e(f"v_add_u32 v{CVA}, s{S_T0}, v7")
    for al in range(1, 8):
        a.e(f"v_add_u32 v{CVA+al}, {512*al}, v{CVA}")

CVA, CVB = 44, 52

def conv_main3(a, fillers, late):
    a.e("s_waitcnt lgkmcnt(0)")
    a.e("s_barrier")
    def reads(st, q):
        r = []
        for al in range(8):
            r.append(f"ds_read2_b32 {vr(CV_A[st]+4*al,2)}, v{CVA+al} offset0:{32*q} offset1:{32*q+1}")
            r.append(f"ds_read2_b32 {vr(CV_A[st]+4*al+2,2)}, v{CVA+al} offset0:{32*q+2} offset1:{32*q+3}")
            r.append(f"ds_read_b128 {vr(CV_B[st]+4*al,4)}, v{CVB} offset:{512*(7-al) + 128*q}")
        return r
    r0 = reads(0, 0)
    order = [x for x in r0 if "b128" in x] + [x for x in r0 if "b128" not in x]
    for x in order:
        a.e(x)
    st = 0
    fill = list(fillers)
    for q in range(4):
        a.e("s_waitcnt lgkmcnt(0)" if q else "s_waitcnt lgkmcnt(14)")
        mf = []
        for al in range(8):
            for be in range(8 - al):
                I = al + be
                c = "0" if (q == 0 and al == 0) else vr(CV_ACC + 4*I, 4)
                mf.append(f"v_mfma_f32_16x16x32_bf16 {vr(CV_ACC+4*I,4)}, {vr(CV_A[st]+4*al,4)}, {vr(CV_B[st]+4*be,4)}, {c}")
        slots = {i: [] for i in range(36)}
        if q == 0:
            slots[7].append("s_waitcnt lgkmcnt(0)")
        if q < 3:
            rd = reads(st ^ 1, q + 1)
            rd = [x for x in rd if "b128" in x] + [x for x in rd if "b128" not in x]
            base = 8 if q == 0 else 0
            for k, x in enumerate(rd):
                slots[base + k].append(x)
        nf = (len(fill) + (2 - q)) // (3 - q) if q < 3 else len(fill)
        for k in range(nf):
            place(slots, min(35, 1 + 4*k), fill.pop(0))
        for k, it in enumerate(late.get(q, [])):
            slots[min(35, 2 + 2*k)].append(it)
        stamp(a, f"cv{q}")
        sched(a, mf, slots)
        st ^= 1


def conv_finish3(a):
    a.e(f"s_lshl_b32 s{S_T0}, s{S_W}, 12")
    a.e(f"s_add_u32 s{S_T0}, s{S_T0}, {L_CX2}")
    a.e(f"v_lshl_add_u32 v2, v{V_LANE}, 4, s{S_T0}")
    a.e(f"s_xor_b32 s{S_T1}, s{S_W}, 1")
    a.e(f"s_lshl_b32 s{S_T1}, s{S_T1}, 12")
    a.e(f"s_add_u32 s{S_T1}, s{S_T1}, {L_CX2}")
    a.e(f"v_lshl_add_u32 v3, v{V_LANE}, 4, s{S_T1}")
    a.e(f"s_mul_i32 s{S_T0}, s{S_CH}, {UU_CH}")
    a.e(f"s_add_u32 s{S_T0}, s{S_T0}, {L_UU2 + 32}")
    a.e(f"s_lshl_b32 s{S_T1}, s{S_MH}, 11")
    a.e(f"s_add_u32 s{S_T0}, s{S_T0}, s{S_T1}")
    a.e(f"v_and_b32 v4, 15, v{V_LANE}")
    a.e(f"v_lshrrev_b32 v5, 4, v{V_LANE}")
    a.e(f"v_lshlrev_b32 v6, 5, v4")
    a.e(f"v_lshl_add_u32 v6, v5, 3, v6")
    a.e(f"v_add_u32 v6, s{S_T0}, v6")
    lab1, lab2 = a.label("cx1"), a.label("cx2")
    a.e(f"s_cmp_eq_u32 s{S_MH}, 0")
    a.e(f"s_cbranch_scc1 {lab1}")
    for k in range(4):
        a.e(f"ds_write_b128 v2, {vr(CV_ACC+4*k,4)} offset:{1024*k}")
    for q in range(8):
        a.e(f"v_pk_mul_f32 {vr(CV_ACC+2*q,2)}, {vr(CV_ACC+16+2*q,2)}, 1.0 op_sel_hi:[1,0]")
    a.e(f"s_branch {lab2}")
    a.e(f"{lab1}:")
    for k in range(4):
        a.e(f"ds_write_b128 v2, {vr(CV_ACC+16+4*k,4)} offset:{1024*k}")
    a.e(f"{lab2}:")
    for k in range(4):
        a.e(f"ds_read_b64 {vr(40+2*k,2)}, v6 offset:{512*k}")
    a.e(f"s_lshl_b32 s{S_T0}, s{S_MH}, 20")
    a.e(f"s_lshl_b32 s{S_T1}, s{S_D}, 7")
    a.e(f"s_add_u32 s{S_T0}, s{S_T0}, s{S_T1}")
    a.e(f"s_add_u32 s{S_T0}, s{S_T0}, {WS_Y}")
    a.e(f"v_lshrrev_b32 v7, 2, v4")
    a.e(f"v_lshlrev_b32 v7, 16, v7")
    a.e(f"v_and_b32 v8, 3, v4")
    a.e(f"v_lshl_add_u32 v7, v8, 5, v7")
    a.e(f"v_lshl_add_u32 v7, v5, 3, v7")
    a.e(f"v_add_u32 v7, s{S_T0}, v7")
    a.e("s_waitcnt lgkmcnt(0)")
    a.e("s_barrier")
    for k in range(4):
        a.e(f"ds_read_b128 {vr(64+4*k,4)}, v3 offset:{1024*k}")
    DS = V_P + 6
    U = 16
    for k in range(4):
        a.e(f"v_lshlrev_b32 v{U+4*k}, 16, v{40+2*k}")
        a.e(f"v_and_b32 v{U+4*k+1}, 0xffff0000, v{40+2*k}")
        a.e(f"v_lshlrev_b32 v{U+4*k+2}, 16, v{41+2*k}")
        a.e(f"v_and_b32 v{U+4*k+3}, 0xffff0000, v{41+2*k}")
    for k in range(8):
        a.e(f"v_pk_fma_f32 {vr(CV_ACC+2*k,2)}, {vr(U+2*k,2)}, {vr(DS,2)}, {vr(CV_ACC+2*k,2)} op_sel:[0,1,0] op_sel_hi:[1,1,1]")
    a.e("s_waitcnt lgkmcnt(0)")
    for k in range(8):
        a.e(f"v_pk_add_f32 {vr(CV_ACC+2*k,2)}, {vr(CV_ACC+2*k,2)}, {vr(64+2*k,2)}")
    for k in range(8):
        a.e(f"v_cvt_pk_bf16_f32 v{40+k}, v{CV_ACC+2*k}, v{CV_ACC+2*k+1}")
    for k in range(4):
        a.vm(f"global_store_dwordx2 v7, {vr(40+2*k,2)}, s[{P_WS}:{P_WS+1}] sc1", "pubY")
        if k < 3:
            a.e(f"v_add_u32 v7, {4*65536}, v7")


def h_setup3(a):
    a.e(f"s_lshl_b32 s{S_T0}, s{S_I}, 2")
    a.e(f"s_lshl_b32 s{S_T1}, s{S_TH}, 1")
    a.e(f"s_add_u32 s{S_T0}, s{S_T0}, s{S_T1}")
    a.e(f"s_mul_i32 s{S_T0}, s{S_T0}, 86")
    a.e(f"s_mul_i32 s{S_T1}, s{S_W}, 22")
    a.e(f"s_add_u32 s{S_T0}, s{S_T0}, s{S_T1}")
    a.e(f"s_lshl_b32 s{S_T0}, s{S_T0}, 10")
    a.e(f"s_add_u32 s{S_T0}, s{S_T0}, {WS_H}")
    a.e(f"v_lshl_add_u32 v{V_HA}, v{V_LANE}, 4, s{S_T0}")
    a.e(f"v_add_u32 v{V_HA+1}, {86*1024}, v{V_HA}")
    a.e(f"s_movk_i32 s66, {4*1024}")
    a.e(f"s_movk_i32 s67, {5*1024}")
    a.e(f"s_cmp_eq_u32 s{S_W}, 3")
    a.e(f"s_cselect_b32 s66, {3*1024}, s66")
    a.e(f"s_cselect_b32 s67, {3*1024}, s67")

def h_load3(q):
    R = G2_H + 8 * (q % G2_RING)
    it = []
    if q < 20:
        if q % 4 == 0 and q > 0:
            it += [f"v_add_u32 v{V_HA}, 4096, v{V_HA}", f"v_add_u32 v{V_HA+1}, 4096, v{V_HA+1}"]
        off = (q % 4) * 1024
        it += [(f"global_load_dwordx4 {vr(R,4)}, v{V_HA}, s[{P_WS}:{P_WS+1}] offset:{off} sc1", f"h{q}"),
               (f"global_load_dwordx4 {vr(R+4,4)}, v{V_HA+1}, s[{P_WS}:{P_WS+1}] offset:{off} sc1", f"h{q}")]
    else:
        sreg = 66 + (q - 20)
        it += [f"v_add_u32 v249, s{sreg}, v{V_HA}", f"v_add_u32 v250, s{sreg}, v{V_HA+1}",
               (f"global_load_dwordx4 {vr(R,4)}, v249, s[{P_WS}:{P_WS+1}] sc1", f"h{q}"),
               (f"global_load_dwordx4 {vr(R+4,4)}, v250, s[{P_WS}:{P_WS+1}] sc1", f"h{q}")]
    return it

def g2_first(a, n0):
    for q in range(n0):
        emit_group(a, h_load3(q))

def g2_main3(a, hooks, n0, pre):
    stamp(a, "g2start")
    la = OPT.get("g2la", 12)
    nxt = n0
    for x in pre:
        emit_group(a, x if (isinstance(x, list) or callable(x)) else [x])
    stamp(a, "g2issued")
    for q in range(22):
        a.vm_wait(f"h{q}")
        if q == 0:
            a.e("s_waitcnt lgkmcnt(0)")
        stamp(a, f"g2q{q}")
        R = G2_H + 8 * (q % G2_RING)
        mf = []
        for t in range(2):
            for tt in range(2):
                c = "0" if q == 0 else vr(acc2(t, tt), 16)
                mf.append(f"v_mfma_f32_32x32x16_bf16 {vr(acc2(t,tt),16)}, {ar(8*q+4*t,4)}, {vr(R+4*tt,4)}, {c}")
        slots = {i: [] for i in range(4)}
        k = 0
        while nxt < 22 and nxt - q <= la and k < 2 and nxt < q + G2_RING:
            slots[1 if k == 0 else 3].append(h_load3(nxt)); nxt += 1; k += 1
        for hk in hooks.get(q, []):
            slots[0].append(hk)
        sched(a, mf, slots)


V_FA = 240
def final_prep(a):
    a.e(f"v_lshlrev_b32 v240, 4, v{V_LANE}")
    a.e(f"v_lshrrev_b32 v3, 3, v0")
    a.e(f"v_mul_u32_u24 v3, 192, v3")
    a.e(f"v_and_b32 v4, 7, v0")
    a.e(f"v_lshl_add_u32 v241, v4, 4, v3")
    a.e(f"v_lshrrev_b32 v4, 4, v{V_LANE}")
    a.e(f"v_and_b32 v5, 1, v4")
    a.e(f"v_lshrrev_b32 v4, 1, v4")
    a.e(f"v_bfe_u32 v6, v{V_LANE}, 2, 2")
    a.e(f"v_lshl_add_u32 v6, v4, 2, v6")
    a.e(f"v_mul_u32_u24 v6, 192, v6")
    a.e(f"v_lshl_add_u32 v6, v5, 5, v6")
    a.e(f"v_and_b32 v5, 3, v{V_LANE}")
    a.e(f"v_lshl_add_u32 v6, v5, 3, v6")
    a.e(f"s_lshr_b32 s{S_T0}, s{S_W}, 1")
    a.e(f"s_mul_i32 s{S_T0}, s{S_T0}, {32*192}")
    a.e(f"s_and_b32 s{S_T1}, s{S_W}, 1")
    a.e(f"s_lshl_b32 s{S_T1}, s{S_T1}, 6")
    a.e(f"s_add_u32 s{S_T0}, s{S_T0}, s{S_T1}")
    a.e(f"s_add_u32 s{S_T0}, s{S_T0}, {L_YB}")
    a.e(f"v_add_u32 v245, s{S_T0}, v6")
    a.e(f"s_mul_i32 s{S_T0}, s{S_W}, {3*4096}")
    a.e(f"s_add_u32 s{S_T0}, s{S_T0}, {L_RED}")
    a.e(f"v_add_u32 v246, s{S_T0}, v240")

def final3(a):
    end = a.label("redend")
    labs = [a.label("redw") for _ in range(4)]
    for w in range(1, 4):
        a.e(f"s_cmp_eq_u32 s{S_W}, {w}")
        a.e(f"s_cbranch_scc1 {labs[w]}")
    for w in range(4):
        a.e(f"{labs[w]}:")
        a.e("s_nop 9")
        for o in range(4):
            if o == w: continue
            slot = (w - o - 1) & 3
            for q in range(4):
                a.e(f"ds_write_b128 v240, {vr(G2_ACC+16*o+4*q,4)} offset:{L_RED + o*3*4096 + slot*4096 + 1024*q}")
        for q in range(8):
            a.e(f"v_pk_mul_f32 {vr(24+2*q,2)}, {vr(G2_ACC+16*w+2*q,2)}, 1.0 op_sel_hi:[1,0]")
        if w < 3:
            a.e(f"s_branch {end}")
    a.e(f"{end}:")
    y_check(a)
    stamp(a, "fy")
    a.e(f"ds_write_b128 v241, v[16:19] offset:{L_YB}")
    a.e(f"ds_write_b128 v241, v[20:23] offset:{L_YB + 32*192}")
    a.vm_wait("fx")
    for q in range(8):
        a.e(f"v_lshlrev_b32 v{112+2*q}, 16, v{8+q}")
        a.e(f"v_and_b32 v{113+2*q}, 0xffff0000, v{8+q}")
    for q in range(8):
        a.e(f"v_pk_add_f32 {vr(24+2*q,2)}, {vr(24+2*q,2)}, {vr(112+2*q,2)}")
    stamp(a, "f0")
    a.e("s_waitcnt lgkmcnt(0)")
    a.e("s_barrier")
    stamp(a, "f2")
    for q in range(4):
        a.e(f"ds_read_b64_tr_b16 {vr(16+2*q,2)}, v245 offset:{1536*q}")
    for sl in range(3):
        for q in range(4):
            a.e(f"ds_read_b128 {vr(64+16*sl+4*q,4)}, v246 offset:{4096*sl + 1024*q}")
    a.e(f"v_lshrrev_b32 v3, 5, v{V_LANE}")
    a.e(f"v_lshl_add_u32 v251, v3, 3, v251")
    a.e("s_waitcnt lgkmcnt(12)")
    for q in range(8):
        a.e(f"v_lshlrev_b32 v{112+2*q}, 16, v{16+q}")
        a.e(f"v_and_b32 v{113+2*q}, 0xffff0000, v{16+q}")
    for q in range(8):
        a.e(f"v_pk_add_f32 {vr(24+2*q,2)}, {vr(24+2*q,2)}, {vr(112+2*q,2)}")
    for sl in range(3):
        a.e(f"s_waitcnt lgkmcnt({8 - 4*sl})")
        for q in range(8):
            a.e(f"v_pk_add_f32 {vr(24+2*q,2)}, {vr(24+2*q,2)}, {vr(64+16*sl+2*q,2)}")
    for q in range(8):
        a.e(f"v_cvt_pk_bf16_f32 v{8+q}, v{24+2*q}, v{25+2*q}")
    a.e("s_nop 1")
    for p in range(2):
        a.e(f"v_permlane32_swap_b32 v{8+4*p}, v{10+4*p}")
        a.e(f"v_permlane32_swap_b32 v{9+4*p}, v{11+4*p}")
    fl = "sc1" if OPT.get("outsc1") else ("nt" if OPT.get("outnt", 1) else "")
    for p in range(2):
        a.vm(f"global_store_dwordx4 v251, {vr(8+4*p,4)}, s[{P_OUT}:{P_OUT+1}] offset:{32*p} {fl}", "out")


def y_clear_addr(a):
    a.e(f"s_and_b32 s{S_T0}, s{S_WG}, 7")
    a.e(f"s_lshr_b32 s{S_T1}, s{S_WG}, 3")
    a.e(f"s_lshl_b32 s{S_T0}, s{S_T0}, 6")
    a.e(f"s_lshl_b32 s{S_T1}, s{S_T1}, 1")
    a.e(f"s_add_u32 s{S_T0}, s{S_T0}, s{S_T1}")
    a.e(f"s_lshl_b32 s{S_T0}, s{S_T0}, 7")
    a.e(f"s_add_u32 s{S_T0}, s{S_T0}, {WS_Y}")
    a.e(f"v_lshrrev_b32 v8, 4, v0")
    a.e(f"v_lshlrev_b32 v8, 16, v8")
    a.e(f"v_and_b32 v9, 15, v0")
    a.e(f"v_lshl_add_u32 v8, v9, 4, v8")
    a.e(f"v_add_u32 v8, s{S_T0}, v8")
    a.e(f"v_add_u32 v9, {16*65536}, v8")
    for q in range(4):
        a.e(f"v_mov_b32 v{20+q}, -1")

def y_clear(a):
    a.vm(f"global_store_dwordx4 v8, v[20:23], s[{P_WS}:{P_WS+1}] sc1", "pubA")
    a.vm(f"global_store_dwordx4 v9, v[20:23], s[{P_WS}:{P_WS+1}] sc1", "pubA")

def y_check(a):
    top, ok = a.label("ychk"), a.label("yok")
    a.vm_wait("fy")
    a.e(f"s_mov_b32 s{S_SPIN}, 0")
    a.e(f"{top}:")
    a.e("v_max3_u32 v4, v16, v17, v18")
    a.e("v_max3_u32 v5, v19, v20, v21")
    a.e("v_max3_u32 v4, v4, v22, v23")
    a.e("v_max_u32 v4, v4, v5")
    a.e("v_cmp_eq_u32 vcc, -1, v4")
    a.e("s_nop 1")
    a.e("s_cmp_eq_u64 vcc, 0")
    a.e(f"s_cbranch_scc1 {ok}")
    a.e(f"s_add_u32 s{S_SPIN}, s{S_SPIN}, 1")
    a.e(f"s_cmp_gt_u32 s{S_SPIN}, {SPIN_MAX}")
    a.e(f"s_cbranch_scc1 {ok}")
    a.e(f"s_sleep {OPT.get('ysleep', 2)}")
    a.e(f"global_load_dwordx4 v[16:19], v252, s[{P_WS}:{P_WS+1}] sc1")
    a.e(f"global_load_dwordx4 v[20:23], v253, s[{P_WS}:{P_WS+1}] sc1")
    a.e("s_waitcnt vmcnt(0)")
    a.e(f"s_branch {top}")
    a.e(f"{ok}:")

def y_loads9(a):
    a.e(f"s_lshl_b32 s{S_T0}, s{S_I}, 1")
    a.e(f"s_add_u32 s{S_T0}, s{S_T0}, s{S_TH}")
    a.e(f"s_lshl_b32 s{S_T0}, s{S_T0}, 16")
    a.e(f"s_lshl_b32 s{S_T1}, s{S_NT}, 13")
    a.e(f"s_add_u32 s{S_T0}, s{S_T0}, s{S_T1}")
    a.e(f"s_add_u32 s{S_T0}, s{S_T0}, {WS_Y}")
    a.e(f"v_lshl_add_u32 v252, v0, 4, s{S_T0}")
    a.e(f"v_add_u32 v253, 4096, v252")
    a.vm(f"global_load_dwordx4 v[16:19], v252, s[{P_WS}:{P_WS+1}] sc1", "fy")
    a.vm(f"global_load_dwordx4 v[20:23], v253, s[{P_WS}:{P_WS+1}] sc1", "fy")

def tlb_touch(a):
    lab = a.label("notlb")
    a.e(f"s_cmp_lg_u32 s{S_W}, {OPT.get('tlbwave', 3)}")
    a.e(f"s_cbranch_scc1 {lab}")
    a.e(f"s_mov_b64 s[{S_EXEC}:{S_EXEC+1}], exec")
    a.e("s_mov_b64 exec, 0xff")
    a.e(f"v_lshlrev_b32 v253, 21, v{V_LANE}")
    a.e(f"global_load_dword v252, v253, s[{P_WS}:{P_WS+1}]")
    a.e("s_mov_b64 exec, 1")
    a.e("v_mov_b32 v253, 0")
    for p in (P_ARE, P_AIM, P_BRE, P_BIM, P_CRE, P_CIM, P_LDT, P_DSK, P_WD, P_OUT):
        a.e(f"global_load_dword v252, v253, s[{p}:{p+1}]")
    a.e(f"s_mov_b64 exec, s[{S_EXEC}:{S_EXEC+1}]")
    a.e(f"{lab}:")

def kgen_loads_late(a):
    kgen_loads(a)

def wd_touch(a):
    a.e(f"s_mul_i32 s{S_T0}, s{S_WG}, 5504")
    a.e(f"v_lshl_add_u32 v2, v0, 4, s{S_T0}")
    mk_srd(a, SRD_WD, P_WD, 1376 * 1024)
    a.vm(f"buffer_load_dwordx4 v[252:255], v2, s[{SRD_WD}:{SRD_WD+3}], 0 offen", "pf")
    a.e(f"v_add_u32 v2, 4096, v2")
    a.e(f"s_mov_b64 s[{S_EXEC}:{S_EXEC+1}], exec")
    a.e(f"v_cmp_gt_u32 vcc, 96, v0")
    a.e(f"s_and_b64 exec, exec, vcc")
    lab = a.label("wt")
    a.e(f"s_cbranch_execz {lab}")
    a.e(f"buffer_load_dwordx4 v[252:255], v2, s[{SRD_WD}:{SRD_WD+3}], 0 offen")
    a.e(f"{lab}:")
    a.e(f"s_mov_b64 exec, s[{S_EXEC}:{S_EXEC+1}]")


def build(a):
    entry(a)
    stamp(a, 0, real=True)
    stamp(a, 1)
    if OPT.get("delay0"):
        a.e(f"s_mov_b32 s{S_T0}, 0")
        a.e("L_delay0:")
        for q in range(16): a.e(f"v_fma_f32 v{200+q}, v{200+q}, v{200+q}, v{200+q}")
        a.e(f"s_add_u32 s{S_T0}, s{S_T0}, 1")
        a.e(f"s_cmp_lt_u32 s{S_T0}, {OPT['delay0']}")
        a.e("s_cbranch_scc1 L_delay0")
    g1_setup_x(a, ptr=False)
    g1_setup_w(a, ptr=False)
    g1_setup_r(a)
    ln_addr(a)
    y_clear_addr(a)
    a.e("s_waitcnt lgkmcnt(0)")
    stamp(a, "ptr")
    mk_srd(a, SRD_X, P_X, 2048 * 1024)
    ln_issue(a)
    epoch_load(a)
    if OPT.get("yclr", 0) == 0: y_clear(a)
    st0 = dma_groups(0, "st0")
    mk_srd(a, SRD_WG, P_WG, 512 * 2752)
    for g in st0[:4]:
        emit_group(a, g)
    mk_srd(a, SRD_WU, P_WU, 512 * 2752)
    stamp(a, "xdma")
    for g in st0[4:]:
        emit_group(a, g)
    if OPT.get("yclr", 0) == 1: y_clear(a)
    stamp(a, "wdma")
    if OPT.get("tlb", 0):
        tlb_touch(a)
    stamp(a, "setup")
    epoch_finish(a)
    stamp(a, "epoch")
    r = Rec(a)
    ln_compute2(r)
    g1_stage_offsets(a)
    off1 = dma_groups(1, "st1")
    upd = Rec(a); g1_stage_offsets(upd)
    off2 = dma_groups(2, "st2")
    off2[0] = [o[1] for o in upd.ops] + off2[0]
    allf = off1 + off2
    nln = OPT.get("nln", 10)
    replay(a, r.ops, allf[:nln], every=OPT.get("lnevery", 14), start=10)
    kgen_loads(a)
    stamp(a, "ln")

    def ln_publish(a):
        flag_store(a, WS_FLAG_LN, idx_ln)
    def ln_poll_issue(a):
        poll_addr(a, "ln", 243)
        poll_issue(a, "ln", 243, "pl")
    def ln_poll_check(a):
        a.vm_wait("pl")
        poll_check(a, "ln", 243)
        epoch_bump(a)
        g1_post_loads8(a)
    PS = OPT.get("pubstage", 2)
    def tr_round(rnd):
        t = wd_tr(rnd)
        return [lambda a, rnd=rnd: a.vm_wait(f"wd{rnd}"), t[:4]] + [t[4+4*k:8+4*k] for k in range(WD_N[rnd])]
    hooks = {
        ("stage_end", 0): [cs_store8],
        ("post_barrier", PS): [ln_publish],
        ("post_barrier", 5): [wd_setup2, kv_addr],
        ("post_barrier", 6): [ln_poll_issue],
        ("extra_dma", 6): wd_groups(1),
    }
    hooks[("fill", 7, OPT.get("chkk", 1))] = [ln_poll_check]
    if OPT.get("wdtouch", 1):
        hooks[("fill", OPT.get("touchstage", 1), 1)] = [wd_touch]
    ks = kgen_shadow()
    nk = 24
    per = (len(ks) + nk - 1) // nk
    ks = [lambda a: a.vm_wait("kp")] + ks
    idx = 0
    done_at = {}
    for stg in range(1, 7):
        for s_ in range(4):
            n = per + (1 if idx == 0 else 0)
            part = ks[idx:idx + n]; idx += n
            hooks[("shadow", stg, s_)] = part
            for x in part:
                if isinstance(x, str) and x.startswith("v_accvgpr_write"):
                    done_at[int(x.split()[1][1:].rstrip(",")) - KS] = (stg, s_)
    assert idx >= len(ks)
    order = sorted(done_at, key=lambda v: done_at[v])
    steps = [(6, 0), (6, 1), (6, 2), (6, 3), (7, 0), (7, 1), (7, 2), (7, 3)]
    perw = (len(order) + len(steps) - 1) // len(steps)
    p = 0
    for stp in steps:
        lst = []
        while p < len(order) and len(lst) < perw and done_at[order[p]] < stp:
            lst.append(f"ds_write_b32 v{V_KWA}, a{KS+order[p]} offset:{order[p]*528}"); p += 1
        if stp == steps[-1]:
            while p < len(order):
                lst.append(f"ds_write_b32 v{V_KWA}, a{KS+order[p]} offset:{order[p]*528}"); p += 1
        hooks[("ldsw",) + stp] = lst
    for nm, stg in (("s0", 0), ("s3", 3), ("s5", 5), ("s6", 6)):
        hooks.setdefault(("post_barrier", stg), []).append(lambda a, nm=nm: stamp(a, nm))
    g1_main2(a, hooks, allf[nln:])
    stamp(a, "loop")
    g1_correction8(a)
    stamp(a, "corr")
    r = Rec(a)
    g1_epilogue2(r)
    def xtl(a):
        xt_loads2(a); xt_extra(a)
    replay(a, r.ops, [[xtl]] + wd_groups(2), every=OPT.get("epevery", 24), start=26)
    stamp(a, "epi")
    u_prep(a)
    def pre_b(a):
        a.vm_wait("pubH")
    def post_b(a):
        flag_store(a, WS_FLAG_H, idx_h)
        u_write(a)
    t1, t2 = wd_tr(1), wd_tr(2)
    t2 = [x.replace("v245", "v249").replace("v246", "v250") for x in t2]
    kgen5_mfma(a, pre_b, post_b, ([lambda a: a.vm_wait("wd1", "wd2"), t1[:4], t2[:4]], t1[4:] + t2[4:]))
    stamp(a, "kgen")
    conv_addr(a)
    late = {2: [lambda a: (poll_addr(a, "h", 243), poll_issue(a, "h", 243, "ph"))],
            3: [h_setup3]}
    conv_main3(a, wd_groups(3) + wd_groups(4), late)
    stamp(a, "convm")
    a.vm_wait("ph")
    poll_check(a, "h", 243)
    N0 = OPT.get("g2n0", 6)
    g2_first(a, N0)
    stamp(a, "hflag")
    conv_finish3(a)
    stamp(a, "conv")
    hk = {}
    for q, f in ((OPT.get("g2bar", 6), lambda a: a.e("s_barrier")), (OPT.get("xld", 8), g2_final_loads), (OPT.get("fprep", 10), final_prep),
                 (OPT.get("yld", 16), y_loads9)):
        hk.setdefault(q, []).append(f)
    g2_main3(a, hk, N0, tr_round(3) + tr_round(4))
    stamp(a, "g2")
    final3(a)
    stamp(a, "fin")
    if OPT.get("delay1"):
        a.e(f"s_mov_b32 s{S_T0}, 0")
        a.e("L_delay1:")
        for q in range(16): a.e(f"v_fma_f32 v{200+q}, v{200+q}, v{200+q}, v{200+q}")
        a.e(f"s_add_u32 s{S_T0}, s{S_T0}, 1")
        a.e(f"s_cmp_lt_u32 s{S_T0}, {OPT['delay1']}")
        a.e("s_cbranch_scc1 L_delay1")
    a.e("s_waitcnt vmcnt(0)")
    stamp(a, 9, real=True)
    prof_store(a)
    a.e("L_end:")
    a.e("s_endpgm")


def main():
    G.PROF = "prof" in sys.argv
    G.L_CX = 0
    for x in sys.argv[1:]:
        if "=" in x:
            k, v = x.split("=")
            if k == "stamps": G.STAMPS[:] = v.split(",")
            else: OPT[k] = int(v)
    a = Asm()
    build(a)
    nl = OPT.get("nlaunch", 0)
    launch = f"; @launch grid=(256,1,1) block=(256,1,1) lds={LDS_BYTES}" if not nl else "\n".join([f"; @launch kernel={NAME} grid=(256,1,1) block=(256,1,1) lds={LDS_BYTES}"] * nl)
    out = [HDR, launch,
           '.amdgcn_target "amdgcn-amd-amdhsa--gfx950"', '.text', a.text(),
           "  .fill 8448, 4, 0xbf800000", '.section .rodata,"a"', kd(NAME, 256, 240)]
    print('\n'.join(out))

if __name__ == "__main__":
    main()
```

```python
import sys, math
from asmlib import *
import gen as G
from gen import *

NAME = "parallel_sum__ssm_conv_s4__geglu_ffn__prompt_kernel"
S_EP = 34
S_SPIN = 13
WS_DUMMY = 15 << 20
V_POLL = 252
SPIN_MAX = 1 << 17
OPT = {}


class Rec:
    def __init__(self, a):
        self.ops = []
        self.a = a
    def e(self, s):
        for l in s.split('\n'):
            if l.strip():
                self.ops.append(('e', l.strip()))
    def c(self, s): pass
    def vm(self, s, tag): self.ops.append(('vm', s, tag))
    def vm_wait(self, *tags): self.ops.append(('wait', tags))
    def label(self, b): return self.a.label(b)
    def nofill(self, on): self.ops.append(('nofill', on))


def replay(a, ops, fillers, every, start=0):
    fill = list(fillers)
    nof = False
    n = 0
    for o in ops:
        if o[0] == 'nofill':
            nof = o[1]
            continue
        if o[0] == 'e':
            if o[1].startswith("STAMP:"):
                stamp(a, o[1][6:]); continue
            a.e(o[1])
        elif o[0] == 'vm':
            a.vm(o[1], o[2])
        elif o[0] == 'wait':
            a.vm_wait(*o[1])
        n += 1
        if fill and not nof and n >= start and (n - start) % every == 0:
            emit_group(a, fill.pop(0))
    for g in fill:
        emit_group(a, g)


def emit_group(a, g):
    if callable(g):
        g(a); return
    for t in g:
        if isinstance(t, tuple):
            a.vm(t[0], t[1])
        elif callable(t):
            t(a)
        else:
            a.e(t)

def t2_groups(t):
    return [[x] if callable(x) else x for x in t]


def sched(a, mf, slots):
    for i, m in enumerate(mf):
        a.e(m)
        for it in slots.get(i, []):
            if isinstance(it, list):
                emit_group(a, it)
            elif isinstance(it, tuple):
                a.vm(it[0], it[1])
            elif callable(it):
                it(a)
            else:
                a.e(it)


def g1_setup_x(a, ptr=True):
    if ptr: mk_srd(a, SRD_X, P_X, 2048 * 1024)
    a.e(f"s_lshl_b32 s{S_T0}, s{S_I}, 7")
    a.e(f"s_lshl_b32 s{S_T1}, s{S_W}, 5")
    a.e(f"s_add_u32 s{S_T0}, s{S_T0}, s{S_T1}")
    a.e(f"s_lshl_b32 s{S_XW}, s{S_T0}, 10")
    a.e(f"s_lshl_b32 s{S_LX}, s{S_W}, 12")
    rm = OPT.get("rotmode", 0)
    a.e(f"s_add_u32 s{S_KC}, s{S_I}, s{S_J}")
    if rm == 0:
        a.e(f"s_and_b32 s{S_KC}, s{S_KC}, 7")
    elif rm == 1:
        a.e(f"s_mov_b32 s{S_KC}, 0")
    elif rm == 2:
        a.e(f"s_and_b32 s{S_KC}, s{S_KC}, 1")
        a.e(f"s_lshl_b32 s{S_KC}, s{S_KC}, 2")
    elif rm == 3:
        a.e(f"s_and_b32 s{S_KC}, s{S_KC}, 3")
        a.e(f"s_lshl_b32 s{S_KC}, s{S_KC}, 1")
    a.e(f"s_lshr_b32 s{S_CSH}, s{S_I}, 3")
    a.e(f"s_mul_i32 s{S_WW}, s{S_W}, {16 * 2752}")
    a.e(f"s_lshl_b32 s{S_T0}, s{S_U0}, 6")
    a.e(f"s_add_u32 s{S_WW}, s{S_WW}, s{S_T0}")
    a.e(f"s_mul_i32 s{S_LW}, s{S_W}, 3072")
    g1_stage_offsets(a)
    a.e(f"v_lshrrev_b32 v12, 3, v{V_LANE}")
    a.e(f"v_and_b32 v13, 7, v{V_LANE}")
    a.e(f"v_lshrrev_b32 v14, 1, v12")
    a.e(f"v_xor_b32 v15, v14, v13")
    a.e(f"v_lshlrev_b32 v16, 4, v15")
    a.e(f"v_lshl_add_u32 v{V_XOFF}, v12, 10, v16")
    a.e(f"v_xor_b32 v17, 64, v{V_XOFF}")
    a.e(f"v_add_u32 v{V_XOFF+1}, 8192, v17")
    a.e(f"v_add_u32 v{V_XOFF+2}, 16384, v{V_XOFF}")
    a.e(f"v_add_u32 v{V_XOFF+3}, 16384, v{V_XOFF+1}")

def g1_setup_w(a, ptr=True):
    if ptr:
        mk_srd(a, SRD_WG, P_WG, 512 * 2752)
        mk_srd(a, SRD_WU, P_WU, 512 * 2752)
    for q in range(3):
        a.e(f"v_add_u32 v12, {64*q}, v{V_LANE}")
        a.e(f"v_mul_u32_u24 v13, 5462, v12")
        a.e(f"v_lshrrev_b32 v13, 16, v13")
        a.e(f"v_mul_u32_u24 v14, 12, v13")
        a.e(f"v_sub_u32 v14, v12, v14")
        a.e(f"v_mul_u32_u24 v13, 2752, v13")
        a.e(f"v_lshl_add_u32 v{V_WOFF+q}, v14, 4, v13")

def g1_setup_r(a):
    a.e(f"v_and_b32 v12, 31, v{V_LANE}")
    a.e(f"v_lshrrev_b32 v13, 5, v{V_LANE}")
    a.e(f"v_bfe_u32 v14, v12, 1, 3")
    a.e(f"s_lshl_b32 s{S_T0}, s{S_TW}, 13")
    a.e(f"v_lshl_add_u32 v15, v12, 7, s{S_T0}")
    for s_ in range(4):
        a.e(f"v_add_u32 v16, {2*s_}, v13")
        a.e(f"v_xor_b32 v16, v16, v14")
        a.e(f"v_lshl_add_u32 v{V_BADDR+s_}, v16, 4, v15")
    a.e(f"v_lshrrev_b32 v12, 4, v{V_LANE}")
    a.e(f"v_and_b32 v13, 1, v12")
    a.e(f"v_lshrrev_b32 v12, 1, v12")
    a.e(f"v_bfe_u32 v14, v{V_LANE}, 2, 2")
    a.e(f"v_lshl_add_u32 v14, v12, 3, v14")
    a.e(f"v_mul_u32_u24 v14, 192, v14")
    a.e(f"v_and_b32 v15, 3, v{V_LANE}")
    a.e(f"v_lshl_add_u32 v14, v15, 3, v14")
    a.e(f"v_mul_u32_u24 v13, {L_U - L_G}, v13")
    a.e(f"v_add_u32 v14, v14, v13")
    a.e(f"s_mul_i32 s{S_T0}, s{S_FW}, 96")
    a.e(f"s_add_u32 s{S_T0}, s{S_T0}, {L_G}")
    a.e(f"v_add_u32 v{V_AADDR}, s{S_T0}, v14")


class Dma(list):
    def __init__(self, pre, m0, ld, post=()):
        super().__init__(list(pre) + [m0, "s_nop 0", ld] + list(post))
        self.head = list(pre) + [m0]
        self.tail = [ld] + list(post)

def dma_groups(slot, tag):
    return [Dma([], m0, (ld, tag)) for m0, ld in g1_dma_list(slot, tag)]

def place(slots, p, g):
    if isinstance(g, Dma) and p >= 1:
        slots[p - 1].append(g.head)
        slots[p].insert(0, g.tail)
    else:
        slots[p].append(g)


def entry(a):
    a.e(f".globl {NAME}\n.p2align 8\n.type {NAME},@function\n{NAME}:")
    a.e(f"s_cmp_ge_u32 s{S_WG}, 256")
    a.e(f"s_cbranch_scc1 L_end")
    a.e("s_load_dwordx16 s[16:31], s[0:1], 0")
    a.e("s_load_dwordx16 s[32:47], s[0:1], 64")
    if not OPT.get("nopf"):
        a.e("s_getpc_b64 s[74:75]")
        a.e("L_pc:")
        a.e(f"s_lshr_b32 s{S_T1}, s{S_WG}, 3")
        a.e(f"s_and_b32 s{S_T1}, s{S_T1}, 15")
        a.e(f"s_lshl_b32 s{S_T1}, s{S_T1}, 11")
        a.e(f"v_lshl_add_u32 v2, v0, 3, s{S_T1}")
        for q in range(OPT.get("pfn", 1)):
            a.vm(f"global_load_dwordx2 v[4:5], v2, s[74:75] offset:{0}", "pf")
    a.e(f"v_and_b32 v{V_LANE}, 63, v0")
    a.e(f"v_lshrrev_b32 v3, 6, v0")
    a.e(f"s_and_b32 s{S_T0}, s{S_WG}, 7")
    a.e(f"v_readfirstlane_b32 s{S_W}, v3")
    a.e(f"s_lshr_b32 s{S_T1}, s{S_WG}, 3")
    a.e(f"s_lshr_b32 s{S_I}, s{S_T0}, 1")
    a.e(f"s_lshl_b32 s{S_I}, s{S_I}, 2")
    a.e(f"s_lshr_b32 s{S_T2}, s{S_T1}, 3")
    a.e(f"s_add_u32 s{S_I}, s{S_I}, s{S_T2}")
    a.e(f"s_and_b32 s{S_J}, s{S_T0}, 1")
    a.e(f"s_lshl_b32 s{S_J}, s{S_J}, 3")
    a.e(f"s_and_b32 s{S_T2}, s{S_T1}, 7")
    a.e(f"s_add_u32 s{S_J}, s{S_J}, s{S_T2}")
    a.e(f"s_lshr_b32 s{S_TW}, s{S_W}, 1")
    a.e(f"s_and_b32 s{S_FW}, s{S_W}, 1")
    a.e(f"s_mul_i32 s{S_U0}, s{S_J}, 3")
    a.e(f"s_lshl_b32 s{S_T2}, s{S_J}, 1")
    a.e(f"s_add_u32 s{S_T2}, s{S_T2}, 11")
    a.e(f"s_min_u32 s{S_U0}, s{S_U0}, s{S_T2}")
    a.e(f"s_cmp_lt_u32 s{S_J}, 11")
    a.e(f"s_cselect_b32 s{S_NU}, 6, 4")
    conv_ids(a)
    g2_ids(a)


def epoch_load(a):
    a.e("v_mov_b32 v3, 0")
    a.vm(f"global_load_dword v6, v3, s[{P_WS}:{P_WS+1}] sc1", "ep")


def epoch_finish(a):
    a.vm_wait("ep")
    a.e("s_nop 0")
    a.e(f"v_readfirstlane_b32 s{S_EP}, v6")
    a.e("s_nop 3")
    a.e(f"s_mul_i32 s{S_TAG}, s{S_EP}, 0x9e3779b1")
    a.e(f"s_add_u32 s{S_TAG}, s{S_TAG}, 0x3c6ef373")


def flag_store(a, region, idx_code):
    lab = a.label("nofl")
    a.e(f"s_cmp_lg_u32 s{S_W}, 0")
    a.e(f"s_cbranch_scc1 {lab}")
    idx_code(a)
    a.e(f"s_lshl_b32 s{S_T0}, s{S_T0}, 2")
    a.e(f"s_add_u32 s{S_T0}, s{S_T0}, {region}")
    a.e(f"v_mov_b32 v2, s{S_T0}")
    a.e(f"v_mov_b32 v3, s{S_TAG}")
    a.e(f"s_mov_b64 s[{S_EXEC}:{S_EXEC+1}], exec")
    a.e("s_mov_b64 exec, 1")
    a.e(f"global_store_dword v2, v3, s[{P_WS}:{P_WS+1}] sc1")
    a.e(f"s_mov_b64 exec, s[{S_EXEC}:{S_EXEC+1}]")
    a.e(f"{lab}:")


def idx_ln(a): a.e(f"s_mov_b32 s{S_T0}, s{S_WG}")
def idx_h(a):
    a.e(f"s_lshl_b32 s{S_T0}, s{S_I}, 4")
    a.e(f"s_add_u32 s{S_T0}, s{S_T0}, s{S_J}")
def idx_y(a):
    a.e(f"s_and_b32 s{S_T0}, s{S_WG}, 7")
    a.e(f"s_lshl_b32 s{S_T0}, s{S_T0}, 5")
    a.e(f"s_lshr_b32 s{S_T1}, s{S_WG}, 3")
    a.e(f"s_add_u32 s{S_T0}, s{S_T0}, s{S_T1}")


def poll_addr(a, kind, vreg):
    if kind == "ln":
        a.e(f"v_lshlrev_b32 v{vreg}, 4, v{V_LANE}")
        a.e(f"v_add_u32 v{vreg}, {WS_FLAG_LN}, v{vreg}")
    elif kind == "h":
        a.e(f"s_lshl_b32 s{S_T0}, s{S_I}, 6")
        a.e(f"s_add_u32 s{S_T0}, s{S_T0}, {WS_FLAG_H}")
        a.e(f"v_and_b32 v{vreg}, 15, v{V_LANE}")
        a.e(f"v_lshl_add_u32 v{vreg}, v{vreg}, 2, s{S_T0}")
    elif kind == "y":
        a.e(f"s_lshl_b32 s{S_T0}, s{S_NT}, 7")
        a.e(f"s_add_u32 s{S_T0}, s{S_T0}, {WS_FLAG_Y}")
        a.e(f"v_and_b32 v{vreg}, 31, v{V_LANE}")
        a.e(f"v_lshl_add_u32 v{vreg}, v{vreg}, 2, s{S_T0}")


def poll_issue(a, kind, vreg, tag):
    if kind == "ln":
        a.vm(f"global_load_dwordx4 {vr(V_POLL,4)}, v{vreg}, s[{P_WS}:{P_WS+1}] sc1", tag)
    else:
        a.vm(f"global_load_dword v{V_POLL}, v{vreg}, s[{P_WS}:{P_WS+1}] sc1", tag)


def poll_check(a, kind, vreg):
    top, ok = a.label("poll"), a.label("pollok")
    a.e(f"s_mov_b32 s{S_SPIN}, 0")
    a.e(f"{top}:")
    a.e(f"v_cmp_ne_u32 vcc, s{S_TAG}, v{V_POLL}")
    if kind == "ln":
        for q in range(1, 4):
            a.e(f"v_cmp_ne_u32 s[74:75], s{S_TAG}, v{V_POLL+q}")
            a.e("s_nop 0")
            a.e("s_or_b64 vcc, vcc, s[74:75]")
    a.e("s_nop 1")
    a.e(f"s_cmp_eq_u64 vcc, 0")
    a.e(f"s_cbranch_scc1 {ok}")
    a.e(f"s_add_u32 s{S_SPIN}, s{S_SPIN}, 1")
    a.e(f"s_cmp_gt_u32 s{S_SPIN}, {SPIN_MAX}")
    a.e(f"s_cbranch_scc1 {ok}")
    a.e(f"s_sleep {OPT.get('sleep', 1)}")
    if kind == "ln":
        a.e(f"global_load_dwordx4 {vr(V_POLL,4)}, v{vreg}, s[{P_WS}:{P_WS+1}] sc1")
    else:
        a.e(f"global_load_dword v{V_POLL}, v{vreg}, s[{P_WS}:{P_WS+1}] sc1")
    a.e("s_waitcnt vmcnt(0)")
    a.e(f"s_branch {top}")
    a.e(f"{ok}:")


def poll_check_hy(a):
    top, ok = a.label("poll"), a.label("pollok")
    a.e(f"s_mov_b32 s{S_SPIN}, 0")
    a.e(f"{top}:")
    a.e(f"v_cmp_ne_u32 vcc, s{S_TAG}, v{V_POLL}")
    a.e(f"v_cmp_ne_u32 s[74:75], s{S_TAG}, v{V_POLL+1}")
    a.e("s_nop 1")
    a.e("s_or_b64 vcc, vcc, s[74:75]")
    a.e(f"s_cmp_eq_u64 vcc, 0")
    a.e(f"s_cbranch_scc1 {ok}")
    a.e(f"s_add_u32 s{S_SPIN}, s{S_SPIN}, 1")
    a.e(f"s_cmp_gt_u32 s{S_SPIN}, {SPIN_MAX}")
    a.e(f"s_cbranch_scc1 {ok}")
    a.e(f"s_sleep {OPT.get('sleep', 1)}")
    a.e(f"global_load_dword v{V_POLL}, v243, s[{P_WS}:{P_WS+1}] sc1")
    a.e(f"global_load_dword v{V_POLL+1}, v242, s[{P_WS}:{P_WS+1}] sc1")
    a.e("s_waitcnt vmcnt(0)")
    a.e(f"s_branch {top}")
    a.e(f"{ok}:")


def epoch_bump(a):
    lab = a.label("nobump")
    a.e(f"s_or_b32 s{S_T0}, s{S_WG}, s{S_W}")
    a.e(f"s_cmp_lg_u32 s{S_T0}, 0")
    a.e(f"s_cbranch_scc1 {lab}")
    a.e(f"s_add_u32 s{S_T0}, s{S_EP}, 1")
    a.e("v_mov_b32 v2, 0")
    a.e(f"v_mov_b32 v3, s{S_T0}")
    a.e(f"s_mov_b64 s[{S_EXEC}:{S_EXEC+1}], exec")
    a.e("s_mov_b64 exec, 1")
    a.e(f"global_store_dword v2, v3, s[{P_WS}:{P_WS+1}] sc1")
    a.e(f"s_mov_b64 exec, s[{S_EXEC}:{S_EXEC+1}]")
    a.e(f"{lab}:")


def ln_addr(a):
    a.e(f"s_lshl_b32 s{S_T0}, s{S_I}, 7")
    a.e(f"s_lshl_b32 s{S_T1}, s{S_J}, 3")
    a.e(f"s_add_u32 s{S_T0}, s{S_T0}, s{S_T1}")
    a.e(f"s_lshl_b32 s{S_T1}, s{S_W}, 1")
    a.e(f"s_add_u32 s{S_T0}, s{S_T0}, s{S_T1}")
    a.e(f"s_lshl_b32 s{S_T0}, s{S_T0}, 10")
    a.e(f"v_lshl_add_u32 v7, v{V_LANE}, 4, s{S_T0}")

def ln_issue(a):
    a.vm(f"global_load_dwordx4 v[44:47], v7, s[{P_X}:{P_X+1}]", "ln")
    a.vm(f"global_load_dwordx4 v[48:51], v7, s[{P_X}:{P_X+1}] offset:1024", "ln")


def ln_compute2(a):
    a.vm_wait("ln")
    for r in range(2):
        for d in range(4):
            a.e(f"v_lshlrev_b32 v{16+8*r+2*d}, 16, v{44+4*r+d}")
            a.e(f"v_and_b32 v{17+8*r+2*d}, 0xffff0000, v{44+4*r+d}")
    for r in range(2):
        b = 16 + 8*r
        t = 36 + 4*r
        a.e(f"v_pk_add_f32 {vr(t,2)}, {vr(b,2)}, {vr(b+2,2)}")
        a.e(f"v_pk_mul_f32 {vr(t+2,2)}, {vr(b,2)}, {vr(b,2)}")
    for r in range(2):
        b = 16 + 8*r
        t = 36 + 4*r
        a.e(f"v_pk_add_f32 {vr(t,2)}, {vr(t,2)}, {vr(b+4,2)}")
        a.e(f"v_pk_fma_f32 {vr(t+2,2)}, {vr(b+2,2)}, {vr(b+2,2)}, {vr(t+2,2)}")
    for r in range(2):
        b = 16 + 8*r
        t = 36 + 4*r
        a.e(f"v_pk_add_f32 {vr(t,2)}, {vr(t,2)}, {vr(b+6,2)}")
        a.e(f"v_pk_fma_f32 {vr(t+2,2)}, {vr(b+4,2)}, {vr(b+4,2)}, {vr(t+2,2)}")
    for r in range(2):
        b = 16 + 8*r
        t = 36 + 4*r
        a.e(f"v_pk_fma_f32 {vr(t+2,2)}, {vr(b+6,2)}, {vr(b+6,2)}, {vr(t+2,2)}")
        a.e(f"v_add_f32 v{32+r}, v{t}, v{t+1}")
    for r in range(2):
        t = 36 + 4*r
        a.e(f"v_add_f32 v{34+r}, v{t+2}, v{t+3}")
    a.e("s_nop 0")
    dpp_reduce(a, [32, 33, 34, 35])
    for q in range(4):
        a.e(f"v_readlane_b32 s{74+q if q < 2 else 10+q}, v{32+q}, 63")
    a.e("s_nop 1")
    a.e("v_mov_b32 v32, s74")
    a.e("v_mov_b32 v33, s75")
    a.e("v_mov_b32 v34, s12")
    a.e("v_mov_b32 v35, s13")
    a.e("v_mov_b32 v36, 0x3b000000")
    a.e("v_pk_mul_f32 v[32:33], v[32:33], v[36:37] op_sel_hi:[1,0]")
    a.e("v_pk_mul_f32 v[34:35], v[34:35], v[36:37] op_sel_hi:[1,0]")
    a.e("v_pk_fma_f32 v[34:35], v[32:33], v[32:33], v[34:35] neg_lo:[1,0,0] neg_hi:[1,0,0]")
    a.e("v_max_f32 v34, 0, v34")
    a.e("v_max_f32 v35, 0, v35")
    a.e("v_cvt_pk_bf16_f32 v36, v34, v35")
    a.e("v_cvt_pk_bf16_f32 v37, v32, v33")
    a.e("v_lshlrev_b32 v34, 16, v36")
    a.e("v_and_b32 v35, 0xffff0000, v36")
    a.e("v_lshlrev_b32 v32, 16, v37")
    a.e("v_and_b32 v33, 0xffff0000, v37")
    a.e("v_add_f32 v34, 0x3727c5ac, v34")
    a.e("v_add_f32 v35, 0x3727c5ac, v35")
    a.e("v_cvt_pk_bf16_f32 v36, v34, v35")
    a.e("v_lshlrev_b32 v34, 16, v36")
    a.e("v_and_b32 v35, 0xffff0000, v36")
    a.e("v_sqrt_f32 v34, v34")
    a.e("v_sqrt_f32 v35, v35")
    a.e("s_nop 0")
    a.e("v_cvt_pk_bf16_f32 v36, v34, v35")
    a.e("v_lshlrev_b32 v34, 16, v36")
    a.e("v_and_b32 v35, 0xffff0000, v36")
    a.e("v_rcp_f32 v34, v34")
    a.e("v_rcp_f32 v35, v35")
    for r in range(2):
        b = 16 + 8*r
        sel = "op_sel_hi:[1,0]" if r == 0 else "op_sel:[0,1] op_sel_hi:[1,1]"
        for d in range(4):
            a.e(f"v_pk_add_f32 {vr(b+2*d,2)}, {vr(b+2*d,2)}, v[32:33] {sel} neg_lo:[0,1] neg_hi:[0,1]")
    for r in range(2):
        b = 16 + 8*r
        for d in range(4):
            a.e(f"v_cvt_pk_bf16_f32 v{44+4*r+d}, v{b+2*d}, v{b+2*d+1}")
    for r in range(2):
        b = 16 + 8*r
        for d in range(4):
            a.e(f"v_lshlrev_b32 v{b+2*d}, 16, v{44+4*r+d}")
            a.e(f"v_and_b32 v{b+2*d+1}, 0xffff0000, v{44+4*r+d}")
    for r in range(2):
        b = 16 + 8*r
        sel = "op_sel_hi:[1,0]" if r == 0 else "op_sel:[0,1] op_sel_hi:[1,1]"
        for d in range(4):
            a.e(f"v_pk_mul_f32 {vr(b+2*d,2)}, {vr(b+2*d,2)}, v[34:35] {sel}")
    for r in range(2):
        b = 16 + 8*r
        for d in range(4):
            a.e(f"v_cvt_pk_bf16_f32 v{44+4*r+d}, v{b+2*d}, v{b+2*d+1}")
    a.e(f"s_mul_i32 s{S_T0}, s{S_W}, {2*1088}")
    a.e(f"s_add_u32 s{S_T0}, s{S_T0}, {L_LN}")
    a.e(f"v_lshl_add_u32 v2, v{V_LANE}, 4, s{S_T0}")
    a.e("ds_write_b128 v2, v[44:47]")
    a.e("ds_write_b128 v2, v[48:51] offset:1088")
    a.e("v_mov_b32 v40, v34")
    a.e("v_cvt_pk_bf16_f32 v41, -v32, -v32")
    a.e("v_mov_b32 v42, v35")
    a.e("v_cvt_pk_bf16_f32 v43, -v33, -v33")
    a.e(f"s_lshl_b32 s{S_T0}, s{S_I}, 7")
    a.e(f"s_lshl_b32 s{S_T1}, s{S_J}, 3")
    a.e(f"s_add_u32 s{S_T0}, s{S_T0}, s{S_T1}")
    a.e(f"s_lshl_b32 s{S_T1}, s{S_W}, 1")
    a.e(f"s_add_u32 s{S_T1}, s{S_T0}, s{S_T1}")
    a.e(f"s_lshl_b32 s{S_T1}, s{S_T1}, 3")
    a.e(f"s_add_u32 s{S_T1}, s{S_T1}, {WS_STATS}")
    a.e(f"v_mov_b32 v3, s{S_T1}")
    a.nofill(True)
    a.e(f"s_mov_b64 s[{S_EXEC}:{S_EXEC+1}], exec")
    a.e("s_mov_b64 exec, 1")
    a.vm(f"global_store_dwordx4 v3, v[40:43], s[{P_WS}:{P_WS+1}] sc1", "pubA")
    a.e(f"s_mov_b64 exec, s[{S_EXEC}:{S_EXEC+1}]")
    a.nofill(False)
    a.e(f"v_bfe_u32 v2, v{V_LANE}, 2, 2")
    a.e(f"v_mul_u32_u24 v2, 1088, v2")
    a.e(f"v_lshrrev_b32 v3, 4, v{V_LANE}")
    a.e(f"v_lshl_add_u32 v2, v3, 5, v2")
    a.e(f"v_and_b32 v3, 3, v{V_LANE}")
    a.e(f"v_lshl_add_u32 v2, v3, 3, v2")
    a.e(f"s_lshl_b32 s{S_T1}, s{S_W}, 8")
    a.e(f"s_add_u32 s{S_T1}, s{S_T1}, {L_LN}")
    a.e(f"v_add_u32 v2, s{S_T1}, v2")
    a.e(f"s_lshl_b32 s{S_T0}, s{S_T0}, 10")
    a.e(f"s_lshl_b32 s{S_T1}, s{S_W}, 11")
    a.e(f"s_add_u32 s{S_T0}, s{S_T0}, s{S_T1}")
    a.e(f"s_add_u32 s{S_T0}, s{S_T0}, {WS_XT}")
    a.e(f"v_lshl_add_u32 v3, v{V_LANE}, 4, s{S_T0}")
    a.e("s_waitcnt lgkmcnt(0)")
    a.e("s_barrier")
    for q in range(2):
        a.e(f"ds_read_b64_tr_b16 v[{8+4*q}:{9+4*q}], v2 offset:{128*q}")
        a.e(f"ds_read_b64_tr_b16 v[{10+4*q}:{11+4*q}], v2 offset:{128*q + 4*1088}")
    a.e("s_waitcnt lgkmcnt(0)")
    a.vm(f"global_store_dwordx4 v3, v[8:11], s[{P_WS}:{P_WS+1}] sc1", "pubA")
    a.vm(f"global_store_dwordx4 v3, v[12:15], s[{P_WS}:{P_WS+1}] offset:1024 sc1", "pubA")


def g1_main2(a, hooks, pend0):
    for r in range(4):
        a.e(f"v_mov_b32 v{V_ONES+r}, 0x3f803f80")
    a.vm_wait("st0")
    a.e("s_barrier")
    stamp(a, "st0")
    for x in g1_reads(0, 0):
        a.e(x)
    st = 0
    pend = list(pend0)
    for stage in range(8):
        for s in range(4):
            last = (stage == 7 and s == 3)
            a.e("s_waitcnt lgkmcnt(0)")
            mf = g1_mfmas(st, stage == 0 and s == 0)
            slots = {i: [] for i in range(6)}
            if stage == 0:
                lab = a.label("nocs")
                a.e(f"s_or_b32 s{S_T0}, s{S_TW}, s{S_CSH}")
                a.e(f"s_cmp_lg_u32 s{S_T0}, 0")
                a.e(f"s_cbranch_scc1 {lab}")
                for ap in range(3):
                    c = "0" if s == 0 else vr(V_CSACC + 16 * ap, 16)
                    a.e(f"v_mfma_f32_32x32x16_bf16 {vr(V_CSACC+16*ap,16)}, {vr(V_ONES,4)}, {vr(fA(st,ap),4)}, {c}")
                a.e(f"{lab}:")
            ldsw = hooks.get(("ldsw", stage, s), [])
            if s == 3 and not last:
                assert not pend, (stage, len(pend))
                d = SLOT if (stage + 1) % 3 != 0 else -2 * SLOT
                slots[0] += [f"v_add_u32 v{V_BADDR+q}, {d & 0xffffffff}, v{V_BADDR+q}" for q in range(4)]
                slots[0] += [f"v_add_u32 v{V_AADDR}, {d & 0xffffffff}, v{V_AADDR}"]
                def boundary(a, stage=stage):
                    a.vm_wait(f"st{stage+1}")
                    for hk in hooks.get(("pre_barrier", stage), []):
                        hk(a)
                    a.e("s_barrier")
                slots[1].append(boundary)
                rd = g1_reads(st ^ 1, 0)
                slots[1] += rd[:3]
                slots[2] += rd[3:6]
                slots[3] += rd[6:]
                for hk in hooks.get(("post_barrier", stage), []):
                    slots[4].append(hk)
                if stage + 3 < 8:
                    slots[1].append(g1_stage_offsets)
                    pend = dma_groups(stage % 3, f"st{stage+3}")
                elif ("extra_dma", stage) in hooks:
                    pend = list(hooks[("extra_dma", stage)])
                if pend:
                    place(slots, 3, pend.pop(0))
                    place(slots, 5, pend.pop(0))
            elif last:
                slots[0].append("s_barrier")
                for hk in hooks.get(("ring_free",), []):
                    slots[1].append(hk)
            else:
                rd = g1_reads(st ^ 1, s + 1)
                slots[0] += rd[:3]
                slots[1] += rd[3:6]
                slots[2] += rd[6:]
                n = (len(pend) + (2 - s)) // (3 - s)
                if n <= 5:
                    pos = {0: [], 1: [3], 2: [1, 4], 3: [1, 3, 5], 4: [1, 2, 4, 5], 5: [1, 2, 3, 4, 5]}[n]
                    for q in range(n):
                        place(slots, pos[q], pend.pop(0))
                else:
                    for q in range(n):
                        slots[(q * 6) // n].append(list(pend.pop(0)))
            for k, x in enumerate(ldsw):
                slots[min(5, 1 + (k * 5) // max(1, len(ldsw)))].append(x)
            for k, hk in enumerate(hooks.get(("fill", stage, s), [])):
                slots[min(5, 2 + k)].append(hk)
            sh = hooks.get(("shadow", stage, s), [])
            lo = 3
            for k, x in enumerate(sh):
                slots[lo + (k * (6 - lo)) // len(sh)].append(x)
            sched(a, mf, slots)
            st ^= 1
        for hk in hooks.get(("stage_end", stage), []):
            hk(a)


def cs_store8(a):
    lab = a.label("nocsst")
    a.e(f"s_or_b32 s{S_T0}, s{S_TW}, s{S_CSH}")
    a.e(f"s_cmp_lg_u32 s{S_T0}, 0")
    a.e(f"s_cbranch_scc1 {lab}")
    a.e(f"s_mul_i32 s{S_T0}, s{S_J}, 6")
    a.e(f"s_mul_i32 s{S_T1}, s{S_FW}, 3")
    a.e(f"s_add_u32 s{S_T0}, s{S_T0}, s{S_T1}")
    a.e(f"s_lshl_b32 s{S_T0}, s{S_T0}, 10")
    a.e(f"s_lshl_b32 s{S_T1}, s{S_I}, 2")
    a.e(f"s_add_u32 s{S_T0}, s{S_T0}, s{S_T1}")
    a.e(f"s_add_u32 s{S_T0}, s{S_T0}, {WS_CS}")
    a.e(f"v_lshl_add_u32 v3, v{V_LANE}, 5, s{S_T0}")
    a.e(f"s_mov_b64 s[{S_EXEC}:{S_EXEC+1}], exec")
    a.e("s_mov_b64 exec, 0xffffffff")
    for ap in range(3):
        a.e(f"global_store_dword v3, v{V_CSACC+16*ap}, s[{P_WS}:{P_WS+1}] offset:{1024*ap} sc1")
    a.e(f"s_mov_b64 exec, s[{S_EXEC}:{S_EXEC+1}]")
    a.e(f"{lab}:")

def g1_post_loads8(a):
    a.e(f"s_lshl_b32 s{S_T0}, s{S_I}, 7")
    a.e(f"s_lshl_b32 s{S_T1}, s{S_TW}, 6")
    a.e(f"s_add_u32 s{S_T0}, s{S_T0}, s{S_T1}")
    a.e(f"s_lshl_b32 s{S_T0}, s{S_T0}, 3")
    a.e(f"s_add_u32 s{S_T0}, s{S_T0}, {WS_STATS}")
    a.e(f"v_and_b32 v6, 31, v{V_LANE}")
    a.e(f"v_lshl_add_u32 v7, v6, 3, s{S_T0}")
    a.vm(f"global_load_dwordx2 v[2:3], v7, s[{P_WS}:{P_WS+1}] sc1", "post")
    a.vm(f"global_load_dwordx2 v[4:5], v7, s[{P_WS}:{P_WS+1}] offset:256 sc1", "post")
    a.e(f"s_mul_i32 s{S_T0}, s{S_J}, 6")
    a.e(f"s_mul_i32 s{S_T1}, s{S_FW}, 3")
    a.e(f"s_add_u32 s{S_T0}, s{S_T0}, s{S_T1}")
    a.e(f"s_lshl_b32 s{S_T0}, s{S_T0}, 10")
    a.e(f"s_add_u32 s{S_T0}, s{S_T0}, {WS_CS}")
    a.e(f"v_lshl_add_u32 v7, v6, 5, s{S_T0}")
    a.e(f"v_lshrrev_b32 v8, 5, v{V_LANE}")
    a.e(f"v_lshl_add_u32 v7, v8, 4, v7")
    for ap in range(3):
        a.vm(f"global_load_dwordx4 {vr(16+8*ap,4)}, v7, s[{P_WS}:{P_WS+1}] offset:{1024*ap} sc1", "post")

def g1_corr_prep():
    r = []
    e = r.append
    r.append(lambda a: a.vm_wait("post"))
    for ap in range(3):
        b = 16 + 8 * ap
        e(f"v_add_f32 v{b}, v{b}, v{b+2}")
        e(f"v_add_f32 v{b+1}, v{b+1}, v{b+3}")
    for ap in range(3):
        b = 16 + 8 * ap
        e(f"v_add_f32 v{b}, v{b}, v{b+1}")
    for ap in range(3):
        b = 16 + 8 * ap
        e(f"v_mov_b32 v{b+1}, v{b}")
    e(f"v_cmp_gt_u32 vcc, 32, v{V_LANE}")
    e("v_nop")
    for ap in range(3):
        b = 16 + 8 * ap
        e(f"v_permlane32_swap_b32 v{b}, v{b+1}")
    for ap in range(3):
        b = 16 + 8 * ap
        e(f"v_add_f32 v{b}, v{b}, v{b+1}")
    for ap in range(3):
        b = 16 + 8 * ap
        e(f"v_cvt_pk_bf16_f32 v{b+1}, v{b}, v{b}")
    for ap in range(3):
        b = 16 + 8 * ap
        e(f"v_lshlrev_b32 v{b+2}, 16, v{b+1}")
    for ap in range(3):
        b = 16 + 8 * ap
        e(f"v_sub_f32 v{b+2}, v{b}, v{b+2}")
    for ap in range(3):
        b = 16 + 8 * ap
        e(f"v_cvt_pk_bf16_f32 v{b+4}, v{b}, v{b+2}")
    for ap in range(3):
        b = 16 + 8 * ap
        e(f"v_cndmask_b32 v{b+4}, 0, v{b+4}, vcc")
        e(f"v_mov_b32 v{b+5}, 0")
        e(f"v_mov_b32 v{b+6}, 0")
        e(f"v_mov_b32 v{b+7}, 0")
    for tt in range(2):
        e(f"v_cndmask_b32 v{44+4*tt}, 0, v{3+2*tt}, vcc")
        for d in range(1, 4):
            e(f"v_mov_b32 v{44+4*tt+d}, 0")
    return r

def g1_corr_mfma(a):
    a.e("s_nop 1")
    for ap in range(3):
        for tt in range(2):
            a.e(f"v_mfma_f32_32x32x16_bf16 {vr(acc(tt,ap),16)}, {vr(20+8*ap,4)}, {vr(44+4*tt,4)}, {vr(acc(tt,ap),16)}")

def g1_epilogue2(a):
    a.e(f"v_mov_b32 v52, {fhex(C1)}")
    a.e(f"v_mov_b32 v53, {fhex(C2)}")
    a.e("v_rcp_f32 v54, v2")
    a.e("v_rcp_f32 v56, v4")
    a.e(f"s_lshl_b32 s{S_T0}, s{S_I}, 2")
    a.e(f"s_lshl_b32 s{S_T1}, s{S_TW}, 1")
    a.e(f"s_add_u32 s{S_T0}, s{S_T0}, s{S_T1}")
    a.e(f"s_mul_i32 s{S_T0}, s{S_T0}, 86")
    a.e(f"s_lshl_b32 s{S_T1}, s{S_U0}, 1")
    a.e(f"s_add_u32 s{S_T0}, s{S_T0}, s{S_T1}")
    a.e(f"s_mul_i32 s{S_T1}, s{S_FW}, 3")
    a.e(f"s_add_u32 s{S_T0}, s{S_T0}, s{S_T1}")
    a.e(f"s_lshl_b32 s{S_T0}, s{S_T0}, 10")
    a.e(f"s_add_u32 s{S_T0}, s{S_T0}, {WS_H}")
    a.e(f"v_lshl_add_u32 v58, v{V_LANE}, 4, s{S_T0}")
    a.e(f"v_add_u32 v59, {86*1024}, v58")
    a.e(f"s_sub_u32 s{S_T2}, s{S_NU}, s{S_T1}")
    a.e(f"s_lshl_b32 s{S_T0}, s{S_WG}, 12")
    a.e(f"s_add_u32 s{S_T0}, s{S_T0}, {WS_DUMMY}")
    a.e(f"v_lshl_add_u32 v60, v{V_LANE}, 4, s{S_T0}")
    a.e(f"s_cmp_gt_u32 s{S_T2}, 1")
    a.e(f"s_cselect_b64 s[74:75], -1, 0")
    a.e(f"v_cndmask_b32 v61, v60, v59, s[74:75]")
    a.e(f"v_cndmask_b32 v60, v60, v58, s[74:75]")
    a.e("s_nop 7")
    for ap in range(3):
        for tt in range(2):
            c = acc(tt, ap)
            R = 2 + 2 * tt
            Sg = 54 + 2 * tt
            Gq, T, X = 6, 14, 22
            for p in range(4):
                a.e(f"v_pk_mul_f32 {vr(Gq+2*p,2)}, {vr(c+2*p,2)}, {vr(R,2)} op_sel_hi:[1,0]")
            for p in range(4):
                a.e(f"v_pk_mul_f32 {vr(T+2*p,2)}, {vr(Gq+2*p,2)}, {vr(Gq+2*p,2)}")
            for p in range(4):
                a.e(f"v_pk_fma_f32 {vr(T+2*p,2)}, {vr(T+2*p,2)}, {vr(52,2)}, {vr(52,2)} op_sel:[0,1,0] op_sel_hi:[1,1,0]")
            for p in range(4):
                a.e(f"v_pk_mul_f32 {vr(T+2*p,2)}, {vr(T+2*p,2)}, {vr(Gq+2*p,2)}")
            for p in range(8):
                a.e(f"v_exp_f32 v{T+p}, v{T+p}")
            for p in range(4):
                a.e(f"v_pk_mul_f32 {vr(Gq+2*p,2)}, {vr(Gq+2*p,2)}, {vr(c+8+2*p,2)}")
            for p in range(4):
                a.e(f"v_pk_fma_f32 {vr(T+2*p,2)}, {vr(T+2*p,2)}, {vr(Sg,2)}, {vr(Sg,2)} op_sel_hi:[1,0,0]")
            for p in range(8):
                a.e(f"v_rcp_f32 v{T+p}, v{T+p}")
            a.e("s_nop 0")
            for p in range(4):
                a.e(f"v_pk_mul_f32 {vr(Gq+2*p,2)}, {vr(Gq+2*p,2)}, {vr(T+2*p,2)}")
            O = X + 4 * ((2 * ap + tt) % 2)
            for p in range(4):
                a.e(f"v_cvt_pk_bf16_f32 v{O+p}, v{Gq+2*p}, v{Gq+2*p+1}")
            adr = (58 + tt) if ap == 0 else (60 + tt)
            a.vm(f"global_store_dwordx4 v{adr}, {vr(O,4)}, s[{P_WS}:{P_WS+1}] offset:{1024*ap} sc1", "pubH")


WD_N = {1: 3, 2: 5, 3: 3, 4: 5, 5: 6}
WD_K0 = {1: 0, 2: 3, 3: 8, 4: 11, 5: 16}
WD_L = {1: (0, 3*2048), 2: (SLOT, 5*2048), 3: (0, 3*2048), 4: (SLOT, 5*2048), 5: (2*SLOT, 6*2048)}
V_WDL = 240
S_WDL = 15
S_WDS = 73

def wd_setup2(a):
    mk_srd(a, SRD_WD, P_WD, 1376 * 1024)
    a.e(f"s_mul_i32 s{S_WDO}, s{S_W}, {352 * 1024}")
    a.e(f"s_lshl_b32 s{S_T0}, s{S_NT}, 7")
    a.e(f"s_add_u32 s{S_WDO}, s{S_WDO}, s{S_T0}")
    a.e(f"s_mov_b32 s{S_WDS}, s{S_WDO}")
    a.e(f"v_lshrrev_b32 v6, 3, v{V_LANE}")
    a.e(f"v_and_b32 v7, 7, v{V_LANE}")
    a.e(f"v_bfe_u32 v8, v6, 1, 1")
    a.e(f"v_lshlrev_b32 v8, 2, v8")
    a.e(f"v_xor_b32 v7, v7, v8")
    a.e(f"v_lshlrev_b32 v7, 4, v7")
    a.e(f"v_lshl_add_u32 v{V_WDOFF}, v6, 10, v7")
    a.e(f"v_lshrrev_b32 v6, 4, v{V_LANE}")
    a.e(f"v_and_b32 v7, 1, v6")
    a.e(f"v_lshrrev_b32 v6, 1, v6")
    a.e(f"v_bfe_u32 v8, v{V_LANE}, 2, 2")
    a.e(f"v_lshl_add_u32 v8, v6, 2, v8")
    a.e(f"v_lshlrev_b32 v8, 7, v8")
    a.e(f"v_lshl_add_u32 v8, v7, 5, v8")
    a.e(f"v_and_b32 v7, 3, v{V_LANE}")
    a.e(f"v_lshl_add_u32 v8, v7, 3, v8")
    a.e(f"v_bfe_u32 v7, v{V_LANE}, 3, 1")
    a.e(f"v_lshlrev_b32 v7, 6, v7")
    a.e(f"v_add_u32 v{V_WDL}, v8, v7")
    a.e(f"v_xor_b32 v7, 64, v7")
    a.e(f"v_add_u32 v{V_WDL+1}, v8, v7")

S_KR = 9
S_RHO = 72
S_ROT = 35
def wd_groups(rnd):
    ks0, n = WD_K0[rnd], WD_N[rnd]
    lb, wsz = WD_L[rnd]
    out = []
    for q in range(2 * n):
        pre = [f"s_mul_i32 s{S_WDL}, s{S_W}, {wsz}"] if q == 0 else []
        out.append(Dma(pre, f"s_add_u32 m0, s{S_WDL}, {lb + q*1024}",
                       (f"buffer_load_dwordx4 v{V_WDOFF}, s[{SRD_WD}:{SRD_WD+3}], s{S_WDS} offen lds", f"wd{rnd}"),
                       [f"s_add_u32 s{S_WDS}, s{S_WDS}, 8192"]))
    return out

def wd_tr(rnd):
    ks0, n = WD_K0[rnd], WD_N[rnd]
    lb, wsz = WD_L[rnd]
    out = [f"s_mul_i32 s{S_T0}, s{S_W}, {wsz}", f"s_add_u32 s{S_T0}, s{S_T0}, {lb}",
           f"v_add_u32 v{V_WDA}, s{S_T0}, v{V_WDL}", f"v_add_u32 v{V_WDA+1}, s{S_T0}, v{V_WDL+1}"]
    for k in range(n):
        for t in range(2):
            for h in range(2):
                out.append(f"ds_read_b64_tr_b16 {ar(8*(ks0+k) + 4*t + 2*h, 2)}, v{V_WDA+t} offset:{k*2048 + h*1024}")
    return out


def xt_loads2(a):
    a.e(f"s_and_b32 s{S_T0}, s{S_WG}, 7")
    a.e(f"s_lshr_b32 s{S_T1}, s{S_WG}, 3")
    a.e(f"s_lshl_b32 s{S_T0}, s{S_T0}, 6")
    a.e(f"s_lshl_b32 s{S_T1}, s{S_T1}, 1")
    a.e(f"s_add_u32 s{S_T0}, s{S_T0}, s{S_T1}")
    a.e(f"s_lshl_b32 s{S_T0}, s{S_T0}, 4")
    a.e(f"s_lshl_b32 s{S_T1}, s{S_W}, 19")
    a.e(f"s_add_u32 s{S_T0}, s{S_T0}, s{S_T1}")
    a.e(f"s_add_u32 s{S_T0}, s{S_T0}, {WS_XT}")
    a.e(f"v_lshrrev_b32 v30, 1, v{V_LANE}")
    a.e(f"v_lshlrev_b32 v30, 13, v30")
    a.e(f"v_and_b32 v31, 1, v{V_LANE}")
    a.e(f"v_lshl_add_u32 v30, v31, 4, v30")
    a.e(f"v_add_u32 v30, s{S_T0}, v30")
    a.vm(f"global_load_dwordx4 {vr(V_XT,4)}, v30, s[{P_WS}:{P_WS+1}] sc1", "xt")
    a.e(f"v_add_u32 v30, {32*8192}, v30")
    a.vm(f"global_load_dwordx4 {vr(V_XT+4,4)}, v30, s[{P_WS}:{P_WS+1}] sc1", "xt")

V_UA = 242
def u_write_e(a):
    a.vm_wait("xt")
    a.e(f"v_and_b32 v6, 1, v{V_LANE}")
    a.e(f"v_mul_u32_u24 v6, {UU_CH}, v6")
    a.e(f"v_lshrrev_b32 v7, 1, v{V_LANE}")
    a.e(f"v_lshl_add_u32 v6, v7, 4, v6")
    a.e(f"s_lshl_b32 s{S_T0}, s{S_W}, 10")
    a.e(f"s_add_u32 s{S_T0}, s{S_T0}, {L_UU + 32}")
    a.e(f"v_add_u32 v{V_UA}, s{S_T0}, v6")
    a.e(f"ds_write_b128 v{V_UA}, {vr(V_XT,4)}")
    a.e(f"ds_write_b128 v{V_UA}, {vr(V_XT+4,4)} offset:512")
    lab = a.label("nopad")
    a.e(f"s_cmp_lg_u32 s{S_W}, 0")
    a.e(f"s_cbranch_scc1 {lab}")
    a.e(f"v_lshrrev_b32 v6, 3, v{V_LANE}")
    a.e(f"v_mul_u32_u24 v6, {UU_CH}, v6")
    a.e(f"v_and_b32 v7, 7, v{V_LANE}")
    a.e(f"v_lshl_add_u32 v6, v7, 2, v6")
    a.e(f"v_add_u32 v6, {L_UU}, v6")
    a.e("v_mov_b32 v7, 0")
    a.e(f"s_mov_b64 s[{S_EXEC}:{S_EXEC+1}], exec")
    a.e("s_mov_b64 exec, 0xffff")
    a.e("ds_write_b32 v6, v7")
    a.e("s_mov_b64 exec, 0x7f7f")
    a.e("ds_write_b32 v6, v7 offset:4160")
    a.e(f"s_mov_b64 exec, s[{S_EXEC}:{S_EXEC+1}]")
    a.e(f"{lab}:")

def u_write_o(a):
    a.e(f"ds_read_b32 v6, v{V_UA} offset:16")
    a.e(f"ds_read_b32 v7, v{V_UA} offset:{512+16}")
    for q in range(2):
        X = V_XT + 4*q
        for k in range(3):
            a.e(f"v_alignbit_b32 v{8+4*q+k}, v{X+k+1}, v{X+k}, 16")
    a.e("s_waitcnt lgkmcnt(0)")
    a.e(f"v_alignbit_b32 v11, v6, v{V_XT+3}, 16")
    a.e(f"v_alignbit_b32 v15, v7, v{V_XT+7}, 16")
    a.e(f"ds_write_b128 v{V_UA}, v[8:11] offset:4160")
    a.e(f"ds_write_b128 v{V_UA}, v[12:15] offset:{4160+512}")
    lab = a.label("noo7")
    a.e(f"s_cmp_lg_u32 s{S_W}, 0")
    a.e(f"s_cbranch_scc1 {lab}")
    a.e(f"v_lshlrev_b32 v6, 16, v{V_XT}")
    a.e(f"s_mov_b64 s[{S_EXEC}:{S_EXEC+1}], exec")
    a.e("s_mov_b64 exec, 3")
    a.e(f"ds_write_b32 v{V_UA}, v6 offset:{4160 - 4}")
    a.e(f"s_mov_b64 exec, s[{S_EXEC}:{S_EXEC+1}]")
    a.e(f"{lab}:")


KS = 176
L_KV2 = 2 * SLOT
L_KX2 = L_KV2 + 2 * KV_CH
L_KR2, L_UU2, L_CX2 = 150016, 24576, 2*SLOT + 4*6*2048
V_KWA = 62

def kgen_shadow():
    out = []
    e = out.append
    P = V_P
    AL, BE, CO = 10, 11, 12
    Z1, Z2, Z4, Z8, Z256, Z512 = 14, 16, 18, 20, 22, 24
    A0, A1, B0, B1, C0, C1, CB, D0, D1, DB0, DB1 = 26, 28, 30, 32, 34, 36, 38, 40, 42, 44, 46
    T = 48
    for q in range(8):
        e(f"v_lshlrev_b32 v{P+q}, 16, v{P+q}")
    e(f"v_mul_f32 v58, 0x3fb8aa3b, v{P+6}")
    e("v_exp_f32 v58, v58")
    e(f"v_mov_b32 v{A0}, 1.0")
    e(f"v_cvt_pk_bf16_f32 v58, v58, v58")
    e(f"v_mov_b32 v{A0+1}, 0")
    e(f"v_lshlrev_b32 v58, 16, v58")
    e(f"v_mul_f32 v{AL}, v58, v{P}")
    e(f"v_mul_f32 v{BE}, v58, v{P+1}")
    e(f"v_mul_f32 v56, v58, v{P+2}")
    e(f"v_mul_f32 v57, v58, v{P+3}")
    e(f"v_mul_f32 v{AL}, 0x3fb8aa3b, v{AL}")
    e(f"v_mul_f32 v{BE}, 0.15915494, v{BE}")
    e(f"v_mul_f32 v{CO}, v{P+4}, v56")
    e(f"v_mul_f32 v{CO+1}, v{P+4}, v57")
    e(f"v_fma_f32 v{CO}, -v{P+5}, v57, v{CO}")
    e(f"v_fma_f32 v{CO+1}, v{P+5}, v56, v{CO+1}")
    items = [(Z1, 1, T), (Z8, 8, T+2), (Z256, 256, T+4), (B0, 128, T+6)]
    for d, p, t in items:
        e(f"v_mul_f32 v{t}, {fhex(float(p))}, v{AL}")
        e(f"v_mul_f32 v{t+1}, {fhex(float(p))}, v{BE}")
    for d, p, t in items:
        e(f"v_exp_f32 v{t}, v{t}")
        e(f"v_fract_f32 v{t+1}, v{t+1}")
    for d, p, t in items:
        e(f"v_cos_f32 v{d}, v{t+1}")
        e(f"v_sin_f32 v{d+1}, v{t+1}")
    e("v_nop")
    for d, p, t in items:
        e(f"v_mul_f32 v{d}, v{d}, v{t}")
        e(f"v_mul_f32 v{d+1}, v{d+1}, v{t}")
    def cm(d, x, y):
        return [f"v_mul_f32 v{d}, v{x}, v{y}", f"v_mul_f32 v{d+1}, v{x}, v{y+1}",
                f"v_fma_f32 v{d}, -v{x+1}, v{y+1}, v{d}", f"v_fma_f32 v{d+1}, v{x+1}, v{y}, v{d+1}"]
    pk = [0]
    def put(vec, pr):
        r = 56 + (pk[0] % 2); pk[0] += 1
        return [f"v_cvt_pk_bf16_f32 v{r}, v{pr}, {'-' if vec < 32 else ''}v{pr+1}", f"v_accvgpr_write_b32 a{KS+vec}, v{r}"]
    for d, x, y in ((Z2, Z1, Z1), (Z512, Z256, Z256), (CB, CO, Z256), (Z4, Z2, Z2), (DB0, CO, Z512)):
        out += cm(d, x, y)
    sA = [('p', 32, A0)]
    cur, oth = A0, A1
    for b in range(1, 16):
        sA += [('m', oth, cur, Z8), ('p', 32 + b, oth)]; cur, oth = oth, cur
    sB = [('p', 48, B0)]
    cur, oth = B0, B1
    for b in range(17, 32):
        sB += [('m', oth, cur, Z8), ('p', 32 + b, oth)]; cur, oth = oth, cur
    sC = [('p', 0, CO)]
    cur = CO
    for ee in range(1, 8):
        d = (C0, C1)[ee % 2]; sC += [('m', d, cur, Z1), ('p', ee, d)]; cur = d
    sC += [('p', 8, CB), ('m', C0, CB, Z2), ('p', 9, C0), ('m', C1, C0, Z2), ('p', 10, C1), ('p', 12, C1),
           ('m', C0, C1, Z2), ('p', 13, C0), ('m', C1, C0, Z2), ('p', 14, C1)]
    sD = [('p', 16, DB0), ('m', D0, DB0, Z4), ('p', 17, D0), ('p', 20, D0), ('m', D1, D0, Z4), ('p', 21, D1),
          ('m', DB1, DB0, Z256), ('p', 18, DB1), ('m', D0, DB1, Z4), ('p', 19, D0), ('p', 22, D0), ('m', D1, D0, Z4), ('p', 23, D1)]
    prev, nxt = DB1, DB0
    for q in range(4):
        sD += [('m', nxt, prev, Z256), ('p', 24 + q, nxt), ('m', (D0, D1)[q % 2], nxt, Z8), ('p', 28 + q, (D0, D1)[q % 2])]
        prev, nxt = nxt, prev
    seqs = [sA, sB, sC, sD]
    pos = [0]*4
    while any(pos[q] < len(seqs[q]) for q in range(4)):
        for q in range(4):
            if pos[q] < len(seqs[q]):
                st = seqs[q][pos[q]]; pos[q] += 1
                out += put(st[1], st[2]) if st[0] == 'p' else cm(st[1], st[2], st[3])
    return out

KV_VECS = [v for v in range(64) if v not in (11, 15)]
def kv_addr(a):
    a.e(f"s_mul_i32 s{S_T0}, s{S_CH}, {KV_CH}")
    a.e(f"s_lshl_b32 s{S_T1}, s{S_MH}, 8")
    a.e(f"s_add_u32 s{S_T0}, s{S_T0}, s{S_T1}")
    a.e(f"s_add_u32 s{S_T0}, s{S_T0}, {L_KV2}")
    a.e(f"v_lshl_add_u32 v{V_KWA}, v{V_LANE}, 2, s{S_T0}")
def kv_writes():
    return [[f"ds_write_b32 v{V_KWA}, a{KS+v} offset:{v*528}"] for v in KV_VECS]


def k_frag_addr():
    return [f"v_and_b32 v30, 31, v{V_LANE}", "v_mul_u32_u24 v30, 528, v30", f"v_lshrrev_b32 v31, 5, v{V_LANE}",
            "v_lshl_add_u32 v30, v31, 4, v30", f"s_mul_i32 s{S_T0}, s{S_CH}, {KV_CH}", f"s_add_u32 s{S_T0}, s{S_T0}, {L_KV2}",
            f"v_add_u32 v213, s{S_T0}, v30",
            f"s_mul_i32 s{S_T0}, s{S_CH}, {KR_CH}", f"s_add_u32 s{S_T0}, s{S_T0}, {L_KR2 + 504}",
            f"v_and_b32 v30, 31, v{V_LANE}", "v_lshlrev_b32 v30, 4, v30", "v_lshl_add_u32 v30, v31, 3, v30",
            f"v_sub_u32 v214, s{S_T0}, v30", f"s_add_u32 s{S_T0}, s{S_T0}, {4096 - 504}",
            f"v_lshl_add_u32 v215, v{V_LANE}, 4, s{S_T0}"]

def kgen10(a, shadow, pre_b, post_b):
    KD = 192
    FR = 64
    for k in range(16):
        a.e(f"ds_read_b128 {vr(FR+8*k,4)}, v213 offset:{k*32}")
        a.e(f"ds_read_b128 {vr(FR+8*k+4,4)}, v213 offset:{32*528 + k*32}")
        if k == 3:
            break
    rest = []
    for k in range(4, 16):
        rest.append(f"ds_read_b128 {vr(FR+8*k,4)}, v213 offset:{k*32}")
        rest.append(f"ds_read_b128 {vr(FR+8*k+4,4)}, v213 offset:{32*528 + k*32}")
    mf = [f"v_mfma_f32_32x32x16_bf16 {vr(KD,16)}, {vr(FR+8*k,4)}, {vr(FR+8*k+4,4)}, {'0' if k == 0 else vr(KD,16)}" for k in range(16)]
    slots = {i: [] for i in range(16)}
    a.e("s_waitcnt lgkmcnt(0)")
    for g in range(4):
        slots[g] += rest[6*g:6*g+6]
    slots[3].append("s_waitcnt lgkmcnt(0)")
    for k, x in enumerate(shadow):
        slots[4 + (k * 12) // len(shadow)].append(x)
    sched(a, mf, slots)
    lab1, lab2 = a.label("ex1"), a.label("ex2")
    a.e(f"v_cmp_le_u32 vcc, 32, v{V_LANE}")
    a.e(f"v_and_b32 v7, 1, v{V_LANE}")
    a.e(f"v_cmp_eq_u32 s[{S_TMP}:{S_TMP+1}], 1, v7")
    for q in range(4):
        a.e(f"v_mov_b32 v{12+q}, 0")
    a.e("s_nop 4")
    a.e(f"s_cmp_eq_u32 s{S_MH}, 0")
    a.e(f"s_cbranch_scc0 {lab1}")
    D = KD
    a.e(f"v_cvt_pk_bf16_f32 v8, v{D+3}, v{D+2}")
    a.e(f"v_cvt_pk_bf16_f32 v9, v{D+1}, v{D}")
    a.e(f"v_cvt_pk_bf16_f32 v10, v{D+6}, v{D+5}")
    a.e(f"v_cvt_pk_bf16_f32 v11, v{D+4}, v{D+4}")
    a.e("ds_write_b64 v214, v[8:9] offset:3584")
    a.e("ds_write_b64 v214, v[10:11] offset:3072")
    a.e(f"s_mov_b64 s[{S_EXEC}:{S_EXEC+1}], exec")
    a.e("s_mov_b64 exec, 0x3fffffff")
    a.e("ds_write_b128 v215, v[12:15]")
    a.e(f"s_mov_b64 exec, s[{S_EXEC}:{S_EXEC+1}]")
    a.e(f"s_branch {lab2}")
    a.e(f"{lab1}:")
    D = KD + 8
    for q in range(4):
        a.e(f"v_mov_b32 v{16+2*q}, v{D+4+q}")
        a.e(f"v_mov_b32 v{17+2*q}, v{D+4+q}")
    for q in range(2):
        A_, B_ = D + 2*q, D + 2*q + 1
        a.e(f"v_cndmask_b32 v12, v{A_}, v{B_}, vcc")
        a.e(f"v_cvt_pk_bf16_f32 v{8+2*q+0}, v{B_}, v12")
        a.e(f"v_cvt_pk_bf16_f32 v{8+2*q+1}, v{A_}, v{A_}")
    for q in range(4):
        a.e(f"v_permlane32_swap_b32 v{16+2*q}, v{17+2*q}")
    a.e("ds_write_b64 v214, v[8:9] offset:2560")
    a.e("ds_write_b64 v214, v[10:11] offset:2048")
    for q in range(4):
        a.e(f"v_cndmask_b32 v{16+2*q}, v{16+2*q}, v{D+4+q}, s[{S_TMP}:{S_TMP+1}]")
    for q in range(4):
        a.e(f"v_cvt_pk_bf16_f32 v{24+2*q}, v{D+4+q}, v{D+4+q}")
        a.e(f"v_cvt_pk_bf16_f32 v{25+2*q}, v{D+4+q}, v{16+2*q}")
    for q in range(4):
        a.e(f"ds_write_b64 v214, {vr(24+2*q,2)} offset:{1536 - 512*q}")
    a.e(f"{lab2}:")
    stamp(a, "km0")
    pre_b(a)
    stamp(a, "km1")
    a.e("s_waitcnt lgkmcnt(0)")
    a.e("s_barrier")
    post_b(a)


V_XE = 240 + 3
def xt_extra(a):
    a.e(f"v_and_b32 v31, 1, v{V_LANE}")
    a.e(f"s_add_u32 s{S_T0}, s{S_T0}, {64*8192}")
    a.e(f"v_lshl_add_u32 v31, v31, 4, s{S_T0}")
    a.vm(f"global_load_dword v242, v31, s[{P_WS}:{P_WS+1}] sc1", "xt")

def u_prep_items():
    it = [lambda a: a.vm_wait("xt"),
          f"v_add_u32 v40, 2, v{V_LANE}", "v_and_b32 v40, 63, v40", "v_lshlrev_b32 v40, 2, v40",
          f"ds_bpermute_b32 v41, v40, v{V_XT}", f"ds_bpermute_b32 v42, v40, v{V_XT+4}"]
    for q in range(2):
        X = V_XT + 4*q
        for k in range(3):
            it.append(f"v_alignbit_b32 v{32+4*q+k}, v{X+k+1}, v{X+k}, 16")
    it += [f"v_cmp_gt_u32 vcc, 62, v{V_LANE}", "s_waitcnt lgkmcnt(0)",
           "v_cndmask_b32 v41, v42, v41, vcc", "v_cndmask_b32 v42, v242, v42, vcc",
           f"v_alignbit_b32 v35, v41, v{V_XT+3}, 16", f"v_alignbit_b32 v39, v42, v{V_XT+7}, 16"]
    it += [f"v_and_b32 v43, 1, v{V_LANE}", f"v_mul_u32_u24 v43, {UU_CH}, v43", f"v_lshrrev_b32 v40, 1, v{V_LANE}",
           "v_lshl_add_u32 v43, v40, 4, v43", f"s_lshl_b32 s{S_T0}, s{S_W}, 10", f"s_add_u32 s{S_T0}, s{S_T0}, {L_UU2 + 32}",
           f"v_add_u32 v43, s{S_T0}, v43"]
    return it

def u_write_items():
    it = [f"ds_write_b128 v43, {vr(V_XT,4)}", f"ds_write_b128 v43, {vr(V_XT+4,4)} offset:512",
          "ds_write_b128 v43, v[32:35] offset:4160", f"ds_write_b128 v43, v[36:39] offset:{4160+512}"]
    def pads(a):
        lab = a.label("nopad")
        a.e(f"s_cmp_lg_u32 s{S_W}, 0")
        a.e(f"s_cbranch_scc1 {lab}")
        a.e(f"v_lshlrev_b32 v44, 16, v{V_XT}")
        a.e(f"v_lshrrev_b32 v45, 3, v{V_LANE}")
        a.e(f"v_mul_u32_u24 v45, {UU_CH}, v45")
        a.e(f"v_and_b32 v46, 7, v{V_LANE}")
        a.e(f"v_lshl_add_u32 v45, v46, 2, v45")
        a.e(f"v_add_u32 v45, {L_UU2}, v45")
        a.e("v_mov_b32 v46, 0")
        a.e(f"s_mov_b64 s[{S_EXEC}:{S_EXEC+1}], exec")
        a.e("s_mov_b64 exec, 0xffff")
        a.e("ds_write_b32 v45, v46")
        a.e("s_mov_b64 exec, 0x7f7f")
        a.e("ds_write_b32 v45, v46 offset:4160")
        a.e("s_mov_b64 exec, 3")
        a.e(f"ds_write_b32 v43, v44 offset:{4160 - 4}")
        a.e(f"s_mov_b64 exec, s[{S_EXEC}:{S_EXEC+1}]")
        a.e(f"{lab}:")
    return it + [pads]


def conv_addr(a):
    a.e(f"v_and_b32 v2, 15, v{V_LANE}")
    a.e(f"v_lshrrev_b32 v3, 4, v{V_LANE}")
    a.e(f"v_and_b32 v4, 1, v3")
    a.e(f"v_lshrrev_b32 v3, 1, v3")
    a.e(f"v_lshlrev_b32 v5, 5, v3")
    a.e(f"v_lshlrev_b32 v6, 4, v4")
    a.e(f"v_sub_u32 v5, v5, v6")
    a.e(f"s_lshl_b32 s{S_T2}, s{S_MH}, 6")
    a.e(f"s_mul_i32 s{S_T0}, s{S_CH}, {KR_CH}")
    a.e(f"s_add_u32 s{S_T0}, s{S_T0}, {L_KR2 + 496}")
    a.e(f"s_add_u32 s{S_T0}, s{S_T0}, s{S_T2}")
    a.e(f"v_lshlrev_b32 v6, 5, v2")
    a.e(f"v_sub_u32 v6, v5, v6")
    a.e(f"v_add_u32 v{CVB}, s{S_T0}, v6")
    a.e(f"s_mul_i32 s{S_T0}, s{S_CH}, {UU_CH}")
    a.e(f"s_add_u32 s{S_T0}, s{S_T0}, {L_UU2}")
    a.e(f"s_add_u32 s{S_T0}, s{S_T0}, s{S_T2}")
    a.e(f"v_and_b32 v6, 1, v2")
    a.e(f"v_cmp_eq_u32 vcc, 1, v6")
    a.e(f"v_mov_b32 v6, {4160+16}")
    a.e(f"v_lshl_add_u32 v7, v2, 1, v5")
    a.e(f"v_mov_b32 v3, 18")
    a.e(f"v_cndmask_b32 v6, v6, v3, vcc")
    a.e(f"v_add_u32 v7, v7, v6")
    a.e(f"v_add_u32 v{CVA}, s{S_T0}, v7")
    for al in range(1, 8):
        a.e(f"v_add_u32 v{CVA+al}, {512*al}, v{CVA}")

CVA, CVB = 48, 56

def conv_main3(a, fillers, late, barrier=True):
    if barrier:
        a.e("s_waitcnt lgkmcnt(0)")
        a.e("s_barrier")
    def reads(st, q):
        r = []
        for al in range(8):
            r.append(f"ds_read2_b32 {vr(CV_A[st]+4*al,2)}, v{CVA+al} offset0:{32*q} offset1:{32*q+1}")
            r.append(f"ds_read2_b32 {vr(CV_A[st]+4*al+2,2)}, v{CVA+al} offset0:{32*q+2} offset1:{32*q+3}")
            r.append(f"ds_read_b128 {vr(CV_B[st]+4*al,4)}, v{CVB} offset:{512*(7-al) + 128*q}")
        return r
    r0 = reads(0, 0)
    order = [x for x in r0 if "b128" in x] + [x for x in r0 if "b128" not in x]
    for x in order:
        a.e(x)
    st = 0
    fill = list(fillers)
    for q in range(4):
        a.e("s_waitcnt lgkmcnt(0)" if q else "s_waitcnt lgkmcnt(14)")
        mf = []
        for al in range(8):
            for be in range(8 - al):
                I = al + be
                c = "0" if (q == 0 and al == 0) else vr(CV_ACC + 4*I, 4)
                mf.append(f"v_mfma_f32_16x16x32_bf16 {vr(CV_ACC+4*I,4)}, {vr(CV_A[st]+4*al,4)}, {vr(CV_B[st]+4*be,4)}, {c}")
        slots = {i: [] for i in range(36)}
        if q == 0:
            slots[7].append("s_waitcnt lgkmcnt(0)")
        if q < 3:
            rd = reads(st ^ 1, q + 1)
            rd = [x for x in rd if "b128" in x] + [x for x in rd if "b128" not in x]
            base = 8 if q == 0 else 0
            for k, x in enumerate(rd):
                slots[base + k].append(x)
        nf = (len(fill) + (2 - q)) // (3 - q) if q < 3 else len(fill)
        for k in range(nf):
            place(slots, min(35, 1 + 3*k), fill.pop(0))
        for k, it in enumerate(late.get(q, [])):
            slots[min(35, 2 + 2*k)].append(it)
        stamp(a, f"cv{q}")
        sched(a, mf, slots)
        st ^= 1


def conv_finish3(a):
    a.e(f"s_lshl_b32 s{S_T0}, s{S_W}, 12")
    a.e(f"s_add_u32 s{S_T0}, s{S_T0}, {L_CX2}")
    a.e(f"v_lshl_add_u32 v2, v{V_LANE}, 4, s{S_T0}")
    a.e(f"s_xor_b32 s{S_T1}, s{S_W}, 1")
    a.e(f"s_lshl_b32 s{S_T1}, s{S_T1}, 12")
    a.e(f"s_add_u32 s{S_T1}, s{S_T1}, {L_CX2}")
    a.e(f"v_lshl_add_u32 v3, v{V_LANE}, 4, s{S_T1}")
    a.e(f"s_mul_i32 s{S_T0}, s{S_CH}, {UU_CH}")
    a.e(f"s_add_u32 s{S_T0}, s{S_T0}, {L_UU2 + 32}")
    a.e(f"s_lshl_b32 s{S_T1}, s{S_MH}, 11")
    a.e(f"s_add_u32 s{S_T0}, s{S_T0}, s{S_T1}")
    a.e(f"v_and_b32 v4, 15, v{V_LANE}")
    a.e(f"v_lshrrev_b32 v5, 4, v{V_LANE}")
    a.e(f"v_lshlrev_b32 v6, 5, v4")
    a.e(f"v_lshl_add_u32 v6, v5, 3, v6")
    a.e(f"v_add_u32 v6, s{S_T0}, v6")
    lab1, lab2 = a.label("cx1"), a.label("cx2")
    a.e(f"s_cmp_eq_u32 s{S_MH}, 0")
    a.e(f"s_cbranch_scc1 {lab1}")
    for k in range(4):
        a.e(f"ds_write_b128 v2, {vr(CV_ACC+4*k,4)} offset:{1024*k}")
    for q in range(8):
        a.e(f"v_pk_mul_f32 {vr(CV_ACC+2*q,2)}, {vr(CV_ACC+16+2*q,2)}, 1.0 op_sel_hi:[1,0]")
    a.e(f"s_branch {lab2}")
    a.e(f"{lab1}:")
    for k in range(4):
        a.e(f"ds_write_b128 v2, {vr(CV_ACC+16+4*k,4)} offset:{1024*k}")
    a.e(f"{lab2}:")
    for k in range(4):
        a.e(f"ds_read_b64 {vr(40+2*k,2)}, v6 offset:{512*k}")
    a.e(f"s_lshl_b32 s{S_T0}, s{S_MH}, 20")
    a.e(f"s_lshl_b32 s{S_T1}, s{S_D}, 7")
    a.e(f"s_add_u32 s{S_T0}, s{S_T0}, s{S_T1}")
    a.e(f"s_add_u32 s{S_T0}, s{S_T0}, {WS_Y}")
    a.e(f"v_lshrrev_b32 v7, 2, v4")
    a.e(f"v_lshlrev_b32 v7, 16, v7")
    a.e(f"v_and_b32 v8, 3, v4")
    a.e(f"v_lshl_add_u32 v7, v8, 5, v7")
    a.e(f"v_lshl_add_u32 v7, v5, 3, v7")
    a.e(f"v_add_u32 v7, s{S_T0}, v7")
    a.e("s_waitcnt lgkmcnt(0)")
    a.e("s_barrier")
    for k in range(4):
        a.e(f"ds_read_b128 {vr(64+4*k,4)}, v3 offset:{1024*k}")
    DS = V_P + 6
    U = 16
    for k in range(4):
        a.e(f"v_lshlrev_b32 v{U+4*k}, 16, v{40+2*k}")
        a.e(f"v_and_b32 v{U+4*k+1}, 0xffff0000, v{40+2*k}")
        a.e(f"v_lshlrev_b32 v{U+4*k+2}, 16, v{41+2*k}")
        a.e(f"v_and_b32 v{U+4*k+3}, 0xffff0000, v{41+2*k}")
    for k in range(8):
        a.e(f"v_pk_fma_f32 {vr(CV_ACC+2*k,2)}, {vr(U+2*k,2)}, {vr(DS,2)}, {vr(CV_ACC+2*k,2)} op_sel:[0,1,0] op_sel_hi:[1,1,1]")
    a.e("s_waitcnt lgkmcnt(0)")
    for k in range(8):
        a.e(f"v_pk_add_f32 {vr(CV_ACC+2*k,2)}, {vr(CV_ACC+2*k,2)}, {vr(64+2*k,2)}")
    for k in range(8):
        a.e(f"v_cvt_pk_bf16_f32 v{40+k}, v{CV_ACC+2*k}, v{CV_ACC+2*k+1}")
    for k in range(4):
        a.vm(f"global_store_dwordx2 v7, {vr(40+2*k,2)}, s[{P_WS}:{P_WS+1}] sc1", "pubY")
        if k < 3:
            a.e(f"v_add_u32 v7, {4*65536}, v7")


def h_setup3(a):
    a.e(f"s_lshl_b32 s{S_T0}, s{S_I}, 2")
    a.e(f"s_lshl_b32 s{S_T1}, s{S_TH}, 1")
    a.e(f"s_add_u32 s{S_T0}, s{S_T0}, s{S_T1}")
    a.e(f"s_mul_i32 s{S_T0}, s{S_T0}, 86")
    a.e(f"s_mul_i32 s{S_T1}, s{S_W}, 22")
    a.e(f"s_add_u32 s{S_T0}, s{S_T0}, s{S_T1}")
    a.e(f"s_lshl_b32 s{S_T0}, s{S_T0}, 10")
    a.e(f"s_add_u32 s{S_T0}, s{S_T0}, {WS_H}")
    a.e(f"v_lshl_add_u32 v{V_HA}, v{V_LANE}, 4, s{S_T0}")
    a.e(f"v_add_u32 v{V_HA+1}, {86*1024}, v{V_HA}")
    a.e(f"s_movk_i32 s66, {4*1024}")
    a.e(f"s_movk_i32 s67, {5*1024}")
    a.e(f"s_cmp_eq_u32 s{S_W}, 3")
    a.e(f"s_cselect_b32 s66, {3*1024}, s66")
    a.e(f"s_cselect_b32 s67, {3*1024}, s67")

def h_load3(q):
    R = G2_H + 8 * (q % G2_RING)
    it = []
    if q < 20:
        if q % 4 == 0 and q > 0:
            it += [f"v_add_u32 v{V_HA}, 4096, v{V_HA}", f"v_add_u32 v{V_HA+1}, 4096, v{V_HA+1}"]
        off = (q % 4) * 1024
        it += [(f"global_load_dwordx4 {vr(R,4)}, v{V_HA}, s[{P_WS}:{P_WS+1}] offset:{off} sc1", f"h{q}"),
               (f"global_load_dwordx4 {vr(R+4,4)}, v{V_HA+1}, s[{P_WS}:{P_WS+1}] offset:{off} sc1", f"h{q}")]
    else:
        sreg = 66 + (q - 20)
        it += [f"v_add_u32 v249, s{sreg}, v{V_HA}", f"v_add_u32 v250, s{sreg}, v{V_HA+1}",
               (f"global_load_dwordx4 {vr(R,4)}, v249, s[{P_WS}:{P_WS+1}] sc1", f"h{q}"),
               (f"global_load_dwordx4 {vr(R+4,4)}, v250, s[{P_WS}:{P_WS+1}] sc1", f"h{q}")]
    return it

def g2_first(a, n0):
    for q in range(n0):
        emit_group(a, h_load3(q))

def g2_main3(a, hooks, n0, pre):
    stamp(a, "g2start")
    la = OPT.get("g2la", 12)
    nxt = n0
    for x in pre:
        emit_group(a, x if (isinstance(x, list) or callable(x)) else [x])
    stamp(a, "g2issued")
    for q in range(22):
        a.vm_wait(f"h{q}")
        if q == 0:
            a.e("s_waitcnt lgkmcnt(0)")
        stamp(a, f"g2q{q}")
        R = G2_H + 8 * (q % G2_RING)
        mf = []
        for t in range(2):
            for tt in range(2):
                c = "0" if q == 0 else vr(acc2(t, tt), 16)
                mf.append(f"v_mfma_f32_32x32x16_bf16 {vr(acc2(t,tt),16)}, {ar(8*q+4*t,4)}, {vr(R+4*tt,4)}, {c}")
        slots = {i: [] for i in range(4)}
        k = 0
        while nxt < 22 and nxt - q <= la and k < 2 and nxt < q + G2_RING:
            slots[1 if k == 0 else 3].append(h_load3(nxt)); nxt += 1; k += 1
        for hk in hooks.get(q, []):
            slots[0].append(hk)
        sched(a, mf, slots)


V_FA = 240
def final_prep(a):
    a.e(f"v_lshlrev_b32 v240, 4, v{V_LANE}")
    a.e(f"v_lshrrev_b32 v3, 3, v0")
    a.e(f"v_mul_u32_u24 v3, 192, v3")
    a.e(f"v_and_b32 v4, 7, v0")
    a.e(f"v_lshl_add_u32 v241, v4, 4, v3")
    a.e(f"v_lshrrev_b32 v4, 4, v{V_LANE}")
    a.e(f"v_and_b32 v5, 1, v4")
    a.e(f"v_lshrrev_b32 v4, 1, v4")
    a.e(f"v_bfe_u32 v6, v{V_LANE}, 2, 2")
    a.e(f"v_lshl_add_u32 v6, v4, 2, v6")
    a.e(f"v_mul_u32_u24 v6, 192, v6")
    a.e(f"v_lshl_add_u32 v6, v5, 5, v6")
    a.e(f"v_and_b32 v5, 3, v{V_LANE}")
    a.e(f"v_lshl_add_u32 v6, v5, 3, v6")
    a.e(f"s_lshr_b32 s{S_T0}, s{S_W}, 1")
    a.e(f"s_mul_i32 s{S_T0}, s{S_T0}, {32*192}")
    a.e(f"s_and_b32 s{S_T1}, s{S_W}, 1")
    a.e(f"s_lshl_b32 s{S_T1}, s{S_T1}, 6")
    a.e(f"s_add_u32 s{S_T0}, s{S_T0}, s{S_T1}")
    a.e(f"s_add_u32 s{S_T0}, s{S_T0}, {L_YB}")
    a.e(f"v_add_u32 v245, s{S_T0}, v6")
    a.e(f"s_mul_i32 s{S_T0}, s{S_W}, {3*4096}")
    a.e(f"s_add_u32 s{S_T0}, s{S_T0}, {L_RED}")
    a.e(f"v_add_u32 v246, s{S_T0}, v240")

def final3(a):
    end = a.label("redend")
    labs = [a.label("redw") for _ in range(4)]
    for w in range(1, 4):
        a.e(f"s_cmp_eq_u32 s{S_W}, {w}")
        a.e(f"s_cbranch_scc1 {labs[w]}")
    for w in range(4):
        a.e(f"{labs[w]}:")
        a.e("s_nop 9")
        for o in range(4):
            if o == w: continue
            slot = (w - o - 1) & 3
            for q in range(4):
                a.e(f"ds_write_b128 v240, {vr(G2_ACC+16*o+4*q,4)} offset:{L_RED + o*3*4096 + slot*4096 + 1024*q}")
        for q in range(8):
            a.e(f"v_pk_mul_f32 {vr(24+2*q,2)}, {vr(G2_ACC+16*w+2*q,2)}, 1.0 op_sel_hi:[1,0]")
        if w < 3:
            a.e(f"s_branch {end}")
    a.e(f"{end}:")
    y_check(a)
    stamp(a, "fy")
    a.e(f"ds_write_b128 v241, v[16:19] offset:{L_YB}")
    a.e(f"ds_write_b128 v241, v[20:23] offset:{L_YB + 32*192}")
    a.vm_wait("fx")
    for q in range(8):
        a.e(f"v_lshlrev_b32 v{112+2*q}, 16, v{8+q}")
        a.e(f"v_and_b32 v{113+2*q}, 0xffff0000, v{8+q}")
    for q in range(8):
        a.e(f"v_pk_add_f32 {vr(24+2*q,2)}, {vr(24+2*q,2)}, {vr(112+2*q,2)}")
    stamp(a, "f0")
    a.e("s_waitcnt lgkmcnt(0)")
    a.e("s_barrier")
    stamp(a, "f2")
    for q in range(4):
        a.e(f"ds_read_b64_tr_b16 {vr(16+2*q,2)}, v245 offset:{1536*q}")
    for sl in range(3):
        for q in range(4):
            a.e(f"ds_read_b128 {vr(64+16*sl+4*q,4)}, v246 offset:{4096*sl + 1024*q}")
    a.e(f"v_lshrrev_b32 v3, 5, v{V_LANE}")
    a.e(f"v_lshl_add_u32 v251, v3, 3, v251")
    a.e("s_waitcnt lgkmcnt(12)")
    for q in range(8):
        a.e(f"v_lshlrev_b32 v{112+2*q}, 16, v{16+q}")
        a.e(f"v_and_b32 v{113+2*q}, 0xffff0000, v{16+q}")
    for q in range(8):
        a.e(f"v_pk_add_f32 {vr(24+2*q,2)}, {vr(24+2*q,2)}, {vr(112+2*q,2)}")
    for sl in range(3):
        a.e(f"s_waitcnt lgkmcnt({8 - 4*sl})")
        for q in range(8):
            a.e(f"v_pk_add_f32 {vr(24+2*q,2)}, {vr(24+2*q,2)}, {vr(64+16*sl+2*q,2)}")
    for q in range(8):
        a.e(f"v_cvt_pk_bf16_f32 v{8+q}, v{24+2*q}, v{25+2*q}")
    a.e("s_nop 1")
    for p in range(2):
        a.e(f"v_permlane32_swap_b32 v{8+4*p}, v{10+4*p}")
        a.e(f"v_permlane32_swap_b32 v{9+4*p}, v{11+4*p}")
    fl = "sc1" if OPT.get("outsc1") else ("nt" if OPT.get("outnt", 1) else "")
    for p in range(2):
        a.vm(f"global_store_dwordx4 v251, {vr(8+4*p,4)}, s[{P_OUT}:{P_OUT+1}] offset:{32*p} {fl}", "out")


def y_clear_addr(a):
    a.e(f"s_and_b32 s{S_T0}, s{S_WG}, 7")
    a.e(f"s_lshr_b32 s{S_T1}, s{S_WG}, 3")
    a.e(f"s_lshl_b32 s{S_T0}, s{S_T0}, 6")
    a.e(f"s_lshl_b32 s{S_T1}, s{S_T1}, 1")
    a.e(f"s_add_u32 s{S_T0}, s{S_T0}, s{S_T1}")
    a.e(f"s_lshl_b32 s{S_T0}, s{S_T0}, 7")
    a.e(f"s_add_u32 s{S_T0}, s{S_T0}, {WS_Y}")
    a.e(f"v_lshrrev_b32 v216, 4, v0")
    a.e(f"v_lshlrev_b32 v216, 16, v216")
    a.e(f"v_and_b32 v217, 15, v0")
    a.e(f"v_lshl_add_u32 v216, v217, 4, v216")
    a.e(f"v_add_u32 v216, s{S_T0}, v216")
    a.e(f"v_add_u32 v217, {16*65536}, v216")
    for q in range(4):
        a.e(f"v_mov_b32 v{220+q}, -1")

def y_clear(a):
    a.vm(f"global_store_dwordx4 v216, v[220:223], s[{P_WS}:{P_WS+1}] sc1", "pubA")
    a.vm(f"global_store_dwordx4 v217, v[220:223], s[{P_WS}:{P_WS+1}] sc1", "pubA")

def y_check(a):
    top, ok = a.label("ychk"), a.label("yok")
    a.vm_wait("fy")
    a.e(f"s_mov_b32 s{S_SPIN}, 0")
    a.e(f"{top}:")
    a.e("v_max3_u32 v4, v16, v17, v18")
    a.e("v_max3_u32 v5, v19, v20, v21")
    a.e("v_max3_u32 v4, v4, v22, v23")
    a.e("v_max_u32 v4, v4, v5")
    a.e("v_cmp_eq_u32 vcc, -1, v4")
    a.e("s_nop 1")
    a.e("s_cmp_eq_u64 vcc, 0")
    a.e(f"s_cbranch_scc1 {ok}")
    a.e(f"s_add_u32 s{S_SPIN}, s{S_SPIN}, 1")
    a.e(f"s_cmp_gt_u32 s{S_SPIN}, {SPIN_MAX}")
    a.e(f"s_cbranch_scc1 {ok}")
    a.e(f"s_sleep {OPT.get('ysleep', 2)}")
    a.e(f"global_load_dwordx4 v[16:19], v252, s[{P_WS}:{P_WS+1}] sc1")
    a.e(f"global_load_dwordx4 v[20:23], v253, s[{P_WS}:{P_WS+1}] sc1")
    a.e("s_waitcnt vmcnt(0)")
    a.e(f"s_branch {top}")
    a.e(f"{ok}:")

def y_loads9(a):
    a.e(f"s_lshl_b32 s{S_T0}, s{S_I}, 1")
    a.e(f"s_add_u32 s{S_T0}, s{S_T0}, s{S_TH}")
    a.e(f"s_lshl_b32 s{S_T0}, s{S_T0}, 16")
    a.e(f"s_lshl_b32 s{S_T1}, s{S_NT}, 13")
    a.e(f"s_add_u32 s{S_T0}, s{S_T0}, s{S_T1}")
    a.e(f"s_add_u32 s{S_T0}, s{S_T0}, {WS_Y}")
    a.e(f"v_lshl_add_u32 v252, v0, 4, s{S_T0}")
    a.e(f"v_add_u32 v253, 4096, v252")
    a.vm(f"global_load_dwordx4 v[16:19], v252, s[{P_WS}:{P_WS+1}] sc1", "fy")
    a.vm(f"global_load_dwordx4 v[20:23], v253, s[{P_WS}:{P_WS+1}] sc1", "fy")

def tlb_touch(a):
    lab = a.label("notlb")
    a.e(f"s_cmp_lg_u32 s{S_W}, {OPT.get('tlbwave', 3)}")
    a.e(f"s_cbranch_scc1 {lab}")
    a.e(f"s_mov_b64 s[{S_EXEC}:{S_EXEC+1}], exec")
    a.e("s_mov_b64 exec, 0xff")
    a.e(f"v_lshlrev_b32 v253, 21, v{V_LANE}")
    a.e(f"global_load_dword v252, v253, s[{P_WS}:{P_WS+1}]")
    a.e("s_mov_b64 exec, 1")
    a.e("v_mov_b32 v253, 0")
    for p in (P_ARE, P_AIM, P_BRE, P_BIM, P_CRE, P_CIM, P_LDT, P_DSK, P_WD, P_OUT):
        a.e(f"global_load_dword v252, v253, s[{p}:{p+1}]")
    a.e(f"s_mov_b64 exec, s[{S_EXEC}:{S_EXEC+1}]")
    a.e(f"{lab}:")

def kgen_loads_late(a):
    kgen_loads(a)

def wd_touch(a):
    a.e(f"s_mul_i32 s{S_T0}, s{S_WG}, 5504")
    a.e(f"v_lshl_add_u32 v2, v0, 4, s{S_T0}")
    mk_srd(a, SRD_WD, P_WD, 1376 * 1024)
    a.vm(f"buffer_load_dwordx4 v[252:255], v2, s[{SRD_WD}:{SRD_WD+3}], 0 offen", "pf")
    a.e(f"v_add_u32 v2, 4096, v2")
    a.e(f"s_mov_b64 s[{S_EXEC}:{S_EXEC+1}], exec")
    a.e(f"v_cmp_gt_u32 vcc, 96, v0")
    a.e(f"s_and_b64 exec, exec, vcc")
    lab = a.label("wt")
    a.e(f"s_cbranch_execz {lab}")
    a.e(f"buffer_load_dwordx4 v[252:255], v2, s[{SRD_WD}:{SRD_WD+3}], 0 offen")
    a.e(f"{lab}:")
    a.e(f"s_mov_b64 exec, s[{S_EXEC}:{S_EXEC+1}]")


def build(a):
    entry(a)
    stamp(a, 0, real=True)
    stamp(a, 1)
    if OPT.get("delay0"):
        a.e(f"s_mov_b32 s{S_T0}, 0")
        a.e("L_delay0:")
        for q in range(16): a.e(f"v_fma_f32 v{200+q}, v{200+q}, v{200+q}, v{200+q}")
        a.e(f"s_add_u32 s{S_T0}, s{S_T0}, 1")
        a.e(f"s_cmp_lt_u32 s{S_T0}, {OPT['delay0']}")
        a.e("s_cbranch_scc1 L_delay0")
    g1_setup_x(a, ptr=False)
    g1_setup_w(a, ptr=False)
    g1_setup_r(a)
    ln_addr(a)
    a.e("s_waitcnt lgkmcnt(0)")
    stamp(a, "ptr")
    mk_srd(a, SRD_X, P_X, 2048 * 1024)
    ln_issue(a)
    epoch_load(a)
    st0 = dma_groups(0, "st0")
    mk_srd(a, SRD_WG, P_WG, 512 * 2752)
    for g in st0[:4]:
        emit_group(a, g)
    mk_srd(a, SRD_WU, P_WU, 512 * 2752)
    stamp(a, "xdma")
    for g in st0[4:]:
        emit_group(a, g)
    stamp(a, "wdma")
    if OPT.get("tlb", 0):
        tlb_touch(a)
    stamp(a, "setup")
    epoch_finish(a)
    stamp(a, "epoch")
    r = Rec(a)
    ln_compute2(r)
    g1_stage_offsets(a)
    off1 = dma_groups(1, "st1")
    upd = Rec(a); g1_stage_offsets(upd)
    off2 = dma_groups(2, "st2")
    off2[0] = [o[1] for o in upd.ops] + off2[0]
    allf = off1 + off2
    nln = OPT.get("nln", 10)
    replay(a, r.ops, allf[:nln], every=OPT.get("lnevery", 14), start=10)
    kgen_loads(a)
    stamp(a, "ln")

    def ln_publish(a):
        flag_store(a, WS_FLAG_LN, idx_ln)
    def ln_poll_issue(a):
        poll_addr(a, "ln", 243)
        poll_issue(a, "ln", 243, "pl")
    def ln_poll_check(a):
        a.vm_wait("pl")
        poll_check(a, "ln", 243)
        epoch_bump(a)
        g1_post_loads8(a)
    PS = OPT.get("pubstage", 2)
    def tr_round(rnd):
        t = wd_tr(rnd)
        return [lambda a, rnd=rnd: a.vm_wait(f"wd{rnd}"), t[:4]] + [t[4+4*k:8+4*k] for k in range(WD_N[rnd])]
    hooks = {
        ("stage_end", 0): [cs_store8],
        ("post_barrier", PS): [ln_publish],
        ("post_barrier", 5): [wd_setup2, kv_addr],
        ("post_barrier", 6): [ln_poll_issue],
        ("extra_dma", 6): wd_groups(1),
    }
    hooks[("fill", 7, OPT.get("chkk", 1))] = [ln_poll_check]
    if OPT.get("wdtouch", 1):
        hooks[("fill", OPT.get("touchstage", 1), 1)] = [wd_touch]
    ks = kgen_shadow()
    nk = 24
    per = (len(ks) + nk - 1) // nk
    ks = [lambda a: a.vm_wait("kp")] + ks
    idx = 0
    done_at = {}
    for stg in range(1, 7):
        for s_ in range(4):
            n = per + (1 if idx == 0 else 0)
            part = ks[idx:idx + n]; idx += n
            hooks[("shadow", stg, s_)] = part if not OPT.get("noshadow") else []
            for x in part:
                if isinstance(x, str) and x.startswith("v_accvgpr_write"):
                    done_at[int(x.split()[1][1:].rstrip(",")) - KS] = (stg, s_)
    assert idx >= len(ks)
    order = sorted(done_at, key=lambda v: done_at[v])
    steps = [(6, 0), (6, 1), (6, 2), (6, 3), (7, 0), (7, 1), (7, 2), (7, 3)]
    perw = (len(order) + len(steps) - 1) // len(steps)
    p = 0
    for stp in steps:
        lst = []
        while p < len(order) and len(lst) < perw and done_at[order[p]] < stp:
            lst.append(f"ds_write_b32 v{V_KWA}, a{KS+order[p]} offset:{order[p]*528}"); p += 1
        if stp == steps[-1]:
            while p < len(order):
                lst.append(f"ds_write_b32 v{V_KWA}, a{KS+order[p]} offset:{order[p]*528}"); p += 1
        hooks[("ldsw",) + stp] = lst
    for nm, stg in (("s0", 0), ("s3", 3), ("s5", 5), ("s6", 6)):
        hooks.setdefault(("post_barrier", stg), []).append(lambda a, nm=nm: stamp(a, nm))
    def xtl(a):
        xt_loads2(a); xt_extra(a)
    def ycl(a):
        y_clear_addr(a); y_clear(a)
    if OPT.get("yclr", 2) == 3:
        hooks.setdefault(("fill", 7, 2), []).append(ycl)
    if OPT.get("yclr", 2) == 4:
        hooks.setdefault(("fill", 5, 3), []).append(ycl)
    if OPT.get("yclr", 2) == 5:
        hooks.setdefault(("fill", 3, 0), []).append(ycl)
    hooks.setdefault(("fill", 7, 2), []).append(xtl)
    hooks[("shadow", 7, 2)] = k_frag_addr()
    hooks[("shadow", 7, 3)] = g1_corr_prep()
    g1_main2(a, hooks, allf[nln:])
    stamp(a, "loop")
    g1_corr_mfma(a)
    stamp(a, "corr")
    r = Rec(a)
    g1_epilogue2(r)
    bar = [["s_waitcnt lgkmcnt(0)", "s_barrier"]]
    ep_fill = ([[ycl]] if OPT.get("yclr", 2) == 2 else []) + wd_groups(2) + bar
    replay(a, r.ops, ep_fill, every=OPT.get("epevery", 20), start=26)
    stamp(a, "epi")
    def pre_b(a):
        a.vm_wait("pubH")
    def post_b(a):
        flag_store(a, WS_FLAG_H, idx_h)
        flag_store(a, WS_FLAG_Y, idx_y)
    t1, t2 = wd_tr(1), wd_tr(2)
    t2 = [x.replace("v245", "v249").replace("v246", "v250") for x in t2]
    rc = Rec(a); conv_addr(rc)
    shadow = u_prep_items() + u_write_items() + [lambda a: a.vm_wait("wd1", "wd2")] + t1[:4] + t2[:4]
    reads = t1[4:] + t2[4:]
    ca = [o[1] for o in rc.ops]
    mix = []
    while reads or ca:
        mix += reads[:2]; reads = reads[2:]
        mix += ca[:2]; ca = ca[2:]
    kgen10(a, shadow + mix, pre_b, post_b)
    stamp(a, "kgen")
    def ypoll(a):
        poll_addr(a, "y", 242)
        a.vm(f"global_load_dword v{V_POLL+1}, v242, s[{P_WS}:{P_WS+1}] sc1", "ph")
    late = {2: [lambda a: (poll_addr(a, "h", 243), poll_issue(a, "h", 243, "ph")), ypoll],
            3: [h_setup3]}
    conv_main3(a, wd_groups(3) + wd_groups(4) + wd_groups(5), late, barrier=False)
    stamp(a, "convm")
    a.vm_wait("ph")
    poll_check_hy(a)
    N0 = OPT.get("g2n0", 6)
    g2_first(a, N0)
    stamp(a, "hflag")
    conv_finish3(a)
    stamp(a, "conv")
    hk = {}
    for q, f in ((OPT.get("g2bar", 6), lambda a: a.e("s_barrier")), (OPT.get("xld", 8), g2_final_loads), (OPT.get("fprep", 10), final_prep),
                 (OPT.get("yld", 16), y_loads9)):
        hk.setdefault(q, []).append(f)
    g2_main3(a, hk, N0, tr_round(3) + tr_round(4) + tr_round(5))
    stamp(a, "g2")
    final3(a)
    stamp(a, "fin")
    if OPT.get("delay1"):
        a.e(f"s_mov_b32 s{S_T0}, 0")
        a.e("L_delay1:")
        for q in range(16): a.e(f"v_fma_f32 v{200+q}, v{200+q}, v{200+q}, v{200+q}")
        a.e(f"s_add_u32 s{S_T0}, s{S_T0}, 1")
        a.e(f"s_cmp_lt_u32 s{S_T0}, {OPT['delay1']}")
        a.e("s_cbranch_scc1 L_delay1")
    a.e("s_waitcnt vmcnt(0)")
    stamp(a, 9, real=True)
    prof_store(a)
    a.e("L_end:")
    a.e("s_endpgm")


def main():
    G.PROF = "prof" in sys.argv
    G.L_CX = 0
    for x in sys.argv[1:]:
        if "=" in x:
            k, v = x.split("=")
            if k == "stamps": G.STAMPS[:] = v.split(",")
            else: OPT[k] = int(v)
    a = Asm()
    build(a)
    nl = OPT.get("nlaunch", 0)
    launch = f"; @launch grid=(256,1,1) block=(256,1,1) lds={LDS_BYTES}" if not nl else "\n".join([f"; @launch kernel={NAME} grid=(256,1,1) block=(256,1,1) lds={LDS_BYTES}"] * nl)
    out = [HDR, launch,
           '.amdgcn_target "amdgcn-amd-amdhsa--gfx950"', '.text', a.text(),
           "  .fill 8448, 4, 0xbf800000", '.section .rodata,"a"', kd(NAME, 256, 240)]
    print('\n'.join(out))

if __name__ == "__main__":
    main()
```

```python
import sys, math
from asmlib import *
import gen as G
from gen import *

NAME = "parallel_sum__ssm_conv_s4__geglu_ffn__prompt_kernel"
S_EP = 34
S_SPIN = 13
WS_DUMMY = 15 << 20
V_POLL = 252
SPIN_MAX = 1 << 17
OPT = {}


class Rec:
    def __init__(self, a):
        self.ops = []
        self.a = a
    def e(self, s):
        for l in s.split('\n'):
            if l.strip():
                self.ops.append(('e', l.strip()))
    def c(self, s): pass
    def vm(self, s, tag): self.ops.append(('vm', s, tag))
    def vm_wait(self, *tags): self.ops.append(('wait', tags))
    def label(self, b): return self.a.label(b)
    def nofill(self, on): self.ops.append(('nofill', on))


def replay(a, ops, fillers, every, start=0):
    fill = list(fillers)
    nof = False
    n = 0
    for o in ops:
        if o[0] == 'nofill':
            nof = o[1]
            continue
        if o[0] == 'e':
            if o[1].startswith("STAMP:"):
                stamp(a, o[1][6:]); continue
            a.e(o[1])
        elif o[0] == 'vm':
            a.vm(o[1], o[2])
        elif o[0] == 'wait':
            a.vm_wait(*o[1])
        n += 1
        if fill and not nof and n >= start and (n - start) % every == 0:
            emit_group(a, fill.pop(0))
    for g in fill:
        emit_group(a, g)


def emit_group(a, g):
    if callable(g):
        g(a); return
    for t in g:
        if isinstance(t, tuple):
            a.vm(t[0], t[1])
        elif callable(t):
            t(a)
        else:
            a.e(t)

def t2_groups(t):
    return [[x] if callable(x) else x for x in t]


def sched(a, mf, slots):
    for i, m in enumerate(mf):
        a.e(m)
        for it in slots.get(i, []):
            if isinstance(it, list):
                emit_group(a, it)
            elif isinstance(it, tuple):
                a.vm(it[0], it[1])
            elif callable(it):
                it(a)
            else:
                a.e(it)


def g1_setup_x(a, ptr=True):
    if ptr: mk_srd(a, SRD_X, P_X, 2048 * 1024)
    a.e(f"s_lshl_b32 s{S_T0}, s{S_I}, 7")
    a.e(f"s_lshl_b32 s{S_T1}, s{S_W}, 5")
    a.e(f"s_add_u32 s{S_T0}, s{S_T0}, s{S_T1}")
    a.e(f"s_lshl_b32 s{S_XW}, s{S_T0}, 10")
    a.e(f"s_lshl_b32 s{S_LX}, s{S_W}, 12")
    rm = OPT.get("rotmode", 0)
    a.e(f"s_add_u32 s{S_KC}, s{S_I}, s{S_J}")
    if rm == 0:
        a.e(f"s_and_b32 s{S_KC}, s{S_KC}, 7")
    elif rm == 1:
        a.e(f"s_mov_b32 s{S_KC}, 0")
    elif rm == 2:
        a.e(f"s_and_b32 s{S_KC}, s{S_KC}, 1")
        a.e(f"s_lshl_b32 s{S_KC}, s{S_KC}, 2")
    elif rm == 3:
        a.e(f"s_and_b32 s{S_KC}, s{S_KC}, 3")
        a.e(f"s_lshl_b32 s{S_KC}, s{S_KC}, 1")
    a.e(f"s_lshr_b32 s{S_CSH}, s{S_I}, 3")
    a.e(f"s_mul_i32 s{S_WW}, s{S_W}, {16 * 2752}")
    a.e(f"s_lshl_b32 s{S_T0}, s{S_U0}, 6")
    a.e(f"s_add_u32 s{S_WW}, s{S_WW}, s{S_T0}")
    a.e(f"s_mul_i32 s{S_LW}, s{S_W}, 3072")
    g1_stage_offsets(a)
    a.e(f"v_lshrrev_b32 v12, 3, v{V_LANE}")
    a.e(f"v_and_b32 v13, 7, v{V_LANE}")
    a.e(f"v_lshrrev_b32 v14, 1, v12")
    a.e(f"v_xor_b32 v15, v14, v13")
    a.e(f"v_lshlrev_b32 v16, 4, v15")
    a.e(f"v_lshl_add_u32 v{V_XOFF}, v12, 10, v16")
    a.e(f"v_xor_b32 v17, 64, v{V_XOFF}")
    a.e(f"v_add_u32 v{V_XOFF+1}, 8192, v17")
    a.e(f"v_add_u32 v{V_XOFF+2}, 16384, v{V_XOFF}")
    a.e(f"v_add_u32 v{V_XOFF+3}, 16384, v{V_XOFF+1}")

def g1_setup_w(a, ptr=True):
    if ptr:
        mk_srd(a, SRD_WG, P_WG, 512 * 2752)
        mk_srd(a, SRD_WU, P_WU, 512 * 2752)
    for q in range(3):
        a.e(f"v_add_u32 v12, {64*q}, v{V_LANE}")
        a.e(f"v_mul_u32_u24 v13, 5462, v12")
        a.e(f"v_lshrrev_b32 v13, 16, v13")
        a.e(f"v_mul_u32_u24 v14, 12, v13")
        a.e(f"v_sub_u32 v14, v12, v14")
        a.e(f"v_mul_u32_u24 v13, 2752, v13")
        a.e(f"v_lshl_add_u32 v{V_WOFF+q}, v14, 4, v13")

def g1_setup_r(a):
    a.e(f"v_and_b32 v12, 31, v{V_LANE}")
    a.e(f"v_lshrrev_b32 v13, 5, v{V_LANE}")
    a.e(f"v_bfe_u32 v14, v12, 1, 3")
    a.e(f"s_lshl_b32 s{S_T0}, s{S_TW}, 13")
    a.e(f"v_lshl_add_u32 v15, v12, 7, s{S_T0}")
    for s_ in range(4):
        a.e(f"v_add_u32 v16, {2*s_}, v13")
        a.e(f"v_xor_b32 v16, v16, v14")
        a.e(f"v_lshl_add_u32 v{V_BADDR+s_}, v16, 4, v15")
    a.e(f"v_lshrrev_b32 v12, 4, v{V_LANE}")
    a.e(f"v_and_b32 v13, 1, v12")
    a.e(f"v_lshrrev_b32 v12, 1, v12")
    a.e(f"v_bfe_u32 v14, v{V_LANE}, 2, 2")
    a.e(f"v_lshl_add_u32 v14, v12, 3, v14")
    a.e(f"v_mul_u32_u24 v14, 192, v14")
    a.e(f"v_and_b32 v15, 3, v{V_LANE}")
    a.e(f"v_lshl_add_u32 v14, v15, 3, v14")
    a.e(f"v_mul_u32_u24 v13, {L_U - L_G}, v13")
    a.e(f"v_add_u32 v14, v14, v13")
    a.e(f"s_mul_i32 s{S_T0}, s{S_FW}, 96")
    a.e(f"s_add_u32 s{S_T0}, s{S_T0}, {L_G}")
    a.e(f"v_add_u32 v{V_AADDR}, s{S_T0}, v14")


class Dma(list):
    def __init__(self, pre, m0, ld, post=()):
        super().__init__(list(pre) + [m0, "s_nop 0", ld] + list(post))
        self.head = list(pre) + [m0]
        self.tail = [ld] + list(post)

def dma_groups(slot, tag):
    return [Dma([], m0, (ld, tag)) for m0, ld in g1_dma_list(slot, tag)]

def place(slots, p, g):
    if isinstance(g, Dma) and p >= 1:
        slots[p - 1].append(g.head)
        slots[p].insert(0, g.tail)
    else:
        slots[p].append(g)


def entry(a):
    a.e(f".globl {NAME}\n.p2align 8\n.type {NAME},@function\n{NAME}:")
    a.e(f"s_cmp_ge_u32 s{S_WG}, 256")
    a.e(f"s_cbranch_scc1 L_end")
    a.e("s_load_dwordx16 s[16:31], s[0:1], 0")
    a.e("s_load_dwordx16 s[32:47], s[0:1], 64")
    if not OPT.get("nopf"):
        a.e("s_getpc_b64 s[74:75]")
        a.e("L_pc:")
        a.e(f"s_lshr_b32 s{S_T1}, s{S_WG}, 3")
        a.e(f"s_and_b32 s{S_T1}, s{S_T1}, 15")
        a.e(f"s_lshl_b32 s{S_T1}, s{S_T1}, 11")
        a.e(f"v_lshl_add_u32 v2, v0, 3, s{S_T1}")
        for q in range(OPT.get("pfn", 1)):
            a.vm(f"global_load_dwordx2 v[4:5], v2, s[74:75] offset:{0}", "pf")
    a.e(f"v_and_b32 v{V_LANE}, 63, v0")
    a.e(f"v_lshrrev_b32 v3, 6, v0")
    a.e(f"s_and_b32 s{S_T0}, s{S_WG}, 7")
    a.e(f"v_readfirstlane_b32 s{S_W}, v3")
    a.e(f"s_lshr_b32 s{S_T1}, s{S_WG}, 3")
    if OPT.get("map84", 0):
        a.e(f"s_lshr_b32 s{S_I}, s{S_T0}, 2")
        a.e(f"s_lshl_b32 s{S_I}, s{S_I}, 3")
        a.e(f"s_lshr_b32 s{S_T2}, s{S_T1}, 2")
        a.e(f"s_add_u32 s{S_I}, s{S_I}, s{S_T2}")
        a.e(f"s_and_b32 s{S_J}, s{S_T0}, 3")
        a.e(f"s_lshl_b32 s{S_J}, s{S_J}, 2")
        a.e(f"s_and_b32 s{S_T2}, s{S_T1}, 3")
        a.e(f"s_add_u32 s{S_J}, s{S_J}, s{S_T2}")
    else:
        a.e(f"s_lshr_b32 s{S_I}, s{S_T0}, 1")
        a.e(f"s_lshl_b32 s{S_I}, s{S_I}, 2")
        a.e(f"s_lshr_b32 s{S_T2}, s{S_T1}, 3")
        a.e(f"s_add_u32 s{S_I}, s{S_I}, s{S_T2}")
        a.e(f"s_and_b32 s{S_J}, s{S_T0}, 1")
        a.e(f"s_lshl_b32 s{S_J}, s{S_J}, 3")
        a.e(f"s_and_b32 s{S_T2}, s{S_T1}, 7")
        a.e(f"s_add_u32 s{S_J}, s{S_J}, s{S_T2}")
    a.e(f"s_lshr_b32 s{S_TW}, s{S_W}, 1")
    a.e(f"s_and_b32 s{S_FW}, s{S_W}, 1")
    a.e(f"s_mul_i32 s{S_U0}, s{S_J}, 3")
    a.e(f"s_lshl_b32 s{S_T2}, s{S_J}, 1")
    a.e(f"s_add_u32 s{S_T2}, s{S_T2}, 11")
    a.e(f"s_min_u32 s{S_U0}, s{S_U0}, s{S_T2}")
    a.e(f"s_cmp_lt_u32 s{S_J}, 11")
    a.e(f"s_cselect_b32 s{S_NU}, 6, 4")
    conv_ids(a)
    if OPT.get("map84", 0):
        a.e(f"s_bfe_u32 s{S_TH}, s{S_J}, 0x10002")
        a.e(f"s_lshr_b32 s{S_NT}, s{S_J}, 3")
        a.e(f"s_lshl_b32 s{S_NT}, s{S_NT}, 2")
        a.e(f"s_and_b32 s{S_T2}, s{S_J}, 3")
        a.e(f"s_add_u32 s{S_NT}, s{S_NT}, s{S_T2}")
    else:
        g2_ids(a)


def epoch_load(a):
    a.e("v_mov_b32 v3, 0")
    a.vm(f"global_load_dword v6, v3, s[{P_WS}:{P_WS+1}] sc1", "ep")


def epoch_finish(a):
    a.vm_wait("ep")
    a.e("s_nop 0")
    a.e(f"v_readfirstlane_b32 s{S_EP}, v6")
    a.e("s_nop 3")
    a.e(f"s_mul_i32 s{S_TAG}, s{S_EP}, 0x9e3779b1")
    a.e(f"s_add_u32 s{S_TAG}, s{S_TAG}, 0x3c6ef373")


def flag_store(a, region, idx_code):
    lab = a.label("nofl")
    a.e(f"s_cmp_lg_u32 s{S_W}, 0")
    a.e(f"s_cbranch_scc1 {lab}")
    idx_code(a)
    a.e(f"s_lshl_b32 s{S_T0}, s{S_T0}, 2")
    a.e(f"s_add_u32 s{S_T0}, s{S_T0}, {region}")
    a.e(f"v_mov_b32 v2, s{S_T0}")
    a.e(f"v_mov_b32 v3, s{S_TAG}")
    a.e(f"s_mov_b64 s[{S_EXEC}:{S_EXEC+1}], exec")
    a.e("s_mov_b64 exec, 1")
    a.e(f"global_store_dword v2, v3, s[{P_WS}:{P_WS+1}] sc1")
    a.e(f"s_mov_b64 exec, s[{S_EXEC}:{S_EXEC+1}]")
    a.e(f"{lab}:")


def idx_ln(a): a.e(f"s_mov_b32 s{S_T0}, s{S_WG}")
def idx_h(a):
    a.e(f"s_lshl_b32 s{S_T0}, s{S_I}, 4")
    a.e(f"s_add_u32 s{S_T0}, s{S_T0}, s{S_J}")
def idx_y(a):
    a.e(f"s_and_b32 s{S_T0}, s{S_WG}, 7")
    a.e(f"s_lshl_b32 s{S_T0}, s{S_T0}, 5")
    a.e(f"s_lshr_b32 s{S_T1}, s{S_WG}, 3")
    a.e(f"s_add_u32 s{S_T0}, s{S_T0}, s{S_T1}")


def poll_addr(a, kind, vreg):
    if kind == "ln":
        a.e(f"v_lshlrev_b32 v{vreg}, 4, v{V_LANE}")
        a.e(f"v_add_u32 v{vreg}, {WS_FLAG_LN}, v{vreg}")
    elif kind == "h":
        a.e(f"s_lshl_b32 s{S_T0}, s{S_I}, 6")
        a.e(f"s_add_u32 s{S_T0}, s{S_T0}, {WS_FLAG_H}")
        a.e(f"v_and_b32 v{vreg}, 15, v{V_LANE}")
        a.e(f"v_lshl_add_u32 v{vreg}, v{vreg}, 2, s{S_T0}")
    elif kind == "y":
        a.e(f"s_lshl_b32 s{S_T0}, s{S_NT}, 7")
        a.e(f"s_add_u32 s{S_T0}, s{S_T0}, {WS_FLAG_Y}")
        a.e(f"v_and_b32 v{vreg}, 31, v{V_LANE}")
        a.e(f"v_lshl_add_u32 v{vreg}, v{vreg}, 2, s{S_T0}")


def poll_issue(a, kind, vreg, tag):
    if kind == "ln":
        a.vm(f"global_load_dwordx4 {vr(V_POLL,4)}, v{vreg}, s[{P_WS}:{P_WS+1}] sc1", tag)
    else:
        a.vm(f"global_load_dword v{V_POLL}, v{vreg}, s[{P_WS}:{P_WS+1}] sc1", tag)


def poll_check(a, kind, vreg):
    top, ok = a.label("poll"), a.label("pollok")
    a.e(f"s_mov_b32 s{S_SPIN}, 0")
    a.e(f"{top}:")
    a.e(f"v_cmp_ne_u32 vcc, s{S_TAG}, v{V_POLL}")
    if kind == "ln":
        for q in range(1, 4):
            a.e(f"v_cmp_ne_u32 s[74:75], s{S_TAG}, v{V_POLL+q}")
            a.e("s_nop 0")
            a.e("s_or_b64 vcc, vcc, s[74:75]")
    a.e("s_nop 1")
    a.e(f"s_cmp_eq_u64 vcc, 0")
    a.e(f"s_cbranch_scc1 {ok}")
    a.e(f"s_add_u32 s{S_SPIN}, s{S_SPIN}, 1")
    a.e(f"s_cmp_gt_u32 s{S_SPIN}, {SPIN_MAX}")
    a.e(f"s_cbranch_scc1 {ok}")
    a.e(f"s_sleep {OPT.get('sleep', 1)}")
    if kind == "ln":
        a.e(f"global_load_dwordx4 {vr(V_POLL,4)}, v{vreg}, s[{P_WS}:{P_WS+1}] sc1")
    else:
        a.e(f"global_load_dword v{V_POLL}, v{vreg}, s[{P_WS}:{P_WS+1}] sc1")
    a.e("s_waitcnt vmcnt(0)")
    a.e(f"s_branch {top}")
    a.e(f"{ok}:")


def poll_check_hy(a):
    top, ok = a.label("poll"), a.label("pollok")
    a.e(f"s_mov_b32 s{S_SPIN}, 0")
    a.e(f"{top}:")
    a.e(f"v_cmp_ne_u32 vcc, s{S_TAG}, v{V_POLL}")
    a.e(f"v_cmp_ne_u32 s[74:75], s{S_TAG}, v{V_POLL+1}")
    a.e("s_nop 1")
    a.e("s_or_b64 vcc, vcc, s[74:75]")
    a.e(f"s_cmp_eq_u64 vcc, 0")
    a.e(f"s_cbranch_scc1 {ok}")
    a.e(f"s_add_u32 s{S_SPIN}, s{S_SPIN}, 1")
    a.e(f"s_cmp_gt_u32 s{S_SPIN}, {SPIN_MAX}")
    a.e(f"s_cbranch_scc1 {ok}")
    a.e(f"s_sleep {OPT.get('sleep', 1)}")
    a.e(f"global_load_dword v{V_POLL}, v243, s[{P_WS}:{P_WS+1}] sc1")
    a.e(f"global_load_dword v{V_POLL+1}, v242, s[{P_WS}:{P_WS+1}] sc1")
    a.e("s_waitcnt vmcnt(0)")
    a.e(f"s_branch {top}")
    a.e(f"{ok}:")


def epoch_bump(a):
    lab = a.label("nobump")
    a.e(f"s_or_b32 s{S_T0}, s{S_WG}, s{S_W}")
    a.e(f"s_cmp_lg_u32 s{S_T0}, 0")
    a.e(f"s_cbranch_scc1 {lab}")
    a.e(f"s_add_u32 s{S_T0}, s{S_EP}, 1")
    a.e("v_mov_b32 v2, 0")
    a.e(f"v_mov_b32 v3, s{S_T0}")
    a.e(f"s_mov_b64 s[{S_EXEC}:{S_EXEC+1}], exec")
    a.e("s_mov_b64 exec, 1")
    a.e(f"global_store_dword v2, v3, s[{P_WS}:{P_WS+1}] sc1")
    a.e(f"s_mov_b64 exec, s[{S_EXEC}:{S_EXEC+1}]")
    a.e(f"{lab}:")


def ln_addr(a):
    a.e(f"s_lshl_b32 s{S_T0}, s{S_I}, 7")
    a.e(f"s_lshl_b32 s{S_T1}, s{S_J}, 3")
    a.e(f"s_add_u32 s{S_T0}, s{S_T0}, s{S_T1}")
    a.e(f"s_lshl_b32 s{S_T1}, s{S_W}, 1")
    a.e(f"s_add_u32 s{S_T0}, s{S_T0}, s{S_T1}")
    a.e(f"s_lshl_b32 s{S_T0}, s{S_T0}, 10")
    a.e(f"v_lshl_add_u32 v7, v{V_LANE}, 4, s{S_T0}")

def ln_issue(a):
    a.vm(f"global_load_dwordx4 v[44:47], v7, s[{P_X}:{P_X+1}]", "ln")
    a.vm(f"global_load_dwordx4 v[48:51], v7, s[{P_X}:{P_X+1}] offset:1024", "ln")


def ln_compute2(a):
    a.vm_wait("ln")
    for r in range(2):
        for d in range(4):
            a.e(f"v_lshlrev_b32 v{16+8*r+2*d}, 16, v{44+4*r+d}")
            a.e(f"v_and_b32 v{17+8*r+2*d}, 0xffff0000, v{44+4*r+d}")
    for r in range(2):
        b = 16 + 8*r
        t = 36 + 4*r
        a.e(f"v_pk_add_f32 {vr(t,2)}, {vr(b,2)}, {vr(b+2,2)}")
        a.e(f"v_pk_mul_f32 {vr(t+2,2)}, {vr(b,2)}, {vr(b,2)}")
    for r in range(2):
        b = 16 + 8*r
        t = 36 + 4*r
        a.e(f"v_pk_add_f32 {vr(t,2)}, {vr(t,2)}, {vr(b+4,2)}")
        a.e(f"v_pk_fma_f32 {vr(t+2,2)}, {vr(b+2,2)}, {vr(b+2,2)}, {vr(t+2,2)}")
    for r in range(2):
        b = 16 + 8*r
        t = 36 + 4*r
        a.e(f"v_pk_add_f32 {vr(t,2)}, {vr(t,2)}, {vr(b+6,2)}")
        a.e(f"v_pk_fma_f32 {vr(t+2,2)}, {vr(b+4,2)}, {vr(b+4,2)}, {vr(t+2,2)}")
    for r in range(2):
        b = 16 + 8*r
        t = 36 + 4*r
        a.e(f"v_pk_fma_f32 {vr(t+2,2)}, {vr(b+6,2)}, {vr(b+6,2)}, {vr(t+2,2)}")
        a.e(f"v_add_f32 v{32+r}, v{t}, v{t+1}")
    for r in range(2):
        t = 36 + 4*r
        a.e(f"v_add_f32 v{34+r}, v{t+2}, v{t+3}")
    a.e("s_nop 0")
    dpp_reduce(a, [32, 33, 34, 35])
    for q in range(4):
        a.e(f"v_readlane_b32 s{74+q if q < 2 else 10+q}, v{32+q}, 63")
    a.e("s_nop 1")
    a.e("v_mov_b32 v32, s74")
    a.e("v_mov_b32 v33, s75")
    a.e("v_mov_b32 v34, s12")
    a.e("v_mov_b32 v35, s13")
    a.e("v_mov_b32 v36, 0x3b000000")
    a.e("v_pk_mul_f32 v[32:33], v[32:33], v[36:37] op_sel_hi:[1,0]")
    a.e("v_pk_mul_f32 v[34:35], v[34:35], v[36:37] op_sel_hi:[1,0]")
    a.e("v_pk_fma_f32 v[34:35], v[32:33], v[32:33], v[34:35] neg_lo:[1,0,0] neg_hi:[1,0,0]")
    a.e("v_max_f32 v34, 0, v34")
    a.e("v_max_f32 v35, 0, v35")
    a.e("v_cvt_pk_bf16_f32 v36, v34, v35")
    a.e("v_cvt_pk_bf16_f32 v37, v32, v33")
    a.e("v_lshlrev_b32 v34, 16, v36")
    a.e("v_and_b32 v35, 0xffff0000, v36")
    a.e("v_lshlrev_b32 v32, 16, v37")
    a.e("v_and_b32 v33, 0xffff0000, v37")
    a.e("v_add_f32 v34, 0x3727c5ac, v34")
    a.e("v_add_f32 v35, 0x3727c5ac, v35")
    a.e("v_cvt_pk_bf16_f32 v36, v34, v35")
    a.e("v_lshlrev_b32 v34, 16, v36")
    a.e("v_and_b32 v35, 0xffff0000, v36")
    a.e("v_sqrt_f32 v34, v34")
    a.e("v_sqrt_f32 v35, v35")
    a.e("s_nop 0")
    a.e("v_cvt_pk_bf16_f32 v36, v34, v35")
    a.e("v_lshlrev_b32 v34, 16, v36")
    a.e("v_and_b32 v35, 0xffff0000, v36")
    a.e("v_rcp_f32 v34, v34")
    a.e("v_rcp_f32 v35, v35")
    for r in range(2):
        b = 16 + 8*r
        sel = "op_sel_hi:[1,0]" if r == 0 else "op_sel:[0,1] op_sel_hi:[1,1]"
        for d in range(4):
            a.e(f"v_pk_add_f32 {vr(b+2*d,2)}, {vr(b+2*d,2)}, v[32:33] {sel} neg_lo:[0,1] neg_hi:[0,1]")
    for r in range(2):
        b = 16 + 8*r
        for d in range(4):
            a.e(f"v_cvt_pk_bf16_f32 v{44+4*r+d}, v{b+2*d}, v{b+2*d+1}")
    for r in range(2):
        b = 16 + 8*r
        for d in range(4):
            a.e(f"v_lshlrev_b32 v{b+2*d}, 16, v{44+4*r+d}")
            a.e(f"v_and_b32 v{b+2*d+1}, 0xffff0000, v{44+4*r+d}")
    for r in range(2):
        b = 16 + 8*r
        sel = "op_sel_hi:[1,0]" if r == 0 else "op_sel:[0,1] op_sel_hi:[1,1]"
        for d in range(4):
            a.e(f"v_pk_mul_f32 {vr(b+2*d,2)}, {vr(b+2*d,2)}, v[34:35] {sel}")
    for r in range(2):
        b = 16 + 8*r
        for d in range(4):
            a.e(f"v_cvt_pk_bf16_f32 v{44+4*r+d}, v{b+2*d}, v{b+2*d+1}")
    a.e(f"s_mul_i32 s{S_T0}, s{S_W}, {2*1088}")
    a.e(f"s_add_u32 s{S_T0}, s{S_T0}, {L_LN}")
    a.e(f"v_lshl_add_u32 v2, v{V_LANE}, 4, s{S_T0}")
    a.e("ds_write_b128 v2, v[44:47]")
    a.e("ds_write_b128 v2, v[48:51] offset:1088")
    a.e("v_mov_b32 v40, v34")
    a.e("v_cvt_pk_bf16_f32 v41, -v32, -v32")
    a.e("v_mov_b32 v42, v35")
    a.e("v_cvt_pk_bf16_f32 v43, -v33, -v33")
    a.e(f"s_lshl_b32 s{S_T0}, s{S_I}, 7")
    a.e(f"s_lshl_b32 s{S_T1}, s{S_J}, 3")
    a.e(f"s_add_u32 s{S_T0}, s{S_T0}, s{S_T1}")
    a.e(f"s_lshl_b32 s{S_T1}, s{S_W}, 1")
    a.e(f"s_add_u32 s{S_T1}, s{S_T0}, s{S_T1}")
    a.e(f"s_lshl_b32 s{S_T1}, s{S_T1}, 3")
    a.e(f"s_add_u32 s{S_T1}, s{S_T1}, {WS_STATS}")
    a.e(f"v_mov_b32 v3, s{S_T1}")
    a.nofill(True)
    a.e(f"s_mov_b64 s[{S_EXEC}:{S_EXEC+1}], exec")
    a.e("s_mov_b64 exec, 1")
    a.vm(f"global_store_dwordx4 v3, v[40:43], s[{P_WS}:{P_WS+1}] sc1", "pubA")
    a.e(f"s_mov_b64 exec, s[{S_EXEC}:{S_EXEC+1}]")
    a.nofill(False)
    a.e(f"v_bfe_u32 v2, v{V_LANE}, 2, 2")
    a.e(f"v_mul_u32_u24 v2, 1088, v2")
    a.e(f"v_lshrrev_b32 v3, 4, v{V_LANE}")
    a.e(f"v_lshl_add_u32 v2, v3, 5, v2")
    a.e(f"v_and_b32 v3, 3, v{V_LANE}")
    a.e(f"v_lshl_add_u32 v2, v3, 3, v2")
    a.e(f"s_lshl_b32 s{S_T1}, s{S_W}, 8")
    a.e(f"s_add_u32 s{S_T1}, s{S_T1}, {L_LN}")
    a.e(f"v_add_u32 v2, s{S_T1}, v2")
    a.e(f"s_lshl_b32 s{S_T0}, s{S_T0}, 10")
    a.e(f"s_lshl_b32 s{S_T1}, s{S_W}, 11")
    a.e(f"s_add_u32 s{S_T0}, s{S_T0}, s{S_T1}")
    a.e(f"s_add_u32 s{S_T0}, s{S_T0}, {WS_XT}")
    a.e(f"v_lshl_add_u32 v3, v{V_LANE}, 4, s{S_T0}")
    a.e("s_waitcnt lgkmcnt(0)")
    a.e("s_barrier")
    for q in range(2):
        a.e(f"ds_read_b64_tr_b16 v[{8+4*q}:{9+4*q}], v2 offset:{128*q}")
        a.e(f"ds_read_b64_tr_b16 v[{10+4*q}:{11+4*q}], v2 offset:{128*q + 4*1088}")
    a.e("s_waitcnt lgkmcnt(0)")
    a.vm(f"global_store_dwordx4 v3, v[8:11], s[{P_WS}:{P_WS+1}] sc1", "pubA")
    a.vm(f"global_store_dwordx4 v3, v[12:15], s[{P_WS}:{P_WS+1}] offset:1024 sc1", "pubA")


def g1_main2(a, hooks, pend0):
    for r in range(4):
        a.e(f"v_mov_b32 v{V_ONES+r}, 0x3f803f80")
    a.vm_wait("st0")
    a.e("s_barrier")
    stamp(a, "st0")
    for x in g1_reads(0, 0):
        a.e(x)
    st = 0
    pend = list(pend0)
    for stage in range(8):
        for s in range(4):
            last = (stage == 7 and s == 3)
            a.e("s_waitcnt lgkmcnt(0)")
            mf = g1_mfmas(st, stage == 0 and s == 0)
            slots = {i: [] for i in range(6)}
            if stage == 0:
                lab = a.label("nocs")
                a.e(f"s_or_b32 s{S_T0}, s{S_TW}, s{S_CSH}")
                a.e(f"s_cmp_lg_u32 s{S_T0}, 0")
                a.e(f"s_cbranch_scc1 {lab}")
                for ap in range(3):
                    c = "0" if s == 0 else vr(V_CSACC + 16 * ap, 16)
                    a.e(f"v_mfma_f32_32x32x16_bf16 {vr(V_CSACC+16*ap,16)}, {vr(V_ONES,4)}, {vr(fA(st,ap),4)}, {c}")
                a.e(f"{lab}:")
            ldsw = hooks.get(("ldsw", stage, s), [])
            if s == 3 and not last:
                assert not pend, (stage, len(pend))
                d = SLOT if (stage + 1) % 3 != 0 else -2 * SLOT
                slots[0] += [f"v_add_u32 v{V_BADDR+q}, {d & 0xffffffff}, v{V_BADDR+q}" for q in range(4)]
                slots[0] += [f"v_add_u32 v{V_AADDR}, {d & 0xffffffff}, v{V_AADDR}"]
                def boundary(a, stage=stage):
                    a.vm_wait(f"st{stage+1}")
                    for hk in hooks.get(("pre_barrier", stage), []):
                        hk(a)
                    a.e("s_barrier")
                slots[1].append(boundary)
                rd = g1_reads(st ^ 1, 0)
                slots[1] += rd[:3]
                slots[2] += rd[3:6]
                slots[3] += rd[6:]
                for hk in hooks.get(("post_barrier", stage), []):
                    slots[4].append(hk)
                if stage + 3 < 8:
                    slots[1].append(g1_stage_offsets)
                    pend = dma_groups(stage % 3, f"st{stage+3}")
                elif ("extra_dma", stage) in hooks:
                    pend = list(hooks[("extra_dma", stage)])
                if pend:
                    place(slots, 3, pend.pop(0))
                    place(slots, 5, pend.pop(0))
            elif last:
                slots[0].append("s_barrier")
                for hk in hooks.get(("ring_free",), []):
                    slots[1].append(hk)
            else:
                rd = g1_reads(st ^ 1, s + 1)
                slots[0] += rd[:3]
                slots[1] += rd[3:6]
                slots[2] += rd[6:]
                n = (len(pend) + (2 - s)) // (3 - s)
                if n <= 5:
                    pos = {0: [], 1: [3], 2: [1, 4], 3: [1, 3, 5], 4: [1, 2, 4, 5], 5: [1, 2, 3, 4, 5]}[n]
                    for q in range(n):
                        place(slots, pos[q], pend.pop(0))
                else:
                    for q in range(n):
                        slots[(q * 6) // n].append(list(pend.pop(0)))
            for k, x in enumerate(ldsw):
                slots[min(5, 1 + (k * 5) // max(1, len(ldsw)))].append(x)
            for k, hk in enumerate(hooks.get(("fill", stage, s), [])):
                slots[min(5, 2 + k)].append(hk)
            sh = hooks.get(("shadow", stage, s), [])
            lo = 3
            for k, x in enumerate(sh):
                slots[lo + (k * (6 - lo)) // len(sh)].append(x)
            sched(a, mf, slots)
            st ^= 1
        for hk in hooks.get(("stage_end", stage), []):
            hk(a)


def cs_store8(a):
    lab = a.label("nocsst")
    a.e(f"s_or_b32 s{S_T0}, s{S_TW}, s{S_CSH}")
    a.e(f"s_cmp_lg_u32 s{S_T0}, 0")
    a.e(f"s_cbranch_scc1 {lab}")
    a.e(f"s_mul_i32 s{S_T0}, s{S_J}, 6")
    a.e(f"s_mul_i32 s{S_T1}, s{S_FW}, 3")
    a.e(f"s_add_u32 s{S_T0}, s{S_T0}, s{S_T1}")
    a.e(f"s_lshl_b32 s{S_T0}, s{S_T0}, 10")
    a.e(f"s_lshl_b32 s{S_T1}, s{S_I}, 2")
    a.e(f"s_add_u32 s{S_T0}, s{S_T0}, s{S_T1}")
    a.e(f"s_add_u32 s{S_T0}, s{S_T0}, {WS_CS}")
    a.e(f"v_lshl_add_u32 v3, v{V_LANE}, 5, s{S_T0}")
    a.e(f"s_mov_b64 s[{S_EXEC}:{S_EXEC+1}], exec")
    a.e("s_mov_b64 exec, 0xffffffff")
    for ap in range(3):
        a.e(f"global_store_dword v3, v{V_CSACC+16*ap}, s[{P_WS}:{P_WS+1}] offset:{1024*ap} sc1")
    a.e(f"s_mov_b64 exec, s[{S_EXEC}:{S_EXEC+1}]")
    a.e(f"{lab}:")

def g1_post_loads8(a):
    a.e(f"s_lshl_b32 s{S_T0}, s{S_I}, 7")
    a.e(f"s_lshl_b32 s{S_T1}, s{S_TW}, 6")
    a.e(f"s_add_u32 s{S_T0}, s{S_T0}, s{S_T1}")
    a.e(f"s_lshl_b32 s{S_T0}, s{S_T0}, 3")
    a.e(f"s_add_u32 s{S_T0}, s{S_T0}, {WS_STATS}")
    a.e(f"v_and_b32 v6, 31, v{V_LANE}")
    a.e(f"v_lshl_add_u32 v7, v6, 3, s{S_T0}")
    a.vm(f"global_load_dwordx2 v[2:3], v7, s[{P_WS}:{P_WS+1}] sc1", "post")
    a.vm(f"global_load_dwordx2 v[4:5], v7, s[{P_WS}:{P_WS+1}] offset:256 sc1", "post")
    a.e(f"s_mul_i32 s{S_T0}, s{S_J}, 6")
    a.e(f"s_mul_i32 s{S_T1}, s{S_FW}, 3")
    a.e(f"s_add_u32 s{S_T0}, s{S_T0}, s{S_T1}")
    a.e(f"s_lshl_b32 s{S_T0}, s{S_T0}, 10")
    a.e(f"s_add_u32 s{S_T0}, s{S_T0}, {WS_CS}")
    a.e(f"v_lshl_add_u32 v7, v6, 5, s{S_T0}")
    a.e(f"v_lshrrev_b32 v8, 5, v{V_LANE}")
    a.e(f"v_lshl_add_u32 v7, v8, 4, v7")
    for ap in range(3):
        a.vm(f"global_load_dwordx4 {vr(16+8*ap,4)}, v7, s[{P_WS}:{P_WS+1}] offset:{1024*ap} sc1", "post")

def g1_corr_prep():
    r = []
    e = r.append
    r.append(lambda a: a.vm_wait("post"))
    for ap in range(3):
        b = 16 + 8 * ap
        e(f"v_add_f32 v{b}, v{b}, v{b+2}")
        e(f"v_add_f32 v{b+1}, v{b+1}, v{b+3}")
    for ap in range(3):
        b = 16 + 8 * ap
        e(f"v_add_f32 v{b}, v{b}, v{b+1}")
    for ap in range(3):
        b = 16 + 8 * ap
        e(f"v_mov_b32 v{b+1}, v{b}")
    e(f"v_cmp_gt_u32 vcc, 32, v{V_LANE}")
    e("v_nop")
    for ap in range(3):
        b = 16 + 8 * ap
        e(f"v_permlane32_swap_b32 v{b}, v{b+1}")
    for ap in range(3):
        b = 16 + 8 * ap
        e(f"v_add_f32 v{b}, v{b}, v{b+1}")
    for ap in range(3):
        b = 16 + 8 * ap
        e(f"v_cvt_pk_bf16_f32 v{b+1}, v{b}, v{b}")
    for ap in range(3):
        b = 16 + 8 * ap
        e(f"v_lshlrev_b32 v{b+2}, 16, v{b+1}")
    for ap in range(3):
        b = 16 + 8 * ap
        e(f"v_sub_f32 v{b+2}, v{b}, v{b+2}")
    for ap in range(3):
        b = 16 + 8 * ap
        e(f"v_cvt_pk_bf16_f32 v{b+4}, v{b}, v{b+2}")
    for ap in range(3):
        b = 16 + 8 * ap
        e(f"v_cndmask_b32 v{b+4}, 0, v{b+4}, vcc")
        e(f"v_mov_b32 v{b+5}, 0")
        e(f"v_mov_b32 v{b+6}, 0")
        e(f"v_mov_b32 v{b+7}, 0")
    for tt in range(2):
        e(f"v_cndmask_b32 v{44+4*tt}, 0, v{3+2*tt}, vcc")
        for d in range(1, 4):
            e(f"v_mov_b32 v{44+4*tt+d}, 0")
    return r

def g1_corr_mfma(a):
    a.e("s_nop 1")
    for ap in range(3):
        for tt in range(2):
            a.e(f"v_mfma_f32_32x32x16_bf16 {vr(acc(tt,ap),16)}, {vr(20+8*ap,4)}, {vr(44+4*tt,4)}, {vr(acc(tt,ap),16)}")

def g1_epilogue2(a):
    a.e(f"v_mov_b32 v52, {fhex(C1)}")
    a.e(f"v_mov_b32 v53, {fhex(C2)}")
    a.e("v_rcp_f32 v54, v2")
    a.e("v_rcp_f32 v56, v4")
    a.e(f"s_lshl_b32 s{S_T0}, s{S_I}, 2")
    a.e(f"s_lshl_b32 s{S_T1}, s{S_TW}, 1")
    a.e(f"s_add_u32 s{S_T0}, s{S_T0}, s{S_T1}")
    a.e(f"s_mul_i32 s{S_T0}, s{S_T0}, 86")
    a.e(f"s_lshl_b32 s{S_T1}, s{S_U0}, 1")
    a.e(f"s_add_u32 s{S_T0}, s{S_T0}, s{S_T1}")
    a.e(f"s_mul_i32 s{S_T1}, s{S_FW}, 3")
    a.e(f"s_add_u32 s{S_T0}, s{S_T0}, s{S_T1}")
    a.e(f"s_lshl_b32 s{S_T0}, s{S_T0}, 10")
    a.e(f"s_add_u32 s{S_T0}, s{S_T0}, {WS_H}")
    a.e(f"v_lshl_add_u32 v58, v{V_LANE}, 4, s{S_T0}")
    a.e(f"v_add_u32 v59, {86*1024}, v58")
    a.e(f"s_sub_u32 s{S_T2}, s{S_NU}, s{S_T1}")
    a.e(f"s_lshl_b32 s{S_T0}, s{S_WG}, 12")
    a.e(f"s_add_u32 s{S_T0}, s{S_T0}, {WS_DUMMY}")
    a.e(f"v_lshl_add_u32 v60, v{V_LANE}, 4, s{S_T0}")
    a.e(f"s_cmp_gt_u32 s{S_T2}, 1")
    a.e(f"s_cselect_b64 s[74:75], -1, 0")
    a.e(f"v_cndmask_b32 v61, v60, v59, s[74:75]")
    a.e(f"v_cndmask_b32 v60, v60, v58, s[74:75]")
    a.e("s_nop 7")
    for ap in range(3):
        for tt in range(2):
            c = acc(tt, ap)
            R = 2 + 2 * tt
            Sg = 54 + 2 * tt
            Gq, T, X = 6, 14, 22
            for p in range(4):
                a.e(f"v_pk_mul_f32 {vr(Gq+2*p,2)}, {vr(c+2*p,2)}, {vr(R,2)} op_sel_hi:[1,0]")
            for p in range(4):
                a.e(f"v_pk_mul_f32 {vr(T+2*p,2)}, {vr(Gq+2*p,2)}, {vr(Gq+2*p,2)}")
            for p in range(4):
                a.e(f"v_pk_fma_f32 {vr(T+2*p,2)}, {vr(T+2*p,2)}, {vr(52,2)}, {vr(52,2)} op_sel:[0,1,0] op_sel_hi:[1,1,0]")
            for p in range(4):
                a.e(f"v_pk_mul_f32 {vr(T+2*p,2)}, {vr(T+2*p,2)}, {vr(Gq+2*p,2)}")
            for p in range(8):
                a.e(f"v_exp_f32 v{T+p}, v{T+p}")
            for p in range(4):
                a.e(f"v_pk_mul_f32 {vr(Gq+2*p,2)}, {vr(Gq+2*p,2)}, {vr(c+8+2*p,2)}")
            for p in range(4):
                a.e(f"v_pk_fma_f32 {vr(T+2*p,2)}, {vr(T+2*p,2)}, {vr(Sg,2)}, {vr(Sg,2)} op_sel_hi:[1,0,0]")
            for p in range(8):
                a.e(f"v_rcp_f32 v{T+p}, v{T+p}")
            a.e("s_nop 0")
            for p in range(4):
                a.e(f"v_pk_mul_f32 {vr(Gq+2*p,2)}, {vr(Gq+2*p,2)}, {vr(T+2*p,2)}")
            O = X + 4 * ((2 * ap + tt) % 2)
            for p in range(4):
                a.e(f"v_cvt_pk_bf16_f32 v{O+p}, v{Gq+2*p}, v{Gq+2*p+1}")
            adr = (58 + tt) if ap == 0 else (60 + tt)
            a.vm(f"global_store_dwordx4 v{adr}, {vr(O,4)}, s[{P_WS}:{P_WS+1}] offset:{1024*ap} sc1", "pubH")


WD_N = {1: 3, 2: 5, 3: 3, 4: 5, 5: 6}
WD_K0 = {1: 0, 2: 3, 3: 8, 4: 11, 5: 16}
WD_L = {1: (0, 3*2048), 2: (SLOT, 5*2048), 3: (0, 3*2048), 4: (SLOT, 5*2048), 5: (2*SLOT, 6*2048)}
V_WDL = 240
S_WDL = 15
S_WDS = 73

def wd_setup2(a):
    mk_srd(a, SRD_WD, P_WD, 1376 * 1024)
    a.e(f"s_mul_i32 s{S_WDO}, s{S_W}, {352 * 1024}")
    a.e(f"s_lshl_b32 s{S_T0}, s{S_NT}, 7")
    a.e(f"s_add_u32 s{S_WDO}, s{S_WDO}, s{S_T0}")
    a.e(f"s_mov_b32 s{S_WDS}, s{S_WDO}")
    a.e(f"v_lshrrev_b32 v6, 3, v{V_LANE}")
    a.e(f"v_and_b32 v7, 7, v{V_LANE}")
    a.e(f"v_bfe_u32 v8, v6, 1, 1")
    a.e(f"v_lshlrev_b32 v8, 2, v8")
    a.e(f"v_xor_b32 v7, v7, v8")
    a.e(f"v_lshlrev_b32 v7, 4, v7")
    a.e(f"v_lshl_add_u32 v{V_WDOFF}, v6, 10, v7")
    a.e(f"v_lshrrev_b32 v6, 4, v{V_LANE}")
    a.e(f"v_and_b32 v7, 1, v6")
    a.e(f"v_lshrrev_b32 v6, 1, v6")
    a.e(f"v_bfe_u32 v8, v{V_LANE}, 2, 2")
    a.e(f"v_lshl_add_u32 v8, v6, 2, v8")
    a.e(f"v_lshlrev_b32 v8, 7, v8")
    a.e(f"v_lshl_add_u32 v8, v7, 5, v8")
    a.e(f"v_and_b32 v7, 3, v{V_LANE}")
    a.e(f"v_lshl_add_u32 v8, v7, 3, v8")
    a.e(f"v_bfe_u32 v7, v{V_LANE}, 3, 1")
    a.e(f"v_lshlrev_b32 v7, 6, v7")
    a.e(f"v_add_u32 v{V_WDL}, v8, v7")
    a.e(f"v_xor_b32 v7, 64, v7")
    a.e(f"v_add_u32 v{V_WDL+1}, v8, v7")

S_KR = 9
S_RHO = 72
S_ROT = 35
def wd_groups(rnd):
    ks0, n = WD_K0[rnd], WD_N[rnd]
    lb, wsz = WD_L[rnd]
    out = []
    for q in range(2 * n):
        pre = [f"s_mul_i32 s{S_WDL}, s{S_W}, {wsz}"] if q == 0 else []
        out.append(Dma(pre, f"s_add_u32 m0, s{S_WDL}, {lb + q*1024}",
                       (f"buffer_load_dwordx4 v{V_WDOFF}, s[{SRD_WD}:{SRD_WD+3}], s{S_WDS} offen lds", f"wd{rnd}"),
                       [f"s_add_u32 s{S_WDS}, s{S_WDS}, 8192"]))
    return out

def wd_tr(rnd):
    ks0, n = WD_K0[rnd], WD_N[rnd]
    lb, wsz = WD_L[rnd]
    out = [f"s_mul_i32 s{S_T0}, s{S_W}, {wsz}", f"s_add_u32 s{S_T0}, s{S_T0}, {lb}",
           f"v_add_u32 v{V_WDA}, s{S_T0}, v{V_WDL}", f"v_add_u32 v{V_WDA+1}, s{S_T0}, v{V_WDL+1}"]
    for k in range(n):
        for t in range(2):
            for h in range(2):
                out.append(f"ds_read_b64_tr_b16 {ar(8*(ks0+k) + 4*t + 2*h, 2)}, v{V_WDA+t} offset:{k*2048 + h*1024}")
    return out


def xt_loads2(a):
    a.e(f"s_and_b32 s{S_T0}, s{S_WG}, 7")
    a.e(f"s_lshr_b32 s{S_T1}, s{S_WG}, 3")
    a.e(f"s_lshl_b32 s{S_T0}, s{S_T0}, 6")
    a.e(f"s_lshl_b32 s{S_T1}, s{S_T1}, 1")
    a.e(f"s_add_u32 s{S_T0}, s{S_T0}, s{S_T1}")
    a.e(f"s_lshl_b32 s{S_T0}, s{S_T0}, 4")
    a.e(f"s_lshl_b32 s{S_T1}, s{S_W}, 19")
    a.e(f"s_add_u32 s{S_T0}, s{S_T0}, s{S_T1}")
    a.e(f"s_add_u32 s{S_T0}, s{S_T0}, {WS_XT}")
    a.e(f"v_lshrrev_b32 v30, 1, v{V_LANE}")
    a.e(f"v_lshlrev_b32 v30, 13, v30")
    a.e(f"v_and_b32 v31, 1, v{V_LANE}")
    a.e(f"v_lshl_add_u32 v30, v31, 4, v30")
    a.e(f"v_add_u32 v30, s{S_T0}, v30")
    a.vm(f"global_load_dwordx4 {vr(V_XT,4)}, v30, s[{P_WS}:{P_WS+1}] sc1", "xt")
    a.e(f"v_add_u32 v30, {32*8192}, v30")
    a.vm(f"global_load_dwordx4 {vr(V_XT+4,4)}, v30, s[{P_WS}:{P_WS+1}] sc1", "xt")

V_UA = 242
def u_write_e(a):
    a.vm_wait("xt")
    a.e(f"v_and_b32 v6, 1, v{V_LANE}")
    a.e(f"v_mul_u32_u24 v6, {UU_CH}, v6")
    a.e(f"v_lshrrev_b32 v7, 1, v{V_LANE}")
    a.e(f"v_lshl_add_u32 v6, v7, 4, v6")
    a.e(f"s_lshl_b32 s{S_T0}, s{S_W}, 10")
    a.e(f"s_add_u32 s{S_T0}, s{S_T0}, {L_UU + 32}")
    a.e(f"v_add_u32 v{V_UA}, s{S_T0}, v6")
    a.e(f"ds_write_b128 v{V_UA}, {vr(V_XT,4)}")
    a.e(f"ds_write_b128 v{V_UA}, {vr(V_XT+4,4)} offset:512")
    lab = a.label("nopad")
    a.e(f"s_cmp_lg_u32 s{S_W}, 0")
    a.e(f"s_cbranch_scc1 {lab}")
    a.e(f"v_lshrrev_b32 v6, 3, v{V_LANE}")
    a.e(f"v_mul_u32_u24 v6, {UU_CH}, v6")
    a.e(f"v_and_b32 v7, 7, v{V_LANE}")
    a.e(f"v_lshl_add_u32 v6, v7, 2, v6")
    a.e(f"v_add_u32 v6, {L_UU}, v6")
    a.e("v_mov_b32 v7, 0")
    a.e(f"s_mov_b64 s[{S_EXEC}:{S_EXEC+1}], exec")
    a.e("s_mov_b64 exec, 0xffff")
    a.e("ds_write_b32 v6, v7")
    a.e("s_mov_b64 exec, 0x7f7f")
    a.e("ds_write_b32 v6, v7 offset:4160")
    a.e(f"s_mov_b64 exec, s[{S_EXEC}:{S_EXEC+1}]")
    a.e(f"{lab}:")

def u_write_o(a):
    a.e(f"ds_read_b32 v6, v{V_UA} offset:16")
    a.e(f"ds_read_b32 v7, v{V_UA} offset:{512+16}")
    for q in range(2):
        X = V_XT + 4*q
        for k in range(3):
            a.e(f"v_alignbit_b32 v{8+4*q+k}, v{X+k+1}, v{X+k}, 16")
    a.e("s_waitcnt lgkmcnt(0)")
    a.e(f"v_alignbit_b32 v11, v6, v{V_XT+3}, 16")
    a.e(f"v_alignbit_b32 v15, v7, v{V_XT+7}, 16")
    a.e(f"ds_write_b128 v{V_UA}, v[8:11] offset:4160")
    a.e(f"ds_write_b128 v{V_UA}, v[12:15] offset:{4160+512}")
    lab = a.label("noo7")
    a.e(f"s_cmp_lg_u32 s{S_W}, 0")
    a.e(f"s_cbranch_scc1 {lab}")
    a.e(f"v_lshlrev_b32 v6, 16, v{V_XT}")
    a.e(f"s_mov_b64 s[{S_EXEC}:{S_EXEC+1}], exec")
    a.e("s_mov_b64 exec, 3")
    a.e(f"ds_write_b32 v{V_UA}, v6 offset:{4160 - 4}")
    a.e(f"s_mov_b64 exec, s[{S_EXEC}:{S_EXEC+1}]")
    a.e(f"{lab}:")


KS = 176
L_KV2 = 2 * SLOT
L_KX2 = L_KV2 + 2 * KV_CH
L_KR2, L_UU2, L_CX2 = 150016, 24576, 2*SLOT + 4*6*2048
V_KWA = 62

def kgen_shadow():
    out = []
    e = out.append
    P = V_P
    AL, BE, CO = 10, 11, 12
    Z1, Z2, Z4, Z8, Z256, Z512 = 14, 16, 18, 20, 22, 24
    A0, A1, B0, B1, C0, C1, CB, D0, D1, DB0, DB1 = 26, 28, 30, 32, 34, 36, 38, 40, 42, 44, 46
    T = 48
    for q in range(8):
        e(f"v_lshlrev_b32 v{P+q}, 16, v{P+q}")
    e(f"v_mul_f32 v58, 0x3fb8aa3b, v{P+6}")
    e("v_exp_f32 v58, v58")
    e(f"v_mov_b32 v{A0}, 1.0")
    e(f"v_cvt_pk_bf16_f32 v58, v58, v58")
    e(f"v_mov_b32 v{A0+1}, 0")
    e(f"v_lshlrev_b32 v58, 16, v58")
    e(f"v_mul_f32 v{AL}, v58, v{P}")
    e(f"v_mul_f32 v{BE}, v58, v{P+1}")
    e(f"v_mul_f32 v56, v58, v{P+2}")
    e(f"v_mul_f32 v57, v58, v{P+3}")
    e(f"v_mul_f32 v{AL}, 0x3fb8aa3b, v{AL}")
    e(f"v_mul_f32 v{BE}, 0.15915494, v{BE}")
    e(f"v_mul_f32 v{CO}, v{P+4}, v56")
    e(f"v_mul_f32 v{CO+1}, v{P+4}, v57")
    e(f"v_fma_f32 v{CO}, -v{P+5}, v57, v{CO}")
    e(f"v_fma_f32 v{CO+1}, v{P+5}, v56, v{CO+1}")
    items = [(Z1, 1, T), (Z8, 8, T+2), (Z256, 256, T+4), (B0, 128, T+6)]
    for d, p, t in items:
        e(f"v_mul_f32 v{t}, {fhex(float(p))}, v{AL}")
        e(f"v_mul_f32 v{t+1}, {fhex(float(p))}, v{BE}")
    for d, p, t in items:
        e(f"v_exp_f32 v{t}, v{t}")
        e(f"v_fract_f32 v{t+1}, v{t+1}")
    for d, p, t in items:
        e(f"v_cos_f32 v{d}, v{t+1}")
        e(f"v_sin_f32 v{d+1}, v{t+1}")
    e("v_nop")
    for d, p, t in items:
        e(f"v_mul_f32 v{d}, v{d}, v{t}")
        e(f"v_mul_f32 v{d+1}, v{d+1}, v{t}")
    def cm(d, x, y):
        return [f"v_mul_f32 v{d}, v{x}, v{y}", f"v_mul_f32 v{d+1}, v{x}, v{y+1}",
                f"v_fma_f32 v{d}, -v{x+1}, v{y+1}, v{d}", f"v_fma_f32 v{d+1}, v{x+1}, v{y}, v{d+1}"]
    pk = [0]
    def put(vec, pr):
        r = 56 + (pk[0] % 2); pk[0] += 1
        return [f"v_cvt_pk_bf16_f32 v{r}, v{pr}, {'-' if vec < 32 else ''}v{pr+1}", f"v_accvgpr_write_b32 a{KS+vec}, v{r}"]
    for d, x, y in ((Z2, Z1, Z1), (Z512, Z256, Z256), (CB, CO, Z256), (Z4, Z2, Z2), (DB0, CO, Z512)):
        out += cm(d, x, y)
    sA = [('p', 32, A0)]
    cur, oth = A0, A1
    for b in range(1, 16):
        sA += [('m', oth, cur, Z8), ('p', 32 + b, oth)]; cur, oth = oth, cur
    sB = [('p', 48, B0)]
    cur, oth = B0, B1
    for b in range(17, 32):
        sB += [('m', oth, cur, Z8), ('p', 32 + b, oth)]; cur, oth = oth, cur
    sC = [('p', 0, CO)]
    cur = CO
    for ee in range(1, 8):
        d = (C0, C1)[ee % 2]; sC += [('m', d, cur, Z1), ('p', ee, d)]; cur = d
    sC += [('p', 8, CB), ('m', C0, CB, Z2), ('p', 9, C0), ('m', C1, C0, Z2), ('p', 10, C1), ('p', 12, C1),
           ('m', C0, C1, Z2), ('p', 13, C0), ('m', C1, C0, Z2), ('p', 14, C1)]
    sD = [('p', 16, DB0), ('m', D0, DB0, Z4), ('p', 17, D0), ('p', 20, D0), ('m', D1, D0, Z4), ('p', 21, D1),
          ('m', DB1, DB0, Z256), ('p', 18, DB1), ('m', D0, DB1, Z4), ('p', 19, D0), ('p', 22, D0), ('m', D1, D0, Z4), ('p', 23, D1)]
    prev, nxt = DB1, DB0
    for q in range(4):
        sD += [('m', nxt, prev, Z256), ('p', 24 + q, nxt), ('m', (D0, D1)[q % 2], nxt, Z8), ('p', 28 + q, (D0, D1)[q % 2])]
        prev, nxt = nxt, prev
    seqs = [sA, sB, sC, sD]
    pos = [0]*4
    while any(pos[q] < len(seqs[q]) for q in range(4)):
        for q in range(4):
            if pos[q] < len(seqs[q]):
                st = seqs[q][pos[q]]; pos[q] += 1
                out += put(st[1], st[2]) if st[0] == 'p' else cm(st[1], st[2], st[3])
    return out

KV_VECS = [v for v in range(64) if v not in (11, 15)]
def kv_addr(a):
    a.e(f"s_mul_i32 s{S_T0}, s{S_CH}, {KV_CH}")
    a.e(f"s_lshl_b32 s{S_T1}, s{S_MH}, 8")
    a.e(f"s_add_u32 s{S_T0}, s{S_T0}, s{S_T1}")
    a.e(f"s_add_u32 s{S_T0}, s{S_T0}, {L_KV2}")
    a.e(f"v_lshl_add_u32 v{V_KWA}, v{V_LANE}, 2, s{S_T0}")
def kv_writes():
    return [[f"ds_write_b32 v{V_KWA}, a{KS+v} offset:{v*528}"] for v in KV_VECS]


def k_frag_addr():
    return [f"v_and_b32 v30, 31, v{V_LANE}", "v_mul_u32_u24 v30, 528, v30", f"v_lshrrev_b32 v31, 5, v{V_LANE}",
            "v_lshl_add_u32 v30, v31, 4, v30", f"s_mul_i32 s{S_T0}, s{S_CH}, {KV_CH}", f"s_add_u32 s{S_T0}, s{S_T0}, {L_KV2}",
            f"v_add_u32 v213, s{S_T0}, v30",
            f"s_mul_i32 s{S_T0}, s{S_CH}, {KR_CH}", f"s_add_u32 s{S_T0}, s{S_T0}, {L_KR2 + 504}",
            f"v_and_b32 v30, 31, v{V_LANE}", "v_lshlrev_b32 v30, 4, v30", "v_lshl_add_u32 v30, v31, 3, v30",
            f"v_sub_u32 v214, s{S_T0}, v30", f"s_add_u32 s{S_T0}, s{S_T0}, {4096 - 504}",
            f"v_lshl_add_u32 v215, v{V_LANE}, 4, s{S_T0}"]

def kgen10(a, shadow, pre_b, post_b):
    KD = 192
    FR = 64
    for k in range(16):
        a.e(f"ds_read_b128 {vr(FR+8*k,4)}, v213 offset:{k*32}")
        a.e(f"ds_read_b128 {vr(FR+8*k+4,4)}, v213 offset:{32*528 + k*32}")
        if k == 3:
            break
    rest = []
    for k in range(4, 16):
        rest.append(f"ds_read_b128 {vr(FR+8*k,4)}, v213 offset:{k*32}")
        rest.append(f"ds_read_b128 {vr(FR+8*k+4,4)}, v213 offset:{32*528 + k*32}")
    mf = [f"v_mfma_f32_32x32x16_bf16 {vr(KD,16)}, {vr(FR+8*k,4)}, {vr(FR+8*k+4,4)}, {'0' if k == 0 else vr(KD,16)}" for k in range(16)]
    slots = {i: [] for i in range(16)}
    a.e("s_waitcnt lgkmcnt(0)")
    for g in range(4):
        slots[g] += rest[6*g:6*g+6]
    slots[3].append("s_waitcnt lgkmcnt(0)")
    for k, x in enumerate(shadow):
        slots[4 + (k * 12) // len(shadow)].append(x)
    sched(a, mf, slots)
    lab1, lab2 = a.label("ex1"), a.label("ex2")
    a.e(f"v_cmp_le_u32 vcc, 32, v{V_LANE}")
    a.e(f"v_and_b32 v7, 1, v{V_LANE}")
    a.e(f"v_cmp_eq_u32 s[{S_TMP}:{S_TMP+1}], 1, v7")
    for q in range(4):
        a.e(f"v_mov_b32 v{12+q}, 0")
    a.e("s_nop 4")
    a.e(f"s_cmp_eq_u32 s{S_MH}, 0")
    a.e(f"s_cbranch_scc0 {lab1}")
    D = KD
    a.e(f"v_cvt_pk_bf16_f32 v8, v{D+3}, v{D+2}")
    a.e(f"v_cvt_pk_bf16_f32 v9, v{D+1}, v{D}")
    a.e(f"v_cvt_pk_bf16_f32 v10, v{D+6}, v{D+5}")
    a.e(f"v_cvt_pk_bf16_f32 v11, v{D+4}, v{D+4}")
    a.e("ds_write_b64 v214, v[8:9] offset:3584")
    a.e("ds_write_b64 v214, v[10:11] offset:3072")
    a.e(f"s_mov_b64 s[{S_EXEC}:{S_EXEC+1}], exec")
    a.e("s_mov_b64 exec, 0x3fffffff")
    a.e("ds_write_b128 v215, v[12:15]")
    a.e(f"s_mov_b64 exec, s[{S_EXEC}:{S_EXEC+1}]")
    a.e(f"s_branch {lab2}")
    a.e(f"{lab1}:")
    D = KD + 8
    for q in range(4):
        a.e(f"v_mov_b32 v{16+2*q}, v{D+4+q}")
        a.e(f"v_mov_b32 v{17+2*q}, v{D+4+q}")
    for q in range(2):
        A_, B_ = D + 2*q, D + 2*q + 1
        a.e(f"v_cndmask_b32 v12, v{A_}, v{B_}, vcc")
        a.e(f"v_cvt_pk_bf16_f32 v{8+2*q+0}, v{B_}, v12")
        a.e(f"v_cvt_pk_bf16_f32 v{8+2*q+1}, v{A_}, v{A_}")
    for q in range(4):
        a.e(f"v_permlane32_swap_b32 v{16+2*q}, v{17+2*q}")
    a.e("ds_write_b64 v214, v[8:9] offset:2560")
    a.e("ds_write_b64 v214, v[10:11] offset:2048")
    for q in range(4):
        a.e(f"v_cndmask_b32 v{16+2*q}, v{16+2*q}, v{D+4+q}, s[{S_TMP}:{S_TMP+1}]")
    for q in range(4):
        a.e(f"v_cvt_pk_bf16_f32 v{24+2*q}, v{D+4+q}, v{D+4+q}")
        a.e(f"v_cvt_pk_bf16_f32 v{25+2*q}, v{D+4+q}, v{16+2*q}")
    for q in range(4):
        a.e(f"ds_write_b64 v214, {vr(24+2*q,2)} offset:{1536 - 512*q}")
    a.e(f"{lab2}:")
    stamp(a, "km0")
    pre_b(a)
    stamp(a, "km1")
    a.e("s_waitcnt lgkmcnt(0)")
    a.e("s_barrier")
    post_b(a)


V_XE = 240 + 3
def xt_extra(a):
    a.e(f"v_and_b32 v31, 1, v{V_LANE}")
    a.e(f"s_add_u32 s{S_T0}, s{S_T0}, {64*8192}")
    a.e(f"v_lshl_add_u32 v31, v31, 4, s{S_T0}")
    a.vm(f"global_load_dword v242, v31, s[{P_WS}:{P_WS+1}] sc1", "xt")

def u_prep_items():
    it = [lambda a: a.vm_wait("xt"),
          f"v_add_u32 v40, 2, v{V_LANE}", "v_and_b32 v40, 63, v40", "v_lshlrev_b32 v40, 2, v40",
          f"ds_bpermute_b32 v41, v40, v{V_XT}", f"ds_bpermute_b32 v42, v40, v{V_XT+4}"]
    for q in range(2):
        X = V_XT + 4*q
        for k in range(3):
            it.append(f"v_alignbit_b32 v{32+4*q+k}, v{X+k+1}, v{X+k}, 16")
    it += [f"v_cmp_gt_u32 vcc, 62, v{V_LANE}", "s_waitcnt lgkmcnt(0)",
           "v_cndmask_b32 v41, v42, v41, vcc", "v_cndmask_b32 v42, v242, v42, vcc",
           f"v_alignbit_b32 v35, v41, v{V_XT+3}, 16", f"v_alignbit_b32 v39, v42, v{V_XT+7}, 16"]
    it += [f"v_and_b32 v43, 1, v{V_LANE}", f"v_mul_u32_u24 v43, {UU_CH}, v43", f"v_lshrrev_b32 v40, 1, v{V_LANE}",
           "v_lshl_add_u32 v43, v40, 4, v43", f"s_lshl_b32 s{S_T0}, s{S_W}, 10", f"s_add_u32 s{S_T0}, s{S_T0}, {L_UU2 + 32}",
           f"v_add_u32 v43, s{S_T0}, v43"]
    return it

def u_write_items():
    it = [f"ds_write_b128 v43, {vr(V_XT,4)}", f"ds_write_b128 v43, {vr(V_XT+4,4)} offset:512",
          "ds_write_b128 v43, v[32:35] offset:4160", f"ds_write_b128 v43, v[36:39] offset:{4160+512}"]
    def pads(a):
        lab = a.label("nopad")
        a.e(f"s_cmp_lg_u32 s{S_W}, 0")
        a.e(f"s_cbranch_scc1 {lab}")
        a.e(f"v_lshlrev_b32 v44, 16, v{V_XT}")
        a.e(f"v_lshrrev_b32 v45, 3, v{V_LANE}")
        a.e(f"v_mul_u32_u24 v45, {UU_CH}, v45")
        a.e(f"v_and_b32 v46, 7, v{V_LANE}")
        a.e(f"v_lshl_add_u32 v45, v46, 2, v45")
        a.e(f"v_add_u32 v45, {L_UU2}, v45")
        a.e("v_mov_b32 v46, 0")
        a.e(f"s_mov_b64 s[{S_EXEC}:{S_EXEC+1}], exec")
        a.e("s_mov_b64 exec, 0xffff")
        a.e("ds_write_b32 v45, v46")
        a.e("s_mov_b64 exec, 0x7f7f")
        a.e("ds_write_b32 v45, v46 offset:4160")
        a.e("s_mov_b64 exec, 3")
        a.e(f"ds_write_b32 v43, v44 offset:{4160 - 4}")
        a.e(f"s_mov_b64 exec, s[{S_EXEC}:{S_EXEC+1}]")
        a.e(f"{lab}:")
    return it + [pads]


def conv_addr(a):
    a.e(f"v_and_b32 v2, 15, v{V_LANE}")
    a.e(f"v_lshrrev_b32 v3, 4, v{V_LANE}")
    a.e(f"v_and_b32 v4, 1, v3")
    a.e(f"v_lshrrev_b32 v3, 1, v3")
    a.e(f"v_lshlrev_b32 v5, 5, v3")
    a.e(f"v_lshlrev_b32 v6, 4, v4")
    a.e(f"v_sub_u32 v5, v5, v6")
    a.e(f"s_lshl_b32 s{S_T2}, s{S_MH}, 6")
    a.e(f"s_mul_i32 s{S_T0}, s{S_CH}, {KR_CH}")
    a.e(f"s_add_u32 s{S_T0}, s{S_T0}, {L_KR2 + 496}")
    a.e(f"s_add_u32 s{S_T0}, s{S_T0}, s{S_T2}")
    a.e(f"v_lshlrev_b32 v6, 5, v2")
    a.e(f"v_sub_u32 v6, v5, v6")
    a.e(f"v_add_u32 v{CVB}, s{S_T0}, v6")
    a.e(f"s_mul_i32 s{S_T0}, s{S_CH}, {UU_CH}")
    a.e(f"s_add_u32 s{S_T0}, s{S_T0}, {L_UU2}")
    a.e(f"s_add_u32 s{S_T0}, s{S_T0}, s{S_T2}")
    a.e(f"v_and_b32 v6, 1, v2")
    a.e(f"v_cmp_eq_u32 vcc, 1, v6")
    a.e(f"v_mov_b32 v6, {4160+16}")
    a.e(f"v_lshl_add_u32 v7, v2, 1, v5")
    a.e(f"v_mov_b32 v3, 18")
    a.e(f"v_cndmask_b32 v6, v6, v3, vcc")
    a.e(f"v_add_u32 v7, v7, v6")
    a.e(f"v_add_u32 v{CVA}, s{S_T0}, v7")
    for al in range(1, 8):
        a.e(f"v_add_u32 v{CVA+al}, {512*al}, v{CVA}")

CVA, CVB = 48, 56

def conv_main3(a, fillers, late, barrier=True):
    if barrier:
        a.e("s_waitcnt lgkmcnt(0)")
        a.e("s_barrier")
    def reads(st, q):
        r = []
        for al in range(8):
            r.append(f"ds_read2_b32 {vr(CV_A[st]+4*al,2)}, v{CVA+al} offset0:{32*q} offset1:{32*q+1}")
            r.append(f"ds_read2_b32 {vr(CV_A[st]+4*al+2,2)}, v{CVA+al} offset0:{32*q+2} offset1:{32*q+3}")
            r.append(f"ds_read_b128 {vr(CV_B[st]+4*al,4)}, v{CVB} offset:{512*(7-al) + 128*q}")
        return r
    r0 = reads(0, 0)
    order = [x for x in r0 if "b128" in x] + [x for x in r0 if "b128" not in x]
    for x in order:
        a.e(x)
    st = 0
    fill = list(fillers)
    for q in range(4):
        a.e("s_waitcnt lgkmcnt(0)" if q else "s_waitcnt lgkmcnt(14)")
        mf = []
        for al in range(8):
            for be in range(8 - al):
                I = al + be
                c = "0" if (q == 0 and al == 0) else vr(CV_ACC + 4*I, 4)
                mf.append(f"v_mfma_f32_16x16x32_bf16 {vr(CV_ACC+4*I,4)}, {vr(CV_A[st]+4*al,4)}, {vr(CV_B[st]+4*be,4)}, {c}")
        slots = {i: [] for i in range(36)}
        if q == 0:
            slots[7].append("s_waitcnt lgkmcnt(0)")
        if q < 3:
            rd = reads(st ^ 1, q + 1)
            rd = [x for x in rd if "b128" in x] + [x for x in rd if "b128" not in x]
            base = 8 if q == 0 else 0
            for k, x in enumerate(rd):
                slots[base + k].append(x)
        nf = (len(fill) + (2 - q)) // (3 - q) if q < 3 else len(fill)
        for k in range(nf):
            place(slots, min(35, 1 + 3*k), fill.pop(0))
        for k, it in enumerate(late.get(q, [])):
            slots[min(35, 2 + 2*k)].append(it)
        stamp(a, f"cv{q}")
        sched(a, mf, slots)
        st ^= 1


def conv_finish3(a):
    a.e(f"s_lshl_b32 s{S_T0}, s{S_W}, 12")
    a.e(f"s_add_u32 s{S_T0}, s{S_T0}, {L_CX2}")
    a.e(f"v_lshl_add_u32 v2, v{V_LANE}, 4, s{S_T0}")
    a.e(f"s_xor_b32 s{S_T1}, s{S_W}, 1")
    a.e(f"s_lshl_b32 s{S_T1}, s{S_T1}, 12")
    a.e(f"s_add_u32 s{S_T1}, s{S_T1}, {L_CX2}")
    a.e(f"v_lshl_add_u32 v3, v{V_LANE}, 4, s{S_T1}")
    a.e(f"s_mul_i32 s{S_T0}, s{S_CH}, {UU_CH}")
    a.e(f"s_add_u32 s{S_T0}, s{S_T0}, {L_UU2 + 32}")
    a.e(f"s_lshl_b32 s{S_T1}, s{S_MH}, 11")
    a.e(f"s_add_u32 s{S_T0}, s{S_T0}, s{S_T1}")
    a.e(f"v_and_b32 v4, 15, v{V_LANE}")
    a.e(f"v_lshrrev_b32 v5, 4, v{V_LANE}")
    a.e(f"v_lshlrev_b32 v6, 5, v4")
    a.e(f"v_lshl_add_u32 v6, v5, 3, v6")
    a.e(f"v_add_u32 v6, s{S_T0}, v6")
    lab1, lab2 = a.label("cx1"), a.label("cx2")
    a.e(f"s_cmp_eq_u32 s{S_MH}, 0")
    a.e(f"s_cbranch_scc1 {lab1}")
    for k in range(4):
        a.e(f"ds_write_b128 v2, {vr(CV_ACC+4*k,4)} offset:{1024*k}")
    for q in range(8):
        a.e(f"v_pk_mul_f32 {vr(CV_ACC+2*q,2)}, {vr(CV_ACC+16+2*q,2)}, 1.0 op_sel_hi:[1,0]")
    a.e(f"s_branch {lab2}")
    a.e(f"{lab1}:")
    for k in range(4):
        a.e(f"ds_write_b128 v2, {vr(CV_ACC+16+4*k,4)} offset:{1024*k}")
    a.e(f"{lab2}:")
    for k in range(4):
        a.e(f"ds_read_b64 {vr(40+2*k,2)}, v6 offset:{512*k}")
    a.e(f"s_lshl_b32 s{S_T0}, s{S_MH}, 20")
    a.e(f"s_lshl_b32 s{S_T1}, s{S_D}, 7")
    a.e(f"s_add_u32 s{S_T0}, s{S_T0}, s{S_T1}")
    a.e(f"s_add_u32 s{S_T0}, s{S_T0}, {WS_Y}")
    a.e(f"v_lshrrev_b32 v7, 2, v4")
    a.e(f"v_lshlrev_b32 v7, 16, v7")
    a.e(f"v_and_b32 v8, 3, v4")
    a.e(f"v_lshl_add_u32 v7, v8, 5, v7")
    a.e(f"v_lshl_add_u32 v7, v5, 3, v7")
    a.e(f"v_add_u32 v7, s{S_T0}, v7")
    a.e("s_waitcnt lgkmcnt(0)")
    a.e("s_barrier")
    for k in range(4):
        a.e(f"ds_read_b128 {vr(64+4*k,4)}, v3 offset:{1024*k}")
    DS = V_P + 6
    U = 16
    for k in range(4):
        a.e(f"v_lshlrev_b32 v{U+4*k}, 16, v{40+2*k}")
        a.e(f"v_and_b32 v{U+4*k+1}, 0xffff0000, v{40+2*k}")
        a.e(f"v_lshlrev_b32 v{U+4*k+2}, 16, v{41+2*k}")
        a.e(f"v_and_b32 v{U+4*k+3}, 0xffff0000, v{41+2*k}")
    for k in range(8):
        a.e(f"v_pk_fma_f32 {vr(CV_ACC+2*k,2)}, {vr(U+2*k,2)}, {vr(DS,2)}, {vr(CV_ACC+2*k,2)} op_sel:[0,1,0] op_sel_hi:[1,1,1]")
    a.e("s_waitcnt lgkmcnt(0)")
    for k in range(8):
        a.e(f"v_pk_add_f32 {vr(CV_ACC+2*k,2)}, {vr(CV_ACC+2*k,2)}, {vr(64+2*k,2)}")
    for k in range(8):
        a.e(f"v_cvt_pk_bf16_f32 v{40+k}, v{CV_ACC+2*k}, v{CV_ACC+2*k+1}")
    for k in range(4):
        a.vm(f"global_store_dwordx2 v7, {vr(40+2*k,2)}, s[{P_WS}:{P_WS+1}] sc1", "pubY")
        if k < 3:
            a.e(f"v_add_u32 v7, {4*65536}, v7")


def h_setup3(a):
    a.e(f"s_lshl_b32 s{S_T0}, s{S_I}, 2")
    a.e(f"s_lshl_b32 s{S_T1}, s{S_TH}, 1")
    a.e(f"s_add_u32 s{S_T0}, s{S_T0}, s{S_T1}")
    a.e(f"s_mul_i32 s{S_T0}, s{S_T0}, 86")
    a.e(f"s_mul_i32 s{S_T1}, s{S_W}, 22")
    a.e(f"s_add_u32 s{S_T0}, s{S_T0}, s{S_T1}")
    a.e(f"s_lshl_b32 s{S_T0}, s{S_T0}, 10")
    a.e(f"s_add_u32 s{S_T0}, s{S_T0}, {WS_H}")
    a.e(f"v_lshl_add_u32 v{V_HA}, v{V_LANE}, 4, s{S_T0}")
    a.e(f"v_add_u32 v{V_HA+1}, {86*1024}, v{V_HA}")
    a.e(f"s_movk_i32 s66, {4*1024}")
    a.e(f"s_movk_i32 s67, {5*1024}")
    a.e(f"s_cmp_eq_u32 s{S_W}, 3")
    a.e(f"s_cselect_b32 s66, {3*1024}, s66")
    a.e(f"s_cselect_b32 s67, {3*1024}, s67")

def h_load3(q):
    R = G2_H + 8 * (q % G2_RING)
    it = []
    if q < 20:
        if q % 4 == 0 and q > 0:
            it += [f"v_add_u32 v{V_HA}, 4096, v{V_HA}", f"v_add_u32 v{V_HA+1}, 4096, v{V_HA+1}"]
        off = (q % 4) * 1024
        it += [(f"global_load_dwordx4 {vr(R,4)}, v{V_HA}, s[{P_WS}:{P_WS+1}] offset:{off} sc1", f"h{q}"),
               (f"global_load_dwordx4 {vr(R+4,4)}, v{V_HA+1}, s[{P_WS}:{P_WS+1}] offset:{off} sc1", f"h{q}")]
    else:
        sreg = 66 + (q - 20)
        it += [f"v_add_u32 v249, s{sreg}, v{V_HA}", f"v_add_u32 v250, s{sreg}, v{V_HA+1}",
               (f"global_load_dwordx4 {vr(R,4)}, v249, s[{P_WS}:{P_WS+1}] sc1", f"h{q}"),
               (f"global_load_dwordx4 {vr(R+4,4)}, v250, s[{P_WS}:{P_WS+1}] sc1", f"h{q}")]
    return it

def g2_first(a, n0):
    for q in range(n0):
        emit_group(a, h_load3(q))

def g2_main3(a, hooks, n0, pre):
    stamp(a, "g2start")
    la = OPT.get("g2la", 12)
    nxt = n0
    for x in pre:
        emit_group(a, x if (isinstance(x, list) or callable(x)) else [x])
    stamp(a, "g2issued")
    for q in range(22):
        a.vm_wait(f"h{q}")
        if q == 0:
            a.e("s_waitcnt lgkmcnt(0)")
        stamp(a, f"g2q{q}")
        R = G2_H + 8 * (q % G2_RING)
        mf = []
        for t in range(2):
            for tt in range(2):
                c = "0" if q == 0 else vr(acc2(t, tt), 16)
                mf.append(f"v_mfma_f32_32x32x16_bf16 {vr(acc2(t,tt),16)}, {ar(8*q+4*t,4)}, {vr(R+4*tt,4)}, {c}")
        slots = {i: [] for i in range(4)}
        k = 0
        while nxt < 22 and nxt - q <= la and k < 2 and nxt < q + G2_RING:
            slots[1 if k == 0 else 3].append(h_load3(nxt)); nxt += 1; k += 1
        for hk in hooks.get(q, []):
            slots[0].append(hk)
        sched(a, mf, slots)


V_FA = 240
def final_prep(a):
    a.e(f"v_lshlrev_b32 v240, 4, v{V_LANE}")
    a.e(f"v_lshrrev_b32 v3, 3, v0")
    a.e(f"v_mul_u32_u24 v3, 192, v3")
    a.e(f"v_and_b32 v4, 7, v0")
    a.e(f"v_lshl_add_u32 v241, v4, 4, v3")
    a.e(f"v_lshrrev_b32 v4, 4, v{V_LANE}")
    a.e(f"v_and_b32 v5, 1, v4")
    a.e(f"v_lshrrev_b32 v4, 1, v4")
    a.e(f"v_bfe_u32 v6, v{V_LANE}, 2, 2")
    a.e(f"v_lshl_add_u32 v6, v4, 2, v6")
    a.e(f"v_mul_u32_u24 v6, 192, v6")
    a.e(f"v_lshl_add_u32 v6, v5, 5, v6")
    a.e(f"v_and_b32 v5, 3, v{V_LANE}")
    a.e(f"v_lshl_add_u32 v6, v5, 3, v6")
    a.e(f"s_lshr_b32 s{S_T0}, s{S_W}, 1")
    a.e(f"s_mul_i32 s{S_T0}, s{S_T0}, {32*192}")
    a.e(f"s_and_b32 s{S_T1}, s{S_W}, 1")
    a.e(f"s_lshl_b32 s{S_T1}, s{S_T1}, 6")
    a.e(f"s_add_u32 s{S_T0}, s{S_T0}, s{S_T1}")
    a.e(f"s_add_u32 s{S_T0}, s{S_T0}, {L_YB}")
    a.e(f"v_add_u32 v245, s{S_T0}, v6")
    a.e(f"s_mul_i32 s{S_T0}, s{S_W}, {3*4096}")
    a.e(f"s_add_u32 s{S_T0}, s{S_T0}, {L_RED}")
    a.e(f"v_add_u32 v246, s{S_T0}, v240")

def final3(a):
    end = a.label("redend")
    labs = [a.label("redw") for _ in range(4)]
    for w in range(1, 4):
        a.e(f"s_cmp_eq_u32 s{S_W}, {w}")
        a.e(f"s_cbranch_scc1 {labs[w]}")
    for w in range(4):
        a.e(f"{labs[w]}:")
        a.e("s_nop 9")
        for o in range(4):
            if o == w: continue
            slot = (w - o - 1) & 3
            for q in range(4):
                a.e(f"ds_write_b128 v240, {vr(G2_ACC+16*o+4*q,4)} offset:{L_RED + o*3*4096 + slot*4096 + 1024*q}")
        for q in range(8):
            a.e(f"v_pk_mul_f32 {vr(24+2*q,2)}, {vr(G2_ACC+16*w+2*q,2)}, 1.0 op_sel_hi:[1,0]")
        if w < 3:
            a.e(f"s_branch {end}")
    a.e(f"{end}:")
    y_check(a)
    stamp(a, "fy")
    a.e(f"ds_write_b128 v241, v[16:19] offset:{L_YB}")
    a.e(f"ds_write_b128 v241, v[20:23] offset:{L_YB + 32*192}")
    a.vm_wait("fx")
    for q in range(8):
        a.e(f"v_lshlrev_b32 v{112+2*q}, 16, v{8+q}")
        a.e(f"v_and_b32 v{113+2*q}, 0xffff0000, v{8+q}")
    for q in range(8):
        a.e(f"v_pk_add_f32 {vr(24+2*q,2)}, {vr(24+2*q,2)}, {vr(112+2*q,2)}")
    stamp(a, "f0")
    a.e("s_waitcnt lgkmcnt(0)")
    a.e("s_barrier")
    stamp(a, "f2")
    for q in range(4):
        a.e(f"ds_read_b64_tr_b16 {vr(16+2*q,2)}, v245 offset:{1536*q}")
    for sl in range(3):
        for q in range(4):
            a.e(f"ds_read_b128 {vr(64+16*sl+4*q,4)}, v246 offset:{4096*sl + 1024*q}")
    a.e(f"v_lshrrev_b32 v3, 5, v{V_LANE}")
    a.e(f"v_lshl_add_u32 v251, v3, 3, v251")
    a.e("s_waitcnt lgkmcnt(12)")
    for q in range(8):
        a.e(f"v_lshlrev_b32 v{112+2*q}, 16, v{16+q}")
        a.e(f"v_and_b32 v{113+2*q}, 0xffff0000, v{16+q}")
    for q in range(8):
        a.e(f"v_pk_add_f32 {vr(24+2*q,2)}, {vr(24+2*q,2)}, {vr(112+2*q,2)}")
    for sl in range(3):
        a.e(f"s_waitcnt lgkmcnt({8 - 4*sl})")
        for q in range(8):
            a.e(f"v_pk_add_f32 {vr(24+2*q,2)}, {vr(24+2*q,2)}, {vr(64+16*sl+2*q,2)}")
    for q in range(8):
        a.e(f"v_cvt_pk_bf16_f32 v{8+q}, v{24+2*q}, v{25+2*q}")
    a.e("s_nop 1")
    for p in range(2):
        a.e(f"v_permlane32_swap_b32 v{8+4*p}, v{10+4*p}")
        a.e(f"v_permlane32_swap_b32 v{9+4*p}, v{11+4*p}")
    fl = "sc1" if OPT.get("outsc1") else ("nt" if OPT.get("outnt", 1) else "")
    for p in range(2):
        a.vm(f"global_store_dwordx4 v251, {vr(8+4*p,4)}, s[{P_OUT}:{P_OUT+1}] offset:{32*p} {fl}", "out")


def y_clear_addr(a):
    a.e(f"s_and_b32 s{S_T0}, s{S_WG}, 7")
    a.e(f"s_lshr_b32 s{S_T1}, s{S_WG}, 3")
    a.e(f"s_lshl_b32 s{S_T0}, s{S_T0}, 6")
    a.e(f"s_lshl_b32 s{S_T1}, s{S_T1}, 1")
    a.e(f"s_add_u32 s{S_T0}, s{S_T0}, s{S_T1}")
    a.e(f"s_lshl_b32 s{S_T0}, s{S_T0}, 7")
    a.e(f"s_add_u32 s{S_T0}, s{S_T0}, {WS_Y}")
    a.e(f"v_lshrrev_b32 v216, 4, v0")
    a.e(f"v_lshlrev_b32 v216, 16, v216")
    a.e(f"v_and_b32 v217, 15, v0")
    a.e(f"v_lshl_add_u32 v216, v217, 4, v216")
    a.e(f"v_add_u32 v216, s{S_T0}, v216")
    a.e(f"v_add_u32 v217, {16*65536}, v216")
    for q in range(4):
        a.e(f"v_mov_b32 v{220+q}, -1")

def y_clear(a):
    a.vm(f"global_store_dwordx4 v216, v[220:223], s[{P_WS}:{P_WS+1}] sc1", "pubA")
    a.vm(f"global_store_dwordx4 v217, v[220:223], s[{P_WS}:{P_WS+1}] sc1", "pubA")

def y_check(a):
    top, ok = a.label("ychk"), a.label("yok")
    a.vm_wait("fy")
    a.e(f"s_mov_b32 s{S_SPIN}, 0")
    a.e(f"{top}:")
    a.e("v_max3_u32 v4, v16, v17, v18")
    a.e("v_max3_u32 v5, v19, v20, v21")
    a.e("v_max3_u32 v4, v4, v22, v23")
    a.e("v_max_u32 v4, v4, v5")
    a.e("v_cmp_eq_u32 vcc, -1, v4")
    a.e("s_nop 1")
    a.e("s_cmp_eq_u64 vcc, 0")
    a.e(f"s_cbranch_scc1 {ok}")
    a.e(f"s_add_u32 s{S_SPIN}, s{S_SPIN}, 1")
    a.e(f"s_cmp_gt_u32 s{S_SPIN}, {SPIN_MAX}")
    a.e(f"s_cbranch_scc1 {ok}")
    a.e(f"s_sleep {OPT.get('ysleep', 2)}")
    a.e(f"global_load_dwordx4 v[16:19], v252, s[{P_WS}:{P_WS+1}] sc1")
    a.e(f"global_load_dwordx4 v[20:23], v253, s[{P_WS}:{P_WS+1}] sc1")
    a.e("s_waitcnt vmcnt(0)")
    a.e(f"s_branch {top}")
    a.e(f"{ok}:")

def y_loads9(a):
    a.e(f"s_lshl_b32 s{S_T0}, s{S_I}, 1")
    a.e(f"s_add_u32 s{S_T0}, s{S_T0}, s{S_TH}")
    a.e(f"s_lshl_b32 s{S_T0}, s{S_T0}, 16")
    a.e(f"s_lshl_b32 s{S_T1}, s{S_NT}, 13")
    a.e(f"s_add_u32 s{S_T0}, s{S_T0}, s{S_T1}")
    a.e(f"s_add_u32 s{S_T0}, s{S_T0}, {WS_Y}")
    a.e(f"v_lshl_add_u32 v252, v0, 4, s{S_T0}")
    a.e(f"v_add_u32 v253, 4096, v252")
    a.vm(f"global_load_dwordx4 v[16:19], v252, s[{P_WS}:{P_WS+1}] sc1", "fy")
    a.vm(f"global_load_dwordx4 v[20:23], v253, s[{P_WS}:{P_WS+1}] sc1", "fy")

def delay(a, key):
    if OPT.get(key):
        lab = a.label("delay")
        a.e(f"s_mov_b32 s{S_T3}, 0")
        a.e(f"{lab}:")
        for q in range(16): a.e(f"v_fma_f32 v{2+q%4}, v{2+q%4}, v{2+q%4}, v{2+q%4}") if False else a.e(f"v_mov_b32 v255, v255")
        a.e(f"s_add_u32 s{S_T3}, s{S_T3}, 1")
        a.e(f"s_cmp_lt_u32 s{S_T3}, {OPT[key]}")
        a.e(f"s_cbranch_scc1 {lab}")

def tlb_touch(a):
    lab = a.label("notlb")
    a.e(f"s_cmp_lg_u32 s{S_W}, {OPT.get('tlbwave', 3)}")
    a.e(f"s_cbranch_scc1 {lab}")
    a.e(f"s_mov_b64 s[{S_EXEC}:{S_EXEC+1}], exec")
    a.e("s_mov_b64 exec, 0xff")
    a.e(f"v_lshlrev_b32 v253, 21, v{V_LANE}")
    a.e(f"global_load_dword v252, v253, s[{P_WS}:{P_WS+1}]")
    a.e("s_mov_b64 exec, 1")
    a.e("v_mov_b32 v253, 0")
    for p in (P_ARE, P_AIM, P_BRE, P_BIM, P_CRE, P_CIM, P_LDT, P_DSK, P_WD, P_OUT):
        a.e(f"global_load_dword v252, v253, s[{p}:{p+1}]")
    a.e(f"s_mov_b64 exec, s[{S_EXEC}:{S_EXEC+1}]")
    a.e(f"{lab}:")

def kgen_loads_late(a):
    kgen_loads(a)

def wd_touch(a):
    a.e(f"s_mul_i32 s{S_T0}, s{S_WG}, 5504")
    a.e(f"v_lshl_add_u32 v2, v0, 4, s{S_T0}")
    mk_srd(a, SRD_WD, P_WD, 1376 * 1024)
    a.vm(f"buffer_load_dwordx4 v[252:255], v2, s[{SRD_WD}:{SRD_WD+3}], 0 offen", "pf")
    a.e(f"v_add_u32 v2, 4096, v2")
    a.e(f"s_mov_b64 s[{S_EXEC}:{S_EXEC+1}], exec")
    a.e(f"v_cmp_gt_u32 vcc, 96, v0")
    a.e(f"s_and_b64 exec, exec, vcc")
    lab = a.label("wt")
    a.e(f"s_cbranch_execz {lab}")
    a.e(f"buffer_load_dwordx4 v[252:255], v2, s[{SRD_WD}:{SRD_WD+3}], 0 offen")
    a.e(f"{lab}:")
    a.e(f"s_mov_b64 exec, s[{S_EXEC}:{S_EXEC+1}]")


def build(a):
    entry(a)
    stamp(a, 0, real=True)
    stamp(a, 1)
    if OPT.get("delay0"):
        a.e(f"s_mov_b32 s{S_T0}, 0")
        a.e("L_delay0:")
        for q in range(16): a.e(f"v_fma_f32 v{200+q}, v{200+q}, v{200+q}, v{200+q}")
        a.e(f"s_add_u32 s{S_T0}, s{S_T0}, 1")
        a.e(f"s_cmp_lt_u32 s{S_T0}, {OPT['delay0']}")
        a.e("s_cbranch_scc1 L_delay0")
    delay(a, "dstart")
    g1_setup_x(a, ptr=False)
    g1_setup_w(a, ptr=False)
    g1_setup_r(a)
    ln_addr(a)
    a.e("s_waitcnt lgkmcnt(0)")
    stamp(a, "ptr")
    mk_srd(a, SRD_X, P_X, 2048 * 1024)
    ln_issue(a)
    epoch_load(a)
    st0 = dma_groups(0, "st0")
    mk_srd(a, SRD_WG, P_WG, 512 * 2752)
    for g in st0[:4]:
        emit_group(a, g)
    mk_srd(a, SRD_WU, P_WU, 512 * 2752)
    stamp(a, "xdma")
    for g in st0[4:]:
        emit_group(a, g)
    stamp(a, "wdma")
    if OPT.get("tlb", 0):
        tlb_touch(a)
    stamp(a, "setup")
    epoch_finish(a)
    stamp(a, "epoch")
    r = Rec(a)
    ln_compute2(r)
    g1_stage_offsets(a)
    off1 = dma_groups(1, "st1")
    upd = Rec(a); g1_stage_offsets(upd)
    off2 = dma_groups(2, "st2")
    off2[0] = [o[1] for o in upd.ops] + off2[0]
    allf = off1 + off2
    nln = OPT.get("nln", 10)
    replay(a, r.ops, allf[:nln], every=OPT.get("lnevery", 14), start=10)
    kgen_loads(a)
    stamp(a, "ln")

    def ln_publish(a):
        flag_store(a, WS_FLAG_LN, idx_ln)
    def ln_poll_issue(a):
        poll_addr(a, "ln", 243)
        poll_issue(a, "ln", 243, "pl")
    def ln_poll_check(a):
        a.vm_wait("pl")
        poll_check(a, "ln", 243)
        epoch_bump(a)
        g1_post_loads8(a)
    PS = OPT.get("pubstage", 2)
    def tr_round(rnd):
        t = wd_tr(rnd)
        return [lambda a, rnd=rnd: a.vm_wait(f"wd{rnd}"), t[:4]] + [t[4+4*k:8+4*k] for k in range(WD_N[rnd])]
    hooks = {
        ("stage_end", 0): [cs_store8],
        ("post_barrier", PS): [ln_publish],
        ("post_barrier", 5): [wd_setup2, kv_addr],
        ("post_barrier", 6): [ln_poll_issue],
        ("extra_dma", 6): wd_groups(1),
    }
    hooks[("fill", 7, OPT.get("chkk", 1))] = [ln_poll_check]
    if OPT.get("wdtouch", 1):
        hooks[("fill", OPT.get("touchstage", 1), 1)] = [wd_touch]
    ks = kgen_shadow()
    s0_, s1_ = OPT.get("shfrom", 1), OPT.get("shto", 6)
    nk = 4 * (s1_ - s0_ + 1)
    per = (len(ks) + nk - 1) // nk
    ks = [lambda a: a.vm_wait("kp")] + ks
    idx = 0
    done_at = {}
    for stg in range(s0_, s1_ + 1):
        for s_ in range(4):
            n = per + (1 if idx == 0 else 0)
            part = ks[idx:idx + n]; idx += n
            hooks[("shadow", stg, s_)] = part if not OPT.get("noshadow") else []
            for x in part:
                if isinstance(x, str) and x.startswith("v_accvgpr_write"):
                    done_at[int(x.split()[1][1:].rstrip(",")) - KS] = (stg, s_)
    assert idx >= len(ks)
    order = sorted(done_at, key=lambda v: done_at[v])
    steps = [(6, 0), (6, 1), (6, 2), (6, 3), (7, 0), (7, 1), (7, 2), (7, 3)]
    perw = (len(order) + len(steps) - 1) // len(steps)
    p = 0
    for stp in steps:
        lst = []
        while p < len(order) and len(lst) < perw and done_at[order[p]] < stp:
            lst.append(f"ds_write_b32 v{V_KWA}, a{KS+order[p]} offset:{order[p]*528}"); p += 1
        if stp == steps[-1]:
            while p < len(order):
                lst.append(f"ds_write_b32 v{V_KWA}, a{KS+order[p]} offset:{order[p]*528}"); p += 1
        hooks[("ldsw",) + stp] = lst
    for nm, stg in (("s0", 0), ("s3", 3), ("s5", 5), ("s6", 6)):
        hooks.setdefault(("post_barrier", stg), []).append(lambda a, nm=nm: stamp(a, nm))
    def xtl(a):
        xt_loads2(a); xt_extra(a)
    def ycl(a):
        y_clear_addr(a); y_clear(a)
    if OPT.get("yclr", 2) == 3:
        hooks.setdefault(("fill", 7, 2), []).append(ycl)
    if OPT.get("yclr", 2) == 4:
        hooks.setdefault(("fill", 5, 3), []).append(ycl)
    if OPT.get("yclr", 2) == 5:
        hooks.setdefault(("fill", 3, 0), []).append(ycl)
    hooks.setdefault(("fill", 7, 2), []).append(xtl)
    hooks[("shadow", 7, 2)] = k_frag_addr()
    hooks[("shadow", 7, 3)] = g1_corr_prep()
    g1_main2(a, hooks, allf[nln:])
    stamp(a, "loop")
    delay(a, "dloop")
    g1_corr_mfma(a)
    stamp(a, "corr")
    r = Rec(a)
    g1_epilogue2(r)
    bar = [["s_waitcnt lgkmcnt(0)", "s_barrier"]]
    ep_fill = ([[ycl]] if OPT.get("yclr", 2) == 2 else []) + wd_groups(2) + bar
    replay(a, r.ops, ep_fill, every=OPT.get("epevery", 20), start=26)
    stamp(a, "epi")
    def pre_b(a):
        a.vm_wait("pubH")
    def post_b(a):
        flag_store(a, WS_FLAG_H, idx_h)
        flag_store(a, WS_FLAG_Y, idx_y)
    t1, t2 = wd_tr(1), wd_tr(2)
    t2 = [x.replace("v245", "v249").replace("v246", "v250") for x in t2]
    rc = Rec(a); conv_addr(rc)
    shadow = u_prep_items() + u_write_items() + [lambda a: a.vm_wait("wd1", "wd2")] + t1[:4] + t2[:4]
    reads = t1[4:] + t2[4:]
    ca = [o[1] for o in rc.ops]
    mix = []
    while reads or ca:
        mix += reads[:2]; reads = reads[2:]
        mix += ca[:2]; ca = ca[2:]
    kgen10(a, shadow + mix, pre_b, post_b)
    stamp(a, "kgen")
    def ypoll(a):
        poll_addr(a, "y", 242)
        a.vm(f"global_load_dword v{V_POLL+1}, v242, s[{P_WS}:{P_WS+1}] sc1", "ph")
    late = {2: [lambda a: (poll_addr(a, "h", 243), poll_issue(a, "h", 243, "ph")), ypoll],
            3: [h_setup3]}
    conv_main3(a, wd_groups(3) + wd_groups(4) + wd_groups(5), late, barrier=False)
    stamp(a, "convm")
    a.vm_wait("ph")
    poll_check_hy(a)
    N0 = OPT.get("g2n0", 6)
    g2_first(a, N0)
    stamp(a, "hflag")
    conv_finish3(a)
    delay(a, "dconv")
    stamp(a, "conv")
    hk = {}
    for q, f in ((OPT.get("g2bar", 6), lambda a: a.e("s_barrier")), (OPT.get("xld", 8), g2_final_loads), (OPT.get("fprep", 10), final_prep),
                 (OPT.get("yld", 16), y_loads9)):
        hk.setdefault(q, []).append(f)
    g2_main3(a, hk, N0, tr_round(3) + tr_round(4) + tr_round(5))
    stamp(a, "g2")
    final3(a)
    delay(a, "dend")
    stamp(a, "fin")
    if OPT.get("delay1"):
        a.e(f"s_mov_b32 s{S_T0}, 0")
        a.e("L_delay1:")
        for q in range(16): a.e(f"v_fma_f32 v{200+q}, v{200+q}, v{200+q}, v{200+q}")
        a.e(f"s_add_u32 s{S_T0}, s{S_T0}, 1")
        a.e(f"s_cmp_lt_u32 s{S_T0}, {OPT['delay1']}")
        a.e("s_cbranch_scc1 L_delay1")
    a.e("s_waitcnt vmcnt(0)")
    stamp(a, 9, real=True)
    prof_store(a)
    a.e("L_end:")
    a.e("s_endpgm")


def main():
    G.PROF = "prof" in sys.argv
    G.L_CX = 0
    for x in sys.argv[1:]:
        if "=" in x:
            k, v = x.split("=")
            if k == "stamps": G.STAMPS[:] = v.split(",")
            else: OPT[k] = int(v)
    a = Asm()
    build(a)
    nl = OPT.get("nlaunch", 0)
    launch = f"; @launch grid=(256,1,1) block=(256,1,1) lds={LDS_BYTES}" if not nl else "\n".join([f"; @launch kernel={NAME} grid=(256,1,1) block=(256,1,1) lds={LDS_BYTES}"] * nl)
    out = [HDR, launch,
           '.amdgcn_target "amdgcn-amd-amdhsa--gfx950"', '.text', a.text(),
           "  .fill 8448, 4, 0xbf800000", '.section .rodata,"a"', kd(NAME, 256, 240)]
    print('\n'.join(out))

if __name__ == "__main__":
    main()
```

```python
import sys, math
from asmlib import *

NAME = "parallel_sum__ssm_conv_s4__geglu_ffn__prompt_kernel"
OPT = {}
PROF = False
STAMPS = []
HDR = open('parallel_sum__ssm_conv_s4__geglu_ffn__prompt.s.ref').read().split('; Override')[0].rstrip()

WS_FLAG_LN, WS_FLAG_H, WS_FLAG_Y = 4096, 8192, 12288
WS_STATS, WS_CS = 65536, 131072
WS_XT, WS_Y, WS_H = 1 << 20, 4 << 20, 8 << 20
WS_DUMMY, WS_PROF = 15 << 20, 16 << 20
SPIN_MAX = 1 << 17

S_WG, S_W, S_I, S_J, S_TW, S_FW, S_U0, S_KC = 2, 3, 4, 5, 6, 7, 8, 9
S_T0, S_T1, S_T2, S_SPIN, S_TAG, S_WDL = 10, 11, 12, 13, 14, 15
P_X, P_ARE, P_AIM, P_BRE, P_BIM, P_CRE, P_CIM, P_LDT = 16, 18, 20, 22, 24, 26, 28, 30
P_DSK, P_BX, P_WG, P_WU, P_WD, P_OUT, P_DBG, P_WS = 32, 34, 36, 38, 40, 42, 44, 46
S_EP, S_ROLE = 34, 35
SRD_X, SRD_WG, SRD_WU, SRD_WD = 48, 52, 56, 60
S_XW, S_WW, S_XO, S_WO, S_LX, S_LW = 64, 65, 66, 67, 68, 69
S_EXEC = 70
S_NU, S_CSH = 72, 73
S_WDS = 73
S_TMP = 74
S_D, S_CH, S_MH, S_TH, S_NT, S_WDO = 76, 77, 78, 79, 80, 81
S_PROF = 82

LDS_BYTES = 163840
SLOT = 41216
L_X, L_G, L_U = 0, 16384, 28704
L_LN = 3 * SLOT
KV_CH, KR_CH, UU_CH = 64 * 528, 4608, 8320
L_KV = 2 * SLOT
L_KR = 150016
L_UU = 24576
L_CX = 131584
WD = {1: (0, 6144, 0, 3), 2: (SLOT, 10240, 3, 5),
      3: (115200, 4096, 8, 2),
      4: (0, 6144, 10, 3), 5: (SLOT, 10240, 13, 5), 6: (2 * SLOT, 8192, 18, 4)}
RED_UNIT = [115200 + 4096 * u for u in range(8)] + [L_UU + 4096 * u for u in range(4)]
L_YB = 150016

V_LANE = 1


def stamp(a, idx, real=False):
    if PROF:
        if isinstance(idx, str):
            if idx not in STAMPS: return
            idx = 2 + STAMPS.index(idx)
        a.e(f"{'s_memrealtime' if real else 's_memtime'} s[{S_PROF+2*idx}:{S_PROF+2*idx+1}]")

def prof_store(a):
    if not PROF: return
    a.e("s_waitcnt lgkmcnt(0)")
    for q in range(10):
        a.e(f"v_mov_b32 v{4+q}, s{S_PROF+2*q}")
    a.e(f"s_lshl_b32 s{S_T0}, s{S_ROLE}, 2")
    a.e(f"s_add_u32 s{S_T0}, s{S_T0}, s{S_W}")
    a.e(f"s_lshl_b32 s{S_T1}, s{S_WG}, 3")
    a.e(f"s_add_u32 s{S_T0}, s{S_T0}, s{S_T1}")
    a.e(f"s_lshl_b32 s{S_T0}, s{S_T0}, 6")
    a.e(f"s_add_u32 s{S_T0}, s{S_T0}, {WS_PROF}")
    a.e(f"v_mov_b32 v2, s{S_T0}")
    a.e("s_mov_b64 exec, 1")
    a.e(f"global_store_dwordx4 v2, v[4:7], s[{P_WS}:{P_WS+1}]")
    a.e(f"global_store_dwordx4 v2, v[8:11], s[{P_WS}:{P_WS+1}] offset:16")
    a.e(f"global_store_dwordx2 v2, v[12:13], s[{P_WS}:{P_WS+1}] offset:32")


class A2(Asm):
    def __init__(self, shared):
        super().__init__()
        self.bars = []
        self.shared = shared
    def label(self, base):
        self.shared[0] += 1
        return f"L_{base}_{self.shared[0]}"
    def bar(self, name):
        self.e("s_barrier")
        self.bars.append(name)


class Rec:
    def __init__(self, a):
        self.ops = []; self.a = a
    def e(self, s):
        for l in s.split('\n'):
            if l.strip(): self.ops.append(('e', l.strip()))
    def vm(self, s, tag): self.ops.append(('vm', s, tag))
    def vm_wait(self, *tags): self.ops.append(('wait', tags))
    def label(self, b): return self.a.label(b)
    def bar(self, name): self.ops.append(('bar', name))

def replay(a, ops, fillers, every, start=0):
    fill = list(fillers); n = 0
    for o in ops:
        if o[0] == 'e': a.e(o[1])
        elif o[0] == 'vm': a.vm(o[1], o[2])
        elif o[0] == 'wait': a.vm_wait(*o[1])
        elif o[0] == 'bar': a.bar(o[1])
        n += 1
        if fill and n >= start and (n - start) % every == 0:
            emit(a, fill.pop(0))
    for g in fill: emit(a, g)

def emit(a, g):
    if callable(g): g(a)
    elif isinstance(g, tuple): a.vm(g[0], g[1])
    elif isinstance(g, list):
        for t in g: emit(a, t)
    else: a.e(g)

class Dma(list):
    def __init__(self, pre, m0, ld, post=()):
        super().__init__(list(pre) + [m0, "s_nop 0", ld] + list(post))
        self.head = list(pre) + [m0]
        self.tail = [ld] + list(post)

def place(slots, p, g):
    if isinstance(g, Dma) and p >= 1:
        slots[p - 1].append(g.head); slots[p].insert(0, g.tail)
    else:
        slots[p].append(g)

def sched(a, mf, slots):
    for i, m in enumerate(mf):
        a.e(m)
        for it in slots.get(i, []): emit(a, it)

def mk_srd(a, srd, ptr, nbytes):
    a.e(f"s_mov_b32 s{srd}, s{ptr}")
    a.e(f"s_and_b32 s{srd+1}, s{ptr+1}, 0xffff")
    a.e(f"s_mov_b32 s{srd+2}, {nbytes}")
    a.e(f"s_mov_b32 s{srd+3}, 0x20000")

def dpp_reduce(a, regs):
    steps = ["quad_perm:[1,0,3,2] row_mask:0xf bank_mask:0xf", "quad_perm:[2,3,0,1] row_mask:0xf bank_mask:0xf",
             "row_half_mirror row_mask:0xf bank_mask:0xf", "row_mirror row_mask:0xf bank_mask:0xf",
             "row_bcast:15 row_mask:0xa bank_mask:0xf", "row_bcast:31 row_mask:0xc bank_mask:0xf"]
    assert len(regs) >= 3
    for st in steps:
        for r in regs:
            a.e(f"v_add_f32_dpp v{r}, v{r}, v{r} {st}")
    a.e("s_nop 1")


def entry(a):
    a.e(f".globl {NAME}\n.p2align 8\n.type {NAME},@function\n{NAME}:")
    a.e(f"s_cmp_ge_u32 s{S_WG}, 256")
    a.e(f"s_cbranch_scc1 L_end")
    a.e("s_load_dwordx16 s[16:31], s[0:1], 0")
    a.e("s_load_dwordx16 s[32:47], s[0:1], 64")
    a.e("s_getpc_b64 s[74:75]")
    a.e(f"s_lshr_b32 s{S_T1}, s{S_WG}, 3")
    a.e(f"s_and_b32 s{S_T2}, s{S_T1}, 15")
    a.e(f"s_lshl_b32 s{S_T2}, s{S_T2}, 11")
    a.e(f"v_lshl_add_u32 v2, v0, 2, s{S_T2}")
    a.vm(f"global_load_dword v175, v2, s[74:75]", "pf")
    a.e(f"v_and_b32 v{V_LANE}, 63, v0")
    a.e(f"v_lshrrev_b32 v3, 6, v0")
    a.e(f"s_and_b32 s{S_T0}, s{S_WG}, 7")
    a.e(f"v_readfirstlane_b32 s{S_W}, v3")
    a.e(f"s_lshr_b32 s{S_I}, s{S_T0}, 1")
    a.e(f"s_lshl_b32 s{S_I}, s{S_I}, 2")
    a.e(f"s_lshr_b32 s{S_T2}, s{S_T1}, 3")
    a.e(f"s_add_u32 s{S_I}, s{S_I}, s{S_T2}")
    a.e(f"s_and_b32 s{S_J}, s{S_T0}, 1")
    a.e(f"s_lshl_b32 s{S_J}, s{S_J}, 3")
    a.e(f"s_and_b32 s{S_T2}, s{S_T1}, 7")
    a.e(f"s_add_u32 s{S_J}, s{S_J}, s{S_T2}")
    a.e(f"s_lshr_b32 s{S_TMP}, s{S_W}, 2")
    a.e(f"s_and_b32 s{S_W}, s{S_W}, 3")
    a.e(f"s_lshr_b32 s{S_TW}, s{S_W}, 1")
    a.e(f"s_and_b32 s{S_FW}, s{S_W}, 1")
    a.e(f"s_mul_i32 s{S_U0}, s{S_J}, 3")
    a.e(f"s_lshl_b32 s{S_T2}, s{S_J}, 1")
    a.e(f"s_add_u32 s{S_T2}, s{S_T2}, 11")
    a.e(f"s_min_u32 s{S_U0}, s{S_U0}, s{S_T2}")
    a.e(f"s_cmp_lt_u32 s{S_J}, 11")
    a.e(f"s_cselect_b32 s{S_NU}, 6, 4")
    a.e(f"s_lshr_b32 s{S_CSH}, s{S_I}, 3")
    a.e(f"s_lshl_b32 s{S_D}, s{S_T0}, 6")
    a.e(f"s_lshl_b32 s{S_T1}, s{S_T1}, 1")
    a.e(f"s_add_u32 s{S_D}, s{S_D}, s{S_T1}")
    a.e(f"s_add_u32 s{S_D}, s{S_D}, s{S_TW}")
    a.e(f"s_mov_b32 s{S_CH}, s{S_TW}")
    a.e(f"s_mov_b32 s{S_MH}, s{S_FW}")
    a.e(f"s_lshr_b32 s{S_TH}, s{S_J}, 3")
    a.e(f"s_and_b32 s{S_NT}, s{S_J}, 7")
    a.e(f"s_cmp_lg_u32 s{S_TMP}, 0")
    a.e(f"s_cbranch_scc1 L_role_c")

def epoch_load(a, vtmp, vdst):
    a.e(f"v_mov_b32 v{vtmp}, 0")
    a.vm(f"global_load_dword v{vdst}, v{vtmp}, s[{P_WS}:{P_WS+1}] sc1", "ep")

def epoch_finish(a, vdst):
    a.vm_wait("ep")
    a.e("s_nop 0")
    a.e(f"v_readfirstlane_b32 s{S_EP}, v{vdst}")
    a.e("s_nop 3")
    a.e(f"s_mul_i32 s{S_TAG}, s{S_EP}, 0x9e3779b1")
    a.e(f"s_add_u32 s{S_TAG}, s{S_TAG}, 0x3c6ef373")

def flag_store(a, region, idx_code, va, vb):
    lab = a.label("nofl")
    a.e(f"s_cmp_lg_u32 s{S_W}, 0")
    a.e(f"s_cbranch_scc1 {lab}")
    idx_code(a)
    a.e(f"s_lshl_b32 s{S_T0}, s{S_T0}, 2")
    a.e(f"s_add_u32 s{S_T0}, s{S_T0}, {region}")
    a.e(f"v_mov_b32 v{va}, s{S_T0}")
    a.e(f"v_mov_b32 v{vb}, s{S_TAG}")
    a.e(f"s_mov_b64 s[{S_EXEC}:{S_EXEC+1}], exec")
    a.e("s_mov_b64 exec, 1")
    a.e(f"global_store_dword v{va}, v{vb}, s[{P_WS}:{P_WS+1}] sc1")
    a.e(f"s_mov_b64 exec, s[{S_EXEC}:{S_EXEC+1}]")
    a.e(f"{lab}:")

def idx_ln(a): a.e(f"s_mov_b32 s{S_T0}, s{S_WG}")
def idx_h(a):
    a.e(f"s_lshl_b32 s{S_T0}, s{S_I}, 4")
    a.e(f"s_add_u32 s{S_T0}, s{S_T0}, s{S_J}")
def idx_y(a):
    a.e(f"s_and_b32 s{S_T0}, s{S_WG}, 7")
    a.e(f"s_lshl_b32 s{S_T0}, s{S_T0}, 5")
    a.e(f"s_lshr_b32 s{S_T1}, s{S_WG}, 3")
    a.e(f"s_add_u32 s{S_T0}, s{S_T0}, s{S_T1}")

def spin_tail(a, top, ok, reloads):
    a.e(f"s_cmp_eq_u64 vcc, 0")
    a.e(f"s_cbranch_scc1 {ok}")
    a.e(f"s_add_u32 s{S_SPIN}, s{S_SPIN}, 1")
    a.e(f"s_cmp_gt_u32 s{S_SPIN}, {SPIN_MAX}")
    a.e(f"s_cbranch_scc1 {ok}")
    a.e(f"s_sleep {OPT.get('sleep', 8)}")
    for r in reloads: a.e(r)
    a.e("s_waitcnt vmcnt(0)")
    a.e(f"s_branch {top}")
    a.e(f"{ok}:")

def ln_poll_issue(a, vaddr, vdst):
    a.e(f"v_lshlrev_b32 v{vaddr}, 4, v{V_LANE}")
    a.e(f"v_add_u32 v{vaddr}, {WS_FLAG_LN}, v{vaddr}")
    a.vm(f"global_load_dwordx4 {vr(vdst,4)}, v{vaddr}, s[{P_WS}:{P_WS+1}] sc1", "pl")

def ln_poll_check(a, vaddr, vdst):
    top, ok = a.label("poll"), a.label("pollok")
    a.vm_wait("pl")
    a.e(f"s_mov_b32 s{S_SPIN}, 0")
    a.e(f"{top}:")
    a.e(f"v_cmp_ne_u32 vcc, s{S_TAG}, v{vdst}")
    for q in range(1, 4):
        a.e(f"v_cmp_ne_u32 s[74:75], s{S_TAG}, v{vdst+q}")
        a.e("s_nop 0")
        a.e("s_or_b64 vcc, vcc, s[74:75]")
    a.e("s_nop 1")
    spin_tail(a, top, ok, [f"global_load_dwordx4 {vr(vdst,4)}, v{vaddr}, s[{P_WS}:{P_WS+1}] sc1"])


G_ACC = 16
def acc(tt, ap): return G_ACC + 16 * (3 * tt + ap)
G_FR = [112, 132]
def fB(st, tt): return G_FR[st] + 4 * tt
def fA(st, ap): return G_FR[st] + 8 + 4 * ap
G_BADDR, G_AADDR = 160, 164

def a_read_addr(a, dst, t0):
    a.e(f"v_lshrrev_b32 v{t0}, 4, v{V_LANE}")
    a.e(f"v_and_b32 v{t0+1}, 1, v{t0}")
    a.e(f"v_lshrrev_b32 v{t0}, 1, v{t0}")
    a.e(f"v_bfe_u32 v{t0+2}, v{V_LANE}, 2, 2")
    a.e(f"v_lshl_add_u32 v{t0+2}, v{t0}, 3, v{t0+2}")
    a.e(f"v_mul_u32_u24 v{t0+2}, 192, v{t0+2}")
    a.e(f"v_and_b32 v{t0+3}, 3, v{V_LANE}")
    a.e(f"v_lshl_add_u32 v{t0+2}, v{t0+3}, 3, v{t0+2}")
    a.e(f"v_mul_u32_u24 v{t0+1}, {L_U - L_G}, v{t0+1}")
    a.e(f"v_add_u32 v{t0+2}, v{t0+2}, v{t0+1}")
    a.e(f"s_mul_i32 s{S_T0}, s{S_FW}, 96")
    a.e(f"s_add_u32 s{S_T0}, s{S_T0}, {L_G}")
    a.e(f"v_add_u32 v{dst}, s{S_T0}, v{t0+2}")

def g_setup(a):
    a.e(f"v_and_b32 v12, 31, v{V_LANE}")
    a.e(f"v_lshrrev_b32 v13, 5, v{V_LANE}")
    a.e(f"v_bfe_u32 v14, v12, 1, 3")
    a.e(f"s_lshl_b32 s{S_T0}, s{S_TW}, 13")
    a.e(f"v_lshl_add_u32 v15, v12, 7, s{S_T0}")
    for s_ in range(4):
        a.e(f"v_add_u32 v11, {2*s_}, v13")
        a.e(f"v_xor_b32 v11, v11, v14")
        a.e(f"v_lshl_add_u32 v{G_BADDR+s_}, v11, 4, v15")
    a_read_addr(a, G_AADDR, 12)
    a.e(f"s_lshl_b32 s{S_T0}, s{S_I}, 7")
    a.e(f"s_lshl_b32 s{S_T1}, s{S_J}, 3")
    a.e(f"s_add_u32 s{S_T0}, s{S_T0}, s{S_T1}")
    a.e(f"s_lshl_b32 s{S_T1}, s{S_W}, 1")
    a.e(f"s_add_u32 s{S_T0}, s{S_T0}, s{S_T1}")
    a.e(f"s_lshl_b32 s{S_T0}, s{S_T0}, 10")
    a.e(f"v_lshl_add_u32 v7, v{V_LANE}, 4, s{S_T0}")

def ln_first(a):
    a.vm_wait("ln")
    for r in range(2):
        for d in range(4):
            a.e(f"v_lshlrev_b32 v{16+8*r+2*d}, 16, v{44+4*r+d}")
            a.e(f"v_and_b32 v{17+8*r+2*d}, 0xffff0000, v{44+4*r+d}")
    for r in range(2):
        b, t = 16 + 8*r, 36 + 4*r
        a.e(f"v_pk_add_f32 {vr(t,2)}, {vr(b,2)}, {vr(b+2,2)}")
        a.e(f"v_pk_mul_f32 {vr(t+2,2)}, {vr(b,2)}, {vr(b,2)}")
    for r in range(2):
        b, t = 16 + 8*r, 36 + 4*r
        a.e(f"v_pk_add_f32 {vr(t,2)}, {vr(t,2)}, {vr(b+4,2)}")
        a.e(f"v_pk_fma_f32 {vr(t+2,2)}, {vr(b+2,2)}, {vr(b+2,2)}, {vr(t+2,2)}")
    for r in range(2):
        b, t = 16 + 8*r, 36 + 4*r
        a.e(f"v_pk_add_f32 {vr(t,2)}, {vr(t,2)}, {vr(b+6,2)}")
        a.e(f"v_pk_fma_f32 {vr(t+2,2)}, {vr(b+4,2)}, {vr(b+4,2)}, {vr(t+2,2)}")
    for r in range(2):
        b, t = 16 + 8*r, 36 + 4*r
        a.e(f"v_pk_fma_f32 {vr(t+2,2)}, {vr(b+6,2)}, {vr(b+6,2)}, {vr(t+2,2)}")
        a.e(f"v_add_f32 v{32+r}, v{t}, v{t+1}")
    for r in range(2):
        t = 36 + 4*r
        a.e(f"v_add_f32 v{34+r}, v{t+2}, v{t+3}")
    a.e("s_nop 0")
    dpp_reduce(a, [32, 33, 34, 35])
    for q, sr_ in enumerate((74, 75, 12, 13)):
        a.e(f"v_readlane_b32 s{sr_}, v{32+q}, 63")
    a.e("s_nop 1")
    for q, sr_ in enumerate((74, 75, 12, 13)):
        a.e(f"v_mov_b32 v{32+q}, s{sr_}")
    a.e("v_mov_b32 v36, 0x3b000000")
    a.e("v_pk_mul_f32 v[32:33], v[32:33], v[36:37] op_sel_hi:[1,0]")
    a.e("v_pk_mul_f32 v[34:35], v[34:35], v[36:37] op_sel_hi:[1,0]")
    a.e("v_pk_fma_f32 v[34:35], v[32:33], v[32:33], v[34:35] neg_lo:[1,0,0] neg_hi:[1,0,0]")
    a.e("v_max_f32 v34, 0, v34")
    a.e("v_max_f32 v35, 0, v35")
    a.e("v_cvt_pk_bf16_f32 v36, v34, v35")
    a.e("v_cvt_pk_bf16_f32 v37, v32, v33")
    a.e("v_lshlrev_b32 v34, 16, v36")
    a.e("v_and_b32 v35, 0xffff0000, v36")
    a.e("v_lshlrev_b32 v32, 16, v37")
    a.e("v_and_b32 v33, 0xffff0000, v37")
    a.e("v_add_f32 v34, 0x3727c5ac, v34")
    a.e("v_add_f32 v35, 0x3727c5ac, v35")
    a.e("v_cvt_pk_bf16_f32 v36, v34, v35")
    a.e("v_lshlrev_b32 v34, 16, v36")
    a.e("v_and_b32 v35, 0xffff0000, v36")
    a.e("v_sqrt_f32 v34, v34")
    a.e("v_sqrt_f32 v35, v35")
    a.e("s_nop 0")
    a.e("v_cvt_pk_bf16_f32 v36, v34, v35")
    a.e("v_lshlrev_b32 v34, 16, v36")
    a.e("v_and_b32 v35, 0xffff0000, v36")
    a.e("v_rcp_f32 v34, v34")
    a.e("v_rcp_f32 v35, v35")
    for r in range(2):
        b = 16 + 8*r
        sel = "op_sel_hi:[1,0]" if r == 0 else "op_sel:[0,1] op_sel_hi:[1,1]"
        for d in range(4):
            a.e(f"v_pk_add_f32 {vr(b+2*d,2)}, {vr(b+2*d,2)}, v[32:33] {sel} neg_lo:[0,1] neg_hi:[0,1]")
    for r in range(2):
        b = 16 + 8*r
        for d in range(4):
            a.e(f"v_cvt_pk_bf16_f32 v{44+4*r+d}, v{b+2*d}, v{b+2*d+1}")
    for r in range(2):
        b = 16 + 8*r
        for d in range(4):
            a.e(f"v_lshlrev_b32 v{b+2*d}, 16, v{44+4*r+d}")
            a.e(f"v_and_b32 v{b+2*d+1}, 0xffff0000, v{44+4*r+d}")
    for r in range(2):
        b = 16 + 8*r
        sel = "op_sel_hi:[1,0]" if r == 0 else "op_sel:[0,1] op_sel_hi:[1,1]"
        for d in range(4):
            a.e(f"v_pk_mul_f32 {vr(b+2*d,2)}, {vr(b+2*d,2)}, v[34:35] {sel}")
    for r in range(2):
        b = 16 + 8*r
        for d in range(4):
            a.e(f"v_cvt_pk_bf16_f32 v{44+4*r+d}, v{b+2*d}, v{b+2*d+1}")
    a.e(f"s_mul_i32 s{S_T0}, s{S_W}, {2*1088}")
    a.e(f"s_add_u32 s{S_T0}, s{S_T0}, {L_LN}")
    a.e(f"v_lshl_add_u32 v2, v{V_LANE}, 4, s{S_T0}")
    a.e("ds_write_b128 v2, v[44:47]")
    a.e("ds_write_b128 v2, v[48:51] offset:1088")
    a.e("v_mov_b32 v40, v34")
    a.e("v_cvt_pk_bf16_f32 v41, -v32, -v32")
    a.e("v_mov_b32 v42, v35")
    a.e("v_cvt_pk_bf16_f32 v43, -v33, -v33")
    a.e(f"s_lshl_b32 s{S_T0}, s{S_I}, 7")
    a.e(f"s_lshl_b32 s{S_T1}, s{S_J}, 3")
    a.e(f"s_add_u32 s{S_T0}, s{S_T0}, s{S_T1}")
    a.e(f"s_lshl_b32 s{S_T1}, s{S_W}, 1")
    a.e(f"s_add_u32 s{S_T1}, s{S_T0}, s{S_T1}")
    a.e(f"s_lshl_b32 s{S_T1}, s{S_T1}, 3")
    a.e(f"s_add_u32 s{S_T1}, s{S_T1}, {WS_STATS}")
    a.e(f"v_mov_b32 v3, s{S_T1}")
    a.e(f"s_mov_b64 s[{S_EXEC}:{S_EXEC+1}], exec")
    a.e("s_mov_b64 exec, 1")
    a.vm(f"global_store_dwordx4 v3, v[40:43], s[{P_WS}:{P_WS+1}] sc1", "pubA")
    a.e(f"s_mov_b64 exec, s[{S_EXEC}:{S_EXEC+1}]")
    a.e(f"v_bfe_u32 v2, v{V_LANE}, 2, 2")
    a.e(f"v_mul_u32_u24 v2, 1088, v2")
    a.e(f"v_lshrrev_b32 v3, 4, v{V_LANE}")
    a.e(f"v_lshl_add_u32 v2, v3, 5, v2")
    a.e(f"v_and_b32 v3, 3, v{V_LANE}")
    a.e(f"v_lshl_add_u32 v2, v3, 3, v2")
    a.e(f"s_lshl_b32 s{S_T1}, s{S_W}, 8")
    a.e(f"s_add_u32 s{S_T1}, s{S_T1}, {L_LN}")
    a.e(f"v_add_u32 v2, s{S_T1}, v2")
    a.e(f"s_lshl_b32 s{S_T0}, s{S_T0}, 10")
    a.e(f"s_lshl_b32 s{S_T1}, s{S_W}, 11")
    a.e(f"s_add_u32 s{S_T0}, s{S_T0}, s{S_T1}")
    a.e(f"s_add_u32 s{S_T0}, s{S_T0}, {WS_XT}")
    a.e(f"v_lshl_add_u32 v3, v{V_LANE}, 4, s{S_T0}")

def g1_reads(st, s):
    r = [f"ds_read_b128 {vr(fB(st,tt),4)}, v{G_BADDR+s} offset:{tt*4096}" for tt in range(2)]
    for ap in range(3):
        for h in range(2):
            r.append(f"ds_read_b64_tr_b16 {vr(fA(st,ap)+2*h,2)}, v{G_AADDR} offset:{s*3072 + h*768 + ap*32}")
    return r

def g1_mfmas(st, first):
    return [f"v_mfma_f32_32x32x16_bf16 {vr(acc(tt,ap),16)}, {vr(fA(st,ap),4)}, {vr(fB(st,tt),4)}, {'0' if first else vr(acc(tt,ap),16)}"
            for ap in range(3) for tt in range(2)]

def g1_main(a, hooks):
    st = 0
    for stage in range(8):
        for s in range(4):
            last = (stage == 7 and s == 3)
            a.e("s_waitcnt lgkmcnt(0)")
            mf = g1_mfmas(st, stage == 0 and s == 0)
            slots = {i: [] for i in range(6)}
            if s == 3 and not last:
                d = SLOT if (stage + 1) % 3 != 0 else -2 * SLOT
                slots[0] += [f"v_add_u32 v{G_BADDR+q}, {d & 0xffffffff}, v{G_BADDR+q}" for q in range(4)]
                slots[0] += [f"v_add_u32 v{G_AADDR}, {d & 0xffffffff}, v{G_AADDR}"]
                for hk in hooks.get(("pre", stage), []): slots[1].append(hk)
                slots[1].append(lambda a, stage=stage: a.bar(f"s{stage}"))
                rd = g1_reads(st ^ 1, 0)
                slots[1] += rd[:3]; slots[2] += rd[3:6]; slots[3] += rd[6:]
                for hk in hooks.get(("post", stage), []): slots[4].append(hk)
            elif last:
                slots[0].append(lambda a: a.bar("rf"))
            else:
                rd = g1_reads(st ^ 1, s + 1)
                slots[0] += rd[:3]; slots[1] += rd[3:6]; slots[2] += rd[6:]
            sh = hooks.get(("shadow", stage, s), [])
            for k, x in enumerate(sh):
                slots[2 + (k * 4) // len(sh)].append(x)
            sched(a, mf, slots)
            st ^= 1
        stamp(a, f"gs{stage}")

CSL = [152, 156, 168]
def g1_post_loads(a):
    a.e(f"s_lshl_b32 s{S_T0}, s{S_I}, 7")
    a.e(f"s_lshl_b32 s{S_T1}, s{S_TW}, 6")
    a.e(f"s_add_u32 s{S_T0}, s{S_T0}, s{S_T1}")
    a.e(f"s_lshl_b32 s{S_T0}, s{S_T0}, 3")
    a.e(f"s_add_u32 s{S_T0}, s{S_T0}, {WS_STATS}")
    a.e(f"v_and_b32 v6, 31, v{V_LANE}")
    a.e(f"v_lshl_add_u32 v7, v6, 3, s{S_T0}")
    a.vm(f"global_load_dwordx2 v[2:3], v7, s[{P_WS}:{P_WS+1}] sc1", "post")
    a.vm(f"global_load_dwordx2 v[4:5], v7, s[{P_WS}:{P_WS+1}] offset:256 sc1", "post")
    a.e(f"s_mul_i32 s{S_T0}, s{S_J}, 6")
    a.e(f"s_mul_i32 s{S_T1}, s{S_FW}, 3")
    a.e(f"s_add_u32 s{S_T0}, s{S_T0}, s{S_T1}")
    a.e(f"s_lshl_b32 s{S_T0}, s{S_T0}, 10")
    a.e(f"s_add_u32 s{S_T0}, s{S_T0}, {WS_CS}")
    a.e(f"v_lshl_add_u32 v7, v6, 5, s{S_T0}")
    a.e(f"v_lshrrev_b32 v8, 5, v{V_LANE}")
    a.e(f"v_lshl_add_u32 v7, v8, 4, v7")
    for ap in range(3):
        a.vm(f"global_load_dwordx4 {vr(CSL[ap],4)}, v7, s[{P_WS}:{P_WS+1}] offset:{1024*ap} sc1", "post")

def g1_corr_prep():
    r = [lambda a: a.vm_wait("post")]
    e = r.append
    for b in CSL:
        e(f"v_add_f32 v{b}, v{b}, v{b+2}")
        e(f"v_add_f32 v{b+1}, v{b+1}, v{b+3}")
    for b in CSL: e(f"v_add_f32 v{b}, v{b}, v{b+1}")
    for b in CSL: e(f"v_mov_b32 v{b+1}, v{b}")
    e(f"v_cmp_gt_u32 vcc, 32, v{V_LANE}")
    e("v_nop")
    for b in CSL: e(f"v_permlane32_swap_b32 v{b}, v{b+1}")
    for b in CSL: e(f"v_add_f32 v{b}, v{b}, v{b+1}")
    for b in CSL: e(f"v_cvt_pk_bf16_f32 v{b+1}, v{b}, v{b}")
    for b in CSL: e(f"v_lshlrev_b32 v{b+2}, 16, v{b+1}")
    for b in CSL: e(f"v_sub_f32 v{b+2}, v{b}, v{b+2}")
    for b in CSL: e(f"v_cvt_pk_bf16_f32 v{b}, v{b}, v{b+2}")
    for b in CSL:
        e(f"v_cndmask_b32 v{b}, 0, v{b}, vcc")
        e(f"v_mov_b32 v{b+1}, 0"); e(f"v_mov_b32 v{b+2}, 0"); e(f"v_mov_b32 v{b+3}, 0")
    for tt in range(2):
        e(f"v_cndmask_b32 v{8+4*tt}, 0, v{3+2*tt}, vcc")
        for d in range(1, 4): e(f"v_mov_b32 v{8+4*tt+d}, 0")
    return r

def g1_corr_mfma(a):
    a.e("s_nop 1")
    for ap in range(3):
        for tt in range(2):
            a.e(f"v_mfma_f32_32x32x16_bf16 {vr(acc(tt,ap),16)}, {vr(CSL[ap],4)}, {vr(8+4*tt,4)}, {vr(acc(tt,ap),16)}")

C1 = -2.0 * math.sqrt(2.0 / math.pi) * math.log2(math.e)
C2 = C1 * 0.044715
def g1_epilogue(a):
    for tt in range(2):
        r_, b = 2 + 2*tt, 160 + 4*tt
        a.e(f"v_mul_f32 v{b+2}, v{r_}, v{r_}")
        a.e(f"v_mul_f32 v{b}, {fhex(C1)}, v{r_}")
        a.e(f"v_mul_f32 v{b+1}, {fhex(C2)}, v{r_}")
        a.e(f"v_mul_f32 v{b+1}, v{b+1}, v{b+2}")
        a.e(f"v_rcp_f32 v{b+2}, v{b+2}")
    a.e(f"s_lshl_b32 s{S_T0}, s{S_I}, 2")
    a.e(f"s_lshl_b32 s{S_T1}, s{S_TW}, 1")
    a.e(f"s_add_u32 s{S_T0}, s{S_T0}, s{S_T1}")
    a.e(f"s_mul_i32 s{S_T0}, s{S_T0}, 86")
    a.e(f"s_lshl_b32 s{S_T1}, s{S_U0}, 1")
    a.e(f"s_add_u32 s{S_T0}, s{S_T0}, s{S_T1}")
    a.e(f"s_mul_i32 s{S_T1}, s{S_FW}, 3")
    a.e(f"s_add_u32 s{S_T0}, s{S_T0}, s{S_T1}")
    a.e(f"s_lshl_b32 s{S_T0}, s{S_T0}, 10")
    a.e(f"s_add_u32 s{S_T0}, s{S_T0}, {WS_H}")
    a.e(f"v_lshl_add_u32 v168, v{V_LANE}, 4, s{S_T0}")
    a.e(f"v_add_u32 v169, {86*1024}, v168")
    a.e(f"s_sub_u32 s{S_T2}, s{S_NU}, s{S_T1}")
    a.e(f"s_lshl_b32 s{S_T0}, s{S_WG}, 12")
    a.e(f"s_add_u32 s{S_T0}, s{S_T0}, {WS_DUMMY}")
    a.e(f"v_lshl_add_u32 v170, v{V_LANE}, 4, s{S_T0}")
    a.e(f"s_cmp_gt_u32 s{S_T2}, 1")
    a.e(f"s_cselect_b64 s[74:75], -1, 0")
    a.e(f"v_cndmask_b32 v171, v170, v169, s[74:75]")
    a.e(f"v_cndmask_b32 v170, v170, v168, s[74:75]")
    T, Gq, X = 112, 120, 128
    for ap in range(3):
        for tt in range(2):
            c = acc(tt, ap); KK = 160 + 4*tt; S2 = 162 + 4*tt
            for p in range(4):
                a.e(f"v_pk_mul_f32 {vr(T+2*p,2)}, {vr(c+2*p,2)}, {vr(c+2*p,2)}")
            for p in range(4):
                a.e(f"v_pk_fma_f32 {vr(T+2*p,2)}, {vr(T+2*p,2)}, {vr(KK,2)}, {vr(KK,2)} op_sel:[0,1,0] op_sel_hi:[1,1,0]")
            for p in range(4):
                a.e(f"v_pk_mul_f32 {vr(T+2*p,2)}, {vr(T+2*p,2)}, {vr(c+2*p,2)}")
            for p in range(8):
                a.e(f"v_exp_f32 v{T+p}, v{T+p}")
            for p in range(4):
                a.e(f"v_pk_mul_f32 {vr(Gq+2*p,2)}, {vr(c+2*p,2)}, {vr(c+8+2*p,2)}")
            for p in range(4):
                a.e(f"v_pk_fma_f32 {vr(T+2*p,2)}, {vr(T+2*p,2)}, {vr(S2,2)}, {vr(S2,2)} op_sel_hi:[1,0,0]")
            for p in range(8):
                a.e(f"v_rcp_f32 v{T+p}, v{T+p}")
            a.e("s_nop 0")
            for p in range(4):
                a.e(f"v_pk_mul_f32 {vr(Gq+2*p,2)}, {vr(Gq+2*p,2)}, {vr(T+2*p,2)}")
            O = X + 4 * ((2 * ap + tt) % 2)
            for p in range(4):
                a.e(f"v_cvt_pk_bf16_f32 v{O+p}, v{Gq+2*p}, v{Gq+2*p+1}")
            adr = (168 + tt) if ap == 0 else (170 + tt)
            a.vm(f"global_store_dwordx4 v{adr}, {vr(O,4)}, s[{P_WS}:{P_WS+1}] offset:{1024*ap} sc1", "pubH")

V_WDOFF, V_WDL, V_WDA = 172, 173, 166
def wd_setup(a, t0, voff=V_WDOFF):
    mk_srd(a, SRD_WD, P_WD, 1376 * 1024)
    a.e(f"s_mul_i32 s{S_WDO}, s{S_W}, {352 * 1024}")
    a.e(f"s_lshl_b32 s{S_T0}, s{S_NT}, 7")
    a.e(f"s_add_u32 s{S_WDO}, s{S_WDO}, s{S_T0}")
    t = t0
    a.e(f"v_lshrrev_b32 v{t}, 3, v{V_LANE}")
    a.e(f"v_and_b32 v{t+1}, 7, v{V_LANE}")
    a.e(f"v_bfe_u32 v{t+2}, v{t}, 1, 1")
    a.e(f"v_lshlrev_b32 v{t+2}, 2, v{t+2}")
    a.e(f"v_xor_b32 v{t+1}, v{t+1}, v{t+2}")
    a.e(f"v_lshlrev_b32 v{t+1}, 4, v{t+1}")
    a.e(f"v_lshl_add_u32 v{voff}, v{t}, 10, v{t+1}")

def wd_lane_parts(a, t0):
    t = t0
    a.e(f"v_lshrrev_b32 v{t}, 4, v{V_LANE}")
    a.e(f"v_and_b32 v{t+1}, 1, v{t}")
    a.e(f"v_lshrrev_b32 v{t}, 1, v{t}")
    a.e(f"v_bfe_u32 v{t+2}, v{V_LANE}, 2, 2")
    a.e(f"v_lshl_add_u32 v{t+2}, v{t}, 2, v{t+2}")
    a.e(f"v_lshlrev_b32 v{t+2}, 7, v{t+2}")
    a.e(f"v_lshl_add_u32 v{t+2}, v{t+1}, 5, v{t+2}")
    a.e(f"v_and_b32 v{t+1}, 3, v{V_LANE}")
    a.e(f"v_lshl_add_u32 v{t+2}, v{t+1}, 3, v{t+2}")
    a.e(f"v_bfe_u32 v{t+1}, v{V_LANE}, 3, 1")
    a.e(f"v_lshlrev_b32 v{t+1}, 6, v{t+1}")
    a.e(f"v_add_u32 v{V_WDL}, v{t+2}, v{t+1}")
    a.e(f"v_xor_b32 v{t+1}, 64, v{t+1}")
    a.e(f"v_add_u32 v{V_WDL+1}, v{t+2}, v{t+1}")

def wd_groups(rnd, voff=V_WDOFF):
    lb, wsz, ks0, n = WD[rnd]
    out = []
    for q in range(2 * n):
        pre = [f"s_mul_i32 s{S_WDL}, s{S_W}, {wsz}", f"s_add_u32 s{S_WDS}, s{S_WDO}, {ks0*16384}"] if q == 0 else []
        out.append(Dma(pre, f"s_add_u32 m0, s{S_WDL}, {lb + q*1024}",
                       (f"buffer_load_dwordx4 v{voff}, s[{SRD_WD}:{SRD_WD+3}], s{S_WDS} offen lds", f"wd{rnd}"),
                       [f"s_add_u32 s{S_WDS}, s{S_WDS}, 8192"]))
    return out

def wd_addr(rnd):
    lb, wsz, ks0, n = WD[rnd]
    return [f"s_mul_i32 s{S_T0}, s{S_W}, {wsz}", f"s_add_u32 s{S_T0}, s{S_T0}, {lb}",
            f"v_add_u32 v{V_WDA}, s{S_T0}, v{V_WDL}", f"v_add_u32 v{V_WDA+1}, s{S_T0}, v{V_WDL+1}"]

def wd_tr_agpr(rnd):
    lb, wsz, ks0, n = WD[rnd]
    return [f"ds_read_b64_tr_b16 {ar(8*(ks0+k) + 4*t + 2*h, 2)}, v{V_WDA+t} offset:{k*2048 + h*1024}"
            for k in range(n) for t in range(2) for h in range(2)]

G2_ACC, G2_H, G2_RING, G2_W = 16, 80, 8, 144
V_HA = 160
def acc2(t, tt): return G2_ACC + 16 * (2 * t + tt)

def h_setup(a):
    a.e(f"s_lshl_b32 s{S_T0}, s{S_I}, 2")
    a.e(f"s_lshl_b32 s{S_T1}, s{S_TH}, 1")
    a.e(f"s_add_u32 s{S_T0}, s{S_T0}, s{S_T1}")
    a.e(f"s_mul_i32 s{S_T0}, s{S_T0}, 86")
    a.e(f"s_mul_i32 s{S_T1}, s{S_W}, 22")
    a.e(f"s_add_u32 s{S_T0}, s{S_T0}, s{S_T1}")
    a.e(f"s_lshl_b32 s{S_T0}, s{S_T0}, 10")
    a.e(f"s_add_u32 s{S_T0}, s{S_T0}, {WS_H}")
    a.e(f"v_lshl_add_u32 v{V_HA}, v{V_LANE}, 4, s{S_T0}")
    a.e(f"v_add_u32 v{V_HA+1}, {86*1024}, v{V_HA}")
    a.e(f"s_movk_i32 s66, {4*1024}")
    a.e(f"s_movk_i32 s67, {5*1024}")
    a.e(f"s_cmp_eq_u32 s{S_W}, 3")
    a.e(f"s_cselect_b32 s66, {3*1024}, s66")
    a.e(f"s_cselect_b32 s67, {3*1024}, s67")

def h_load(q):
    R = G2_H + 8 * (q % G2_RING)
    it = []
    if q < 20:
        if q % 4 == 0 and q > 0:
            it += [f"v_add_u32 v{V_HA}, 4096, v{V_HA}", f"v_add_u32 v{V_HA+1}, 4096, v{V_HA+1}"]
        off = (q % 4) * 1024
        it += [(f"global_load_dwordx4 {vr(R,4)}, v{V_HA}, s[{P_WS}:{P_WS+1}] offset:{off} sc1", f"h{q}"),
               (f"global_load_dwordx4 {vr(R+4,4)}, v{V_HA+1}, s[{P_WS}:{P_WS+1}] offset:{off} sc1", f"h{q}")]
    else:
        sreg = 66 + (q - 20)
        it += [f"v_add_u32 v162, s{sreg}, v{V_HA}", f"v_add_u32 v163, s{sreg}, v{V_HA+1}",
               (f"global_load_dwordx4 {vr(R,4)}, v162, s[{P_WS}:{P_WS+1}] sc1", f"h{q}"),
               (f"global_load_dwordx4 {vr(R+4,4)}, v163, s[{P_WS}:{P_WS+1}] sc1", f"h{q}")]
    return it

def hy_poll_issue(a):
    a.e(f"s_lshl_b32 s{S_T0}, s{S_I}, 6")
    a.e(f"s_add_u32 s{S_T0}, s{S_T0}, {WS_FLAG_H}")
    a.e(f"v_and_b32 v8, 15, v{V_LANE}")
    a.e(f"v_lshl_add_u32 v8, v8, 2, s{S_T0}")
    a.e(f"s_lshl_b32 s{S_T0}, s{S_NT}, 7")
    a.e(f"s_add_u32 s{S_T0}, s{S_T0}, {WS_FLAG_Y}")
    a.e(f"v_and_b32 v9, 31, v{V_LANE}")
    a.e(f"v_lshl_add_u32 v9, v9, 2, s{S_T0}")
    a.vm(f"global_load_dword v10, v8, s[{P_WS}:{P_WS+1}] sc1", "ph")
    a.vm(f"global_load_dword v11, v9, s[{P_WS}:{P_WS+1}] sc1", "ph")

def hy_poll_check(a):
    top, ok = a.label("poll"), a.label("pollok")
    a.vm_wait("ph")
    a.e(f"s_mov_b32 s{S_SPIN}, 0")
    a.e(f"{top}:")
    a.e(f"v_cmp_ne_u32 vcc, s{S_TAG}, v10")
    a.e(f"v_cmp_ne_u32 s[74:75], s{S_TAG}, v11")
    a.e("s_nop 1")
    a.e("s_or_b64 vcc, vcc, s[74:75]")
    spin_tail(a, top, ok, [f"global_load_dword v10, v8, s[{P_WS}:{P_WS+1}] sc1", f"global_load_dword v11, v9, s[{P_WS}:{P_WS+1}] sc1"])

def res_reads(q):
    for rnd in (4, 5, 6):
        lb, wsz, ks0, n = WD[rnd]
        if ks0 <= q < ks0 + n:
            pre = wd_addr(rnd) if q == ks0 else []
            B = G2_W + 8 * (q % 2)
            return pre + [f"ds_read_b64_tr_b16 {vr(B + 4*t + 2*h, 2)}, v{V_WDA+t} offset:{(q-ks0)*2048 + h*1024}" for t in range(2) for h in range(2)]

def g2_main(a, hooks, n0):
    la = OPT.get("g2la", 7)
    nxt = n0
    for q in range(22):
        a.vm_wait(f"h{q}")
        if q >= 8:
            a.e("s_waitcnt lgkmcnt(0)")
        stamp(a, f"g2q{q}")
        R = G2_H + 8 * (q % G2_RING)
        mf = []
        for t in range(2):
            A = ar(8*q + 4*t, 4) if q < 10 else vr(G2_W + 8*(q % 2) + 4*t, 4)
            for tt in range(2):
                mf.append(f"v_mfma_f32_32x32x16_bf16 {vr(acc2(t,tt),16)}, {A}, {vr(R+4*tt,4)}, {'0' if q == 0 else vr(acc2(t,tt),16)}")
        slots = {i: [] for i in range(4)}
        if 10 <= q + 1 < 22:
            rr = res_reads(q + 1)
            slots[0] += rr
        k = 0
        while nxt < 22 and nxt - q <= la and k < 2 and nxt < q + G2_RING:
            slots[1 if k == 0 else 3].append(h_load(nxt)); nxt += 1; k += 1
        for hk in hooks.get(q, []): slots[2].append(hk)
        sched(a, mf, slots)

V_OUT = 14
V_X = 168
def x_loads(a):
    a.e(f"s_lshl_b32 s{S_T0}, s{S_I}, 7")
    a.e(f"s_lshl_b32 s{S_T1}, s{S_TH}, 6")
    a.e(f"s_add_u32 s{S_T0}, s{S_T0}, s{S_T1}")
    a.e(f"s_and_b32 s{S_T1}, s{S_W}, 1")
    a.e(f"s_lshl_b32 s{S_T1}, s{S_T1}, 5")
    a.e(f"s_add_u32 s{S_T0}, s{S_T0}, s{S_T1}")
    a.e(f"s_lshl_b32 s{S_T0}, s{S_T0}, 10")
    a.e(f"s_lshl_b32 s{S_T1}, s{S_NT}, 7")
    a.e(f"s_add_u32 s{S_T0}, s{S_T0}, s{S_T1}")
    a.e(f"s_lshr_b32 s{S_T1}, s{S_W}, 1")
    a.e(f"s_lshl_b32 s{S_T1}, s{S_T1}, 6")
    a.e(f"s_add_u32 s{S_T0}, s{S_T0}, s{S_T1}")
    a.e(f"v_and_b32 v12, 31, v{V_LANE}")
    a.e(f"v_lshlrev_b32 v12, 10, v12")
    a.e(f"v_lshrrev_b32 v13, 5, v{V_LANE}")
    a.e(f"v_lshl_add_u32 v12, v13, 3, v12")
    a.e(f"v_add_u32 v{V_OUT}, s{S_T0}, v12")
    for q in range(4):
        a.vm(f"global_load_dwordx2 {vr(V_X+2*q,2)}, v{V_OUT}, s[{P_X}:{P_X+1}] offset:{16*q}", "fx")
    a.e(f"v_lshl_add_u32 v{V_OUT}, v13, 3, v{V_OUT}")

def y_loads(a):
    a.e(f"s_lshl_b32 s{S_T0}, s{S_I}, 1")
    a.e(f"s_add_u32 s{S_T0}, s{S_T0}, s{S_TH}")
    a.e(f"s_lshl_b32 s{S_T0}, s{S_T0}, 16")
    a.e(f"s_lshl_b32 s{S_T1}, s{S_NT}, 13")
    a.e(f"s_add_u32 s{S_T0}, s{S_T0}, s{S_T1}")
    a.e(f"s_add_u32 s{S_T0}, s{S_T0}, {WS_Y}")
    a.e(f"v_lshl_add_u32 v10, v0, 4, s{S_T0}")
    a.e(f"v_add_u32 v11, 4096, v10")
    a.vm(f"global_load_dwordx4 v[2:5], v10, s[{P_WS}:{P_WS+1}] sc1", "fy")
    a.vm(f"global_load_dwordx4 v[6:9], v11, s[{P_WS}:{P_WS+1}] sc1", "fy")

def y_check(a):
    top, ok = a.label("ychk"), a.label("yok")
    a.vm_wait("fy")
    a.e(f"s_mov_b32 s{S_SPIN}, 0")
    a.e(f"{top}:")
    a.e("v_max3_u32 v12, v2, v3, v4")
    a.e("v_max3_u32 v13, v5, v6, v7")
    a.e("v_max3_u32 v12, v12, v8, v9")
    a.e("v_max_u32 v12, v12, v13")
    a.e("v_cmp_eq_u32 vcc, -1, v12")
    a.e("s_nop 1")
    spin_tail(a, top, ok, [f"global_load_dwordx4 v[2:5], v10, s[{P_WS}:{P_WS+1}] sc1", f"global_load_dwordx4 v[6:9], v11, s[{P_WS}:{P_WS+1}] sc1"])

def final_prep(a):
    a.e(f"v_lshlrev_b32 v162, 4, v{V_LANE}")
    a.e(f"v_add_u32 v163, {RED_UNIT[0]}, v162")
    a.e(f"v_lshrrev_b32 v12, 3, v0")
    a.e(f"v_mul_u32_u24 v12, 192, v12")
    a.e(f"v_and_b32 v13, 7, v0")
    a.e(f"v_lshl_add_u32 v164, v13, 4, v12")
    a.e(f"v_add_u32 v164, {L_YB}, v164")
    a.e(f"v_lshrrev_b32 v12, 4, v{V_LANE}")
    a.e(f"v_and_b32 v13, 1, v12")
    a.e(f"v_lshrrev_b32 v12, 1, v12")
    a.e(f"v_bfe_u32 v165, v{V_LANE}, 2, 2")
    a.e(f"v_lshl_add_u32 v165, v12, 2, v165")
    a.e(f"v_mul_u32_u24 v165, 192, v165")
    a.e(f"v_lshl_add_u32 v165, v13, 5, v165")
    a.e(f"v_and_b32 v13, 3, v{V_LANE}")
    a.e(f"v_lshl_add_u32 v165, v13, 3, v165")
    a.e(f"s_lshr_b32 s{S_T0}, s{S_W}, 1")
    a.e(f"s_mul_i32 s{S_T0}, s{S_T0}, {32*192}")
    a.e(f"s_and_b32 s{S_T1}, s{S_W}, 1")
    a.e(f"s_lshl_b32 s{S_T1}, s{S_T1}, 6")
    a.e(f"s_add_u32 s{S_T0}, s{S_T0}, s{S_T1}")
    a.e(f"s_add_u32 s{S_T0}, s{S_T0}, {L_YB}")
    a.e(f"v_add_u32 v165, s{S_T0}, v165")

def red_ref(u, q):
    if u < 8: return 163, u * 4096 + q * 1024
    return 162, RED_UNIT[u] + q * 1024

def final(a):
    OWN, XF = 80, 96
    P = 112
    end = a.label("redend")
    labs = [a.label("redw") for _ in range(4)]
    for w in range(1, 4):
        a.e(f"s_cmp_eq_u32 s{S_W}, {w}")
        a.e(f"s_cbranch_scc1 {labs[w]}")
    for w in range(4):
        a.e(f"{labs[w]}:")
        a.e("s_nop 9")
        for o in range(4):
            if o == w: continue
            u = 3*o + ((w - o - 1) & 3)
            for q in range(4):
                r_, off = red_ref(u, q)
                a.e(f"ds_write_b128 v{r_}, {vr(G2_ACC+16*o+4*q,4)} offset:{off}")
        for q in range(8):
            a.e(f"v_pk_mul_f32 {vr(OWN+2*q,2)}, {vr(G2_ACC+16*w+2*q,2)}, 1.0 op_sel_hi:[1,0]")
        if w < 3: a.e(f"s_branch {end}")
    a.e(f"{end}:")
    y_check(a)
    stamp(a, "fy")
    a.e("ds_write_b128 v164, v[2:5]")
    a.e(f"ds_write_b128 v164, v[6:9] offset:{32*192}")
    a.vm_wait("fx")
    for q in range(8):
        a.e(f"v_lshlrev_b32 v{XF+2*q}, 16, v{V_X+q}")
        a.e(f"v_and_b32 v{XF+2*q+1}, 0xffff0000, v{V_X+q}")
    for q in range(8):
        a.e(f"v_pk_add_f32 {vr(OWN+2*q,2)}, {vr(OWN+2*q,2)}, {vr(XF+2*q,2)}")
    a.e("s_waitcnt lgkmcnt(0)")
    a.bar("fin")
    for q in range(4):
        a.e(f"ds_read_b64_tr_b16 {vr(2+2*q,2)}, v165 offset:{1536*q}")
    labs = [a.label("rdw") for _ in range(4)]
    end2 = a.label("rdend")
    for w in range(1, 4):
        a.e(f"s_cmp_eq_u32 s{S_W}, {w}")
        a.e(f"s_cbranch_scc1 {labs[w]}")
    for w in range(4):
        a.e(f"{labs[w]}:")
        for sl in range(3):
            for q in range(4):
                r_, off = red_ref(3*w + sl, q)
                a.e(f"ds_read_b128 {vr(P+16*sl+4*q,4)}, v{r_} offset:{off}")
        if w < 3: a.e(f"s_branch {end2}")
    a.e(f"{end2}:")
    a.e("s_waitcnt lgkmcnt(12)")
    for q in range(8):
        a.e(f"v_lshlrev_b32 v{XF+2*q}, 16, v{2+q}")
        a.e(f"v_and_b32 v{XF+2*q+1}, 0xffff0000, v{2+q}")
    for q in range(8):
        a.e(f"v_pk_add_f32 {vr(OWN+2*q,2)}, {vr(OWN+2*q,2)}, {vr(XF+2*q,2)}")
    for sl in range(3):
        a.e(f"s_waitcnt lgkmcnt({8 - 4*sl})")
        for q in range(8):
            a.e(f"v_pk_add_f32 {vr(OWN+2*q,2)}, {vr(OWN+2*q,2)}, {vr(P+16*sl+2*q,2)}")
    for q in range(8):
        a.e(f"v_cvt_pk_bf16_f32 v{2+q}, v{OWN+2*q}, v{OWN+2*q+1}")
    a.e("s_nop 1")
    for p in range(2):
        a.e(f"v_permlane32_swap_b32 v{2+4*p}, v{4+4*p}")
        a.e(f"v_permlane32_swap_b32 v{3+4*p}, v{5+4*p}")
    for p in range(2):
        a.vm(f"global_store_dwordx4 v{V_OUT}, {vr(2+4*p,4)}, s[{P_OUT}:{P_OUT+1}] offset:{32*p} nt", "out")


def role_g(a):
    if OPT.get("prio", 1): a.e("s_setprio 1")
    g_setup(a)
    a.e("s_waitcnt lgkmcnt(0)")
    a.e(f"s_mov_b32 s{S_ROLE}, 0")
    a.vm("global_load_dwordx4 v[44:47], v7, s[16:17]", "ln")
    a.vm("global_load_dwordx4 v[48:51], v7, s[16:17] offset:1024", "ln")
    epoch_load(a, 3, 6)
    stamp(a, 0, real=True); stamp(a, 1)
    epoch_finish(a, 6)
    ln_first(a)
    stamp(a, "ln")
    a.e("s_waitcnt lgkmcnt(0)")
    a.bar("b0")
    stamp(a, "b0")
    for x in g1_reads(0, 0)[:0]: a.e(x)
    for q in range(2):
        a.e(f"ds_read_b64_tr_b16 v[{8+4*q}:{9+4*q}], v2 offset:{128*q}")
        a.e(f"ds_read_b64_tr_b16 v[{10+4*q}:{11+4*q}], v2 offset:{128*q + 4*1088}")
    for x in g1_reads(0, 0): a.e(x)
    a.e("s_waitcnt lgkmcnt(8)")
    a.vm(f"global_store_dwordx4 v3, v[8:11], s[{P_WS}:{P_WS+1}] sc1", "pubA")
    a.vm(f"global_store_dwordx4 v3, v[12:15], s[{P_WS}:{P_WS+1}] offset:1024 sc1", "pubA")
    PS = OPT.get("pubstage", 1)
    def bump(a):
        lab = a.label("nobump")
        a.e(f"s_or_b32 s{S_T0}, s{S_WG}, s{S_W}")
        a.e(f"s_cmp_lg_u32 s{S_T0}, 0")
        a.e(f"s_cbranch_scc1 {lab}")
        a.e(f"s_add_u32 s{S_T0}, s{S_EP}, 1")
        a.e("v_mov_b32 v6, 0")
        a.e(f"v_mov_b32 v7, s{S_T0}")
        a.e(f"s_mov_b64 s[{S_EXEC}:{S_EXEC+1}], exec")
        a.e("s_mov_b64 exec, 1")
        a.e(f"global_store_dword v6, v7, s[{P_WS}:{P_WS+1}] sc1")
        a.e(f"s_mov_b64 exec, s[{S_EXEC}:{S_EXEC+1}]")
        a.e(f"{lab}:")
    def chk(a):
        ln_poll_check(a, 165, 152)
        bump(a)
        g1_post_loads(a)
    hooks = {("pre", PS): [lambda a: a.vm_wait("pubA")],
             ("post", PS): [lambda a: flag_store(a, WS_FLAG_LN, idx_ln, 6, 7)],
             ("post", OPT.get("pollstage", 5)): [lambda a: ln_poll_issue(a, 165, 152)],
             ("post", 6): [chk],
             ("shadow", 7, 2): g1_corr_prep()}
    rw = Rec(a); wd_setup(rw, 6); wd_lane_parts(rw, 6)
    hooks[("shadow", 4, 1)] = [o[1] for o in rw.ops]
    g1_main(a, hooks)
    stamp(a, "loop")
    if OPT.get("gprio2") is not None: a.e(f"s_setprio {OPT['gprio2']}")
    g1_corr_mfma(a)
    r = Rec(a)
    g1_epilogue(r)
    fills = wd_groups(1) + wd_groups(2)
    replay(a, r.ops, fills, every=OPT.get("epevery", 16), start=34)
    stamp(a, "epi")
    a.vm_wait("wd1", "wd2")
    for x in wd_addr(1) + wd_tr_agpr(1) + wd_addr(2) + wd_tr_agpr(2): a.e(x)
    h_setup(a)
    a.vm_wait("pubH")
    a.e("s_waitcnt lgkmcnt(0)")
    a.bar("k")
    stamp(a, "bk")
    flag_store(a, WS_FLAG_H, idx_h, 6, 7)
    flag_store(a, WS_FLAG_Y, idx_y, 6, 7)
    stamp(a, "hpub")
    a.bar("p")
    hy_poll_issue(a)
    hy_poll_check(a)
    stamp(a, "hflag")
    N0 = OPT.get("g2n0", 4)
    for q in range(N0): emit(a, h_load(q))
    a.e("s_waitcnt lgkmcnt(0)")
    hk = {}
    def after_cd(a):
        a.bar("cd")
        for x in wd_addr(3) + wd_tr_agpr(3): a.e(x)
    for q, f in ((OPT.get("cxq", 2), lambda a: a.bar("cx")), (OPT.get("cdq", 4), after_cd), (OPT.get("xld", 18), x_loads), (OPT.get("fprep", 19), final_prep), (OPT.get("yld", 13), y_loads)):
        hk.setdefault(q, []).append(f)
    g2_main(a, hk, N0)
    stamp(a, "g2")
    final(a)
    stamp(a, "fin")
    a.e("s_waitcnt vmcnt(0)")
    stamp(a, 9, real=True)
    prof_store(a)
    a.e("s_endpgm")


C_XOFF, C_WOFF = 2, 6
C_AADDR = 9
C_P = 160
C_XT = 168
def c_setup(a):
    a.e(f"s_lshl_b32 s{S_T0}, s{S_I}, 7")
    a.e(f"s_lshl_b32 s{S_T1}, s{S_W}, 5")
    a.e(f"s_add_u32 s{S_T0}, s{S_T0}, s{S_T1}")
    a.e(f"s_lshl_b32 s{S_XW}, s{S_T0}, 10")
    a.e(f"s_lshl_b32 s{S_LX}, s{S_W}, 12")
    a.e(f"s_add_u32 s{S_KC}, s{S_I}, s{S_J}")
    a.e(f"s_and_b32 s{S_KC}, s{S_KC}, 7")
    a.e(f"s_mul_i32 s{S_WW}, s{S_W}, {16 * 2752}")
    a.e(f"s_lshl_b32 s{S_T0}, s{S_U0}, 6")
    a.e(f"s_add_u32 s{S_WW}, s{S_WW}, s{S_T0}")
    a.e(f"s_mul_i32 s{S_LW}, s{S_W}, 3072")
    a.e(f"v_lshrrev_b32 v12, 3, v{V_LANE}")
    a.e(f"v_and_b32 v13, 7, v{V_LANE}")
    a.e(f"v_lshrrev_b32 v14, 1, v12")
    a.e(f"v_xor_b32 v15, v14, v13")
    a.e(f"v_lshlrev_b32 v16, 4, v15")
    a.e(f"v_lshl_add_u32 v{C_XOFF}, v12, 10, v16")
    a.e(f"v_xor_b32 v17, 64, v{C_XOFF}")
    a.e(f"v_add_u32 v{C_XOFF+1}, 8192, v17")
    a.e(f"v_add_u32 v{C_XOFF+2}, 16384, v{C_XOFF}")
    a.e(f"v_add_u32 v{C_XOFF+3}, 16384, v{C_XOFF+1}")
    for q in range(3):
        a.e(f"v_add_u32 v12, {64*q}, v{V_LANE}")
        a.e(f"v_mul_u32_u24 v13, 5462, v12")
        a.e(f"v_lshrrev_b32 v13, 16, v13")
        a.e(f"v_mul_u32_u24 v14, 12, v13")
        a.e(f"v_sub_u32 v14, v12, v14")
        a.e(f"v_mul_u32_u24 v13, 2752, v13")
        a.e(f"v_lshl_add_u32 v{C_WOFF+q}, v14, 4, v13")

def stage_offsets():
    return [f"s_lshl_b32 s{S_XO}, s{S_KC}, 7", f"s_add_u32 s{S_XO}, s{S_XO}, s{S_XW}",
            f"s_mul_i32 s{S_WO}, s{S_KC}, {64 * 2752}", f"s_add_u32 s{S_WO}, s{S_WO}, s{S_WW}",
            f"s_add_u32 s{S_KC}, s{S_KC}, 1", f"s_and_b32 s{S_KC}, s{S_KC}, 7"]

def stage_dma(stage):
    S = (stage % 3) * SLOT; tag = f"st{stage}"
    out = []
    for q in range(4):
        out.append(Dma([], f"s_add_u32 m0, s{S_LX}, {S + L_X + q * 1024}", (f"buffer_load_dwordx4 v{C_XOFF+q}, s[{SRD_X}:{SRD_X+3}], s{S_XO} offen lds", tag)))
    for q in range(3):
        out.append(Dma([], f"s_add_u32 m0, s{S_LW}, {S + L_G + q * 1024}", (f"buffer_load_dwordx4 v{C_WOFF+q}, s[{SRD_WG}:{SRD_WG+3}], s{S_WO} offen lds", tag)))
        out.append(Dma([], f"s_add_u32 m0, s{S_LW}, {S + L_U + q * 1024}", (f"buffer_load_dwordx4 v{C_WOFF+q}, s[{SRD_WU}:{SRD_WU+3}], s{S_WO} offen lds", tag)))
    out[0] = stage_offsets() + list(out[0])
    return out

def cs_block(a):
    lab = a.label("nocs")
    a.e(f"s_cmp_lg_u32 s{S_CSH}, 0")
    a.e(f"s_cbranch_scc1 {lab}")
    FRG, ACC, ON = 64, 112, 60
    for r in range(4): a.e(f"v_mov_b32 v{ON+r}, 0x3f803f80")
    for s in range(4):
        for ap in range(3):
            for h in range(2):
                a.e(f"ds_read_b64_tr_b16 {vr(FRG+12*s+4*ap+2*h,2)}, v{C_AADDR} offset:{s*3072 + h*768 + ap*32}")
    a.e("s_waitcnt lgkmcnt(0)")
    for s in range(4):
        for ap in range(3):
            a.e(f"v_mfma_f32_32x32x16_bf16 {vr(ACC+16*ap,16)}, {vr(ON,4)}, {vr(FRG+12*s+4*ap,4)}, {'0' if s == 0 else vr(ACC+16*ap,16)}")
    a.e(f"s_mul_i32 s{S_T0}, s{S_J}, 6")
    a.e(f"s_mul_i32 s{S_T1}, s{S_FW}, 3")
    a.e(f"s_add_u32 s{S_T0}, s{S_T0}, s{S_T1}")
    a.e(f"s_lshl_b32 s{S_T0}, s{S_T0}, 10")
    a.e(f"s_lshl_b32 s{S_T1}, s{S_I}, 2")
    a.e(f"s_add_u32 s{S_T0}, s{S_T0}, s{S_T1}")
    a.e(f"s_add_u32 s{S_T0}, s{S_T0}, {WS_CS}")
    a.e(f"v_lshl_add_u32 v59, v{V_LANE}, 5, s{S_T0}")
    lab2 = a.label("nocsst")
    a.e(f"s_cmp_ge_u32 s{S_W}, 2")
    a.e(f"s_cbranch_scc1 {lab2}")
    a.e("s_nop 7")
    a.e(f"s_mov_b64 s[{S_EXEC}:{S_EXEC+1}], exec")
    a.e("s_mov_b64 exec, 0xffffffff")
    for ap in range(3):
        a.e(f"global_store_dword v59, v{ACC+16*ap}, s[{P_WS}:{P_WS+1}] offset:{1024*ap} sc1")
    a.e(f"s_mov_b64 exec, s[{S_EXEC}:{S_EXEC+1}]")
    a.e(f"{lab2}:")
    a.e(f"{lab}:")

def kgen_loads(a):
    a.e(f"s_lshl_b32 s{S_T0}, s{S_D}, 8")
    a.e(f"s_lshl_b32 s{S_T1}, s{S_MH}, 7")
    a.e(f"s_add_u32 s{S_T0}, s{S_T0}, s{S_T1}")
    a.e(f"v_lshl_add_u32 v12, v{V_LANE}, 1, s{S_T0}")
    for q, p in enumerate([P_ARE, P_AIM, P_BRE, P_BIM, P_CRE, P_CIM]):
        a.vm(f"global_load_ushort v{C_P+q}, v12, s[{p}:{p+1}]", "kp")
    a.e(f"s_lshl_b32 s{S_T0}, s{S_D}, 1")
    a.e(f"v_mov_b32 v13, s{S_T0}")
    a.vm(f"global_load_ushort v{C_P+6}, v13, s[{P_LDT}:{P_LDT+1}]", "kp")
    a.vm(f"global_load_ushort v{C_P+7}, v13, s[{P_DSK}:{P_DSK+1}]", "kp")

KS = 64
def kgen_prog():
    out = []; e = out.append
    P = C_P
    AL, BE, CO = 10, 11, 12
    Z1, Z2, Z4, Z8, Z256, Z512 = 14, 16, 18, 20, 22, 24
    A0, A1, B0, B1, C0, C1_, CB, D0, D1, DB0, DB1 = 26, 28, 30, 32, 34, 36, 38, 40, 42, 44, 46
    T = 48
    for q in range(8): e(f"v_lshlrev_b32 v{P+q}, 16, v{P+q}")
    e(f"v_mul_f32 v58, 0x3fb8aa3b, v{P+6}")
    e("v_exp_f32 v58, v58")
    e(f"v_mov_b32 v{A0}, 1.0")
    e(f"v_cvt_pk_bf16_f32 v58, v58, v58")
    e(f"v_mov_b32 v{A0+1}, 0")
    e(f"v_lshlrev_b32 v58, 16, v58")
    e(f"v_mul_f32 v{AL}, v58, v{P}"); e(f"v_mul_f32 v{BE}, v58, v{P+1}")
    e(f"v_mul_f32 v56, v58, v{P+2}"); e(f"v_mul_f32 v57, v58, v{P+3}")
    e(f"v_mul_f32 v{AL}, 0x3fb8aa3b, v{AL}"); e(f"v_mul_f32 v{BE}, 0.15915494, v{BE}")
    e(f"v_mul_f32 v{CO}, v{P+4}, v56"); e(f"v_mul_f32 v{CO+1}, v{P+4}, v57")
    e(f"v_fma_f32 v{CO}, -v{P+5}, v57, v{CO}"); e(f"v_fma_f32 v{CO+1}, v{P+5}, v56, v{CO+1}")
    items = [(Z1, 1, T), (Z8, 8, T+2), (Z256, 256, T+4), (B0, 128, T+6)]
    for d, p, t in items:
        e(f"v_mul_f32 v{t}, {fhex(float(p))}, v{AL}"); e(f"v_mul_f32 v{t+1}, {fhex(float(p))}, v{BE}")
    for d, p, t in items:
        e(f"v_exp_f32 v{t}, v{t}"); e(f"v_fract_f32 v{t+1}, v{t+1}")
    for d, p, t in items:
        e(f"v_cos_f32 v{d}, v{t+1}"); e(f"v_sin_f32 v{d+1}, v{t+1}")
    e("v_nop")
    for d, p, t in items:
        e(f"v_mul_f32 v{d}, v{d}, v{t}"); e(f"v_mul_f32 v{d+1}, v{d+1}, v{t}")
    def cm(d, x, y):
        return [f"v_mul_f32 v{d}, v{x}, v{y}", f"v_mul_f32 v{d+1}, v{x}, v{y+1}",
                f"v_fma_f32 v{d}, -v{x+1}, v{y+1}, v{d}", f"v_fma_f32 v{d+1}, v{x+1}, v{y}, v{d+1}"]
    def put(vec, pr):
        return [f"v_cvt_pk_bf16_f32 v{KS+vec}, v{pr}, {'-' if vec < 32 else ''}v{pr+1}"]
    for d, x, y in ((Z2, Z1, Z1), (Z512, Z256, Z256), (CB, CO, Z256), (Z4, Z2, Z2), (DB0, CO, Z512)):
        out += cm(d, x, y)
    sA = [('p', 32, A0)]; cur, oth = A0, A1
    for b in range(1, 16):
        sA += [('m', oth, cur, Z8), ('p', 32 + b, oth)]; cur, oth = oth, cur
    sB = [('p', 48, B0)]; cur, oth = B0, B1
    for b in range(17, 32):
        sB += [('m', oth, cur, Z8), ('p', 32 + b, oth)]; cur, oth = oth, cur
    sC = [('p', 0, CO)]; cur = CO
    for ee in range(1, 8):
        d = (C0, C1_)[ee % 2]; sC += [('m', d, cur, Z1), ('p', ee, d)]; cur = d
    sC += [('p', 8, CB), ('m', C0, CB, Z2), ('p', 9, C0), ('m', C1_, C0, Z2), ('p', 10, C1_), ('p', 12, C1_),
           ('m', C0, C1_, Z2), ('p', 13, C0), ('m', C1_, C0, Z2), ('p', 14, C1_)]
    sD = [('p', 16, DB0), ('m', D0, DB0, Z4), ('p', 17, D0), ('p', 20, D0), ('m', D1, D0, Z4), ('p', 21, D1),
          ('m', DB1, DB0, Z256), ('p', 18, DB1), ('m', D0, DB1, Z4), ('p', 19, D0), ('p', 22, D0), ('m', D1, D0, Z4), ('p', 23, D1)]
    prev, nxt = DB1, DB0
    for q in range(4):
        sD += [('m', nxt, prev, Z256), ('p', 24 + q, nxt), ('m', (D0, D1)[q % 2], nxt, Z8), ('p', 28 + q, (D0, D1)[q % 2])]
        prev, nxt = nxt, prev
    seqs = [sA, sB, sC, sD]; pos = [0]*4
    while any(pos[q] < len(seqs[q]) for q in range(4)):
        for q in range(4):
            if pos[q] < len(seqs[q]):
                st = seqs[q][pos[q]]; pos[q] += 1
                out += put(st[1], st[2]) if st[0] == 'p' else cm(st[1], st[2], st[3])
    return out

def kv_writes():
    pre = [f"s_mul_i32 s{S_T0}, s{S_CH}, {KV_CH}", f"s_lshl_b32 s{S_T1}, s{S_MH}, 8", f"s_add_u32 s{S_T0}, s{S_T0}, s{S_T1}",
           f"s_add_u32 s{S_T0}, s{S_T0}, {L_KV}", f"v_lshl_add_u32 v58, v{V_LANE}, 2, s{S_T0}"]
    return pre + [f"ds_write_b32 v58, v{KS+v} offset:{v*528}" for v in range(64) if v not in (11, 15)]

def wd_touch(a):
    a.e(f"s_mul_i32 s{S_T0}, s{S_WG}, 5504")
    a.e(f"s_lshl_b32 s{S_T1}, s{S_W}, 10")
    a.e(f"s_add_u32 s{S_T0}, s{S_T0}, s{S_T1}")
    a.e(f"v_lshl_add_u32 v52, v{V_LANE}, 4, s{S_T0}")
    mk_srd(a, SRD_WD, P_WD, 1376 * 1024)
    a.vm(f"buffer_load_dwordx4 v[136:139], v52, s[{SRD_WD}:{SRD_WD+3}], 0 offen", "pf")
    a.e(f"v_add_u32 v52, 4096, v52")
    a.vm(f"buffer_load_dwordx4 v[136:139], v52, s[{SRD_WD}:{SRD_WD+3}], 0 offen", "pf")

def y_clear(a):
    a.e(f"s_and_b32 s{S_T0}, s{S_WG}, 7")
    a.e(f"s_lshr_b32 s{S_T1}, s{S_WG}, 3")
    a.e(f"s_lshl_b32 s{S_T0}, s{S_T0}, 6")
    a.e(f"s_lshl_b32 s{S_T1}, s{S_T1}, 1")
    a.e(f"s_add_u32 s{S_T0}, s{S_T0}, s{S_T1}")
    a.e(f"s_lshl_b32 s{S_T0}, s{S_T0}, 7")
    a.e(f"s_add_u32 s{S_T0}, s{S_T0}, {WS_Y}")
    a.e(f"s_lshl_b32 s{S_T1}, s{S_W}, 6")
    a.e(f"v_add_u32 v52, s{S_T1}, v{V_LANE}")
    a.e(f"v_lshrrev_b32 v53, 4, v52")
    a.e(f"v_lshlrev_b32 v53, 16, v53")
    a.e(f"v_and_b32 v52, 15, v52")
    a.e(f"v_lshl_add_u32 v52, v52, 4, v53")
    a.e(f"v_add_u32 v52, s{S_T0}, v52")
    a.e(f"v_add_u32 v53, {16*65536}, v52")
    for q in range(4): a.e(f"v_mov_b32 v{128+q}, -1")
    a.vm(f"global_store_dwordx4 v52, v[128:131], s[{P_WS}:{P_WS+1}] sc1", "ycl")
    a.vm(f"global_store_dwordx4 v53, v[128:131], s[{P_WS}:{P_WS+1}] sc1", "ycl")

def xt_loads(a):
    a.e(f"s_and_b32 s{S_T0}, s{S_WG}, 7")
    a.e(f"s_lshr_b32 s{S_T1}, s{S_WG}, 3")
    a.e(f"s_lshl_b32 s{S_T0}, s{S_T0}, 6")
    a.e(f"s_lshl_b32 s{S_T1}, s{S_T1}, 1")
    a.e(f"s_add_u32 s{S_T0}, s{S_T0}, s{S_T1}")
    a.e(f"s_lshl_b32 s{S_T0}, s{S_T0}, 4")
    a.e(f"s_lshl_b32 s{S_T1}, s{S_W}, 19")
    a.e(f"s_add_u32 s{S_T0}, s{S_T0}, s{S_T1}")
    a.e(f"s_add_u32 s{S_T0}, s{S_T0}, {WS_XT}")
    a.e(f"v_lshrrev_b32 v52, 1, v{V_LANE}")
    a.e(f"v_lshlrev_b32 v52, 13, v52")
    a.e(f"v_and_b32 v53, 1, v{V_LANE}")
    a.e(f"v_lshl_add_u32 v52, v53, 4, v52")
    a.e(f"v_add_u32 v52, s{S_T0}, v52")
    a.vm(f"global_load_dwordx4 {vr(C_XT,4)}, v52, s[{P_WS}:{P_WS+1}] sc1", "xt")
    a.e(f"v_add_u32 v52, {32*8192}, v52")
    a.vm(f"global_load_dwordx4 {vr(C_XT+4,4)}, v52, s[{P_WS}:{P_WS+1}] sc1", "xt")
    a.e(f"s_add_u32 s{S_T0}, s{S_T0}, {64*8192}")
    a.e(f"v_lshl_add_u32 v53, v53, 4, s{S_T0}")
    a.vm(f"global_load_dword v160, v53, s[{P_WS}:{P_WS+1}] sc1", "xt")

def u_build(a):
    a.vm_wait("xt")
    O = 132
    a.e(f"v_add_u32 v48, 2, v{V_LANE}")
    a.e("v_and_b32 v48, 63, v48")
    a.e("v_lshlrev_b32 v48, 2, v48")
    a.e(f"ds_bpermute_b32 v49, v48, v{C_XT}")
    a.e(f"ds_bpermute_b32 v50, v48, v{C_XT+4}")
    for q in range(2):
        X = C_XT + 4*q
        for k in range(3):
            a.e(f"v_alignbit_b32 v{O+4*q+k}, v{X+k+1}, v{X+k}, 16")
    a.e(f"v_and_b32 v51, 1, v{V_LANE}")
    a.e(f"v_mul_u32_u24 v51, {UU_CH}, v51")
    a.e(f"v_lshrrev_b32 v48, 1, v{V_LANE}")
    a.e("v_lshl_add_u32 v51, v48, 4, v51")
    a.e(f"s_lshl_b32 s{S_T0}, s{S_W}, 10")
    a.e(f"s_add_u32 s{S_T0}, s{S_T0}, {L_UU + 32}")
    a.e(f"v_add_u32 v51, s{S_T0}, v51")
    a.e(f"v_cmp_gt_u32 vcc, 62, v{V_LANE}")
    a.e("s_waitcnt lgkmcnt(0)")
    a.e("v_cndmask_b32 v49, v50, v49, vcc")
    a.e("v_cndmask_b32 v50, v160, v50, vcc")
    a.e(f"v_alignbit_b32 v{O+3}, v49, v{C_XT+3}, 16")
    a.e(f"v_alignbit_b32 v{O+7}, v50, v{C_XT+7}, 16")
    a.e(f"ds_write_b128 v51, {vr(C_XT,4)}")
    a.e(f"ds_write_b128 v51, {vr(C_XT+4,4)} offset:512")
    a.e(f"ds_write_b128 v51, {vr(O,4)} offset:4160")
    a.e(f"ds_write_b128 v51, {vr(O+4,4)} offset:{4160+512}")
    lab = a.label("nopad")
    a.e(f"s_cmp_lg_u32 s{S_W}, 0")
    a.e(f"s_cbranch_scc1 {lab}")
    a.e(f"v_lshlrev_b32 v48, 16, v{C_XT}")
    a.e(f"v_lshrrev_b32 v49, 3, v{V_LANE}")
    a.e(f"v_mul_u32_u24 v49, {UU_CH}, v49")
    a.e(f"v_and_b32 v50, 7, v{V_LANE}")
    a.e("v_lshl_add_u32 v49, v50, 2, v49")
    a.e(f"v_add_u32 v49, {L_UU}, v49")
    a.e("v_mov_b32 v50, 0")
    a.e(f"s_mov_b64 s[{S_EXEC}:{S_EXEC+1}], exec")
    a.e("s_mov_b64 exec, 0xffff")
    a.e("ds_write_b32 v49, v50")
    a.e("s_mov_b64 exec, 0x7f7f")
    a.e("ds_write_b32 v49, v50 offset:4160")
    a.e("s_mov_b64 exec, 3")
    a.e(f"ds_write_b32 v51, v48 offset:{4160 - 4}")
    a.e(f"s_mov_b64 exec, s[{S_EXEC}:{S_EXEC+1}]")
    a.e(f"{lab}:")

CV_A, CV_B, CV_ACC = [16, 80], [48, 112], 144
CVA, CVB, V_DSK = 2, 10, 11
def conv_addr(a):
    t = 12
    a.e(f"v_and_b32 v{t}, 15, v{V_LANE}")
    a.e(f"v_lshrrev_b32 v{t+1}, 4, v{V_LANE}")
    a.e(f"v_and_b32 v{t+2}, 1, v{t+1}")
    a.e(f"v_lshrrev_b32 v{t+1}, 1, v{t+1}")
    a.e(f"v_lshlrev_b32 v{t+3}, 5, v{t+1}")
    a.e(f"v_lshlrev_b32 v{t+2}, 4, v{t+2}")
    a.e(f"v_sub_u32 v{t+3}, v{t+3}, v{t+2}")
    a.e(f"s_lshl_b32 s{S_T2}, s{S_MH}, 6")
    a.e(f"s_mul_i32 s{S_T0}, s{S_CH}, {KR_CH}")
    a.e(f"s_add_u32 s{S_T0}, s{S_T0}, {L_KR + 496}")
    a.e(f"s_add_u32 s{S_T0}, s{S_T0}, s{S_T2}")
    a.e(f"v_lshlrev_b32 v{t+2}, 5, v{t}")
    a.e(f"v_sub_u32 v{t+2}, v{t+3}, v{t+2}")
    a.e(f"v_add_u32 v{CVB}, s{S_T0}, v{t+2}")
    a.e(f"s_mul_i32 s{S_T0}, s{S_CH}, {UU_CH}")
    a.e(f"s_add_u32 s{S_T0}, s{S_T0}, {L_UU}")
    a.e(f"s_add_u32 s{S_T0}, s{S_T0}, s{S_T2}")
    a.e(f"v_and_b32 v{t+2}, 1, v{t}")
    a.e(f"v_cmp_eq_u32 vcc, 1, v{t+2}")
    a.e(f"v_mov_b32 v{t+2}, {4160+16}")
    a.e(f"v_lshl_add_u32 v{t+3}, v{t}, 1, v{t+3}")
    a.e(f"v_mov_b32 v{t+1}, 18")
    a.e(f"v_cndmask_b32 v{t+2}, v{t+2}, v{t+1}, vcc")
    a.e(f"v_add_u32 v{t+3}, v{t+3}, v{t+2}")
    a.e(f"v_add_u32 v{CVA}, s{S_T0}, v{t+3}")
    for al in range(1, 8):
        a.e(f"v_add_u32 v{CVA+al}, {512*al}, v{CVA}")

def k_part(a):
    FR, KD = 16, 144
    a.e(f"v_and_b32 v12, 31, v{V_LANE}")
    a.e("v_mul_u32_u24 v13, 528, v12")
    a.e(f"v_lshrrev_b32 v14, 5, v{V_LANE}")
    a.e("v_lshl_add_u32 v13, v14, 4, v13")
    a.e(f"s_mul_i32 s{S_T0}, s{S_CH}, {KV_CH}")
    a.e(f"s_add_u32 s{S_T0}, s{S_T0}, {L_KV}")
    a.e(f"v_add_u32 v13, s{S_T0}, v13")
    for k in range(16):
        a.e(f"ds_read_b128 {vr(FR+8*k,4)}, v13 offset:{k*32}")
        a.e(f"ds_read_b128 {vr(FR+8*k+4,4)}, v13 offset:{32*528 + k*32}")
    a.e(f"s_mul_i32 s{S_T0}, s{S_CH}, {KR_CH}")
    a.e(f"s_add_u32 s{S_T0}, s{S_T0}, {L_KR + 504}")
    a.e("v_lshlrev_b32 v12, 4, v12")
    a.e("v_lshl_add_u32 v12, v14, 3, v12")
    a.e(f"v_sub_u32 v12, s{S_T0}, v12")
    a.e(f"s_add_u32 s{S_T0}, s{S_T0}, {4096 - 504}")
    a.e(f"v_lshl_add_u32 v15, v{V_LANE}, 4, s{S_T0}")
    a.e("s_waitcnt lgkmcnt(0)")
    for k in range(16):
        a.e(f"v_mfma_f32_32x32x16_bf16 {vr(KD,16)}, {vr(FR+8*k,4)}, {vr(FR+8*k+4,4)}, {'0' if k == 0 else vr(KD,16)}")
    lab1, lab2 = a.label("ex1"), a.label("ex2")
    a.e(f"v_cmp_le_u32 vcc, 32, v{V_LANE}")
    a.e(f"v_and_b32 v16, 1, v{V_LANE}")
    a.e(f"v_cmp_eq_u32 s[{S_TMP}:{S_TMP+1}], 1, v16")
    for q in range(4): a.e(f"v_mov_b32 v{24+q}, 0")
    a.e("s_nop 4")
    a.e(f"s_cmp_eq_u32 s{S_MH}, 0")
    a.e(f"s_cbranch_scc0 {lab1}")
    D = KD
    a.e(f"v_cvt_pk_bf16_f32 v20, v{D+3}, v{D+2}")
    a.e(f"v_cvt_pk_bf16_f32 v21, v{D+1}, v{D}")
    a.e(f"v_cvt_pk_bf16_f32 v22, v{D+6}, v{D+5}")
    a.e(f"v_cvt_pk_bf16_f32 v23, v{D+4}, v{D+4}")
    a.e("ds_write_b64 v12, v[20:21] offset:3584")
    a.e("ds_write_b64 v12, v[22:23] offset:3072")
    a.e(f"s_mov_b64 s[{S_EXEC}:{S_EXEC+1}], exec")
    a.e("s_mov_b64 exec, 0x3fffffff")
    a.e("ds_write_b128 v15, v[24:27]")
    a.e(f"s_mov_b64 exec, s[{S_EXEC}:{S_EXEC+1}]")
    a.e(f"s_branch {lab2}")
    a.e(f"{lab1}:")
    D = KD + 8
    for q in range(4):
        a.e(f"v_mov_b32 v{28+2*q}, v{D+4+q}")
        a.e(f"v_mov_b32 v{29+2*q}, v{D+4+q}")
    for q in range(2):
        A_, B_ = D + 2*q, D + 2*q + 1
        a.e(f"v_cndmask_b32 v24, v{A_}, v{B_}, vcc")
        a.e(f"v_cvt_pk_bf16_f32 v{20+2*q+0}, v{B_}, v24")
        a.e(f"v_cvt_pk_bf16_f32 v{20+2*q+1}, v{A_}, v{A_}")
    for q in range(4):
        a.e(f"v_permlane32_swap_b32 v{28+2*q}, v{29+2*q}")
    a.e("ds_write_b64 v12, v[20:21] offset:2560")
    a.e("ds_write_b64 v12, v[22:23] offset:2048")
    for q in range(4):
        a.e(f"v_cndmask_b32 v{28+2*q}, v{28+2*q}, v{D+4+q}, s[{S_TMP}:{S_TMP+1}]")
    for q in range(4):
        a.e(f"v_cvt_pk_bf16_f32 v{36+2*q}, v{D+4+q}, v{D+4+q}")
        a.e(f"v_cvt_pk_bf16_f32 v{37+2*q}, v{D+4+q}, v{28+2*q}")
    for q in range(4):
        a.e(f"ds_write_b64 v12, {vr(36+2*q,2)} offset:{1536 - 512*q}")
    a.e(f"{lab2}:")

def conv_main(a, late, dmas):
    def reads(st, q):
        r = [f"ds_read_b128 {vr(CV_B[st]+4*al,4)}, v{CVB} offset:{512*(7-al) + 128*q}" for al in range(8)]
        for al in range(8):
            r.append(f"ds_read2_b32 {vr(CV_A[st]+4*al,2)}, v{CVA+al} offset0:{32*q} offset1:{32*q+1}")
            r.append(f"ds_read2_b32 {vr(CV_A[st]+4*al+2,2)}, v{CVA+al} offset0:{32*q+2} offset1:{32*q+3}")
        return r
    for x in reads(0, 0): a.e(x)
    st = 0
    for q in range(4):
        a.e("s_waitcnt lgkmcnt(0)" if q else "s_waitcnt lgkmcnt(14)")
        mf = []
        for al in range(8):
            for be in range(8 - al):
                I = al + be
                mf.append(f"v_mfma_f32_16x16x32_bf16 {vr(CV_ACC+4*I,4)}, {vr(CV_A[st]+4*al,4)}, {vr(CV_B[st]+4*be,4)}, {'0' if (q == 0 and al == 0) else vr(CV_ACC+4*I,4)}")
        slots = {i: [] for i in range(36)}
        if q == 0: slots[7].append("s_waitcnt lgkmcnt(0)")
        if q < 3:
            base = 8 if q == 0 else 0
            for k, x in enumerate(reads(st ^ 1, q + 1)): slots[base + k].append(x)
        for sl, it in late.get(q, []): slots[sl].append(it)
        dl = dmas.get(q, [])
        for k, g in enumerate(dl): place(slots, 1 + (k * 33) // len(dl), g)
        stamp(a, f"cv{q}")
        sched(a, mf, slots)
        st ^= 1

def conv_finish(a):
    a.e(f"s_lshl_b32 s{S_T0}, s{S_W}, 12")
    a.e(f"s_add_u32 s{S_T0}, s{S_T0}, {L_CX}")
    a.e(f"v_lshl_add_u32 v2, v{V_LANE}, 4, s{S_T0}")
    a.e(f"s_xor_b32 s{S_T1}, s{S_W}, 1")
    a.e(f"s_lshl_b32 s{S_T1}, s{S_T1}, 12")
    a.e(f"s_add_u32 s{S_T1}, s{S_T1}, {L_CX}")
    a.e(f"v_lshl_add_u32 v3, v{V_LANE}, 4, s{S_T1}")
    a.e(f"s_mul_i32 s{S_T0}, s{S_CH}, {UU_CH}")
    a.e(f"s_add_u32 s{S_T0}, s{S_T0}, {L_UU + 32}")
    a.e(f"s_lshl_b32 s{S_T1}, s{S_MH}, 11")
    a.e(f"s_add_u32 s{S_T0}, s{S_T0}, s{S_T1}")
    a.e(f"v_and_b32 v4, 15, v{V_LANE}")
    a.e(f"v_lshrrev_b32 v5, 4, v{V_LANE}")
    a.e(f"v_lshlrev_b32 v6, 5, v4")
    a.e(f"v_lshl_add_u32 v6, v5, 3, v6")
    a.e(f"v_add_u32 v6, s{S_T0}, v6")
    lab1, lab2 = a.label("cx1"), a.label("cx2")
    a.e(f"s_cmp_eq_u32 s{S_MH}, 0")
    a.e(f"s_cbranch_scc1 {lab1}")
    for k in range(4):
        a.e(f"ds_write_b128 v2, {vr(CV_ACC+4*k,4)} offset:{1024*k}")
    for q in range(8):
        a.e(f"v_pk_mul_f32 {vr(CV_ACC+2*q,2)}, {vr(CV_ACC+16+2*q,2)}, 1.0 op_sel_hi:[1,0]")
    a.e(f"s_branch {lab2}")
    a.e(f"{lab1}:")
    for k in range(4):
        a.e(f"ds_write_b128 v2, {vr(CV_ACC+16+4*k,4)} offset:{1024*k}")
    a.e(f"{lab2}:")
    for k in range(4):
        a.e(f"ds_read_b64 {vr(16+2*k,2)}, v6 offset:{512*k}")
    a.e(f"s_lshl_b32 s{S_T0}, s{S_MH}, 20")
    a.e(f"s_lshl_b32 s{S_T1}, s{S_D}, 7")
    a.e(f"s_add_u32 s{S_T0}, s{S_T0}, s{S_T1}")
    a.e(f"s_add_u32 s{S_T0}, s{S_T0}, {WS_Y}")
    a.e(f"v_lshrrev_b32 v7, 2, v4")
    a.e(f"v_lshlrev_b32 v7, 16, v7")
    a.e(f"v_and_b32 v8, 3, v4")
    a.e(f"v_lshl_add_u32 v7, v8, 5, v7")
    a.e(f"v_lshl_add_u32 v7, v5, 3, v7")
    a.e(f"v_add_u32 v7, s{S_T0}, v7")
    a.e("s_waitcnt lgkmcnt(0)")
    a.bar("cx")
    for k in range(4):
        a.e(f"ds_read_b128 {vr(64+4*k,4)}, v3 offset:{1024*k}")
    U = 32
    for k in range(4):
        a.e(f"v_lshlrev_b32 v{U+4*k}, 16, v{16+2*k}")
        a.e(f"v_and_b32 v{U+4*k+1}, 0xffff0000, v{16+2*k}")
        a.e(f"v_lshlrev_b32 v{U+4*k+2}, 16, v{17+2*k}")
        a.e(f"v_and_b32 v{U+4*k+3}, 0xffff0000, v{17+2*k}")
    a.e(f"v_mov_b32 v10, v{V_DSK}")
    for k in range(8):
        a.e(f"v_pk_fma_f32 {vr(CV_ACC+2*k,2)}, {vr(U+2*k,2)}, v[10:11], {vr(CV_ACC+2*k,2)}")
    a.vm_wait("wd3", "wd4", "wd5", "wd6")
    a.e("s_waitcnt lgkmcnt(0)")
    a.bar("cd")
    for k in range(8):
        a.e(f"v_pk_add_f32 {vr(CV_ACC+2*k,2)}, {vr(CV_ACC+2*k,2)}, {vr(64+2*k,2)}")
    for k in range(8):
        a.e(f"v_cvt_pk_bf16_f32 v{16+k}, v{CV_ACC+2*k}, v{CV_ACC+2*k+1}")
    for k in range(4):
        a.vm(f"global_store_dwordx2 v7, {vr(16+2*k,2)}, s[{P_WS}:{P_WS+1}] sc1", "pubY")
        if k < 3: a.e(f"v_add_u32 v7, {4*65536}, v7")


def role_c(a):
    a.e("L_role_c:")
    c_setup(a)
    a_read_addr(a, C_AADDR, 12)
    a.e("s_waitcnt lgkmcnt(0)")
    a.e(f"s_mov_b32 s{S_ROLE}, 1")
    stamp(a, 0, real=True); stamp(a, 1)
    mk_srd(a, SRD_X, P_X, 2048 * 1024)
    mk_srd(a, SRD_WG, P_WG, 512 * 2752)
    mk_srd(a, SRD_WU, P_WU, 512 * 2752)
    epoch_load(a, 13, 54)
    for g in stage_dma(0): emit(a, g)
    d1 = stage_dma(1)
    n1 = OPT.get("n1", 4)
    for g in d1[:n1]: emit(a, g)
    a.vm_wait("st0")
    a.bar("b0")
    stamp(a, "b0")
    for g in d1[n1:]: emit(a, g)
    epoch_finish(a, 54)
    cs_block(a)
    for g in stage_dma(2): emit(a, g)
    kgen_loads(a)
    prog = [lambda a: a.vm_wait("kp")] + kgen_prog()
    nst = 4
    per = (len(prog) + nst - 1) // nst
    pos = 0
    for stage in range(7):
        a.e("s_waitcnt lgkmcnt(0)")
        a.vm_wait(f"st{stage+1}")
        a.bar(f"s{stage}")
        stamp(a, f"cs{stage}")
        dm = stage_dma(stage + 3) if stage + 3 < 8 else []
        if stage == OPT.get("touchstage", 2) and OPT.get("wdtouch", 1):
            wd_touch(a)
        if stage == OPT.get("yclrstage", 3):
            y_clear(a)
        work = []
        if 1 <= stage <= nst:
            work = prog[pos:pos + per]; pos += per
        if stage == 5 and OPT.get("kvearly", 1):
            work = kv_writes()[:OPT.get("kvsplit", 35)]
        if stage == 6:
            work = (kv_writes()[OPT.get("kvsplit", 35):] if OPT.get("kvearly", 1) else [])
        if stage == OPT.get("cpoll", 5):
            work = work + [lambda a: ln_poll_issue(a, 59, 132)]
        if stage == OPT.get("cchk", 6):
            work = [lambda a: ln_poll_check(a, 59, 132), xt_loads] + work
        step = max(1, len(work) // max(1, len(dm))) if dm else len(work)
        while dm or work:
            if dm: emit(a, dm.pop(0))
            for _ in range(step if dm else len(work)):
                if work: emit(a, work.pop(0))
    assert pos >= len(prog)
    a.e(f"v_mov_b32 v{V_DSK}, v{C_P+7}")
    a.e("s_waitcnt lgkmcnt(0)")
    a.bar("rf")
    stamp(a, "crf")
    if OPT.get("cprio2") is not None: a.e(f"s_setprio {OPT['cprio2']}")
    if OPT.get("cchk", 6) > 6:
        ln_poll_check(a, 59, 132)
        xt_loads(a)
    if not OPT.get("kvearly", 1):
        for x in kv_writes(): a.e(x)
        a.e("s_waitcnt lgkmcnt(0)")
        a.bar("kv")
    stamp(a, "ckv")
    k_part(a)
    stamp(a, "ckp")
    u_build(a)
    stamp(a, "cub")
    conv_addr(a)
    wd_setup(a, 13, 12)
    a.vm_wait("ycl")
    a.e("s_waitcnt lgkmcnt(0)")
    a.bar("k")
    stamp(a, "ck")
    conv_main(a, {OPT.get("pbar", 2): [(OPT.get("pslot", 20), lambda a: a.bar("p"))]},
              {0: wd_groups(3, 12) + wd_groups(6, 12)[:4], 1: wd_groups(6, 12)[4:] + wd_groups(4, 12)[:4], 2: wd_groups(4, 12)[4:] + wd_groups(5, 12)[:6], 3: wd_groups(5, 12)[6:]})
    stamp(a, "convm")
    conv_finish(a)
    stamp(a, "conv")
    a.e("s_waitcnt vmcnt(0)")
    stamp(a, 9, real=True)
    prof_store(a)
    a.e("s_endpgm")


def main():
    global PROF
    PROF = "prof" in sys.argv
    for x in sys.argv[1:]:
        if "=" in x:
            k, v = x.split("=")
            if k == "stamps": STAMPS[:] = v.split(",")
            else: OPT[k] = int(v)
    shared = [0]
    a0 = A2(shared); entry(a0)
    g = A2(shared); g.vmq = list(a0.vmq); role_g(g)
    c = A2(shared); c.vmq = list(a0.vmq); role_c(c)
    gb = [b for b in g.bars if b != "fin"]
    assert gb == c.bars, (gb, c.bars)
    out = [HDR, f"; @launch grid=(256,1,1) block=(512,1,1) lds={LDS_BYTES}",
           '.amdgcn_target "amdgcn-amd-amdhsa--gfx950"', '.text', a0.text(), g.text(), c.text(),
           "L_end:", "  s_endpgm", "  .fill 8448, 4, 0xbf800000", '.section .rodata,"a"', kd(NAME, 176, 80)]
    print('\n'.join(out))

if __name__ == "__main__":
    main()
```

```python
import sys, math
from asmlib import *

NAME = "parallel_sum__ssm_conv_s4__geglu_ffn__prompt_kernel"
OPT = {}
PROF = False
STAMPS = []
HDR = open('parallel_sum__ssm_conv_s4__geglu_ffn__prompt.s.ref').read().split('; Override')[0].rstrip()

WS_FLAG_LN, WS_FLAG_H, WS_FLAG_Y = 4096, 8192, 12288
WS_STATS, WS_CS = 65536, 131072
WS_XT, WS_Y, WS_H = 1 << 20, 4 << 20, 8 << 20
WS_DUMMY, WS_PROF = 15 << 20, 16 << 20
SPIN_MAX = 1 << 17

S_WG, S_W, S_I, S_J, S_TW, S_FW, S_U0, S_KC = 2, 3, 4, 5, 6, 7, 8, 9
S_T0, S_T1, S_T2, S_SPIN, S_TAG, S_WDL = 10, 11, 12, 13, 14, 15
P_X, P_ARE, P_AIM, P_BRE, P_BIM, P_CRE, P_CIM, P_LDT = 16, 18, 20, 22, 24, 26, 28, 30
P_DSK, P_BX, P_WG, P_WU, P_WD, P_OUT, P_DBG, P_WS = 32, 34, 36, 38, 40, 42, 44, 46
S_EP, S_ROLE = 34, 35
SRD_X, SRD_WG, SRD_WU, SRD_WD = 48, 52, 56, 60
S_XW, S_WW, S_XO, S_WO, S_LX, S_LW = 64, 65, 66, 67, 68, 69
S_EXEC = 70
S_NU, S_CSH = 72, 73
S_WDS = 73
S_TMP = 74
S_D, S_CH, S_MH, S_TH, S_NT, S_WDO = 76, 77, 78, 79, 80, 81
S_PROF = 82

LDS_BYTES = 163840
SLOT = 41216
L_X, L_G, L_U = 0, 16384, 28704
L_LN = 3 * SLOT
KV_CH, KR_CH, UU_CH = 64 * 528, 4608, 8320
L_KV = 2 * SLOT
L_KR = 150016
L_UU = 24576
L_CX = 131584
WD = {1: (0, 6144, 0, 3), 2: (SLOT, 10240, 3, 5),
      3: (115200, 4096, 8, 2),
      4: (0, 6144, 10, 3), 5: (SLOT, 10240, 13, 5), 6: (2 * SLOT, 8192, 18, 4)}
RED_UNIT = [115200 + 4096 * u for u in range(8)] + [L_UU + 4096 * u for u in range(4)]
L_YB = 150016

V_LANE = 1


def stamp(a, idx, real=False):
    if PROF:
        if isinstance(idx, str):
            if idx not in STAMPS: return
            idx = 2 + STAMPS.index(idx)
        a.e(f"{'s_memrealtime' if real else 's_memtime'} s[{S_PROF+2*idx}:{S_PROF+2*idx+1}]")

def prof_store(a):
    if not PROF: return
    a.e("s_waitcnt lgkmcnt(0)")
    for q in range(10):
        a.e(f"v_mov_b32 v{4+q}, s{S_PROF+2*q}")
    a.e(f"s_lshl_b32 s{S_T0}, s{S_ROLE}, 2")
    a.e(f"s_add_u32 s{S_T0}, s{S_T0}, s{S_W}")
    a.e(f"s_lshl_b32 s{S_T1}, s{S_WG}, 3")
    a.e(f"s_add_u32 s{S_T0}, s{S_T0}, s{S_T1}")
    a.e(f"s_lshl_b32 s{S_T0}, s{S_T0}, 6")
    a.e(f"s_add_u32 s{S_T0}, s{S_T0}, {WS_PROF}")
    a.e(f"v_mov_b32 v2, s{S_T0}")
    a.e("s_mov_b64 exec, 1")
    a.e(f"global_store_dwordx4 v2, v[4:7], s[{P_WS}:{P_WS+1}]")
    a.e(f"global_store_dwordx4 v2, v[8:11], s[{P_WS}:{P_WS+1}] offset:16")
    a.e(f"global_store_dwordx2 v2, v[12:13], s[{P_WS}:{P_WS+1}] offset:32")


class A2(Asm):
    def __init__(self, shared):
        super().__init__()
        self.bars = []
        self.shared = shared
    def label(self, base):
        self.shared[0] += 1
        return f"L_{base}_{self.shared[0]}"
    def bar(self, name):
        self.e("s_barrier")
        self.bars.append(name)


class Rec:
    def __init__(self, a):
        self.ops = []; self.a = a
    def e(self, s):
        for l in s.split('\n'):
            if l.strip(): self.ops.append(('e', l.strip()))
    def vm(self, s, tag): self.ops.append(('vm', s, tag))
    def vm_wait(self, *tags): self.ops.append(('wait', tags))
    def label(self, b): return self.a.label(b)
    def bar(self, name): self.ops.append(('bar', name))

def replay(a, ops, fillers, every, start=0):
    fill = list(fillers); n = 0
    for o in ops:
        if o[0] == 'e': a.e(o[1])
        elif o[0] == 'vm': a.vm(o[1], o[2])
        elif o[0] == 'wait': a.vm_wait(*o[1])
        elif o[0] == 'bar': a.bar(o[1])
        n += 1
        if fill and n >= start and (n - start) % every == 0:
            emit(a, fill.pop(0))
    for g in fill: emit(a, g)

def emit(a, g):
    if callable(g): g(a)
    elif isinstance(g, tuple): a.vm(g[0], g[1])
    elif isinstance(g, list):
        for t in g: emit(a, t)
    else: a.e(g)

class Dma(list):
    def __init__(self, pre, m0, ld, post=()):
        super().__init__(list(pre) + [m0, "s_nop 0", ld] + list(post))
        self.head = list(pre) + [m0]
        self.tail = [ld] + list(post)

def place(slots, p, g):
    if isinstance(g, Dma) and p >= 1:
        slots[p - 1].append(g.head); slots[p].insert(0, g.tail)
    else:
        slots[p].append(g)

def sched(a, mf, slots):
    for i, m in enumerate(mf):
        a.e(m)
        for it in slots.get(i, []): emit(a, it)

def mk_srd(a, srd, ptr, nbytes):
    a.e(f"s_mov_b32 s{srd}, s{ptr}")
    a.e(f"s_and_b32 s{srd+1}, s{ptr+1}, 0xffff")
    a.e(f"s_mov_b32 s{srd+2}, {nbytes}")
    a.e(f"s_mov_b32 s{srd+3}, 0x20000")

def delay(a, key):
    if OPT.get(key):
        lab = a.label("delay")
        a.e(f"s_mov_b32 s{S_SPIN}, 0")
        a.e(f"{lab}:")
        for q in range(16): a.e("s_nop 3")
        a.e(f"s_add_u32 s{S_SPIN}, s{S_SPIN}, 1")
        a.e(f"s_cmp_lt_u32 s{S_SPIN}, {OPT[key]}")
        a.e(f"s_cbranch_scc1 {lab}")

def dpp_reduce(a, regs):
    steps = ["quad_perm:[1,0,3,2] row_mask:0xf bank_mask:0xf", "quad_perm:[2,3,0,1] row_mask:0xf bank_mask:0xf",
             "row_half_mirror row_mask:0xf bank_mask:0xf", "row_mirror row_mask:0xf bank_mask:0xf",
             "row_bcast:15 row_mask:0xa bank_mask:0xf", "row_bcast:31 row_mask:0xc bank_mask:0xf"]
    assert len(regs) >= 3
    for st in steps:
        for r in regs:
            a.e(f"v_add_f32_dpp v{r}, v{r}, v{r} {st}")
    a.e("s_nop 1")


def entry(a):
    a.e(f".globl {NAME}\n.p2align 8\n.type {NAME},@function\n{NAME}:")
    a.e(f"s_cmp_ge_u32 s{S_WG}, 256")
    a.e(f"s_cbranch_scc1 L_end")
    a.e("s_load_dwordx16 s[16:31], s[0:1], 0")
    a.e("s_load_dwordx16 s[32:47], s[0:1], 64")
    a.e("s_getpc_b64 s[74:75]")
    a.e(f"s_lshr_b32 s{S_T1}, s{S_WG}, 3")
    a.e(f"s_and_b32 s{S_T2}, s{S_T1}, 15")
    a.e(f"s_lshl_b32 s{S_T2}, s{S_T2}, 11")
    a.e(f"v_lshl_add_u32 v2, v0, 2, s{S_T2}")
    a.vm(f"global_load_dword v175, v2, s[74:75]", "pf")
    a.e(f"v_and_b32 v{V_LANE}, 63, v0")
    a.e(f"v_lshrrev_b32 v3, 6, v0")
    a.e(f"s_and_b32 s{S_T0}, s{S_WG}, 7")
    a.e(f"v_readfirstlane_b32 s{S_W}, v3")
    a.e(f"s_lshr_b32 s{S_I}, s{S_T0}, 1")
    a.e(f"s_lshl_b32 s{S_I}, s{S_I}, 2")
    a.e(f"s_lshr_b32 s{S_T2}, s{S_T1}, 3")
    a.e(f"s_add_u32 s{S_I}, s{S_I}, s{S_T2}")
    a.e(f"s_and_b32 s{S_J}, s{S_T0}, 1")
    a.e(f"s_lshl_b32 s{S_J}, s{S_J}, 3")
    a.e(f"s_and_b32 s{S_T2}, s{S_T1}, 7")
    a.e(f"s_add_u32 s{S_J}, s{S_J}, s{S_T2}")
    a.e(f"s_lshr_b32 s{S_TMP}, s{S_W}, 2")
    a.e(f"s_and_b32 s{S_W}, s{S_W}, 3")
    a.e(f"s_lshr_b32 s{S_TW}, s{S_W}, 1")
    a.e(f"s_and_b32 s{S_FW}, s{S_W}, 1")
    a.e(f"s_mul_i32 s{S_U0}, s{S_J}, 3")
    a.e(f"s_lshl_b32 s{S_T2}, s{S_J}, 1")
    a.e(f"s_add_u32 s{S_T2}, s{S_T2}, 11")
    a.e(f"s_min_u32 s{S_U0}, s{S_U0}, s{S_T2}")
    a.e(f"s_cmp_lt_u32 s{S_J}, 11")
    a.e(f"s_cselect_b32 s{S_NU}, 6, 4")
    a.e(f"s_lshr_b32 s{S_CSH}, s{S_I}, 3")
    a.e(f"s_lshl_b32 s{S_D}, s{S_T0}, 6")
    a.e(f"s_lshl_b32 s{S_T1}, s{S_T1}, 1")
    a.e(f"s_add_u32 s{S_D}, s{S_D}, s{S_T1}")
    a.e(f"s_add_u32 s{S_D}, s{S_D}, s{S_TW}")
    a.e(f"s_mov_b32 s{S_CH}, s{S_TW}")
    a.e(f"s_mov_b32 s{S_MH}, s{S_FW}")
    a.e(f"s_lshr_b32 s{S_TH}, s{S_J}, 3")
    a.e(f"s_and_b32 s{S_NT}, s{S_J}, 7")
    a.e(f"s_cmp_lg_u32 s{S_TMP}, 0")
    a.e(f"s_cbranch_scc1 L_role_c")

def epoch_load(a, vtmp, vdst):
    a.e(f"v_mov_b32 v{vtmp}, 0")
    a.vm(f"global_load_dword v{vdst}, v{vtmp}, s[{P_WS}:{P_WS+1}] sc1", "ep")

def epoch_finish(a, vdst):
    a.vm_wait("ep")
    a.e("s_nop 0")
    a.e(f"v_readfirstlane_b32 s{S_EP}, v{vdst}")
    a.e("s_nop 3")
    a.e(f"s_mul_i32 s{S_TAG}, s{S_EP}, 0x9e3779b1")
    a.e(f"s_add_u32 s{S_TAG}, s{S_TAG}, 0x3c6ef373")

def flag_store(a, region, idx_code, va, vb):
    lab = a.label("nofl")
    a.e(f"s_cmp_lg_u32 s{S_W}, 0")
    a.e(f"s_cbranch_scc1 {lab}")
    idx_code(a)
    a.e(f"s_lshl_b32 s{S_T0}, s{S_T0}, 2")
    a.e(f"s_add_u32 s{S_T0}, s{S_T0}, {region}")
    a.e(f"v_mov_b32 v{va}, s{S_T0}")
    a.e(f"v_mov_b32 v{vb}, s{S_TAG}")
    a.e(f"s_mov_b64 s[{S_EXEC}:{S_EXEC+1}], exec")
    a.e("s_mov_b64 exec, 1")
    a.e(f"global_store_dword v{va}, v{vb}, s[{P_WS}:{P_WS+1}] sc1")
    a.e(f"s_mov_b64 exec, s[{S_EXEC}:{S_EXEC+1}]")
    a.e(f"{lab}:")

def idx_ln(a): a.e(f"s_mov_b32 s{S_T0}, s{S_WG}")
def idx_h(a):
    a.e(f"s_lshl_b32 s{S_T0}, s{S_I}, 4")
    a.e(f"s_add_u32 s{S_T0}, s{S_T0}, s{S_J}")
def idx_y(a):
    a.e(f"s_and_b32 s{S_T0}, s{S_WG}, 7")
    a.e(f"s_lshl_b32 s{S_T0}, s{S_T0}, 5")
    a.e(f"s_lshr_b32 s{S_T1}, s{S_WG}, 3")
    a.e(f"s_add_u32 s{S_T0}, s{S_T0}, s{S_T1}")

def spin_tail(a, top, ok, reloads):
    a.e(f"s_cmp_eq_u64 vcc, 0")
    a.e(f"s_cbranch_scc1 {ok}")
    a.e(f"s_add_u32 s{S_SPIN}, s{S_SPIN}, 1")
    a.e(f"s_cmp_gt_u32 s{S_SPIN}, {SPIN_MAX}")
    a.e(f"s_cbranch_scc1 {ok}")
    a.e(f"s_sleep {OPT.get('sleep', 8)}")
    for r in reloads: a.e(r)
    a.e("s_waitcnt vmcnt(0)")
    a.e(f"s_branch {top}")
    a.e(f"{ok}:")

def ln_poll_issue(a, vaddr, vdst):
    a.e(f"v_lshlrev_b32 v{vaddr}, 4, v{V_LANE}")
    a.e(f"v_add_u32 v{vaddr}, {WS_FLAG_LN}, v{vaddr}")
    a.vm(f"global_load_dwordx4 {vr(vdst,4)}, v{vaddr}, s[{P_WS}:{P_WS+1}] sc1", "pl")

def ln_poll_check(a, vaddr, vdst):
    top, ok = a.label("poll"), a.label("pollok")
    a.vm_wait("pl")
    a.e(f"s_mov_b32 s{S_SPIN}, 0")
    a.e(f"{top}:")
    a.e(f"v_cmp_ne_u32 vcc, s{S_TAG}, v{vdst}")
    for q in range(1, 4):
        a.e(f"v_cmp_ne_u32 s[74:75], s{S_TAG}, v{vdst+q}")
        a.e("s_nop 0")
        a.e("s_or_b64 vcc, vcc, s[74:75]")
    a.e("s_nop 1")
    spin_tail(a, top, ok, [f"global_load_dwordx4 {vr(vdst,4)}, v{vaddr}, s[{P_WS}:{P_WS+1}] sc1"])


G_ACC = 16
def acc(tt, ap): return G_ACC + 16 * (3 * tt + ap)
G_FR = [112, 132]
def fB(st, tt): return G_FR[st] + 4 * tt
def fA(st, ap): return G_FR[st] + 8 + 4 * ap
G_BADDR, G_AADDR = 160, 164

def a_read_addr(a, dst, t0):
    a.e(f"v_lshrrev_b32 v{t0}, 4, v{V_LANE}")
    a.e(f"v_and_b32 v{t0+1}, 1, v{t0}")
    a.e(f"v_lshrrev_b32 v{t0}, 1, v{t0}")
    a.e(f"v_bfe_u32 v{t0+2}, v{V_LANE}, 2, 2")
    a.e(f"v_lshl_add_u32 v{t0+2}, v{t0}, 3, v{t0+2}")
    a.e(f"v_mul_u32_u24 v{t0+2}, 192, v{t0+2}")
    a.e(f"v_and_b32 v{t0+3}, 3, v{V_LANE}")
    a.e(f"v_lshl_add_u32 v{t0+2}, v{t0+3}, 3, v{t0+2}")
    a.e(f"v_mul_u32_u24 v{t0+1}, {L_U - L_G}, v{t0+1}")
    a.e(f"v_add_u32 v{t0+2}, v{t0+2}, v{t0+1}")
    a.e(f"s_mul_i32 s{S_T0}, s{S_FW}, 96")
    a.e(f"s_add_u32 s{S_T0}, s{S_T0}, {L_G}")
    a.e(f"v_add_u32 v{dst}, s{S_T0}, v{t0+2}")

def g_setup(a):
    a.e(f"v_and_b32 v12, 31, v{V_LANE}")
    a.e(f"v_lshrrev_b32 v13, 5, v{V_LANE}")
    a.e(f"v_bfe_u32 v14, v12, 1, 3")
    a.e(f"s_lshl_b32 s{S_T0}, s{S_TW}, 13")
    a.e(f"v_lshl_add_u32 v15, v12, 7, s{S_T0}")
    for s_ in range(4):
        a.e(f"v_add_u32 v11, {2*s_}, v13")
        a.e(f"v_xor_b32 v11, v11, v14")
        a.e(f"v_lshl_add_u32 v{G_BADDR+s_}, v11, 4, v15")
    a_read_addr(a, G_AADDR, 12)
    a.e(f"s_lshl_b32 s{S_T0}, s{S_I}, 7")
    a.e(f"s_lshl_b32 s{S_T1}, s{S_J}, 3")
    a.e(f"s_add_u32 s{S_T0}, s{S_T0}, s{S_T1}")
    a.e(f"s_lshl_b32 s{S_T1}, s{S_W}, 1")
    a.e(f"s_add_u32 s{S_T0}, s{S_T0}, s{S_T1}")
    a.e(f"s_lshl_b32 s{S_T0}, s{S_T0}, 10")
    a.e(f"v_lshl_add_u32 v7, v{V_LANE}, 4, s{S_T0}")

def ln_first(a):
    a.vm_wait("ln")
    for r in range(2):
        for d in range(4):
            a.e(f"v_lshlrev_b32 v{16+8*r+2*d}, 16, v{44+4*r+d}")
            a.e(f"v_and_b32 v{17+8*r+2*d}, 0xffff0000, v{44+4*r+d}")
    for r in range(2):
        b, t = 16 + 8*r, 36 + 4*r
        a.e(f"v_pk_add_f32 {vr(t,2)}, {vr(b,2)}, {vr(b+2,2)}")
        a.e(f"v_pk_mul_f32 {vr(t+2,2)}, {vr(b,2)}, {vr(b,2)}")
    for r in range(2):
        b, t = 16 + 8*r, 36 + 4*r
        a.e(f"v_pk_add_f32 {vr(t,2)}, {vr(t,2)}, {vr(b+4,2)}")
        a.e(f"v_pk_fma_f32 {vr(t+2,2)}, {vr(b+2,2)}, {vr(b+2,2)}, {vr(t+2,2)}")
    for r in range(2):
        b, t = 16 + 8*r, 36 + 4*r
        a.e(f"v_pk_add_f32 {vr(t,2)}, {vr(t,2)}, {vr(b+6,2)}")
        a.e(f"v_pk_fma_f32 {vr(t+2,2)}, {vr(b+4,2)}, {vr(b+4,2)}, {vr(t+2,2)}")
    for r in range(2):
        b, t = 16 + 8*r, 36 + 4*r
        a.e(f"v_pk_fma_f32 {vr(t+2,2)}, {vr(b+6,2)}, {vr(b+6,2)}, {vr(t+2,2)}")
        a.e(f"v_add_f32 v{32+r}, v{t}, v{t+1}")
    for r in range(2):
        t = 36 + 4*r
        a.e(f"v_add_f32 v{34+r}, v{t+2}, v{t+3}")
    a.e("s_nop 0")
    dpp_reduce(a, [32, 33, 34, 35])
    for q, sr_ in enumerate((74, 75, 12, 13)):
        a.e(f"v_readlane_b32 s{sr_}, v{32+q}, 63")
    a.e("s_nop 1")
    for q, sr_ in enumerate((74, 75, 12, 13)):
        a.e(f"v_mov_b32 v{32+q}, s{sr_}")
    a.e("v_mov_b32 v36, 0x3b000000")
    a.e("v_pk_mul_f32 v[32:33], v[32:33], v[36:37] op_sel_hi:[1,0]")
    a.e("v_pk_mul_f32 v[34:35], v[34:35], v[36:37] op_sel_hi:[1,0]")
    a.e("v_pk_fma_f32 v[34:35], v[32:33], v[32:33], v[34:35] neg_lo:[1,0,0] neg_hi:[1,0,0]")
    a.e("v_max_f32 v34, 0, v34")
    a.e("v_max_f32 v35, 0, v35")
    a.e("v_cvt_pk_bf16_f32 v36, v34, v35")
    a.e("v_cvt_pk_bf16_f32 v37, v32, v33")
    a.e("v_lshlrev_b32 v34, 16, v36")
    a.e("v_and_b32 v35, 0xffff0000, v36")
    a.e("v_lshlrev_b32 v32, 16, v37")
    a.e("v_and_b32 v33, 0xffff0000, v37")
    a.e("v_add_f32 v34, 0x3727c5ac, v34")
    a.e("v_add_f32 v35, 0x3727c5ac, v35")
    a.e("v_cvt_pk_bf16_f32 v36, v34, v35")
    a.e("v_lshlrev_b32 v34, 16, v36")
    a.e("v_and_b32 v35, 0xffff0000, v36")
    a.e("v_sqrt_f32 v34, v34")
    a.e("v_sqrt_f32 v35, v35")
    a.e("s_nop 0")
    a.e("v_cvt_pk_bf16_f32 v36, v34, v35")
    a.e("v_lshlrev_b32 v34, 16, v36")
    a.e("v_and_b32 v35, 0xffff0000, v36")
    a.e("v_rcp_f32 v34, v34")
    a.e("v_rcp_f32 v35, v35")
    for r in range(2):
        b = 16 + 8*r
        sel = "op_sel_hi:[1,0]" if r == 0 else "op_sel:[0,1] op_sel_hi:[1,1]"
        for d in range(4):
            a.e(f"v_pk_add_f32 {vr(b+2*d,2)}, {vr(b+2*d,2)}, v[32:33] {sel} neg_lo:[0,1] neg_hi:[0,1]")
    for r in range(2):
        b = 16 + 8*r
        for d in range(4):
            a.e(f"v_cvt_pk_bf16_f32 v{44+4*r+d}, v{b+2*d}, v{b+2*d+1}")
    for r in range(2):
        b = 16 + 8*r
        for d in range(4):
            a.e(f"v_lshlrev_b32 v{b+2*d}, 16, v{44+4*r+d}")
            a.e(f"v_and_b32 v{b+2*d+1}, 0xffff0000, v{44+4*r+d}")
    for r in range(2):
        b = 16 + 8*r
        sel = "op_sel_hi:[1,0]" if r == 0 else "op_sel:[0,1] op_sel_hi:[1,1]"
        for d in range(4):
            a.e(f"v_pk_mul_f32 {vr(b+2*d,2)}, {vr(b+2*d,2)}, v[34:35] {sel}")
    for r in range(2):
        b = 16 + 8*r
        for d in range(4):
            a.e(f"v_cvt_pk_bf16_f32 v{44+4*r+d}, v{b+2*d}, v{b+2*d+1}")
    a.e(f"s_mul_i32 s{S_T0}, s{S_W}, {2*1088}")
    a.e(f"s_add_u32 s{S_T0}, s{S_T0}, {L_LN}")
    a.e(f"v_lshl_add_u32 v2, v{V_LANE}, 4, s{S_T0}")
    a.e("ds_write_b128 v2, v[44:47]")
    a.e("ds_write_b128 v2, v[48:51] offset:1088")
    a.e("v_mov_b32 v40, v34")
    a.e("v_cvt_pk_bf16_f32 v41, -v32, -v32")
    a.e("v_mov_b32 v42, v35")
    a.e("v_cvt_pk_bf16_f32 v43, -v33, -v33")
    a.e(f"s_lshl_b32 s{S_T0}, s{S_I}, 7")
    a.e(f"s_lshl_b32 s{S_T1}, s{S_J}, 3")
    a.e(f"s_add_u32 s{S_T0}, s{S_T0}, s{S_T1}")
    a.e(f"s_lshl_b32 s{S_T1}, s{S_W}, 1")
    a.e(f"s_add_u32 s{S_T1}, s{S_T0}, s{S_T1}")
    a.e(f"s_lshl_b32 s{S_T1}, s{S_T1}, 3")
    a.e(f"s_add_u32 s{S_T1}, s{S_T1}, {WS_STATS}")
    a.e(f"v_mov_b32 v3, s{S_T1}")
    a.e(f"s_mov_b64 s[{S_EXEC}:{S_EXEC+1}], exec")
    a.e("s_mov_b64 exec, 1")
    a.vm(f"global_store_dwordx4 v3, v[40:43], s[{P_WS}:{P_WS+1}] sc1", "pubA")
    a.e(f"s_mov_b64 exec, s[{S_EXEC}:{S_EXEC+1}]")
    a.e(f"v_bfe_u32 v2, v{V_LANE}, 2, 2")
    a.e(f"v_mul_u32_u24 v2, 1088, v2")
    a.e(f"v_lshrrev_b32 v3, 4, v{V_LANE}")
    a.e(f"v_lshl_add_u32 v2, v3, 5, v2")
    a.e(f"v_and_b32 v3, 3, v{V_LANE}")
    a.e(f"v_lshl_add_u32 v2, v3, 3, v2")
    a.e(f"s_lshl_b32 s{S_T1}, s{S_W}, 8")
    a.e(f"s_add_u32 s{S_T1}, s{S_T1}, {L_LN}")
    a.e(f"v_add_u32 v2, s{S_T1}, v2")
    a.e(f"s_lshl_b32 s{S_T0}, s{S_T0}, 10")
    a.e(f"s_lshl_b32 s{S_T1}, s{S_W}, 11")
    a.e(f"s_add_u32 s{S_T0}, s{S_T0}, s{S_T1}")
    a.e(f"s_add_u32 s{S_T0}, s{S_T0}, {WS_XT}")
    a.e(f"v_lshl_add_u32 v3, v{V_LANE}, 4, s{S_T0}")

def g1_reads(st, s):
    r = [f"ds_read_b128 {vr(fB(st,tt),4)}, v{G_BADDR+s} offset:{tt*4096}" for tt in range(2)]
    for ap in range(3):
        for h in range(2):
            r.append(f"ds_read_b64_tr_b16 {vr(fA(st,ap)+2*h,2)}, v{G_AADDR} offset:{s*3072 + h*768 + ap*32}")
    return r

def g1_mfmas(st, first):
    return [f"v_mfma_f32_32x32x16_bf16 {vr(acc(tt,ap),16)}, {vr(fA(st,ap),4)}, {vr(fB(st,tt),4)}, {'0' if first else vr(acc(tt,ap),16)}"
            for ap in range(3) for tt in range(2)]

def g1_main(a, hooks):
    st = 0
    for stage in range(8):
        for s in range(4):
            last = (stage == 7 and s == 3)
            a.e("s_waitcnt lgkmcnt(0)")
            mf = g1_mfmas(st, stage == 0 and s == 0)
            slots = {i: [] for i in range(6)}
            if s == 3 and not last:
                d = SLOT if (stage + 1) % 3 != 0 else -2 * SLOT
                slots[0] += [f"v_add_u32 v{G_BADDR+q}, {d & 0xffffffff}, v{G_BADDR+q}" for q in range(4)]
                slots[0] += [f"v_add_u32 v{G_AADDR}, {d & 0xffffffff}, v{G_AADDR}"]
                for hk in hooks.get(("pre", stage), []): slots[1].append(hk)
                slots[1].append(lambda a, stage=stage: a.bar(f"s{stage}"))
                rd = g1_reads(st ^ 1, 0)
                slots[1] += rd[:3]; slots[2] += rd[3:6]; slots[3] += rd[6:]
                for hk in hooks.get(("post", stage), []): slots[4].append(hk)
            elif last:
                slots[0].append(lambda a: a.bar("rf"))
            else:
                rd = g1_reads(st ^ 1, s + 1)
                slots[0] += rd[:3]; slots[1] += rd[3:6]; slots[2] += rd[6:]
            sh = hooks.get(("shadow", stage, s), [])
            for k, x in enumerate(sh):
                slots[2 + (k * 4) // len(sh)].append(x)
            sched(a, mf, slots)
            st ^= 1
        stamp(a, f"gs{stage}")

CSL = [152, 156, 168]
def g1_post_loads(a):
    a.e(f"s_lshl_b32 s{S_T0}, s{S_I}, 7")
    a.e(f"s_lshl_b32 s{S_T1}, s{S_TW}, 6")
    a.e(f"s_add_u32 s{S_T0}, s{S_T0}, s{S_T1}")
    a.e(f"s_lshl_b32 s{S_T0}, s{S_T0}, 3")
    a.e(f"s_add_u32 s{S_T0}, s{S_T0}, {WS_STATS}")
    a.e(f"v_and_b32 v6, 31, v{V_LANE}")
    a.e(f"v_lshl_add_u32 v7, v6, 3, s{S_T0}")
    a.vm(f"global_load_dwordx2 v[2:3], v7, s[{P_WS}:{P_WS+1}] sc1", "post")
    a.vm(f"global_load_dwordx2 v[4:5], v7, s[{P_WS}:{P_WS+1}] offset:256 sc1", "post")
    a.e(f"s_mul_i32 s{S_T0}, s{S_J}, 6")
    a.e(f"s_mul_i32 s{S_T1}, s{S_FW}, 3")
    a.e(f"s_add_u32 s{S_T0}, s{S_T0}, s{S_T1}")
    a.e(f"s_lshl_b32 s{S_T0}, s{S_T0}, 10")
    a.e(f"s_add_u32 s{S_T0}, s{S_T0}, {WS_CS}")
    a.e(f"v_lshl_add_u32 v7, v6, 5, s{S_T0}")
    a.e(f"v_lshrrev_b32 v8, 5, v{V_LANE}")
    a.e(f"v_lshl_add_u32 v7, v8, 4, v7")
    for ap in range(3):
        a.vm(f"global_load_dwordx4 {vr(CSL[ap],4)}, v7, s[{P_WS}:{P_WS+1}] offset:{1024*ap} sc1", "post")

def g1_corr_prep():
    r = [lambda a: a.vm_wait("post")]
    e = r.append
    for b in CSL:
        e(f"v_add_f32 v{b}, v{b}, v{b+2}")
        e(f"v_add_f32 v{b+1}, v{b+1}, v{b+3}")
    for b in CSL: e(f"v_add_f32 v{b}, v{b}, v{b+1}")
    for b in CSL: e(f"v_mov_b32 v{b+1}, v{b}")
    e(f"v_cmp_gt_u32 vcc, 32, v{V_LANE}")
    e("v_nop")
    for b in CSL: e(f"v_permlane32_swap_b32 v{b}, v{b+1}")
    for b in CSL: e(f"v_add_f32 v{b}, v{b}, v{b+1}")
    for b in CSL: e(f"v_cvt_pk_bf16_f32 v{b+1}, v{b}, v{b}")
    for b in CSL: e(f"v_lshlrev_b32 v{b+2}, 16, v{b+1}")
    for b in CSL: e(f"v_sub_f32 v{b+2}, v{b}, v{b+2}")
    for b in CSL: e(f"v_cvt_pk_bf16_f32 v{b}, v{b}, v{b+2}")
    for b in CSL:
        e(f"v_cndmask_b32 v{b}, 0, v{b}, vcc")
        e(f"v_mov_b32 v{b+1}, 0"); e(f"v_mov_b32 v{b+2}, 0"); e(f"v_mov_b32 v{b+3}, 0")
    for tt in range(2):
        e(f"v_cndmask_b32 v{8+4*tt}, 0, v{3+2*tt}, vcc")
        for d in range(1, 4): e(f"v_mov_b32 v{8+4*tt+d}, 0")
    return r

def g1_corr_mfma(a):
    a.e("s_nop 1")
    for ap in range(3):
        for tt in range(2):
            a.e(f"v_mfma_f32_32x32x16_bf16 {vr(acc(tt,ap),16)}, {vr(CSL[ap],4)}, {vr(8+4*tt,4)}, {vr(acc(tt,ap),16)}")

C1 = -2.0 * math.sqrt(2.0 / math.pi) * math.log2(math.e)
C2 = C1 * 0.044715
def g1_epilogue(a):
    for tt in range(2):
        r_, b = 2 + 2*tt, 160 + 4*tt
        a.e(f"v_mul_f32 v{b+2}, v{r_}, v{r_}")
        a.e(f"v_mul_f32 v{b}, {fhex(C1)}, v{r_}")
        a.e(f"v_mul_f32 v{b+1}, {fhex(C2)}, v{r_}")
        a.e(f"v_mul_f32 v{b+1}, v{b+1}, v{b+2}")
        a.e(f"v_rcp_f32 v{b+2}, v{b+2}")
    a.e(f"s_lshl_b32 s{S_T0}, s{S_I}, 2")
    a.e(f"s_lshl_b32 s{S_T1}, s{S_TW}, 1")
    a.e(f"s_add_u32 s{S_T0}, s{S_T0}, s{S_T1}")
    a.e(f"s_mul_i32 s{S_T0}, s{S_T0}, 86")
    a.e(f"s_lshl_b32 s{S_T1}, s{S_U0}, 1")
    a.e(f"s_add_u32 s{S_T0}, s{S_T0}, s{S_T1}")
    a.e(f"s_mul_i32 s{S_T1}, s{S_FW}, 3")
    a.e(f"s_add_u32 s{S_T0}, s{S_T0}, s{S_T1}")
    a.e(f"s_lshl_b32 s{S_T0}, s{S_T0}, 10")
    a.e(f"s_add_u32 s{S_T0}, s{S_T0}, {WS_H}")
    a.e(f"v_lshl_add_u32 v168, v{V_LANE}, 4, s{S_T0}")
    a.e(f"v_add_u32 v169, {86*1024}, v168")
    a.e(f"s_sub_u32 s{S_T2}, s{S_NU}, s{S_T1}")
    a.e(f"s_lshl_b32 s{S_T0}, s{S_WG}, 12")
    a.e(f"s_add_u32 s{S_T0}, s{S_T0}, {WS_DUMMY}")
    a.e(f"v_lshl_add_u32 v170, v{V_LANE}, 4, s{S_T0}")
    a.e(f"s_cmp_gt_u32 s{S_T2}, 1")
    a.e(f"s_cselect_b64 s[74:75], -1, 0")
    a.e(f"v_cndmask_b32 v171, v170, v169, s[74:75]")
    a.e(f"v_cndmask_b32 v170, v170, v168, s[74:75]")
    T, Gq, X = 112, 120, 128
    for ap in range(3):
        for tt in range(2):
            c = acc(tt, ap); KK = 160 + 4*tt; S2 = 162 + 4*tt
            for p in range(4):
                a.e(f"v_pk_mul_f32 {vr(T+2*p,2)}, {vr(c+2*p,2)}, {vr(c+2*p,2)}")
            for p in range(4):
                a.e(f"v_pk_fma_f32 {vr(T+2*p,2)}, {vr(T+2*p,2)}, {vr(KK,2)}, {vr(KK,2)} op_sel:[0,1,0] op_sel_hi:[1,1,0]")
            for p in range(4):
                a.e(f"v_pk_mul_f32 {vr(T+2*p,2)}, {vr(T+2*p,2)}, {vr(c+2*p,2)}")
            for p in range(8):
                a.e(f"v_exp_f32 v{T+p}, v{T+p}")
            for p in range(4):
                a.e(f"v_pk_mul_f32 {vr(Gq+2*p,2)}, {vr(c+2*p,2)}, {vr(c+8+2*p,2)}")
            for p in range(4):
                a.e(f"v_pk_fma_f32 {vr(T+2*p,2)}, {vr(T+2*p,2)}, {vr(S2,2)}, {vr(S2,2)} op_sel_hi:[1,0,0]")
            for p in range(8):
                a.e(f"v_rcp_f32 v{T+p}, v{T+p}")
            a.e("s_nop 0")
            for p in range(4):
                a.e(f"v_pk_mul_f32 {vr(Gq+2*p,2)}, {vr(Gq+2*p,2)}, {vr(T+2*p,2)}")
            O = X + 4 * ((2 * ap + tt) % 2)
            for p in range(4):
                a.e(f"v_cvt_pk_bf16_f32 v{O+p}, v{Gq+2*p}, v{Gq+2*p+1}")
            adr = (168 + tt) if ap == 0 else (170 + tt)
            a.vm(f"global_store_dwordx4 v{adr}, {vr(O,4)}, s[{P_WS}:{P_WS+1}] offset:{1024*ap} sc1", "pubH")

V_WDOFF, V_WDL, V_WDA = 172, 173, 166
def wd_setup(a, t0, voff=V_WDOFF):
    mk_srd(a, SRD_WD, P_WD, 1376 * 1024)
    a.e(f"s_mul_i32 s{S_WDO}, s{S_W}, {352 * 1024}")
    a.e(f"s_lshl_b32 s{S_T0}, s{S_NT}, 7")
    a.e(f"s_add_u32 s{S_WDO}, s{S_WDO}, s{S_T0}")
    t = t0
    a.e(f"v_lshrrev_b32 v{t}, 3, v{V_LANE}")
    a.e(f"v_and_b32 v{t+1}, 7, v{V_LANE}")
    a.e(f"v_bfe_u32 v{t+2}, v{t}, 1, 1")
    a.e(f"v_lshlrev_b32 v{t+2}, 2, v{t+2}")
    a.e(f"v_xor_b32 v{t+1}, v{t+1}, v{t+2}")
    a.e(f"v_lshlrev_b32 v{t+1}, 4, v{t+1}")
    a.e(f"v_lshl_add_u32 v{voff}, v{t}, 10, v{t+1}")

def wd_lane_parts(a, t0):
    t = t0
    a.e(f"v_lshrrev_b32 v{t}, 4, v{V_LANE}")
    a.e(f"v_and_b32 v{t+1}, 1, v{t}")
    a.e(f"v_lshrrev_b32 v{t}, 1, v{t}")
    a.e(f"v_bfe_u32 v{t+2}, v{V_LANE}, 2, 2")
    a.e(f"v_lshl_add_u32 v{t+2}, v{t}, 2, v{t+2}")
    a.e(f"v_lshlrev_b32 v{t+2}, 7, v{t+2}")
    a.e(f"v_lshl_add_u32 v{t+2}, v{t+1}, 5, v{t+2}")
    a.e(f"v_and_b32 v{t+1}, 3, v{V_LANE}")
    a.e(f"v_lshl_add_u32 v{t+2}, v{t+1}, 3, v{t+2}")
    a.e(f"v_bfe_u32 v{t+1}, v{V_LANE}, 3, 1")
    a.e(f"v_lshlrev_b32 v{t+1}, 6, v{t+1}")
    a.e(f"v_add_u32 v{V_WDL}, v{t+2}, v{t+1}")
    a.e(f"v_xor_b32 v{t+1}, 64, v{t+1}")
    a.e(f"v_add_u32 v{V_WDL+1}, v{t+2}, v{t+1}")

def wd_groups(rnd, voff=V_WDOFF):
    lb, wsz, ks0, n = WD[rnd]
    out = []
    for q in range(2 * n):
        pre = [f"s_mul_i32 s{S_WDL}, s{S_W}, {wsz}", f"s_add_u32 s{S_WDS}, s{S_WDO}, {ks0*16384}"] if q == 0 else []
        out.append(Dma(pre, f"s_add_u32 m0, s{S_WDL}, {lb + q*1024}",
                       (f"buffer_load_dwordx4 v{voff}, s[{SRD_WD}:{SRD_WD+3}], s{S_WDS} offen lds", f"wd{rnd}"),
                       [f"s_add_u32 s{S_WDS}, s{S_WDS}, 8192"]))
    return out

def wd_addr(rnd):
    lb, wsz, ks0, n = WD[rnd]
    return [f"s_mul_i32 s{S_T0}, s{S_W}, {wsz}", f"s_add_u32 s{S_T0}, s{S_T0}, {lb}",
            f"v_add_u32 v{V_WDA}, s{S_T0}, v{V_WDL}", f"v_add_u32 v{V_WDA+1}, s{S_T0}, v{V_WDL+1}"]

def wd_tr_agpr(rnd):
    lb, wsz, ks0, n = WD[rnd]
    return [f"ds_read_b64_tr_b16 {ar(8*(ks0+k) + 4*t + 2*h, 2)}, v{V_WDA+t} offset:{k*2048 + h*1024}"
            for k in range(n) for t in range(2) for h in range(2)]

G2_ACC, G2_H, G2_RING, G2_W = 16, 80, 8, 144
V_HA = 160
def acc2(t, tt): return G2_ACC + 16 * (2 * t + tt)

def h_setup(a):
    a.e(f"s_lshl_b32 s{S_T0}, s{S_I}, 2")
    a.e(f"s_lshl_b32 s{S_T1}, s{S_TH}, 1")
    a.e(f"s_add_u32 s{S_T0}, s{S_T0}, s{S_T1}")
    a.e(f"s_mul_i32 s{S_T0}, s{S_T0}, 86")
    a.e(f"s_mul_i32 s{S_T1}, s{S_W}, 22")
    a.e(f"s_add_u32 s{S_T0}, s{S_T0}, s{S_T1}")
    a.e(f"s_lshl_b32 s{S_T0}, s{S_T0}, 10")
    a.e(f"s_add_u32 s{S_T0}, s{S_T0}, {WS_H}")
    a.e(f"v_lshl_add_u32 v{V_HA}, v{V_LANE}, 4, s{S_T0}")
    a.e(f"v_add_u32 v{V_HA+1}, {86*1024}, v{V_HA}")
    a.e(f"s_movk_i32 s66, {4*1024}")
    a.e(f"s_movk_i32 s67, {5*1024}")
    a.e(f"s_cmp_eq_u32 s{S_W}, 3")
    a.e(f"s_cselect_b32 s66, {3*1024}, s66")
    a.e(f"s_cselect_b32 s67, {3*1024}, s67")

def h_load(q):
    R = G2_H + 8 * (q % G2_RING)
    it = []
    if q < 20:
        if q % 4 == 0 and q > 0:
            it += [f"v_add_u32 v{V_HA}, 4096, v{V_HA}", f"v_add_u32 v{V_HA+1}, 4096, v{V_HA+1}"]
        off = (q % 4) * 1024
        it += [(f"global_load_dwordx4 {vr(R,4)}, v{V_HA}, s[{P_WS}:{P_WS+1}] offset:{off} sc1", f"h{q}"),
               (f"global_load_dwordx4 {vr(R+4,4)}, v{V_HA+1}, s[{P_WS}:{P_WS+1}] offset:{off} sc1", f"h{q}")]
    else:
        sreg = 66 + (q - 20)
        it += [f"v_add_u32 v162, s{sreg}, v{V_HA}", f"v_add_u32 v163, s{sreg}, v{V_HA+1}",
               (f"global_load_dwordx4 {vr(R,4)}, v162, s[{P_WS}:{P_WS+1}] sc1", f"h{q}"),
               (f"global_load_dwordx4 {vr(R+4,4)}, v163, s[{P_WS}:{P_WS+1}] sc1", f"h{q}")]
    return it

def hy_poll_issue(a):
    a.e(f"s_lshl_b32 s{S_T0}, s{S_I}, 6")
    a.e(f"s_add_u32 s{S_T0}, s{S_T0}, {WS_FLAG_H}")
    a.e(f"v_and_b32 v8, 15, v{V_LANE}")
    a.e(f"v_lshl_add_u32 v8, v8, 2, s{S_T0}")
    a.e(f"s_lshl_b32 s{S_T0}, s{S_NT}, 7")
    a.e(f"s_add_u32 s{S_T0}, s{S_T0}, {WS_FLAG_Y}")
    a.e(f"v_and_b32 v9, 31, v{V_LANE}")
    a.e(f"v_lshl_add_u32 v9, v9, 2, s{S_T0}")
    a.vm(f"global_load_dword v10, v8, s[{P_WS}:{P_WS+1}] sc1", "ph")
    a.vm(f"global_load_dword v11, v9, s[{P_WS}:{P_WS+1}] sc1", "ph")

def hy_poll_check(a):
    top, ok = a.label("poll"), a.label("pollok")
    a.vm_wait("ph")
    a.e(f"s_mov_b32 s{S_SPIN}, 0")
    a.e(f"{top}:")
    a.e(f"v_cmp_ne_u32 vcc, s{S_TAG}, v10")
    a.e(f"v_cmp_ne_u32 s[74:75], s{S_TAG}, v11")
    a.e("s_nop 1")
    a.e("s_or_b64 vcc, vcc, s[74:75]")
    spin_tail(a, top, ok, [f"global_load_dword v10, v8, s[{P_WS}:{P_WS+1}] sc1", f"global_load_dword v11, v9, s[{P_WS}:{P_WS+1}] sc1"])

def res_reads(q):
    for rnd in (4, 5, 6):
        lb, wsz, ks0, n = WD[rnd]
        if ks0 <= q < ks0 + n:
            pre = wd_addr(rnd) if q == ks0 else []
            B = G2_W + 8 * (q % 2)
            return pre + [f"ds_read_b64_tr_b16 {vr(B + 4*t + 2*h, 2)}, v{V_WDA+t} offset:{(q-ks0)*2048 + h*1024}" for t in range(2) for h in range(2)]

def g2_main(a, hooks, n0):
    la = OPT.get("g2la", 7)
    nxt = n0
    for q in range(22):
        a.vm_wait(f"h{q}")
        if q >= 8:
            a.e("s_waitcnt lgkmcnt(0)")
        stamp(a, f"g2q{q}")
        R = G2_H + 8 * (q % G2_RING)
        mf = []
        for t in range(2):
            A = ar(8*q + 4*t, 4) if q < 10 else vr(G2_W + 8*(q % 2) + 4*t, 4)
            for tt in range(2):
                mf.append(f"v_mfma_f32_32x32x16_bf16 {vr(acc2(t,tt),16)}, {A}, {vr(R+4*tt,4)}, {'0' if q == 0 else vr(acc2(t,tt),16)}")
        slots = {i: [] for i in range(4)}
        if 10 <= q + 1 < 22:
            rr = res_reads(q + 1)
            if q + 1 == 10: rr = [lambda a: a.vm_wait("wd4", "wd5")] + rr
            slots[0] += rr
        k = 0
        while nxt < 22 and nxt - q <= la and k < 2 and nxt < q + G2_RING:
            slots[1 if k == 0 else 3].append(h_load(nxt)); nxt += 1; k += 1
        for hk in hooks.get(q, []): slots[2].append(hk)
        sched(a, mf, slots)

V_OUT = 14
V_X = 168
def x_loads(a):
    a.e(f"s_lshl_b32 s{S_T0}, s{S_I}, 7")
    a.e(f"s_lshl_b32 s{S_T1}, s{S_TH}, 6")
    a.e(f"s_add_u32 s{S_T0}, s{S_T0}, s{S_T1}")
    a.e(f"s_and_b32 s{S_T1}, s{S_W}, 1")
    a.e(f"s_lshl_b32 s{S_T1}, s{S_T1}, 5")
    a.e(f"s_add_u32 s{S_T0}, s{S_T0}, s{S_T1}")
    a.e(f"s_lshl_b32 s{S_T0}, s{S_T0}, 10")
    a.e(f"s_lshl_b32 s{S_T1}, s{S_NT}, 7")
    a.e(f"s_add_u32 s{S_T0}, s{S_T0}, s{S_T1}")
    a.e(f"s_lshr_b32 s{S_T1}, s{S_W}, 1")
    a.e(f"s_lshl_b32 s{S_T1}, s{S_T1}, 6")
    a.e(f"s_add_u32 s{S_T0}, s{S_T0}, s{S_T1}")
    a.e(f"v_and_b32 v12, 31, v{V_LANE}")
    a.e(f"v_lshlrev_b32 v12, 10, v12")
    a.e(f"v_lshrrev_b32 v13, 5, v{V_LANE}")
    a.e(f"v_lshl_add_u32 v12, v13, 3, v12")
    a.e(f"v_add_u32 v{V_OUT}, s{S_T0}, v12")
    for q in range(4):
        a.vm(f"global_load_dwordx2 {vr(V_X+2*q,2)}, v{V_OUT}, s[{P_X}:{P_X+1}] offset:{16*q}", "fx")
    a.e(f"v_lshl_add_u32 v{V_OUT}, v13, 3, v{V_OUT}")

def y_loads(a):
    a.e(f"s_lshl_b32 s{S_T0}, s{S_I}, 1")
    a.e(f"s_add_u32 s{S_T0}, s{S_T0}, s{S_TH}")
    a.e(f"s_lshl_b32 s{S_T0}, s{S_T0}, 16")
    a.e(f"s_lshl_b32 s{S_T1}, s{S_NT}, 13")
    a.e(f"s_add_u32 s{S_T0}, s{S_T0}, s{S_T1}")
    a.e(f"s_add_u32 s{S_T0}, s{S_T0}, {WS_Y}")
    a.e(f"v_lshl_add_u32 v10, v0, 4, s{S_T0}")
    a.e(f"v_add_u32 v11, 4096, v10")
    a.vm(f"global_load_dwordx4 v[2:5], v10, s[{P_WS}:{P_WS+1}] sc1", "fy")
    a.vm(f"global_load_dwordx4 v[6:9], v11, s[{P_WS}:{P_WS+1}] sc1", "fy")

def y_check(a):
    top, ok = a.label("ychk"), a.label("yok")
    a.vm_wait("fy")
    a.e(f"s_mov_b32 s{S_SPIN}, 0")
    a.e(f"{top}:")
    a.e("v_max3_u32 v12, v2, v3, v4")
    a.e("v_max3_u32 v13, v5, v6, v7")
    a.e("v_max3_u32 v12, v12, v8, v9")
    a.e("v_max_u32 v12, v12, v13")
    a.e("v_cmp_eq_u32 vcc, -1, v12")
    a.e("s_nop 1")
    spin_tail(a, top, ok, [f"global_load_dwordx4 v[2:5], v10, s[{P_WS}:{P_WS+1}] sc1", f"global_load_dwordx4 v[6:9], v11, s[{P_WS}:{P_WS+1}] sc1"])

def final_prep(a):
    a.e(f"v_lshlrev_b32 v162, 4, v{V_LANE}")
    a.e(f"v_add_u32 v163, {RED_UNIT[0]}, v162")
    a.e(f"v_lshrrev_b32 v12, 3, v0")
    a.e(f"v_mul_u32_u24 v12, 192, v12")
    a.e(f"v_and_b32 v13, 7, v0")
    a.e(f"v_lshl_add_u32 v164, v13, 4, v12")
    a.e(f"v_add_u32 v164, {L_YB}, v164")
    a.e(f"v_lshrrev_b32 v12, 4, v{V_LANE}")
    a.e(f"v_and_b32 v13, 1, v12")
    a.e(f"v_lshrrev_b32 v12, 1, v12")
    a.e(f"v_bfe_u32 v165, v{V_LANE}, 2, 2")
    a.e(f"v_lshl_add_u32 v165, v12, 2, v165")
    a.e(f"v_mul_u32_u24 v165, 192, v165")
    a.e(f"v_lshl_add_u32 v165, v13, 5, v165")
    a.e(f"v_and_b32 v13, 3, v{V_LANE}")
    a.e(f"v_lshl_add_u32 v165, v13, 3, v165")
    a.e(f"s_lshr_b32 s{S_T0}, s{S_W}, 1")
    a.e(f"s_mul_i32 s{S_T0}, s{S_T0}, {32*192}")
    a.e(f"s_and_b32 s{S_T1}, s{S_W}, 1")
    a.e(f"s_lshl_b32 s{S_T1}, s{S_T1}, 6")
    a.e(f"s_add_u32 s{S_T0}, s{S_T0}, s{S_T1}")
    a.e(f"s_add_u32 s{S_T0}, s{S_T0}, {L_YB}")
    a.e(f"v_add_u32 v165, s{S_T0}, v165")

def red_ref(u, q):
    if u < 8: return 163, u * 4096 + q * 1024
    return 162, RED_UNIT[u] + q * 1024

def final(a):
    OWN, XF = 80, 96
    P = 112
    end = a.label("redend")
    labs = [a.label("redw") for _ in range(4)]
    for w in range(1, 4):
        a.e(f"s_cmp_eq_u32 s{S_W}, {w}")
        a.e(f"s_cbranch_scc1 {labs[w]}")
    for w in range(4):
        a.e(f"{labs[w]}:")
        a.e("s_nop 9")
        for o in range(4):
            if o == w: continue
            u = 3*o + ((w - o - 1) & 3)
            for q in range(4):
                r_, off = red_ref(u, q)
                a.e(f"ds_write_b128 v{r_}, {vr(G2_ACC+16*o+4*q,4)} offset:{off}")
        for q in range(8):
            a.e(f"v_pk_mul_f32 {vr(OWN+2*q,2)}, {vr(G2_ACC+16*w+2*q,2)}, 1.0 op_sel_hi:[1,0]")
        if w < 3: a.e(f"s_branch {end}")
    a.e(f"{end}:")
    y_check(a)
    stamp(a, "fy")
    a.e("ds_write_b128 v164, v[2:5]")
    a.e(f"ds_write_b128 v164, v[6:9] offset:{32*192}")
    a.vm_wait("fx")
    for q in range(8):
        a.e(f"v_lshlrev_b32 v{XF+2*q}, 16, v{V_X+q}")
        a.e(f"v_and_b32 v{XF+2*q+1}, 0xffff0000, v{V_X+q}")
    for q in range(8):
        a.e(f"v_pk_add_f32 {vr(OWN+2*q,2)}, {vr(OWN+2*q,2)}, {vr(XF+2*q,2)}")
    a.e("s_waitcnt lgkmcnt(0)")
    a.bar("fin")
    for q in range(4):
        a.e(f"ds_read_b64_tr_b16 {vr(2+2*q,2)}, v165 offset:{1536*q}")
    labs = [a.label("rdw") for _ in range(4)]
    end2 = a.label("rdend")
    for w in range(1, 4):
        a.e(f"s_cmp_eq_u32 s{S_W}, {w}")
        a.e(f"s_cbranch_scc1 {labs[w]}")
    for w in range(4):
        a.e(f"{labs[w]}:")
        for sl in range(3):
            for q in range(4):
                r_, off = red_ref(3*w + sl, q)
                a.e(f"ds_read_b128 {vr(P+16*sl+4*q,4)}, v{r_} offset:{off}")
        if w < 3: a.e(f"s_branch {end2}")
    a.e(f"{end2}:")
    a.e("s_waitcnt lgkmcnt(12)")
    for q in range(8):
        a.e(f"v_lshlrev_b32 v{XF+2*q}, 16, v{2+q}")
        a.e(f"v_and_b32 v{XF+2*q+1}, 0xffff0000, v{2+q}")
    for q in range(8):
        a.e(f"v_pk_add_f32 {vr(OWN+2*q,2)}, {vr(OWN+2*q,2)}, {vr(XF+2*q,2)}")
    for sl in range(3):
        a.e(f"s_waitcnt lgkmcnt({8 - 4*sl})")
        for q in range(8):
            a.e(f"v_pk_add_f32 {vr(OWN+2*q,2)}, {vr(OWN+2*q,2)}, {vr(P+16*sl+2*q,2)}")
    for q in range(8):
        a.e(f"v_cvt_pk_bf16_f32 v{2+q}, v{OWN+2*q}, v{OWN+2*q+1}")
    a.e("s_nop 1")
    for p in range(2):
        a.e(f"v_permlane32_swap_b32 v{2+4*p}, v{4+4*p}")
        a.e(f"v_permlane32_swap_b32 v{3+4*p}, v{5+4*p}")
    for p in range(2):
        a.vm(f"global_store_dwordx4 v{V_OUT}, {vr(2+4*p,4)}, s[{P_OUT}:{P_OUT+1}] offset:{32*p} nt", "out")


def role_g(a):
    if OPT.get("prio", 1): a.e("s_setprio 1")
    g_setup(a)
    a.e("s_waitcnt lgkmcnt(0)")
    a.e(f"s_mov_b32 s{S_ROLE}, 0")
    a.vm("global_load_dwordx4 v[44:47], v7, s[16:17]", "ln")
    a.vm("global_load_dwordx4 v[48:51], v7, s[16:17] offset:1024", "ln")
    epoch_load(a, 3, 6)
    stamp(a, 0, real=True); stamp(a, 1)
    epoch_finish(a, 6)
    ln_first(a)
    stamp(a, "ln")
    a.e("s_waitcnt lgkmcnt(0)")
    delay(a, "p_gln")
    a.bar("b0")
    stamp(a, "b0")
    for x in g1_reads(0, 0)[:0]: a.e(x)
    for q in range(2):
        a.e(f"ds_read_b64_tr_b16 v[{8+4*q}:{9+4*q}], v2 offset:{128*q}")
        a.e(f"ds_read_b64_tr_b16 v[{10+4*q}:{11+4*q}], v2 offset:{128*q + 4*1088}")
    for x in g1_reads(0, 0): a.e(x)
    a.e("s_waitcnt lgkmcnt(8)")
    a.vm(f"global_store_dwordx4 v3, v[8:11], s[{P_WS}:{P_WS+1}] sc1", "pubA")
    a.vm(f"global_store_dwordx4 v3, v[12:15], s[{P_WS}:{P_WS+1}] offset:1024 sc1", "pubA")
    PS = OPT.get("pubstage", 1)
    def bump(a):
        lab = a.label("nobump")
        a.e(f"s_or_b32 s{S_T0}, s{S_WG}, s{S_W}")
        a.e(f"s_cmp_lg_u32 s{S_T0}, 0")
        a.e(f"s_cbranch_scc1 {lab}")
        a.e(f"s_add_u32 s{S_T0}, s{S_EP}, 1")
        a.e("v_mov_b32 v6, 0")
        a.e(f"v_mov_b32 v7, s{S_T0}")
        a.e(f"s_mov_b64 s[{S_EXEC}:{S_EXEC+1}], exec")
        a.e("s_mov_b64 exec, 1")
        a.e(f"global_store_dword v6, v7, s[{P_WS}:{P_WS+1}] sc1")
        a.e(f"s_mov_b64 exec, s[{S_EXEC}:{S_EXEC+1}]")
        a.e(f"{lab}:")
    def chk(a):
        ln_poll_check(a, 165, 152)
        bump(a)
        g1_post_loads(a)
    hooks = {("pre", PS): [lambda a: a.vm_wait("pubA")],
             ("post", PS): [lambda a: flag_store(a, WS_FLAG_LN, idx_ln, 6, 7)],
             ("post", OPT.get("pollstage", 5)): [lambda a: ln_poll_issue(a, 165, 152)],
             ("post", 6): [chk],
             ("shadow", 7, 2): g1_corr_prep()}
    rw = Rec(a); wd_setup(rw, 6); wd_lane_parts(rw, 6)
    hooks[("shadow", 4, 1)] = [o[1] for o in rw.ops]
    g1_main(a, hooks)
    stamp(a, "loop")
    if OPT.get("gprio2") is not None: a.e(f"s_setprio {OPT['gprio2']}")
    g1_corr_mfma(a)
    r = Rec(a)
    g1_epilogue(r)
    fills = wd_groups(1) + wd_groups(2)
    replay(a, r.ops, fills, every=OPT.get("epevery", 16), start=34)
    stamp(a, "epi")
    delay(a, "p_gepi")
    if OPT.get("kdelay"): a.bar("e")
    a.vm_wait("wd1", "wd2")
    for x in wd_addr(1) + wd_tr_agpr(1) + wd_addr(2) + wd_tr_agpr(2): a.e(x)
    h_setup(a)
    a.vm_wait("pubH")
    a.e("s_waitcnt lgkmcnt(0)")
    a.bar("k")
    stamp(a, "bk")
    flag_store(a, WS_FLAG_H, idx_h, 6, 7)
    flag_store(a, WS_FLAG_Y, idx_y, 6, 7)
    stamp(a, "hpub")
    delay(a, "p_ghpub")
    if OPT.get("gwd", 1):
        for g in wd_groups(4) + wd_groups(5): emit(a, g)
    a.bar("p")
    hy_poll_issue(a)
    hy_poll_check(a)
    stamp(a, "hflag")
    N0 = OPT.get("g2n0", 4)
    for q in range(N0): emit(a, h_load(q))
    a.e("s_waitcnt lgkmcnt(0)")
    hk = {}
    def after_cd(a):
        a.bar("cd")
        for x in wd_addr(3) + wd_tr_agpr(3): a.e(x)
    for q, f in ((OPT.get("cxq", 2), lambda a: a.bar("cx")), (OPT.get("cdq", 4), after_cd), (OPT.get("xld", 18), x_loads), (OPT.get("fprep", 19), final_prep), (OPT.get("yld", 13), y_loads)):
        hk.setdefault(q, []).append(f)
    g2_main(a, hk, N0)
    stamp(a, "g2")
    delay(a, "p_gfin")
    final(a)
    stamp(a, "fin")
    a.e("s_waitcnt vmcnt(0)")
    stamp(a, 9, real=True)
    prof_store(a)
    a.e("s_endpgm")


C_XOFF, C_WOFF = 2, 6
C_AADDR = 9
C_P = 160
C_XT = 168
def c_setup(a):
    a.e(f"s_lshl_b32 s{S_T0}, s{S_I}, 7")
    a.e(f"s_lshl_b32 s{S_T1}, s{S_W}, 5")
    a.e(f"s_add_u32 s{S_T0}, s{S_T0}, s{S_T1}")
    a.e(f"s_lshl_b32 s{S_XW}, s{S_T0}, 10")
    a.e(f"s_lshl_b32 s{S_LX}, s{S_W}, 12")
    a.e(f"s_add_u32 s{S_KC}, s{S_I}, s{S_J}")
    a.e(f"s_and_b32 s{S_KC}, s{S_KC}, 7")
    a.e(f"s_mul_i32 s{S_WW}, s{S_W}, {16 * 2752}")
    a.e(f"s_lshl_b32 s{S_T0}, s{S_U0}, 6")
    a.e(f"s_add_u32 s{S_WW}, s{S_WW}, s{S_T0}")
    a.e(f"s_mul_i32 s{S_LW}, s{S_W}, 3072")
    a.e(f"v_lshrrev_b32 v12, 3, v{V_LANE}")
    a.e(f"v_and_b32 v13, 7, v{V_LANE}")
    a.e(f"v_lshrrev_b32 v14, 1, v12")
    a.e(f"v_xor_b32 v15, v14, v13")
    a.e(f"v_lshlrev_b32 v16, 4, v15")
    a.e(f"v_lshl_add_u32 v{C_XOFF}, v12, 10, v16")
    a.e(f"v_xor_b32 v17, 64, v{C_XOFF}")
    a.e(f"v_add_u32 v{C_XOFF+1}, 8192, v17")
    a.e(f"v_add_u32 v{C_XOFF+2}, 16384, v{C_XOFF}")
    a.e(f"v_add_u32 v{C_XOFF+3}, 16384, v{C_XOFF+1}")
    for q in range(3):
        a.e(f"v_add_u32 v12, {64*q}, v{V_LANE}")
        a.e(f"v_mul_u32_u24 v13, 5462, v12")
        a.e(f"v_lshrrev_b32 v13, 16, v13")
        a.e(f"v_mul_u32_u24 v14, 12, v13")
        a.e(f"v_sub_u32 v14, v12, v14")
        a.e(f"v_mul_u32_u24 v13, 2752, v13")
        a.e(f"v_lshl_add_u32 v{C_WOFF+q}, v14, 4, v13")

def stage_offsets():
    return [f"s_lshl_b32 s{S_XO}, s{S_KC}, 7", f"s_add_u32 s{S_XO}, s{S_XO}, s{S_XW}",
            f"s_mul_i32 s{S_WO}, s{S_KC}, {64 * 2752}", f"s_add_u32 s{S_WO}, s{S_WO}, s{S_WW}",
            f"s_add_u32 s{S_KC}, s{S_KC}, 1", f"s_and_b32 s{S_KC}, s{S_KC}, 7"]

def stage_dma(stage):
    S = (stage % 3) * SLOT; tag = f"st{stage}"
    out = []
    for q in range(4):
        out.append(Dma([], f"s_add_u32 m0, s{S_LX}, {S + L_X + q * 1024}", (f"buffer_load_dwordx4 v{C_XOFF+q}, s[{SRD_X}:{SRD_X+3}], s{S_XO} offen lds", tag)))
    for q in range(3):
        out.append(Dma([], f"s_add_u32 m0, s{S_LW}, {S + L_G + q * 1024}", (f"buffer_load_dwordx4 v{C_WOFF+q}, s[{SRD_WG}:{SRD_WG+3}], s{S_WO} offen lds", tag)))
        out.append(Dma([], f"s_add_u32 m0, s{S_LW}, {S + L_U + q * 1024}", (f"buffer_load_dwordx4 v{C_WOFF+q}, s[{SRD_WU}:{SRD_WU+3}], s{S_WO} offen lds", tag)))
    out[0] = stage_offsets() + list(out[0])
    return out

def cs_block(a):
    lab = a.label("nocs")
    a.e(f"s_cmp_lg_u32 s{S_CSH}, 0")
    a.e(f"s_cbranch_scc1 {lab}")
    FRG, ACC, ON = 64, 112, 60
    for r in range(4): a.e(f"v_mov_b32 v{ON+r}, 0x3f803f80")
    for s in range(4):
        for ap in range(3):
            for h in range(2):
                a.e(f"ds_read_b64_tr_b16 {vr(FRG+12*s+4*ap+2*h,2)}, v{C_AADDR} offset:{s*3072 + h*768 + ap*32}")
    a.e("s_waitcnt lgkmcnt(0)")
    for s in range(4):
        for ap in range(3):
            a.e(f"v_mfma_f32_32x32x16_bf16 {vr(ACC+16*ap,16)}, {vr(ON,4)}, {vr(FRG+12*s+4*ap,4)}, {'0' if s == 0 else vr(ACC+16*ap,16)}")
    a.e(f"s_mul_i32 s{S_T0}, s{S_J}, 6")
    a.e(f"s_mul_i32 s{S_T1}, s{S_FW}, 3")
    a.e(f"s_add_u32 s{S_T0}, s{S_T0}, s{S_T1}")
    a.e(f"s_lshl_b32 s{S_T0}, s{S_T0}, 10")
    a.e(f"s_lshl_b32 s{S_T1}, s{S_I}, 2")
    a.e(f"s_add_u32 s{S_T0}, s{S_T0}, s{S_T1}")
    a.e(f"s_add_u32 s{S_T0}, s{S_T0}, {WS_CS}")
    a.e(f"v_lshl_add_u32 v59, v{V_LANE}, 5, s{S_T0}")
    lab2 = a.label("nocsst")
    a.e(f"s_cmp_ge_u32 s{S_W}, 2")
    a.e(f"s_cbranch_scc1 {lab2}")
    a.e("s_nop 7")
    a.e(f"s_mov_b64 s[{S_EXEC}:{S_EXEC+1}], exec")
    a.e("s_mov_b64 exec, 0xffffffff")
    for ap in range(3):
        a.e(f"global_store_dword v59, v{ACC+16*ap}, s[{P_WS}:{P_WS+1}] offset:{1024*ap} sc1")
    a.e(f"s_mov_b64 exec, s[{S_EXEC}:{S_EXEC+1}]")
    a.e(f"{lab2}:")
    a.e(f"{lab}:")

def kgen_loads(a):
    a.e(f"s_lshl_b32 s{S_T0}, s{S_D}, 8")
    a.e(f"s_lshl_b32 s{S_T1}, s{S_MH}, 7")
    a.e(f"s_add_u32 s{S_T0}, s{S_T0}, s{S_T1}")
    a.e(f"v_lshl_add_u32 v12, v{V_LANE}, 1, s{S_T0}")
    for q, p in enumerate([P_ARE, P_AIM, P_BRE, P_BIM, P_CRE, P_CIM]):
        a.vm(f"global_load_ushort v{C_P+q}, v12, s[{p}:{p+1}]", "kp")
    a.e(f"s_lshl_b32 s{S_T0}, s{S_D}, 1")
    a.e(f"v_mov_b32 v13, s{S_T0}")
    a.vm(f"global_load_ushort v{C_P+6}, v13, s[{P_LDT}:{P_LDT+1}]", "kp")
    a.vm(f"global_load_ushort v{C_P+7}, v13, s[{P_DSK}:{P_DSK+1}]", "kp")

KS = 64
def kgen_prog():
    out = []; e = out.append
    P = C_P
    AL, BE, CO = 10, 11, 12
    Z1, Z2, Z4, Z8, Z256, Z512 = 14, 16, 18, 20, 22, 24
    A0, A1, B0, B1, C0, C1_, CB, D0, D1, DB0, DB1 = 26, 28, 30, 32, 34, 36, 38, 40, 42, 44, 46
    T = 48
    for q in range(8): e(f"v_lshlrev_b32 v{P+q}, 16, v{P+q}")
    e(f"v_mul_f32 v58, 0x3fb8aa3b, v{P+6}")
    e("v_exp_f32 v58, v58")
    e(f"v_mov_b32 v{A0}, 1.0")
    e(f"v_cvt_pk_bf16_f32 v58, v58, v58")
    e(f"v_mov_b32 v{A0+1}, 0")
    e(f"v_lshlrev_b32 v58, 16, v58")
    e(f"v_mul_f32 v{AL}, v58, v{P}"); e(f"v_mul_f32 v{BE}, v58, v{P+1}")
    e(f"v_mul_f32 v56, v58, v{P+2}"); e(f"v_mul_f32 v57, v58, v{P+3}")
    e(f"v_mul_f32 v{AL}, 0x3fb8aa3b, v{AL}"); e(f"v_mul_f32 v{BE}, 0.15915494, v{BE}")
    e(f"v_mul_f32 v{CO}, v{P+4}, v56"); e(f"v_mul_f32 v{CO+1}, v{P+4}, v57")
    e(f"v_fma_f32 v{CO}, -v{P+5}, v57, v{CO}"); e(f"v_fma_f32 v{CO+1}, v{P+5}, v56, v{CO+1}")
    items = [(Z1, 1, T), (Z8, 8, T+2), (Z256, 256, T+4), (B0, 128, T+6)]
    for d, p, t in items:
        e(f"v_mul_f32 v{t}, {fhex(float(p))}, v{AL}"); e(f"v_mul_f32 v{t+1}, {fhex(float(p))}, v{BE}")
    for d, p, t in items:
        e(f"v_exp_f32 v{t}, v{t}"); e(f"v_fract_f32 v{t+1}, v{t+1}")
    for d, p, t in items:
        e(f"v_cos_f32 v{d}, v{t+1}"); e(f"v_sin_f32 v{d+1}, v{t+1}")
    e("v_nop")
    for d, p, t in items:
        e(f"v_mul_f32 v{d}, v{d}, v{t}"); e(f"v_mul_f32 v{d+1}, v{d+1}, v{t}")
    def cm(d, x, y):
        return [f"v_mul_f32 v{d}, v{x}, v{y}", f"v_mul_f32 v{d+1}, v{x}, v{y+1}",
                f"v_fma_f32 v{d}, -v{x+1}, v{y+1}, v{d}", f"v_fma_f32 v{d+1}, v{x+1}, v{y}, v{d+1}"]
    def put(vec, pr):
        return [f"v_cvt_pk_bf16_f32 v{KS+vec}, v{pr}, {'-' if vec < 32 else ''}v{pr+1}"]
    for d, x, y in ((Z2, Z1, Z1), (Z512, Z256, Z256), (CB, CO, Z256), (Z4, Z2, Z2), (DB0, CO, Z512)):
        out += cm(d, x, y)
    sA = [('p', 32, A0)]; cur, oth = A0, A1
    for b in range(1, 16):
        sA += [('m', oth, cur, Z8), ('p', 32 + b, oth)]; cur, oth = oth, cur
    sB = [('p', 48, B0)]; cur, oth = B0, B1
    for b in range(17, 32):
        sB += [('m', oth, cur, Z8), ('p', 32 + b, oth)]; cur, oth = oth, cur
    sC = [('p', 0, CO)]; cur = CO
    for ee in range(1, 8):
        d = (C0, C1_)[ee % 2]; sC += [('m', d, cur, Z1), ('p', ee, d)]; cur = d
    sC += [('p', 8, CB), ('m', C0, CB, Z2), ('p', 9, C0), ('m', C1_, C0, Z2), ('p', 10, C1_), ('p', 12, C1_),
           ('m', C0, C1_, Z2), ('p', 13, C0), ('m', C1_, C0, Z2), ('p', 14, C1_)]
    sD = [('p', 16, DB0), ('m', D0, DB0, Z4), ('p', 17, D0), ('p', 20, D0), ('m', D1, D0, Z4), ('p', 21, D1),
          ('m', DB1, DB0, Z256), ('p', 18, DB1), ('m', D0, DB1, Z4), ('p', 19, D0), ('p', 22, D0), ('m', D1, D0, Z4), ('p', 23, D1)]
    prev, nxt = DB1, DB0
    for q in range(4):
        sD += [('m', nxt, prev, Z256), ('p', 24 + q, nxt), ('m', (D0, D1)[q % 2], nxt, Z8), ('p', 28 + q, (D0, D1)[q % 2])]
        prev, nxt = nxt, prev
    seqs = [sA, sB, sC, sD]; pos = [0]*4
    while any(pos[q] < len(seqs[q]) for q in range(4)):
        for q in range(4):
            if pos[q] < len(seqs[q]):
                st = seqs[q][pos[q]]; pos[q] += 1
                out += put(st[1], st[2]) if st[0] == 'p' else cm(st[1], st[2], st[3])
    return out

def kv_writes():
    pre = [f"s_mul_i32 s{S_T0}, s{S_CH}, {KV_CH}", f"s_lshl_b32 s{S_T1}, s{S_MH}, 8", f"s_add_u32 s{S_T0}, s{S_T0}, s{S_T1}",
           f"s_add_u32 s{S_T0}, s{S_T0}, {L_KV}", f"v_lshl_add_u32 v58, v{V_LANE}, 2, s{S_T0}"]
    return pre + [f"ds_write_b32 v58, v{KS+v} offset:{v*528}" for v in range(64) if v not in (11, 15)]

def wd_touch(a):
    a.e(f"s_mul_i32 s{S_T0}, s{S_WG}, 5504")
    a.e(f"s_lshl_b32 s{S_T1}, s{S_W}, 10")
    a.e(f"s_add_u32 s{S_T0}, s{S_T0}, s{S_T1}")
    a.e(f"v_lshl_add_u32 v52, v{V_LANE}, 4, s{S_T0}")
    mk_srd(a, SRD_WD, P_WD, 1376 * 1024)
    a.vm(f"buffer_load_dwordx4 v[136:139], v52, s[{SRD_WD}:{SRD_WD+3}], 0 offen", "pf")
    a.e(f"v_add_u32 v52, 4096, v52")
    a.vm(f"buffer_load_dwordx4 v[136:139], v52, s[{SRD_WD}:{SRD_WD+3}], 0 offen", "pf")

def y_clear(a):
    a.e(f"s_and_b32 s{S_T0}, s{S_WG}, 7")
    a.e(f"s_lshr_b32 s{S_T1}, s{S_WG}, 3")
    a.e(f"s_lshl_b32 s{S_T0}, s{S_T0}, 6")
    a.e(f"s_lshl_b32 s{S_T1}, s{S_T1}, 1")
    a.e(f"s_add_u32 s{S_T0}, s{S_T0}, s{S_T1}")
    a.e(f"s_lshl_b32 s{S_T0}, s{S_T0}, 7")
    a.e(f"s_add_u32 s{S_T0}, s{S_T0}, {WS_Y}")
    a.e(f"s_lshl_b32 s{S_T1}, s{S_W}, 6")
    a.e(f"v_add_u32 v52, s{S_T1}, v{V_LANE}")
    a.e(f"v_lshrrev_b32 v53, 4, v52")
    a.e(f"v_lshlrev_b32 v53, 16, v53")
    a.e(f"v_and_b32 v52, 15, v52")
    a.e(f"v_lshl_add_u32 v52, v52, 4, v53")
    a.e(f"v_add_u32 v52, s{S_T0}, v52")
    a.e(f"v_add_u32 v53, {16*65536}, v52")
    for q in range(4): a.e(f"v_mov_b32 v{128+q}, -1")
    a.vm(f"global_store_dwordx4 v52, v[128:131], s[{P_WS}:{P_WS+1}] sc1", "ycl")
    a.vm(f"global_store_dwordx4 v53, v[128:131], s[{P_WS}:{P_WS+1}] sc1", "ycl")

def xt_loads(a):
    a.e(f"s_and_b32 s{S_T0}, s{S_WG}, 7")
    a.e(f"s_lshr_b32 s{S_T1}, s{S_WG}, 3")
    a.e(f"s_lshl_b32 s{S_T0}, s{S_T0}, 6")
    a.e(f"s_lshl_b32 s{S_T1}, s{S_T1}, 1")
    a.e(f"s_add_u32 s{S_T0}, s{S_T0}, s{S_T1}")
    a.e(f"s_lshl_b32 s{S_T0}, s{S_T0}, 4")
    a.e(f"s_lshl_b32 s{S_T1}, s{S_W}, 19")
    a.e(f"s_add_u32 s{S_T0}, s{S_T0}, s{S_T1}")
    a.e(f"s_add_u32 s{S_T0}, s{S_T0}, {WS_XT}")
    a.e(f"v_lshrrev_b32 v52, 1, v{V_LANE}")
    a.e(f"v_lshlrev_b32 v52, 13, v52")
    a.e(f"v_and_b32 v53, 1, v{V_LANE}")
    a.e(f"v_lshl_add_u32 v52, v53, 4, v52")
    a.e(f"v_add_u32 v52, s{S_T0}, v52")
    a.vm(f"global_load_dwordx4 {vr(C_XT,4)}, v52, s[{P_WS}:{P_WS+1}] sc1", "xt")
    a.e(f"v_add_u32 v52, {32*8192}, v52")
    a.vm(f"global_load_dwordx4 {vr(C_XT+4,4)}, v52, s[{P_WS}:{P_WS+1}] sc1", "xt")
    a.e(f"s_add_u32 s{S_T0}, s{S_T0}, {64*8192}")
    a.e(f"v_lshl_add_u32 v53, v53, 4, s{S_T0}")
    a.vm(f"global_load_dword v160, v53, s[{P_WS}:{P_WS+1}] sc1", "xt")

def u_build(a):
    a.vm_wait("xt")
    O = 132
    a.e(f"v_add_u32 v48, 2, v{V_LANE}")
    a.e("v_and_b32 v48, 63, v48")
    a.e("v_lshlrev_b32 v48, 2, v48")
    a.e(f"ds_bpermute_b32 v49, v48, v{C_XT}")
    a.e(f"ds_bpermute_b32 v50, v48, v{C_XT+4}")
    for q in range(2):
        X = C_XT + 4*q
        for k in range(3):
            a.e(f"v_alignbit_b32 v{O+4*q+k}, v{X+k+1}, v{X+k}, 16")
    a.e(f"v_and_b32 v51, 1, v{V_LANE}")
    a.e(f"v_mul_u32_u24 v51, {UU_CH}, v51")
    a.e(f"v_lshrrev_b32 v48, 1, v{V_LANE}")
    a.e("v_lshl_add_u32 v51, v48, 4, v51")
    a.e(f"s_lshl_b32 s{S_T0}, s{S_W}, 10")
    a.e(f"s_add_u32 s{S_T0}, s{S_T0}, {L_UU + 32}")
    a.e(f"v_add_u32 v51, s{S_T0}, v51")
    a.e(f"v_cmp_gt_u32 vcc, 62, v{V_LANE}")
    a.e("s_waitcnt lgkmcnt(0)")
    a.e("v_cndmask_b32 v49, v50, v49, vcc")
    a.e("v_cndmask_b32 v50, v160, v50, vcc")
    a.e(f"v_alignbit_b32 v{O+3}, v49, v{C_XT+3}, 16")
    a.e(f"v_alignbit_b32 v{O+7}, v50, v{C_XT+7}, 16")
    a.e(f"ds_write_b128 v51, {vr(C_XT,4)}")
    a.e(f"ds_write_b128 v51, {vr(C_XT+4,4)} offset:512")
    a.e(f"ds_write_b128 v51, {vr(O,4)} offset:4160")
    a.e(f"ds_write_b128 v51, {vr(O+4,4)} offset:{4160+512}")
    lab = a.label("nopad")
    a.e(f"s_cmp_lg_u32 s{S_W}, 0")
    a.e(f"s_cbranch_scc1 {lab}")
    a.e(f"v_lshlrev_b32 v48, 16, v{C_XT}")
    a.e(f"v_lshrrev_b32 v49, 3, v{V_LANE}")
    a.e(f"v_mul_u32_u24 v49, {UU_CH}, v49")
    a.e(f"v_and_b32 v50, 7, v{V_LANE}")
    a.e("v_lshl_add_u32 v49, v50, 2, v49")
    a.e(f"v_add_u32 v49, {L_UU}, v49")
    a.e("v_mov_b32 v50, 0")
    a.e(f"s_mov_b64 s[{S_EXEC}:{S_EXEC+1}], exec")
    a.e("s_mov_b64 exec, 0xffff")
    a.e("ds_write_b32 v49, v50")
    a.e("s_mov_b64 exec, 0x7f7f")
    a.e("ds_write_b32 v49, v50 offset:4160")
    a.e("s_mov_b64 exec, 3")
    a.e(f"ds_write_b32 v51, v48 offset:{4160 - 4}")
    a.e(f"s_mov_b64 exec, s[{S_EXEC}:{S_EXEC+1}]")
    a.e(f"{lab}:")

CV_A, CV_B, CV_ACC = [16, 80], [48, 112], 144
CVA, CVB, V_DSK = 2, 10, 11
def conv_addr(a):
    t = 12
    a.e(f"v_and_b32 v{t}, 15, v{V_LANE}")
    a.e(f"v_lshrrev_b32 v{t+1}, 4, v{V_LANE}")
    a.e(f"v_and_b32 v{t+2}, 1, v{t+1}")
    a.e(f"v_lshrrev_b32 v{t+1}, 1, v{t+1}")
    a.e(f"v_lshlrev_b32 v{t+3}, 5, v{t+1}")
    a.e(f"v_lshlrev_b32 v{t+2}, 4, v{t+2}")
    a.e(f"v_sub_u32 v{t+3}, v{t+3}, v{t+2}")
    a.e(f"s_lshl_b32 s{S_T2}, s{S_MH}, 6")
    a.e(f"s_mul_i32 s{S_T0}, s{S_CH}, {KR_CH}")
    a.e(f"s_add_u32 s{S_T0}, s{S_T0}, {L_KR + 496}")
    a.e(f"s_add_u32 s{S_T0}, s{S_T0}, s{S_T2}")
    a.e(f"v_lshlrev_b32 v{t+2}, 5, v{t}")
    a.e(f"v_sub_u32 v{t+2}, v{t+3}, v{t+2}")
    a.e(f"v_add_u32 v{CVB}, s{S_T0}, v{t+2}")
    a.e(f"s_mul_i32 s{S_T0}, s{S_CH}, {UU_CH}")
    a.e(f"s_add_u32 s{S_T0}, s{S_T0}, {L_UU}")
    a.e(f"s_add_u32 s{S_T0}, s{S_T0}, s{S_T2}")
    a.e(f"v_and_b32 v{t+2}, 1, v{t}")
    a.e(f"v_cmp_eq_u32 vcc, 1, v{t+2}")
    a.e(f"v_mov_b32 v{t+2}, {4160+16}")
    a.e(f"v_lshl_add_u32 v{t+3}, v{t}, 1, v{t+3}")
    a.e(f"v_mov_b32 v{t+1}, 18")
    a.e(f"v_cndmask_b32 v{t+2}, v{t+2}, v{t+1}, vcc")
    a.e(f"v_add_u32 v{t+3}, v{t+3}, v{t+2}")
    a.e(f"v_add_u32 v{CVA}, s{S_T0}, v{t+3}")
    for al in range(1, 8):
        a.e(f"v_add_u32 v{CVA+al}, {512*al}, v{CVA}")

def k_part(a):
    FR, KD = 16, 144
    a.e(f"v_and_b32 v12, 31, v{V_LANE}")
    a.e("v_mul_u32_u24 v13, 528, v12")
    a.e(f"v_lshrrev_b32 v14, 5, v{V_LANE}")
    a.e("v_lshl_add_u32 v13, v14, 4, v13")
    a.e(f"s_mul_i32 s{S_T0}, s{S_CH}, {KV_CH}")
    a.e(f"s_add_u32 s{S_T0}, s{S_T0}, {L_KV}")
    a.e(f"v_add_u32 v13, s{S_T0}, v13")
    for k in range(16):
        a.e(f"ds_read_b128 {vr(FR+8*k,4)}, v13 offset:{k*32}")
        a.e(f"ds_read_b128 {vr(FR+8*k+4,4)}, v13 offset:{32*528 + k*32}")
    a.e(f"s_mul_i32 s{S_T0}, s{S_CH}, {KR_CH}")
    a.e(f"s_add_u32 s{S_T0}, s{S_T0}, {L_KR + 504}")
    a.e("v_lshlrev_b32 v12, 4, v12")
    a.e("v_lshl_add_u32 v12, v14, 3, v12")
    a.e(f"v_sub_u32 v12, s{S_T0}, v12")
    a.e(f"s_add_u32 s{S_T0}, s{S_T0}, {4096 - 504}")
    a.e(f"v_lshl_add_u32 v15, v{V_LANE}, 4, s{S_T0}")
    a.e("s_waitcnt lgkmcnt(0)")
    for k in range(16):
        a.e(f"v_mfma_f32_32x32x16_bf16 {vr(KD,16)}, {vr(FR+8*k,4)}, {vr(FR+8*k+4,4)}, {'0' if k == 0 else vr(KD,16)}")
    lab1, lab2 = a.label("ex1"), a.label("ex2")
    a.e(f"v_cmp_le_u32 vcc, 32, v{V_LANE}")
    a.e(f"v_and_b32 v16, 1, v{V_LANE}")
    a.e(f"v_cmp_eq_u32 s[{S_TMP}:{S_TMP+1}], 1, v16")
    for q in range(4): a.e(f"v_mov_b32 v{24+q}, 0")
    a.e("s_nop 4")
    a.e(f"s_cmp_eq_u32 s{S_MH}, 0")
    a.e(f"s_cbranch_scc0 {lab1}")
    D = KD
    a.e(f"v_cvt_pk_bf16_f32 v20, v{D+3}, v{D+2}")
    a.e(f"v_cvt_pk_bf16_f32 v21, v{D+1}, v{D}")
    a.e(f"v_cvt_pk_bf16_f32 v22, v{D+6}, v{D+5}")
    a.e(f"v_cvt_pk_bf16_f32 v23, v{D+4}, v{D+4}")
    a.e("ds_write_b64 v12, v[20:21] offset:3584")
    a.e("ds_write_b64 v12, v[22:23] offset:3072")
    a.e(f"s_mov_b64 s[{S_EXEC}:{S_EXEC+1}], exec")
    a.e("s_mov_b64 exec, 0x3fffffff")
    a.e("ds_write_b128 v15, v[24:27]")
    a.e(f"s_mov_b64 exec, s[{S_EXEC}:{S_EXEC+1}]")
    a.e(f"s_branch {lab2}")
    a.e(f"{lab1}:")
    D = KD + 8
    for q in range(4):
        a.e(f"v_mov_b32 v{28+2*q}, v{D+4+q}")
        a.e(f"v_mov_b32 v{29+2*q}, v{D+4+q}")
    for q in range(2):
        A_, B_ = D + 2*q, D + 2*q + 1
        a.e(f"v_cndmask_b32 v24, v{A_}, v{B_}, vcc")
        a.e(f"v_cvt_pk_bf16_f32 v{20+2*q+0}, v{B_}, v24")
        a.e(f"v_cvt_pk_bf16_f32 v{20+2*q+1}, v{A_}, v{A_}")
    for q in range(4):
        a.e(f"v_permlane32_swap_b32 v{28+2*q}, v{29+2*q}")
    a.e("ds_write_b64 v12, v[20:21] offset:2560")
    a.e("ds_write_b64 v12, v[22:23] offset:2048")
    for q in range(4):
        a.e(f"v_cndmask_b32 v{28+2*q}, v{28+2*q}, v{D+4+q}, s[{S_TMP}:{S_TMP+1}]")
    for q in range(4):
        a.e(f"v_cvt_pk_bf16_f32 v{36+2*q}, v{D+4+q}, v{D+4+q}")
        a.e(f"v_cvt_pk_bf16_f32 v{37+2*q}, v{D+4+q}, v{28+2*q}")
    for q in range(4):
        a.e(f"ds_write_b64 v12, {vr(36+2*q,2)} offset:{1536 - 512*q}")
    a.e(f"{lab2}:")

def conv_main(a, late, dmas):
    def reads(st, q):
        r = [f"ds_read_b128 {vr(CV_B[st]+4*al,4)}, v{CVB} offset:{512*(7-al) + 128*q}" for al in range(8)]
        for al in range(8):
            r.append(f"ds_read2_b32 {vr(CV_A[st]+4*al,2)}, v{CVA+al} offset0:{32*q} offset1:{32*q+1}")
            r.append(f"ds_read2_b32 {vr(CV_A[st]+4*al+2,2)}, v{CVA+al} offset0:{32*q+2} offset1:{32*q+3}")
        return r
    for x in reads(0, 0): a.e(x)
    st = 0
    for q in range(4):
        a.e("s_waitcnt lgkmcnt(0)" if q else "s_waitcnt lgkmcnt(14)")
        mf = []
        for al in range(8):
            for be in range(8 - al):
                I = al + be
                mf.append(f"v_mfma_f32_16x16x32_bf16 {vr(CV_ACC+4*I,4)}, {vr(CV_A[st]+4*al,4)}, {vr(CV_B[st]+4*be,4)}, {'0' if (q == 0 and al == 0) else vr(CV_ACC+4*I,4)}")
        slots = {i: [] for i in range(36)}
        if q == 0: slots[7].append("s_waitcnt lgkmcnt(0)")
        if q < 3:
            base = 8 if q == 0 else 0
            for k, x in enumerate(reads(st ^ 1, q + 1)): slots[base + k].append(x)
        for sl, it in late.get(q, []): slots[sl].append(it)
        dl = dmas.get(q, [])
        for k, g in enumerate(dl): place(slots, 1 + (k * 33) // len(dl), g)
        stamp(a, f"cv{q}")
        sched(a, mf, slots)
        st ^= 1

def conv_finish(a):
    a.e(f"s_lshl_b32 s{S_T0}, s{S_W}, 12")
    a.e(f"s_add_u32 s{S_T0}, s{S_T0}, {L_CX}")
    a.e(f"v_lshl_add_u32 v2, v{V_LANE}, 4, s{S_T0}")
    a.e(f"s_xor_b32 s{S_T1}, s{S_W}, 1")
    a.e(f"s_lshl_b32 s{S_T1}, s{S_T1}, 12")
    a.e(f"s_add_u32 s{S_T1}, s{S_T1}, {L_CX}")
    a.e(f"v_lshl_add_u32 v3, v{V_LANE}, 4, s{S_T1}")
    a.e(f"s_mul_i32 s{S_T0}, s{S_CH}, {UU_CH}")
    a.e(f"s_add_u32 s{S_T0}, s{S_T0}, {L_UU + 32}")
    a.e(f"s_lshl_b32 s{S_T1}, s{S_MH}, 11")
    a.e(f"s_add_u32 s{S_T0}, s{S_T0}, s{S_T1}")
    a.e(f"v_and_b32 v4, 15, v{V_LANE}")
    a.e(f"v_lshrrev_b32 v5, 4, v{V_LANE}")
    a.e(f"v_lshlrev_b32 v6, 5, v4")
    a.e(f"v_lshl_add_u32 v6, v5, 3, v6")
    a.e(f"v_add_u32 v6, s{S_T0}, v6")
    lab1, lab2 = a.label("cx1"), a.label("cx2")
    a.e(f"s_cmp_eq_u32 s{S_MH}, 0")
    a.e(f"s_cbranch_scc1 {lab1}")
    for k in range(4):
        a.e(f"ds_write_b128 v2, {vr(CV_ACC+4*k,4)} offset:{1024*k}")
    for q in range(8):
        a.e(f"v_pk_mul_f32 {vr(CV_ACC+2*q,2)}, {vr(CV_ACC+16+2*q,2)}, 1.0 op_sel_hi:[1,0]")
    a.e(f"s_branch {lab2}")
    a.e(f"{lab1}:")
    for k in range(4):
        a.e(f"ds_write_b128 v2, {vr(CV_ACC+16+4*k,4)} offset:{1024*k}")
    a.e(f"{lab2}:")
    for k in range(4):
        a.e(f"ds_read_b64 {vr(16+2*k,2)}, v6 offset:{512*k}")
    a.e(f"s_lshl_b32 s{S_T0}, s{S_MH}, 20")
    a.e(f"s_lshl_b32 s{S_T1}, s{S_D}, 7")
    a.e(f"s_add_u32 s{S_T0}, s{S_T0}, s{S_T1}")
    a.e(f"s_add_u32 s{S_T0}, s{S_T0}, {WS_Y}")
    a.e(f"v_lshrrev_b32 v7, 2, v4")
    a.e(f"v_lshlrev_b32 v7, 16, v7")
    a.e(f"v_and_b32 v8, 3, v4")
    a.e(f"v_lshl_add_u32 v7, v8, 5, v7")
    a.e(f"v_lshl_add_u32 v7, v5, 3, v7")
    a.e(f"v_add_u32 v7, s{S_T0}, v7")
    a.e("s_waitcnt lgkmcnt(0)")
    a.bar("cx")
    for k in range(4):
        a.e(f"ds_read_b128 {vr(64+4*k,4)}, v3 offset:{1024*k}")
    U = 32
    for k in range(4):
        a.e(f"v_lshlrev_b32 v{U+4*k}, 16, v{16+2*k}")
        a.e(f"v_and_b32 v{U+4*k+1}, 0xffff0000, v{16+2*k}")
        a.e(f"v_lshlrev_b32 v{U+4*k+2}, 16, v{17+2*k}")
        a.e(f"v_and_b32 v{U+4*k+3}, 0xffff0000, v{17+2*k}")
    a.e(f"v_mov_b32 v10, v{V_DSK}")
    for k in range(8):
        a.e(f"v_pk_fma_f32 {vr(CV_ACC+2*k,2)}, {vr(U+2*k,2)}, v[10:11], {vr(CV_ACC+2*k,2)}")
    a.vm_wait("wd3", "wd6") if OPT.get("gwd", 1) else a.vm_wait("wd3", "wd4", "wd5", "wd6")
    a.e("s_waitcnt lgkmcnt(0)")
    a.bar("cd")
    for k in range(8):
        a.e(f"v_pk_add_f32 {vr(CV_ACC+2*k,2)}, {vr(CV_ACC+2*k,2)}, {vr(64+2*k,2)}")
    for k in range(8):
        a.e(f"v_cvt_pk_bf16_f32 v{16+k}, v{CV_ACC+2*k}, v{CV_ACC+2*k+1}")
    for k in range(4):
        a.vm(f"global_store_dwordx2 v7, {vr(16+2*k,2)}, s[{P_WS}:{P_WS+1}] sc1", "pubY")
        if k < 3: a.e(f"v_add_u32 v7, {4*65536}, v7")


def role_c(a):
    a.e("L_role_c:")
    c_setup(a)
    a_read_addr(a, C_AADDR, 12)
    a.e("s_waitcnt lgkmcnt(0)")
    a.e(f"s_mov_b32 s{S_ROLE}, 1")
    stamp(a, 0, real=True); stamp(a, 1)
    mk_srd(a, SRD_X, P_X, 2048 * 1024)
    mk_srd(a, SRD_WG, P_WG, 512 * 2752)
    mk_srd(a, SRD_WU, P_WU, 512 * 2752)
    epoch_load(a, 13, 54)
    delay(a, "p_cstart")
    for g in stage_dma(0): emit(a, g)
    d1 = stage_dma(1)
    n1 = OPT.get("n1", 4)
    for g in d1[:n1]: emit(a, g)
    a.vm_wait("st0")
    a.bar("b0")
    stamp(a, "b0")
    for g in d1[n1:]: emit(a, g)
    epoch_finish(a, 54)
    cs_block(a)
    for g in stage_dma(2): emit(a, g)
    kgen_loads(a)
    prog = [lambda a: a.vm_wait("kp")] + kgen_prog()
    nst = 4
    per = (len(prog) + nst - 1) // nst
    pos = 0
    for stage in range(7):
        a.e("s_waitcnt lgkmcnt(0)")
        a.vm_wait(f"st{stage+1}")
        a.bar(f"s{stage}")
        stamp(a, f"cs{stage}")
        if stage == 3: delay(a, "p_cs3")
        dm = stage_dma(stage + 3) if stage + 3 < 8 else []
        if stage == OPT.get("touchstage", 2) and OPT.get("wdtouch", 1):
            wd_touch(a)
        if stage == OPT.get("yclrstage", 3):
            y_clear(a)
        work = []
        if 1 <= stage <= nst:
            work = prog[pos:pos + per]; pos += per
        if stage == 5 and OPT.get("kvearly", 1):
            work = kv_writes()[:OPT.get("kvsplit", 35)]
        if stage == 6:
            work = (kv_writes()[OPT.get("kvsplit", 35):] if OPT.get("kvearly", 1) else [])
        if stage == OPT.get("cpoll", 5):
            work = work + [lambda a: ln_poll_issue(a, 59, 132)]
        if stage == OPT.get("cchk", 6):
            work = [lambda a: ln_poll_check(a, 59, 132), xt_loads] + work
        step = max(1, len(work) // max(1, len(dm))) if dm else len(work)
        while dm or work:
            if dm: emit(a, dm.pop(0))
            for _ in range(step if dm else len(work)):
                if work: emit(a, work.pop(0))
    assert pos >= len(prog)
    a.e(f"v_mov_b32 v{V_DSK}, v{C_P+7}")
    a.e("s_waitcnt lgkmcnt(0)")
    a.bar("rf")
    stamp(a, "crf")
    delay(a, "p_crf")
    if OPT.get("cprio2") is not None: a.e(f"s_setprio {OPT['cprio2']}")
    if OPT.get("cchk", 6) > 6:
        ln_poll_check(a, 59, 132)
        xt_loads(a)
    if not OPT.get("kvearly", 1):
        for x in kv_writes(): a.e(x)
        a.e("s_waitcnt lgkmcnt(0)")
        a.bar("kv")
    stamp(a, "ckv")
    if OPT.get("kdelay"): a.bar("e")
    k_part(a)
    stamp(a, "ckp")
    u_build(a)
    stamp(a, "cub")
    conv_addr(a)
    wd_setup(a, 13, 12)
    a.vm_wait("ycl")
    a.e("s_waitcnt lgkmcnt(0)")
    a.bar("k")
    stamp(a, "ck")
    delay(a, "p_cconv")
    if OPT.get("gwd", 1):
        dm = {0: wd_groups(3, 12) + wd_groups(6, 12)[:2], 1: wd_groups(6, 12)[2:]}
    else:
        dm = {0: wd_groups(3, 12) + wd_groups(6, 12)[:4], 1: wd_groups(6, 12)[4:] + wd_groups(4, 12)[:4], 2: wd_groups(4, 12)[4:] + wd_groups(5, 12)[:6], 3: wd_groups(5, 12)[6:]}
    conv_main(a, {OPT.get("pbar", 2): [(OPT.get("pslot", 20), lambda a: a.bar("p"))]}, dm)
    stamp(a, "convm")
    conv_finish(a)
    stamp(a, "conv")
    a.e("s_waitcnt vmcnt(0)")
    stamp(a, 9, real=True)
    prof_store(a)
    a.e("s_endpgm")


def main():
    global PROF
    PROF = "prof" in sys.argv
    for x in sys.argv[1:]:
        if "=" in x:
            k, v = x.split("=")
            if k == "stamps": STAMPS[:] = v.split(",")
            else: OPT[k] = int(v)
    shared = [0]
    a0 = A2(shared); entry(a0)
    g = A2(shared); g.vmq = list(a0.vmq); role_g(g)
    c = A2(shared); c.vmq = list(a0.vmq); role_c(c)
    gb = [b for b in g.bars if b != "fin"]
    assert gb == c.bars, (gb, c.bars)
    out = [HDR, f"; @launch grid=(256,1,1) block=(512,1,1) lds={LDS_BYTES}",
           '.amdgcn_target "amdgcn-amd-amdhsa--gfx950"', '.text', a0.text(), g.text(), c.text(),
           "L_end:", "  s_endpgm", "  .fill 8448, 4, 0xbf800000", '.section .rodata,"a"', kd(NAME, 176, 80)]
    print('\n'.join(out))

if __name__ == "__main__":
    main()
```

```python
import sys, math
from asmlib import *

NAME = "parallel_sum__ssm_conv_s4__geglu_ffn__prompt_kernel"
OPT = {}
PROF = False
STAMPS = []
HDR = open('parallel_sum__ssm_conv_s4__geglu_ffn__prompt.s.ref').read().split('; Override')[0].rstrip()

WS_FLAG_LN, WS_FLAG_H, WS_FLAG_Y = 4096, 8192, 12288
WS_STATS, WS_CS = 65536, 131072
WS_XT, WS_Y, WS_H = 1 << 20, 4 << 20, 8 << 20
WS_DUMMY, WS_PROF = 15 << 20, 16 << 20
SPIN_MAX = 1 << 17

S_WG, S_W, S_I, S_J, S_TW, S_FW, S_U0, S_KC = 2, 3, 4, 5, 6, 7, 8, 9
S_T0, S_T1, S_T2, S_SPIN, S_TAG, S_WDL = 10, 11, 12, 13, 14, 15
P_X, P_ARE, P_AIM, P_BRE, P_BIM, P_CRE, P_CIM, P_LDT = 16, 18, 20, 22, 24, 26, 28, 30
P_DSK, P_BX, P_WG, P_WU, P_WD, P_OUT, P_DBG, P_WS = 32, 34, 36, 38, 40, 42, 44, 46
S_EP, S_ROLE = 34, 35
SRD_X, SRD_WG, SRD_WU, SRD_WD = 48, 52, 56, 60
S_XW, S_WW, S_XO, S_WO, S_LX, S_LW = 64, 65, 66, 67, 68, 69
S_EXEC = 70
S_NU, S_CSH = 72, 73
S_WDS = 73
S_TMP = 74
S_D, S_CH, S_MH, S_TH, S_NT, S_WDO = 76, 77, 78, 79, 80, 81
S_PROF = 82

LDS_BYTES = 163840
SLOT = 41216
L_X, L_G, L_U = 0, 16384, 28704
L_LN = 3 * SLOT
KV_CH, KR_CH, UU_CH = 64 * 528, 4608, 8320
L_KV = 2 * SLOT
L_KR = 150016
L_UU = 24576
L_CX = 131584
WD = {1: (0, 6144, 0, 3), 2: (SLOT, 10240, 3, 5),
      4: (0, 6144, 8, 3), 5: (SLOT, 10240, 11, 5),
      3: (115200, 4096, 16, 2),
      6: (2 * SLOT, 8192, 18, 4)}
def wd_areg(q): return 8 * q if q < 8 else 64 + 8 * (q - 16)
def wd_in_agpr(q): return q < 8 or q in (16, 17)
RED_UNIT = [115200 + 4096 * u for u in range(8)] + [L_UU + 4096 * u for u in range(4)]
L_YB = 150016

V_LANE = 1


def stamp(a, idx, real=False):
    if PROF:
        if isinstance(idx, str):
            if idx not in STAMPS: return
            idx = 2 + STAMPS.index(idx)
        a.e(f"{'s_memrealtime' if real else 's_memtime'} s[{S_PROF+2*idx}:{S_PROF+2*idx+1}]")

def prof_store(a):
    if not PROF: return
    a.e("s_waitcnt lgkmcnt(0)")
    for q in range(10):
        a.e(f"v_mov_b32 v{4+q}, s{S_PROF+2*q}")
    a.e(f"s_lshl_b32 s{S_T0}, s{S_ROLE}, 2")
    a.e(f"s_add_u32 s{S_T0}, s{S_T0}, s{S_W}")
    a.e(f"s_lshl_b32 s{S_T1}, s{S_WG}, 3")
    a.e(f"s_add_u32 s{S_T0}, s{S_T0}, s{S_T1}")
    a.e(f"s_lshl_b32 s{S_T0}, s{S_T0}, 6")
    a.e(f"s_add_u32 s{S_T0}, s{S_T0}, {WS_PROF}")
    a.e(f"v_mov_b32 v2, s{S_T0}")
    a.e("s_mov_b64 exec, 1")
    a.e(f"global_store_dwordx4 v2, v[4:7], s[{P_WS}:{P_WS+1}]")
    a.e(f"global_store_dwordx4 v2, v[8:11], s[{P_WS}:{P_WS+1}] offset:16")
    a.e(f"global_store_dwordx2 v2, v[12:13], s[{P_WS}:{P_WS+1}] offset:32")


class A2(Asm):
    def __init__(self, shared):
        super().__init__()
        self.bars = []
        self.shared = shared
    def label(self, base):
        self.shared[0] += 1
        return f"L_{base}_{self.shared[0]}"
    def bar(self, name):
        self.e("s_barrier")
        self.bars.append(name)


class Rec:
    def __init__(self, a):
        self.ops = []; self.a = a
    def e(self, s):
        for l in s.split('\n'):
            if l.strip(): self.ops.append(('e', l.strip()))
    def vm(self, s, tag): self.ops.append(('vm', s, tag))
    def vm_wait(self, *tags): self.ops.append(('wait', tags))
    def label(self, b): return self.a.label(b)
    def bar(self, name): self.ops.append(('bar', name))

def replay(a, ops, fillers, every, start=0):
    fill = list(fillers); n = 0
    for o in ops:
        if o[0] == 'e': a.e(o[1])
        elif o[0] == 'vm': a.vm(o[1], o[2])
        elif o[0] == 'wait': a.vm_wait(*o[1])
        elif o[0] == 'bar': a.bar(o[1])
        n += 1
        if fill and n >= start and (n - start) % every == 0:
            emit(a, fill.pop(0))
    for g in fill: emit(a, g)

def emit(a, g):
    if callable(g): g(a)
    elif isinstance(g, tuple): a.vm(g[0], g[1])
    elif isinstance(g, list):
        for t in g: emit(a, t)
    else: a.e(g)

class Dma(list):
    def __init__(self, pre, m0, ld, post=()):
        super().__init__(list(pre) + [m0, "s_nop 0", ld] + list(post))
        self.head = list(pre) + [m0]
        self.tail = [ld] + list(post)

def place(slots, p, g):
    if isinstance(g, Dma) and p >= 1:
        slots[p - 1].append(g.head); slots[p].insert(0, g.tail)
    else:
        slots[p].append(g)

def sched(a, mf, slots):
    for i, m in enumerate(mf):
        a.e(m)
        for it in slots.get(i, []): emit(a, it)

def mk_srd(a, srd, ptr, nbytes):
    a.e(f"s_mov_b32 s{srd}, s{ptr}")
    a.e(f"s_and_b32 s{srd+1}, s{ptr+1}, 0xffff")
    a.e(f"s_mov_b32 s{srd+2}, {nbytes}")
    a.e(f"s_mov_b32 s{srd+3}, 0x20000")

def dpp_reduce(a, regs):
    steps = ["quad_perm:[1,0,3,2] row_mask:0xf bank_mask:0xf", "quad_perm:[2,3,0,1] row_mask:0xf bank_mask:0xf",
             "row_half_mirror row_mask:0xf bank_mask:0xf", "row_mirror row_mask:0xf bank_mask:0xf",
             "row_bcast:15 row_mask:0xa bank_mask:0xf", "row_bcast:31 row_mask:0xc bank_mask:0xf"]
    assert len(regs) >= 3
    for st in steps:
        for r in regs:
            a.e(f"v_add_f32_dpp v{r}, v{r}, v{r} {st}")
    a.e("s_nop 1")


def entry(a):
    a.e(f".globl {NAME}\n.p2align 8\n.type {NAME},@function\n{NAME}:")
    a.e(f"s_cmp_ge_u32 s{S_WG}, 256")
    a.e(f"s_cbranch_scc1 L_end")
    a.e("s_load_dwordx16 s[16:31], s[0:1], 0")
    a.e("s_load_dwordx16 s[32:47], s[0:1], 64")
    a.e("s_getpc_b64 s[74:75]")
    a.e(f"s_lshr_b32 s{S_T1}, s{S_WG}, 3")
    a.e(f"s_and_b32 s{S_T2}, s{S_T1}, 15")
    a.e(f"s_lshl_b32 s{S_T2}, s{S_T2}, 11")
    a.e(f"v_lshl_add_u32 v2, v0, 2, s{S_T2}")
    a.vm(f"global_load_dword v175, v2, s[74:75]", "pf")
    a.e(f"v_and_b32 v{V_LANE}, 63, v0")
    a.e(f"v_lshrrev_b32 v3, 6, v0")
    a.e(f"s_and_b32 s{S_T0}, s{S_WG}, 7")
    a.e(f"v_readfirstlane_b32 s{S_W}, v3")
    a.e(f"s_lshr_b32 s{S_I}, s{S_T0}, 1")
    a.e(f"s_lshl_b32 s{S_I}, s{S_I}, 2")
    a.e(f"s_lshr_b32 s{S_T2}, s{S_T1}, 3")
    a.e(f"s_add_u32 s{S_I}, s{S_I}, s{S_T2}")
    a.e(f"s_and_b32 s{S_J}, s{S_T0}, 1")
    a.e(f"s_lshl_b32 s{S_J}, s{S_J}, 3")
    a.e(f"s_and_b32 s{S_T2}, s{S_T1}, 7")
    a.e(f"s_add_u32 s{S_J}, s{S_J}, s{S_T2}")
    a.e(f"s_lshr_b32 s{S_TMP}, s{S_W}, 2")
    a.e(f"s_and_b32 s{S_W}, s{S_W}, 3")
    a.e(f"s_lshr_b32 s{S_TW}, s{S_W}, 1")
    a.e(f"s_and_b32 s{S_FW}, s{S_W}, 1")
    a.e(f"s_mul_i32 s{S_U0}, s{S_J}, 3")
    a.e(f"s_lshl_b32 s{S_T2}, s{S_J}, 1")
    a.e(f"s_add_u32 s{S_T2}, s{S_T2}, 11")
    a.e(f"s_min_u32 s{S_U0}, s{S_U0}, s{S_T2}")
    a.e(f"s_cmp_lt_u32 s{S_J}, 11")
    a.e(f"s_cselect_b32 s{S_NU}, 6, 4")
    a.e(f"s_lshr_b32 s{S_CSH}, s{S_I}, 3")
    a.e(f"s_lshl_b32 s{S_D}, s{S_T0}, 6")
    a.e(f"s_lshl_b32 s{S_T1}, s{S_T1}, 1")
    a.e(f"s_add_u32 s{S_D}, s{S_D}, s{S_T1}")
    a.e(f"s_add_u32 s{S_D}, s{S_D}, s{S_TW}")
    a.e(f"s_mov_b32 s{S_CH}, s{S_TW}")
    a.e(f"s_mov_b32 s{S_MH}, s{S_FW}")
    a.e(f"s_lshr_b32 s{S_TH}, s{S_J}, 3")
    if OPT.get("ntoff"):
        a.e(f"s_add_u32 s{S_NT}, s{S_J}, {OPT['ntoff']}")
        a.e(f"s_and_b32 s{S_NT}, s{S_NT}, 7")
    else:
        a.e(f"s_and_b32 s{S_NT}, s{S_J}, 7")
    a.e(f"s_cmp_lg_u32 s{S_TMP}, 0")
    a.e(f"s_cbranch_scc1 L_role_c")

def epoch_load(a, vtmp, vdst):
    a.e(f"v_mov_b32 v{vtmp}, 0")
    a.vm(f"global_load_dword v{vdst}, v{vtmp}, s[{P_WS}:{P_WS+1}] sc1", "ep")

def epoch_finish(a, vdst):
    a.vm_wait("ep")
    a.e("s_nop 0")
    a.e(f"v_readfirstlane_b32 s{S_EP}, v{vdst}")
    a.e("s_nop 3")
    a.e(f"s_mul_i32 s{S_TAG}, s{S_EP}, 0x9e3779b1")
    a.e(f"s_add_u32 s{S_TAG}, s{S_TAG}, 0x3c6ef373")

def flag_store(a, region, idx_code, va, vb):
    lab = a.label("nofl")
    a.e(f"s_cmp_lg_u32 s{S_W}, 0")
    a.e(f"s_cbranch_scc1 {lab}")
    idx_code(a)
    a.e(f"s_lshl_b32 s{S_T0}, s{S_T0}, 2")
    a.e(f"s_add_u32 s{S_T0}, s{S_T0}, {region}")
    a.e(f"v_mov_b32 v{va}, s{S_T0}")
    a.e(f"v_mov_b32 v{vb}, s{S_TAG}")
    a.e(f"s_mov_b64 s[{S_EXEC}:{S_EXEC+1}], exec")
    a.e("s_mov_b64 exec, 1")
    a.e(f"global_store_dword v{va}, v{vb}, s[{P_WS}:{P_WS+1}] sc1")
    a.e(f"s_mov_b64 exec, s[{S_EXEC}:{S_EXEC+1}]")
    a.e(f"{lab}:")

def idx_ln(a): a.e(f"s_mov_b32 s{S_T0}, s{S_WG}")
def idx_h(a):
    a.e(f"s_lshl_b32 s{S_T0}, s{S_I}, 4")
    a.e(f"s_add_u32 s{S_T0}, s{S_T0}, s{S_J}")
def idx_y(a):
    a.e(f"s_and_b32 s{S_T0}, s{S_WG}, 7")
    a.e(f"s_lshl_b32 s{S_T0}, s{S_T0}, 5")
    a.e(f"s_lshr_b32 s{S_T1}, s{S_WG}, 3")
    a.e(f"s_add_u32 s{S_T0}, s{S_T0}, s{S_T1}")

def spin_tail(a, top, ok, reloads):
    a.e(f"s_cmp_eq_u64 vcc, 0")
    a.e(f"s_cbranch_scc1 {ok}")
    a.e(f"s_add_u32 s{S_SPIN}, s{S_SPIN}, 1")
    a.e(f"s_cmp_gt_u32 s{S_SPIN}, {SPIN_MAX}")
    a.e(f"s_cbranch_scc1 {ok}")
    a.e(f"s_sleep {OPT.get('sleep', 8)}")
    for r in reloads: a.e(r)
    a.e("s_waitcnt vmcnt(0)")
    a.e(f"s_branch {top}")
    a.e(f"{ok}:")

def ln_poll_issue(a, vaddr, vdst):
    a.e(f"v_lshlrev_b32 v{vaddr}, 4, v{V_LANE}")
    a.e(f"v_add_u32 v{vaddr}, {WS_FLAG_LN}, v{vaddr}")
    a.vm(f"global_load_dwordx4 {vr(vdst,4)}, v{vaddr}, s[{P_WS}:{P_WS+1}] sc1", "pl")

def ln_poll_check(a, vaddr, vdst):
    top, ok = a.label("poll"), a.label("pollok")
    a.vm_wait("pl")
    a.e(f"s_mov_b32 s{S_SPIN}, 0")
    a.e(f"{top}:")
    a.e(f"v_cmp_ne_u32 vcc, s{S_TAG}, v{vdst}")
    for q in range(1, 4):
        a.e(f"v_cmp_ne_u32 s[74:75], s{S_TAG}, v{vdst+q}")
        a.e("s_nop 0")
        a.e("s_or_b64 vcc, vcc, s[74:75]")
    a.e("s_nop 1")
    spin_tail(a, top, ok, [f"global_load_dwordx4 {vr(vdst,4)}, v{vaddr}, s[{P_WS}:{P_WS+1}] sc1"])


G_ACC = 16
def acc(tt, ap): return G_ACC + 16 * (3 * tt + ap)
G_FR = [112, 132]
def fB(st, tt): return G_FR[st] + 4 * tt
def fA(st, ap): return G_FR[st] + 8 + 4 * ap
G_BADDR, G_AADDR = 160, 164

def a_read_addr(a, dst, t0):
    a.e(f"v_lshrrev_b32 v{t0}, 4, v{V_LANE}")
    a.e(f"v_and_b32 v{t0+1}, 1, v{t0}")
    a.e(f"v_lshrrev_b32 v{t0}, 1, v{t0}")
    a.e(f"v_bfe_u32 v{t0+2}, v{V_LANE}, 2, 2")
    a.e(f"v_lshl_add_u32 v{t0+2}, v{t0}, 3, v{t0+2}")
    a.e(f"v_mul_u32_u24 v{t0+2}, 192, v{t0+2}")
    a.e(f"v_and_b32 v{t0+3}, 3, v{V_LANE}")
    a.e(f"v_lshl_add_u32 v{t0+2}, v{t0+3}, 3, v{t0+2}")
    a.e(f"v_mul_u32_u24 v{t0+1}, {L_U - L_G}, v{t0+1}")
    a.e(f"v_add_u32 v{t0+2}, v{t0+2}, v{t0+1}")
    a.e(f"s_mul_i32 s{S_T0}, s{S_FW}, 96")
    a.e(f"s_add_u32 s{S_T0}, s{S_T0}, {L_G}")
    a.e(f"v_add_u32 v{dst}, s{S_T0}, v{t0+2}")

def g_setup(a):
    a.e(f"v_and_b32 v12, 31, v{V_LANE}")
    a.e(f"v_lshrrev_b32 v13, 5, v{V_LANE}")
    a.e(f"v_bfe_u32 v14, v12, 1, 3")
    a.e(f"s_lshl_b32 s{S_T0}, s{S_TW}, 13")
    a.e(f"v_lshl_add_u32 v15, v12, 7, s{S_T0}")
    for s_ in range(4):
        a.e(f"v_add_u32 v11, {2*s_}, v13")
        a.e(f"v_xor_b32 v11, v11, v14")
        a.e(f"v_lshl_add_u32 v{G_BADDR+s_}, v11, 4, v15")
    a_read_addr(a, G_AADDR, 12)
    a.e(f"s_lshl_b32 s{S_T0}, s{S_I}, 7")
    a.e(f"s_lshl_b32 s{S_T1}, s{S_J}, 3")
    a.e(f"s_add_u32 s{S_T0}, s{S_T0}, s{S_T1}")
    a.e(f"s_lshl_b32 s{S_T1}, s{S_W}, 1")
    a.e(f"s_add_u32 s{S_T0}, s{S_T0}, s{S_T1}")
    a.e(f"s_lshl_b32 s{S_T0}, s{S_T0}, 10")
    a.e(f"v_lshl_add_u32 v7, v{V_LANE}, 4, s{S_T0}")

def ln_first(a):
    a.vm_wait("ln")
    for r in range(2):
        for d in range(4):
            a.e(f"v_lshlrev_b32 v{16+8*r+2*d}, 16, v{44+4*r+d}")
            a.e(f"v_and_b32 v{17+8*r+2*d}, 0xffff0000, v{44+4*r+d}")
    for r in range(2):
        b, t = 16 + 8*r, 36 + 4*r
        a.e(f"v_pk_add_f32 {vr(t,2)}, {vr(b,2)}, {vr(b+2,2)}")
        a.e(f"v_pk_mul_f32 {vr(t+2,2)}, {vr(b,2)}, {vr(b,2)}")
    for r in range(2):
        b, t = 16 + 8*r, 36 + 4*r
        a.e(f"v_pk_add_f32 {vr(t,2)}, {vr(t,2)}, {vr(b+4,2)}")
        a.e(f"v_pk_fma_f32 {vr(t+2,2)}, {vr(b+2,2)}, {vr(b+2,2)}, {vr(t+2,2)}")
    for r in range(2):
        b, t = 16 + 8*r, 36 + 4*r
        a.e(f"v_pk_add_f32 {vr(t,2)}, {vr(t,2)}, {vr(b+6,2)}")
        a.e(f"v_pk_fma_f32 {vr(t+2,2)}, {vr(b+4,2)}, {vr(b+4,2)}, {vr(t+2,2)}")
    for r in range(2):
        b, t = 16 + 8*r, 36 + 4*r
        a.e(f"v_pk_fma_f32 {vr(t+2,2)}, {vr(b+6,2)}, {vr(b+6,2)}, {vr(t+2,2)}")
        a.e(f"v_add_f32 v{32+r}, v{t}, v{t+1}")
    for r in range(2):
        t = 36 + 4*r
        a.e(f"v_add_f32 v{34+r}, v{t+2}, v{t+3}")
    a.e("s_nop 0")
    dpp_reduce(a, [32, 33, 34, 35])
    for q, sr_ in enumerate((74, 75, 12, 13)):
        a.e(f"v_readlane_b32 s{sr_}, v{32+q}, 63")
    a.e("s_nop 1")
    for q, sr_ in enumerate((74, 75, 12, 13)):
        a.e(f"v_mov_b32 v{32+q}, s{sr_}")
    a.e("v_mov_b32 v36, 0x3b000000")
    a.e("v_pk_mul_f32 v[32:33], v[32:33], v[36:37] op_sel_hi:[1,0]")
    a.e("v_pk_mul_f32 v[34:35], v[34:35], v[36:37] op_sel_hi:[1,0]")
    a.e("v_pk_fma_f32 v[34:35], v[32:33], v[32:33], v[34:35] neg_lo:[1,0,0] neg_hi:[1,0,0]")
    a.e("v_max_f32 v34, 0, v34")
    a.e("v_max_f32 v35, 0, v35")
    a.e("v_cvt_pk_bf16_f32 v36, v34, v35")
    a.e("v_cvt_pk_bf16_f32 v37, v32, v33")
    a.e("v_lshlrev_b32 v34, 16, v36")
    a.e("v_and_b32 v35, 0xffff0000, v36")
    a.e("v_lshlrev_b32 v32, 16, v37")
    a.e("v_and_b32 v33, 0xffff0000, v37")
    a.e("v_add_f32 v34, 0x3727c5ac, v34")
    a.e("v_add_f32 v35, 0x3727c5ac, v35")
    a.e("v_cvt_pk_bf16_f32 v36, v34, v35")
    a.e("v_lshlrev_b32 v34, 16, v36")
    a.e("v_and_b32 v35, 0xffff0000, v36")
    a.e("v_sqrt_f32 v34, v34")
    a.e("v_sqrt_f32 v35, v35")
    a.e("s_nop 0")
    a.e("v_cvt_pk_bf16_f32 v36, v34, v35")
    a.e("v_lshlrev_b32 v34, 16, v36")
    a.e("v_and_b32 v35, 0xffff0000, v36")
    a.e("v_rcp_f32 v34, v34")
    a.e("v_rcp_f32 v35, v35")
    for r in range(2):
        b = 16 + 8*r
        sel = "op_sel_hi:[1,0]" if r == 0 else "op_sel:[0,1] op_sel_hi:[1,1]"
        for d in range(4):
            a.e(f"v_pk_add_f32 {vr(b+2*d,2)}, {vr(b+2*d,2)}, v[32:33] {sel} neg_lo:[0,1] neg_hi:[0,1]")
    for r in range(2):
        b = 16 + 8*r
        for d in range(4):
            a.e(f"v_cvt_pk_bf16_f32 v{44+4*r+d}, v{b+2*d}, v{b+2*d+1}")
    for r in range(2):
        b = 16 + 8*r
        for d in range(4):
            a.e(f"v_lshlrev_b32 v{b+2*d}, 16, v{44+4*r+d}")
            a.e(f"v_and_b32 v{b+2*d+1}, 0xffff0000, v{44+4*r+d}")
    for r in range(2):
        b = 16 + 8*r
        sel = "op_sel_hi:[1,0]" if r == 0 else "op_sel:[0,1] op_sel_hi:[1,1]"
        for d in range(4):
            a.e(f"v_pk_mul_f32 {vr(b+2*d,2)}, {vr(b+2*d,2)}, v[34:35] {sel}")
    for r in range(2):
        b = 16 + 8*r
        for d in range(4):
            a.e(f"v_cvt_pk_bf16_f32 v{44+4*r+d}, v{b+2*d}, v{b+2*d+1}")
    a.e(f"s_mul_i32 s{S_T0}, s{S_W}, {2*1088}")
    a.e(f"s_add_u32 s{S_T0}, s{S_T0}, {L_LN}")
    a.e(f"v_lshl_add_u32 v2, v{V_LANE}, 4, s{S_T0}")
    a.e("ds_write_b128 v2, v[44:47]")
    a.e("ds_write_b128 v2, v[48:51] offset:1088")
    a.e("v_mov_b32 v40, v34")
    a.e("v_cvt_pk_bf16_f32 v41, -v32, -v32")
    a.e("v_mov_b32 v42, v35")
    a.e("v_cvt_pk_bf16_f32 v43, -v33, -v33")
    a.e(f"s_lshl_b32 s{S_T0}, s{S_I}, 7")
    a.e(f"s_lshl_b32 s{S_T1}, s{S_J}, 3")
    a.e(f"s_add_u32 s{S_T0}, s{S_T0}, s{S_T1}")
    a.e(f"s_lshl_b32 s{S_T1}, s{S_W}, 1")
    a.e(f"s_add_u32 s{S_T1}, s{S_T0}, s{S_T1}")
    a.e(f"s_lshl_b32 s{S_T1}, s{S_T1}, 3")
    a.e(f"s_add_u32 s{S_T1}, s{S_T1}, {WS_STATS}")
    a.e(f"v_mov_b32 v3, s{S_T1}")
    a.e(f"s_mov_b64 s[{S_EXEC}:{S_EXEC+1}], exec")
    a.e("s_mov_b64 exec, 1")
    a.vm(f"global_store_dwordx4 v3, v[40:43], s[{P_WS}:{P_WS+1}] sc1", "pubA")
    a.e(f"s_mov_b64 exec, s[{S_EXEC}:{S_EXEC+1}]")
    a.e(f"v_bfe_u32 v2, v{V_LANE}, 2, 2")
    a.e(f"v_mul_u32_u24 v2, 1088, v2")
    a.e(f"v_lshrrev_b32 v3, 4, v{V_LANE}")
    a.e(f"v_lshl_add_u32 v2, v3, 5, v2")
    a.e(f"v_and_b32 v3, 3, v{V_LANE}")
    a.e(f"v_lshl_add_u32 v2, v3, 3, v2")
    a.e(f"s_lshl_b32 s{S_T1}, s{S_W}, 8")
    a.e(f"s_add_u32 s{S_T1}, s{S_T1}, {L_LN}")
    a.e(f"v_add_u32 v2, s{S_T1}, v2")
    a.e(f"s_lshl_b32 s{S_T0}, s{S_T0}, 10")
    a.e(f"s_lshl_b32 s{S_T1}, s{S_W}, 11")
    a.e(f"s_add_u32 s{S_T0}, s{S_T0}, s{S_T1}")
    a.e(f"s_add_u32 s{S_T0}, s{S_T0}, {WS_XT}")
    a.e(f"v_lshl_add_u32 v3, v{V_LANE}, 4, s{S_T0}")

def g1_reads(st, s):
    r = [f"ds_read_b128 {vr(fB(st,tt),4)}, v{G_BADDR+s} offset:{tt*4096}" for tt in range(2)]
    for ap in range(3):
        for h in range(2):
            r.append(f"ds_read_b64_tr_b16 {vr(fA(st,ap)+2*h,2)}, v{G_AADDR} offset:{s*3072 + h*768 + ap*32}")
    return r

def g1_mfmas(st, first):
    return [f"v_mfma_f32_32x32x16_bf16 {vr(acc(tt,ap),16)}, {vr(fA(st,ap),4)}, {vr(fB(st,tt),4)}, {'0' if first else vr(acc(tt,ap),16)}"
            for ap in range(3) for tt in range(2)]

def g1_main(a, hooks):
    st = 0
    for stage in range(8):
        for s in range(4):
            last = (stage == 7 and s == 3)
            a.e("s_waitcnt lgkmcnt(0)")
            mf = g1_mfmas(st, stage == 0 and s == 0)
            slots = {i: [] for i in range(6)}
            if s == 3 and not last:
                d = SLOT if (stage + 1) % 3 != 0 else -2 * SLOT
                slots[0] += [f"v_add_u32 v{G_BADDR+q}, {d & 0xffffffff}, v{G_BADDR+q}" for q in range(4)]
                slots[0] += [f"v_add_u32 v{G_AADDR}, {d & 0xffffffff}, v{G_AADDR}"]
                for hk in hooks.get(("pre", stage), []): slots[1].append(hk)
                slots[1].append(lambda a, stage=stage: a.bar(f"s{stage}"))
                rd = g1_reads(st ^ 1, 0)
                slots[1] += rd[:3]; slots[2] += rd[3:6]; slots[3] += rd[6:]
                for hk in hooks.get(("post", stage), []): slots[4].append(hk)
            elif last:
                slots[0].append(lambda a: a.bar("rf"))
            else:
                rd = g1_reads(st ^ 1, s + 1)
                slots[0] += rd[:3]; slots[1] += rd[3:6]; slots[2] += rd[6:]
            sh = hooks.get(("shadow", stage, s), [])
            for k, x in enumerate(sh):
                slots[2 + (k * 4) // len(sh)].append(x)
            sched(a, mf, slots)
            st ^= 1
        stamp(a, f"gs{stage}")

CSL = [152, 156, 168]
def g1_post_loads(a):
    a.e(f"s_lshl_b32 s{S_T0}, s{S_I}, 7")
    a.e(f"s_lshl_b32 s{S_T1}, s{S_TW}, 6")
    a.e(f"s_add_u32 s{S_T0}, s{S_T0}, s{S_T1}")
    a.e(f"s_lshl_b32 s{S_T0}, s{S_T0}, 3")
    a.e(f"s_add_u32 s{S_T0}, s{S_T0}, {WS_STATS}")
    a.e(f"v_and_b32 v6, 31, v{V_LANE}")
    a.e(f"v_lshl_add_u32 v7, v6, 3, s{S_T0}")
    a.vm(f"global_load_dwordx2 v[2:3], v7, s[{P_WS}:{P_WS+1}] sc1", "post")
    a.vm(f"global_load_dwordx2 v[4:5], v7, s[{P_WS}:{P_WS+1}] offset:256 sc1", "post")
    a.e(f"s_mul_i32 s{S_T0}, s{S_J}, 6")
    a.e(f"s_mul_i32 s{S_T1}, s{S_FW}, 3")
    a.e(f"s_add_u32 s{S_T0}, s{S_T0}, s{S_T1}")
    a.e(f"s_lshl_b32 s{S_T0}, s{S_T0}, 10")
    a.e(f"s_add_u32 s{S_T0}, s{S_T0}, {WS_CS}")
    a.e(f"v_lshl_add_u32 v7, v6, 5, s{S_T0}")
    a.e(f"v_lshrrev_b32 v8, 5, v{V_LANE}")
    a.e(f"v_lshl_add_u32 v7, v8, 4, v7")
    for ap in range(3):
        a.vm(f"global_load_dwordx4 {vr(CSL[ap],4)}, v7, s[{P_WS}:{P_WS+1}] offset:{1024*ap} sc1", "post")

def g1_corr_prep():
    r = [lambda a: a.vm_wait("post")]
    e = r.append
    for b in CSL:
        e(f"v_add_f32 v{b}, v{b}, v{b+2}")
        e(f"v_add_f32 v{b+1}, v{b+1}, v{b+3}")
    for b in CSL: e(f"v_add_f32 v{b}, v{b}, v{b+1}")
    for b in CSL: e(f"v_mov_b32 v{b+1}, v{b}")
    e(f"v_cmp_gt_u32 vcc, 32, v{V_LANE}")
    e("v_nop")
    for b in CSL: e(f"v_permlane32_swap_b32 v{b}, v{b+1}")
    for b in CSL: e(f"v_add_f32 v{b}, v{b}, v{b+1}")
    for b in CSL: e(f"v_cvt_pk_bf16_f32 v{b+1}, v{b}, v{b}")
    for b in CSL: e(f"v_lshlrev_b32 v{b+2}, 16, v{b+1}")
    for b in CSL: e(f"v_sub_f32 v{b+2}, v{b}, v{b+2}")
    for b in CSL: e(f"v_cvt_pk_bf16_f32 v{b}, v{b}, v{b+2}")
    for b in CSL:
        e(f"v_cndmask_b32 v{b}, 0, v{b}, vcc")
        e(f"v_mov_b32 v{b+1}, 0"); e(f"v_mov_b32 v{b+2}, 0"); e(f"v_mov_b32 v{b+3}, 0")
    for tt in range(2):
        e(f"v_cndmask_b32 v{8+4*tt}, 0, v{3+2*tt}, vcc")
        for d in range(1, 4): e(f"v_mov_b32 v{8+4*tt+d}, 0")
    return r

def g1_corr_mfma(a):
    a.e("s_nop 1")
    for ap in range(3):
        for tt in range(2):
            a.e(f"v_mfma_f32_32x32x16_bf16 {vr(acc(tt,ap),16)}, {vr(CSL[ap],4)}, {vr(8+4*tt,4)}, {vr(acc(tt,ap),16)}")

C1 = -2.0 * math.sqrt(2.0 / math.pi) * math.log2(math.e)
C2 = C1 * 0.044715
def g1_epilogue(a):
    for tt in range(2):
        r_, b = 2 + 2*tt, 160 + 4*tt
        a.e(f"v_mul_f32 v{b+2}, v{r_}, v{r_}")
        a.e(f"v_mul_f32 v{b}, {fhex(C1)}, v{r_}")
        a.e(f"v_mul_f32 v{b+1}, {fhex(C2)}, v{r_}")
        a.e(f"v_mul_f32 v{b+1}, v{b+1}, v{b+2}")
        a.e(f"v_rcp_f32 v{b+2}, v{b+2}")
    a.e(f"s_lshl_b32 s{S_T0}, s{S_I}, 2")
    a.e(f"s_lshl_b32 s{S_T1}, s{S_TW}, 1")
    a.e(f"s_add_u32 s{S_T0}, s{S_T0}, s{S_T1}")
    a.e(f"s_mul_i32 s{S_T0}, s{S_T0}, 86")
    a.e(f"s_lshl_b32 s{S_T1}, s{S_U0}, 1")
    a.e(f"s_add_u32 s{S_T0}, s{S_T0}, s{S_T1}")
    a.e(f"s_mul_i32 s{S_T1}, s{S_FW}, 3")
    a.e(f"s_add_u32 s{S_T0}, s{S_T0}, s{S_T1}")
    a.e(f"s_lshl_b32 s{S_T0}, s{S_T0}, 10")
    a.e(f"s_add_u32 s{S_T0}, s{S_T0}, {WS_H}")
    a.e(f"v_lshl_add_u32 v168, v{V_LANE}, 4, s{S_T0}")
    a.e(f"v_add_u32 v169, {86*1024}, v168")
    a.e(f"s_sub_u32 s{S_T2}, s{S_NU}, s{S_T1}")
    a.e(f"s_lshl_b32 s{S_T0}, s{S_WG}, 12")
    a.e(f"s_add_u32 s{S_T0}, s{S_T0}, {WS_DUMMY}")
    a.e(f"v_lshl_add_u32 v170, v{V_LANE}, 4, s{S_T0}")
    a.e(f"s_cmp_gt_u32 s{S_T2}, 1")
    a.e(f"s_cselect_b64 s[74:75], -1, 0")
    a.e(f"v_cndmask_b32 v171, v170, v169, s[74:75]")
    a.e(f"v_cndmask_b32 v170, v170, v168, s[74:75]")
    T, Gq, X = 112, 120, 128
    for ap in range(3):
        for tt in range(2):
            c = acc(tt, ap); KK = 160 + 4*tt; S2 = 162 + 4*tt
            for p in range(4):
                a.e(f"v_pk_mul_f32 {vr(T+2*p,2)}, {vr(c+2*p,2)}, {vr(c+2*p,2)}")
            for p in range(4):
                a.e(f"v_pk_fma_f32 {vr(T+2*p,2)}, {vr(T+2*p,2)}, {vr(KK,2)}, {vr(KK,2)} op_sel:[0,1,0] op_sel_hi:[1,1,0]")
            for p in range(4):
                a.e(f"v_pk_mul_f32 {vr(T+2*p,2)}, {vr(T+2*p,2)}, {vr(c+2*p,2)}")
            for p in range(8):
                a.e(f"v_exp_f32 v{T+p}, v{T+p}")
            for p in range(4):
                a.e(f"v_pk_mul_f32 {vr(Gq+2*p,2)}, {vr(c+2*p,2)}, {vr(c+8+2*p,2)}")
            for p in range(4):
                a.e(f"v_pk_fma_f32 {vr(T+2*p,2)}, {vr(T+2*p,2)}, {vr(S2,2)}, {vr(S2,2)} op_sel_hi:[1,0,0]")
            for p in range(8):
                a.e(f"v_rcp_f32 v{T+p}, v{T+p}")
            a.e("s_nop 0")
            for p in range(4):
                a.e(f"v_pk_mul_f32 {vr(Gq+2*p,2)}, {vr(Gq+2*p,2)}, {vr(T+2*p,2)}")
            O = X + 4 * ((2 * ap + tt) % 2)
            for p in range(4):
                a.e(f"v_cvt_pk_bf16_f32 v{O+p}, v{Gq+2*p}, v{Gq+2*p+1}")
            adr = (168 + tt) if ap == 0 else (170 + tt)
            a.vm(f"global_store_dwordx4 v{adr}, {vr(O,4)}, s[{P_WS}:{P_WS+1}] offset:{1024*ap} sc1", "pubH")

V_WDOFF, V_WDL, V_WDA = 172, 173, 166
def wd_setup(a, t0, voff=V_WDOFF):
    mk_srd(a, SRD_WD, P_WD, 1376 * 1024)
    a.e(f"s_mul_i32 s{S_WDO}, s{S_W}, {352 * 1024}")
    a.e(f"s_lshl_b32 s{S_T0}, s{S_NT}, 7")
    a.e(f"s_add_u32 s{S_WDO}, s{S_WDO}, s{S_T0}")
    t = t0
    a.e(f"v_lshrrev_b32 v{t}, 3, v{V_LANE}")
    a.e(f"v_and_b32 v{t+1}, 7, v{V_LANE}")
    a.e(f"v_bfe_u32 v{t+2}, v{t}, 1, 1")
    a.e(f"v_lshlrev_b32 v{t+2}, 2, v{t+2}")
    a.e(f"v_xor_b32 v{t+1}, v{t+1}, v{t+2}")
    a.e(f"v_lshlrev_b32 v{t+1}, 4, v{t+1}")
    a.e(f"v_lshl_add_u32 v{voff}, v{t}, 10, v{t+1}")

def wd_lane_parts(a, t0):
    t = t0
    a.e(f"v_lshrrev_b32 v{t}, 4, v{V_LANE}")
    a.e(f"v_and_b32 v{t+1}, 1, v{t}")
    a.e(f"v_lshrrev_b32 v{t}, 1, v{t}")
    a.e(f"v_bfe_u32 v{t+2}, v{V_LANE}, 2, 2")
    a.e(f"v_lshl_add_u32 v{t+2}, v{t}, 2, v{t+2}")
    a.e(f"v_lshlrev_b32 v{t+2}, 7, v{t+2}")
    a.e(f"v_lshl_add_u32 v{t+2}, v{t+1}, 5, v{t+2}")
    a.e(f"v_and_b32 v{t+1}, 3, v{V_LANE}")
    a.e(f"v_lshl_add_u32 v{t+2}, v{t+1}, 3, v{t+2}")
    a.e(f"v_bfe_u32 v{t+1}, v{V_LANE}, 3, 1")
    a.e(f"v_lshlrev_b32 v{t+1}, 6, v{t+1}")
    a.e(f"v_add_u32 v{V_WDL}, v{t+2}, v{t+1}")
    a.e(f"v_xor_b32 v{t+1}, 64, v{t+1}")
    a.e(f"v_add_u32 v{V_WDL+1}, v{t+2}, v{t+1}")

def wd_groups(rnd, voff=V_WDOFF):
    lb, wsz, ks0, n = WD[rnd]
    out = []
    for q in range(2 * n):
        pre = [f"s_mul_i32 s{S_WDL}, s{S_W}, {wsz}", f"s_add_u32 s{S_WDS}, s{S_WDO}, {ks0*16384}"] if q == 0 else []
        out.append(Dma(pre, f"s_add_u32 m0, s{S_WDL}, {lb + q*1024}",
                       (f"buffer_load_dwordx4 v{voff}, s[{SRD_WD}:{SRD_WD+3}], s{S_WDS} offen lds", f"wd{rnd}"),
                       [f"s_add_u32 s{S_WDS}, s{S_WDS}, 8192"]))
    return out

def wd_addr(rnd):
    lb, wsz, ks0, n = WD[rnd]
    return [f"s_mul_i32 s{S_T0}, s{S_W}, {wsz}", f"s_add_u32 s{S_T0}, s{S_T0}, {lb}",
            f"v_add_u32 v{V_WDA}, s{S_T0}, v{V_WDL}", f"v_add_u32 v{V_WDA+1}, s{S_T0}, v{V_WDL+1}"]

def wd_tr_agpr(rnd):
    lb, wsz, ks0, n = WD[rnd]
    return [f"ds_read_b64_tr_b16 {ar(wd_areg(ks0+k) + 4*t + 2*h, 2)}, v{V_WDA+t} offset:{k*2048 + h*1024}"
            for k in range(n) for t in range(2) for h in range(2)]

G2_ACC, G2_H, G2_RING, G2_W = 16, 80, 8, 144
V_HA = 160
def acc2(t, tt): return G2_ACC + 16 * (2 * t + tt)

def h_setup(a):
    a.e(f"s_lshl_b32 s{S_T0}, s{S_I}, 2")
    a.e(f"s_lshl_b32 s{S_T1}, s{S_TH}, 1")
    a.e(f"s_add_u32 s{S_T0}, s{S_T0}, s{S_T1}")
    a.e(f"s_mul_i32 s{S_T0}, s{S_T0}, 86")
    a.e(f"s_mul_i32 s{S_T1}, s{S_W}, 22")
    a.e(f"s_add_u32 s{S_T0}, s{S_T0}, s{S_T1}")
    a.e(f"s_lshl_b32 s{S_T0}, s{S_T0}, 10")
    a.e(f"s_add_u32 s{S_T0}, s{S_T0}, {WS_H}")
    a.e(f"v_lshl_add_u32 v{V_HA}, v{V_LANE}, 4, s{S_T0}")
    a.e(f"v_add_u32 v{V_HA+1}, {86*1024}, v{V_HA}")
    a.e(f"s_movk_i32 s66, {4*1024}")
    a.e(f"s_movk_i32 s67, {5*1024}")
    a.e(f"s_cmp_eq_u32 s{S_W}, 3")
    a.e(f"s_cselect_b32 s66, {3*1024}, s66")
    a.e(f"s_cselect_b32 s67, {3*1024}, s67")

def h_load(q):
    R = G2_H + 8 * (q % G2_RING)
    it = []
    if q < 20:
        if q % 4 == 0 and q > 0:
            it += [f"v_add_u32 v{V_HA}, 4096, v{V_HA}", f"v_add_u32 v{V_HA+1}, 4096, v{V_HA+1}"]
        off = (q % 4) * 1024
        it += [(f"global_load_dwordx4 {vr(R,4)}, v{V_HA}, s[{P_WS}:{P_WS+1}] offset:{off} sc1", f"h{q}"),
               (f"global_load_dwordx4 {vr(R+4,4)}, v{V_HA+1}, s[{P_WS}:{P_WS+1}] offset:{off} sc1", f"h{q}")]
    else:
        sreg = 66 + (q - 20)
        it += [f"v_add_u32 v162, s{sreg}, v{V_HA}", f"v_add_u32 v163, s{sreg}, v{V_HA+1}",
               (f"global_load_dwordx4 {vr(R,4)}, v162, s[{P_WS}:{P_WS+1}] sc1", f"h{q}"),
               (f"global_load_dwordx4 {vr(R+4,4)}, v163, s[{P_WS}:{P_WS+1}] sc1", f"h{q}")]
    return it

def hy_poll_issue(a):
    a.e(f"s_lshl_b32 s{S_T0}, s{S_I}, 6")
    a.e(f"s_add_u32 s{S_T0}, s{S_T0}, {WS_FLAG_H}")
    a.e(f"v_and_b32 v8, 15, v{V_LANE}")
    a.e(f"v_lshl_add_u32 v8, v8, 2, s{S_T0}")
    a.e(f"s_lshl_b32 s{S_T0}, s{S_NT}, 7")
    a.e(f"s_add_u32 s{S_T0}, s{S_T0}, {WS_FLAG_Y}")
    a.e(f"v_and_b32 v9, 31, v{V_LANE}")
    a.e(f"v_lshl_add_u32 v9, v9, 2, s{S_T0}")
    a.vm(f"global_load_dword v10, v8, s[{P_WS}:{P_WS+1}] sc1", "ph")
    a.vm(f"global_load_dword v11, v9, s[{P_WS}:{P_WS+1}] sc1", "ph")

def hy_poll_check(a):
    top, ok = a.label("poll"), a.label("pollok")
    a.vm_wait("ph")
    a.e(f"s_mov_b32 s{S_SPIN}, 0")
    a.e(f"{top}:")
    a.e(f"v_cmp_ne_u32 vcc, s{S_TAG}, v10")
    a.e(f"v_cmp_ne_u32 s[74:75], s{S_TAG}, v11")
    a.e("s_nop 1")
    a.e("s_or_b64 vcc, vcc, s[74:75]")
    spin_tail(a, top, ok, [f"global_load_dword v10, v8, s[{P_WS}:{P_WS+1}] sc1", f"global_load_dword v11, v9, s[{P_WS}:{P_WS+1}] sc1"])

def res_reads(q):
    for rnd in (4, 5, 6):
        lb, wsz, ks0, n = WD[rnd]
        if ks0 <= q < ks0 + n:
            pre = wd_addr(rnd) if q == ks0 else []
            B = G2_W + 8 * (q % 2)
            return pre + [f"ds_read_b64_tr_b16 {vr(B + 4*t + 2*h, 2)}, v{V_WDA+t} offset:{(q-ks0)*2048 + h*1024}" for t in range(2) for h in range(2)]

def g2_main(a, hooks, n0):
    la = OPT.get("g2la", 7)
    nxt = n0
    for q in range(22):
        a.vm_wait(f"h{q}")
        if q >= 8:
            a.e("s_waitcnt lgkmcnt(0)")
        stamp(a, f"g2q{q}")
        R = G2_H + 8 * (q % G2_RING)
        mf = []
        for t in range(2):
            A = ar(wd_areg(q) + 4*t, 4) if wd_in_agpr(q) else vr(G2_W + 8*(q % 2) + 4*t, 4)
            for tt in range(2):
                mf.append(f"v_mfma_f32_32x32x16_bf16 {vr(acc2(t,tt),16)}, {A}, {vr(R+4*tt,4)}, {'0' if q == 0 else vr(acc2(t,tt),16)}")
        slots = {i: [] for i in range(4)}
        if q + 1 < 22 and not wd_in_agpr(q + 1):
            rr = res_reads(q + 1)
            if q + 1 == 8: rr = [lambda a: a.vm_wait("wd4", "wd5")] + rr
            slots[0] += rr
        k = 0
        while nxt < 22 and nxt - q <= la and k < 2 and nxt < q + G2_RING:
            slots[1 if k == 0 else 3].append(h_load(nxt)); nxt += 1; k += 1
        for hk in hooks.get(q, []): slots[2].append(hk)
        sched(a, mf, slots)

V_OUT = 14
V_X = 168
def x_loads(a):
    a.e(f"s_lshl_b32 s{S_T0}, s{S_I}, 7")
    a.e(f"s_lshl_b32 s{S_T1}, s{S_TH}, 6")
    a.e(f"s_add_u32 s{S_T0}, s{S_T0}, s{S_T1}")
    a.e(f"s_and_b32 s{S_T1}, s{S_W}, 1")
    a.e(f"s_lshl_b32 s{S_T1}, s{S_T1}, 5")
    a.e(f"s_add_u32 s{S_T0}, s{S_T0}, s{S_T1}")
    a.e(f"s_lshl_b32 s{S_T0}, s{S_T0}, 10")
    a.e(f"s_lshl_b32 s{S_T1}, s{S_NT}, 7")
    a.e(f"s_add_u32 s{S_T0}, s{S_T0}, s{S_T1}")
    a.e(f"s_lshr_b32 s{S_T1}, s{S_W}, 1")
    a.e(f"s_lshl_b32 s{S_T1}, s{S_T1}, 6")
    a.e(f"s_add_u32 s{S_T0}, s{S_T0}, s{S_T1}")
    a.e(f"v_and_b32 v12, 31, v{V_LANE}")
    a.e(f"v_lshlrev_b32 v12, 10, v12")
    a.e(f"v_lshrrev_b32 v13, 5, v{V_LANE}")
    a.e(f"v_lshl_add_u32 v12, v13, 3, v12")
    a.e(f"v_add_u32 v{V_OUT}, s{S_T0}, v12")
    for q in range(4):
        a.vm(f"global_load_dwordx2 {vr(V_X+2*q,2)}, v{V_OUT}, s[{P_X}:{P_X+1}] offset:{16*q}", "fx")
    a.e(f"v_lshl_add_u32 v{V_OUT}, v13, 3, v{V_OUT}")

def y_loads(a):
    a.e(f"s_lshl_b32 s{S_T0}, s{S_I}, 1")
    a.e(f"s_add_u32 s{S_T0}, s{S_T0}, s{S_TH}")
    a.e(f"s_lshl_b32 s{S_T0}, s{S_T0}, 16")
    a.e(f"s_lshl_b32 s{S_T1}, s{S_NT}, 13")
    a.e(f"s_add_u32 s{S_T0}, s{S_T0}, s{S_T1}")
    a.e(f"s_add_u32 s{S_T0}, s{S_T0}, {WS_Y}")
    a.e(f"v_lshl_add_u32 v10, v0, 4, s{S_T0}")
    a.e(f"v_add_u32 v11, 4096, v10")
    a.vm(f"global_load_dwordx4 v[2:5], v10, s[{P_WS}:{P_WS+1}] sc1", "fy")
    a.vm(f"global_load_dwordx4 v[6:9], v11, s[{P_WS}:{P_WS+1}] sc1", "fy")

def y_check(a):
    top, ok = a.label("ychk"), a.label("yok")
    a.vm_wait("fy")
    a.e(f"s_mov_b32 s{S_SPIN}, 0")
    a.e(f"{top}:")
    a.e("v_max3_u32 v12, v2, v3, v4")
    a.e("v_max3_u32 v13, v5, v6, v7")
    a.e("v_max3_u32 v12, v12, v8, v9")
    a.e("v_max_u32 v12, v12, v13")
    a.e("v_cmp_eq_u32 vcc, -1, v12")
    a.e("s_nop 1")
    spin_tail(a, top, ok, [f"global_load_dwordx4 v[2:5], v10, s[{P_WS}:{P_WS+1}] sc1", f"global_load_dwordx4 v[6:9], v11, s[{P_WS}:{P_WS+1}] sc1"])

def final_prep(a):
    a.e(f"v_lshlrev_b32 v162, 4, v{V_LANE}")
    a.e(f"v_add_u32 v163, {RED_UNIT[0]}, v162")
    a.e(f"v_lshrrev_b32 v12, 3, v0")
    a.e(f"v_mul_u32_u24 v12, 192, v12")
    a.e(f"v_and_b32 v13, 7, v0")
    a.e(f"v_lshl_add_u32 v164, v13, 4, v12")
    a.e(f"v_add_u32 v164, {L_YB}, v164")
    a.e(f"v_lshrrev_b32 v12, 4, v{V_LANE}")
    a.e(f"v_and_b32 v13, 1, v12")
    a.e(f"v_lshrrev_b32 v12, 1, v12")
    a.e(f"v_bfe_u32 v165, v{V_LANE}, 2, 2")
    a.e(f"v_lshl_add_u32 v165, v12, 2, v165")
    a.e(f"v_mul_u32_u24 v165, 192, v165")
    a.e(f"v_lshl_add_u32 v165, v13, 5, v165")
    a.e(f"v_and_b32 v13, 3, v{V_LANE}")
    a.e(f"v_lshl_add_u32 v165, v13, 3, v165")
    a.e(f"s_lshr_b32 s{S_T0}, s{S_W}, 1")
    a.e(f"s_mul_i32 s{S_T0}, s{S_T0}, {32*192}")
    a.e(f"s_and_b32 s{S_T1}, s{S_W}, 1")
    a.e(f"s_lshl_b32 s{S_T1}, s{S_T1}, 6")
    a.e(f"s_add_u32 s{S_T0}, s{S_T0}, s{S_T1}")
    a.e(f"s_add_u32 s{S_T0}, s{S_T0}, {L_YB}")
    a.e(f"v_add_u32 v165, s{S_T0}, v165")

def red_ref(u, q):
    if u < 8: return 163, u * 4096 + q * 1024
    return 162, RED_UNIT[u] + q * 1024

def final(a):
    OWN, XF = 80, 96
    P = 112
    end = a.label("redend")
    labs = [a.label("redw") for _ in range(4)]
    for w in range(1, 4):
        a.e(f"s_cmp_eq_u32 s{S_W}, {w}")
        a.e(f"s_cbranch_scc1 {labs[w]}")
    for w in range(4):
        a.e(f"{labs[w]}:")
        a.e("s_nop 9")
        for o in range(4):
            if o == w: continue
            u = 3*o + ((w - o - 1) & 3)
            for q in range(4):
                r_, off = red_ref(u, q)
                a.e(f"ds_write_b128 v{r_}, {vr(G2_ACC+16*o+4*q,4)} offset:{off}")
        for q in range(8):
            a.e(f"v_pk_mul_f32 {vr(OWN+2*q,2)}, {vr(G2_ACC+16*w+2*q,2)}, 1.0 op_sel_hi:[1,0]")
        if w < 3: a.e(f"s_branch {end}")
    a.e(f"{end}:")
    y_check(a)
    stamp(a, "fy")
    a.e("ds_write_b128 v164, v[2:5]")
    a.e(f"ds_write_b128 v164, v[6:9] offset:{32*192}")
    a.vm_wait("fx")
    for q in range(8):
        a.e(f"v_lshlrev_b32 v{XF+2*q}, 16, v{V_X+q}")
        a.e(f"v_and_b32 v{XF+2*q+1}, 0xffff0000, v{V_X+q}")
    for q in range(8):
        a.e(f"v_pk_add_f32 {vr(OWN+2*q,2)}, {vr(OWN+2*q,2)}, {vr(XF+2*q,2)}")
    a.e("s_waitcnt lgkmcnt(0)")
    a.bar("fin")
    for q in range(4):
        a.e(f"ds_read_b64_tr_b16 {vr(2+2*q,2)}, v165 offset:{1536*q}")
    labs = [a.label("rdw") for _ in range(4)]
    end2 = a.label("rdend")
    for w in range(1, 4):
        a.e(f"s_cmp_eq_u32 s{S_W}, {w}")
        a.e(f"s_cbranch_scc1 {labs[w]}")
    for w in range(4):
        a.e(f"{labs[w]}:")
        for sl in range(3):
            for q in range(4):
                r_, off = red_ref(3*w + sl, q)
                a.e(f"ds_read_b128 {vr(P+16*sl+4*q,4)}, v{r_} offset:{off}")
        if w < 3: a.e(f"s_branch {end2}")
    a.e(f"{end2}:")
    a.e("s_waitcnt lgkmcnt(12)")
    for q in range(8):
        a.e(f"v_lshlrev_b32 v{XF+2*q}, 16, v{2+q}")
        a.e(f"v_and_b32 v{XF+2*q+1}, 0xffff0000, v{2+q}")
    for q in range(8):
        a.e(f"v_pk_add_f32 {vr(OWN+2*q,2)}, {vr(OWN+2*q,2)}, {vr(XF+2*q,2)}")
    for sl in range(3):
        a.e(f"s_waitcnt lgkmcnt({8 - 4*sl})")
        for q in range(8):
            a.e(f"v_pk_add_f32 {vr(OWN+2*q,2)}, {vr(OWN+2*q,2)}, {vr(P+16*sl+2*q,2)}")
    for q in range(8):
        a.e(f"v_cvt_pk_bf16_f32 v{2+q}, v{OWN+2*q}, v{OWN+2*q+1}")
    a.e("s_nop 1")
    for p in range(2):
        a.e(f"v_permlane32_swap_b32 v{2+4*p}, v{4+4*p}")
        a.e(f"v_permlane32_swap_b32 v{3+4*p}, v{5+4*p}")
    for p in range(2):
        a.vm(f"global_store_dwordx4 v{V_OUT}, {vr(2+4*p,4)}, s[{P_OUT}:{P_OUT+1}] offset:{32*p} nt", "out")


def role_g(a):
    if OPT.get("prio", 1): a.e("s_setprio 1")
    g_setup(a)
    a.e("s_waitcnt lgkmcnt(0)")
    a.e(f"s_mov_b32 s{S_ROLE}, 0")
    a.vm("global_load_dwordx4 v[44:47], v7, s[16:17]", "ln")
    a.vm("global_load_dwordx4 v[48:51], v7, s[16:17] offset:1024", "ln")
    epoch_load(a, 3, 6)
    stamp(a, 0, real=True); stamp(a, 1)
    epoch_finish(a, 6)
    ln_first(a)
    stamp(a, "ln")
    a.e("s_waitcnt lgkmcnt(0)")
    a.bar("b0")
    stamp(a, "b0")
    for x in g1_reads(0, 0)[:0]: a.e(x)
    for q in range(2):
        a.e(f"ds_read_b64_tr_b16 v[{8+4*q}:{9+4*q}], v2 offset:{128*q}")
        a.e(f"ds_read_b64_tr_b16 v[{10+4*q}:{11+4*q}], v2 offset:{128*q + 4*1088}")
    for x in g1_reads(0, 0): a.e(x)
    a.e("s_waitcnt lgkmcnt(8)")
    a.vm(f"global_store_dwordx4 v3, v[8:11], s[{P_WS}:{P_WS+1}] sc1", "pubA")
    a.vm(f"global_store_dwordx4 v3, v[12:15], s[{P_WS}:{P_WS+1}] offset:1024 sc1", "pubA")
    PS = OPT.get("pubstage", 1)
    def bump(a):
        lab = a.label("nobump")
        a.e(f"s_or_b32 s{S_T0}, s{S_WG}, s{S_W}")
        a.e(f"s_cmp_lg_u32 s{S_T0}, 0")
        a.e(f"s_cbranch_scc1 {lab}")
        a.e(f"s_add_u32 s{S_T0}, s{S_EP}, 1")
        a.e("v_mov_b32 v6, 0")
        a.e(f"v_mov_b32 v7, s{S_T0}")
        a.e(f"s_mov_b64 s[{S_EXEC}:{S_EXEC+1}], exec")
        a.e("s_mov_b64 exec, 1")
        a.e(f"global_store_dword v6, v7, s[{P_WS}:{P_WS+1}] sc1")
        a.e(f"s_mov_b64 exec, s[{S_EXEC}:{S_EXEC+1}]")
        a.e(f"{lab}:")
    def chk(a):
        ln_poll_check(a, 165, 152)
        bump(a)
        g1_post_loads(a)
    hooks = {("pre", PS): [lambda a: a.vm_wait("pubA")],
             ("post", PS): [lambda a: flag_store(a, WS_FLAG_LN, idx_ln, 6, 7)],
             ("post", OPT.get("pollstage", 5)): [lambda a: ln_poll_issue(a, 165, 152)],
             ("post", 6): [chk],
             ("shadow", 7, 2): g1_corr_prep()}
    rw = Rec(a); wd_setup(rw, 6); wd_lane_parts(rw, 6)
    hooks[("shadow", 4, 1)] = [o[1] for o in rw.ops]
    g1_main(a, hooks)
    stamp(a, "loop")
    if OPT.get("gprio2") is not None: a.e(f"s_setprio {OPT['gprio2']}")
    g1_corr_mfma(a)
    r = Rec(a)
    g1_epilogue(r)
    replay(a, r.ops, [], every=16, start=34)
    stamp(a, "epi")
    h_setup(a)
    a.vm_wait("pubH")
    a.bar("k")
    stamp(a, "bk")
    flag_store(a, WS_FLAG_H, idx_h, 6, 7)
    flag_store(a, WS_FLAG_Y, idx_y, 6, 7)
    stamp(a, "hpub")
    for x in wd_addr(1) + wd_tr_agpr(1) + wd_addr(2) + wd_tr_agpr(2): a.e(x)
    a.e("s_waitcnt lgkmcnt(0)")
    for g in wd_groups(4) + wd_groups(5): emit(a, g)
    a.bar("p")
    hy_poll_issue(a)
    hy_poll_check(a)
    stamp(a, "hflag")
    N0 = OPT.get("g2n0", 4)
    for q in range(N0): emit(a, h_load(q))
    a.e("s_waitcnt lgkmcnt(0)")
    hk = {}
    def after_cd(a):
        a.bar("cd")
        for x in wd_addr(3) + wd_tr_agpr(3): a.e(x.replace(f"v{V_WDA+1}", "v13").replace(f"v{V_WDA}", "v12"))
    for q, f in ((OPT.get("cxq", 2), lambda a: a.bar("cx")), (OPT.get("cdq", 4), after_cd), (OPT.get("xld", 18), x_loads), (OPT.get("fprep", 19), final_prep), (OPT.get("yld", 13), y_loads)):
        hk.setdefault(q, []).append(f)
    g2_main(a, hk, N0)
    stamp(a, "g2")
    final(a)
    stamp(a, "fin")
    a.e("s_waitcnt vmcnt(0)")
    stamp(a, 9, real=True)
    prof_store(a)
    a.e("s_endpgm")


C_XOFF, C_WOFF = 2, 6
C_AADDR = 9
C_P = 160
C_XT = 168
def c_setup(a):
    a.e(f"s_lshl_b32 s{S_T0}, s{S_I}, 7")
    a.e(f"s_lshl_b32 s{S_T1}, s{S_W}, 5")
    a.e(f"s_add_u32 s{S_T0}, s{S_T0}, s{S_T1}")
    a.e(f"s_lshl_b32 s{S_XW}, s{S_T0}, 10")
    a.e(f"s_lshl_b32 s{S_LX}, s{S_W}, 12")
    a.e(f"s_add_u32 s{S_KC}, s{S_I}, s{S_J}")
    a.e(f"s_and_b32 s{S_KC}, s{S_KC}, 7")
    a.e(f"s_mul_i32 s{S_WW}, s{S_W}, {16 * 2752}")
    a.e(f"s_lshl_b32 s{S_T0}, s{S_U0}, 6")
    a.e(f"s_add_u32 s{S_WW}, s{S_WW}, s{S_T0}")
    a.e(f"s_mul_i32 s{S_LW}, s{S_W}, 3072")
    a.e(f"v_lshrrev_b32 v12, 3, v{V_LANE}")
    a.e(f"v_and_b32 v13, 7, v{V_LANE}")
    a.e(f"v_lshrrev_b32 v14, 1, v12")
    a.e(f"v_xor_b32 v15, v14, v13")
    a.e(f"v_lshlrev_b32 v16, 4, v15")
    a.e(f"v_lshl_add_u32 v{C_XOFF}, v12, 10, v16")
    a.e(f"v_xor_b32 v17, 64, v{C_XOFF}")
    a.e(f"v_add_u32 v{C_XOFF+1}, 8192, v17")
    a.e(f"v_add_u32 v{C_XOFF+2}, 16384, v{C_XOFF}")
    a.e(f"v_add_u32 v{C_XOFF+3}, 16384, v{C_XOFF+1}")
    for q in range(3):
        a.e(f"v_add_u32 v12, {64*q}, v{V_LANE}")
        a.e(f"v_mul_u32_u24 v13, 5462, v12")
        a.e(f"v_lshrrev_b32 v13, 16, v13")
        a.e(f"v_mul_u32_u24 v14, 12, v13")
        a.e(f"v_sub_u32 v14, v12, v14")
        a.e(f"v_mul_u32_u24 v13, 2752, v13")
        a.e(f"v_lshl_add_u32 v{C_WOFF+q}, v14, 4, v13")

def stage_offsets():
    return [f"s_lshl_b32 s{S_XO}, s{S_KC}, 7", f"s_add_u32 s{S_XO}, s{S_XO}, s{S_XW}",
            f"s_mul_i32 s{S_WO}, s{S_KC}, {64 * 2752}", f"s_add_u32 s{S_WO}, s{S_WO}, s{S_WW}",
            f"s_add_u32 s{S_KC}, s{S_KC}, 1", f"s_and_b32 s{S_KC}, s{S_KC}, 7"]

def stage_dma(stage):
    S = (stage % 3) * SLOT; tag = f"st{stage}"
    out = []
    for q in range(4):
        out.append(Dma([], f"s_add_u32 m0, s{S_LX}, {S + L_X + q * 1024}", (f"buffer_load_dwordx4 v{C_XOFF+q}, s[{SRD_X}:{SRD_X+3}], s{S_XO} offen lds", tag)))
    for q in range(3):
        out.append(Dma([], f"s_add_u32 m0, s{S_LW}, {S + L_G + q * 1024}", (f"buffer_load_dwordx4 v{C_WOFF+q}, s[{SRD_WG}:{SRD_WG+3}], s{S_WO} offen lds", tag)))
        out.append(Dma([], f"s_add_u32 m0, s{S_LW}, {S + L_U + q * 1024}", (f"buffer_load_dwordx4 v{C_WOFF+q}, s[{SRD_WU}:{SRD_WU+3}], s{S_WO} offen lds", tag)))
    out[0] = stage_offsets() + list(out[0])
    return out

def cs_block(a):
    lab = a.label("nocs")
    a.e(f"s_cmp_lg_u32 s{S_CSH}, 0")
    a.e(f"s_cbranch_scc1 {lab}")
    FRG, ACC, ON = 64, 112, 60
    for r in range(4): a.e(f"v_mov_b32 v{ON+r}, 0x3f803f80")
    for s in range(4):
        for ap in range(3):
            for h in range(2):
                a.e(f"ds_read_b64_tr_b16 {vr(FRG+12*s+4*ap+2*h,2)}, v{C_AADDR} offset:{s*3072 + h*768 + ap*32}")
    a.e("s_waitcnt lgkmcnt(0)")
    for s in range(4):
        for ap in range(3):
            a.e(f"v_mfma_f32_32x32x16_bf16 {vr(ACC+16*ap,16)}, {vr(ON,4)}, {vr(FRG+12*s+4*ap,4)}, {'0' if s == 0 else vr(ACC+16*ap,16)}")
    a.e(f"s_mul_i32 s{S_T0}, s{S_J}, 6")
    a.e(f"s_mul_i32 s{S_T1}, s{S_FW}, 3")
    a.e(f"s_add_u32 s{S_T0}, s{S_T0}, s{S_T1}")
    a.e(f"s_lshl_b32 s{S_T0}, s{S_T0}, 10")
    a.e(f"s_lshl_b32 s{S_T1}, s{S_I}, 2")
    a.e(f"s_add_u32 s{S_T0}, s{S_T0}, s{S_T1}")
    a.e(f"s_add_u32 s{S_T0}, s{S_T0}, {WS_CS}")
    a.e(f"v_lshl_add_u32 v59, v{V_LANE}, 5, s{S_T0}")
    lab2 = a.label("nocsst")
    a.e(f"s_cmp_ge_u32 s{S_W}, 2")
    a.e(f"s_cbranch_scc1 {lab2}")
    a.e("s_nop 7")
    a.e(f"s_mov_b64 s[{S_EXEC}:{S_EXEC+1}], exec")
    a.e("s_mov_b64 exec, 0xffffffff")
    for ap in range(3):
        a.e(f"global_store_dword v59, v{ACC+16*ap}, s[{P_WS}:{P_WS+1}] offset:{1024*ap} sc1")
    a.e(f"s_mov_b64 exec, s[{S_EXEC}:{S_EXEC+1}]")
    a.e(f"{lab2}:")
    a.e(f"{lab}:")

def kgen_loads(a):
    a.e(f"s_lshl_b32 s{S_T0}, s{S_D}, 8")
    a.e(f"s_lshl_b32 s{S_T1}, s{S_MH}, 7")
    a.e(f"s_add_u32 s{S_T0}, s{S_T0}, s{S_T1}")
    a.e(f"v_lshl_add_u32 v12, v{V_LANE}, 1, s{S_T0}")
    for q, p in enumerate([P_ARE, P_AIM, P_BRE, P_BIM, P_CRE, P_CIM]):
        a.vm(f"global_load_ushort v{C_P+q}, v12, s[{p}:{p+1}]", "kp")
    a.e(f"s_lshl_b32 s{S_T0}, s{S_D}, 1")
    a.e(f"v_mov_b32 v13, s{S_T0}")
    a.vm(f"global_load_ushort v{C_P+6}, v13, s[{P_LDT}:{P_LDT+1}]", "kp")
    a.vm(f"global_load_ushort v{C_P+7}, v13, s[{P_DSK}:{P_DSK+1}]", "kp")

KS = 64
def kgen_prog():
    out = []; e = out.append
    P = C_P
    AL, BE, CO = 10, 11, 12
    Z1, Z2, Z4, Z8, Z256, Z512 = 14, 16, 18, 20, 22, 24
    A0, A1, B0, B1, C0, C1_, CB, D0, D1, DB0, DB1 = 26, 28, 30, 32, 34, 36, 38, 40, 42, 44, 46
    T = 48
    for q in range(8): e(f"v_lshlrev_b32 v{P+q}, 16, v{P+q}")
    e(f"v_mul_f32 v58, 0x3fb8aa3b, v{P+6}")
    e("v_exp_f32 v58, v58")
    e(f"v_mov_b32 v{A0}, 1.0")
    e(f"v_cvt_pk_bf16_f32 v58, v58, v58")
    e(f"v_mov_b32 v{A0+1}, 0")
    e(f"v_lshlrev_b32 v58, 16, v58")
    e(f"v_mul_f32 v{AL}, v58, v{P}"); e(f"v_mul_f32 v{BE}, v58, v{P+1}")
    e(f"v_mul_f32 v56, v58, v{P+2}"); e(f"v_mul_f32 v57, v58, v{P+3}")
    e(f"v_mul_f32 v{AL}, 0x3fb8aa3b, v{AL}"); e(f"v_mul_f32 v{BE}, 0.15915494, v{BE}")
    e(f"v_mul_f32 v{CO}, v{P+4}, v56"); e(f"v_mul_f32 v{CO+1}, v{P+4}, v57")
    e(f"v_fma_f32 v{CO}, -v{P+5}, v57, v{CO}"); e(f"v_fma_f32 v{CO+1}, v{P+5}, v56, v{CO+1}")
    items = [(Z1, 1, T), (Z8, 8, T+2), (Z256, 256, T+4), (B0, 128, T+6)]
    for d, p, t in items:
        e(f"v_mul_f32 v{t}, {fhex(float(p))}, v{AL}"); e(f"v_mul_f32 v{t+1}, {fhex(float(p))}, v{BE}")
    for d, p, t in items:
        e(f"v_exp_f32 v{t}, v{t}"); e(f"v_fract_f32 v{t+1}, v{t+1}")
    for d, p, t in items:
        e(f"v_cos_f32 v{d}, v{t+1}"); e(f"v_sin_f32 v{d+1}, v{t+1}")
    e("v_nop")
    for d, p, t in items:
        e(f"v_mul_f32 v{d}, v{d}, v{t}"); e(f"v_mul_f32 v{d+1}, v{d+1}, v{t}")
    def cm(d, x, y):
        return [f"v_mul_f32 v{d}, v{x}, v{y}", f"v_mul_f32 v{d+1}, v{x}, v{y+1}",
                f"v_fma_f32 v{d}, -v{x+1}, v{y+1}, v{d}", f"v_fma_f32 v{d+1}, v{x+1}, v{y}, v{d+1}"]
    def put(vec, pr):
        return [f"v_cvt_pk_bf16_f32 v{KS+vec}, v{pr}, {'-' if vec < 32 else ''}v{pr+1}"]
    for d, x, y in ((Z2, Z1, Z1), (Z512, Z256, Z256), (CB, CO, Z256), (Z4, Z2, Z2), (DB0, CO, Z512)):
        out += cm(d, x, y)
    sA = [('p', 32, A0)]; cur, oth = A0, A1
    for b in range(1, 16):
        sA += [('m', oth, cur, Z8), ('p', 32 + b, oth)]; cur, oth = oth, cur
    sB = [('p', 48, B0)]; cur, oth = B0, B1
    for b in range(17, 32):
        sB += [('m', oth, cur, Z8), ('p', 32 + b, oth)]; cur, oth = oth, cur
    sC = [('p', 0, CO)]; cur = CO
    for ee in range(1, 8):
        d = (C0, C1_)[ee % 2]; sC += [('m', d, cur, Z1), ('p', ee, d)]; cur = d
    sC += [('p', 8, CB), ('m', C0, CB, Z2), ('p', 9, C0), ('m', C1_, C0, Z2), ('p', 10, C1_), ('p', 12, C1_),
           ('m', C0, C1_, Z2), ('p', 13, C0), ('m', C1_, C0, Z2), ('p', 14, C1_)]
    sD = [('p', 16, DB0), ('m', D0, DB0, Z4), ('p', 17, D0), ('p', 20, D0), ('m', D1, D0, Z4), ('p', 21, D1),
          ('m', DB1, DB0, Z256), ('p', 18, DB1), ('m', D0, DB1, Z4), ('p', 19, D0), ('p', 22, D0), ('m', D1, D0, Z4), ('p', 23, D1)]
    prev, nxt = DB1, DB0
    for q in range(4):
        sD += [('m', nxt, prev, Z256), ('p', 24 + q, nxt), ('m', (D0, D1)[q % 2], nxt, Z8), ('p', 28 + q, (D0, D1)[q % 2])]
        prev, nxt = nxt, prev
    seqs = [sA, sB, sC, sD]; pos = [0]*4
    while any(pos[q] < len(seqs[q]) for q in range(4)):
        for q in range(4):
            if pos[q] < len(seqs[q]):
                st = seqs[q][pos[q]]; pos[q] += 1
                out += put(st[1], st[2]) if st[0] == 'p' else cm(st[1], st[2], st[3])
    return out

def kv_writes():
    pre = [f"s_mul_i32 s{S_T0}, s{S_CH}, {KV_CH}", f"s_lshl_b32 s{S_T1}, s{S_MH}, 8", f"s_add_u32 s{S_T0}, s{S_T0}, s{S_T1}",
           f"s_add_u32 s{S_T0}, s{S_T0}, {L_KV}", f"v_lshl_add_u32 v58, v{V_LANE}, 2, s{S_T0}"]
    return pre + [f"ds_write_b32 v58, v{KS+v} offset:{v*528}" for v in range(64) if v not in (11, 15)]

def wd_touch(a):
    a.e(f"s_mul_i32 s{S_T0}, s{S_WG}, 5504")
    a.e(f"s_lshl_b32 s{S_T1}, s{S_W}, 10")
    a.e(f"s_add_u32 s{S_T0}, s{S_T0}, s{S_T1}")
    a.e(f"v_lshl_add_u32 v52, v{V_LANE}, 4, s{S_T0}")
    mk_srd(a, SRD_WD, P_WD, 1376 * 1024)
    a.vm(f"buffer_load_dwordx4 v[136:139], v52, s[{SRD_WD}:{SRD_WD+3}], 0 offen", "pf")
    a.e(f"v_add_u32 v52, 4096, v52")
    a.vm(f"buffer_load_dwordx4 v[136:139], v52, s[{SRD_WD}:{SRD_WD+3}], 0 offen", "pf")

def y_clear(a):
    a.e(f"s_and_b32 s{S_T0}, s{S_WG}, 7")
    a.e(f"s_lshr_b32 s{S_T1}, s{S_WG}, 3")
    a.e(f"s_lshl_b32 s{S_T0}, s{S_T0}, 6")
    a.e(f"s_lshl_b32 s{S_T1}, s{S_T1}, 1")
    a.e(f"s_add_u32 s{S_T0}, s{S_T0}, s{S_T1}")
    a.e(f"s_lshl_b32 s{S_T0}, s{S_T0}, 7")
    a.e(f"s_add_u32 s{S_T0}, s{S_T0}, {WS_Y}")
    a.e(f"s_lshl_b32 s{S_T1}, s{S_W}, 6")
    a.e(f"v_add_u32 v52, s{S_T1}, v{V_LANE}")
    a.e(f"v_lshrrev_b32 v53, 4, v52")
    a.e(f"v_lshlrev_b32 v53, 16, v53")
    a.e(f"v_and_b32 v52, 15, v52")
    a.e(f"v_lshl_add_u32 v52, v52, 4, v53")
    a.e(f"v_add_u32 v52, s{S_T0}, v52")
    a.e(f"v_add_u32 v53, {16*65536}, v52")
    for q in range(4): a.e(f"v_mov_b32 v{128+q}, -1")
    a.vm(f"global_store_dwordx4 v52, v[128:131], s[{P_WS}:{P_WS+1}] sc1", "ycl")
    a.vm(f"global_store_dwordx4 v53, v[128:131], s[{P_WS}:{P_WS+1}] sc1", "ycl")

def xt_loads(a):
    a.e(f"s_and_b32 s{S_T0}, s{S_WG}, 7")
    a.e(f"s_lshr_b32 s{S_T1}, s{S_WG}, 3")
    a.e(f"s_lshl_b32 s{S_T0}, s{S_T0}, 6")
    a.e(f"s_lshl_b32 s{S_T1}, s{S_T1}, 1")
    a.e(f"s_add_u32 s{S_T0}, s{S_T0}, s{S_T1}")
    a.e(f"s_lshl_b32 s{S_T0}, s{S_T0}, 4")
    a.e(f"s_lshl_b32 s{S_T1}, s{S_W}, 19")
    a.e(f"s_add_u32 s{S_T0}, s{S_T0}, s{S_T1}")
    a.e(f"s_add_u32 s{S_T0}, s{S_T0}, {WS_XT}")
    a.e(f"v_lshrrev_b32 v52, 1, v{V_LANE}")
    a.e(f"v_lshlrev_b32 v52, 13, v52")
    a.e(f"v_and_b32 v53, 1, v{V_LANE}")
    a.e(f"v_lshl_add_u32 v52, v53, 4, v52")
    a.e(f"v_add_u32 v52, s{S_T0}, v52")
    a.vm(f"global_load_dwordx4 {vr(C_XT,4)}, v52, s[{P_WS}:{P_WS+1}] sc1", "xt")
    a.e(f"v_add_u32 v52, {32*8192}, v52")
    a.vm(f"global_load_dwordx4 {vr(C_XT+4,4)}, v52, s[{P_WS}:{P_WS+1}] sc1", "xt")
    a.e(f"s_add_u32 s{S_T0}, s{S_T0}, {64*8192}")
    a.e(f"v_lshl_add_u32 v53, v53, 4, s{S_T0}")
    a.vm(f"global_load_dword v160, v53, s[{P_WS}:{P_WS+1}] sc1", "xt")

def u_build(a):
    a.vm_wait("xt")
    O = 132
    a.e(f"v_add_u32 v48, 2, v{V_LANE}")
    a.e("v_and_b32 v48, 63, v48")
    a.e("v_lshlrev_b32 v48, 2, v48")
    a.e(f"ds_bpermute_b32 v49, v48, v{C_XT}")
    a.e(f"ds_bpermute_b32 v50, v48, v{C_XT+4}")
    for q in range(2):
        X = C_XT + 4*q
        for k in range(3):
            a.e(f"v_alignbit_b32 v{O+4*q+k}, v{X+k+1}, v{X+k}, 16")
    a.e(f"v_and_b32 v51, 1, v{V_LANE}")
    a.e(f"v_mul_u32_u24 v51, {UU_CH}, v51")
    a.e(f"v_lshrrev_b32 v48, 1, v{V_LANE}")
    a.e("v_lshl_add_u32 v51, v48, 4, v51")
    a.e(f"s_lshl_b32 s{S_T0}, s{S_W}, 10")
    a.e(f"s_add_u32 s{S_T0}, s{S_T0}, {L_UU + 32}")
    a.e(f"v_add_u32 v51, s{S_T0}, v51")
    a.e(f"v_cmp_gt_u32 vcc, 62, v{V_LANE}")
    a.e("s_waitcnt lgkmcnt(0)")
    a.e("v_cndmask_b32 v49, v50, v49, vcc")
    a.e("v_cndmask_b32 v50, v160, v50, vcc")
    a.e(f"v_alignbit_b32 v{O+3}, v49, v{C_XT+3}, 16")
    a.e(f"v_alignbit_b32 v{O+7}, v50, v{C_XT+7}, 16")
    a.e(f"ds_write_b128 v51, {vr(C_XT,4)}")
    a.e(f"ds_write_b128 v51, {vr(C_XT+4,4)} offset:512")
    a.e(f"ds_write_b128 v51, {vr(O,4)} offset:4160")
    a.e(f"ds_write_b128 v51, {vr(O+4,4)} offset:{4160+512}")
    lab = a.label("nopad")
    a.e(f"s_cmp_lg_u32 s{S_W}, 0")
    a.e(f"s_cbranch_scc1 {lab}")
    a.e(f"v_lshlrev_b32 v48, 16, v{C_XT}")
    a.e(f"v_lshrrev_b32 v49, 3, v{V_LANE}")
    a.e(f"v_mul_u32_u24 v49, {UU_CH}, v49")
    a.e(f"v_and_b32 v50, 7, v{V_LANE}")
    a.e("v_lshl_add_u32 v49, v50, 2, v49")
    a.e(f"v_add_u32 v49, {L_UU}, v49")
    a.e("v_mov_b32 v50, 0")
    a.e(f"s_mov_b64 s[{S_EXEC}:{S_EXEC+1}], exec")
    a.e("s_mov_b64 exec, 0xffff")
    a.e("ds_write_b32 v49, v50")
    a.e("s_mov_b64 exec, 0x7f7f")
    a.e("ds_write_b32 v49, v50 offset:4160")
    a.e("s_mov_b64 exec, 3")
    a.e(f"ds_write_b32 v51, v48 offset:{4160 - 4}")
    a.e(f"s_mov_b64 exec, s[{S_EXEC}:{S_EXEC+1}]")
    a.e(f"{lab}:")

CV_A, CV_B, CV_ACC = [16, 80], [48, 112], 144
CVA, CVB, V_DSK = 2, 10, 11
def conv_addr(a):
    t = 12
    a.e(f"v_and_b32 v{t}, 15, v{V_LANE}")
    a.e(f"v_lshrrev_b32 v{t+1}, 4, v{V_LANE}")
    a.e(f"v_and_b32 v{t+2}, 1, v{t+1}")
    a.e(f"v_lshrrev_b32 v{t+1}, 1, v{t+1}")
    a.e(f"v_lshlrev_b32 v{t+3}, 5, v{t+1}")
    a.e(f"v_lshlrev_b32 v{t+2}, 4, v{t+2}")
    a.e(f"v_sub_u32 v{t+3}, v{t+3}, v{t+2}")
    a.e(f"s_lshl_b32 s{S_T2}, s{S_MH}, 6")
    a.e(f"s_mul_i32 s{S_T0}, s{S_CH}, {KR_CH}")
    a.e(f"s_add_u32 s{S_T0}, s{S_T0}, {L_KR + 496}")
    a.e(f"s_add_u32 s{S_T0}, s{S_T0}, s{S_T2}")
    a.e(f"v_lshlrev_b32 v{t+2}, 5, v{t}")
    a.e(f"v_sub_u32 v{t+2}, v{t+3}, v{t+2}")
    a.e(f"v_add_u32 v{CVB}, s{S_T0}, v{t+2}")
    a.e(f"s_mul_i32 s{S_T0}, s{S_CH}, {UU_CH}")
    a.e(f"s_add_u32 s{S_T0}, s{S_T0}, {L_UU}")
    a.e(f"s_add_u32 s{S_T0}, s{S_T0}, s{S_T2}")
    a.e(f"v_and_b32 v{t+2}, 1, v{t}")
    a.e(f"v_cmp_eq_u32 vcc, 1, v{t+2}")
    a.e(f"v_mov_b32 v{t+2}, {4160+16}")
    a.e(f"v_lshl_add_u32 v{t+3}, v{t}, 1, v{t+3}")
    a.e(f"v_mov_b32 v{t+1}, 18")
    a.e(f"v_cndmask_b32 v{t+2}, v{t+2}, v{t+1}, vcc")
    a.e(f"v_add_u32 v{t+3}, v{t+3}, v{t+2}")
    a.e(f"v_add_u32 v{CVA}, s{S_T0}, v{t+3}")
    for al in range(1, 8):
        a.e(f"v_add_u32 v{CVA+al}, {512*al}, v{CVA}")

def k_part(a):
    FR, KD = 16, 144
    a.e(f"v_and_b32 v12, 31, v{V_LANE}")
    a.e("v_mul_u32_u24 v13, 528, v12")
    a.e(f"v_lshrrev_b32 v14, 5, v{V_LANE}")
    a.e("v_lshl_add_u32 v13, v14, 4, v13")
    a.e(f"s_mul_i32 s{S_T0}, s{S_CH}, {KV_CH}")
    a.e(f"s_add_u32 s{S_T0}, s{S_T0}, {L_KV}")
    a.e(f"v_add_u32 v13, s{S_T0}, v13")
    for k in range(16):
        a.e(f"ds_read_b128 {vr(FR+8*k,4)}, v13 offset:{k*32}")
        a.e(f"ds_read_b128 {vr(FR+8*k+4,4)}, v13 offset:{32*528 + k*32}")
    a.e(f"s_mul_i32 s{S_T0}, s{S_CH}, {KR_CH}")
    a.e(f"s_add_u32 s{S_T0}, s{S_T0}, {L_KR + 504}")
    a.e("v_lshlrev_b32 v12, 4, v12")
    a.e("v_lshl_add_u32 v12, v14, 3, v12")
    a.e(f"v_sub_u32 v12, s{S_T0}, v12")
    a.e(f"s_add_u32 s{S_T0}, s{S_T0}, {4096 - 504}")
    a.e(f"v_lshl_add_u32 v15, v{V_LANE}, 4, s{S_T0}")
    a.e("s_waitcnt lgkmcnt(0)")
    for k in range(16):
        a.e(f"v_mfma_f32_32x32x16_bf16 {vr(KD,16)}, {vr(FR+8*k,4)}, {vr(FR+8*k+4,4)}, {'0' if k == 0 else vr(KD,16)}")
    lab1, lab2 = a.label("ex1"), a.label("ex2")
    a.e(f"v_cmp_le_u32 vcc, 32, v{V_LANE}")
    a.e(f"v_and_b32 v16, 1, v{V_LANE}")
    a.e(f"v_cmp_eq_u32 s[{S_TMP}:{S_TMP+1}], 1, v16")
    for q in range(4): a.e(f"v_mov_b32 v{24+q}, 0")
    a.e("s_nop 4")
    a.e(f"s_cmp_eq_u32 s{S_MH}, 0")
    a.e(f"s_cbranch_scc0 {lab1}")
    D = KD
    a.e(f"v_cvt_pk_bf16_f32 v20, v{D+3}, v{D+2}")
    a.e(f"v_cvt_pk_bf16_f32 v21, v{D+1}, v{D}")
    a.e(f"v_cvt_pk_bf16_f32 v22, v{D+6}, v{D+5}")
    a.e(f"v_cvt_pk_bf16_f32 v23, v{D+4}, v{D+4}")
    a.e("ds_write_b64 v12, v[20:21] offset:3584")
    a.e("ds_write_b64 v12, v[22:23] offset:3072")
    a.e(f"s_mov_b64 s[{S_EXEC}:{S_EXEC+1}], exec")
    a.e("s_mov_b64 exec, 0x3fffffff")
    a.e("ds_write_b128 v15, v[24:27]")
    a.e(f"s_mov_b64 exec, s[{S_EXEC}:{S_EXEC+1}]")
    a.e(f"s_branch {lab2}")
    a.e(f"{lab1}:")
    D = KD + 8
    for q in range(4):
        a.e(f"v_mov_b32 v{28+2*q}, v{D+4+q}")
        a.e(f"v_mov_b32 v{29+2*q}, v{D+4+q}")
    for q in range(2):
        A_, B_ = D + 2*q, D + 2*q + 1
        a.e(f"v_cndmask_b32 v24, v{A_}, v{B_}, vcc")
        a.e(f"v_cvt_pk_bf16_f32 v{20+2*q+0}, v{B_}, v24")
        a.e(f"v_cvt_pk_bf16_f32 v{20+2*q+1}, v{A_}, v{A_}")
    for q in range(4):
        a.e(f"v_permlane32_swap_b32 v{28+2*q}, v{29+2*q}")
    a.e("ds_write_b64 v12, v[20:21] offset:2560")
    a.e("ds_write_b64 v12, v[22:23] offset:2048")
    for q in range(4):
        a.e(f"v_cndmask_b32 v{28+2*q}, v{28+2*q}, v{D+4+q}, s[{S_TMP}:{S_TMP+1}]")
    for q in range(4):
        a.e(f"v_cvt_pk_bf16_f32 v{36+2*q}, v{D+4+q}, v{D+4+q}")
        a.e(f"v_cvt_pk_bf16_f32 v{37+2*q}, v{D+4+q}, v{28+2*q}")
    for q in range(4):
        a.e(f"ds_write_b64 v12, {vr(36+2*q,2)} offset:{1536 - 512*q}")
    a.e(f"{lab2}:")

def conv_main(a, late, dmas):
    def reads(st, q):
        r = [f"ds_read_b128 {vr(CV_B[st]+4*al,4)}, v{CVB} offset:{512*(7-al) + 128*q}" for al in range(8)]
        for al in range(8):
            r.append(f"ds_read2_b32 {vr(CV_A[st]+4*al,2)}, v{CVA+al} offset0:{32*q} offset1:{32*q+1}")
            r.append(f"ds_read2_b32 {vr(CV_A[st]+4*al+2,2)}, v{CVA+al} offset0:{32*q+2} offset1:{32*q+3}")
        return r
    for x in reads(0, 0): a.e(x)
    st = 0
    for q in range(4):
        a.e("s_waitcnt lgkmcnt(0)" if q else "s_waitcnt lgkmcnt(14)")
        mf = []
        for al in range(8):
            for be in range(8 - al):
                I = al + be
                mf.append(f"v_mfma_f32_16x16x32_bf16 {vr(CV_ACC+4*I,4)}, {vr(CV_A[st]+4*al,4)}, {vr(CV_B[st]+4*be,4)}, {'0' if (q == 0 and al == 0) else vr(CV_ACC+4*I,4)}")
        slots = {i: [] for i in range(36)}
        if q == 0: slots[7].append("s_waitcnt lgkmcnt(0)")
        if q < 3:
            base = 8 if q == 0 else 0
            for k, x in enumerate(reads(st ^ 1, q + 1)): slots[base + k].append(x)
        for sl, it in late.get(q, []): slots[sl].append(it)
        dl = dmas.get(q, [])
        for k, g in enumerate(dl): place(slots, 1 + (k * 33) // len(dl), g)
        stamp(a, f"cv{q}")
        sched(a, mf, slots)
        st ^= 1

def conv_finish(a):
    a.e(f"s_lshl_b32 s{S_T0}, s{S_W}, 12")
    a.e(f"s_add_u32 s{S_T0}, s{S_T0}, {L_CX}")
    a.e(f"v_lshl_add_u32 v2, v{V_LANE}, 4, s{S_T0}")
    a.e(f"s_xor_b32 s{S_T1}, s{S_W}, 1")
    a.e(f"s_lshl_b32 s{S_T1}, s{S_T1}, 12")
    a.e(f"s_add_u32 s{S_T1}, s{S_T1}, {L_CX}")
    a.e(f"v_lshl_add_u32 v3, v{V_LANE}, 4, s{S_T1}")
    a.e(f"s_mul_i32 s{S_T0}, s{S_CH}, {UU_CH}")
    a.e(f"s_add_u32 s{S_T0}, s{S_T0}, {L_UU + 32}")
    a.e(f"s_lshl_b32 s{S_T1}, s{S_MH}, 11")
    a.e(f"s_add_u32 s{S_T0}, s{S_T0}, s{S_T1}")
    a.e(f"v_and_b32 v4, 15, v{V_LANE}")
    a.e(f"v_lshrrev_b32 v5, 4, v{V_LANE}")
    a.e(f"v_lshlrev_b32 v6, 5, v4")
    a.e(f"v_lshl_add_u32 v6, v5, 3, v6")
    a.e(f"v_add_u32 v6, s{S_T0}, v6")
    lab1, lab2 = a.label("cx1"), a.label("cx2")
    a.e(f"s_cmp_eq_u32 s{S_MH}, 0")
    a.e(f"s_cbranch_scc1 {lab1}")
    for k in range(4):
        a.e(f"ds_write_b128 v2, {vr(CV_ACC+4*k,4)} offset:{1024*k}")
    for q in range(8):
        a.e(f"v_pk_mul_f32 {vr(CV_ACC+2*q,2)}, {vr(CV_ACC+16+2*q,2)}, 1.0 op_sel_hi:[1,0]")
    a.e(f"s_branch {lab2}")
    a.e(f"{lab1}:")
    for k in range(4):
        a.e(f"ds_write_b128 v2, {vr(CV_ACC+16+4*k,4)} offset:{1024*k}")
    a.e(f"{lab2}:")
    for k in range(4):
        a.e(f"ds_read_b64 {vr(16+2*k,2)}, v6 offset:{512*k}")
    a.e(f"s_lshl_b32 s{S_T0}, s{S_MH}, 20")
    a.e(f"s_lshl_b32 s{S_T1}, s{S_D}, 7")
    a.e(f"s_add_u32 s{S_T0}, s{S_T0}, s{S_T1}")
    a.e(f"s_add_u32 s{S_T0}, s{S_T0}, {WS_Y}")
    a.e(f"v_lshrrev_b32 v7, 2, v4")
    a.e(f"v_lshlrev_b32 v7, 16, v7")
    a.e(f"v_and_b32 v8, 3, v4")
    a.e(f"v_lshl_add_u32 v7, v8, 5, v7")
    a.e(f"v_lshl_add_u32 v7, v5, 3, v7")
    a.e(f"v_add_u32 v7, s{S_T0}, v7")
    a.e("s_waitcnt lgkmcnt(0)")
    a.bar("cx")
    for k in range(4):
        a.e(f"ds_read_b128 {vr(64+4*k,4)}, v3 offset:{1024*k}")
    U = 32
    for k in range(4):
        a.e(f"v_lshlrev_b32 v{U+4*k}, 16, v{16+2*k}")
        a.e(f"v_and_b32 v{U+4*k+1}, 0xffff0000, v{16+2*k}")
        a.e(f"v_lshlrev_b32 v{U+4*k+2}, 16, v{17+2*k}")
        a.e(f"v_and_b32 v{U+4*k+3}, 0xffff0000, v{17+2*k}")
    a.e(f"v_mov_b32 v10, v{V_DSK}")
    for k in range(8):
        a.e(f"v_pk_fma_f32 {vr(CV_ACC+2*k,2)}, {vr(U+2*k,2)}, v[10:11], {vr(CV_ACC+2*k,2)}")
    a.vm_wait("wd3", "wd6")
    a.e("s_waitcnt lgkmcnt(0)")
    a.bar("cd")
    for k in range(8):
        a.e(f"v_pk_add_f32 {vr(CV_ACC+2*k,2)}, {vr(CV_ACC+2*k,2)}, {vr(64+2*k,2)}")
    for k in range(8):
        a.e(f"v_cvt_pk_bf16_f32 v{16+k}, v{CV_ACC+2*k}, v{CV_ACC+2*k+1}")
    for k in range(4):
        a.vm(f"global_store_dwordx2 v7, {vr(16+2*k,2)}, s[{P_WS}:{P_WS+1}] sc1", "pubY")
        if k < 3: a.e(f"v_add_u32 v7, {4*65536}, v7")


def role_c(a):
    a.e("L_role_c:")
    c_setup(a)
    a_read_addr(a, C_AADDR, 12)
    a.e("s_waitcnt lgkmcnt(0)")
    a.e(f"s_mov_b32 s{S_ROLE}, 1")
    stamp(a, 0, real=True); stamp(a, 1)
    mk_srd(a, SRD_X, P_X, 2048 * 1024)
    mk_srd(a, SRD_WG, P_WG, 512 * 2752)
    mk_srd(a, SRD_WU, P_WU, 512 * 2752)
    epoch_load(a, 13, 54)
    for g in stage_dma(0): emit(a, g)
    d1 = stage_dma(1)
    n1 = OPT.get("n1", 4)
    for g in d1[:n1]: emit(a, g)
    a.vm_wait("st0")
    a.bar("b0")
    stamp(a, "b0")
    for g in d1[n1:]: emit(a, g)
    epoch_finish(a, 54)
    cs_block(a)
    for g in stage_dma(2): emit(a, g)
    kgen_loads(a)
    prog = [lambda a: a.vm_wait("kp")] + kgen_prog()
    nst = 4
    per = (len(prog) + nst - 1) // nst
    pos = 0
    for stage in range(7):
        a.e("s_waitcnt lgkmcnt(0)")
        a.vm_wait(f"st{stage+1}")
        a.bar(f"s{stage}")
        stamp(a, f"cs{stage}")
        dm = stage_dma(stage + 3) if stage + 3 < 8 else []
        if stage == OPT.get("touchstage", 2) and OPT.get("wdtouch", 1):
            wd_touch(a)
        if stage == OPT.get("yclrstage", 3):
            y_clear(a)
        work = []
        if 1 <= stage <= nst:
            work = prog[pos:pos + per]; pos += per
        if stage == 5 and OPT.get("kvearly", 1):
            work = kv_writes()[:OPT.get("kvsplit", 35)]
        if stage == 6:
            work = (kv_writes()[OPT.get("kvsplit", 35):] if OPT.get("kvearly", 1) else [])
        if stage == OPT.get("cpoll", 5):
            work = work + [lambda a: ln_poll_issue(a, 59, 132)]
        if stage == OPT.get("cchk", 6):
            work = [lambda a: ln_poll_check(a, 59, 132), xt_loads] + work
        step = max(1, len(work) // max(1, len(dm))) if dm else len(work)
        while dm or work:
            if dm: emit(a, dm.pop(0))
            for _ in range(step if dm else len(work)):
                if work: emit(a, work.pop(0))
    assert pos >= len(prog)
    a.e(f"v_mov_b32 v{V_DSK}, v{C_P+7}")
    a.e("s_waitcnt lgkmcnt(0)")
    a.bar("rf")
    stamp(a, "crf")
    if OPT.get("cprio2") is not None: a.e(f"s_setprio {OPT['cprio2']}")
    if OPT.get("cchk", 6) > 6:
        ln_poll_check(a, 59, 132)
        xt_loads(a)
    if not OPT.get("kvearly", 1):
        for x in kv_writes(): a.e(x)
        a.e("s_waitcnt lgkmcnt(0)")
        a.bar("kv")
    stamp(a, "ckv")
    wd_setup(a, 52, 161)
    for g in wd_groups(1, 161) + wd_groups(2, 161): emit(a, g)
    k_part(a)
    stamp(a, "ckp")
    u_build(a)
    stamp(a, "cub")
    conv_addr(a)
    a.e("v_mov_b32 v12, v161")
    a.vm_wait("wd1", "wd2", "ycl")
    a.e("s_waitcnt lgkmcnt(0)")
    a.bar("k")
    stamp(a, "ck")
    conv_main(a, {OPT.get("pbar", 2): [(OPT.get("pslot", 20), lambda a: a.bar("p"))]},
              {0: wd_groups(3, 12) + wd_groups(6, 12)[:2], 1: wd_groups(6, 12)[2:]})
    stamp(a, "convm")
    conv_finish(a)
    stamp(a, "conv")
    a.e("s_waitcnt vmcnt(0)")
    stamp(a, 9, real=True)
    prof_store(a)
    a.e("s_endpgm")


def main():
    global PROF
    PROF = "prof" in sys.argv
    for x in sys.argv[1:]:
        if "=" in x:
            k, v = x.split("=")
            if k == "stamps": STAMPS[:] = v.split(",")
            else: OPT[k] = int(v)
    shared = [0]
    a0 = A2(shared); entry(a0)
    g = A2(shared); g.vmq = list(a0.vmq); role_g(g)
    c = A2(shared); c.vmq = list(a0.vmq); role_c(c)
    gb = [b for b in g.bars if b != "fin"]
    assert gb == c.bars, (gb, c.bars)
    out = [HDR, f"; @launch grid=(256,1,1) block=(512,1,1) lds={LDS_BYTES}",
           '.amdgcn_target "amdgcn-amd-amdhsa--gfx950"', '.text', a0.text(), g.text(), c.text(),
           "L_end:", "  s_endpgm", "  .fill 8448, 4, 0xbf800000", '.section .rodata,"a"', kd(NAME, 176, 80)]
    print('\n'.join(out))

if __name__ == "__main__":
    main()
```

```python
import sys, math
from asmlib import *

NAME = "parallel_sum__ssm_conv_s4__geglu_ffn__prompt_kernel"
OPT = {}
PROF = False
STAMPS = []
HDR = open('parallel_sum__ssm_conv_s4__geglu_ffn__prompt.s.ref').read().split('; Override')[0].rstrip()

WS_FLAG_LN, WS_FLAG_H, WS_FLAG_Y = 4096, 8192, 12288
WS_STATS, WS_CS = 65536, 131072
WS_XT, WS_Y, WS_H = 1 << 20, 4 << 20, 8 << 20
WS_DUMMY, WS_PROF = 15 << 20, 16 << 20
SPIN_MAX = 1 << 17

S_WG, S_W, S_I, S_J, S_TW, S_FW, S_U0, S_KC = 2, 3, 4, 5, 6, 7, 8, 9
S_T0, S_T1, S_T2, S_SPIN, S_TAG, S_WDL = 10, 11, 12, 13, 14, 15
P_X, P_ARE, P_AIM, P_BRE, P_BIM, P_CRE, P_CIM, P_LDT = 16, 18, 20, 22, 24, 26, 28, 30
P_DSK, P_BX, P_WG, P_WU, P_WD, P_OUT, P_DBG, P_WS = 32, 34, 36, 38, 40, 42, 44, 46
S_EP, S_ROLE = 34, 35
SRD_X, SRD_WG, SRD_WU, SRD_WD = 48, 52, 56, 60
S_XW, S_WW, S_XO, S_WO, S_LX, S_LW = 64, 65, 66, 67, 68, 69
S_EXEC = 70
S_NU, S_CSH = 72, 73
S_WDS = 73
S_TMP = 74
S_D, S_CH, S_MH, S_TH, S_NT, S_WDO = 76, 77, 78, 79, 80, 81
S_PROF = 82

LDS_BYTES = 163840
SLOT = 41216
L_X, L_G, L_U = 0, 16384, 28704
L_LN = 3 * SLOT
KV_CH, KR_CH, UU_CH = 64 * 528, 4608, 8320
L_KV = 2 * SLOT
L_KR = 150016
L_UU = 24576
L_CX = 131584
WD = {1: (0, 6144, 0, 3), 2: (SLOT, 10240, 3, 5),
      4: (0, 6144, 8, 3), 5: (SLOT, 10240, 11, 5),
      3: (115200, 4096, 16, 2),
      6: (2 * SLOT, 8192, 18, 4)}
def wd_areg(q): return 8 * q if q < 8 else 64 + 8 * (q - 16)
def wd_in_agpr(q): return q < 8 or q in (16, 17)
RED_UNIT = [4096 * u for u in range(12)]
L_YB = 49152

V_LANE = 1


def stamp(a, idx, real=False):
    if PROF:
        if isinstance(idx, str):
            if idx not in STAMPS: return
            idx = 2 + STAMPS.index(idx)
        a.e(f"{'s_memrealtime' if real else 's_memtime'} s[{S_PROF+2*idx}:{S_PROF+2*idx+1}]")

def prof_store(a):
    if not PROF: return
    a.e("s_waitcnt lgkmcnt(0)")
    for q in range(10):
        a.e(f"v_mov_b32 v{4+q}, s{S_PROF+2*q}")
    a.e(f"s_lshl_b32 s{S_T0}, s{S_ROLE}, 2")
    a.e(f"s_add_u32 s{S_T0}, s{S_T0}, s{S_W}")
    a.e(f"s_lshl_b32 s{S_T1}, s{S_WG}, 3")
    a.e(f"s_add_u32 s{S_T0}, s{S_T0}, s{S_T1}")
    a.e(f"s_lshl_b32 s{S_T0}, s{S_T0}, 6")
    a.e(f"s_add_u32 s{S_T0}, s{S_T0}, {WS_PROF}")
    a.e(f"v_mov_b32 v2, s{S_T0}")
    a.e("s_mov_b64 exec, 1")
    a.e(f"global_store_dwordx4 v2, v[4:7], s[{P_WS}:{P_WS+1}]")
    a.e(f"global_store_dwordx4 v2, v[8:11], s[{P_WS}:{P_WS+1}] offset:16")
    a.e(f"global_store_dwordx2 v2, v[12:13], s[{P_WS}:{P_WS+1}] offset:32")


class A2(Asm):
    def __init__(self, shared):
        super().__init__()
        self.bars = []
        self.shared = shared
    def label(self, base):
        self.shared[0] += 1
        return f"L_{base}_{self.shared[0]}"
    def bar(self, name):
        self.e("s_barrier")
        self.bars.append(name)


class Rec:
    def __init__(self, a):
        self.ops = []; self.a = a
    def e(self, s):
        for l in s.split('\n'):
            if l.strip(): self.ops.append(('e', l.strip()))
    def vm(self, s, tag): self.ops.append(('vm', s, tag))
    def vm_wait(self, *tags): self.ops.append(('wait', tags))
    def label(self, b): return self.a.label(b)
    def bar(self, name): self.ops.append(('bar', name))

def replay(a, ops, fillers, every, start=0):
    fill = list(fillers); n = 0
    for o in ops:
        if o[0] == 'e': a.e(o[1])
        elif o[0] == 'vm': a.vm(o[1], o[2])
        elif o[0] == 'wait': a.vm_wait(*o[1])
        elif o[0] == 'bar': a.bar(o[1])
        n += 1
        if fill and n >= start and (n - start) % every == 0:
            emit(a, fill.pop(0))
    for g in fill: emit(a, g)

def emit(a, g):
    if callable(g): g(a)
    elif isinstance(g, tuple): a.vm(g[0], g[1])
    elif isinstance(g, list):
        for t in g: emit(a, t)
    else: a.e(g)

class Dma(list):
    def __init__(self, pre, m0, ld, post=()):
        super().__init__(list(pre) + [m0, "s_nop 0", ld] + list(post))
        self.head = list(pre) + [m0]
        self.tail = [ld] + list(post)

def place(slots, p, g):
    if isinstance(g, Dma) and p >= 1:
        slots[p - 1].append(g.head); slots[p].insert(0, g.tail)
    else:
        slots[p].append(g)

def sched(a, mf, slots):
    for i, m in enumerate(mf):
        a.e(m)
        for it in slots.get(i, []): emit(a, it)

def mk_srd(a, srd, ptr, nbytes):
    a.e(f"s_mov_b32 s{srd}, s{ptr}")
    a.e(f"s_and_b32 s{srd+1}, s{ptr+1}, 0xffff")
    a.e(f"s_mov_b32 s{srd+2}, {nbytes}")
    a.e(f"s_mov_b32 s{srd+3}, 0x20000")

def dpp_reduce(a, regs):
    steps = ["quad_perm:[1,0,3,2] row_mask:0xf bank_mask:0xf", "quad_perm:[2,3,0,1] row_mask:0xf bank_mask:0xf",
             "row_half_mirror row_mask:0xf bank_mask:0xf", "row_mirror row_mask:0xf bank_mask:0xf",
             "row_bcast:15 row_mask:0xa bank_mask:0xf", "row_bcast:31 row_mask:0xc bank_mask:0xf"]
    assert len(regs) >= 3
    for st in steps:
        for r in regs:
            a.e(f"v_add_f32_dpp v{r}, v{r}, v{r} {st}")
    a.e("s_nop 1")


def entry(a):
    a.e(f".globl {NAME}\n.p2align 8\n.type {NAME},@function\n{NAME}:")
    a.e(f"s_cmp_ge_u32 s{S_WG}, 256")
    a.e(f"s_cbranch_scc1 L_end")
    a.e("s_load_dwordx16 s[16:31], s[0:1], 0")
    a.e("s_load_dwordx16 s[32:47], s[0:1], 64")
    a.e("s_getpc_b64 s[74:75]")
    a.e(f"s_lshr_b32 s{S_T1}, s{S_WG}, 3")
    a.e(f"s_and_b32 s{S_T2}, s{S_T1}, 15")
    a.e(f"s_lshl_b32 s{S_T2}, s{S_T2}, 11")
    a.e(f"v_lshl_add_u32 v2, v0, 2, s{S_T2}")
    a.vm(f"global_load_dword v175, v2, s[74:75]", "pf")
    a.e(f"v_and_b32 v{V_LANE}, 63, v0")
    a.e(f"v_lshrrev_b32 v3, 6, v0")
    a.e(f"s_and_b32 s{S_T0}, s{S_WG}, 7")
    a.e(f"v_readfirstlane_b32 s{S_W}, v3")
    a.e(f"s_lshr_b32 s{S_I}, s{S_T0}, 1")
    a.e(f"s_lshl_b32 s{S_I}, s{S_I}, 2")
    a.e(f"s_lshr_b32 s{S_T2}, s{S_T1}, 3")
    a.e(f"s_add_u32 s{S_I}, s{S_I}, s{S_T2}")
    a.e(f"s_and_b32 s{S_J}, s{S_T0}, 1")
    a.e(f"s_lshl_b32 s{S_J}, s{S_J}, 3")
    a.e(f"s_and_b32 s{S_T2}, s{S_T1}, 7")
    a.e(f"s_add_u32 s{S_J}, s{S_J}, s{S_T2}")
    a.e(f"s_lshr_b32 s{S_TMP}, s{S_W}, 2")
    a.e(f"s_and_b32 s{S_W}, s{S_W}, 3")
    a.e(f"s_lshr_b32 s{S_TW}, s{S_W}, 1")
    a.e(f"s_and_b32 s{S_FW}, s{S_W}, 1")
    a.e(f"s_mul_i32 s{S_U0}, s{S_J}, 3")
    a.e(f"s_lshl_b32 s{S_T2}, s{S_J}, 1")
    a.e(f"s_add_u32 s{S_T2}, s{S_T2}, 11")
    a.e(f"s_min_u32 s{S_U0}, s{S_U0}, s{S_T2}")
    a.e(f"s_cmp_lt_u32 s{S_J}, 11")
    a.e(f"s_cselect_b32 s{S_NU}, 6, 4")
    a.e(f"s_lshr_b32 s{S_CSH}, s{S_I}, 3")
    a.e(f"s_lshl_b32 s{S_D}, s{S_T0}, 6")
    a.e(f"s_lshl_b32 s{S_T1}, s{S_T1}, 1")
    a.e(f"s_add_u32 s{S_D}, s{S_D}, s{S_T1}")
    a.e(f"s_add_u32 s{S_D}, s{S_D}, s{S_TW}")
    a.e(f"s_mov_b32 s{S_CH}, s{S_TW}")
    a.e(f"s_mov_b32 s{S_MH}, s{S_FW}")
    a.e(f"s_lshr_b32 s{S_TH}, s{S_J}, 3")
    if OPT.get("ntoff"):
        a.e(f"s_add_u32 s{S_NT}, s{S_J}, {OPT['ntoff']}")
        a.e(f"s_and_b32 s{S_NT}, s{S_NT}, 7")
    else:
        a.e(f"s_and_b32 s{S_NT}, s{S_J}, 7")
    a.e(f"s_cmp_lg_u32 s{S_TMP}, 0")
    a.e(f"s_cbranch_scc1 L_role_c")

def epoch_load(a, vtmp, vdst):
    a.e(f"v_mov_b32 v{vtmp}, 0")
    a.vm(f"global_load_dword v{vdst}, v{vtmp}, s[{P_WS}:{P_WS+1}] sc1", "ep")

def epoch_finish(a, vdst):
    a.vm_wait("ep")
    a.e("s_nop 0")
    a.e(f"v_readfirstlane_b32 s{S_EP}, v{vdst}")
    a.e("s_nop 3")
    a.e(f"s_mul_i32 s{S_TAG}, s{S_EP}, 0x9e3779b1")
    a.e(f"s_add_u32 s{S_TAG}, s{S_TAG}, 0x3c6ef373")

def flag_store(a, region, idx_code, va, vb):
    lab = a.label("nofl")
    a.e(f"s_cmp_lg_u32 s{S_W}, 0")
    a.e(f"s_cbranch_scc1 {lab}")
    idx_code(a)
    a.e(f"s_lshl_b32 s{S_T0}, s{S_T0}, 2")
    a.e(f"s_add_u32 s{S_T0}, s{S_T0}, {region}")
    a.e(f"v_mov_b32 v{va}, s{S_T0}")
    a.e(f"v_mov_b32 v{vb}, s{S_TAG}")
    a.e(f"s_mov_b64 s[{S_EXEC}:{S_EXEC+1}], exec")
    a.e("s_mov_b64 exec, 1")
    a.e(f"global_store_dword v{va}, v{vb}, s[{P_WS}:{P_WS+1}] sc1")
    a.e(f"s_mov_b64 exec, s[{S_EXEC}:{S_EXEC+1}]")
    a.e(f"{lab}:")

def idx_ln(a): a.e(f"s_mov_b32 s{S_T0}, s{S_WG}")
def idx_h(a):
    a.e(f"s_lshl_b32 s{S_T0}, s{S_I}, 4")
    a.e(f"s_add_u32 s{S_T0}, s{S_T0}, s{S_J}")
def idx_y(a):
    a.e(f"s_and_b32 s{S_T0}, s{S_WG}, 7")
    a.e(f"s_lshl_b32 s{S_T0}, s{S_T0}, 5")
    a.e(f"s_lshr_b32 s{S_T1}, s{S_WG}, 3")
    a.e(f"s_add_u32 s{S_T0}, s{S_T0}, s{S_T1}")

def spin_tail(a, top, ok, reloads, sleep=None):
    a.e(f"s_cmp_eq_u64 vcc, 0")
    a.e(f"s_cbranch_scc1 {ok}")
    a.e(f"s_add_u32 s{S_SPIN}, s{S_SPIN}, 1")
    a.e(f"s_cmp_gt_u32 s{S_SPIN}, {SPIN_MAX}")
    a.e(f"s_cbranch_scc1 {ok}")
    a.e(f"s_sleep {sleep if sleep is not None else OPT.get('sleep', 8)}")
    for r in reloads: a.e(r)
    a.e("s_waitcnt vmcnt(0)")
    a.e(f"s_branch {top}")
    a.e(f"{ok}:")

def ln_poll_issue(a, vaddr, vdst):
    a.e(f"v_lshlrev_b32 v{vaddr}, 4, v{V_LANE}")
    a.e(f"v_add_u32 v{vaddr}, {WS_FLAG_LN}, v{vaddr}")
    a.vm(f"global_load_dwordx4 {vr(vdst,4)}, v{vaddr}, s[{P_WS}:{P_WS+1}] sc1", "pl")

def ln_poll_check(a, vaddr, vdst):
    top, ok = a.label("poll"), a.label("pollok")
    a.vm_wait("pl")
    a.e(f"s_mov_b32 s{S_SPIN}, 0")
    a.e(f"{top}:")
    a.e(f"v_cmp_ne_u32 vcc, s{S_TAG}, v{vdst}")
    for q in range(1, 4):
        a.e(f"v_cmp_ne_u32 s[74:75], s{S_TAG}, v{vdst+q}")
        a.e("s_nop 0")
        a.e("s_or_b64 vcc, vcc, s[74:75]")
    a.e("s_nop 1")
    spin_tail(a, top, ok, [f"global_load_dwordx4 {vr(vdst,4)}, v{vaddr}, s[{P_WS}:{P_WS+1}] sc1"])


G_ACC = 16
def acc(tt, ap): return G_ACC + 16 * (3 * tt + ap)
G_FR = [112, 132]
def fB(st, tt): return G_FR[st] + 4 * tt
def fA(st, ap): return G_FR[st] + 8 + 4 * ap
G_BADDR, G_AADDR = 160, 164

def a_read_addr(a, dst, t0):
    a.e(f"v_lshrrev_b32 v{t0}, 4, v{V_LANE}")
    a.e(f"v_and_b32 v{t0+1}, 1, v{t0}")
    a.e(f"v_lshrrev_b32 v{t0}, 1, v{t0}")
    a.e(f"v_bfe_u32 v{t0+2}, v{V_LANE}, 2, 2")
    a.e(f"v_lshl_add_u32 v{t0+2}, v{t0}, 3, v{t0+2}")
    a.e(f"v_mul_u32_u24 v{t0+2}, 192, v{t0+2}")
    a.e(f"v_and_b32 v{t0+3}, 3, v{V_LANE}")
    a.e(f"v_lshl_add_u32 v{t0+2}, v{t0+3}, 3, v{t0+2}")
    a.e(f"v_mul_u32_u24 v{t0+1}, {L_U - L_G}, v{t0+1}")
    a.e(f"v_add_u32 v{t0+2}, v{t0+2}, v{t0+1}")
    a.e(f"s_mul_i32 s{S_T0}, s{S_FW}, 96")
    a.e(f"s_add_u32 s{S_T0}, s{S_T0}, {L_G}")
    a.e(f"v_add_u32 v{dst}, s{S_T0}, v{t0+2}")

def g_setup(a):
    a.e(f"v_and_b32 v12, 31, v{V_LANE}")
    a.e(f"v_lshrrev_b32 v13, 5, v{V_LANE}")
    a.e(f"v_bfe_u32 v14, v12, 1, 3")
    a.e(f"s_lshl_b32 s{S_T0}, s{S_TW}, 13")
    a.e(f"v_lshl_add_u32 v15, v12, 7, s{S_T0}")
    for s_ in range(4):
        a.e(f"v_add_u32 v11, {2*s_}, v13")
        a.e(f"v_xor_b32 v11, v11, v14")
        a.e(f"v_lshl_add_u32 v{G_BADDR+s_}, v11, 4, v15")
    a_read_addr(a, G_AADDR, 12)
    a.e(f"s_lshl_b32 s{S_T0}, s{S_I}, 7")
    a.e(f"s_lshl_b32 s{S_T1}, s{S_J}, 3")
    a.e(f"s_add_u32 s{S_T0}, s{S_T0}, s{S_T1}")
    a.e(f"s_lshl_b32 s{S_T1}, s{S_W}, 1")
    a.e(f"s_add_u32 s{S_T0}, s{S_T0}, s{S_T1}")
    a.e(f"s_lshl_b32 s{S_T0}, s{S_T0}, 10")
    a.e(f"v_lshl_add_u32 v7, v{V_LANE}, 4, s{S_T0}")

def ln_first(a):
    a.vm_wait("ln")
    for r in range(2):
        for d in range(4):
            a.e(f"v_lshlrev_b32 v{16+8*r+2*d}, 16, v{44+4*r+d}")
            a.e(f"v_and_b32 v{17+8*r+2*d}, 0xffff0000, v{44+4*r+d}")
    for r in range(2):
        b, t = 16 + 8*r, 36 + 4*r
        a.e(f"v_pk_add_f32 {vr(t,2)}, {vr(b,2)}, {vr(b+2,2)}")
        a.e(f"v_pk_mul_f32 {vr(t+2,2)}, {vr(b,2)}, {vr(b,2)}")
    for r in range(2):
        b, t = 16 + 8*r, 36 + 4*r
        a.e(f"v_pk_add_f32 {vr(t,2)}, {vr(t,2)}, {vr(b+4,2)}")
        a.e(f"v_pk_fma_f32 {vr(t+2,2)}, {vr(b+2,2)}, {vr(b+2,2)}, {vr(t+2,2)}")
    for r in range(2):
        b, t = 16 + 8*r, 36 + 4*r
        a.e(f"v_pk_add_f32 {vr(t,2)}, {vr(t,2)}, {vr(b+6,2)}")
        a.e(f"v_pk_fma_f32 {vr(t+2,2)}, {vr(b+4,2)}, {vr(b+4,2)}, {vr(t+2,2)}")
    for r in range(2):
        b, t = 16 + 8*r, 36 + 4*r
        a.e(f"v_pk_fma_f32 {vr(t+2,2)}, {vr(b+6,2)}, {vr(b+6,2)}, {vr(t+2,2)}")
        a.e(f"v_add_f32 v{32+r}, v{t}, v{t+1}")
    for r in range(2):
        t = 36 + 4*r
        a.e(f"v_add_f32 v{34+r}, v{t+2}, v{t+3}")
    a.e("s_nop 0")
    dpp_reduce(a, [32, 33, 34, 35])
    for q, sr_ in enumerate((74, 75, 12, 13)):
        a.e(f"v_readlane_b32 s{sr_}, v{32+q}, 63")
    a.e("s_nop 1")
    for q, sr_ in enumerate((74, 75, 12, 13)):
        a.e(f"v_mov_b32 v{32+q}, s{sr_}")
    a.e("v_mov_b32 v36, 0x3b000000")
    a.e("v_pk_mul_f32 v[32:33], v[32:33], v[36:37] op_sel_hi:[1,0]")
    a.e("v_pk_mul_f32 v[34:35], v[34:35], v[36:37] op_sel_hi:[1,0]")
    a.e("v_pk_fma_f32 v[34:35], v[32:33], v[32:33], v[34:35] neg_lo:[1,0,0] neg_hi:[1,0,0]")
    a.e("v_max_f32 v34, 0, v34")
    a.e("v_max_f32 v35, 0, v35")
    a.e("v_cvt_pk_bf16_f32 v36, v34, v35")
    a.e("v_cvt_pk_bf16_f32 v37, v32, v33")
    a.e("v_lshlrev_b32 v34, 16, v36")
    a.e("v_and_b32 v35, 0xffff0000, v36")
    a.e("v_lshlrev_b32 v32, 16, v37")
    a.e("v_and_b32 v33, 0xffff0000, v37")
    a.e("v_add_f32 v34, 0x3727c5ac, v34")
    a.e("v_add_f32 v35, 0x3727c5ac, v35")
    a.e("v_cvt_pk_bf16_f32 v36, v34, v35")
    a.e("v_lshlrev_b32 v34, 16, v36")
    a.e("v_and_b32 v35, 0xffff0000, v36")
    a.e("v_sqrt_f32 v34, v34")
    a.e("v_sqrt_f32 v35, v35")
    a.e("s_nop 0")
    a.e("v_cvt_pk_bf16_f32 v36, v34, v35")
    a.e("v_lshlrev_b32 v34, 16, v36")
    a.e("v_and_b32 v35, 0xffff0000, v36")
    a.e("v_rcp_f32 v34, v34")
    a.e("v_rcp_f32 v35, v35")
    for r in range(2):
        b = 16 + 8*r
        sel = "op_sel_hi:[1,0]" if r == 0 else "op_sel:[0,1] op_sel_hi:[1,1]"
        for d in range(4):
            a.e(f"v_pk_add_f32 {vr(b+2*d,2)}, {vr(b+2*d,2)}, v[32:33] {sel} neg_lo:[0,1] neg_hi:[0,1]")
    for r in range(2):
        b = 16 + 8*r
        for d in range(4):
            a.e(f"v_cvt_pk_bf16_f32 v{44+4*r+d}, v{b+2*d}, v{b+2*d+1}")
    for r in range(2):
        b = 16 + 8*r
        for d in range(4):
            a.e(f"v_lshlrev_b32 v{b+2*d}, 16, v{44+4*r+d}")
            a.e(f"v_and_b32 v{b+2*d+1}, 0xffff0000, v{44+4*r+d}")
    for r in range(2):
        b = 16 + 8*r
        sel = "op_sel_hi:[1,0]" if r == 0 else "op_sel:[0,1] op_sel_hi:[1,1]"
        for d in range(4):
            a.e(f"v_pk_mul_f32 {vr(b+2*d,2)}, {vr(b+2*d,2)}, v[34:35] {sel}")
    for r in range(2):
        b = 16 + 8*r
        for d in range(4):
            a.e(f"v_cvt_pk_bf16_f32 v{44+4*r+d}, v{b+2*d}, v{b+2*d+1}")
    a.e(f"s_mul_i32 s{S_T0}, s{S_W}, {2*1088}")
    a.e(f"s_add_u32 s{S_T0}, s{S_T0}, {L_LN}")
    a.e(f"v_lshl_add_u32 v2, v{V_LANE}, 4, s{S_T0}")
    a.e("ds_write_b128 v2, v[44:47]")
    a.e("ds_write_b128 v2, v[48:51] offset:1088")
    a.e("v_mov_b32 v40, v34")
    a.e("v_cvt_pk_bf16_f32 v41, -v32, -v32")
    a.e("v_mov_b32 v42, v35")
    a.e("v_cvt_pk_bf16_f32 v43, -v33, -v33")
    a.e(f"s_lshl_b32 s{S_T0}, s{S_I}, 7")
    a.e(f"s_lshl_b32 s{S_T1}, s{S_J}, 3")
    a.e(f"s_add_u32 s{S_T0}, s{S_T0}, s{S_T1}")
    a.e(f"s_lshl_b32 s{S_T1}, s{S_W}, 1")
    a.e(f"s_add_u32 s{S_T1}, s{S_T0}, s{S_T1}")
    a.e(f"s_lshl_b32 s{S_T1}, s{S_T1}, 3")
    a.e(f"s_add_u32 s{S_T1}, s{S_T1}, {WS_STATS}")
    a.e(f"v_mov_b32 v3, s{S_T1}")
    a.e(f"s_mov_b64 s[{S_EXEC}:{S_EXEC+1}], exec")
    a.e("s_mov_b64 exec, 1")
    a.vm(f"global_store_dwordx4 v3, v[40:43], s[{P_WS}:{P_WS+1}] sc1", "pubA")
    a.e(f"s_mov_b64 exec, s[{S_EXEC}:{S_EXEC+1}]")
    a.e(f"v_bfe_u32 v2, v{V_LANE}, 2, 2")
    a.e(f"v_mul_u32_u24 v2, 1088, v2")
    a.e(f"v_lshrrev_b32 v3, 4, v{V_LANE}")
    a.e(f"v_lshl_add_u32 v2, v3, 5, v2")
    a.e(f"v_and_b32 v3, 3, v{V_LANE}")
    a.e(f"v_lshl_add_u32 v2, v3, 3, v2")
    a.e(f"s_lshl_b32 s{S_T1}, s{S_W}, 8")
    a.e(f"s_add_u32 s{S_T1}, s{S_T1}, {L_LN}")
    a.e(f"v_add_u32 v2, s{S_T1}, v2")
    a.e(f"s_lshl_b32 s{S_T0}, s{S_T0}, 10")
    a.e(f"s_lshl_b32 s{S_T1}, s{S_W}, 11")
    a.e(f"s_add_u32 s{S_T0}, s{S_T0}, s{S_T1}")
    a.e(f"s_add_u32 s{S_T0}, s{S_T0}, {WS_XT}")
    a.e(f"v_lshl_add_u32 v3, v{V_LANE}, 4, s{S_T0}")

def g1_reads(st, s):
    r = [f"ds_read_b128 {vr(fB(st,tt),4)}, v{G_BADDR+s} offset:{tt*4096}" for tt in range(2)]
    for ap in range(3):
        for h in range(2):
            r.append(f"ds_read_b64_tr_b16 {vr(fA(st,ap)+2*h,2)}, v{G_AADDR} offset:{s*3072 + h*768 + ap*32}")
    return r

def g1_mfmas(st, first):
    return [f"v_mfma_f32_32x32x16_bf16 {vr(acc(tt,ap),16)}, {vr(fA(st,ap),4)}, {vr(fB(st,tt),4)}, {'0' if first else vr(acc(tt,ap),16)}"
            for ap in range(3) for tt in range(2)]

def g1_main(a, hooks):
    st = 0
    for stage in range(8):
        for s in range(4):
            last = (stage == 7 and s == 3)
            a.e("s_waitcnt lgkmcnt(0)")
            mf = g1_mfmas(st, stage == 0 and s == 0)
            slots = {i: [] for i in range(6)}
            if stage == 0 and OPT.get("csg", 1):
                lab = a.label("nocs")
                a.e(f"s_or_b32 s{S_T0}, s{S_TW}, s{S_CSH}")
                a.e(f"s_cmp_lg_u32 s{S_T0}, 0")
                a.e(f"s_cbranch_scc1 {lab}")
                for ap in range(3):
                    a.e(f"v_mfma_f32_32x32x16_bf16 {ar(16*ap,16)}, v[168:171], {vr(fA(st,ap),4)}, {'0' if s == 0 else ar(16*ap,16)}")
                a.e(f"{lab}:")
            if s == 3 and not last:
                d = SLOT if (stage + 1) % 3 != 0 else -2 * SLOT
                slots[0] += [f"v_add_u32 v{G_BADDR+q}, {d & 0xffffffff}, v{G_BADDR+q}" for q in range(4)]
                slots[0] += [f"v_add_u32 v{G_AADDR}, {d & 0xffffffff}, v{G_AADDR}"]
                for hk in hooks.get(("pre", stage), []): slots[1].append(hk)
                slots[1].append(lambda a, stage=stage: a.bar(f"s{stage}"))
                rd = g1_reads(st ^ 1, 0)
                slots[1] += rd[:3]; slots[2] += rd[3:6]; slots[3] += rd[6:]
                for hk in hooks.get(("post", stage), []): slots[4].append(hk)
            elif last:
                slots[0].append(lambda a: a.bar("rf"))
            else:
                rd = g1_reads(st ^ 1, s + 1)
                slots[0] += rd[:3]; slots[1] += rd[3:6]; slots[2] += rd[6:]
            sh = hooks.get(("shadow", stage, s), [])
            for k, x in enumerate(sh):
                slots[2 + (k * 4) // len(sh)].append(x)
            sched(a, mf, slots)
            st ^= 1
        stamp(a, f"gs{stage}")

CSL = [152, 156, 168]
def cs_store_g(a):
    lab = a.label("nocsst")
    a.e(f"s_or_b32 s{S_T0}, s{S_TW}, s{S_CSH}")
    a.e(f"s_cmp_lg_u32 s{S_T0}, 0")
    a.e(f"s_cbranch_scc1 {lab}")
    for ap in range(3):
        a.e(f"v_accvgpr_read_b32 v{8+ap}, a{16*ap}")
    a.e(f"s_mul_i32 s{S_T0}, s{S_J}, 6")
    a.e(f"s_mul_i32 s{S_T1}, s{S_FW}, 3")
    a.e(f"s_add_u32 s{S_T0}, s{S_T0}, s{S_T1}")
    a.e(f"s_lshl_b32 s{S_T0}, s{S_T0}, 10")
    a.e(f"s_lshl_b32 s{S_T1}, s{S_I}, 2")
    a.e(f"s_add_u32 s{S_T0}, s{S_T0}, s{S_T1}")
    a.e(f"s_add_u32 s{S_T0}, s{S_T0}, {WS_CS}")
    a.e(f"v_lshl_add_u32 v6, v{V_LANE}, 5, s{S_T0}")
    a.e(f"s_mov_b64 s[{S_EXEC}:{S_EXEC+1}], exec")
    a.e("s_mov_b64 exec, 0xffffffff")
    for ap in range(3):
        a.e(f"global_store_dword v6, v{8+ap}, s[{P_WS}:{P_WS+1}] offset:{1024*ap} sc1")
    a.e(f"s_mov_b64 exec, s[{S_EXEC}:{S_EXEC+1}]")
    a.e(f"{lab}:")

def g1_post_loads(a):
    a.e(f"s_lshl_b32 s{S_T0}, s{S_I}, 7")
    a.e(f"s_lshl_b32 s{S_T1}, s{S_TW}, 6")
    a.e(f"s_add_u32 s{S_T0}, s{S_T0}, s{S_T1}")
    a.e(f"s_lshl_b32 s{S_T0}, s{S_T0}, 3")
    a.e(f"s_add_u32 s{S_T0}, s{S_T0}, {WS_STATS}")
    a.e(f"v_and_b32 v6, 31, v{V_LANE}")
    a.e(f"v_lshl_add_u32 v7, v6, 3, s{S_T0}")
    a.vm(f"global_load_dwordx2 v[2:3], v7, s[{P_WS}:{P_WS+1}] sc1", "post")
    a.vm(f"global_load_dwordx2 v[4:5], v7, s[{P_WS}:{P_WS+1}] offset:256 sc1", "post")
    a.e(f"s_mul_i32 s{S_T0}, s{S_J}, 6")
    a.e(f"s_mul_i32 s{S_T1}, s{S_FW}, 3")
    a.e(f"s_add_u32 s{S_T0}, s{S_T0}, s{S_T1}")
    a.e(f"s_lshl_b32 s{S_T0}, s{S_T0}, 10")
    a.e(f"s_add_u32 s{S_T0}, s{S_T0}, {WS_CS}")
    a.e(f"v_lshl_add_u32 v7, v6, 5, s{S_T0}")
    a.e(f"v_lshrrev_b32 v8, 5, v{V_LANE}")
    a.e(f"v_lshl_add_u32 v7, v8, 4, v7")
    for ap in range(3):
        a.vm(f"global_load_dwordx4 {vr(CSL[ap],4)}, v7, s[{P_WS}:{P_WS+1}] offset:{1024*ap} sc1", "post")

def g1_corr_prep():
    r = [lambda a: a.vm_wait("post")]
    e = r.append
    for b in CSL:
        e(f"v_add_f32 v{b}, v{b}, v{b+2}")
        e(f"v_add_f32 v{b+1}, v{b+1}, v{b+3}")
    for b in CSL: e(f"v_add_f32 v{b}, v{b}, v{b+1}")
    for b in CSL: e(f"v_mov_b32 v{b+1}, v{b}")
    e(f"v_cmp_gt_u32 vcc, 32, v{V_LANE}")
    e("v_nop")
    for b in CSL: e(f"v_permlane32_swap_b32 v{b}, v{b+1}")
    for b in CSL: e(f"v_add_f32 v{b}, v{b}, v{b+1}")
    for b in CSL: e(f"v_cvt_pk_bf16_f32 v{b+1}, v{b}, v{b}")
    for b in CSL: e(f"v_lshlrev_b32 v{b+2}, 16, v{b+1}")
    for b in CSL: e(f"v_sub_f32 v{b+2}, v{b}, v{b+2}")
    for b in CSL: e(f"v_cvt_pk_bf16_f32 v{b}, v{b}, v{b+2}")
    for b in CSL:
        e(f"v_cndmask_b32 v{b}, 0, v{b}, vcc")
        e(f"v_mov_b32 v{b+1}, 0"); e(f"v_mov_b32 v{b+2}, 0"); e(f"v_mov_b32 v{b+3}, 0")
    for tt in range(2):
        e(f"v_cndmask_b32 v{8+4*tt}, 0, v{3+2*tt}, vcc")
        for d in range(1, 4): e(f"v_mov_b32 v{8+4*tt+d}, 0")
    return r

def g1_corr_mfma(a):
    a.e("s_nop 1")
    for ap in range(3):
        for tt in range(2):
            a.e(f"v_mfma_f32_32x32x16_bf16 {vr(acc(tt,ap),16)}, {vr(CSL[ap],4)}, {vr(8+4*tt,4)}, {vr(acc(tt,ap),16)}")

C1 = -2.0 * math.sqrt(2.0 / math.pi) * math.log2(math.e)
C2 = C1 * 0.044715
def g1_epilogue(a):
    for tt in range(2):
        r_, b = 2 + 2*tt, 160 + 4*tt
        a.e(f"v_mul_f32 v{b+2}, v{r_}, v{r_}")
        a.e(f"v_mul_f32 v{b}, {fhex(C1)}, v{r_}")
        a.e(f"v_mul_f32 v{b+1}, {fhex(C2)}, v{r_}")
        a.e(f"v_mul_f32 v{b+1}, v{b+1}, v{b+2}")
        a.e(f"v_rcp_f32 v{b+2}, v{b+2}")
    a.e(f"s_lshl_b32 s{S_T0}, s{S_I}, 2")
    a.e(f"s_lshl_b32 s{S_T1}, s{S_TW}, 1")
    a.e(f"s_add_u32 s{S_T0}, s{S_T0}, s{S_T1}")
    a.e(f"s_mul_i32 s{S_T0}, s{S_T0}, 86")
    a.e(f"s_lshl_b32 s{S_T1}, s{S_U0}, 1")
    a.e(f"s_add_u32 s{S_T0}, s{S_T0}, s{S_T1}")
    a.e(f"s_mul_i32 s{S_T1}, s{S_FW}, 3")
    a.e(f"s_add_u32 s{S_T0}, s{S_T0}, s{S_T1}")
    a.e(f"s_lshl_b32 s{S_T0}, s{S_T0}, 10")
    a.e(f"s_add_u32 s{S_T0}, s{S_T0}, {WS_H}")
    a.e(f"v_lshl_add_u32 v168, v{V_LANE}, 4, s{S_T0}")
    a.e(f"v_add_u32 v169, {86*1024}, v168")
    a.e(f"s_sub_u32 s{S_T2}, s{S_NU}, s{S_T1}")
    a.e(f"s_lshl_b32 s{S_T0}, s{S_WG}, 12")
    a.e(f"s_add_u32 s{S_T0}, s{S_T0}, {WS_DUMMY}")
    a.e(f"v_lshl_add_u32 v170, v{V_LANE}, 4, s{S_T0}")
    a.e(f"s_cmp_gt_u32 s{S_T2}, 1")
    a.e(f"s_cselect_b64 s[74:75], -1, 0")
    a.e(f"v_cndmask_b32 v171, v170, v169, s[74:75]")
    a.e(f"v_cndmask_b32 v170, v170, v168, s[74:75]")
    T, Gq, X = 112, 120, 128
    for ap in range(3):
        for tt in range(2):
            c = acc(tt, ap); KK = 160 + 4*tt; S2 = 162 + 4*tt
            for p in range(4):
                a.e(f"v_pk_mul_f32 {vr(T+2*p,2)}, {vr(c+2*p,2)}, {vr(c+2*p,2)}")
            for p in range(4):
                a.e(f"v_pk_fma_f32 {vr(T+2*p,2)}, {vr(T+2*p,2)}, {vr(KK,2)}, {vr(KK,2)} op_sel:[0,1,0] op_sel_hi:[1,1,0]")
            for p in range(4):
                a.e(f"v_pk_mul_f32 {vr(T+2*p,2)}, {vr(T+2*p,2)}, {vr(c+2*p,2)}")
            for p in range(8):
                a.e(f"v_exp_f32 v{T+p}, v{T+p}")
            for p in range(4):
                a.e(f"v_pk_mul_f32 {vr(Gq+2*p,2)}, {vr(c+2*p,2)}, {vr(c+8+2*p,2)}")
            for p in range(4):
                a.e(f"v_pk_fma_f32 {vr(T+2*p,2)}, {vr(T+2*p,2)}, {vr(S2,2)}, {vr(S2,2)} op_sel_hi:[1,0,0]")
            for p in range(8):
                a.e(f"v_rcp_f32 v{T+p}, v{T+p}")
            a.e("s_nop 0")
            for p in range(4):
                a.e(f"v_pk_mul_f32 {vr(Gq+2*p,2)}, {vr(Gq+2*p,2)}, {vr(T+2*p,2)}")
            O = X + 4 * ((2 * ap + tt) % 2)
            for p in range(4):
                a.e(f"v_cvt_pk_bf16_f32 v{O+p}, v{Gq+2*p}, v{Gq+2*p+1}")
            adr = (168 + tt) if ap == 0 else (170 + tt)
            a.vm(f"global_store_dwordx4 v{adr}, {vr(O,4)}, s[{P_WS}:{P_WS+1}] offset:{1024*ap} sc1", "pubH")

V_WDOFF, V_WDL, V_WDA = 172, 173, 166
def wd_setup(a, t0, voff=V_WDOFF):
    mk_srd(a, SRD_WD, P_WD, 1376 * 1024)
    a.e(f"s_mul_i32 s{S_WDO}, s{S_W}, {352 * 1024}")
    a.e(f"s_lshl_b32 s{S_T0}, s{S_NT}, 7")
    a.e(f"s_add_u32 s{S_WDO}, s{S_WDO}, s{S_T0}")
    t = t0
    a.e(f"v_lshrrev_b32 v{t}, 3, v{V_LANE}")
    a.e(f"v_and_b32 v{t+1}, 7, v{V_LANE}")
    a.e(f"v_bfe_u32 v{t+2}, v{t}, 1, 1")
    a.e(f"v_lshlrev_b32 v{t+2}, 2, v{t+2}")
    a.e(f"v_xor_b32 v{t+1}, v{t+1}, v{t+2}")
    a.e(f"v_lshlrev_b32 v{t+1}, 4, v{t+1}")
    a.e(f"v_lshl_add_u32 v{voff}, v{t}, 10, v{t+1}")

def wd_lane_parts(a, t0):
    t = t0
    a.e(f"v_lshrrev_b32 v{t}, 4, v{V_LANE}")
    a.e(f"v_and_b32 v{t+1}, 1, v{t}")
    a.e(f"v_lshrrev_b32 v{t}, 1, v{t}")
    a.e(f"v_bfe_u32 v{t+2}, v{V_LANE}, 2, 2")
    a.e(f"v_lshl_add_u32 v{t+2}, v{t}, 2, v{t+2}")
    a.e(f"v_lshlrev_b32 v{t+2}, 7, v{t+2}")
    a.e(f"v_lshl_add_u32 v{t+2}, v{t+1}, 5, v{t+2}")
    a.e(f"v_and_b32 v{t+1}, 3, v{V_LANE}")
    a.e(f"v_lshl_add_u32 v{t+2}, v{t+1}, 3, v{t+2}")
    a.e(f"v_bfe_u32 v{t+1}, v{V_LANE}, 3, 1")
    a.e(f"v_lshlrev_b32 v{t+1}, 6, v{t+1}")
    a.e(f"v_add_u32 v{V_WDL}, v{t+2}, v{t+1}")
    a.e(f"v_xor_b32 v{t+1}, 64, v{t+1}")
    a.e(f"v_add_u32 v{V_WDL+1}, v{t+2}, v{t+1}")

def wd_groups(rnd, voff=V_WDOFF):
    lb, wsz, ks0, n = WD[rnd]
    out = []
    for q in range(2 * n):
        pre = [f"s_mul_i32 s{S_WDL}, s{S_W}, {wsz}", f"s_add_u32 s{S_WDS}, s{S_WDO}, {ks0*16384}"] if q == 0 else []
        out.append(Dma(pre, f"s_add_u32 m0, s{S_WDL}, {lb + q*1024}",
                       (f"buffer_load_dwordx4 v{voff}, s[{SRD_WD}:{SRD_WD+3}], s{S_WDS} offen lds", f"wd{rnd}"),
                       [f"s_add_u32 s{S_WDS}, s{S_WDS}, 8192"]))
    return out

def wd_addr(rnd):
    lb, wsz, ks0, n = WD[rnd]
    return [f"s_mul_i32 s{S_T0}, s{S_W}, {wsz}", f"s_add_u32 s{S_T0}, s{S_T0}, {lb}",
            f"v_add_u32 v{V_WDA}, s{S_T0}, v{V_WDL}", f"v_add_u32 v{V_WDA+1}, s{S_T0}, v{V_WDL+1}"]

def wd_tr_agpr(rnd):
    lb, wsz, ks0, n = WD[rnd]
    return [f"ds_read_b64_tr_b16 {ar(wd_areg(ks0+k) + 4*t + 2*h, 2)}, v{V_WDA+t} offset:{k*2048 + h*1024}"
            for k in range(n) for t in range(2) for h in range(2)]

G2_ACC, G2_H, G2_RING, G2_W = 16, 80, 8, 144
V_HA = 160
def acc2(t, tt): return G2_ACC + 16 * (2 * t + tt)

def h_setup(a):
    a.e(f"s_lshl_b32 s{S_T0}, s{S_I}, 2")
    a.e(f"s_lshl_b32 s{S_T1}, s{S_TH}, 1")
    a.e(f"s_add_u32 s{S_T0}, s{S_T0}, s{S_T1}")
    a.e(f"s_mul_i32 s{S_T0}, s{S_T0}, 86")
    a.e(f"s_mul_i32 s{S_T1}, s{S_W}, 22")
    a.e(f"s_add_u32 s{S_T0}, s{S_T0}, s{S_T1}")
    a.e(f"s_lshl_b32 s{S_T0}, s{S_T0}, 10")
    a.e(f"s_add_u32 s{S_T0}, s{S_T0}, {WS_H}")
    a.e(f"v_lshl_add_u32 v{V_HA}, v{V_LANE}, 4, s{S_T0}")
    a.e(f"v_add_u32 v{V_HA+1}, {86*1024}, v{V_HA}")
    a.e(f"s_movk_i32 s66, {4*1024}")
    a.e(f"s_movk_i32 s67, {5*1024}")
    a.e(f"s_cmp_eq_u32 s{S_W}, 3")
    a.e(f"s_cselect_b32 s66, {3*1024}, s66")
    a.e(f"s_cselect_b32 s67, {3*1024}, s67")

def h_load(q):
    R = G2_H + 8 * (q % G2_RING)
    it = []
    if q < 20:
        if q % 4 == 0 and q > 0:
            it += [f"v_add_u32 v{V_HA}, 4096, v{V_HA}", f"v_add_u32 v{V_HA+1}, 4096, v{V_HA+1}"]
        off = (q % 4) * 1024
        it += [(f"global_load_dwordx4 {vr(R,4)}, v{V_HA}, s[{P_WS}:{P_WS+1}] offset:{off} sc1", f"h{q}"),
               (f"global_load_dwordx4 {vr(R+4,4)}, v{V_HA+1}, s[{P_WS}:{P_WS+1}] offset:{off} sc1", f"h{q}")]
    else:
        sreg = 66 + (q - 20)
        it += [f"v_add_u32 v162, s{sreg}, v{V_HA}", f"v_add_u32 v163, s{sreg}, v{V_HA+1}",
               (f"global_load_dwordx4 {vr(R,4)}, v162, s[{P_WS}:{P_WS+1}] sc1", f"h{q}"),
               (f"global_load_dwordx4 {vr(R+4,4)}, v163, s[{P_WS}:{P_WS+1}] sc1", f"h{q}")]
    return it

def hy_poll_issue(a):
    a.e(f"s_lshl_b32 s{S_T0}, s{S_I}, 6")
    a.e(f"s_add_u32 s{S_T0}, s{S_T0}, {WS_FLAG_H}")
    a.e(f"v_and_b32 v8, 15, v{V_LANE}")
    a.e(f"v_lshl_add_u32 v8, v8, 2, s{S_T0}")
    a.e(f"s_lshl_b32 s{S_T0}, s{S_NT}, 7")
    a.e(f"s_add_u32 s{S_T0}, s{S_T0}, {WS_FLAG_Y}")
    a.e(f"v_and_b32 v9, 31, v{V_LANE}")
    a.e(f"v_lshl_add_u32 v9, v9, 2, s{S_T0}")
    a.vm(f"global_load_dword v10, v8, s[{P_WS}:{P_WS+1}] sc1", "ph")
    a.vm(f"global_load_dword v11, v9, s[{P_WS}:{P_WS+1}] sc1", "ph")

def hy_poll_check(a):
    top, ok = a.label("poll"), a.label("pollok")
    a.vm_wait("ph")
    a.e(f"s_mov_b32 s{S_SPIN}, 0")
    a.e(f"{top}:")
    a.e(f"v_cmp_ne_u32 vcc, s{S_TAG}, v10")
    a.e(f"v_cmp_ne_u32 s[74:75], s{S_TAG}, v11")
    a.e("s_nop 1")
    a.e("s_or_b64 vcc, vcc, s[74:75]")
    spin_tail(a, top, ok, [f"global_load_dword v10, v8, s[{P_WS}:{P_WS+1}] sc1", f"global_load_dword v11, v9, s[{P_WS}:{P_WS+1}] sc1"], OPT.get("hsleep", 8))

def res_reads(q):
    for rnd in (4, 5, 6):
        lb, wsz, ks0, n = WD[rnd]
        if ks0 <= q < ks0 + n:
            pre = wd_addr(rnd) if q == ks0 else []
            B = G2_W + 8 * (q % 2)
            return pre + [f"ds_read_b64_tr_b16 {vr(B + 4*t + 2*h, 2)}, v{V_WDA+t} offset:{(q-ks0)*2048 + h*1024}" for t in range(2) for h in range(2)]

def g2_main(a, hooks, n0):
    la = OPT.get("g2la", 7)
    nxt = n0
    for q in range(22):
        a.vm_wait(f"h{q}")
        if q >= 8:
            a.e("s_waitcnt lgkmcnt(0)")
        stamp(a, f"g2q{q}")
        R = G2_H + 8 * (q % G2_RING)
        mf = []
        for t in range(2):
            A = ar(wd_areg(q) + 4*t, 4) if wd_in_agpr(q) else vr(G2_W + 8*(q % 2) + 4*t, 4)
            for tt in range(2):
                mf.append(f"v_mfma_f32_32x32x16_bf16 {vr(acc2(t,tt),16)}, {A}, {vr(R+4*tt,4)}, {'0' if q == 0 else vr(acc2(t,tt),16)}")
        slots = {i: [] for i in range(4)}
        if q + 1 < 22 and not wd_in_agpr(q + 1):
            rr = res_reads(q + 1)
            if q + 1 == 8: rr = [lambda a: a.vm_wait("wd4", "wd5")] + rr
            slots[0] += rr
        k = 0
        while nxt < 22 and nxt - q <= la and k < 2 and nxt < q + G2_RING:
            slots[1 if k == 0 else 3].append(h_load(nxt)); nxt += 1; k += 1
        for hk in hooks.get(q, []): slots[2].append(hk)
        sched(a, mf, slots)

V_OUT = 14
V_X = 168
def x_loads(a):
    a.e(f"s_lshl_b32 s{S_T0}, s{S_I}, 7")
    a.e(f"s_lshl_b32 s{S_T1}, s{S_TH}, 6")
    a.e(f"s_add_u32 s{S_T0}, s{S_T0}, s{S_T1}")
    a.e(f"s_and_b32 s{S_T1}, s{S_W}, 1")
    a.e(f"s_lshl_b32 s{S_T1}, s{S_T1}, 5")
    a.e(f"s_add_u32 s{S_T0}, s{S_T0}, s{S_T1}")
    a.e(f"s_lshl_b32 s{S_T0}, s{S_T0}, 10")
    a.e(f"s_lshl_b32 s{S_T1}, s{S_NT}, 7")
    a.e(f"s_add_u32 s{S_T0}, s{S_T0}, s{S_T1}")
    a.e(f"s_lshr_b32 s{S_T1}, s{S_W}, 1")
    a.e(f"s_lshl_b32 s{S_T1}, s{S_T1}, 6")
    a.e(f"s_add_u32 s{S_T0}, s{S_T0}, s{S_T1}")
    a.e(f"v_and_b32 v12, 31, v{V_LANE}")
    a.e(f"v_lshlrev_b32 v12, 10, v12")
    a.e(f"v_lshrrev_b32 v13, 5, v{V_LANE}")
    a.e(f"v_lshl_add_u32 v12, v13, 3, v12")
    a.e(f"v_add_u32 v{V_OUT}, s{S_T0}, v12")
    for q in range(4):
        a.vm(f"global_load_dwordx2 {vr(V_X+2*q,2)}, v{V_OUT}, s[{P_X}:{P_X+1}] offset:{16*q}", "fx")
    a.e(f"v_lshl_add_u32 v{V_OUT}, v13, 3, v{V_OUT}")

def y_loads(a):
    a.e(f"s_lshl_b32 s{S_T0}, s{S_I}, 1")
    a.e(f"s_add_u32 s{S_T0}, s{S_T0}, s{S_TH}")
    a.e(f"s_lshl_b32 s{S_T0}, s{S_T0}, 16")
    a.e(f"s_lshl_b32 s{S_T1}, s{S_NT}, 13")
    a.e(f"s_add_u32 s{S_T0}, s{S_T0}, s{S_T1}")
    a.e(f"s_add_u32 s{S_T0}, s{S_T0}, {WS_Y}")
    a.e(f"v_lshl_add_u32 v10, v0, 4, s{S_T0}")
    a.e(f"v_add_u32 v11, 4096, v10")
    a.vm(f"global_load_dwordx4 v[2:5], v10, s[{P_WS}:{P_WS+1}] sc1", "fy")
    a.vm(f"global_load_dwordx4 v[6:9], v11, s[{P_WS}:{P_WS+1}] sc1", "fy")

def y_check(a):
    top, ok = a.label("ychk"), a.label("yok")
    a.vm_wait("fy")
    a.e(f"s_mov_b32 s{S_SPIN}, 0")
    a.e(f"{top}:")
    a.e("v_max3_u32 v12, v2, v3, v4")
    a.e("v_max3_u32 v13, v5, v6, v7")
    a.e("v_max3_u32 v12, v12, v8, v9")
    a.e("v_max_u32 v12, v12, v13")
    a.e("v_cmp_eq_u32 vcc, -1, v12")
    a.e("s_nop 1")
    spin_tail(a, top, ok, [f"global_load_dwordx4 v[2:5], v10, s[{P_WS}:{P_WS+1}] sc1", f"global_load_dwordx4 v[6:9], v11, s[{P_WS}:{P_WS+1}] sc1"])

def final_prep(a):
    a.e(f"v_lshlrev_b32 v162, 4, v{V_LANE}")
    a.e(f"s_mul_i32 s{S_T0}, s{S_W}, {3*4096}")
    a.e(f"v_add_u32 v163, s{S_T0}, v162")
    a.e(f"v_lshrrev_b32 v12, 3, v0")
    a.e(f"v_mul_u32_u24 v12, 192, v12")
    a.e(f"v_and_b32 v13, 7, v0")
    a.e(f"v_lshl_add_u32 v164, v13, 4, v12")
    a.e(f"v_add_u32 v164, {L_YB}, v164")
    a.e(f"v_lshrrev_b32 v12, 4, v{V_LANE}")
    a.e(f"v_and_b32 v13, 1, v12")
    a.e(f"v_lshrrev_b32 v12, 1, v12")
    a.e(f"v_bfe_u32 v165, v{V_LANE}, 2, 2")
    a.e(f"v_lshl_add_u32 v165, v12, 2, v165")
    a.e(f"v_mul_u32_u24 v165, 192, v165")
    a.e(f"v_lshl_add_u32 v165, v13, 5, v165")
    a.e(f"v_and_b32 v13, 3, v{V_LANE}")
    a.e(f"v_lshl_add_u32 v165, v13, 3, v165")
    a.e(f"s_lshr_b32 s{S_T0}, s{S_W}, 1")
    a.e(f"s_mul_i32 s{S_T0}, s{S_T0}, {32*192}")
    a.e(f"s_and_b32 s{S_T1}, s{S_W}, 1")
    a.e(f"s_lshl_b32 s{S_T1}, s{S_T1}, 6")
    a.e(f"s_add_u32 s{S_T0}, s{S_T0}, s{S_T1}")
    a.e(f"s_add_u32 s{S_T0}, s{S_T0}, {L_YB}")
    a.e(f"v_add_u32 v165, s{S_T0}, v165")

def red_ref(u, q):
    return 162, RED_UNIT[u] + q * 1024

def final(a):
    OWN, XF = 80, 96
    P = 112
    end = a.label("redend")
    labs = [a.label("redw") for _ in range(4)]
    for w in range(1, 4):
        a.e(f"s_cmp_eq_u32 s{S_W}, {w}")
        a.e(f"s_cbranch_scc1 {labs[w]}")
    for w in range(4):
        a.e(f"{labs[w]}:")
        a.e("s_nop 9")
        for o in range(4):
            if o == w: continue
            u = 3*o + ((w - o - 1) & 3)
            for q in range(4):
                r_, off = red_ref(u, q)
                a.e(f"ds_write_b128 v{r_}, {vr(G2_ACC+16*o+4*q,4)} offset:{off}")
        for q in range(8):
            a.e(f"v_pk_mul_f32 {vr(OWN+2*q,2)}, {vr(G2_ACC+16*w+2*q,2)}, 1.0 op_sel_hi:[1,0]")
        if w < 3: a.e(f"s_branch {end}")
    a.e(f"{end}:")
    y_check(a)
    stamp(a, "fy")
    a.e("ds_write_b128 v164, v[2:5]")
    a.e(f"ds_write_b128 v164, v[6:9] offset:{32*192}")
    a.vm_wait("fx")
    for q in range(8):
        a.e(f"v_lshlrev_b32 v{XF+2*q}, 16, v{V_X+q}")
        a.e(f"v_and_b32 v{XF+2*q+1}, 0xffff0000, v{V_X+q}")
    for q in range(8):
        a.e(f"v_pk_add_f32 {vr(OWN+2*q,2)}, {vr(OWN+2*q,2)}, {vr(XF+2*q,2)}")
    a.e("s_waitcnt lgkmcnt(0)")
    a.bar("fin")
    for q in range(4):
        a.e(f"ds_read_b64_tr_b16 {vr(2+2*q,2)}, v165 offset:{1536*q}")
    for sl in range(3):
        for q in range(4):
            a.e(f"ds_read_b128 {vr(P+16*sl+4*q,4)}, v163 offset:{4096*sl + 1024*q}")
    a.e("s_waitcnt lgkmcnt(12)")
    for q in range(8):
        a.e(f"v_lshlrev_b32 v{XF+2*q}, 16, v{2+q}")
        a.e(f"v_and_b32 v{XF+2*q+1}, 0xffff0000, v{2+q}")
    for q in range(8):
        a.e(f"v_pk_add_f32 {vr(OWN+2*q,2)}, {vr(OWN+2*q,2)}, {vr(XF+2*q,2)}")
    for sl in range(3):
        a.e(f"s_waitcnt lgkmcnt({8 - 4*sl})")
        for q in range(8):
            a.e(f"v_pk_add_f32 {vr(OWN+2*q,2)}, {vr(OWN+2*q,2)}, {vr(P+16*sl+2*q,2)}")
    for q in range(8):
        a.e(f"v_cvt_pk_bf16_f32 v{2+q}, v{OWN+2*q}, v{OWN+2*q+1}")
    a.e("s_nop 1")
    for p in range(2):
        a.e(f"v_permlane32_swap_b32 v{2+4*p}, v{4+4*p}")
        a.e(f"v_permlane32_swap_b32 v{3+4*p}, v{5+4*p}")
    for p in range(2):
        a.vm(f"global_store_dwordx4 v{V_OUT}, {vr(2+4*p,4)}, s[{P_OUT}:{P_OUT+1}] offset:{32*p} nt", "out")


def role_g(a):
    if OPT.get("prio", 1): a.e("s_setprio 1")
    g_setup(a)
    a.e("s_waitcnt lgkmcnt(0)")
    a.e(f"s_mov_b32 s{S_ROLE}, 0")
    a.vm("global_load_dwordx4 v[44:47], v7, s[16:17]", "ln")
    a.vm("global_load_dwordx4 v[48:51], v7, s[16:17] offset:1024", "ln")
    epoch_load(a, 3, 6)
    stamp(a, 0, real=True); stamp(a, 1)
    epoch_finish(a, 6)
    ln_first(a)
    stamp(a, "ln")
    a.e("s_waitcnt lgkmcnt(0)")
    a.bar("b0")
    stamp(a, "b0")
    for x in g1_reads(0, 0)[:0]: a.e(x)
    for q in range(2):
        a.e(f"ds_read_b64_tr_b16 v[{8+4*q}:{9+4*q}], v2 offset:{128*q}")
        a.e(f"ds_read_b64_tr_b16 v[{10+4*q}:{11+4*q}], v2 offset:{128*q + 4*1088}")
    for x in g1_reads(0, 0): a.e(x)
    a.e("s_waitcnt lgkmcnt(8)")
    a.vm(f"global_store_dwordx4 v3, v[8:11], s[{P_WS}:{P_WS+1}] sc1", "pubA")
    a.vm(f"global_store_dwordx4 v3, v[12:15], s[{P_WS}:{P_WS+1}] offset:1024 sc1", "pubA")
    PS = OPT.get("pubstage", 2)
    def bump(a):
        lab = a.label("nobump")
        a.e(f"s_or_b32 s{S_T0}, s{S_WG}, s{S_W}")
        a.e(f"s_cmp_lg_u32 s{S_T0}, 0")
        a.e(f"s_cbranch_scc1 {lab}")
        a.e(f"s_add_u32 s{S_T0}, s{S_EP}, 1")
        a.e("v_mov_b32 v6, 0")
        a.e(f"v_mov_b32 v7, s{S_T0}")
        a.e(f"s_mov_b64 s[{S_EXEC}:{S_EXEC+1}], exec")
        a.e("s_mov_b64 exec, 1")
        a.e(f"global_store_dword v6, v7, s[{P_WS}:{P_WS+1}] sc1")
        a.e(f"s_mov_b64 exec, s[{S_EXEC}:{S_EXEC+1}]")
        a.e(f"{lab}:")
    def chk(a):
        ln_poll_check(a, 165, 152)
        bump(a)
        g1_post_loads(a)
    if OPT.get("csg", 1):
        for r_ in range(4): a.e(f"v_mov_b32 v{168+r_}, 0x3f803f80")
    def pre_pub(a):
        if OPT.get("csg", 1):
            a.e("s_waitcnt vmcnt(0)"); a.vmq = []
        else:
            a.vm_wait("pubA")
    hooks = {("pre", PS): [pre_pub],
             ("post", PS): [lambda a: flag_store(a, WS_FLAG_LN, idx_ln, 6, 7)],
             ("post", OPT.get("pollstage", 5)): [lambda a: ln_poll_issue(a, 165, 152)],
             ("post", 6): [chk],
             ("shadow", 7, 2): g1_corr_prep()}
    if OPT.get("csg", 1):
        hooks[("shadow", 1, 0)] = [cs_store_g]
    rw = Rec(a); wd_setup(rw, 6); wd_lane_parts(rw, 6)
    hooks[("shadow", 4, 1)] = [o[1] for o in rw.ops]
    g1_main(a, hooks)
    stamp(a, "loop")
    if OPT.get("gprio2") is not None: a.e(f"s_setprio {OPT['gprio2']}")
    g1_corr_mfma(a)
    r = Rec(a)
    g1_epilogue(r)
    replay(a, r.ops, [], every=16, start=34)
    stamp(a, "epi")
    h_setup(a)
    a.vm_wait("pubH")
    a.bar("k")
    stamp(a, "bk")
    flag_store(a, WS_FLAG_H, idx_h, 6, 7)
    flag_store(a, WS_FLAG_Y, idx_y, 6, 7)
    stamp(a, "hpub")
    for x in wd_addr(1) + wd_tr_agpr(1) + wd_addr(2) + wd_tr_agpr(2): a.e(x)
    a.e("s_waitcnt lgkmcnt(0)")
    for g in wd_groups(4) + wd_groups(5): emit(a, g)
    a.bar("p")
    hy_poll_issue(a)
    hy_poll_check(a)
    stamp(a, "hflag")
    N0 = OPT.get("g2n0", 4)
    for q in range(N0): emit(a, h_load(q))
    a.e("s_waitcnt lgkmcnt(0)")
    hk = {}
    def after_cd(a):
        a.bar("cd")
        for x in wd_addr(3) + wd_tr_agpr(3): a.e(x.replace(f"v{V_WDA+1}", "v13").replace(f"v{V_WDA}", "v12"))
    for q, f in ((OPT.get("cxq", 2), lambda a: a.bar("cx")), (OPT.get("cdq", 4), after_cd), (OPT.get("xld", 18), x_loads), (OPT.get("fprep", 19), final_prep), (OPT.get("yld", 13), y_loads), (17, lambda a: a.bar("rd"))):
        hk.setdefault(q, []).append(f)
    g2_main(a, hk, N0)
    stamp(a, "g2")
    final(a)
    stamp(a, "fin")
    a.e("s_waitcnt vmcnt(0)")
    stamp(a, 9, real=True)
    prof_store(a)
    a.e("s_endpgm")


C_XOFF, C_WOFF = 2, 6
C_AADDR = 9
C_P = 160
C_XT = 168
def c_setup(a):
    a.e(f"s_lshl_b32 s{S_T0}, s{S_I}, 7")
    a.e(f"s_lshl_b32 s{S_T1}, s{S_W}, 5")
    a.e(f"s_add_u32 s{S_T0}, s{S_T0}, s{S_T1}")
    a.e(f"s_lshl_b32 s{S_XW}, s{S_T0}, 10")
    a.e(f"s_lshl_b32 s{S_LX}, s{S_W}, 12")
    a.e(f"s_add_u32 s{S_KC}, s{S_I}, s{S_J}")
    a.e(f"s_and_b32 s{S_KC}, s{S_KC}, 7")
    a.e(f"s_mul_i32 s{S_WW}, s{S_W}, {16 * 2752}")
    a.e(f"s_lshl_b32 s{S_T0}, s{S_U0}, 6")
    a.e(f"s_add_u32 s{S_WW}, s{S_WW}, s{S_T0}")
    a.e(f"s_mul_i32 s{S_LW}, s{S_W}, 3072")
    a.e(f"v_lshrrev_b32 v12, 3, v{V_LANE}")
    a.e(f"v_and_b32 v13, 7, v{V_LANE}")
    a.e(f"v_lshrrev_b32 v14, 1, v12")
    a.e(f"v_xor_b32 v15, v14, v13")
    a.e(f"v_lshlrev_b32 v16, 4, v15")
    a.e(f"v_lshl_add_u32 v{C_XOFF}, v12, 10, v16")
    a.e(f"v_xor_b32 v17, 64, v{C_XOFF}")
    a.e(f"v_add_u32 v{C_XOFF+1}, 8192, v17")
    a.e(f"v_add_u32 v{C_XOFF+2}, 16384, v{C_XOFF}")
    a.e(f"v_add_u32 v{C_XOFF+3}, 16384, v{C_XOFF+1}")
    for q in range(3):
        a.e(f"v_add_u32 v12, {64*q}, v{V_LANE}")
        a.e(f"v_mul_u32_u24 v13, 5462, v12")
        a.e(f"v_lshrrev_b32 v13, 16, v13")
        a.e(f"v_mul_u32_u24 v14, 12, v13")
        a.e(f"v_sub_u32 v14, v12, v14")
        a.e(f"v_mul_u32_u24 v13, 2752, v13")
        a.e(f"v_lshl_add_u32 v{C_WOFF+q}, v14, 4, v13")

def stage_offsets():
    return [f"s_lshl_b32 s{S_XO}, s{S_KC}, 7", f"s_add_u32 s{S_XO}, s{S_XO}, s{S_XW}",
            f"s_mul_i32 s{S_WO}, s{S_KC}, {64 * 2752}", f"s_add_u32 s{S_WO}, s{S_WO}, s{S_WW}",
            f"s_add_u32 s{S_KC}, s{S_KC}, 1", f"s_and_b32 s{S_KC}, s{S_KC}, 7"]

def stage_dma(stage):
    S = (stage % 3) * SLOT; tag = f"st{stage}"
    out = []
    for q in range(4):
        out.append(Dma([], f"s_add_u32 m0, s{S_LX}, {S + L_X + q * 1024}", (f"buffer_load_dwordx4 v{C_XOFF+q}, s[{SRD_X}:{SRD_X+3}], s{S_XO} offen lds", tag)))
    for q in range(3):
        out.append(Dma([], f"s_add_u32 m0, s{S_LW}, {S + L_G + q * 1024}", (f"buffer_load_dwordx4 v{C_WOFF+q}, s[{SRD_WG}:{SRD_WG+3}], s{S_WO} offen lds", tag)))
        out.append(Dma([], f"s_add_u32 m0, s{S_LW}, {S + L_U + q * 1024}", (f"buffer_load_dwordx4 v{C_WOFF+q}, s[{SRD_WU}:{SRD_WU+3}], s{S_WO} offen lds", tag)))
    out[0] = stage_offsets() + list(out[0])
    return out

def cs_block(a):
    lab = a.label("nocs")
    a.e(f"s_cmp_lg_u32 s{S_CSH}, 0")
    a.e(f"s_cbranch_scc1 {lab}")
    FRG, ACC, ON = 64, 112, 60
    for r in range(4): a.e(f"v_mov_b32 v{ON+r}, 0x3f803f80")
    for s in range(4):
        for ap in range(3):
            for h in range(2):
                a.e(f"ds_read_b64_tr_b16 {vr(FRG+12*s+4*ap+2*h,2)}, v{C_AADDR} offset:{s*3072 + h*768 + ap*32}")
    a.e("s_waitcnt lgkmcnt(0)")
    for s in range(4):
        for ap in range(3):
            a.e(f"v_mfma_f32_32x32x16_bf16 {vr(ACC+16*ap,16)}, {vr(ON,4)}, {vr(FRG+12*s+4*ap,4)}, {'0' if s == 0 else vr(ACC+16*ap,16)}")
    a.e(f"s_mul_i32 s{S_T0}, s{S_J}, 6")
    a.e(f"s_mul_i32 s{S_T1}, s{S_FW}, 3")
    a.e(f"s_add_u32 s{S_T0}, s{S_T0}, s{S_T1}")
    a.e(f"s_lshl_b32 s{S_T0}, s{S_T0}, 10")
    a.e(f"s_lshl_b32 s{S_T1}, s{S_I}, 2")
    a.e(f"s_add_u32 s{S_T0}, s{S_T0}, s{S_T1}")
    a.e(f"s_add_u32 s{S_T0}, s{S_T0}, {WS_CS}")
    a.e(f"v_lshl_add_u32 v59, v{V_LANE}, 5, s{S_T0}")
    lab2 = a.label("nocsst")
    a.e(f"s_cmp_ge_u32 s{S_W}, 2")
    a.e(f"s_cbranch_scc1 {lab2}")
    a.e("s_nop 7")
    a.e(f"s_mov_b64 s[{S_EXEC}:{S_EXEC+1}], exec")
    a.e("s_mov_b64 exec, 0xffffffff")
    for ap in range(3):
        a.e(f"global_store_dword v59, v{ACC+16*ap}, s[{P_WS}:{P_WS+1}] offset:{1024*ap} sc1")
    a.e(f"s_mov_b64 exec, s[{S_EXEC}:{S_EXEC+1}]")
    a.e(f"{lab2}:")
    a.e(f"{lab}:")

def kgen_loads(a):
    a.e(f"s_lshl_b32 s{S_T0}, s{S_D}, 8")
    a.e(f"s_lshl_b32 s{S_T1}, s{S_MH}, 7")
    a.e(f"s_add_u32 s{S_T0}, s{S_T0}, s{S_T1}")
    a.e(f"v_lshl_add_u32 v12, v{V_LANE}, 1, s{S_T0}")
    for q, p in enumerate([P_ARE, P_AIM, P_BRE, P_BIM, P_CRE, P_CIM]):
        a.vm(f"global_load_ushort v{C_P+q}, v12, s[{p}:{p+1}]", "kp")
    a.e(f"s_lshl_b32 s{S_T0}, s{S_D}, 1")
    a.e(f"v_mov_b32 v13, s{S_T0}")
    a.vm(f"global_load_ushort v{C_P+6}, v13, s[{P_LDT}:{P_LDT+1}]", "kp")
    a.vm(f"global_load_ushort v{C_P+7}, v13, s[{P_DSK}:{P_DSK+1}]", "kp")

KS = 64
def kgen_prog():
    out = []; e = out.append
    P = C_P
    AL, BE, CO = 10, 11, 12
    Z1, Z2, Z4, Z8, Z256, Z512 = 14, 16, 18, 20, 22, 24
    A0, A1, B0, B1, C0, C1_, CB, D0, D1, DB0, DB1 = 26, 28, 30, 32, 34, 36, 38, 40, 42, 44, 46
    T = 48
    for q in range(8): e(f"v_lshlrev_b32 v{P+q}, 16, v{P+q}")
    e(f"v_mul_f32 v58, 0x3fb8aa3b, v{P+6}")
    e("v_exp_f32 v58, v58")
    e(f"v_mov_b32 v{A0}, 1.0")
    e(f"v_cvt_pk_bf16_f32 v58, v58, v58")
    e(f"v_mov_b32 v{A0+1}, 0")
    e(f"v_lshlrev_b32 v58, 16, v58")
    e(f"v_mul_f32 v{AL}, v58, v{P}"); e(f"v_mul_f32 v{BE}, v58, v{P+1}")
    e(f"v_mul_f32 v56, v58, v{P+2}"); e(f"v_mul_f32 v57, v58, v{P+3}")
    e(f"v_mul_f32 v{AL}, 0x3fb8aa3b, v{AL}"); e(f"v_mul_f32 v{BE}, 0.15915494, v{BE}")
    e(f"v_mul_f32 v{CO}, v{P+4}, v56"); e(f"v_mul_f32 v{CO+1}, v{P+4}, v57")
    e(f"v_fma_f32 v{CO}, -v{P+5}, v57, v{CO}"); e(f"v_fma_f32 v{CO+1}, v{P+5}, v56, v{CO+1}")
    items = [(Z1, 1, T), (Z8, 8, T+2), (Z256, 256, T+4), (B0, 128, T+6)]
    for d, p, t in items:
        e(f"v_mul_f32 v{t}, {fhex(float(p))}, v{AL}"); e(f"v_mul_f32 v{t+1}, {fhex(float(p))}, v{BE}")
    for d, p, t in items:
        e(f"v_exp_f32 v{t}, v{t}"); e(f"v_fract_f32 v{t+1}, v{t+1}")
    for d, p, t in items:
        e(f"v_cos_f32 v{d}, v{t+1}"); e(f"v_sin_f32 v{d+1}, v{t+1}")
    e("v_nop")
    for d, p, t in items:
        e(f"v_mul_f32 v{d}, v{d}, v{t}"); e(f"v_mul_f32 v{d+1}, v{d+1}, v{t}")
    def cm(d, x, y):
        return [f"v_mul_f32 v{d}, v{x}, v{y}", f"v_mul_f32 v{d+1}, v{x}, v{y+1}",
                f"v_fma_f32 v{d}, -v{x+1}, v{y+1}, v{d}", f"v_fma_f32 v{d+1}, v{x+1}, v{y}, v{d+1}"]
    def put(vec, pr):
        return [f"v_cvt_pk_bf16_f32 v{KS+vec}, v{pr}, {'-' if vec < 32 else ''}v{pr+1}"]
    for d, x, y in ((Z2, Z1, Z1), (Z512, Z256, Z256), (CB, CO, Z256), (Z4, Z2, Z2), (DB0, CO, Z512)):
        out += cm(d, x, y)
    sA = [('p', 32, A0)]; cur, oth = A0, A1
    for b in range(1, 16):
        sA += [('m', oth, cur, Z8), ('p', 32 + b, oth)]; cur, oth = oth, cur
    sB = [('p', 48, B0)]; cur, oth = B0, B1
    for b in range(17, 32):
        sB += [('m', oth, cur, Z8), ('p', 32 + b, oth)]; cur, oth = oth, cur
    sC = [('p', 0, CO)]; cur = CO
    for ee in range(1, 8):
        d = (C0, C1_)[ee % 2]; sC += [('m', d, cur, Z1), ('p', ee, d)]; cur = d
    sC += [('p', 8, CB), ('m', C0, CB, Z2), ('p', 9, C0), ('m', C1_, C0, Z2), ('p', 10, C1_), ('p', 12, C1_),
           ('m', C0, C1_, Z2), ('p', 13, C0), ('m', C1_, C0, Z2), ('p', 14, C1_)]
    sD = [('p', 16, DB0), ('m', D0, DB0, Z4), ('p', 17, D0), ('p', 20, D0), ('m', D1, D0, Z4), ('p', 21, D1),
          ('m', DB1, DB0, Z256), ('p', 18, DB1), ('m', D0, DB1, Z4), ('p', 19, D0), ('p', 22, D0), ('m', D1, D0, Z4), ('p', 23, D1)]
    prev, nxt = DB1, DB0
    for q in range(4):
        sD += [('m', nxt, prev, Z256), ('p', 24 + q, nxt), ('m', (D0, D1)[q % 2], nxt, Z8), ('p', 28 + q, (D0, D1)[q % 2])]
        prev, nxt = nxt, prev
    seqs = [sA, sB, sC, sD]; pos = [0]*4
    while any(pos[q] < len(seqs[q]) for q in range(4)):
        for q in range(4):
            if pos[q] < len(seqs[q]):
                st = seqs[q][pos[q]]; pos[q] += 1
                out += put(st[1], st[2]) if st[0] == 'p' else cm(st[1], st[2], st[3])
    return out

def kv_writes():
    pre = [f"s_mul_i32 s{S_T0}, s{S_CH}, {KV_CH}", f"s_lshl_b32 s{S_T1}, s{S_MH}, 8", f"s_add_u32 s{S_T0}, s{S_T0}, s{S_T1}",
           f"s_add_u32 s{S_T0}, s{S_T0}, {L_KV}", f"v_lshl_add_u32 v58, v{V_LANE}, 2, s{S_T0}"]
    return pre + [f"ds_write_b32 v58, v{KS+v} offset:{v*528}" for v in range(64) if v not in (11, 15)]

def wd_touch(a):
    a.e(f"s_mul_i32 s{S_T0}, s{S_WG}, 5504")
    a.e(f"s_lshl_b32 s{S_T1}, s{S_W}, 10")
    a.e(f"s_add_u32 s{S_T0}, s{S_T0}, s{S_T1}")
    a.e(f"v_lshl_add_u32 v52, v{V_LANE}, 4, s{S_T0}")
    mk_srd(a, SRD_WD, P_WD, 1376 * 1024)
    a.vm(f"buffer_load_dwordx4 v[136:139], v52, s[{SRD_WD}:{SRD_WD+3}], 0 offen", "pf")
    a.e(f"v_add_u32 v52, 4096, v52")
    a.vm(f"buffer_load_dwordx4 v[136:139], v52, s[{SRD_WD}:{SRD_WD+3}], 0 offen", "pf")

def y_clear(a):
    a.e(f"s_and_b32 s{S_T0}, s{S_WG}, 7")
    a.e(f"s_lshr_b32 s{S_T1}, s{S_WG}, 3")
    a.e(f"s_lshl_b32 s{S_T0}, s{S_T0}, 6")
    a.e(f"s_lshl_b32 s{S_T1}, s{S_T1}, 1")
    a.e(f"s_add_u32 s{S_T0}, s{S_T0}, s{S_T1}")
    a.e(f"s_lshl_b32 s{S_T0}, s{S_T0}, 7")
    a.e(f"s_add_u32 s{S_T0}, s{S_T0}, {WS_Y}")
    a.e(f"s_lshl_b32 s{S_T1}, s{S_W}, 6")
    a.e(f"v_add_u32 v52, s{S_T1}, v{V_LANE}")
    a.e(f"v_lshrrev_b32 v53, 4, v52")
    a.e(f"v_lshlrev_b32 v53, 16, v53")
    a.e(f"v_and_b32 v52, 15, v52")
    a.e(f"v_lshl_add_u32 v52, v52, 4, v53")
    a.e(f"v_add_u32 v52, s{S_T0}, v52")
    a.e(f"v_add_u32 v53, {16*65536}, v52")
    for q in range(4): a.e(f"v_mov_b32 v{128+q}, -1")
    a.vm(f"global_store_dwordx4 v52, v[128:131], s[{P_WS}:{P_WS+1}] sc1", "ycl")
    a.vm(f"global_store_dwordx4 v53, v[128:131], s[{P_WS}:{P_WS+1}] sc1", "ycl")

def xt_loads(a):
    a.e(f"s_and_b32 s{S_T0}, s{S_WG}, 7")
    a.e(f"s_lshr_b32 s{S_T1}, s{S_WG}, 3")
    a.e(f"s_lshl_b32 s{S_T0}, s{S_T0}, 6")
    a.e(f"s_lshl_b32 s{S_T1}, s{S_T1}, 1")
    a.e(f"s_add_u32 s{S_T0}, s{S_T0}, s{S_T1}")
    a.e(f"s_lshl_b32 s{S_T0}, s{S_T0}, 4")
    a.e(f"s_lshl_b32 s{S_T1}, s{S_W}, 19")
    a.e(f"s_add_u32 s{S_T0}, s{S_T0}, s{S_T1}")
    a.e(f"s_add_u32 s{S_T0}, s{S_T0}, {WS_XT}")
    a.e(f"v_lshrrev_b32 v52, 1, v{V_LANE}")
    a.e(f"v_lshlrev_b32 v52, 13, v52")
    a.e(f"v_and_b32 v53, 1, v{V_LANE}")
    a.e(f"v_lshl_add_u32 v52, v53, 4, v52")
    a.e(f"v_add_u32 v52, s{S_T0}, v52")
    a.vm(f"global_load_dwordx4 {vr(C_XT,4)}, v52, s[{P_WS}:{P_WS+1}] sc1", "xt")
    a.e(f"v_add_u32 v52, {32*8192}, v52")
    a.vm(f"global_load_dwordx4 {vr(C_XT+4,4)}, v52, s[{P_WS}:{P_WS+1}] sc1", "xt")
    a.e(f"s_add_u32 s{S_T0}, s{S_T0}, {64*8192}")
    a.e(f"v_lshl_add_u32 v53, v53, 4, s{S_T0}")
    a.vm(f"global_load_dword v160, v53, s[{P_WS}:{P_WS+1}] sc1", "xt")

def u_build(a):
    a.vm_wait("xt")
    O = 132
    a.e(f"v_add_u32 v48, 2, v{V_LANE}")
    a.e("v_and_b32 v48, 63, v48")
    a.e("v_lshlrev_b32 v48, 2, v48")
    a.e(f"ds_bpermute_b32 v49, v48, v{C_XT}")
    a.e(f"ds_bpermute_b32 v50, v48, v{C_XT+4}")
    for q in range(2):
        X = C_XT + 4*q
        for k in range(3):
            a.e(f"v_alignbit_b32 v{O+4*q+k}, v{X+k+1}, v{X+k}, 16")
    a.e(f"v_and_b32 v51, 1, v{V_LANE}")
    a.e(f"v_mul_u32_u24 v51, {UU_CH}, v51")
    a.e(f"v_lshrrev_b32 v48, 1, v{V_LANE}")
    a.e("v_lshl_add_u32 v51, v48, 4, v51")
    a.e(f"s_lshl_b32 s{S_T0}, s{S_W}, 10")
    a.e(f"s_add_u32 s{S_T0}, s{S_T0}, {L_UU + 32}")
    a.e(f"v_add_u32 v51, s{S_T0}, v51")
    a.e(f"v_cmp_gt_u32 vcc, 62, v{V_LANE}")
    a.e("s_waitcnt lgkmcnt(0)")
    a.e("v_cndmask_b32 v49, v50, v49, vcc")
    a.e("v_cndmask_b32 v50, v160, v50, vcc")
    a.e(f"v_alignbit_b32 v{O+3}, v49, v{C_XT+3}, 16")
    a.e(f"v_alignbit_b32 v{O+7}, v50, v{C_XT+7}, 16")
    a.e(f"ds_write_b128 v51, {vr(C_XT,4)}")
    a.e(f"ds_write_b128 v51, {vr(C_XT+4,4)} offset:512")
    a.e(f"ds_write_b128 v51, {vr(O,4)} offset:4160")
    a.e(f"ds_write_b128 v51, {vr(O+4,4)} offset:{4160+512}")
    lab = a.label("nopad")
    a.e(f"s_cmp_lg_u32 s{S_W}, 0")
    a.e(f"s_cbranch_scc1 {lab}")
    a.e(f"v_lshlrev_b32 v48, 16, v{C_XT}")
    a.e(f"v_lshrrev_b32 v49, 3, v{V_LANE}")
    a.e(f"v_mul_u32_u24 v49, {UU_CH}, v49")
    a.e(f"v_and_b32 v50, 7, v{V_LANE}")
    a.e("v_lshl_add_u32 v49, v50, 2, v49")
    a.e(f"v_add_u32 v49, {L_UU}, v49")
    a.e("v_mov_b32 v50, 0")
    a.e(f"s_mov_b64 s[{S_EXEC}:{S_EXEC+1}], exec")
    a.e("s_mov_b64 exec, 0xffff")
    a.e("ds_write_b32 v49, v50")
    a.e("s_mov_b64 exec, 0x7f7f")
    a.e("ds_write_b32 v49, v50 offset:4160")
    a.e("s_mov_b64 exec, 3")
    a.e(f"ds_write_b32 v51, v48 offset:{4160 - 4}")
    a.e(f"s_mov_b64 exec, s[{S_EXEC}:{S_EXEC+1}]")
    a.e(f"{lab}:")

CV_A, CV_B, CV_ACC = [16, 80], [48, 112], 144
CVA, CVB, V_DSK = 2, 10, 11
def conv_addr(a):
    t = 12
    a.e(f"v_and_b32 v{t}, 15, v{V_LANE}")
    a.e(f"v_lshrrev_b32 v{t+1}, 4, v{V_LANE}")
    a.e(f"v_and_b32 v{t+2}, 1, v{t+1}")
    a.e(f"v_lshrrev_b32 v{t+1}, 1, v{t+1}")
    a.e(f"v_lshlrev_b32 v{t+3}, 5, v{t+1}")
    a.e(f"v_lshlrev_b32 v{t+2}, 4, v{t+2}")
    a.e(f"v_sub_u32 v{t+3}, v{t+3}, v{t+2}")
    a.e(f"s_lshl_b32 s{S_T2}, s{S_MH}, 6")
    a.e(f"s_mul_i32 s{S_T0}, s{S_CH}, {KR_CH}")
    a.e(f"s_add_u32 s{S_T0}, s{S_T0}, {L_KR + 496}")
    a.e(f"s_add_u32 s{S_T0}, s{S_T0}, s{S_T2}")
    a.e(f"v_lshlrev_b32 v{t+2}, 5, v{t}")
    a.e(f"v_sub_u32 v{t+2}, v{t+3}, v{t+2}")
    a.e(f"v_add_u32 v{CVB}, s{S_T0}, v{t+2}")
    a.e(f"s_mul_i32 s{S_T0}, s{S_CH}, {UU_CH}")
    a.e(f"s_add_u32 s{S_T0}, s{S_T0}, {L_UU}")
    a.e(f"s_add_u32 s{S_T0}, s{S_T0}, s{S_T2}")
    a.e(f"v_and_b32 v{t+2}, 1, v{t}")
    a.e(f"v_cmp_eq_u32 vcc, 1, v{t+2}")
    a.e(f"v_mov_b32 v{t+2}, {4160+16}")
    a.e(f"v_lshl_add_u32 v{t+3}, v{t}, 1, v{t+3}")
    a.e(f"v_mov_b32 v{t+1}, 18")
    a.e(f"v_cndmask_b32 v{t+2}, v{t+2}, v{t+1}, vcc")
    a.e(f"v_add_u32 v{t+3}, v{t+3}, v{t+2}")
    a.e(f"v_add_u32 v{CVA}, s{S_T0}, v{t+3}")
    for al in range(1, 8):
        a.e(f"v_add_u32 v{CVA+al}, {512*al}, v{CVA}")

def k_part(a):
    FR, KD = 16, 144
    a.e(f"v_and_b32 v12, 31, v{V_LANE}")
    a.e("v_mul_u32_u24 v13, 528, v12")
    a.e(f"v_lshrrev_b32 v14, 5, v{V_LANE}")
    a.e("v_lshl_add_u32 v13, v14, 4, v13")
    a.e(f"s_mul_i32 s{S_T0}, s{S_CH}, {KV_CH}")
    a.e(f"s_add_u32 s{S_T0}, s{S_T0}, {L_KV}")
    a.e(f"v_add_u32 v13, s{S_T0}, v13")
    for k in range(16):
        a.e(f"ds_read_b128 {vr(FR+8*k,4)}, v13 offset:{k*32}")
        a.e(f"ds_read_b128 {vr(FR+8*k+4,4)}, v13 offset:{32*528 + k*32}")
    a.e(f"s_mul_i32 s{S_T0}, s{S_CH}, {KR_CH}")
    a.e(f"s_add_u32 s{S_T0}, s{S_T0}, {L_KR + 504}")
    a.e("v_lshlrev_b32 v12, 4, v12")
    a.e("v_lshl_add_u32 v12, v14, 3, v12")
    a.e(f"v_sub_u32 v12, s{S_T0}, v12")
    a.e(f"s_add_u32 s{S_T0}, s{S_T0}, {4096 - 504}")
    a.e(f"v_lshl_add_u32 v15, v{V_LANE}, 4, s{S_T0}")
    a.e("s_waitcnt lgkmcnt(0)")
    for k in range(16):
        a.e(f"v_mfma_f32_32x32x16_bf16 {vr(KD,16)}, {vr(FR+8*k,4)}, {vr(FR+8*k+4,4)}, {'0' if k == 0 else vr(KD,16)}")
    lab1, lab2 = a.label("ex1"), a.label("ex2")
    a.e(f"v_cmp_le_u32 vcc, 32, v{V_LANE}")
    a.e(f"v_and_b32 v16, 1, v{V_LANE}")
    a.e(f"v_cmp_eq_u32 s[{S_TMP}:{S_TMP+1}], 1, v16")
    for q in range(4): a.e(f"v_mov_b32 v{24+q}, 0")
    a.e("s_nop 4")
    a.e(f"s_cmp_eq_u32 s{S_MH}, 0")
    a.e(f"s_cbranch_scc0 {lab1}")
    D = KD
    a.e(f"v_cvt_pk_bf16_f32 v20, v{D+3}, v{D+2}")
    a.e(f"v_cvt_pk_bf16_f32 v21, v{D+1}, v{D}")
    a.e(f"v_cvt_pk_bf16_f32 v22, v{D+6}, v{D+5}")
    a.e(f"v_cvt_pk_bf16_f32 v23, v{D+4}, v{D+4}")
    a.e("ds_write_b64 v12, v[20:21] offset:3584")
    a.e("ds_write_b64 v12, v[22:23] offset:3072")
    a.e(f"s_mov_b64 s[{S_EXEC}:{S_EXEC+1}], exec")
    a.e("s_mov_b64 exec, 0x3fffffff")
    a.e("ds_write_b128 v15, v[24:27]")
    a.e(f"s_mov_b64 exec, s[{S_EXEC}:{S_EXEC+1}]")
    a.e(f"s_branch {lab2}")
    a.e(f"{lab1}:")
    D = KD + 8
    for q in range(4):
        a.e(f"v_mov_b32 v{28+2*q}, v{D+4+q}")
        a.e(f"v_mov_b32 v{29+2*q}, v{D+4+q}")
    for q in range(2):
        A_, B_ = D + 2*q, D + 2*q + 1
        a.e(f"v_cndmask_b32 v24, v{A_}, v{B_}, vcc")
        a.e(f"v_cvt_pk_bf16_f32 v{20+2*q+0}, v{B_}, v24")
        a.e(f"v_cvt_pk_bf16_f32 v{20+2*q+1}, v{A_}, v{A_}")
    for q in range(4):
        a.e(f"v_permlane32_swap_b32 v{28+2*q}, v{29+2*q}")
    a.e("ds_write_b64 v12, v[20:21] offset:2560")
    a.e("ds_write_b64 v12, v[22:23] offset:2048")
    for q in range(4):
        a.e(f"v_cndmask_b32 v{28+2*q}, v{28+2*q}, v{D+4+q}, s[{S_TMP}:{S_TMP+1}]")
    for q in range(4):
        a.e(f"v_cvt_pk_bf16_f32 v{36+2*q}, v{D+4+q}, v{D+4+q}")
        a.e(f"v_cvt_pk_bf16_f32 v{37+2*q}, v{D+4+q}, v{28+2*q}")
    for q in range(4):
        a.e(f"ds_write_b64 v12, {vr(36+2*q,2)} offset:{1536 - 512*q}")
    a.e(f"{lab2}:")

def conv_main(a, late, dmas):
    def reads(st, q):
        r = [f"ds_read_b128 {vr(CV_B[st]+4*al,4)}, v{CVB} offset:{512*(7-al) + 128*q}" for al in range(8)]
        for al in range(8):
            r.append(f"ds_read2_b32 {vr(CV_A[st]+4*al,2)}, v{CVA+al} offset0:{32*q} offset1:{32*q+1}")
            r.append(f"ds_read2_b32 {vr(CV_A[st]+4*al+2,2)}, v{CVA+al} offset0:{32*q+2} offset1:{32*q+3}")
        return r
    for x in reads(0, 0): a.e(x)
    st = 0
    for q in range(4):
        a.e("s_waitcnt lgkmcnt(0)" if q else "s_waitcnt lgkmcnt(14)")
        mf = []
        for al in range(8):
            for be in range(8 - al):
                I = al + be
                mf.append(f"v_mfma_f32_16x16x32_bf16 {vr(CV_ACC+4*I,4)}, {vr(CV_A[st]+4*al,4)}, {vr(CV_B[st]+4*be,4)}, {'0' if (q == 0 and al == 0) else vr(CV_ACC+4*I,4)}")
        slots = {i: [] for i in range(36)}
        if q == 0: slots[7].append("s_waitcnt lgkmcnt(0)")
        if q < 3:
            base = 8 if q == 0 else 0
            for k, x in enumerate(reads(st ^ 1, q + 1)): slots[base + k].append(x)
        for sl, it in late.get(q, []): slots[sl].append(it)
        dl = dmas.get(q, [])
        for k, g in enumerate(dl): place(slots, 1 + (k * 33) // len(dl), g)
        stamp(a, f"cv{q}")
        sched(a, mf, slots)
        st ^= 1

def conv_finish(a):
    a.e(f"s_lshl_b32 s{S_T0}, s{S_W}, 12")
    a.e(f"s_add_u32 s{S_T0}, s{S_T0}, {L_CX}")
    a.e(f"v_lshl_add_u32 v2, v{V_LANE}, 4, s{S_T0}")
    a.e(f"s_xor_b32 s{S_T1}, s{S_W}, 1")
    a.e(f"s_lshl_b32 s{S_T1}, s{S_T1}, 12")
    a.e(f"s_add_u32 s{S_T1}, s{S_T1}, {L_CX}")
    a.e(f"v_lshl_add_u32 v3, v{V_LANE}, 4, s{S_T1}")
    a.e(f"s_mul_i32 s{S_T0}, s{S_CH}, {UU_CH}")
    a.e(f"s_add_u32 s{S_T0}, s{S_T0}, {L_UU + 32}")
    a.e(f"s_lshl_b32 s{S_T1}, s{S_MH}, 11")
    a.e(f"s_add_u32 s{S_T0}, s{S_T0}, s{S_T1}")
    a.e(f"v_and_b32 v4, 15, v{V_LANE}")
    a.e(f"v_lshrrev_b32 v5, 4, v{V_LANE}")
    a.e(f"v_lshlrev_b32 v6, 5, v4")
    a.e(f"v_lshl_add_u32 v6, v5, 3, v6")
    a.e(f"v_add_u32 v6, s{S_T0}, v6")
    lab1, lab2 = a.label("cx1"), a.label("cx2")
    a.e(f"s_cmp_eq_u32 s{S_MH}, 0")
    a.e(f"s_cbranch_scc1 {lab1}")
    for k in range(4):
        a.e(f"ds_write_b128 v2, {vr(CV_ACC+4*k,4)} offset:{1024*k}")
    for q in range(8):
        a.e(f"v_pk_mul_f32 {vr(CV_ACC+2*q,2)}, {vr(CV_ACC+16+2*q,2)}, 1.0 op_sel_hi:[1,0]")
    a.e(f"s_branch {lab2}")
    a.e(f"{lab1}:")
    for k in range(4):
        a.e(f"ds_write_b128 v2, {vr(CV_ACC+16+4*k,4)} offset:{1024*k}")
    a.e(f"{lab2}:")
    for k in range(4):
        a.e(f"ds_read_b64 {vr(16+2*k,2)}, v6 offset:{512*k}")
    a.e(f"s_lshl_b32 s{S_T0}, s{S_MH}, 20")
    a.e(f"s_lshl_b32 s{S_T1}, s{S_D}, 7")
    a.e(f"s_add_u32 s{S_T0}, s{S_T0}, s{S_T1}")
    a.e(f"s_add_u32 s{S_T0}, s{S_T0}, {WS_Y}")
    a.e(f"v_lshrrev_b32 v7, 2, v4")
    a.e(f"v_lshlrev_b32 v7, 16, v7")
    a.e(f"v_and_b32 v8, 3, v4")
    a.e(f"v_lshl_add_u32 v7, v8, 5, v7")
    a.e(f"v_lshl_add_u32 v7, v5, 3, v7")
    a.e(f"v_add_u32 v7, s{S_T0}, v7")
    a.e("s_waitcnt lgkmcnt(0)")
    a.bar("cx")
    for k in range(4):
        a.e(f"ds_read_b128 {vr(64+4*k,4)}, v3 offset:{1024*k}")
    U = 32
    for k in range(4):
        a.e(f"v_lshlrev_b32 v{U+4*k}, 16, v{16+2*k}")
        a.e(f"v_and_b32 v{U+4*k+1}, 0xffff0000, v{16+2*k}")
        a.e(f"v_lshlrev_b32 v{U+4*k+2}, 16, v{17+2*k}")
        a.e(f"v_and_b32 v{U+4*k+3}, 0xffff0000, v{17+2*k}")
    a.e(f"v_mov_b32 v10, v{V_DSK}")
    for k in range(8):
        a.e(f"v_pk_fma_f32 {vr(CV_ACC+2*k,2)}, {vr(U+2*k,2)}, v[10:11], {vr(CV_ACC+2*k,2)}")
    a.vm_wait("wd3", "wd6")
    a.e("s_waitcnt lgkmcnt(0)")
    a.bar("cd")
    for k in range(8):
        a.e(f"v_pk_add_f32 {vr(CV_ACC+2*k,2)}, {vr(CV_ACC+2*k,2)}, {vr(64+2*k,2)}")
    for k in range(8):
        a.e(f"v_cvt_pk_bf16_f32 v{16+k}, v{CV_ACC+2*k}, v{CV_ACC+2*k+1}")
    for k in range(4):
        a.vm(f"global_store_dwordx2 v7, {vr(16+2*k,2)}, s[{P_WS}:{P_WS+1}] sc1", "pubY")
        if k < 3: a.e(f"v_add_u32 v7, {4*65536}, v7")


def role_c(a):
    a.e("L_role_c:")
    c_setup(a)
    a_read_addr(a, C_AADDR, 12)
    a.e("s_waitcnt lgkmcnt(0)")
    a.e(f"s_mov_b32 s{S_ROLE}, 1")
    stamp(a, 0, real=True); stamp(a, 1)
    mk_srd(a, SRD_X, P_X, 2048 * 1024)
    mk_srd(a, SRD_WG, P_WG, 512 * 2752)
    mk_srd(a, SRD_WU, P_WU, 512 * 2752)
    epoch_load(a, 13, 54)
    for g in stage_dma(0): emit(a, g)
    d1 = stage_dma(1)
    n1 = OPT.get("n1", 4)
    for g in d1[:n1]: emit(a, g)
    a.vm_wait("st0")
    a.bar("b0")
    stamp(a, "b0")
    for g in d1[n1:]: emit(a, g)
    epoch_finish(a, 54)
    if not OPT.get("csg", 1): cs_block(a)
    for g in stage_dma(2): emit(a, g)
    kgen_loads(a)
    prog = [lambda a: a.vm_wait("kp")] + kgen_prog()
    nst = 4
    per = (len(prog) + nst - 1) // nst
    pos = 0
    for stage in range(7):
        a.e("s_waitcnt lgkmcnt(0)")
        a.vm_wait(f"st{stage+1}")
        a.bar(f"s{stage}")
        stamp(a, f"cs{stage}")
        if OPT.get("cprio_stage") == stage: a.e(f"s_setprio {OPT.get('cprio', 2)}")
        dm = stage_dma(stage + 3) if stage + 3 < 8 else []
        if stage == OPT.get("touchstage", 2) and OPT.get("wdtouch", 1):
            wd_touch(a)
        if stage == OPT.get("yclrstage", 3):
            y_clear(a)
        work = []
        if 1 <= stage <= nst:
            work = prog[pos:pos + per]; pos += per
        if stage == 5 and OPT.get("kvearly", 1):
            work = kv_writes()[:OPT.get("kvsplit", 35)]
        if stage == 6:
            work = (kv_writes()[OPT.get("kvsplit", 35):] if OPT.get("kvearly", 1) else [])
        if stage == OPT.get("cpoll", 5):
            if OPT.get("pollfirst", 1): work = [lambda a: ln_poll_issue(a, 59, 132)] + work
            else: work = work + [lambda a: ln_poll_issue(a, 59, 132)]
        if stage == OPT.get("cchk", 6):
            work = [lambda a: ln_poll_check(a, 59, 132), xt_loads] + work
        step = max(1, len(work) // max(1, len(dm))) if dm else len(work)
        while dm or work:
            if dm: emit(a, dm.pop(0))
            for _ in range(step if dm else len(work)):
                if work: emit(a, work.pop(0))
    assert pos >= len(prog)
    a.e(f"v_mov_b32 v{V_DSK}, v{C_P+7}")
    a.e("s_waitcnt lgkmcnt(0)")
    a.bar("rf")
    stamp(a, "crf")
    if OPT.get("cprio2") is not None: a.e(f"s_setprio {OPT['cprio2']}")
    if OPT.get("cchk", 6) > 6:
        ln_poll_check(a, 59, 132)
        xt_loads(a)
    if not OPT.get("kvearly", 1):
        for x in kv_writes(): a.e(x)
        a.e("s_waitcnt lgkmcnt(0)")
        a.bar("kv")
    stamp(a, "ckv")
    wd_setup(a, 52, 161)
    for g in wd_groups(1, 161) + wd_groups(2, 161): emit(a, g)
    k_part(a)
    stamp(a, "ckp")
    u_build(a)
    stamp(a, "cub")
    conv_addr(a)
    a.e("v_mov_b32 v12, v161")
    a.vm_wait("wd1", "wd2", "ycl")
    a.e("s_waitcnt lgkmcnt(0)")
    a.bar("k")
    stamp(a, "ck")
    conv_main(a, {OPT.get("pbar", 2): [(OPT.get("pslot", 20), lambda a: a.bar("p"))]},
              {0: wd_groups(3, 12) + wd_groups(6, 12)[:2], 1: wd_groups(6, 12)[2:]})
    stamp(a, "convm")
    conv_finish(a)
    stamp(a, "conv")
    a.e("s_waitcnt vmcnt(0)")
    stamp(a, 9, real=True)
    prof_store(a)
    a.e("s_endpgm")


def main():
    global PROF
    PROF = "prof" in sys.argv
    for x in sys.argv[1:]:
        if "=" in x:
            k, v = x.split("=")
            if k == "stamps": STAMPS[:] = v.split(",")
            else: OPT[k] = int(v)
    shared = [0]
    a0 = A2(shared); entry(a0)
    g = A2(shared); g.vmq = list(a0.vmq); role_g(g)
    c = A2(shared); c.vmq = list(a0.vmq); role_c(c)
    gb = [b for b in g.bars if b not in ("fin", "rd")]
    assert gb == c.bars, (gb, c.bars)
    out = [HDR, f"; @launch grid=(256,1,1) block=(512,1,1) lds={LDS_BYTES}",
           '.amdgcn_target "amdgcn-amd-amdhsa--gfx950"', '.text', a0.text(), g.text(), c.text(),
           "L_end:", "  s_endpgm", "  .fill 8448, 4, 0xbf800000", '.section .rodata,"a"', kd(NAME, 176, 80)]
    print('\n'.join(out))

if __name__ == "__main__":
    main()
```

```python
import sys, math
from asmlib import *

NAME = "parallel_sum__ssm_conv_s4__geglu_ffn__prompt_kernel"
OPT = {}
PROF = False
STAMPS = []
HDR = open('parallel_sum__ssm_conv_s4__geglu_ffn__prompt.s.ref').read().split('; Override')[0].rstrip()

WS_FLAG_LN, WS_FLAG_H, WS_FLAG_Y = 4096, 8192, 12288
WS_STATS, WS_CS = 65536, 131072
WS_XT, WS_Y, WS_H = 1 << 20, 4 << 20, 8 << 20
WS_DUMMY, WS_PROF = 15 << 20, 16 << 20
SPIN_MAX = 1 << 17

S_WG, S_W, S_I, S_J, S_TW, S_FW, S_U0, S_KC = 2, 3, 4, 5, 6, 7, 8, 9
S_T0, S_T1, S_T2, S_SPIN, S_TAG, S_WDL = 10, 11, 12, 13, 14, 15
P_X, P_ARE, P_AIM, P_BRE, P_BIM, P_CRE, P_CIM, P_LDT = 16, 18, 20, 22, 24, 26, 28, 30
P_DSK, P_BX, P_WG, P_WU, P_WD, P_OUT, P_DBG, P_WS = 32, 34, 36, 38, 40, 42, 44, 46
S_EP, S_ROLE = 34, 35
SRD_X, SRD_WG, SRD_WU, SRD_WD = 48, 52, 56, 60
S_XW, S_WW, S_XO, S_WO, S_LX, S_LW = 64, 65, 66, 67, 68, 69
S_EXEC = 70
S_NU, S_CSH = 72, 73
S_WDS = 73
S_TMP = 74
S_D, S_CH, S_MH, S_TH, S_NT, S_WDO = 76, 77, 78, 79, 80, 81
S_PROF = 82

LDS_BYTES = 163840
SLOT = 41216
L_X, L_G, L_U = 0, 16384, 28704
L_LN = 3 * SLOT
KV_CH, KR_CH, UU_CH = 64 * 528, 4608, 8320
L_KV = 2 * SLOT
L_KR = 150016
L_UU = 24576
L_CX = 131584
WD = {1: (0, 6144, 0, 3), 2: (SLOT, 10240, 3, 5),
      4: (0, 6144, 8, 3), 5: (SLOT, 10240, 11, 5),
      3: (115200, 4096, 16, 2),
      6: (2 * SLOT, 8192, 18, 4)}
def wd_areg(q): return 8 * q if q < 8 else 64 + 8 * (q - 16)
def wd_in_agpr(q): return q < 8 or q in (16, 17)
RED_UNIT = [4096 * u for u in range(12)]
L_YB = 49152

V_LANE = 1


def stamp(a, idx, real=False):
    if PROF:
        if isinstance(idx, str):
            if idx not in STAMPS: return
            idx = 2 + STAMPS.index(idx)
        a.e(f"{'s_memrealtime' if real else 's_memtime'} s[{S_PROF+2*idx}:{S_PROF+2*idx+1}]")

def prof_store(a):
    if not PROF: return
    a.e("s_waitcnt lgkmcnt(0)")
    if OPT.get("dbgwg") is not None:
        lab = a.label("nodbg")
        a.e(f"s_lshl_b32 s{S_T0}, s{S_WG}, 3")
        a.e(f"s_lshl_b32 s{S_T1}, s{S_ROLE}, 2")
        a.e(f"s_add_u32 s{S_T0}, s{S_T0}, s{S_T1}")
        a.e(f"s_add_u32 s{S_T0}, s{S_T0}, s{S_W}")
        a.e(f"s_cmp_lg_u32 s{S_T0}, {OPT['dbgwg']*8 + OPT.get('dbgw', 0)}")
        a.e(f"s_cbranch_scc1 {lab}")
        a.e(f"s_sub_u32 s{S_PROF+18}, s{S_PROF+18}, s{S_PROF}")
        for q in range(2, 9):
            a.e(f"s_sub_u32 s{S_PROF+2*q}, s{S_PROF+2*q}, s{S_PROF+2}")
        for q in range(10):
            a.e(f"v_mov_b32 v{4+q}, s{S_PROF+2*q}")
        a.e("v_mov_b32 v2, 0")
        a.e("s_mov_b64 exec, 1")
        a.e(f"global_store_dwordx4 v2, v[4:7], s[{P_DBG}:{P_DBG+1}]")
        a.e(f"global_store_dwordx4 v2, v[8:11], s[{P_DBG}:{P_DBG+1}] offset:16")
        a.e(f"global_store_dwordx2 v2, v[12:13], s[{P_DBG}:{P_DBG+1}] offset:32")
        a.e(f"{lab}:")
        return
    for q in range(10):
        a.e(f"v_mov_b32 v{4+q}, s{S_PROF+2*q}")
    a.e(f"s_lshl_b32 s{S_T0}, s{S_ROLE}, 2")
    a.e(f"s_add_u32 s{S_T0}, s{S_T0}, s{S_W}")
    a.e(f"s_lshl_b32 s{S_T1}, s{S_WG}, 3")
    a.e(f"s_add_u32 s{S_T0}, s{S_T0}, s{S_T1}")
    a.e(f"s_lshl_b32 s{S_T0}, s{S_T0}, 6")
    a.e(f"s_add_u32 s{S_T0}, s{S_T0}, {WS_PROF}")
    a.e(f"v_mov_b32 v2, s{S_T0}")
    a.e("s_mov_b64 exec, 1")
    a.e(f"global_store_dwordx4 v2, v[4:7], s[{P_WS}:{P_WS+1}]")
    a.e(f"global_store_dwordx4 v2, v[8:11], s[{P_WS}:{P_WS+1}] offset:16")
    a.e(f"global_store_dwordx2 v2, v[12:13], s[{P_WS}:{P_WS+1}] offset:32")


class A2(Asm):
    def __init__(self, shared):
        super().__init__()
        self.bars = []
        self.shared = shared
    def label(self, base):
        self.shared[0] += 1
        return f"L_{base}_{self.shared[0]}"
    def bar(self, name):
        self.e("s_barrier")
        self.bars.append(name)


class Rec:
    def __init__(self, a):
        self.ops = []; self.a = a
    def e(self, s):
        for l in s.split('\n'):
            if l.strip(): self.ops.append(('e', l.strip()))
    def vm(self, s, tag): self.ops.append(('vm', s, tag))
    def vm_wait(self, *tags): self.ops.append(('wait', tags))
    def label(self, b): return self.a.label(b)
    def bar(self, name): self.ops.append(('bar', name))

def replay(a, ops, fillers, every, start=0):
    fill = list(fillers); n = 0
    for o in ops:
        if o[0] == 'e': a.e(o[1])
        elif o[0] == 'vm': a.vm(o[1], o[2])
        elif o[0] == 'wait': a.vm_wait(*o[1])
        elif o[0] == 'bar': a.bar(o[1])
        n += 1
        if fill and n >= start and (n - start) % every == 0:
            emit(a, fill.pop(0))
    for g in fill: emit(a, g)

def emit(a, g):
    if callable(g): g(a)
    elif isinstance(g, tuple): a.vm(g[0], g[1])
    elif isinstance(g, list):
        for t in g: emit(a, t)
    else: a.e(g)

class Dma(list):
    def __init__(self, pre, m0, ld, post=()):
        super().__init__(list(pre) + [m0, "s_nop 0", ld] + list(post))
        self.head = list(pre) + [m0]
        self.tail = [ld] + list(post)

def place(slots, p, g):
    if isinstance(g, Dma) and p >= 1:
        slots[p - 1].append(g.head); slots[p].insert(0, g.tail)
    else:
        slots[p].append(g)

def sched(a, mf, slots):
    for i, m in enumerate(mf):
        a.e(m)
        for it in slots.get(i, []): emit(a, it)

def mk_srd(a, srd, ptr, nbytes):
    a.e(f"s_mov_b32 s{srd}, s{ptr}")
    a.e(f"s_and_b32 s{srd+1}, s{ptr+1}, 0xffff")
    a.e(f"s_mov_b32 s{srd+2}, {nbytes}")
    a.e(f"s_mov_b32 s{srd+3}, 0x20000")

def dpp_reduce(a, regs):
    steps = ["quad_perm:[1,0,3,2] row_mask:0xf bank_mask:0xf", "quad_perm:[2,3,0,1] row_mask:0xf bank_mask:0xf",
             "row_half_mirror row_mask:0xf bank_mask:0xf", "row_mirror row_mask:0xf bank_mask:0xf",
             "row_bcast:15 row_mask:0xa bank_mask:0xf", "row_bcast:31 row_mask:0xc bank_mask:0xf"]
    assert len(regs) >= 3
    for st in steps:
        for r in regs:
            a.e(f"v_add_f32_dpp v{r}, v{r}, v{r} {st}")
    a.e("s_nop 1")


def entry(a):
    a.e(f".globl {NAME}\n.p2align 8\n.type {NAME},@function\n{NAME}:")
    a.e(f"s_cmp_ge_u32 s{S_WG}, 256")
    a.e(f"s_cbranch_scc1 L_end")
    a.e("s_load_dwordx16 s[16:31], s[0:1], 0")
    a.e("s_load_dwordx16 s[32:47], s[0:1], 64")
    a.e("s_getpc_b64 s[74:75]")
    a.e(f"s_lshr_b32 s{S_T1}, s{S_WG}, 3")
    a.e(f"s_and_b32 s{S_T2}, s{S_T1}, 15")
    a.e(f"s_lshl_b32 s{S_T2}, s{S_T2}, 11")
    a.e(f"v_lshl_add_u32 v2, v0, 2, s{S_T2}")
    a.vm(f"global_load_dword v175, v2, s[74:75]", "pf")
    a.e(f"v_and_b32 v{V_LANE}, 63, v0")
    a.e(f"v_lshrrev_b32 v3, 6, v0")
    a.e(f"s_and_b32 s{S_T0}, s{S_WG}, 7")
    a.e(f"v_readfirstlane_b32 s{S_W}, v3")
    a.e(f"s_lshr_b32 s{S_I}, s{S_T0}, 1")
    a.e(f"s_lshl_b32 s{S_I}, s{S_I}, 2")
    a.e(f"s_lshr_b32 s{S_T2}, s{S_T1}, 3")
    a.e(f"s_add_u32 s{S_I}, s{S_I}, s{S_T2}")
    a.e(f"s_and_b32 s{S_J}, s{S_T0}, 1")
    a.e(f"s_lshl_b32 s{S_J}, s{S_J}, 3")
    a.e(f"s_and_b32 s{S_T2}, s{S_T1}, 7")
    a.e(f"s_add_u32 s{S_J}, s{S_J}, s{S_T2}")
    a.e(f"s_lshr_b32 s{S_TMP}, s{S_W}, 2")
    a.e(f"s_and_b32 s{S_W}, s{S_W}, 3")
    a.e(f"s_lshr_b32 s{S_TW}, s{S_W}, 1")
    a.e(f"s_and_b32 s{S_FW}, s{S_W}, 1")
    a.e(f"s_mul_i32 s{S_U0}, s{S_J}, 3")
    a.e(f"s_lshl_b32 s{S_T2}, s{S_J}, 1")
    a.e(f"s_add_u32 s{S_T2}, s{S_T2}, 11")
    a.e(f"s_min_u32 s{S_U0}, s{S_U0}, s{S_T2}")
    a.e(f"s_cmp_lt_u32 s{S_J}, 11")
    a.e(f"s_cselect_b32 s{S_NU}, 6, 4")
    a.e(f"s_lshr_b32 s{S_CSH}, s{S_I}, 3")
    a.e(f"s_lshl_b32 s{S_D}, s{S_T0}, 6")
    a.e(f"s_lshl_b32 s{S_T1}, s{S_T1}, 1")
    a.e(f"s_add_u32 s{S_D}, s{S_D}, s{S_T1}")
    a.e(f"s_add_u32 s{S_D}, s{S_D}, s{S_TW}")
    a.e(f"s_mov_b32 s{S_CH}, s{S_TW}")
    a.e(f"s_mov_b32 s{S_MH}, s{S_FW}")
    a.e(f"s_lshr_b32 s{S_TH}, s{S_J}, 3")
    if OPT.get("ntoff"):
        a.e(f"s_add_u32 s{S_NT}, s{S_J}, {OPT['ntoff']}")
        a.e(f"s_and_b32 s{S_NT}, s{S_NT}, 7")
    else:
        a.e(f"s_and_b32 s{S_NT}, s{S_J}, 7")
    a.e(f"s_cmp_lg_u32 s{S_TMP}, 0")
    a.e(f"s_cbranch_scc1 L_role_c")

def epoch_load(a, vtmp, vdst):
    a.e(f"v_mov_b32 v{vtmp}, 0")
    a.vm(f"global_load_dword v{vdst}, v{vtmp}, s[{P_WS}:{P_WS+1}] sc1", "ep")

def epoch_finish(a, vdst):
    a.vm_wait("ep")
    a.e("s_nop 0")
    a.e(f"v_readfirstlane_b32 s{S_EP}, v{vdst}")
    a.e("s_nop 3")
    a.e(f"s_mul_i32 s{S_TAG}, s{S_EP}, 0x9e3779b1")
    a.e(f"s_add_u32 s{S_TAG}, s{S_TAG}, 0x3c6ef373")

def flag_store(a, region, idx_code, va, vb):
    lab = a.label("nofl")
    a.e(f"s_cmp_lg_u32 s{S_W}, 0")
    a.e(f"s_cbranch_scc1 {lab}")
    idx_code(a)
    a.e(f"s_lshl_b32 s{S_T0}, s{S_T0}, 2")
    a.e(f"s_add_u32 s{S_T0}, s{S_T0}, {region}")
    a.e(f"v_mov_b32 v{va}, s{S_T0}")
    a.e(f"v_mov_b32 v{vb}, s{S_TAG}")
    a.e(f"s_mov_b64 s[{S_EXEC}:{S_EXEC+1}], exec")
    a.e("s_mov_b64 exec, 1")
    a.e(f"global_store_dword v{va}, v{vb}, s[{P_WS}:{P_WS+1}] sc1")
    a.e(f"s_mov_b64 exec, s[{S_EXEC}:{S_EXEC+1}]")
    a.e(f"{lab}:")

def idx_ln(a): a.e(f"s_mov_b32 s{S_T0}, s{S_WG}")
def idx_h(a):
    a.e(f"s_lshl_b32 s{S_T0}, s{S_I}, 4")
    a.e(f"s_add_u32 s{S_T0}, s{S_T0}, s{S_J}")
def idx_y(a):
    a.e(f"s_and_b32 s{S_T0}, s{S_WG}, 7")
    a.e(f"s_lshl_b32 s{S_T0}, s{S_T0}, 5")
    a.e(f"s_lshr_b32 s{S_T1}, s{S_WG}, 3")
    a.e(f"s_add_u32 s{S_T0}, s{S_T0}, s{S_T1}")

def spin_tail(a, top, ok, reloads, sleep=None):
    a.e(f"s_cmp_eq_u64 vcc, 0")
    a.e(f"s_cbranch_scc1 {ok}")
    a.e(f"s_add_u32 s{S_SPIN}, s{S_SPIN}, 1")
    a.e(f"s_cmp_gt_u32 s{S_SPIN}, {SPIN_MAX}")
    a.e(f"s_cbranch_scc1 {ok}")
    a.e(f"s_sleep {sleep if sleep is not None else OPT.get('sleep', 8)}")
    for r in reloads: a.e(r)
    a.e("s_waitcnt vmcnt(0)")
    a.e(f"s_branch {top}")
    a.e(f"{ok}:")

def ln_poll_issue(a, vaddr, vdst):
    a.e(f"v_lshlrev_b32 v{vaddr}, 4, v{V_LANE}")
    a.e(f"v_add_u32 v{vaddr}, {WS_FLAG_LN}, v{vaddr}")
    a.vm(f"global_load_dwordx4 {vr(vdst,4)}, v{vaddr}, s[{P_WS}:{P_WS+1}] sc1", "pl")

def ln_poll_check(a, vaddr, vdst):
    top, ok = a.label("poll"), a.label("pollok")
    a.vm_wait("pl")
    a.e(f"s_mov_b32 s{S_SPIN}, 0")
    a.e(f"{top}:")
    a.e(f"v_cmp_ne_u32 vcc, s{S_TAG}, v{vdst}")
    for q in range(1, 4):
        a.e(f"v_cmp_ne_u32 s[74:75], s{S_TAG}, v{vdst+q}")
        a.e("s_nop 0")
        a.e("s_or_b64 vcc, vcc, s[74:75]")
    a.e("s_nop 1")
    spin_tail(a, top, ok, [f"global_load_dwordx4 {vr(vdst,4)}, v{vaddr}, s[{P_WS}:{P_WS+1}] sc1"])


G_ACC = 16
def acc(tt, ap): return G_ACC + 16 * (3 * tt + ap)
G_FR = [112, 132]
def fB(st, tt): return G_FR[st] + 4 * tt
def fA(st, ap): return G_FR[st] + 8 + 4 * ap
G_BADDR, G_AADDR = 160, 164

def a_read_addr(a, dst, t0):
    a.e(f"v_lshrrev_b32 v{t0}, 4, v{V_LANE}")
    a.e(f"v_and_b32 v{t0+1}, 1, v{t0}")
    a.e(f"v_lshrrev_b32 v{t0}, 1, v{t0}")
    a.e(f"v_bfe_u32 v{t0+2}, v{V_LANE}, 2, 2")
    a.e(f"v_lshl_add_u32 v{t0+2}, v{t0}, 3, v{t0+2}")
    a.e(f"v_mul_u32_u24 v{t0+2}, 192, v{t0+2}")
    a.e(f"v_and_b32 v{t0+3}, 3, v{V_LANE}")
    a.e(f"v_lshl_add_u32 v{t0+2}, v{t0+3}, 3, v{t0+2}")
    a.e(f"v_mul_u32_u24 v{t0+1}, {L_U - L_G}, v{t0+1}")
    a.e(f"v_add_u32 v{t0+2}, v{t0+2}, v{t0+1}")
    a.e(f"s_mul_i32 s{S_T0}, s{S_FW}, 96")
    a.e(f"s_add_u32 s{S_T0}, s{S_T0}, {L_G}")
    a.e(f"v_add_u32 v{dst}, s{S_T0}, v{t0+2}")

def g_setup(a):
    a.e(f"v_and_b32 v12, 31, v{V_LANE}")
    a.e(f"v_lshrrev_b32 v13, 5, v{V_LANE}")
    a.e(f"v_bfe_u32 v14, v12, 1, 3")
    a.e(f"s_lshl_b32 s{S_T0}, s{S_TW}, 13")
    a.e(f"v_lshl_add_u32 v15, v12, 7, s{S_T0}")
    for s_ in range(4):
        a.e(f"v_add_u32 v11, {2*s_}, v13")
        a.e(f"v_xor_b32 v11, v11, v14")
        a.e(f"v_lshl_add_u32 v{G_BADDR+s_}, v11, 4, v15")
    a_read_addr(a, G_AADDR, 12)
    a.e(f"s_lshl_b32 s{S_T0}, s{S_I}, 7")
    a.e(f"s_lshl_b32 s{S_T1}, s{S_J}, 3")
    a.e(f"s_add_u32 s{S_T0}, s{S_T0}, s{S_T1}")
    a.e(f"s_lshl_b32 s{S_T1}, s{S_W}, 1")
    a.e(f"s_add_u32 s{S_T0}, s{S_T0}, s{S_T1}")
    a.e(f"s_lshl_b32 s{S_T0}, s{S_T0}, 10")
    a.e(f"v_lshl_add_u32 v7, v{V_LANE}, 4, s{S_T0}")

def ln_first(a):
    a.vm_wait("ln")
    for r in range(2):
        for d in range(4):
            a.e(f"v_lshlrev_b32 v{16+8*r+2*d}, 16, v{44+4*r+d}")
            a.e(f"v_and_b32 v{17+8*r+2*d}, 0xffff0000, v{44+4*r+d}")
    for r in range(2):
        b, t = 16 + 8*r, 36 + 4*r
        a.e(f"v_pk_add_f32 {vr(t,2)}, {vr(b,2)}, {vr(b+2,2)}")
        a.e(f"v_pk_mul_f32 {vr(t+2,2)}, {vr(b,2)}, {vr(b,2)}")
    for r in range(2):
        b, t = 16 + 8*r, 36 + 4*r
        a.e(f"v_pk_add_f32 {vr(t,2)}, {vr(t,2)}, {vr(b+4,2)}")
        a.e(f"v_pk_fma_f32 {vr(t+2,2)}, {vr(b+2,2)}, {vr(b+2,2)}, {vr(t+2,2)}")
    for r in range(2):
        b, t = 16 + 8*r, 36 + 4*r
        a.e(f"v_pk_add_f32 {vr(t,2)}, {vr(t,2)}, {vr(b+6,2)}")
        a.e(f"v_pk_fma_f32 {vr(t+2,2)}, {vr(b+4,2)}, {vr(b+4,2)}, {vr(t+2,2)}")
    for r in range(2):
        b, t = 16 + 8*r, 36 + 4*r
        a.e(f"v_pk_fma_f32 {vr(t+2,2)}, {vr(b+6,2)}, {vr(b+6,2)}, {vr(t+2,2)}")
        a.e(f"v_add_f32 v{32+r}, v{t}, v{t+1}")
    for r in range(2):
        t = 36 + 4*r
        a.e(f"v_add_f32 v{34+r}, v{t+2}, v{t+3}")
    a.e("s_nop 0")
    dpp_reduce(a, [32, 33, 34, 35])
    for q, sr_ in enumerate((74, 75, 12, 13)):
        a.e(f"v_readlane_b32 s{sr_}, v{32+q}, 63")
    a.e("s_nop 1")
    for q, sr_ in enumerate((74, 75, 12, 13)):
        a.e(f"v_mov_b32 v{32+q}, s{sr_}")
    a.e("v_mov_b32 v36, 0x3b000000")
    a.e("v_pk_mul_f32 v[32:33], v[32:33], v[36:37] op_sel_hi:[1,0]")
    a.e("v_pk_mul_f32 v[34:35], v[34:35], v[36:37] op_sel_hi:[1,0]")
    a.e("v_pk_fma_f32 v[34:35], v[32:33], v[32:33], v[34:35] neg_lo:[1,0,0] neg_hi:[1,0,0]")
    a.e("v_max_f32 v34, 0, v34")
    a.e("v_max_f32 v35, 0, v35")
    a.e("v_cvt_pk_bf16_f32 v36, v34, v35")
    a.e("v_cvt_pk_bf16_f32 v37, v32, v33")
    a.e("v_lshlrev_b32 v34, 16, v36")
    a.e("v_and_b32 v35, 0xffff0000, v36")
    a.e("v_lshlrev_b32 v32, 16, v37")
    a.e("v_and_b32 v33, 0xffff0000, v37")
    a.e("v_add_f32 v34, 0x3727c5ac, v34")
    a.e("v_add_f32 v35, 0x3727c5ac, v35")
    a.e("v_cvt_pk_bf16_f32 v36, v34, v35")
    a.e("v_lshlrev_b32 v34, 16, v36")
    a.e("v_and_b32 v35, 0xffff0000, v36")
    a.e("v_sqrt_f32 v34, v34")
    a.e("v_sqrt_f32 v35, v35")
    a.e("s_nop 0")
    a.e("v_cvt_pk_bf16_f32 v36, v34, v35")
    a.e("v_lshlrev_b32 v34, 16, v36")
    a.e("v_and_b32 v35, 0xffff0000, v36")
    a.e("v_rcp_f32 v34, v34")
    a.e("v_rcp_f32 v35, v35")
    for r in range(2):
        b = 16 + 8*r
        sel = "op_sel_hi:[1,0]" if r == 0 else "op_sel:[0,1] op_sel_hi:[1,1]"
        for d in range(4):
            a.e(f"v_pk_add_f32 {vr(b+2*d,2)}, {vr(b+2*d,2)}, v[32:33] {sel} neg_lo:[0,1] neg_hi:[0,1]")
    for r in range(2):
        b = 16 + 8*r
        for d in range(4):
            a.e(f"v_cvt_pk_bf16_f32 v{44+4*r+d}, v{b+2*d}, v{b+2*d+1}")
    for r in range(2):
        b = 16 + 8*r
        for d in range(4):
            a.e(f"v_lshlrev_b32 v{b+2*d}, 16, v{44+4*r+d}")
            a.e(f"v_and_b32 v{b+2*d+1}, 0xffff0000, v{44+4*r+d}")
    for r in range(2):
        b = 16 + 8*r
        sel = "op_sel_hi:[1,0]" if r == 0 else "op_sel:[0,1] op_sel_hi:[1,1]"
        for d in range(4):
            a.e(f"v_pk_mul_f32 {vr(b+2*d,2)}, {vr(b+2*d,2)}, v[34:35] {sel}")
    for r in range(2):
        b = 16 + 8*r
        for d in range(4):
            a.e(f"v_cvt_pk_bf16_f32 v{44+4*r+d}, v{b+2*d}, v{b+2*d+1}")
    a.e(f"s_mul_i32 s{S_T0}, s{S_W}, {2*1088}")
    a.e(f"s_add_u32 s{S_T0}, s{S_T0}, {L_LN}")
    a.e(f"v_lshl_add_u32 v2, v{V_LANE}, 4, s{S_T0}")
    a.e("ds_write_b128 v2, v[44:47]")
    a.e("ds_write_b128 v2, v[48:51] offset:1088")
    a.e("v_mov_b32 v40, v34")
    a.e("v_cvt_pk_bf16_f32 v41, -v32, -v32")
    a.e("v_mov_b32 v42, v35")
    a.e("v_cvt_pk_bf16_f32 v43, -v33, -v33")
    a.e(f"s_lshl_b32 s{S_T0}, s{S_I}, 7")
    a.e(f"s_lshl_b32 s{S_T1}, s{S_J}, 3")
    a.e(f"s_add_u32 s{S_T0}, s{S_T0}, s{S_T1}")
    a.e(f"s_lshl_b32 s{S_T1}, s{S_W}, 1")
    a.e(f"s_add_u32 s{S_T1}, s{S_T0}, s{S_T1}")
    a.e(f"s_lshl_b32 s{S_T1}, s{S_T1}, 3")
    a.e(f"s_add_u32 s{S_T1}, s{S_T1}, {WS_STATS}")
    a.e(f"v_mov_b32 v3, s{S_T1}")
    a.e(f"s_mov_b64 s[{S_EXEC}:{S_EXEC+1}], exec")
    a.e("s_mov_b64 exec, 1")
    a.vm(f"global_store_dwordx4 v3, v[40:43], s[{P_WS}:{P_WS+1}] sc1", "pubA")
    a.e(f"s_mov_b64 exec, s[{S_EXEC}:{S_EXEC+1}]")
    a.e(f"v_bfe_u32 v2, v{V_LANE}, 2, 2")
    a.e(f"v_mul_u32_u24 v2, 1088, v2")
    a.e(f"v_lshrrev_b32 v3, 4, v{V_LANE}")
    a.e(f"v_lshl_add_u32 v2, v3, 5, v2")
    a.e(f"v_and_b32 v3, 3, v{V_LANE}")
    a.e(f"v_lshl_add_u32 v2, v3, 3, v2")
    a.e(f"s_lshl_b32 s{S_T1}, s{S_W}, 8")
    a.e(f"s_add_u32 s{S_T1}, s{S_T1}, {L_LN}")
    a.e(f"v_add_u32 v2, s{S_T1}, v2")
    a.e(f"s_lshl_b32 s{S_T0}, s{S_T0}, 10")
    a.e(f"s_lshl_b32 s{S_T1}, s{S_W}, 11")
    a.e(f"s_add_u32 s{S_T0}, s{S_T0}, s{S_T1}")
    a.e(f"s_add_u32 s{S_T0}, s{S_T0}, {WS_XT}")
    a.e(f"v_lshl_add_u32 v3, v{V_LANE}, 4, s{S_T0}")

def g1_reads(st, s):
    r = [f"ds_read_b128 {vr(fB(st,tt),4)}, v{G_BADDR+s} offset:{tt*4096}" for tt in range(2)]
    for ap in range(3):
        for h in range(2):
            r.append(f"ds_read_b64_tr_b16 {vr(fA(st,ap)+2*h,2)}, v{G_AADDR} offset:{s*3072 + h*768 + ap*32}")
    return r

def g1_mfmas(st, first):
    return [f"v_mfma_f32_32x32x16_bf16 {vr(acc(tt,ap),16)}, {vr(fA(st,ap),4)}, {vr(fB(st,tt),4)}, {'0' if first else vr(acc(tt,ap),16)}"
            for ap in range(3) for tt in range(2)]

def g1_main(a, hooks):
    st = 0
    for stage in range(8):
        for s in range(4):
            last = (stage == 7 and s == 3)
            a.e("s_waitcnt lgkmcnt(0)")
            mf = g1_mfmas(st, stage == 0 and s == 0)
            slots = {i: [] for i in range(6)}
            if stage == 0 and OPT.get("csg", 1):
                lab = a.label("nocs")
                a.e(f"s_or_b32 s{S_T0}, s{S_TW}, s{S_CSH}")
                a.e(f"s_cmp_lg_u32 s{S_T0}, 0")
                a.e(f"s_cbranch_scc1 {lab}")
                for ap in range(3):
                    a.e(f"v_mfma_f32_32x32x16_bf16 {ar(16*ap,16)}, v[168:171], {vr(fA(st,ap),4)}, {'0' if s == 0 else ar(16*ap,16)}")
                a.e(f"{lab}:")
            if s == 3 and not last:
                d = SLOT if (stage + 1) % 3 != 0 else -2 * SLOT
                slots[0] += [f"v_add_u32 v{G_BADDR+q}, {d & 0xffffffff}, v{G_BADDR+q}" for q in range(4)]
                slots[0] += [f"v_add_u32 v{G_AADDR}, {d & 0xffffffff}, v{G_AADDR}"]
                for hk in hooks.get(("pre", stage), []): slots[1].append(hk)
                slots[1].append(lambda a, stage=stage: a.bar(f"s{stage}"))
                rd = g1_reads(st ^ 1, 0)
                slots[1] += rd[:3]; slots[2] += rd[3:6]; slots[3] += rd[6:]
                for hk in hooks.get(("post", stage), []): slots[4].append(hk)
            elif last:
                slots[0].append(lambda a: a.bar("rf"))
            else:
                rd = g1_reads(st ^ 1, s + 1)
                slots[0] += rd[:3]; slots[1] += rd[3:6]; slots[2] += rd[6:]
            sh = hooks.get(("shadow", stage, s), [])
            for k, x in enumerate(sh):
                slots[2 + (k * 4) // len(sh)].append(x)
            sched(a, mf, slots)
            st ^= 1
        stamp(a, f"gs{stage}")

CSL = [152, 156, 168]
def cs_store_g(a):
    lab = a.label("nocsst")
    a.e(f"s_or_b32 s{S_T0}, s{S_TW}, s{S_CSH}")
    a.e(f"s_cmp_lg_u32 s{S_T0}, 0")
    a.e(f"s_cbranch_scc1 {lab}")
    for ap in range(3):
        a.e(f"v_accvgpr_read_b32 v{8+ap}, a{16*ap}")
    a.e(f"s_mul_i32 s{S_T0}, s{S_J}, 6")
    a.e(f"s_mul_i32 s{S_T1}, s{S_FW}, 3")
    a.e(f"s_add_u32 s{S_T0}, s{S_T0}, s{S_T1}")
    a.e(f"s_lshl_b32 s{S_T0}, s{S_T0}, 10")
    a.e(f"s_lshl_b32 s{S_T1}, s{S_I}, 2")
    a.e(f"s_add_u32 s{S_T0}, s{S_T0}, s{S_T1}")
    a.e(f"s_add_u32 s{S_T0}, s{S_T0}, {WS_CS}")
    a.e(f"v_lshl_add_u32 v6, v{V_LANE}, 5, s{S_T0}")
    a.e(f"s_mov_b64 s[{S_EXEC}:{S_EXEC+1}], exec")
    a.e("s_mov_b64 exec, 0xffffffff")
    for ap in range(3):
        a.e(f"global_store_dword v6, v{8+ap}, s[{P_WS}:{P_WS+1}] offset:{1024*ap} sc1")
    a.e(f"s_mov_b64 exec, s[{S_EXEC}:{S_EXEC+1}]")
    a.e(f"{lab}:")

def g1_post_loads(a):
    a.e(f"s_lshl_b32 s{S_T0}, s{S_I}, 7")
    a.e(f"s_lshl_b32 s{S_T1}, s{S_TW}, 6")
    a.e(f"s_add_u32 s{S_T0}, s{S_T0}, s{S_T1}")
    a.e(f"s_lshl_b32 s{S_T0}, s{S_T0}, 3")
    a.e(f"s_add_u32 s{S_T0}, s{S_T0}, {WS_STATS}")
    a.e(f"v_and_b32 v6, 31, v{V_LANE}")
    a.e(f"v_lshl_add_u32 v7, v6, 3, s{S_T0}")
    a.vm(f"global_load_dwordx2 v[2:3], v7, s[{P_WS}:{P_WS+1}] sc1", "post")
    a.vm(f"global_load_dwordx2 v[4:5], v7, s[{P_WS}:{P_WS+1}] offset:256 sc1", "post")
    a.e(f"s_mul_i32 s{S_T0}, s{S_J}, 6")
    a.e(f"s_mul_i32 s{S_T1}, s{S_FW}, 3")
    a.e(f"s_add_u32 s{S_T0}, s{S_T0}, s{S_T1}")
    a.e(f"s_lshl_b32 s{S_T0}, s{S_T0}, 10")
    a.e(f"s_add_u32 s{S_T0}, s{S_T0}, {WS_CS}")
    a.e(f"v_lshl_add_u32 v7, v6, 5, s{S_T0}")
    a.e(f"v_lshrrev_b32 v8, 5, v{V_LANE}")
    a.e(f"v_lshl_add_u32 v7, v8, 4, v7")
    for ap in range(3):
        a.vm(f"global_load_dwordx4 {vr(CSL[ap],4)}, v7, s[{P_WS}:{P_WS+1}] offset:{1024*ap} sc1", "post")

def g1_corr_prep():
    r = [lambda a: a.vm_wait("post")]
    e = r.append
    for b in CSL:
        e(f"v_add_f32 v{b}, v{b}, v{b+2}")
        e(f"v_add_f32 v{b+1}, v{b+1}, v{b+3}")
    for b in CSL: e(f"v_add_f32 v{b}, v{b}, v{b+1}")
    for b in CSL: e(f"v_mov_b32 v{b+1}, v{b}")
    e(f"v_cmp_gt_u32 vcc, 32, v{V_LANE}")
    e("v_nop")
    for b in CSL: e(f"v_permlane32_swap_b32 v{b}, v{b+1}")
    for b in CSL: e(f"v_add_f32 v{b}, v{b}, v{b+1}")
    for b in CSL: e(f"v_cvt_pk_bf16_f32 v{b+1}, v{b}, v{b}")
    for b in CSL: e(f"v_lshlrev_b32 v{b+2}, 16, v{b+1}")
    for b in CSL: e(f"v_sub_f32 v{b+2}, v{b}, v{b+2}")
    for b in CSL: e(f"v_cvt_pk_bf16_f32 v{b}, v{b}, v{b+2}")
    for b in CSL:
        e(f"v_cndmask_b32 v{b}, 0, v{b}, vcc")
        e(f"v_mov_b32 v{b+1}, 0"); e(f"v_mov_b32 v{b+2}, 0"); e(f"v_mov_b32 v{b+3}, 0")
    for tt in range(2):
        e(f"v_cndmask_b32 v{8+4*tt}, 0, v{3+2*tt}, vcc")
        for d in range(1, 4): e(f"v_mov_b32 v{8+4*tt+d}, 0")
    return r

def g1_corr_mfma(a):
    a.e("s_nop 1")
    for ap in range(3):
        for tt in range(2):
            a.e(f"v_mfma_f32_32x32x16_bf16 {vr(acc(tt,ap),16)}, {vr(CSL[ap],4)}, {vr(8+4*tt,4)}, {vr(acc(tt,ap),16)}")

C1 = -2.0 * math.sqrt(2.0 / math.pi) * math.log2(math.e)
C2 = C1 * 0.044715
def g1_epilogue(a):
    for tt in range(2):
        r_, b = 2 + 2*tt, 160 + 4*tt
        a.e(f"v_mul_f32 v{b+2}, v{r_}, v{r_}")
        a.e(f"v_mul_f32 v{b}, {fhex(C1)}, v{r_}")
        a.e(f"v_mul_f32 v{b+1}, {fhex(C2)}, v{r_}")
        a.e(f"v_mul_f32 v{b+1}, v{b+1}, v{b+2}")
        a.e(f"v_rcp_f32 v{b+2}, v{b+2}")
    a.e(f"s_lshl_b32 s{S_T0}, s{S_I}, 2")
    a.e(f"s_lshl_b32 s{S_T1}, s{S_TW}, 1")
    a.e(f"s_add_u32 s{S_T0}, s{S_T0}, s{S_T1}")
    a.e(f"s_mul_i32 s{S_T0}, s{S_T0}, 86")
    a.e(f"s_lshl_b32 s{S_T1}, s{S_U0}, 1")
    a.e(f"s_add_u32 s{S_T0}, s{S_T0}, s{S_T1}")
    a.e(f"s_mul_i32 s{S_T1}, s{S_FW}, 3")
    a.e(f"s_add_u32 s{S_T0}, s{S_T0}, s{S_T1}")
    a.e(f"s_lshl_b32 s{S_T0}, s{S_T0}, 10")
    a.e(f"s_add_u32 s{S_T0}, s{S_T0}, {WS_H}")
    a.e(f"v_lshl_add_u32 v168, v{V_LANE}, 4, s{S_T0}")
    a.e(f"v_add_u32 v169, {86*1024}, v168")
    a.e(f"s_sub_u32 s{S_T2}, s{S_NU}, s{S_T1}")
    a.e(f"s_lshl_b32 s{S_T0}, s{S_WG}, 12")
    a.e(f"s_add_u32 s{S_T0}, s{S_T0}, {WS_DUMMY}")
    a.e(f"v_lshl_add_u32 v170, v{V_LANE}, 4, s{S_T0}")
    a.e(f"s_cmp_gt_u32 s{S_T2}, 1")
    a.e(f"s_cselect_b64 s[74:75], -1, 0")
    a.e(f"v_cndmask_b32 v171, v170, v169, s[74:75]")
    a.e(f"v_cndmask_b32 v170, v170, v168, s[74:75]")
    T, Gq, X = 112, 120, 128
    for ap in range(3):
        for tt in range(2):
            c = acc(tt, ap); KK = 160 + 4*tt; S2 = 162 + 4*tt
            for p in range(4):
                a.e(f"v_pk_mul_f32 {vr(T+2*p,2)}, {vr(c+2*p,2)}, {vr(c+2*p,2)}")
            for p in range(4):
                a.e(f"v_pk_fma_f32 {vr(T+2*p,2)}, {vr(T+2*p,2)}, {vr(KK,2)}, {vr(KK,2)} op_sel:[0,1,0] op_sel_hi:[1,1,0]")
            for p in range(4):
                a.e(f"v_pk_mul_f32 {vr(T+2*p,2)}, {vr(T+2*p,2)}, {vr(c+2*p,2)}")
            for p in range(8):
                a.e(f"v_exp_f32 v{T+p}, v{T+p}")
            for p in range(4):
                a.e(f"v_pk_mul_f32 {vr(Gq+2*p,2)}, {vr(c+2*p,2)}, {vr(c+8+2*p,2)}")
            for p in range(4):
                a.e(f"v_pk_fma_f32 {vr(T+2*p,2)}, {vr(T+2*p,2)}, {vr(S2,2)}, {vr(S2,2)} op_sel_hi:[1,0,0]")
            for p in range(8):
                a.e(f"v_rcp_f32 v{T+p}, v{T+p}")
            a.e("s_nop 0")
            for p in range(4):
                a.e(f"v_pk_mul_f32 {vr(Gq+2*p,2)}, {vr(Gq+2*p,2)}, {vr(T+2*p,2)}")
            O = X + 4 * ((2 * ap + tt) % 2)
            for p in range(4):
                a.e(f"v_cvt_pk_bf16_f32 v{O+p}, v{Gq+2*p}, v{Gq+2*p+1}")
            adr = (168 + tt) if ap == 0 else (170 + tt)
            a.vm(f"global_store_dwordx4 v{adr}, {vr(O,4)}, s[{P_WS}:{P_WS+1}] offset:{1024*ap} sc1", "pubH")

V_WDOFF, V_WDL, V_WDA = 172, 173, 166
def wd_setup(a, t0, voff=V_WDOFF):
    mk_srd(a, SRD_WD, P_WD, 1376 * 1024)
    a.e(f"s_mul_i32 s{S_WDO}, s{S_W}, {352 * 1024}")
    a.e(f"s_lshl_b32 s{S_T0}, s{S_NT}, 7")
    a.e(f"s_add_u32 s{S_WDO}, s{S_WDO}, s{S_T0}")
    t = t0
    a.e(f"v_lshrrev_b32 v{t}, 3, v{V_LANE}")
    a.e(f"v_and_b32 v{t+1}, 7, v{V_LANE}")
    a.e(f"v_bfe_u32 v{t+2}, v{t}, 1, 1")
    a.e(f"v_lshlrev_b32 v{t+2}, 2, v{t+2}")
    a.e(f"v_xor_b32 v{t+1}, v{t+1}, v{t+2}")
    a.e(f"v_lshlrev_b32 v{t+1}, 4, v{t+1}")
    a.e(f"v_lshl_add_u32 v{voff}, v{t}, 10, v{t+1}")

def wd_lane_parts(a, t0):
    t = t0
    a.e(f"v_lshrrev_b32 v{t}, 4, v{V_LANE}")
    a.e(f"v_and_b32 v{t+1}, 1, v{t}")
    a.e(f"v_lshrrev_b32 v{t}, 1, v{t}")
    a.e(f"v_bfe_u32 v{t+2}, v{V_LANE}, 2, 2")
    a.e(f"v_lshl_add_u32 v{t+2}, v{t}, 2, v{t+2}")
    a.e(f"v_lshlrev_b32 v{t+2}, 7, v{t+2}")
    a.e(f"v_lshl_add_u32 v{t+2}, v{t+1}, 5, v{t+2}")
    a.e(f"v_and_b32 v{t+1}, 3, v{V_LANE}")
    a.e(f"v_lshl_add_u32 v{t+2}, v{t+1}, 3, v{t+2}")
    a.e(f"v_bfe_u32 v{t+1}, v{V_LANE}, 3, 1")
    a.e(f"v_lshlrev_b32 v{t+1}, 6, v{t+1}")
    a.e(f"v_add_u32 v{V_WDL}, v{t+2}, v{t+1}")
    a.e(f"v_xor_b32 v{t+1}, 64, v{t+1}")
    a.e(f"v_add_u32 v{V_WDL+1}, v{t+2}, v{t+1}")

def wd_groups(rnd, voff=V_WDOFF):
    lb, wsz, ks0, n = WD[rnd]
    out = []
    for q in range(2 * n):
        pre = [f"s_mul_i32 s{S_WDL}, s{S_W}, {wsz}", f"s_add_u32 s{S_WDS}, s{S_WDO}, {ks0*16384}"] if q == 0 else []
        out.append(Dma(pre, f"s_add_u32 m0, s{S_WDL}, {lb + q*1024}",
                       (f"buffer_load_dwordx4 v{voff}, s[{SRD_WD}:{SRD_WD+3}], s{S_WDS} offen lds", f"wd{rnd}"),
                       [f"s_add_u32 s{S_WDS}, s{S_WDS}, 8192"]))
    return out

def wd_addr(rnd):
    lb, wsz, ks0, n = WD[rnd]
    return [f"s_mul_i32 s{S_T0}, s{S_W}, {wsz}", f"s_add_u32 s{S_T0}, s{S_T0}, {lb}",
            f"v_add_u32 v{V_WDA}, s{S_T0}, v{V_WDL}", f"v_add_u32 v{V_WDA+1}, s{S_T0}, v{V_WDL+1}"]

def wd_tr_agpr(rnd):
    lb, wsz, ks0, n = WD[rnd]
    return [f"ds_read_b64_tr_b16 {ar(wd_areg(ks0+k) + 4*t + 2*h, 2)}, v{V_WDA+t} offset:{k*2048 + h*1024}"
            for k in range(n) for t in range(2) for h in range(2)]

G2_ACC, G2_H, G2_RING, G2_W = 16, 80, 8, 144
V_HA = 160
def acc2(t, tt): return G2_ACC + 16 * (2 * t + tt)

def h_setup(a):
    a.e(f"s_lshl_b32 s{S_T0}, s{S_I}, 2")
    a.e(f"s_lshl_b32 s{S_T1}, s{S_TH}, 1")
    a.e(f"s_add_u32 s{S_T0}, s{S_T0}, s{S_T1}")
    a.e(f"s_mul_i32 s{S_T0}, s{S_T0}, 86")
    a.e(f"s_mul_i32 s{S_T1}, s{S_W}, 22")
    a.e(f"s_add_u32 s{S_T0}, s{S_T0}, s{S_T1}")
    a.e(f"s_lshl_b32 s{S_T0}, s{S_T0}, 10")
    a.e(f"s_add_u32 s{S_T0}, s{S_T0}, {WS_H}")
    a.e(f"v_lshl_add_u32 v{V_HA}, v{V_LANE}, 4, s{S_T0}")
    a.e(f"v_add_u32 v{V_HA+1}, {86*1024}, v{V_HA}")
    a.e(f"s_movk_i32 s66, {4*1024}")
    a.e(f"s_movk_i32 s67, {5*1024}")
    a.e(f"s_cmp_eq_u32 s{S_W}, 3")
    a.e(f"s_cselect_b32 s66, {3*1024}, s66")
    a.e(f"s_cselect_b32 s67, {3*1024}, s67")

def h_load(q):
    R = G2_H + 8 * (q % G2_RING)
    it = []
    if q < 20:
        if q % 4 == 0 and q > 0:
            it += [f"v_add_u32 v{V_HA}, 4096, v{V_HA}", f"v_add_u32 v{V_HA+1}, 4096, v{V_HA+1}"]
        off = (q % 4) * 1024
        it += [(f"global_load_dwordx4 {vr(R,4)}, v{V_HA}, s[{P_WS}:{P_WS+1}] offset:{off} sc1", f"h{q}"),
               (f"global_load_dwordx4 {vr(R+4,4)}, v{V_HA+1}, s[{P_WS}:{P_WS+1}] offset:{off} sc1", f"h{q}")]
    else:
        sreg = 66 + (q - 20)
        it += [f"v_add_u32 v162, s{sreg}, v{V_HA}", f"v_add_u32 v163, s{sreg}, v{V_HA+1}",
               (f"global_load_dwordx4 {vr(R,4)}, v162, s[{P_WS}:{P_WS+1}] sc1", f"h{q}"),
               (f"global_load_dwordx4 {vr(R+4,4)}, v163, s[{P_WS}:{P_WS+1}] sc1", f"h{q}")]
    return it

def hy_poll_issue(a):
    a.e(f"s_lshl_b32 s{S_T0}, s{S_I}, 6")
    a.e(f"s_add_u32 s{S_T0}, s{S_T0}, {WS_FLAG_H}")
    a.e(f"v_and_b32 v8, 15, v{V_LANE}")
    a.e(f"v_lshl_add_u32 v8, v8, 2, s{S_T0}")
    a.e(f"s_lshl_b32 s{S_T0}, s{S_NT}, 7")
    a.e(f"s_add_u32 s{S_T0}, s{S_T0}, {WS_FLAG_Y}")
    a.e(f"v_and_b32 v9, 31, v{V_LANE}")
    a.e(f"v_lshl_add_u32 v9, v9, 2, s{S_T0}")
    a.vm(f"global_load_dword v10, v8, s[{P_WS}:{P_WS+1}] sc1", "ph")
    a.vm(f"global_load_dword v11, v9, s[{P_WS}:{P_WS+1}] sc1", "ph")

def hy_poll_check(a):
    top, ok = a.label("poll"), a.label("pollok")
    a.vm_wait("ph")
    a.e(f"s_mov_b32 s{S_SPIN}, 0")
    a.e(f"{top}:")
    a.e(f"v_cmp_ne_u32 vcc, s{S_TAG}, v10")
    a.e(f"v_cmp_ne_u32 s[74:75], s{S_TAG}, v11")
    a.e("s_nop 1")
    a.e("s_or_b64 vcc, vcc, s[74:75]")
    spin_tail(a, top, ok, [f"global_load_dword v10, v8, s[{P_WS}:{P_WS+1}] sc1", f"global_load_dword v11, v9, s[{P_WS}:{P_WS+1}] sc1"], OPT.get("hsleep", 8))

def res_reads(q):
    for rnd in (4, 5, 6):
        lb, wsz, ks0, n = WD[rnd]
        if ks0 <= q < ks0 + n:
            pre = wd_addr(rnd) if q == ks0 else []
            B = G2_W + 8 * (q % 2)
            return pre + [f"ds_read_b64_tr_b16 {vr(B + 4*t + 2*h, 2)}, v{V_WDA+t} offset:{(q-ks0)*2048 + h*1024}" for t in range(2) for h in range(2)]

def g2_main(a, hooks, n0):
    la = OPT.get("g2la", 7)
    nxt = n0
    for q in range(22):
        a.vm_wait(f"h{q}")
        if q >= 8:
            a.e("s_waitcnt lgkmcnt(0)")
        stamp(a, f"g2q{q}")
        R = G2_H + 8 * (q % G2_RING)
        mf = []
        for t in range(2):
            A = ar(wd_areg(q) + 4*t, 4) if wd_in_agpr(q) else vr(G2_W + 8*(q % 2) + 4*t, 4)
            for tt in range(2):
                mf.append(f"v_mfma_f32_32x32x16_bf16 {vr(acc2(t,tt),16)}, {A}, {vr(R+4*tt,4)}, {'0' if q == 0 else vr(acc2(t,tt),16)}")
        slots = {i: [] for i in range(4)}
        if q + 1 < 22 and not wd_in_agpr(q + 1):
            rr = res_reads(q + 1)
            if q + 1 == 8: rr = [lambda a: a.vm_wait("wd4", "wd5")] + rr
            slots[0] += rr
        k = 0
        while nxt < 22 and nxt - q <= la and k < 2 and nxt < q + G2_RING:
            slots[1 if k == 0 else 3].append(h_load(nxt)); nxt += 1; k += 1
        for hk in hooks.get(q, []): slots[2].append(hk)
        sched(a, mf, slots)

V_OUT = 14
V_X = 168
def x_loads(a):
    a.e(f"s_lshl_b32 s{S_T0}, s{S_I}, 7")
    a.e(f"s_lshl_b32 s{S_T1}, s{S_TH}, 6")
    a.e(f"s_add_u32 s{S_T0}, s{S_T0}, s{S_T1}")
    a.e(f"s_and_b32 s{S_T1}, s{S_W}, 1")
    a.e(f"s_lshl_b32 s{S_T1}, s{S_T1}, 5")
    a.e(f"s_add_u32 s{S_T0}, s{S_T0}, s{S_T1}")
    a.e(f"s_lshl_b32 s{S_T0}, s{S_T0}, 10")
    a.e(f"s_lshl_b32 s{S_T1}, s{S_NT}, 7")
    a.e(f"s_add_u32 s{S_T0}, s{S_T0}, s{S_T1}")
    a.e(f"s_lshr_b32 s{S_T1}, s{S_W}, 1")
    a.e(f"s_lshl_b32 s{S_T1}, s{S_T1}, 6")
    a.e(f"s_add_u32 s{S_T0}, s{S_T0}, s{S_T1}")
    a.e(f"v_and_b32 v12, 31, v{V_LANE}")
    a.e(f"v_lshlrev_b32 v12, 10, v12")
    a.e(f"v_lshrrev_b32 v13, 5, v{V_LANE}")
    a.e(f"v_lshl_add_u32 v12, v13, 3, v12")
    a.e(f"v_add_u32 v{V_OUT}, s{S_T0}, v12")
    for q in range(4):
        a.vm(f"global_load_dwordx2 {vr(V_X+2*q,2)}, v{V_OUT}, s[{P_X}:{P_X+1}] offset:{16*q}", "fx")
    a.e(f"v_lshl_add_u32 v{V_OUT}, v13, 3, v{V_OUT}")

def y_loads(a):
    a.e(f"s_lshl_b32 s{S_T0}, s{S_I}, 1")
    a.e(f"s_add_u32 s{S_T0}, s{S_T0}, s{S_TH}")
    a.e(f"s_lshl_b32 s{S_T0}, s{S_T0}, 16")
    a.e(f"s_lshl_b32 s{S_T1}, s{S_NT}, 13")
    a.e(f"s_add_u32 s{S_T0}, s{S_T0}, s{S_T1}")
    a.e(f"s_add_u32 s{S_T0}, s{S_T0}, {WS_Y}")
    a.e(f"v_lshl_add_u32 v10, v0, 4, s{S_T0}")
    a.e(f"v_add_u32 v11, 4096, v10")
    a.vm(f"global_load_dwordx4 v[2:5], v10, s[{P_WS}:{P_WS+1}] sc1", "fy")
    a.vm(f"global_load_dwordx4 v[6:9], v11, s[{P_WS}:{P_WS+1}] sc1", "fy")

def y_check(a):
    top, ok = a.label("ychk"), a.label("yok")
    a.vm_wait("fy")
    a.e(f"s_mov_b32 s{S_SPIN}, 0")
    a.e(f"{top}:")
    a.e("v_max3_u32 v12, v2, v3, v4")
    a.e("v_max3_u32 v13, v5, v6, v7")
    a.e("v_max3_u32 v12, v12, v8, v9")
    a.e("v_max_u32 v12, v12, v13")
    a.e("v_cmp_eq_u32 vcc, -1, v12")
    a.e("s_nop 1")
    spin_tail(a, top, ok, [f"global_load_dwordx4 v[2:5], v10, s[{P_WS}:{P_WS+1}] sc1", f"global_load_dwordx4 v[6:9], v11, s[{P_WS}:{P_WS+1}] sc1"])

def final_prep(a):
    a.e(f"v_lshlrev_b32 v162, 4, v{V_LANE}")
    a.e(f"s_mul_i32 s{S_T0}, s{S_W}, {3*4096}")
    a.e(f"v_add_u32 v163, s{S_T0}, v162")
    a.e(f"v_lshrrev_b32 v12, 3, v0")
    a.e(f"v_mul_u32_u24 v12, 192, v12")
    a.e(f"v_and_b32 v13, 7, v0")
    a.e(f"v_lshl_add_u32 v164, v13, 4, v12")
    a.e(f"v_add_u32 v164, {L_YB}, v164")
    a.e(f"v_lshrrev_b32 v12, 4, v{V_LANE}")
    a.e(f"v_and_b32 v13, 1, v12")
    a.e(f"v_lshrrev_b32 v12, 1, v12")
    a.e(f"v_bfe_u32 v165, v{V_LANE}, 2, 2")
    a.e(f"v_lshl_add_u32 v165, v12, 2, v165")
    a.e(f"v_mul_u32_u24 v165, 192, v165")
    a.e(f"v_lshl_add_u32 v165, v13, 5, v165")
    a.e(f"v_and_b32 v13, 3, v{V_LANE}")
    a.e(f"v_lshl_add_u32 v165, v13, 3, v165")
    a.e(f"s_lshr_b32 s{S_T0}, s{S_W}, 1")
    a.e(f"s_mul_i32 s{S_T0}, s{S_T0}, {32*192}")
    a.e(f"s_and_b32 s{S_T1}, s{S_W}, 1")
    a.e(f"s_lshl_b32 s{S_T1}, s{S_T1}, 6")
    a.e(f"s_add_u32 s{S_T0}, s{S_T0}, s{S_T1}")
    a.e(f"s_add_u32 s{S_T0}, s{S_T0}, {L_YB}")
    a.e(f"v_add_u32 v165, s{S_T0}, v165")

def red_ref(u, q):
    return 162, RED_UNIT[u] + q * 1024

def final(a):
    OWN, XF = 80, 96
    P = 112
    end = a.label("redend")
    labs = [a.label("redw") for _ in range(4)]
    for w in range(1, 4):
        a.e(f"s_cmp_eq_u32 s{S_W}, {w}")
        a.e(f"s_cbranch_scc1 {labs[w]}")
    for w in range(4):
        a.e(f"{labs[w]}:")
        a.e("s_nop 9")
        for o in range(4):
            if o == w: continue
            u = 3*o + ((w - o - 1) & 3)
            for q in range(4):
                r_, off = red_ref(u, q)
                a.e(f"ds_write_b128 v{r_}, {vr(G2_ACC+16*o+4*q,4)} offset:{off}")
        for q in range(8):
            a.e(f"v_pk_mul_f32 {vr(OWN+2*q,2)}, {vr(G2_ACC+16*w+2*q,2)}, 1.0 op_sel_hi:[1,0]")
        if w < 3: a.e(f"s_branch {end}")
    a.e(f"{end}:")
    y_check(a)
    stamp(a, "fy")
    a.e("ds_write_b128 v164, v[2:5]")
    a.e(f"ds_write_b128 v164, v[6:9] offset:{32*192}")
    a.vm_wait("fx")
    for q in range(8):
        a.e(f"v_lshlrev_b32 v{XF+2*q}, 16, v{V_X+q}")
        a.e(f"v_and_b32 v{XF+2*q+1}, 0xffff0000, v{V_X+q}")
    for q in range(8):
        a.e(f"v_pk_add_f32 {vr(OWN+2*q,2)}, {vr(OWN+2*q,2)}, {vr(XF+2*q,2)}")
    a.e("s_waitcnt lgkmcnt(0)")
    a.bar("fin")
    for q in range(4):
        a.e(f"ds_read_b64_tr_b16 {vr(2+2*q,2)}, v165 offset:{1536*q}")
    for sl in range(3):
        for q in range(4):
            a.e(f"ds_read_b128 {vr(P+16*sl+4*q,4)}, v163 offset:{4096*sl + 1024*q}")
    a.e("s_waitcnt lgkmcnt(12)")
    for q in range(8):
        a.e(f"v_lshlrev_b32 v{XF+2*q}, 16, v{2+q}")
        a.e(f"v_and_b32 v{XF+2*q+1}, 0xffff0000, v{2+q}")
    for q in range(8):
        a.e(f"v_pk_add_f32 {vr(OWN+2*q,2)}, {vr(OWN+2*q,2)}, {vr(XF+2*q,2)}")
    for sl in range(3):
        a.e(f"s_waitcnt lgkmcnt({8 - 4*sl})")
        for q in range(8):
            a.e(f"v_pk_add_f32 {vr(OWN+2*q,2)}, {vr(OWN+2*q,2)}, {vr(P+16*sl+2*q,2)}")
    for q in range(8):
        a.e(f"v_cvt_pk_bf16_f32 v{2+q}, v{OWN+2*q}, v{OWN+2*q+1}")
    a.e("s_nop 1")
    for p in range(2):
        a.e(f"v_permlane32_swap_b32 v{2+4*p}, v{4+4*p}")
        a.e(f"v_permlane32_swap_b32 v{3+4*p}, v{5+4*p}")
    for p in range(2):
        a.vm(f"global_store_dwordx4 v{V_OUT}, {vr(2+4*p,4)}, s[{P_OUT}:{P_OUT+1}] offset:{32*p} nt", "out")


def role_g(a):
    if OPT.get("prio", 1): a.e("s_setprio 1")
    g_setup(a)
    a.e("s_waitcnt lgkmcnt(0)")
    a.e(f"s_mov_b32 s{S_ROLE}, 0")
    a.vm("global_load_dwordx4 v[44:47], v7, s[16:17]", "ln")
    a.vm("global_load_dwordx4 v[48:51], v7, s[16:17] offset:1024", "ln")
    epoch_load(a, 3, 6)
    stamp(a, 0, real=True); stamp(a, 1)
    epoch_finish(a, 6)
    ln_first(a)
    stamp(a, "ln")
    a.e("s_waitcnt lgkmcnt(0)")
    a.bar("b0")
    stamp(a, "b0")
    for x in g1_reads(0, 0)[:0]: a.e(x)
    for q in range(2):
        a.e(f"ds_read_b64_tr_b16 v[{8+4*q}:{9+4*q}], v2 offset:{128*q}")
        a.e(f"ds_read_b64_tr_b16 v[{10+4*q}:{11+4*q}], v2 offset:{128*q + 4*1088}")
    for x in g1_reads(0, 0): a.e(x)
    a.e("s_waitcnt lgkmcnt(8)")
    a.vm(f"global_store_dwordx4 v3, v[8:11], s[{P_WS}:{P_WS+1}] sc1", "pubA")
    a.vm(f"global_store_dwordx4 v3, v[12:15], s[{P_WS}:{P_WS+1}] offset:1024 sc1", "pubA")
    PS = OPT.get("pubstage", 2)
    def bump(a):
        lab = a.label("nobump")
        a.e(f"s_or_b32 s{S_T0}, s{S_WG}, s{S_W}")
        a.e(f"s_cmp_lg_u32 s{S_T0}, 0")
        a.e(f"s_cbranch_scc1 {lab}")
        a.e(f"s_add_u32 s{S_T0}, s{S_EP}, 1")
        a.e("v_mov_b32 v6, 0")
        a.e(f"v_mov_b32 v7, s{S_T0}")
        a.e(f"s_mov_b64 s[{S_EXEC}:{S_EXEC+1}], exec")
        a.e("s_mov_b64 exec, 1")
        a.e(f"global_store_dword v6, v7, s[{P_WS}:{P_WS+1}] sc1")
        a.e(f"s_mov_b64 exec, s[{S_EXEC}:{S_EXEC+1}]")
        a.e(f"{lab}:")
    def chk(a):
        stamp(a, "chk0")
        ln_poll_check(a, 165, 152)
        stamp(a, "chk1")
        bump(a)
        g1_post_loads(a)
    if OPT.get("csg", 1):
        for r_ in range(4): a.e(f"v_mov_b32 v{168+r_}, 0x3f803f80")
    def pre_pub(a):
        if OPT.get("csg", 1):
            a.e("s_waitcnt vmcnt(0)"); a.vmq = []
        else:
            a.vm_wait("pubA")
    hooks = {("pre", PS): [pre_pub],
             ("post", PS): [lambda a: flag_store(a, WS_FLAG_LN, idx_ln, 6, 7)],
             ("post", OPT.get("pollstage", 5)): [lambda a: ln_poll_issue(a, 165, 152)],
             ("post", 6): [chk],
             ("shadow", 7, 2): g1_corr_prep()}
    if OPT.get("csg", 1):
        hooks[("shadow", 1, 0)] = [cs_store_g]
    rw = Rec(a); wd_setup(rw, 6); wd_lane_parts(rw, 6)
    hooks[("shadow", 4, 1)] = [o[1] for o in rw.ops]
    g1_main(a, hooks)
    stamp(a, "loop")
    if OPT.get("gprio2") is not None: a.e(f"s_setprio {OPT['gprio2']}")
    g1_corr_mfma(a)
    r = Rec(a)
    g1_epilogue(r)
    replay(a, r.ops, [], every=16, start=34)
    stamp(a, "epi")
    h_setup(a)
    a.vm_wait("pubH")
    a.bar("k")
    stamp(a, "bk")
    flag_store(a, WS_FLAG_H, idx_h, 6, 7)
    flag_store(a, WS_FLAG_Y, idx_y, 6, 7)
    stamp(a, "hpub")
    for x in wd_addr(1) + wd_tr_agpr(1) + wd_addr(2) + wd_tr_agpr(2): a.e(x)
    a.e("s_waitcnt lgkmcnt(0)")
    for g in wd_groups(4) + wd_groups(5): emit(a, g)
    a.bar("p")
    hy_poll_issue(a)
    hy_poll_check(a)
    stamp(a, "hflag")
    N0 = OPT.get("g2n0", 4)
    for q in range(N0): emit(a, h_load(q))
    a.e("s_waitcnt lgkmcnt(0)")
    hk = {}
    def after_cd(a):
        a.bar("cd")
        for x in wd_addr(3) + wd_tr_agpr(3): a.e(x.replace(f"v{V_WDA+1}", "v13").replace(f"v{V_WDA}", "v12"))
    for q, f in ((OPT.get("cxq", 2), lambda a: a.bar("cx")), (OPT.get("cdq", 4), after_cd), (OPT.get("xld", 18), x_loads), (OPT.get("fprep", 19), final_prep), (OPT.get("yld", 13), y_loads), (17, lambda a: a.bar("rd"))):
        hk.setdefault(q, []).append(f)
    g2_main(a, hk, N0)
    stamp(a, "g2")
    final(a)
    stamp(a, "fin")
    a.e("s_waitcnt vmcnt(0)")
    stamp(a, 9, real=True)
    prof_store(a)
    a.e("s_endpgm")


C_XOFF, C_WOFF = 2, 6
C_AADDR = 9
C_P = 160
C_XT = 168
def c_setup(a):
    a.e(f"s_lshl_b32 s{S_T0}, s{S_I}, 7")
    a.e(f"s_lshl_b32 s{S_T1}, s{S_W}, 5")
    a.e(f"s_add_u32 s{S_T0}, s{S_T0}, s{S_T1}")
    a.e(f"s_lshl_b32 s{S_XW}, s{S_T0}, 10")
    a.e(f"s_lshl_b32 s{S_LX}, s{S_W}, 12")
    a.e(f"s_add_u32 s{S_KC}, s{S_I}, s{S_J}")
    a.e(f"s_and_b32 s{S_KC}, s{S_KC}, 7")
    a.e(f"s_mul_i32 s{S_WW}, s{S_W}, {16 * 2752}")
    a.e(f"s_lshl_b32 s{S_T0}, s{S_U0}, 6")
    a.e(f"s_add_u32 s{S_WW}, s{S_WW}, s{S_T0}")
    a.e(f"s_mul_i32 s{S_LW}, s{S_W}, 3072")
    a.e(f"v_lshrrev_b32 v12, 3, v{V_LANE}")
    a.e(f"v_and_b32 v13, 7, v{V_LANE}")
    a.e(f"v_lshrrev_b32 v14, 1, v12")
    a.e(f"v_xor_b32 v15, v14, v13")
    a.e(f"v_lshlrev_b32 v16, 4, v15")
    a.e(f"v_lshl_add_u32 v{C_XOFF}, v12, 10, v16")
    a.e(f"v_xor_b32 v17, 64, v{C_XOFF}")
    a.e(f"v_add_u32 v{C_XOFF+1}, 8192, v17")
    a.e(f"v_add_u32 v{C_XOFF+2}, 16384, v{C_XOFF}")
    a.e(f"v_add_u32 v{C_XOFF+3}, 16384, v{C_XOFF+1}")
    for q in range(3):
        a.e(f"v_add_u32 v12, {64*q}, v{V_LANE}")
        a.e(f"v_mul_u32_u24 v13, 5462, v12")
        a.e(f"v_lshrrev_b32 v13, 16, v13")
        a.e(f"v_mul_u32_u24 v14, 12, v13")
        a.e(f"v_sub_u32 v14, v12, v14")
        a.e(f"v_mul_u32_u24 v13, 2752, v13")
        a.e(f"v_lshl_add_u32 v{C_WOFF+q}, v14, 4, v13")

def stage_offsets():
    return [f"s_lshl_b32 s{S_XO}, s{S_KC}, 7", f"s_add_u32 s{S_XO}, s{S_XO}, s{S_XW}",
            f"s_mul_i32 s{S_WO}, s{S_KC}, {64 * 2752}", f"s_add_u32 s{S_WO}, s{S_WO}, s{S_WW}",
            f"s_add_u32 s{S_KC}, s{S_KC}, 1", f"s_and_b32 s{S_KC}, s{S_KC}, 7"]

def stage_dma(stage):
    S = (stage % 3) * SLOT; tag = f"st{stage}"
    out = []
    for q in range(4):
        out.append(Dma([], f"s_add_u32 m0, s{S_LX}, {S + L_X + q * 1024}", (f"buffer_load_dwordx4 v{C_XOFF+q}, s[{SRD_X}:{SRD_X+3}], s{S_XO} offen lds", tag)))
    for q in range(3):
        out.append(Dma([], f"s_add_u32 m0, s{S_LW}, {S + L_G + q * 1024}", (f"buffer_load_dwordx4 v{C_WOFF+q}, s[{SRD_WG}:{SRD_WG+3}], s{S_WO} offen lds", tag)))
        out.append(Dma([], f"s_add_u32 m0, s{S_LW}, {S + L_U + q * 1024}", (f"buffer_load_dwordx4 v{C_WOFF+q}, s[{SRD_WU}:{SRD_WU+3}], s{S_WO} offen lds", tag)))
    out[0] = stage_offsets() + list(out[0])
    return out

def cs_block(a):
    lab = a.label("nocs")
    a.e(f"s_cmp_lg_u32 s{S_CSH}, 0")
    a.e(f"s_cbranch_scc1 {lab}")
    FRG, ACC, ON = 64, 112, 60
    for r in range(4): a.e(f"v_mov_b32 v{ON+r}, 0x3f803f80")
    for s in range(4):
        for ap in range(3):
            for h in range(2):
                a.e(f"ds_read_b64_tr_b16 {vr(FRG+12*s+4*ap+2*h,2)}, v{C_AADDR} offset:{s*3072 + h*768 + ap*32}")
    a.e("s_waitcnt lgkmcnt(0)")
    for s in range(4):
        for ap in range(3):
            a.e(f"v_mfma_f32_32x32x16_bf16 {vr(ACC+16*ap,16)}, {vr(ON,4)}, {vr(FRG+12*s+4*ap,4)}, {'0' if s == 0 else vr(ACC+16*ap,16)}")
    a.e(f"s_mul_i32 s{S_T0}, s{S_J}, 6")
    a.e(f"s_mul_i32 s{S_T1}, s{S_FW}, 3")
    a.e(f"s_add_u32 s{S_T0}, s{S_T0}, s{S_T1}")
    a.e(f"s_lshl_b32 s{S_T0}, s{S_T0}, 10")
    a.e(f"s_lshl_b32 s{S_T1}, s{S_I}, 2")
    a.e(f"s_add_u32 s{S_T0}, s{S_T0}, s{S_T1}")
    a.e(f"s_add_u32 s{S_T0}, s{S_T0}, {WS_CS}")
    a.e(f"v_lshl_add_u32 v59, v{V_LANE}, 5, s{S_T0}")
    lab2 = a.label("nocsst")
    a.e(f"s_cmp_ge_u32 s{S_W}, 2")
    a.e(f"s_cbranch_scc1 {lab2}")
    a.e("s_nop 7")
    a.e(f"s_mov_b64 s[{S_EXEC}:{S_EXEC+1}], exec")
    a.e("s_mov_b64 exec, 0xffffffff")
    for ap in range(3):
        a.e(f"global_store_dword v59, v{ACC+16*ap}, s[{P_WS}:{P_WS+1}] offset:{1024*ap} sc1")
    a.e(f"s_mov_b64 exec, s[{S_EXEC}:{S_EXEC+1}]")
    a.e(f"{lab2}:")
    a.e(f"{lab}:")

def kgen_loads(a):
    a.e(f"s_lshl_b32 s{S_T0}, s{S_D}, 8")
    a.e(f"s_lshl_b32 s{S_T1}, s{S_MH}, 7")
    a.e(f"s_add_u32 s{S_T0}, s{S_T0}, s{S_T1}")
    a.e(f"v_lshl_add_u32 v12, v{V_LANE}, 1, s{S_T0}")
    for q, p in enumerate([P_ARE, P_AIM, P_BRE, P_BIM, P_CRE, P_CIM]):
        a.vm(f"global_load_ushort v{C_P+q}, v12, s[{p}:{p+1}]", "kp")
    a.e(f"s_lshl_b32 s{S_T0}, s{S_D}, 1")
    a.e(f"v_mov_b32 v13, s{S_T0}")
    a.vm(f"global_load_ushort v{C_P+6}, v13, s[{P_LDT}:{P_LDT+1}]", "kp")
    a.vm(f"global_load_ushort v{C_P+7}, v13, s[{P_DSK}:{P_DSK+1}]", "kp")

KS = 64
def kgen_prog():
    out = []; e = out.append
    P = C_P
    AL, BE, CO = 10, 11, 12
    Z1, Z2, Z4, Z8, Z256, Z512 = 14, 16, 18, 20, 22, 24
    A0, A1, B0, B1, C0, C1_, CB, D0, D1, DB0, DB1 = 26, 28, 30, 32, 34, 36, 38, 40, 42, 44, 46
    T = 48
    for q in range(8): e(f"v_lshlrev_b32 v{P+q}, 16, v{P+q}")
    e(f"v_mul_f32 v58, 0x3fb8aa3b, v{P+6}")
    e("v_exp_f32 v58, v58")
    e(f"v_mov_b32 v{A0}, 1.0")
    e(f"v_cvt_pk_bf16_f32 v58, v58, v58")
    e(f"v_mov_b32 v{A0+1}, 0")
    e(f"v_lshlrev_b32 v58, 16, v58")
    e(f"v_mul_f32 v{AL}, v58, v{P}"); e(f"v_mul_f32 v{BE}, v58, v{P+1}")
    e(f"v_mul_f32 v56, v58, v{P+2}"); e(f"v_mul_f32 v57, v58, v{P+3}")
    e(f"v_mul_f32 v{AL}, 0x3fb8aa3b, v{AL}"); e(f"v_mul_f32 v{BE}, 0.15915494, v{BE}")
    e(f"v_mul_f32 v{CO}, v{P+4}, v56"); e(f"v_mul_f32 v{CO+1}, v{P+4}, v57")
    e(f"v_fma_f32 v{CO}, -v{P+5}, v57, v{CO}"); e(f"v_fma_f32 v{CO+1}, v{P+5}, v56, v{CO+1}")
    items = [(Z1, 1, T), (Z8, 8, T+2), (Z256, 256, T+4), (B0, 128, T+6)]
    for d, p, t in items:
        e(f"v_mul_f32 v{t}, {fhex(float(p))}, v{AL}"); e(f"v_mul_f32 v{t+1}, {fhex(float(p))}, v{BE}")
    for d, p, t in items:
        e(f"v_exp_f32 v{t}, v{t}"); e(f"v_fract_f32 v{t+1}, v{t+1}")
    for d, p, t in items:
        e(f"v_cos_f32 v{d}, v{t+1}"); e(f"v_sin_f32 v{d+1}, v{t+1}")
    e("v_nop")
    for d, p, t in items:
        e(f"v_mul_f32 v{d}, v{d}, v{t}"); e(f"v_mul_f32 v{d+1}, v{d+1}, v{t}")
    def cm(d, x, y):
        return [f"v_mul_f32 v{d}, v{x}, v{y}", f"v_mul_f32 v{d+1}, v{x}, v{y+1}",
                f"v_fma_f32 v{d}, -v{x+1}, v{y+1}, v{d}", f"v_fma_f32 v{d+1}, v{x+1}, v{y}, v{d+1}"]
    def put(vec, pr):
        return [f"v_cvt_pk_bf16_f32 v{KS+vec}, v{pr}, {'-' if vec < 32 else ''}v{pr+1}"]
    for d, x, y in ((Z2, Z1, Z1), (Z512, Z256, Z256), (CB, CO, Z256), (Z4, Z2, Z2), (DB0, CO, Z512)):
        out += cm(d, x, y)
    sA = [('p', 32, A0)]; cur, oth = A0, A1
    for b in range(1, 16):
        sA += [('m', oth, cur, Z8), ('p', 32 + b, oth)]; cur, oth = oth, cur
    sB = [('p', 48, B0)]; cur, oth = B0, B1
    for b in range(17, 32):
        sB += [('m', oth, cur, Z8), ('p', 32 + b, oth)]; cur, oth = oth, cur
    sC = [('p', 0, CO)]; cur = CO
    for ee in range(1, 8):
        d = (C0, C1_)[ee % 2]; sC += [('m', d, cur, Z1), ('p', ee, d)]; cur = d
    sC += [('p', 8, CB), ('m', C0, CB, Z2), ('p', 9, C0), ('m', C1_, C0, Z2), ('p', 10, C1_), ('p', 12, C1_),
           ('m', C0, C1_, Z2), ('p', 13, C0), ('m', C1_, C0, Z2), ('p', 14, C1_)]
    sD = [('p', 16, DB0), ('m', D0, DB0, Z4), ('p', 17, D0), ('p', 20, D0), ('m', D1, D0, Z4), ('p', 21, D1),
          ('m', DB1, DB0, Z256), ('p', 18, DB1), ('m', D0, DB1, Z4), ('p', 19, D0), ('p', 22, D0), ('m', D1, D0, Z4), ('p', 23, D1)]
    prev, nxt = DB1, DB0
    for q in range(4):
        sD += [('m', nxt, prev, Z256), ('p', 24 + q, nxt), ('m', (D0, D1)[q % 2], nxt, Z8), ('p', 28 + q, (D0, D1)[q % 2])]
        prev, nxt = nxt, prev
    seqs = [sA, sB, sC, sD]; pos = [0]*4
    while any(pos[q] < len(seqs[q]) for q in range(4)):
        for q in range(4):
            if pos[q] < len(seqs[q]):
                st = seqs[q][pos[q]]; pos[q] += 1
                out += put(st[1], st[2]) if st[0] == 'p' else cm(st[1], st[2], st[3])
    return out

def kv_writes():
    pre = [f"s_mul_i32 s{S_T0}, s{S_CH}, {KV_CH}", f"s_lshl_b32 s{S_T1}, s{S_MH}, 8", f"s_add_u32 s{S_T0}, s{S_T0}, s{S_T1}",
           f"s_add_u32 s{S_T0}, s{S_T0}, {L_KV}", f"v_lshl_add_u32 v58, v{V_LANE}, 2, s{S_T0}"]
    return pre + [f"ds_write_b32 v58, v{KS+v} offset:{v*528}" for v in range(64) if v not in (11, 15)]

def wd_touch(a):
    a.e(f"s_mul_i32 s{S_T0}, s{S_WG}, 5504")
    a.e(f"s_lshl_b32 s{S_T1}, s{S_W}, 10")
    a.e(f"s_add_u32 s{S_T0}, s{S_T0}, s{S_T1}")
    a.e(f"v_lshl_add_u32 v52, v{V_LANE}, 4, s{S_T0}")
    mk_srd(a, SRD_WD, P_WD, 1376 * 1024)
    a.vm(f"buffer_load_dwordx4 v[136:139], v52, s[{SRD_WD}:{SRD_WD+3}], 0 offen", "pf")
    a.e(f"v_add_u32 v52, 4096, v52")
    a.vm(f"buffer_load_dwordx4 v[136:139], v52, s[{SRD_WD}:{SRD_WD+3}], 0 offen", "pf")

def y_clear(a):
    a.e(f"s_and_b32 s{S_T0}, s{S_WG}, 7")
    a.e(f"s_lshr_b32 s{S_T1}, s{S_WG}, 3")
    a.e(f"s_lshl_b32 s{S_T0}, s{S_T0}, 6")
    a.e(f"s_lshl_b32 s{S_T1}, s{S_T1}, 1")
    a.e(f"s_add_u32 s{S_T0}, s{S_T0}, s{S_T1}")
    a.e(f"s_lshl_b32 s{S_T0}, s{S_T0}, 7")
    a.e(f"s_add_u32 s{S_T0}, s{S_T0}, {WS_Y}")
    a.e(f"s_lshl_b32 s{S_T1}, s{S_W}, 6")
    a.e(f"v_add_u32 v52, s{S_T1}, v{V_LANE}")
    a.e(f"v_lshrrev_b32 v53, 4, v52")
    a.e(f"v_lshlrev_b32 v53, 16, v53")
    a.e(f"v_and_b32 v52, 15, v52")
    a.e(f"v_lshl_add_u32 v52, v52, 4, v53")
    a.e(f"v_add_u32 v52, s{S_T0}, v52")
    a.e(f"v_add_u32 v53, {16*65536}, v52")
    for q in range(4): a.e(f"v_mov_b32 v{128+q}, -1")
    a.vm(f"global_store_dwordx4 v52, v[128:131], s[{P_WS}:{P_WS+1}] sc1", "ycl")
    a.vm(f"global_store_dwordx4 v53, v[128:131], s[{P_WS}:{P_WS+1}] sc1", "ycl")

def xt_loads(a):
    a.e(f"s_and_b32 s{S_T0}, s{S_WG}, 7")
    a.e(f"s_lshr_b32 s{S_T1}, s{S_WG}, 3")
    a.e(f"s_lshl_b32 s{S_T0}, s{S_T0}, 6")
    a.e(f"s_lshl_b32 s{S_T1}, s{S_T1}, 1")
    a.e(f"s_add_u32 s{S_T0}, s{S_T0}, s{S_T1}")
    a.e(f"s_lshl_b32 s{S_T0}, s{S_T0}, 4")
    a.e(f"s_lshl_b32 s{S_T1}, s{S_W}, 19")
    a.e(f"s_add_u32 s{S_T0}, s{S_T0}, s{S_T1}")
    a.e(f"s_add_u32 s{S_T0}, s{S_T0}, {WS_XT}")
    a.e(f"v_lshrrev_b32 v52, 1, v{V_LANE}")
    a.e(f"v_lshlrev_b32 v52, 13, v52")
    a.e(f"v_and_b32 v53, 1, v{V_LANE}")
    a.e(f"v_lshl_add_u32 v52, v53, 4, v52")
    a.e(f"v_add_u32 v52, s{S_T0}, v52")
    a.vm(f"global_load_dwordx4 {vr(C_XT,4)}, v52, s[{P_WS}:{P_WS+1}] sc1", "xt")
    a.e(f"v_add_u32 v52, {32*8192}, v52")
    a.vm(f"global_load_dwordx4 {vr(C_XT+4,4)}, v52, s[{P_WS}:{P_WS+1}] sc1", "xt")
    a.e(f"s_add_u32 s{S_T0}, s{S_T0}, {64*8192}")
    a.e(f"v_lshl_add_u32 v53, v53, 4, s{S_T0}")
    a.vm(f"global_load_dword v160, v53, s[{P_WS}:{P_WS+1}] sc1", "xt")

def u_build(a):
    a.vm_wait("xt")
    O = 132
    a.e(f"v_add_u32 v48, 2, v{V_LANE}")
    a.e("v_and_b32 v48, 63, v48")
    a.e("v_lshlrev_b32 v48, 2, v48")
    a.e(f"ds_bpermute_b32 v49, v48, v{C_XT}")
    a.e(f"ds_bpermute_b32 v50, v48, v{C_XT+4}")
    for q in range(2):
        X = C_XT + 4*q
        for k in range(3):
            a.e(f"v_alignbit_b32 v{O+4*q+k}, v{X+k+1}, v{X+k}, 16")
    a.e(f"v_and_b32 v51, 1, v{V_LANE}")
    a.e(f"v_mul_u32_u24 v51, {UU_CH}, v51")
    a.e(f"v_lshrrev_b32 v48, 1, v{V_LANE}")
    a.e("v_lshl_add_u32 v51, v48, 4, v51")
    a.e(f"s_lshl_b32 s{S_T0}, s{S_W}, 10")
    a.e(f"s_add_u32 s{S_T0}, s{S_T0}, {L_UU + 32}")
    a.e(f"v_add_u32 v51, s{S_T0}, v51")
    a.e(f"v_cmp_gt_u32 vcc, 62, v{V_LANE}")
    a.e("s_waitcnt lgkmcnt(0)")
    a.e("v_cndmask_b32 v49, v50, v49, vcc")
    a.e("v_cndmask_b32 v50, v160, v50, vcc")
    a.e(f"v_alignbit_b32 v{O+3}, v49, v{C_XT+3}, 16")
    a.e(f"v_alignbit_b32 v{O+7}, v50, v{C_XT+7}, 16")
    a.e(f"ds_write_b128 v51, {vr(C_XT,4)}")
    a.e(f"ds_write_b128 v51, {vr(C_XT+4,4)} offset:512")
    a.e(f"ds_write_b128 v51, {vr(O,4)} offset:4160")
    a.e(f"ds_write_b128 v51, {vr(O+4,4)} offset:{4160+512}")
    lab = a.label("nopad")
    a.e(f"s_cmp_lg_u32 s{S_W}, 0")
    a.e(f"s_cbranch_scc1 {lab}")
    a.e(f"v_lshlrev_b32 v48, 16, v{C_XT}")
    a.e(f"v_lshrrev_b32 v49, 3, v{V_LANE}")
    a.e(f"v_mul_u32_u24 v49, {UU_CH}, v49")
    a.e(f"v_and_b32 v50, 7, v{V_LANE}")
    a.e("v_lshl_add_u32 v49, v50, 2, v49")
    a.e(f"v_add_u32 v49, {L_UU}, v49")
    a.e("v_mov_b32 v50, 0")
    a.e(f"s_mov_b64 s[{S_EXEC}:{S_EXEC+1}], exec")
    a.e("s_mov_b64 exec, 0xffff")
    a.e("ds_write_b32 v49, v50")
    a.e("s_mov_b64 exec, 0x7f7f")
    a.e("ds_write_b32 v49, v50 offset:4160")
    a.e("s_mov_b64 exec, 3")
    a.e(f"ds_write_b32 v51, v48 offset:{4160 - 4}")
    a.e(f"s_mov_b64 exec, s[{S_EXEC}:{S_EXEC+1}]")
    a.e(f"{lab}:")

CV_A, CV_B, CV_ACC = [16, 80], [48, 112], 144
CVA, CVB, V_DSK = 2, 10, 11
def conv_addr(a):
    t = 12
    a.e(f"v_and_b32 v{t}, 15, v{V_LANE}")
    a.e(f"v_lshrrev_b32 v{t+1}, 4, v{V_LANE}")
    a.e(f"v_and_b32 v{t+2}, 1, v{t+1}")
    a.e(f"v_lshrrev_b32 v{t+1}, 1, v{t+1}")
    a.e(f"v_lshlrev_b32 v{t+3}, 5, v{t+1}")
    a.e(f"v_lshlrev_b32 v{t+2}, 4, v{t+2}")
    a.e(f"v_sub_u32 v{t+3}, v{t+3}, v{t+2}")
    a.e(f"s_lshl_b32 s{S_T2}, s{S_MH}, 6")
    a.e(f"s_mul_i32 s{S_T0}, s{S_CH}, {KR_CH}")
    a.e(f"s_add_u32 s{S_T0}, s{S_T0}, {L_KR + 496}")
    a.e(f"s_add_u32 s{S_T0}, s{S_T0}, s{S_T2}")
    a.e(f"v_lshlrev_b32 v{t+2}, 5, v{t}")
    a.e(f"v_sub_u32 v{t+2}, v{t+3}, v{t+2}")
    a.e(f"v_add_u32 v{CVB}, s{S_T0}, v{t+2}")
    a.e(f"s_mul_i32 s{S_T0}, s{S_CH}, {UU_CH}")
    a.e(f"s_add_u32 s{S_T0}, s{S_T0}, {L_UU}")
    a.e(f"s_add_u32 s{S_T0}, s{S_T0}, s{S_T2}")
    a.e(f"v_and_b32 v{t+2}, 1, v{t}")
    a.e(f"v_cmp_eq_u32 vcc, 1, v{t+2}")
    a.e(f"v_mov_b32 v{t+2}, {4160+16}")
    a.e(f"v_lshl_add_u32 v{t+3}, v{t}, 1, v{t+3}")
    a.e(f"v_mov_b32 v{t+1}, 18")
    a.e(f"v_cndmask_b32 v{t+2}, v{t+2}, v{t+1}, vcc")
    a.e(f"v_add_u32 v{t+3}, v{t+3}, v{t+2}")
    a.e(f"v_add_u32 v{CVA}, s{S_T0}, v{t+3}")
    for al in range(1, 8):
        a.e(f"v_add_u32 v{CVA+al}, {512*al}, v{CVA}")

def k_part(a):
    FR, KD = 16, 144
    a.e(f"v_and_b32 v12, 31, v{V_LANE}")
    a.e("v_mul_u32_u24 v13, 528, v12")
    a.e(f"v_lshrrev_b32 v14, 5, v{V_LANE}")
    a.e("v_lshl_add_u32 v13, v14, 4, v13")
    a.e(f"s_mul_i32 s{S_T0}, s{S_CH}, {KV_CH}")
    a.e(f"s_add_u32 s{S_T0}, s{S_T0}, {L_KV}")
    a.e(f"v_add_u32 v13, s{S_T0}, v13")
    for k in range(16):
        a.e(f"ds_read_b128 {vr(FR+8*k,4)}, v13 offset:{k*32}")
        a.e(f"ds_read_b128 {vr(FR+8*k+4,4)}, v13 offset:{32*528 + k*32}")
    a.e(f"s_mul_i32 s{S_T0}, s{S_CH}, {KR_CH}")
    a.e(f"s_add_u32 s{S_T0}, s{S_T0}, {L_KR + 504}")
    a.e("v_lshlrev_b32 v12, 4, v12")
    a.e("v_lshl_add_u32 v12, v14, 3, v12")
    a.e(f"v_sub_u32 v12, s{S_T0}, v12")
    a.e(f"s_add_u32 s{S_T0}, s{S_T0}, {4096 - 504}")
    a.e(f"v_lshl_add_u32 v15, v{V_LANE}, 4, s{S_T0}")
    a.e("s_waitcnt lgkmcnt(0)")
    for k in range(16):
        a.e(f"v_mfma_f32_32x32x16_bf16 {vr(KD,16)}, {vr(FR+8*k,4)}, {vr(FR+8*k+4,4)}, {'0' if k == 0 else vr(KD,16)}")
    lab1, lab2 = a.label("ex1"), a.label("ex2")
    a.e(f"v_cmp_le_u32 vcc, 32, v{V_LANE}")
    a.e(f"v_and_b32 v16, 1, v{V_LANE}")
    a.e(f"v_cmp_eq_u32 s[{S_TMP}:{S_TMP+1}], 1, v16")
    for q in range(4): a.e(f"v_mov_b32 v{24+q}, 0")
    a.e("s_nop 4")
    a.e(f"s_cmp_eq_u32 s{S_MH}, 0")
    a.e(f"s_cbranch_scc0 {lab1}")
    D = KD
    a.e(f"v_cvt_pk_bf16_f32 v20, v{D+3}, v{D+2}")
    a.e(f"v_cvt_pk_bf16_f32 v21, v{D+1}, v{D}")
    a.e(f"v_cvt_pk_bf16_f32 v22, v{D+6}, v{D+5}")
    a.e(f"v_cvt_pk_bf16_f32 v23, v{D+4}, v{D+4}")
    a.e("ds_write_b64 v12, v[20:21] offset:3584")
    a.e("ds_write_b64 v12, v[22:23] offset:3072")
    a.e(f"s_mov_b64 s[{S_EXEC}:{S_EXEC+1}], exec")
    a.e("s_mov_b64 exec, 0x3fffffff")
    a.e("ds_write_b128 v15, v[24:27]")
    a.e(f"s_mov_b64 exec, s[{S_EXEC}:{S_EXEC+1}]")
    a.e(f"s_branch {lab2}")
    a.e(f"{lab1}:")
    D = KD + 8
    for q in range(4):
        a.e(f"v_mov_b32 v{28+2*q}, v{D+4+q}")
        a.e(f"v_mov_b32 v{29+2*q}, v{D+4+q}")
    for q in range(2):
        A_, B_ = D + 2*q, D + 2*q + 1
        a.e(f"v_cndmask_b32 v24, v{A_}, v{B_}, vcc")
        a.e(f"v_cvt_pk_bf16_f32 v{20+2*q+0}, v{B_}, v24")
        a.e(f"v_cvt_pk_bf16_f32 v{20+2*q+1}, v{A_}, v{A_}")
    for q in range(4):
        a.e(f"v_permlane32_swap_b32 v{28+2*q}, v{29+2*q}")
    a.e("ds_write_b64 v12, v[20:21] offset:2560")
    a.e("ds_write_b64 v12, v[22:23] offset:2048")
    for q in range(4):
        a.e(f"v_cndmask_b32 v{28+2*q}, v{28+2*q}, v{D+4+q}, s[{S_TMP}:{S_TMP+1}]")
    for q in range(4):
        a.e(f"v_cvt_pk_bf16_f32 v{36+2*q}, v{D+4+q}, v{D+4+q}")
        a.e(f"v_cvt_pk_bf16_f32 v{37+2*q}, v{D+4+q}, v{28+2*q}")
    for q in range(4):
        a.e(f"ds_write_b64 v12, {vr(36+2*q,2)} offset:{1536 - 512*q}")
    a.e(f"{lab2}:")

def conv_main(a, late, dmas):
    def reads(st, q):
        r = [f"ds_read_b128 {vr(CV_B[st]+4*al,4)}, v{CVB} offset:{512*(7-al) + 128*q}" for al in range(8)]
        for al in range(8):
            r.append(f"ds_read2_b32 {vr(CV_A[st]+4*al,2)}, v{CVA+al} offset0:{32*q} offset1:{32*q+1}")
            r.append(f"ds_read2_b32 {vr(CV_A[st]+4*al+2,2)}, v{CVA+al} offset0:{32*q+2} offset1:{32*q+3}")
        return r
    for x in reads(0, 0): a.e(x)
    st = 0
    for q in range(4):
        a.e("s_waitcnt lgkmcnt(0)" if q else "s_waitcnt lgkmcnt(14)")
        mf = []
        for al in range(8):
            for be in range(8 - al):
                I = al + be
                mf.append(f"v_mfma_f32_16x16x32_bf16 {vr(CV_ACC+4*I,4)}, {vr(CV_A[st]+4*al,4)}, {vr(CV_B[st]+4*be,4)}, {'0' if (q == 0 and al == 0) else vr(CV_ACC+4*I,4)}")
        slots = {i: [] for i in range(36)}
        if q == 0: slots[7].append("s_waitcnt lgkmcnt(0)")
        if q < 3:
            base = 8 if q == 0 else 0
            for k, x in enumerate(reads(st ^ 1, q + 1)): slots[base + k].append(x)
        for sl, it in late.get(q, []): slots[sl].append(it)
        dl = dmas.get(q, [])
        for k, g in enumerate(dl): place(slots, 1 + (k * 33) // len(dl), g)
        stamp(a, f"cv{q}")
        sched(a, mf, slots)
        st ^= 1

def conv_finish(a):
    a.e(f"s_lshl_b32 s{S_T0}, s{S_W}, 12")
    a.e(f"s_add_u32 s{S_T0}, s{S_T0}, {L_CX}")
    a.e(f"v_lshl_add_u32 v2, v{V_LANE}, 4, s{S_T0}")
    a.e(f"s_xor_b32 s{S_T1}, s{S_W}, 1")
    a.e(f"s_lshl_b32 s{S_T1}, s{S_T1}, 12")
    a.e(f"s_add_u32 s{S_T1}, s{S_T1}, {L_CX}")
    a.e(f"v_lshl_add_u32 v3, v{V_LANE}, 4, s{S_T1}")
    a.e(f"s_mul_i32 s{S_T0}, s{S_CH}, {UU_CH}")
    a.e(f"s_add_u32 s{S_T0}, s{S_T0}, {L_UU + 32}")
    a.e(f"s_lshl_b32 s{S_T1}, s{S_MH}, 11")
    a.e(f"s_add_u32 s{S_T0}, s{S_T0}, s{S_T1}")
    a.e(f"v_and_b32 v4, 15, v{V_LANE}")
    a.e(f"v_lshrrev_b32 v5, 4, v{V_LANE}")
    a.e(f"v_lshlrev_b32 v6, 5, v4")
    a.e(f"v_lshl_add_u32 v6, v5, 3, v6")
    a.e(f"v_add_u32 v6, s{S_T0}, v6")
    lab1, lab2 = a.label("cx1"), a.label("cx2")
    a.e(f"s_cmp_eq_u32 s{S_MH}, 0")
    a.e(f"s_cbranch_scc1 {lab1}")
    for k in range(4):
        a.e(f"ds_write_b128 v2, {vr(CV_ACC+4*k,4)} offset:{1024*k}")
    for q in range(8):
        a.e(f"v_pk_mul_f32 {vr(CV_ACC+2*q,2)}, {vr(CV_ACC+16+2*q,2)}, 1.0 op_sel_hi:[1,0]")
    a.e(f"s_branch {lab2}")
    a.e(f"{lab1}:")
    for k in range(4):
        a.e(f"ds_write_b128 v2, {vr(CV_ACC+16+4*k,4)} offset:{1024*k}")
    a.e(f"{lab2}:")
    for k in range(4):
        a.e(f"ds_read_b64 {vr(16+2*k,2)}, v6 offset:{512*k}")
    a.e(f"s_lshl_b32 s{S_T0}, s{S_MH}, 20")
    a.e(f"s_lshl_b32 s{S_T1}, s{S_D}, 7")
    a.e(f"s_add_u32 s{S_T0}, s{S_T0}, s{S_T1}")
    a.e(f"s_add_u32 s{S_T0}, s{S_T0}, {WS_Y}")
    a.e(f"v_lshrrev_b32 v7, 2, v4")
    a.e(f"v_lshlrev_b32 v7, 16, v7")
    a.e(f"v_and_b32 v8, 3, v4")
    a.e(f"v_lshl_add_u32 v7, v8, 5, v7")
    a.e(f"v_lshl_add_u32 v7, v5, 3, v7")
    a.e(f"v_add_u32 v7, s{S_T0}, v7")
    a.e("s_waitcnt lgkmcnt(0)")
    a.bar("cx")
    for k in range(4):
        a.e(f"ds_read_b128 {vr(64+4*k,4)}, v3 offset:{1024*k}")
    U = 32
    for k in range(4):
        a.e(f"v_lshlrev_b32 v{U+4*k}, 16, v{16+2*k}")
        a.e(f"v_and_b32 v{U+4*k+1}, 0xffff0000, v{16+2*k}")
        a.e(f"v_lshlrev_b32 v{U+4*k+2}, 16, v{17+2*k}")
        a.e(f"v_and_b32 v{U+4*k+3}, 0xffff0000, v{17+2*k}")
    a.e(f"v_mov_b32 v10, v{V_DSK}")
    for k in range(8):
        a.e(f"v_pk_fma_f32 {vr(CV_ACC+2*k,2)}, {vr(U+2*k,2)}, v[10:11], {vr(CV_ACC+2*k,2)}")
    a.vm_wait("wd3", "wd6")
    a.e("s_waitcnt lgkmcnt(0)")
    a.bar("cd")
    for k in range(8):
        a.e(f"v_pk_add_f32 {vr(CV_ACC+2*k,2)}, {vr(CV_ACC+2*k,2)}, {vr(64+2*k,2)}")
    for k in range(8):
        a.e(f"v_cvt_pk_bf16_f32 v{16+k}, v{CV_ACC+2*k}, v{CV_ACC+2*k+1}")
    for k in range(4):
        a.vm(f"global_store_dwordx2 v7, {vr(16+2*k,2)}, s[{P_WS}:{P_WS+1}] sc1", "pubY")
        if k < 3: a.e(f"v_add_u32 v7, {4*65536}, v7")


def role_c(a):
    a.e("L_role_c:")
    c_setup(a)
    a_read_addr(a, C_AADDR, 12)
    a.e("s_waitcnt lgkmcnt(0)")
    a.e(f"s_mov_b32 s{S_ROLE}, 1")
    stamp(a, 0, real=True); stamp(a, 1)
    mk_srd(a, SRD_X, P_X, 2048 * 1024)
    mk_srd(a, SRD_WG, P_WG, 512 * 2752)
    mk_srd(a, SRD_WU, P_WU, 512 * 2752)
    epoch_load(a, 13, 54)
    for g in stage_dma(0): emit(a, g)
    d1 = stage_dma(1)
    n1 = OPT.get("n1", 4)
    for g in d1[:n1]: emit(a, g)
    a.vm_wait("st0")
    a.bar("b0")
    stamp(a, "b0")
    for g in d1[n1:]: emit(a, g)
    epoch_finish(a, 54)
    if not OPT.get("csg", 1): cs_block(a)
    for g in stage_dma(2): emit(a, g)
    kgen_loads(a)
    prog = [lambda a: a.vm_wait("kp")] + kgen_prog()
    nst = 4
    per = (len(prog) + nst - 1) // nst
    pos = 0
    for stage in range(7):
        a.e("s_waitcnt lgkmcnt(0)")
        a.vm_wait(f"st{stage+1}")
        a.bar(f"s{stage}")
        stamp(a, f"cs{stage}")
        if OPT.get("cprio_stage") == stage: a.e(f"s_setprio {OPT.get('cprio', 2)}")
        dm = stage_dma(stage + 3) if stage + 3 < 8 else []
        if stage == OPT.get("touchstage", 2) and OPT.get("wdtouch", 1):
            wd_touch(a)
        if stage == OPT.get("yclrstage", 3):
            y_clear(a)
        work = []
        if 1 <= stage <= nst:
            work = prog[pos:pos + per]; pos += per
        if stage == 5 and OPT.get("kvearly", 1):
            work = kv_writes()[:OPT.get("kvsplit", 35)]
        if stage == 6:
            work = (kv_writes()[OPT.get("kvsplit", 35):] if OPT.get("kvearly", 1) else [])
        if stage == OPT.get("cpoll", 5):
            if OPT.get("pollfirst", 1): work = [lambda a: ln_poll_issue(a, 59, 132)] + work
            else: work = work + [lambda a: ln_poll_issue(a, 59, 132)]
        if stage == OPT.get("cchk", 6):
            work = [lambda a: ln_poll_check(a, 59, 132), xt_loads] + work
        step = max(1, len(work) // max(1, len(dm))) if dm else len(work)
        while dm or work:
            if dm: emit(a, dm.pop(0))
            for _ in range(step if dm else len(work)):
                if work: emit(a, work.pop(0))
    assert pos >= len(prog)
    a.e(f"v_mov_b32 v{V_DSK}, v{C_P+7}")
    a.e("s_waitcnt lgkmcnt(0)")
    a.bar("rf")
    stamp(a, "crf")
    if OPT.get("cprio2") is not None: a.e(f"s_setprio {OPT['cprio2']}")
    if OPT.get("cchk", 6) > 6:
        ln_poll_check(a, 59, 132)
        xt_loads(a)
    if not OPT.get("kvearly", 1):
        for x in kv_writes(): a.e(x)
        a.e("s_waitcnt lgkmcnt(0)")
        a.bar("kv")
    stamp(a, "ckv")
    wd_setup(a, 52, 161)
    for g in wd_groups(1, 161) + wd_groups(2, 161): emit(a, g)
    k_part(a)
    stamp(a, "ckp")
    u_build(a)
    stamp(a, "cub")
    conv_addr(a)
    a.e("v_mov_b32 v12, v161")
    a.vm_wait("wd1", "wd2", "ycl")
    a.e("s_waitcnt lgkmcnt(0)")
    a.bar("k")
    stamp(a, "ck")
    conv_main(a, {OPT.get("pbar", 2): [(OPT.get("pslot", 20), lambda a: a.bar("p"))]},
              {0: wd_groups(3, 12) + wd_groups(6, 12)[:2], 1: wd_groups(6, 12)[2:]})
    stamp(a, "convm")
    conv_finish(a)
    stamp(a, "conv")
    a.e("s_waitcnt vmcnt(0)")
    stamp(a, 9, real=True)
    prof_store(a)
    a.e("s_endpgm")


def main():
    global PROF
    PROF = "prof" in sys.argv
    for x in sys.argv[1:]:
        if "=" in x:
            k, v = x.split("=")
            if k == "stamps": STAMPS[:] = v.split(",")
            else: OPT[k] = int(v)
    shared = [0]
    a0 = A2(shared); entry(a0)
    g = A2(shared); g.vmq = list(a0.vmq); role_g(g)
    c = A2(shared); c.vmq = list(a0.vmq); role_c(c)
    gb = [b for b in g.bars if b not in ("fin", "rd")]
    assert gb == c.bars, (gb, c.bars)
    out = [HDR, f"; @launch grid=(256,1,1) block=(512,1,1) lds={LDS_BYTES}",
           '.amdgcn_target "amdgcn-amd-amdhsa--gfx950"', '.text', a0.text(), g.text(), c.text(),
           "L_end:", "  s_endpgm", "  .fill 8448, 4, 0xbf800000", '.section .rodata,"a"', kd(NAME, 176, 80)]
    print('\n'.join(out))

if __name__ == "__main__":
    main()
```

```python
import sys, math
from asmlib import *

NAME = "parallel_sum__ssm_conv_s4__geglu_ffn__prompt_kernel"
OPT = {}
PROF = False
STAMPS = []
HDR = open('parallel_sum__ssm_conv_s4__geglu_ffn__prompt.s.ref').read().split('; Override')[0].rstrip()

WS_FLAG_LN, WS_FLAG_H, WS_FLAG_Y = 4096, 8192, 12288
WS_STATS, WS_CS = 65536, 131072
WS_XT, WS_Y, WS_H = 1 << 20, 4 << 20, 8 << 20
WS_DUMMY, WS_PROF = 15 << 20, 16 << 20
SPIN_MAX = 1 << 17

S_WG, S_W, S_I, S_J, S_TW, S_FW, S_U0, S_KC = 2, 3, 4, 5, 6, 7, 8, 9
S_T0, S_T1, S_T2, S_SPIN, S_TAG, S_WDL = 10, 11, 12, 13, 14, 15
P_X, P_ARE, P_AIM, P_BRE, P_BIM, P_CRE, P_CIM, P_LDT = 16, 18, 20, 22, 24, 26, 28, 30
P_DSK, P_BX, P_WG, P_WU, P_WD, P_OUT, P_DBG, P_WS = 32, 34, 36, 38, 40, 42, 44, 46
S_EP, S_ROLE = 34, 35
SRD_X, SRD_WG, SRD_WU, SRD_WD = 48, 52, 56, 60
S_XW, S_WW, S_XO, S_WO, S_LX, S_LW = 64, 65, 66, 67, 68, 69
S_EXEC = 70
S_NU, S_CSH = 72, 73
S_WDS = 73
S_TMP = 74
S_D, S_CH, S_MH, S_TH, S_NT, S_WDO = 76, 77, 78, 79, 80, 81
S_PROF = 82

LDS_BYTES = 163840
SLOT = 41216
L_X, L_G, L_U = 0, 16384, 28704
L_LN = 3 * SLOT
KV_CH, KR_CH, UU_CH = 64 * 528, 4608, 8320
L_KV = 2 * SLOT
L_KR = 150016
L_UU = 24576
L_CX = 131584
WD = {1: (0, 6144, 0, 3), 2: (SLOT, 10240, 3, 5),
      4: (0, 6144, 8, 3), 5: (SLOT, 10240, 11, 5),
      3: (115200, 4096, 16, 2),
      6: (2 * SLOT, 8192, 18, 4)}
def wd_areg(q): return 8 * q if q < 8 else 64 + 8 * (q - 16)
def wd_in_agpr(q): return q < 8 or q in (16, 17)
RED_UNIT = [4096 * u for u in range(12)]
L_YB = 49152

V_LANE = 1


def stamp(a, idx, real=False):
    if PROF:
        if isinstance(idx, str):
            if idx not in STAMPS: return
            idx = 2 + STAMPS.index(idx)
        a.e(f"{'s_memrealtime' if real else 's_memtime'} s[{S_PROF+2*idx}:{S_PROF+2*idx+1}]")

def prof_store(a):
    if not PROF: return
    a.e("s_waitcnt lgkmcnt(0)")
    if OPT.get("dbgwg") is not None:
        lab = a.label("nodbg")
        a.e(f"s_lshl_b32 s{S_T0}, s{S_WG}, 3")
        a.e(f"s_lshl_b32 s{S_T1}, s{S_ROLE}, 2")
        a.e(f"s_add_u32 s{S_T0}, s{S_T0}, s{S_T1}")
        a.e(f"s_add_u32 s{S_T0}, s{S_T0}, s{S_W}")
        a.e(f"s_cmp_lg_u32 s{S_T0}, {OPT['dbgwg']*8 + OPT.get('dbgw', 0)}")
        a.e(f"s_cbranch_scc1 {lab}")
        a.e(f"s_sub_u32 s{S_PROF+18}, s{S_PROF+18}, s{S_PROF}")
        for q in range(2, 9):
            a.e(f"s_sub_u32 s{S_PROF+2*q}, s{S_PROF+2*q}, s{S_PROF+2}")
        for q in range(10):
            a.e(f"v_mov_b32 v{4+q}, s{S_PROF+2*q}")
        a.e("v_mov_b32 v2, 0")
        a.e("s_mov_b64 exec, 1")
        a.e(f"global_store_dwordx4 v2, v[4:7], s[{P_DBG}:{P_DBG+1}]")
        a.e(f"global_store_dwordx4 v2, v[8:11], s[{P_DBG}:{P_DBG+1}] offset:16")
        a.e(f"global_store_dwordx2 v2, v[12:13], s[{P_DBG}:{P_DBG+1}] offset:32")
        a.e(f"{lab}:")
        return
    for q in range(10):
        a.e(f"v_mov_b32 v{4+q}, s{S_PROF+2*q}")
    a.e(f"s_lshl_b32 s{S_T0}, s{S_ROLE}, 2")
    a.e(f"s_add_u32 s{S_T0}, s{S_T0}, s{S_W}")
    a.e(f"s_lshl_b32 s{S_T1}, s{S_WG}, 3")
    a.e(f"s_add_u32 s{S_T0}, s{S_T0}, s{S_T1}")
    a.e(f"s_lshl_b32 s{S_T0}, s{S_T0}, 6")
    a.e(f"s_add_u32 s{S_T0}, s{S_T0}, {WS_PROF}")
    a.e(f"v_mov_b32 v2, s{S_T0}")
    a.e("s_mov_b64 exec, 1")
    a.e(f"global_store_dwordx4 v2, v[4:7], s[{P_WS}:{P_WS+1}]")
    a.e(f"global_store_dwordx4 v2, v[8:11], s[{P_WS}:{P_WS+1}] offset:16")
    a.e(f"global_store_dwordx2 v2, v[12:13], s[{P_WS}:{P_WS+1}] offset:32")


class A2(Asm):
    def __init__(self, shared):
        super().__init__()
        self.bars = []
        self.shared = shared
    def label(self, base):
        self.shared[0] += 1
        return f"L_{base}_{self.shared[0]}"
    def bar(self, name):
        self.e("s_barrier")
        self.bars.append(name)


class Rec:
    def __init__(self, a):
        self.ops = []; self.a = a
    def e(self, s):
        for l in s.split('\n'):
            if l.strip(): self.ops.append(('e', l.strip()))
    def vm(self, s, tag): self.ops.append(('vm', s, tag))
    def vm_wait(self, *tags): self.ops.append(('wait', tags))
    def label(self, b): return self.a.label(b)
    def bar(self, name): self.ops.append(('bar', name))

def replay(a, ops, fillers, every, start=0):
    fill = list(fillers); n = 0
    for o in ops:
        if o[0] == 'e': a.e(o[1])
        elif o[0] == 'vm': a.vm(o[1], o[2])
        elif o[0] == 'wait': a.vm_wait(*o[1])
        elif o[0] == 'bar': a.bar(o[1])
        n += 1
        if fill and n >= start and (n - start) % every == 0:
            emit(a, fill.pop(0))
    for g in fill: emit(a, g)

def emit(a, g):
    if callable(g): g(a)
    elif isinstance(g, tuple): a.vm(g[0], g[1])
    elif isinstance(g, list):
        for t in g: emit(a, t)
    else: a.e(g)

class Dma(list):
    def __init__(self, pre, m0, ld, post=()):
        super().__init__(list(pre) + [m0, "s_nop 0", ld] + list(post))
        self.head = list(pre) + [m0]
        self.tail = [ld] + list(post)

def place(slots, p, g):
    if isinstance(g, Dma) and p >= 1:
        slots[p - 1].append(g.head); slots[p].insert(0, g.tail)
    else:
        slots[p].append(g)

def sched(a, mf, slots):
    for i, m in enumerate(mf):
        a.e(m)
        for it in slots.get(i, []): emit(a, it)

def mk_srd(a, srd, ptr, nbytes):
    a.e(f"s_mov_b32 s{srd}, s{ptr}")
    a.e(f"s_and_b32 s{srd+1}, s{ptr+1}, 0xffff")
    a.e(f"s_mov_b32 s{srd+2}, {nbytes}")
    a.e(f"s_mov_b32 s{srd+3}, 0x20000")

def dpp_reduce(a, regs):
    steps = ["quad_perm:[1,0,3,2] row_mask:0xf bank_mask:0xf", "quad_perm:[2,3,0,1] row_mask:0xf bank_mask:0xf",
             "row_half_mirror row_mask:0xf bank_mask:0xf", "row_mirror row_mask:0xf bank_mask:0xf",
             "row_bcast:15 row_mask:0xa bank_mask:0xf", "row_bcast:31 row_mask:0xc bank_mask:0xf"]
    assert len(regs) >= 3
    for st in steps:
        for r in regs:
            a.e(f"v_add_f32_dpp v{r}, v{r}, v{r} {st}")
    a.e("s_nop 1")


def entry(a):
    a.e(f".globl {NAME}\n.p2align 8\n.type {NAME},@function\n{NAME}:")
    a.e(f"s_cmp_ge_u32 s{S_WG}, 256")
    a.e(f"s_cbranch_scc1 L_end")
    a.e("s_load_dwordx16 s[16:31], s[0:1], 0")
    a.e("s_load_dwordx16 s[32:47], s[0:1], 64")
    a.e("s_getpc_b64 s[74:75]")
    a.e(f"s_lshr_b32 s{S_T1}, s{S_WG}, 3")
    a.e(f"s_and_b32 s{S_T2}, s{S_T1}, 15")
    a.e(f"s_lshl_b32 s{S_T2}, s{S_T2}, 11")
    a.e(f"v_lshl_add_u32 v2, v0, 2, s{S_T2}")
    a.vm(f"global_load_dword v175, v2, s[74:75]", "pf")
    a.e(f"v_and_b32 v{V_LANE}, 63, v0")
    a.e(f"v_lshrrev_b32 v3, 6, v0")
    a.e(f"s_and_b32 s{S_T0}, s{S_WG}, 7")
    a.e(f"v_readfirstlane_b32 s{S_W}, v3")
    a.e(f"s_lshr_b32 s{S_I}, s{S_T0}, 1")
    a.e(f"s_lshl_b32 s{S_I}, s{S_I}, 2")
    a.e(f"s_lshr_b32 s{S_T2}, s{S_T1}, 3")
    a.e(f"s_add_u32 s{S_I}, s{S_I}, s{S_T2}")
    a.e(f"s_and_b32 s{S_J}, s{S_T0}, 1")
    a.e(f"s_lshl_b32 s{S_J}, s{S_J}, 3")
    a.e(f"s_and_b32 s{S_T2}, s{S_T1}, 7")
    a.e(f"s_add_u32 s{S_J}, s{S_J}, s{S_T2}")
    a.e(f"s_lshr_b32 s{S_TMP}, s{S_W}, 2")
    a.e(f"s_and_b32 s{S_W}, s{S_W}, 3")
    a.e(f"s_lshr_b32 s{S_TW}, s{S_W}, 1")
    a.e(f"s_and_b32 s{S_FW}, s{S_W}, 1")
    a.e(f"s_mul_i32 s{S_U0}, s{S_J}, 3")
    a.e(f"s_lshl_b32 s{S_T2}, s{S_J}, 1")
    a.e(f"s_add_u32 s{S_T2}, s{S_T2}, 11")
    a.e(f"s_min_u32 s{S_U0}, s{S_U0}, s{S_T2}")
    a.e(f"s_cmp_lt_u32 s{S_J}, 11")
    a.e(f"s_cselect_b32 s{S_NU}, 6, 4")
    a.e(f"s_lshr_b32 s{S_CSH}, s{S_I}, 3")
    a.e(f"s_lshl_b32 s{S_D}, s{S_T0}, 6")
    a.e(f"s_lshl_b32 s{S_T1}, s{S_T1}, 1")
    a.e(f"s_add_u32 s{S_D}, s{S_D}, s{S_T1}")
    a.e(f"s_add_u32 s{S_D}, s{S_D}, s{S_TW}")
    a.e(f"s_mov_b32 s{S_CH}, s{S_TW}")
    a.e(f"s_mov_b32 s{S_MH}, s{S_FW}")
    a.e(f"s_lshr_b32 s{S_TH}, s{S_J}, 3")
    if OPT.get("ntoff"):
        a.e(f"s_add_u32 s{S_NT}, s{S_J}, {OPT['ntoff']}")
        a.e(f"s_and_b32 s{S_NT}, s{S_NT}, 7")
    else:
        a.e(f"s_and_b32 s{S_NT}, s{S_J}, 7")
    a.e(f"s_cmp_lg_u32 s{S_TMP}, 0")
    a.e(f"s_cbranch_scc1 L_role_c")

def epoch_load(a, vtmp, vdst):
    a.e(f"v_mov_b32 v{vtmp}, 0")
    a.vm(f"global_load_dword v{vdst}, v{vtmp}, s[{P_WS}:{P_WS+1}] sc1", "ep")

def epoch_finish(a, vdst):
    a.vm_wait("ep")
    a.e("s_nop 0")
    a.e(f"v_readfirstlane_b32 s{S_EP}, v{vdst}")
    a.e("s_nop 3")
    a.e(f"s_mul_i32 s{S_TAG}, s{S_EP}, 0x9e3779b1")
    a.e(f"s_add_u32 s{S_TAG}, s{S_TAG}, 0x3c6ef373")

def flag_store(a, region, idx_code, va, vb):
    lab = a.label("nofl")
    a.e(f"s_cmp_lg_u32 s{S_W}, 0")
    a.e(f"s_cbranch_scc1 {lab}")
    idx_code(a)
    a.e(f"s_lshl_b32 s{S_T0}, s{S_T0}, 2")
    a.e(f"s_add_u32 s{S_T0}, s{S_T0}, {region}")
    a.e(f"v_mov_b32 v{va}, s{S_T0}")
    a.e(f"v_mov_b32 v{vb}, s{S_TAG}")
    a.e(f"s_mov_b64 s[{S_EXEC}:{S_EXEC+1}], exec")
    a.e("s_mov_b64 exec, 1")
    a.e(f"global_store_dword v{va}, v{vb}, s[{P_WS}:{P_WS+1}] sc1")
    a.e(f"s_mov_b64 exec, s[{S_EXEC}:{S_EXEC+1}]")
    a.e(f"{lab}:")

def idx_ln(a): a.e(f"s_mov_b32 s{S_T0}, s{S_WG}")
def idx_h(a):
    a.e(f"s_lshl_b32 s{S_T0}, s{S_I}, 4")
    a.e(f"s_add_u32 s{S_T0}, s{S_T0}, s{S_J}")
def idx_y(a):
    a.e(f"s_and_b32 s{S_T0}, s{S_WG}, 7")
    a.e(f"s_lshl_b32 s{S_T0}, s{S_T0}, 5")
    a.e(f"s_lshr_b32 s{S_T1}, s{S_WG}, 3")
    a.e(f"s_add_u32 s{S_T0}, s{S_T0}, s{S_T1}")

def spin_tail(a, top, ok, reloads, sleep=None):
    a.e(f"s_cmp_eq_u64 vcc, 0")
    a.e(f"s_cbranch_scc1 {ok}")
    a.e(f"s_add_u32 s{S_SPIN}, s{S_SPIN}, 1")
    a.e(f"s_cmp_gt_u32 s{S_SPIN}, {SPIN_MAX}")
    a.e(f"s_cbranch_scc1 {ok}")
    a.e(f"s_sleep {sleep if sleep is not None else OPT.get('sleep', 8)}")
    for r in reloads: a.e(r)
    a.e("s_waitcnt vmcnt(0)")
    a.e(f"s_branch {top}")
    a.e(f"{ok}:")

def ln_poll_issue(a, vaddr, vdst):
    a.e(f"v_lshlrev_b32 v{vaddr}, 4, v{V_LANE}")
    a.e(f"v_add_u32 v{vaddr}, {WS_FLAG_LN}, v{vaddr}")
    a.vm(f"global_load_dwordx4 {vr(vdst,4)}, v{vaddr}, s[{P_WS}:{P_WS+1}] sc1", "pl")

def ln_poll_check(a, vaddr, vdst):
    top, ok = a.label("poll"), a.label("pollok")
    a.vm_wait("pl")
    a.e(f"s_mov_b32 s{S_SPIN}, 0")
    a.e(f"{top}:")
    a.e(f"v_cmp_ne_u32 vcc, s{S_TAG}, v{vdst}")
    for q in range(1, 4):
        a.e(f"v_cmp_ne_u32 s[74:75], s{S_TAG}, v{vdst+q}")
        a.e("s_nop 0")
        a.e("s_or_b64 vcc, vcc, s[74:75]")
    a.e("s_nop 1")
    spin_tail(a, top, ok, [f"global_load_dwordx4 {vr(vdst,4)}, v{vaddr}, s[{P_WS}:{P_WS+1}] sc1"])


G_ACC = 16
def acc(tt, ap): return G_ACC + 16 * (3 * tt + ap)
G_FR = [112, 132]
def fB(st, tt): return G_FR[st] + 4 * tt
def fA(st, ap): return G_FR[st] + 8 + 4 * ap
G_BADDR, G_AADDR = 160, 164

def a_read_addr(a, dst, t0):
    a.e(f"v_lshrrev_b32 v{t0}, 4, v{V_LANE}")
    a.e(f"v_and_b32 v{t0+1}, 1, v{t0}")
    a.e(f"v_lshrrev_b32 v{t0}, 1, v{t0}")
    a.e(f"v_bfe_u32 v{t0+2}, v{V_LANE}, 2, 2")
    a.e(f"v_lshl_add_u32 v{t0+2}, v{t0}, 3, v{t0+2}")
    a.e(f"v_mul_u32_u24 v{t0+2}, 192, v{t0+2}")
    a.e(f"v_and_b32 v{t0+3}, 3, v{V_LANE}")
    a.e(f"v_lshl_add_u32 v{t0+2}, v{t0+3}, 3, v{t0+2}")
    a.e(f"v_mul_u32_u24 v{t0+1}, {L_U - L_G}, v{t0+1}")
    a.e(f"v_add_u32 v{t0+2}, v{t0+2}, v{t0+1}")
    a.e(f"s_mul_i32 s{S_T0}, s{S_FW}, 96")
    a.e(f"s_add_u32 s{S_T0}, s{S_T0}, {L_G}")
    a.e(f"v_add_u32 v{dst}, s{S_T0}, v{t0+2}")

def g_setup(a):
    a.e(f"v_and_b32 v12, 31, v{V_LANE}")
    a.e(f"v_lshrrev_b32 v13, 5, v{V_LANE}")
    a.e(f"v_bfe_u32 v14, v12, 1, 3")
    a.e(f"s_lshl_b32 s{S_T0}, s{S_TW}, 13")
    a.e(f"v_lshl_add_u32 v15, v12, 7, s{S_T0}")
    for s_ in range(4):
        a.e(f"v_add_u32 v11, {2*s_}, v13")
        a.e(f"v_xor_b32 v11, v11, v14")
        a.e(f"v_lshl_add_u32 v{G_BADDR+s_}, v11, 4, v15")
    a_read_addr(a, G_AADDR, 12)
    a.e(f"s_lshl_b32 s{S_T0}, s{S_I}, 7")
    a.e(f"s_lshl_b32 s{S_T1}, s{S_J}, 3")
    a.e(f"s_add_u32 s{S_T0}, s{S_T0}, s{S_T1}")
    a.e(f"s_lshl_b32 s{S_T1}, s{S_W}, 1")
    a.e(f"s_add_u32 s{S_T0}, s{S_T0}, s{S_T1}")
    a.e(f"s_lshl_b32 s{S_T0}, s{S_T0}, 10")
    a.e(f"v_lshl_add_u32 v7, v{V_LANE}, 4, s{S_T0}")

def ln_first(a):
    a.vm_wait("ln")
    for r in range(2):
        for d in range(4):
            a.e(f"v_lshlrev_b32 v{16+8*r+2*d}, 16, v{44+4*r+d}")
            a.e(f"v_and_b32 v{17+8*r+2*d}, 0xffff0000, v{44+4*r+d}")
    for r in range(2):
        b, t = 16 + 8*r, 36 + 4*r
        a.e(f"v_pk_add_f32 {vr(t,2)}, {vr(b,2)}, {vr(b+2,2)}")
        a.e(f"v_pk_mul_f32 {vr(t+2,2)}, {vr(b,2)}, {vr(b,2)}")
    for r in range(2):
        b, t = 16 + 8*r, 36 + 4*r
        a.e(f"v_pk_add_f32 {vr(t,2)}, {vr(t,2)}, {vr(b+4,2)}")
        a.e(f"v_pk_fma_f32 {vr(t+2,2)}, {vr(b+2,2)}, {vr(b+2,2)}, {vr(t+2,2)}")
    for r in range(2):
        b, t = 16 + 8*r, 36 + 4*r
        a.e(f"v_pk_add_f32 {vr(t,2)}, {vr(t,2)}, {vr(b+6,2)}")
        a.e(f"v_pk_fma_f32 {vr(t+2,2)}, {vr(b+4,2)}, {vr(b+4,2)}, {vr(t+2,2)}")
    for r in range(2):
        b, t = 16 + 8*r, 36 + 4*r
        a.e(f"v_pk_fma_f32 {vr(t+2,2)}, {vr(b+6,2)}, {vr(b+6,2)}, {vr(t+2,2)}")
        a.e(f"v_add_f32 v{32+r}, v{t}, v{t+1}")
    for r in range(2):
        t = 36 + 4*r
        a.e(f"v_add_f32 v{34+r}, v{t+2}, v{t+3}")
    a.e("s_nop 0")
    dpp_reduce(a, [32, 33, 34, 35])
    for q, sr_ in enumerate((74, 75, 12, 13)):
        a.e(f"v_readlane_b32 s{sr_}, v{32+q}, 63")
    a.e("s_nop 1")
    for q, sr_ in enumerate((74, 75, 12, 13)):
        a.e(f"v_mov_b32 v{32+q}, s{sr_}")
    a.e("v_mov_b32 v36, 0x3b000000")
    a.e("v_pk_mul_f32 v[32:33], v[32:33], v[36:37] op_sel_hi:[1,0]")
    a.e("v_pk_mul_f32 v[34:35], v[34:35], v[36:37] op_sel_hi:[1,0]")
    a.e("v_pk_fma_f32 v[34:35], v[32:33], v[32:33], v[34:35] neg_lo:[1,0,0] neg_hi:[1,0,0]")
    a.e("v_max_f32 v34, 0, v34")
    a.e("v_max_f32 v35, 0, v35")
    a.e("v_cvt_pk_bf16_f32 v36, v34, v35")
    a.e("v_cvt_pk_bf16_f32 v37, v32, v33")
    a.e("v_lshlrev_b32 v34, 16, v36")
    a.e("v_and_b32 v35, 0xffff0000, v36")
    a.e("v_lshlrev_b32 v32, 16, v37")
    a.e("v_and_b32 v33, 0xffff0000, v37")
    a.e("v_add_f32 v34, 0x3727c5ac, v34")
    a.e("v_add_f32 v35, 0x3727c5ac, v35")
    a.e("v_cvt_pk_bf16_f32 v36, v34, v35")
    a.e("v_lshlrev_b32 v34, 16, v36")
    a.e("v_and_b32 v35, 0xffff0000, v36")
    a.e("v_sqrt_f32 v34, v34")
    a.e("v_sqrt_f32 v35, v35")
    a.e("s_nop 0")
    a.e("v_cvt_pk_bf16_f32 v36, v34, v35")
    a.e("v_lshlrev_b32 v34, 16, v36")
    a.e("v_and_b32 v35, 0xffff0000, v36")
    a.e("v_rcp_f32 v34, v34")
    a.e("v_rcp_f32 v35, v35")
    for r in range(2):
        b = 16 + 8*r
        sel = "op_sel_hi:[1,0]" if r == 0 else "op_sel:[0,1] op_sel_hi:[1,1]"
        for d in range(4):
            a.e(f"v_pk_add_f32 {vr(b+2*d,2)}, {vr(b+2*d,2)}, v[32:33] {sel} neg_lo:[0,1] neg_hi:[0,1]")
    for r in range(2):
        b = 16 + 8*r
        for d in range(4):
            a.e(f"v_cvt_pk_bf16_f32 v{44+4*r+d}, v{b+2*d}, v{b+2*d+1}")
    for r in range(2):
        b = 16 + 8*r
        for d in range(4):
            a.e(f"v_lshlrev_b32 v{b+2*d}, 16, v{44+4*r+d}")
            a.e(f"v_and_b32 v{b+2*d+1}, 0xffff0000, v{44+4*r+d}")
    for r in range(2):
        b = 16 + 8*r
        sel = "op_sel_hi:[1,0]" if r == 0 else "op_sel:[0,1] op_sel_hi:[1,1]"
        for d in range(4):
            a.e(f"v_pk_mul_f32 {vr(b+2*d,2)}, {vr(b+2*d,2)}, v[34:35] {sel}")
    for r in range(2):
        b = 16 + 8*r
        for d in range(4):
            a.e(f"v_cvt_pk_bf16_f32 v{44+4*r+d}, v{b+2*d}, v{b+2*d+1}")
    a.e(f"s_mul_i32 s{S_T0}, s{S_W}, {2*1088}")
    a.e(f"s_add_u32 s{S_T0}, s{S_T0}, {L_LN}")
    a.e(f"v_lshl_add_u32 v2, v{V_LANE}, 4, s{S_T0}")
    a.e("ds_write_b128 v2, v[44:47]")
    a.e("ds_write_b128 v2, v[48:51] offset:1088")
    a.e("v_mov_b32 v40, v34")
    a.e("v_cvt_pk_bf16_f32 v41, -v32, -v32")
    a.e("v_mov_b32 v42, v35")
    a.e("v_cvt_pk_bf16_f32 v43, -v33, -v33")
    a.e(f"s_lshl_b32 s{S_T0}, s{S_I}, 7")
    a.e(f"s_lshl_b32 s{S_T1}, s{S_J}, 3")
    a.e(f"s_add_u32 s{S_T0}, s{S_T0}, s{S_T1}")
    a.e(f"s_lshl_b32 s{S_T1}, s{S_W}, 1")
    a.e(f"s_add_u32 s{S_T1}, s{S_T0}, s{S_T1}")
    a.e(f"s_lshl_b32 s{S_T1}, s{S_T1}, 3")
    a.e(f"s_add_u32 s{S_T1}, s{S_T1}, {WS_STATS}")
    a.e(f"v_mov_b32 v3, s{S_T1}")
    a.e(f"s_mov_b64 s[{S_EXEC}:{S_EXEC+1}], exec")
    a.e("s_mov_b64 exec, 1")
    a.vm(f"global_store_dwordx4 v3, v[40:43], s[{P_WS}:{P_WS+1}] sc1", "pubA")
    a.e(f"s_mov_b64 exec, s[{S_EXEC}:{S_EXEC+1}]")
    a.e(f"v_bfe_u32 v2, v{V_LANE}, 2, 2")
    a.e(f"v_mul_u32_u24 v2, 1088, v2")
    a.e(f"v_lshrrev_b32 v3, 4, v{V_LANE}")
    a.e(f"v_lshl_add_u32 v2, v3, 5, v2")
    a.e(f"v_and_b32 v3, 3, v{V_LANE}")
    a.e(f"v_lshl_add_u32 v2, v3, 3, v2")
    a.e(f"s_lshl_b32 s{S_T1}, s{S_W}, 8")
    a.e(f"s_add_u32 s{S_T1}, s{S_T1}, {L_LN}")
    a.e(f"v_add_u32 v2, s{S_T1}, v2")
    a.e(f"s_lshl_b32 s{S_T0}, s{S_T0}, 10")
    a.e(f"s_lshl_b32 s{S_T1}, s{S_W}, 11")
    a.e(f"s_add_u32 s{S_T0}, s{S_T0}, s{S_T1}")
    a.e(f"s_add_u32 s{S_T0}, s{S_T0}, {WS_XT}")
    a.e(f"v_lshl_add_u32 v3, v{V_LANE}, 4, s{S_T0}")

def g1_reads(st, s):
    r = [f"ds_read_b128 {vr(fB(st,tt),4)}, v{G_BADDR+s} offset:{tt*4096}" for tt in range(2)]
    for ap in range(3):
        for h in range(2):
            r.append(f"ds_read_b64_tr_b16 {vr(fA(st,ap)+2*h,2)}, v{G_AADDR} offset:{s*3072 + h*768 + ap*32}")
    return r

def g1_mfmas(st, first):
    return [f"v_mfma_f32_32x32x16_bf16 {vr(acc(tt,ap),16)}, {vr(fA(st,ap),4)}, {vr(fB(st,tt),4)}, {'0' if first else vr(acc(tt,ap),16)}"
            for ap in range(3) for tt in range(2)]

def g1_main(a, hooks):
    st = 0
    for stage in range(8):
        for s in range(4):
            last = (stage == 7 and s == 3)
            a.e("s_waitcnt lgkmcnt(0)")
            mf = g1_mfmas(st, stage == 0 and s == 0)
            slots = {i: [] for i in range(6)}
            if stage == 0 and OPT.get("csg", 0):
                lab = a.label("nocs")
                a.e(f"s_or_b32 s{S_T0}, s{S_TW}, s{S_CSH}")
                a.e(f"s_cmp_lg_u32 s{S_T0}, 0")
                a.e(f"s_cbranch_scc1 {lab}")
                for ap in range(3):
                    a.e(f"v_mfma_f32_32x32x16_bf16 {ar(16*ap,16)}, v[168:171], {vr(fA(st,ap),4)}, {'0' if s == 0 else ar(16*ap,16)}")
                a.e(f"{lab}:")
            if s == 3 and not last:
                d = SLOT if (stage + 1) % 3 != 0 else -2 * SLOT
                slots[0] += [f"v_add_u32 v{G_BADDR+q}, {d & 0xffffffff}, v{G_BADDR+q}" for q in range(4)]
                slots[0] += [f"v_add_u32 v{G_AADDR}, {d & 0xffffffff}, v{G_AADDR}"]
                for hk in hooks.get(("pre", stage), []): slots[1].append(hk)
                slots[1].append(lambda a, stage=stage: a.bar(f"s{stage}"))
                rd = g1_reads(st ^ 1, 0)
                slots[1] += rd[:3]; slots[2] += rd[3:6]; slots[3] += rd[6:]
                for hk in hooks.get(("post", stage), []): slots[4].append(hk)
            elif last:
                slots[0].append(lambda a: a.bar("rf"))
            else:
                rd = g1_reads(st ^ 1, s + 1)
                slots[0] += rd[:3]; slots[1] += rd[3:6]; slots[2] += rd[6:]
            sh = hooks.get(("shadow", stage, s), [])
            for k, x in enumerate(sh):
                slots[2 + (k * 4) // len(sh)].append(x)
            sched(a, mf, slots)
            st ^= 1
        stamp(a, f"gs{stage}")

CSL = [152, 156, 168]
def cs_store_g(a):
    lab = a.label("nocsst")
    a.e(f"s_or_b32 s{S_T0}, s{S_TW}, s{S_CSH}")
    a.e(f"s_cmp_lg_u32 s{S_T0}, 0")
    a.e(f"s_cbranch_scc1 {lab}")
    for ap in range(3):
        a.e(f"v_accvgpr_read_b32 v{8+ap}, a{16*ap}")
    a.e(f"s_mul_i32 s{S_T0}, s{S_J}, 6")
    a.e(f"s_mul_i32 s{S_T1}, s{S_FW}, 3")
    a.e(f"s_add_u32 s{S_T0}, s{S_T0}, s{S_T1}")
    a.e(f"s_lshl_b32 s{S_T0}, s{S_T0}, 10")
    a.e(f"s_lshl_b32 s{S_T1}, s{S_I}, 2")
    a.e(f"s_add_u32 s{S_T0}, s{S_T0}, s{S_T1}")
    a.e(f"s_add_u32 s{S_T0}, s{S_T0}, {WS_CS}")
    a.e(f"v_lshl_add_u32 v6, v{V_LANE}, 5, s{S_T0}")
    a.e(f"s_mov_b64 s[{S_EXEC}:{S_EXEC+1}], exec")
    a.e("s_mov_b64 exec, 0xffffffff")
    for ap in range(3):
        a.e(f"global_store_dword v6, v{8+ap}, s[{P_WS}:{P_WS+1}] offset:{1024*ap} sc1")
    a.e(f"s_mov_b64 exec, s[{S_EXEC}:{S_EXEC+1}]")
    a.e(f"{lab}:")

def g1_post_loads(a):
    a.e(f"s_lshl_b32 s{S_T0}, s{S_I}, 7")
    a.e(f"s_lshl_b32 s{S_T1}, s{S_TW}, 6")
    a.e(f"s_add_u32 s{S_T0}, s{S_T0}, s{S_T1}")
    a.e(f"s_lshl_b32 s{S_T0}, s{S_T0}, 3")
    a.e(f"s_add_u32 s{S_T0}, s{S_T0}, {WS_STATS}")
    a.e(f"v_and_b32 v6, 31, v{V_LANE}")
    a.e(f"v_lshl_add_u32 v7, v6, 3, s{S_T0}")
    a.vm(f"global_load_dwordx2 v[2:3], v7, s[{P_WS}:{P_WS+1}] sc1", "post")
    a.vm(f"global_load_dwordx2 v[4:5], v7, s[{P_WS}:{P_WS+1}] offset:256 sc1", "post")
    a.e(f"s_mul_i32 s{S_T0}, s{S_J}, 6")
    a.e(f"s_mul_i32 s{S_T1}, s{S_FW}, 3")
    a.e(f"s_add_u32 s{S_T0}, s{S_T0}, s{S_T1}")
    a.e(f"s_lshl_b32 s{S_T0}, s{S_T0}, 10")
    a.e(f"s_add_u32 s{S_T0}, s{S_T0}, {WS_CS}")
    a.e(f"v_lshl_add_u32 v7, v6, 5, s{S_T0}")
    a.e(f"v_lshrrev_b32 v8, 5, v{V_LANE}")
    a.e(f"v_lshl_add_u32 v7, v8, 4, v7")
    for ap in range(3):
        a.vm(f"global_load_dwordx4 {vr(CSL[ap],4)}, v7, s[{P_WS}:{P_WS+1}] offset:{1024*ap} sc1", "post")

def g1_corr_prep():
    r = [lambda a: a.vm_wait("post")]
    e = r.append
    for b in CSL:
        e(f"v_add_f32 v{b}, v{b}, v{b+2}")
        e(f"v_add_f32 v{b+1}, v{b+1}, v{b+3}")
    for b in CSL: e(f"v_add_f32 v{b}, v{b}, v{b+1}")
    for b in CSL: e(f"v_mov_b32 v{b+1}, v{b}")
    e(f"v_cmp_gt_u32 vcc, 32, v{V_LANE}")
    e("v_nop")
    for b in CSL: e(f"v_permlane32_swap_b32 v{b}, v{b+1}")
    for b in CSL: e(f"v_add_f32 v{b}, v{b}, v{b+1}")
    for b in CSL: e(f"v_cvt_pk_bf16_f32 v{b+1}, v{b}, v{b}")
    for b in CSL: e(f"v_lshlrev_b32 v{b+2}, 16, v{b+1}")
    for b in CSL: e(f"v_sub_f32 v{b+2}, v{b}, v{b+2}")
    for b in CSL: e(f"v_cvt_pk_bf16_f32 v{b}, v{b}, v{b+2}")
    for b in CSL:
        e(f"v_cndmask_b32 v{b}, 0, v{b}, vcc")
        e(f"v_mov_b32 v{b+1}, 0"); e(f"v_mov_b32 v{b+2}, 0"); e(f"v_mov_b32 v{b+3}, 0")
    for tt in range(2):
        e(f"v_cndmask_b32 v{8+4*tt}, 0, v{3+2*tt}, vcc")
        for d in range(1, 4): e(f"v_mov_b32 v{8+4*tt+d}, 0")
    return r

def g1_corr_mfma(a):
    a.e("s_nop 1")
    for ap in range(3):
        for tt in range(2):
            a.e(f"v_mfma_f32_32x32x16_bf16 {vr(acc(tt,ap),16)}, {vr(CSL[ap],4)}, {vr(8+4*tt,4)}, {vr(acc(tt,ap),16)}")

C1 = -2.0 * math.sqrt(2.0 / math.pi) * math.log2(math.e)
C2 = C1 * 0.044715
def g1_epilogue(a):
    for tt in range(2):
        r_, b = 2 + 2*tt, 160 + 4*tt
        a.e(f"v_mul_f32 v{b+2}, v{r_}, v{r_}")
        a.e(f"v_mul_f32 v{b}, {fhex(C1)}, v{r_}")
        a.e(f"v_mul_f32 v{b+1}, {fhex(C2)}, v{r_}")
        a.e(f"v_mul_f32 v{b+1}, v{b+1}, v{b+2}")
        a.e(f"v_rcp_f32 v{b+2}, v{b+2}")
    a.e(f"s_lshl_b32 s{S_T0}, s{S_I}, 2")
    a.e(f"s_lshl_b32 s{S_T1}, s{S_TW}, 1")
    a.e(f"s_add_u32 s{S_T0}, s{S_T0}, s{S_T1}")
    a.e(f"s_mul_i32 s{S_T0}, s{S_T0}, 86")
    a.e(f"s_lshl_b32 s{S_T1}, s{S_U0}, 1")
    a.e(f"s_add_u32 s{S_T0}, s{S_T0}, s{S_T1}")
    a.e(f"s_mul_i32 s{S_T1}, s{S_FW}, 3")
    a.e(f"s_add_u32 s{S_T0}, s{S_T0}, s{S_T1}")
    a.e(f"s_lshl_b32 s{S_T0}, s{S_T0}, 10")
    a.e(f"s_add_u32 s{S_T0}, s{S_T0}, {WS_H}")
    a.e(f"v_lshl_add_u32 v168, v{V_LANE}, 4, s{S_T0}")
    a.e(f"v_add_u32 v169, {86*1024}, v168")
    a.e(f"s_sub_u32 s{S_T2}, s{S_NU}, s{S_T1}")
    a.e(f"s_lshl_b32 s{S_T0}, s{S_WG}, 12")
    a.e(f"s_add_u32 s{S_T0}, s{S_T0}, {WS_DUMMY}")
    a.e(f"v_lshl_add_u32 v170, v{V_LANE}, 4, s{S_T0}")
    a.e(f"s_cmp_gt_u32 s{S_T2}, 1")
    a.e(f"s_cselect_b64 s[74:75], -1, 0")
    a.e(f"v_cndmask_b32 v171, v170, v169, s[74:75]")
    a.e(f"v_cndmask_b32 v170, v170, v168, s[74:75]")
    T, Gq, X = 112, 120, 128
    for ap in range(3):
        for tt in range(2):
            c = acc(tt, ap); KK = 160 + 4*tt; S2 = 162 + 4*tt
            for p in range(4):
                a.e(f"v_pk_mul_f32 {vr(T+2*p,2)}, {vr(c+2*p,2)}, {vr(c+2*p,2)}")
            for p in range(4):
                a.e(f"v_pk_fma_f32 {vr(T+2*p,2)}, {vr(T+2*p,2)}, {vr(KK,2)}, {vr(KK,2)} op_sel:[0,1,0] op_sel_hi:[1,1,0]")
            for p in range(4):
                a.e(f"v_pk_mul_f32 {vr(T+2*p,2)}, {vr(T+2*p,2)}, {vr(c+2*p,2)}")
            for p in range(8):
                a.e(f"v_exp_f32 v{T+p}, v{T+p}")
            for p in range(4):
                a.e(f"v_pk_mul_f32 {vr(Gq+2*p,2)}, {vr(c+2*p,2)}, {vr(c+8+2*p,2)}")
            for p in range(4):
                a.e(f"v_pk_fma_f32 {vr(T+2*p,2)}, {vr(T+2*p,2)}, {vr(S2,2)}, {vr(S2,2)} op_sel_hi:[1,0,0]")
            for p in range(8):
                a.e(f"v_rcp_f32 v{T+p}, v{T+p}")
            a.e("s_nop 0")
            for p in range(4):
                a.e(f"v_pk_mul_f32 {vr(Gq+2*p,2)}, {vr(Gq+2*p,2)}, {vr(T+2*p,2)}")
            O = X + 4 * ((2 * ap + tt) % 2)
            for p in range(4):
                a.e(f"v_cvt_pk_bf16_f32 v{O+p}, v{Gq+2*p}, v{Gq+2*p+1}")
            adr = (168 + tt) if ap == 0 else (170 + tt)
            a.vm(f"global_store_dwordx4 v{adr}, {vr(O,4)}, s[{P_WS}:{P_WS+1}] offset:{1024*ap} sc1", "pubH")

V_WDOFF, V_WDL, V_WDA = 172, 173, 166
def wd_setup(a, t0, voff=V_WDOFF):
    mk_srd(a, SRD_WD, P_WD, 1376 * 1024)
    a.e(f"s_mul_i32 s{S_WDO}, s{S_W}, {352 * 1024}")
    a.e(f"s_lshl_b32 s{S_T0}, s{S_NT}, 7")
    a.e(f"s_add_u32 s{S_WDO}, s{S_WDO}, s{S_T0}")
    t = t0
    a.e(f"v_lshrrev_b32 v{t}, 3, v{V_LANE}")
    a.e(f"v_and_b32 v{t+1}, 7, v{V_LANE}")
    a.e(f"v_bfe_u32 v{t+2}, v{t}, 1, 1")
    a.e(f"v_lshlrev_b32 v{t+2}, 2, v{t+2}")
    a.e(f"v_xor_b32 v{t+1}, v{t+1}, v{t+2}")
    a.e(f"v_lshlrev_b32 v{t+1}, 4, v{t+1}")
    a.e(f"v_lshl_add_u32 v{voff}, v{t}, 10, v{t+1}")

def wd_lane_parts(a, t0):
    t = t0
    a.e(f"v_lshrrev_b32 v{t}, 4, v{V_LANE}")
    a.e(f"v_and_b32 v{t+1}, 1, v{t}")
    a.e(f"v_lshrrev_b32 v{t}, 1, v{t}")
    a.e(f"v_bfe_u32 v{t+2}, v{V_LANE}, 2, 2")
    a.e(f"v_lshl_add_u32 v{t+2}, v{t}, 2, v{t+2}")
    a.e(f"v_lshlrev_b32 v{t+2}, 7, v{t+2}")
    a.e(f"v_lshl_add_u32 v{t+2}, v{t+1}, 5, v{t+2}")
    a.e(f"v_and_b32 v{t+1}, 3, v{V_LANE}")
    a.e(f"v_lshl_add_u32 v{t+2}, v{t+1}, 3, v{t+2}")
    a.e(f"v_bfe_u32 v{t+1}, v{V_LANE}, 3, 1")
    a.e(f"v_lshlrev_b32 v{t+1}, 6, v{t+1}")
    a.e(f"v_add_u32 v{V_WDL}, v{t+2}, v{t+1}")
    a.e(f"v_xor_b32 v{t+1}, 64, v{t+1}")
    a.e(f"v_add_u32 v{V_WDL+1}, v{t+2}, v{t+1}")

def wd_groups(rnd, voff=V_WDOFF):
    lb, wsz, ks0, n = WD[rnd]
    out = []
    for q in range(2 * n):
        pre = [f"s_mul_i32 s{S_WDL}, s{S_W}, {wsz}", f"s_add_u32 s{S_WDS}, s{S_WDO}, {ks0*16384}"] if q == 0 else []
        out.append(Dma(pre, f"s_add_u32 m0, s{S_WDL}, {lb + q*1024}",
                       (f"buffer_load_dwordx4 v{voff}, s[{SRD_WD}:{SRD_WD+3}], s{S_WDS} offen lds", f"wd{rnd}"),
                       [f"s_add_u32 s{S_WDS}, s{S_WDS}, 8192"]))
    return out

def wd_addr(rnd):
    lb, wsz, ks0, n = WD[rnd]
    return [f"s_mul_i32 s{S_T0}, s{S_W}, {wsz}", f"s_add_u32 s{S_T0}, s{S_T0}, {lb}",
            f"v_add_u32 v{V_WDA}, s{S_T0}, v{V_WDL}", f"v_add_u32 v{V_WDA+1}, s{S_T0}, v{V_WDL+1}"]

def wd_tr_agpr(rnd):
    lb, wsz, ks0, n = WD[rnd]
    return [f"ds_read_b64_tr_b16 {ar(wd_areg(ks0+k) + 4*t + 2*h, 2)}, v{V_WDA+t} offset:{k*2048 + h*1024}"
            for k in range(n) for t in range(2) for h in range(2)]

G2_ACC, G2_H, G2_RING, G2_W = 16, 80, 8, 144
V_HA = 160
def acc2(t, tt): return G2_ACC + 16 * (2 * t + tt)

def h_setup(a):
    a.e(f"s_lshl_b32 s{S_T0}, s{S_I}, 2")
    a.e(f"s_lshl_b32 s{S_T1}, s{S_TH}, 1")
    a.e(f"s_add_u32 s{S_T0}, s{S_T0}, s{S_T1}")
    a.e(f"s_mul_i32 s{S_T0}, s{S_T0}, 86")
    a.e(f"s_mul_i32 s{S_T1}, s{S_W}, 22")
    a.e(f"s_add_u32 s{S_T0}, s{S_T0}, s{S_T1}")
    a.e(f"s_lshl_b32 s{S_T0}, s{S_T0}, 10")
    a.e(f"s_add_u32 s{S_T0}, s{S_T0}, {WS_H}")
    a.e(f"v_lshl_add_u32 v{V_HA}, v{V_LANE}, 4, s{S_T0}")
    a.e(f"v_add_u32 v{V_HA+1}, {86*1024}, v{V_HA}")
    a.e(f"s_movk_i32 s66, {4*1024}")
    a.e(f"s_movk_i32 s67, {5*1024}")
    a.e(f"s_cmp_eq_u32 s{S_W}, 3")
    a.e(f"s_cselect_b32 s66, {3*1024}, s66")
    a.e(f"s_cselect_b32 s67, {3*1024}, s67")

def h_load(q):
    R = G2_H + 8 * (q % G2_RING)
    it = []
    if q < 20:
        if q % 4 == 0 and q > 0:
            it += [f"v_add_u32 v{V_HA}, 4096, v{V_HA}", f"v_add_u32 v{V_HA+1}, 4096, v{V_HA+1}"]
        off = (q % 4) * 1024
        it += [(f"global_load_dwordx4 {vr(R,4)}, v{V_HA}, s[{P_WS}:{P_WS+1}] offset:{off} sc1", f"h{q}"),
               (f"global_load_dwordx4 {vr(R+4,4)}, v{V_HA+1}, s[{P_WS}:{P_WS+1}] offset:{off} sc1", f"h{q}")]
    else:
        sreg = 66 + (q - 20)
        it += [f"v_add_u32 v162, s{sreg}, v{V_HA}", f"v_add_u32 v163, s{sreg}, v{V_HA+1}",
               (f"global_load_dwordx4 {vr(R,4)}, v162, s[{P_WS}:{P_WS+1}] sc1", f"h{q}"),
               (f"global_load_dwordx4 {vr(R+4,4)}, v163, s[{P_WS}:{P_WS+1}] sc1", f"h{q}")]
    return it

def hy_poll_issue(a):
    a.e(f"s_lshl_b32 s{S_T0}, s{S_I}, 6")
    a.e(f"s_add_u32 s{S_T0}, s{S_T0}, {WS_FLAG_H}")
    a.e(f"v_and_b32 v8, 15, v{V_LANE}")
    a.e(f"v_lshl_add_u32 v8, v8, 2, s{S_T0}")
    a.e(f"s_lshl_b32 s{S_T0}, s{S_NT}, 7")
    a.e(f"s_add_u32 s{S_T0}, s{S_T0}, {WS_FLAG_Y}")
    a.e(f"v_and_b32 v9, 31, v{V_LANE}")
    a.e(f"v_lshl_add_u32 v9, v9, 2, s{S_T0}")
    a.vm(f"global_load_dword v10, v8, s[{P_WS}:{P_WS+1}] sc1", "ph")
    a.vm(f"global_load_dword v11, v9, s[{P_WS}:{P_WS+1}] sc1", "ph")

def hy_poll_check(a):
    top, ok = a.label("poll"), a.label("pollok")
    a.vm_wait("ph")
    a.e(f"s_mov_b32 s{S_SPIN}, 0")
    a.e(f"{top}:")
    a.e(f"v_cmp_ne_u32 vcc, s{S_TAG}, v10")
    a.e(f"v_cmp_ne_u32 s[74:75], s{S_TAG}, v11")
    a.e("s_nop 1")
    a.e("s_or_b64 vcc, vcc, s[74:75]")
    spin_tail(a, top, ok, [f"global_load_dword v10, v8, s[{P_WS}:{P_WS+1}] sc1", f"global_load_dword v11, v9, s[{P_WS}:{P_WS+1}] sc1"], OPT.get("hsleep", 8))

def res_reads(q):
    for rnd in (4, 5, 6):
        lb, wsz, ks0, n = WD[rnd]
        if ks0 <= q < ks0 + n:
            pre = wd_addr(rnd) if q == ks0 else []
            B = G2_W + 8 * (q % 2)
            return pre + [f"ds_read_b64_tr_b16 {vr(B + 4*t + 2*h, 2)}, v{V_WDA+t} offset:{(q-ks0)*2048 + h*1024}" for t in range(2) for h in range(2)]

def g2_main(a, hooks, n0):
    la = OPT.get("g2la", 7)
    nxt = n0
    for q in range(22):
        a.vm_wait(f"h{q}")
        if q >= 8:
            a.e("s_waitcnt lgkmcnt(0)")
        stamp(a, f"g2q{q}")
        R = G2_H + 8 * (q % G2_RING)
        mf = []
        for t in range(2):
            A = ar(wd_areg(q) + 4*t, 4) if wd_in_agpr(q) else vr(G2_W + 8*(q % 2) + 4*t, 4)
            for tt in range(2):
                mf.append(f"v_mfma_f32_32x32x16_bf16 {vr(acc2(t,tt),16)}, {A}, {vr(R+4*tt,4)}, {'0' if q == 0 else vr(acc2(t,tt),16)}")
        slots = {i: [] for i in range(4)}
        if q + 1 < 22 and not wd_in_agpr(q + 1):
            rr = res_reads(q + 1)
            if q + 1 == 8: rr = [lambda a: a.vm_wait("wd4", "wd5")] + rr
            slots[0] += rr
        k = 0
        while nxt < 22 and nxt - q <= la and k < 2 and nxt < q + G2_RING:
            slots[1 if k == 0 else 3].append(h_load(nxt)); nxt += 1; k += 1
        for hk in hooks.get(q, []): slots[2].append(hk)
        sched(a, mf, slots)

V_OUT = 14
V_X = 168
def x_loads(a):
    a.e(f"s_lshl_b32 s{S_T0}, s{S_I}, 7")
    a.e(f"s_lshl_b32 s{S_T1}, s{S_TH}, 6")
    a.e(f"s_add_u32 s{S_T0}, s{S_T0}, s{S_T1}")
    a.e(f"s_and_b32 s{S_T1}, s{S_W}, 1")
    a.e(f"s_lshl_b32 s{S_T1}, s{S_T1}, 5")
    a.e(f"s_add_u32 s{S_T0}, s{S_T0}, s{S_T1}")
    a.e(f"s_lshl_b32 s{S_T0}, s{S_T0}, 10")
    a.e(f"s_lshl_b32 s{S_T1}, s{S_NT}, 7")
    a.e(f"s_add_u32 s{S_T0}, s{S_T0}, s{S_T1}")
    a.e(f"s_lshr_b32 s{S_T1}, s{S_W}, 1")
    a.e(f"s_lshl_b32 s{S_T1}, s{S_T1}, 6")
    a.e(f"s_add_u32 s{S_T0}, s{S_T0}, s{S_T1}")
    a.e(f"v_and_b32 v12, 31, v{V_LANE}")
    a.e(f"v_lshlrev_b32 v12, 10, v12")
    a.e(f"v_lshrrev_b32 v13, 5, v{V_LANE}")
    a.e(f"v_lshl_add_u32 v12, v13, 3, v12")
    a.e(f"v_add_u32 v{V_OUT}, s{S_T0}, v12")
    for q in range(4):
        a.vm(f"global_load_dwordx2 {vr(V_X+2*q,2)}, v{V_OUT}, s[{P_X}:{P_X+1}] offset:{16*q}", "fx")
    a.e(f"v_lshl_add_u32 v{V_OUT}, v13, 3, v{V_OUT}")

def y_loads(a):
    a.e(f"s_lshl_b32 s{S_T0}, s{S_I}, 1")
    a.e(f"s_add_u32 s{S_T0}, s{S_T0}, s{S_TH}")
    a.e(f"s_lshl_b32 s{S_T0}, s{S_T0}, 16")
    a.e(f"s_lshl_b32 s{S_T1}, s{S_NT}, 13")
    a.e(f"s_add_u32 s{S_T0}, s{S_T0}, s{S_T1}")
    a.e(f"s_add_u32 s{S_T0}, s{S_T0}, {WS_Y}")
    a.e(f"v_lshl_add_u32 v10, v0, 4, s{S_T0}")
    a.e(f"v_add_u32 v11, 4096, v10")
    a.vm(f"global_load_dwordx4 v[2:5], v10, s[{P_WS}:{P_WS+1}] sc1", "fy")
    a.vm(f"global_load_dwordx4 v[6:9], v11, s[{P_WS}:{P_WS+1}] sc1", "fy")

def y_check(a):
    top, ok = a.label("ychk"), a.label("yok")
    a.vm_wait("fy")
    a.e(f"s_mov_b32 s{S_SPIN}, 0")
    a.e(f"{top}:")
    a.e("v_max3_u32 v12, v2, v3, v4")
    a.e("v_max3_u32 v13, v5, v6, v7")
    a.e("v_max3_u32 v12, v12, v8, v9")
    a.e("v_max_u32 v12, v12, v13")
    a.e("v_cmp_eq_u32 vcc, -1, v12")
    a.e("s_nop 1")
    spin_tail(a, top, ok, [f"global_load_dwordx4 v[2:5], v10, s[{P_WS}:{P_WS+1}] sc1", f"global_load_dwordx4 v[6:9], v11, s[{P_WS}:{P_WS+1}] sc1"])

def final_prep(a):
    a.e(f"v_lshlrev_b32 v162, 4, v{V_LANE}")
    a.e(f"s_mul_i32 s{S_T0}, s{S_W}, {3*4096}")
    a.e(f"v_add_u32 v163, s{S_T0}, v162")
    a.e(f"v_lshrrev_b32 v12, 3, v0")
    a.e(f"v_mul_u32_u24 v12, 192, v12")
    a.e(f"v_and_b32 v13, 7, v0")
    a.e(f"v_lshl_add_u32 v164, v13, 4, v12")
    a.e(f"v_add_u32 v164, {L_YB}, v164")
    a.e(f"v_lshrrev_b32 v12, 4, v{V_LANE}")
    a.e(f"v_and_b32 v13, 1, v12")
    a.e(f"v_lshrrev_b32 v12, 1, v12")
    a.e(f"v_bfe_u32 v165, v{V_LANE}, 2, 2")
    a.e(f"v_lshl_add_u32 v165, v12, 2, v165")
    a.e(f"v_mul_u32_u24 v165, 192, v165")
    a.e(f"v_lshl_add_u32 v165, v13, 5, v165")
    a.e(f"v_and_b32 v13, 3, v{V_LANE}")
    a.e(f"v_lshl_add_u32 v165, v13, 3, v165")
    a.e(f"s_lshr_b32 s{S_T0}, s{S_W}, 1")
    a.e(f"s_mul_i32 s{S_T0}, s{S_T0}, {32*192}")
    a.e(f"s_and_b32 s{S_T1}, s{S_W}, 1")
    a.e(f"s_lshl_b32 s{S_T1}, s{S_T1}, 6")
    a.e(f"s_add_u32 s{S_T0}, s{S_T0}, s{S_T1}")
    a.e(f"s_add_u32 s{S_T0}, s{S_T0}, {L_YB}")
    a.e(f"v_add_u32 v165, s{S_T0}, v165")

def red_ref(u, q):
    return 162, RED_UNIT[u] + q * 1024

def final(a):
    OWN, XF = 80, 96
    P = 112
    end = a.label("redend")
    labs = [a.label("redw") for _ in range(4)]
    for w in range(1, 4):
        a.e(f"s_cmp_eq_u32 s{S_W}, {w}")
        a.e(f"s_cbranch_scc1 {labs[w]}")
    for w in range(4):
        a.e(f"{labs[w]}:")
        a.e("s_nop 9")
        for o in range(4):
            if o == w: continue
            u = 3*o + ((w - o - 1) & 3)
            for q in range(4):
                r_, off = red_ref(u, q)
                a.e(f"ds_write_b128 v{r_}, {vr(G2_ACC+16*o+4*q,4)} offset:{off}")
        for q in range(8):
            a.e(f"v_pk_mul_f32 {vr(OWN+2*q,2)}, {vr(G2_ACC+16*w+2*q,2)}, 1.0 op_sel_hi:[1,0]")
        if w < 3: a.e(f"s_branch {end}")
    a.e(f"{end}:")
    y_check(a)
    stamp(a, "fy")
    a.e("ds_write_b128 v164, v[2:5]")
    a.e(f"ds_write_b128 v164, v[6:9] offset:{32*192}")
    a.vm_wait("fx")
    for q in range(8):
        a.e(f"v_lshlrev_b32 v{XF+2*q}, 16, v{V_X+q}")
        a.e(f"v_and_b32 v{XF+2*q+1}, 0xffff0000, v{V_X+q}")
    for q in range(8):
        a.e(f"v_pk_add_f32 {vr(OWN+2*q,2)}, {vr(OWN+2*q,2)}, {vr(XF+2*q,2)}")
    a.e("s_waitcnt lgkmcnt(0)")
    a.bar("fin")
    for q in range(4):
        a.e(f"ds_read_b64_tr_b16 {vr(2+2*q,2)}, v165 offset:{1536*q}")
    for sl in range(3):
        for q in range(4):
            a.e(f"ds_read_b128 {vr(P+16*sl+4*q,4)}, v163 offset:{4096*sl + 1024*q}")
    a.e("s_waitcnt lgkmcnt(12)")
    for q in range(8):
        a.e(f"v_lshlrev_b32 v{XF+2*q}, 16, v{2+q}")
        a.e(f"v_and_b32 v{XF+2*q+1}, 0xffff0000, v{2+q}")
    for q in range(8):
        a.e(f"v_pk_add_f32 {vr(OWN+2*q,2)}, {vr(OWN+2*q,2)}, {vr(XF+2*q,2)}")
    for sl in range(3):
        a.e(f"s_waitcnt lgkmcnt({8 - 4*sl})")
        for q in range(8):
            a.e(f"v_pk_add_f32 {vr(OWN+2*q,2)}, {vr(OWN+2*q,2)}, {vr(P+16*sl+2*q,2)}")
    for q in range(8):
        a.e(f"v_cvt_pk_bf16_f32 v{2+q}, v{OWN+2*q}, v{OWN+2*q+1}")
    a.e("s_nop 1")
    for p in range(2):
        a.e(f"v_permlane32_swap_b32 v{2+4*p}, v{4+4*p}")
        a.e(f"v_permlane32_swap_b32 v{3+4*p}, v{5+4*p}")
    for p in range(2):
        a.vm(f"global_store_dwordx4 v{V_OUT}, {vr(2+4*p,4)}, s[{P_OUT}:{P_OUT+1}] offset:{32*p} nt", "out")


def role_g(a):
    if OPT.get("prio", 1): a.e("s_setprio 1")
    g_setup(a)
    a.e("s_waitcnt lgkmcnt(0)")
    a.e(f"s_mov_b32 s{S_ROLE}, 0")
    a.vm("global_load_dwordx4 v[44:47], v7, s[16:17]", "ln")
    a.vm("global_load_dwordx4 v[48:51], v7, s[16:17] offset:1024", "ln")
    epoch_load(a, 3, 6)
    stamp(a, 0, real=True); stamp(a, 1)
    epoch_finish(a, 6)
    ln_first(a)
    stamp(a, "ln")
    a.e("s_waitcnt lgkmcnt(0)")
    a.bar("b0")
    stamp(a, "b0")
    for x in g1_reads(0, 0)[:0]: a.e(x)
    for q in range(2):
        a.e(f"ds_read_b64_tr_b16 v[{8+4*q}:{9+4*q}], v2 offset:{128*q}")
        a.e(f"ds_read_b64_tr_b16 v[{10+4*q}:{11+4*q}], v2 offset:{128*q + 4*1088}")
    for x in g1_reads(0, 0): a.e(x)
    a.e("s_waitcnt lgkmcnt(8)")
    a.vm(f"global_store_dwordx4 v3, v[8:11], s[{P_WS}:{P_WS+1}] sc1", "pubA")
    a.vm(f"global_store_dwordx4 v3, v[12:15], s[{P_WS}:{P_WS+1}] offset:1024 sc1", "pubA")
    PS = OPT.get("pubstage", 1)
    def bump(a):
        lab = a.label("nobump")
        a.e(f"s_or_b32 s{S_T0}, s{S_WG}, s{S_W}")
        a.e(f"s_cmp_lg_u32 s{S_T0}, 0")
        a.e(f"s_cbranch_scc1 {lab}")
        a.e(f"s_add_u32 s{S_T0}, s{S_EP}, 1")
        a.e("v_mov_b32 v6, 0")
        a.e(f"v_mov_b32 v7, s{S_T0}")
        a.e(f"s_mov_b64 s[{S_EXEC}:{S_EXEC+1}], exec")
        a.e("s_mov_b64 exec, 1")
        a.e(f"global_store_dword v6, v7, s[{P_WS}:{P_WS+1}] sc1")
        a.e(f"s_mov_b64 exec, s[{S_EXEC}:{S_EXEC+1}]")
        a.e(f"{lab}:")
    def chk(a):
        stamp(a, "chk0")
        ln_poll_check(a, 165, 152)
        stamp(a, "chk1")
        bump(a)
        g1_post_loads(a)
    if OPT.get("csg", 0):
        for r_ in range(4): a.e(f"v_mov_b32 v{168+r_}, 0x3f803f80")
    def pre_pub(a):
        if OPT.get("csg", 0):
            a.e("s_waitcnt vmcnt(0)"); a.vmq = []
        else:
            a.vm_wait("pubA")
    hooks = {("pre", PS): [pre_pub],
             ("post", PS): [lambda a: flag_store(a, WS_FLAG_LN, idx_ln, 6, 7)],
             ("post", OPT.get("pollstage", 5)): [lambda a: ln_poll_issue(a, 165, 152)],
             ("post", 6): [chk],
             ("shadow", 7, 2): g1_corr_prep()}
    if OPT.get("csg", 0):
        hooks[("shadow", 1, 0)] = [cs_store_g]
    rw = Rec(a); wd_setup(rw, 6); wd_lane_parts(rw, 6)
    hooks[("shadow", 4, 1)] = [o[1] for o in rw.ops]
    g1_main(a, hooks)
    stamp(a, "loop")
    if OPT.get("gprio2") is not None: a.e(f"s_setprio {OPT['gprio2']}")
    g1_corr_mfma(a)
    r = Rec(a)
    g1_epilogue(r)
    replay(a, r.ops, [], every=16, start=34)
    stamp(a, "epi")
    h_setup(a)
    a.vm_wait("pubH")
    a.bar("k")
    stamp(a, "bk")
    flag_store(a, WS_FLAG_H, idx_h, 6, 7)
    flag_store(a, WS_FLAG_Y, idx_y, 6, 7)
    stamp(a, "hpub")
    for x in wd_addr(1) + wd_tr_agpr(1) + wd_addr(2) + wd_tr_agpr(2): a.e(x)
    a.e("s_waitcnt lgkmcnt(0)")
    for g in wd_groups(4) + wd_groups(5): emit(a, g)
    a.bar("p")
    hy_poll_issue(a)
    hy_poll_check(a)
    stamp(a, "hflag")
    N0 = OPT.get("g2n0", 4)
    for q in range(N0): emit(a, h_load(q))
    a.e("s_waitcnt lgkmcnt(0)")
    hk = {}
    def after_cd(a):
        a.bar("cd")
        for x in wd_addr(3) + wd_tr_agpr(3): a.e(x.replace(f"v{V_WDA+1}", "v13").replace(f"v{V_WDA}", "v12"))
    for q, f in ((OPT.get("cxq", 2), lambda a: a.bar("cx")), (OPT.get("cdq", 4), after_cd), (OPT.get("xld", 18), x_loads), (OPT.get("fprep", 19), final_prep), (OPT.get("yld", 13), y_loads), (17, lambda a: a.bar("rd"))):
        hk.setdefault(q, []).append(f)
    g2_main(a, hk, N0)
    stamp(a, "g2")
    final(a)
    stamp(a, "fin")
    a.e("s_waitcnt vmcnt(0)")
    stamp(a, 9, real=True)
    prof_store(a)
    a.e("s_endpgm")


C_XOFF, C_WOFF = 2, 6
C_AADDR = 9
C_P = 160
C_XT = 168
def c_setup(a):
    a.e(f"s_lshl_b32 s{S_T0}, s{S_I}, 7")
    a.e(f"s_lshl_b32 s{S_T1}, s{S_W}, 5")
    a.e(f"s_add_u32 s{S_T0}, s{S_T0}, s{S_T1}")
    a.e(f"s_lshl_b32 s{S_XW}, s{S_T0}, 10")
    a.e(f"s_lshl_b32 s{S_LX}, s{S_W}, 12")
    a.e(f"s_add_u32 s{S_KC}, s{S_I}, s{S_J}")
    a.e(f"s_and_b32 s{S_KC}, s{S_KC}, 7")
    a.e(f"s_mul_i32 s{S_WW}, s{S_W}, {16 * 2752}")
    a.e(f"s_lshl_b32 s{S_T0}, s{S_U0}, 6")
    a.e(f"s_add_u32 s{S_WW}, s{S_WW}, s{S_T0}")
    a.e(f"s_mul_i32 s{S_LW}, s{S_W}, 3072")
    a.e(f"v_lshrrev_b32 v12, 3, v{V_LANE}")
    a.e(f"v_and_b32 v13, 7, v{V_LANE}")
    a.e(f"v_lshrrev_b32 v14, 1, v12")
    a.e(f"v_xor_b32 v15, v14, v13")
    a.e(f"v_lshlrev_b32 v16, 4, v15")
    a.e(f"v_lshl_add_u32 v{C_XOFF}, v12, 10, v16")
    a.e(f"v_xor_b32 v17, 64, v{C_XOFF}")
    a.e(f"v_add_u32 v{C_XOFF+1}, 8192, v17")
    a.e(f"v_add_u32 v{C_XOFF+2}, 16384, v{C_XOFF}")
    a.e(f"v_add_u32 v{C_XOFF+3}, 16384, v{C_XOFF+1}")
    for q in range(3):
        a.e(f"v_add_u32 v12, {64*q}, v{V_LANE}")
        a.e(f"v_mul_u32_u24 v13, 5462, v12")
        a.e(f"v_lshrrev_b32 v13, 16, v13")
        a.e(f"v_mul_u32_u24 v14, 12, v13")
        a.e(f"v_sub_u32 v14, v12, v14")
        a.e(f"v_mul_u32_u24 v13, 2752, v13")
        a.e(f"v_lshl_add_u32 v{C_WOFF+q}, v14, 4, v13")

def stage_offsets():
    return [f"s_lshl_b32 s{S_XO}, s{S_KC}, 7", f"s_add_u32 s{S_XO}, s{S_XO}, s{S_XW}",
            f"s_mul_i32 s{S_WO}, s{S_KC}, {64 * 2752}", f"s_add_u32 s{S_WO}, s{S_WO}, s{S_WW}",
            f"s_add_u32 s{S_KC}, s{S_KC}, 1", f"s_and_b32 s{S_KC}, s{S_KC}, 7"]

def stage_dma(stage):
    S = (stage % 3) * SLOT; tag = f"st{stage}"
    out = []
    for q in range(4):
        out.append(Dma([], f"s_add_u32 m0, s{S_LX}, {S + L_X + q * 1024}", (f"buffer_load_dwordx4 v{C_XOFF+q}, s[{SRD_X}:{SRD_X+3}], s{S_XO} offen lds", tag)))
    for q in range(3):
        out.append(Dma([], f"s_add_u32 m0, s{S_LW}, {S + L_G + q * 1024}", (f"buffer_load_dwordx4 v{C_WOFF+q}, s[{SRD_WG}:{SRD_WG+3}], s{S_WO} offen lds", tag)))
        out.append(Dma([], f"s_add_u32 m0, s{S_LW}, {S + L_U + q * 1024}", (f"buffer_load_dwordx4 v{C_WOFF+q}, s[{SRD_WU}:{SRD_WU+3}], s{S_WO} offen lds", tag)))
    out[0] = stage_offsets() + list(out[0])
    return out

def cs_block(a):
    lab = a.label("nocs")
    a.e(f"s_cmp_lg_u32 s{S_CSH}, 0")
    a.e(f"s_cbranch_scc1 {lab}")
    FRG, ACC, ON = 64, 112, 60
    for r in range(4): a.e(f"v_mov_b32 v{ON+r}, 0x3f803f80")
    for s in range(4):
        for ap in range(3):
            for h in range(2):
                a.e(f"ds_read_b64_tr_b16 {vr(FRG+12*s+4*ap+2*h,2)}, v{C_AADDR} offset:{s*3072 + h*768 + ap*32}")
    a.e("s_waitcnt lgkmcnt(0)")
    for s in range(4):
        for ap in range(3):
            a.e(f"v_mfma_f32_32x32x16_bf16 {vr(ACC+16*ap,16)}, {vr(ON,4)}, {vr(FRG+12*s+4*ap,4)}, {'0' if s == 0 else vr(ACC+16*ap,16)}")
    a.e(f"s_mul_i32 s{S_T0}, s{S_J}, 6")
    a.e(f"s_mul_i32 s{S_T1}, s{S_FW}, 3")
    a.e(f"s_add_u32 s{S_T0}, s{S_T0}, s{S_T1}")
    a.e(f"s_lshl_b32 s{S_T0}, s{S_T0}, 10")
    a.e(f"s_lshl_b32 s{S_T1}, s{S_I}, 2")
    a.e(f"s_add_u32 s{S_T0}, s{S_T0}, s{S_T1}")
    a.e(f"s_add_u32 s{S_T0}, s{S_T0}, {WS_CS}")
    a.e(f"v_lshl_add_u32 v59, v{V_LANE}, 5, s{S_T0}")
    lab2 = a.label("nocsst")
    a.e(f"s_cmp_ge_u32 s{S_W}, 2")
    a.e(f"s_cbranch_scc1 {lab2}")
    a.e("s_nop 7")
    a.e(f"s_mov_b64 s[{S_EXEC}:{S_EXEC+1}], exec")
    a.e("s_mov_b64 exec, 0xffffffff")
    for ap in range(3):
        a.e(f"global_store_dword v59, v{ACC+16*ap}, s[{P_WS}:{P_WS+1}] offset:{1024*ap} sc1")
    a.e(f"s_mov_b64 exec, s[{S_EXEC}:{S_EXEC+1}]")
    a.e(f"{lab2}:")
    a.e(f"{lab}:")

def kgen_loads(a):
    a.e(f"s_lshl_b32 s{S_T0}, s{S_D}, 8")
    a.e(f"s_lshl_b32 s{S_T1}, s{S_MH}, 7")
    a.e(f"s_add_u32 s{S_T0}, s{S_T0}, s{S_T1}")
    a.e(f"v_lshl_add_u32 v12, v{V_LANE}, 1, s{S_T0}")
    for q, p in enumerate([P_ARE, P_AIM, P_BRE, P_BIM, P_CRE, P_CIM]):
        a.vm(f"global_load_ushort v{C_P+q}, v12, s[{p}:{p+1}]", "kp")
    a.e(f"s_lshl_b32 s{S_T0}, s{S_D}, 1")
    a.e(f"v_mov_b32 v13, s{S_T0}")
    a.vm(f"global_load_ushort v{C_P+6}, v13, s[{P_LDT}:{P_LDT+1}]", "kp")
    a.vm(f"global_load_ushort v{C_P+7}, v13, s[{P_DSK}:{P_DSK+1}]", "kp")

KS = 64
def kgen_prog():
    out = []; e = out.append
    P = C_P
    AL, BE, CO = 10, 11, 12
    Z1, Z2, Z4, Z8, Z256, Z512 = 14, 16, 18, 20, 22, 24
    A0, A1, B0, B1, C0, C1_, CB, D0, D1, DB0, DB1 = 26, 28, 30, 32, 34, 36, 38, 40, 42, 44, 46
    T = 48
    for q in range(8): e(f"v_lshlrev_b32 v{P+q}, 16, v{P+q}")
    e(f"v_mul_f32 v58, 0x3fb8aa3b, v{P+6}")
    e("v_exp_f32 v58, v58")
    e(f"v_mov_b32 v{A0}, 1.0")
    e(f"v_cvt_pk_bf16_f32 v58, v58, v58")
    e(f"v_mov_b32 v{A0+1}, 0")
    e(f"v_lshlrev_b32 v58, 16, v58")
    e(f"v_mul_f32 v{AL}, v58, v{P}"); e(f"v_mul_f32 v{BE}, v58, v{P+1}")
    e(f"v_mul_f32 v56, v58, v{P+2}"); e(f"v_mul_f32 v57, v58, v{P+3}")
    e(f"v_mul_f32 v{AL}, 0x3fb8aa3b, v{AL}"); e(f"v_mul_f32 v{BE}, 0.15915494, v{BE}")
    e(f"v_mul_f32 v{CO}, v{P+4}, v56"); e(f"v_mul_f32 v{CO+1}, v{P+4}, v57")
    e(f"v_fma_f32 v{CO}, -v{P+5}, v57, v{CO}"); e(f"v_fma_f32 v{CO+1}, v{P+5}, v56, v{CO+1}")
    items = [(Z1, 1, T), (Z8, 8, T+2), (Z256, 256, T+4), (B0, 128, T+6)]
    for d, p, t in items:
        e(f"v_mul_f32 v{t}, {fhex(float(p))}, v{AL}"); e(f"v_mul_f32 v{t+1}, {fhex(float(p))}, v{BE}")
    for d, p, t in items:
        e(f"v_exp_f32 v{t}, v{t}"); e(f"v_fract_f32 v{t+1}, v{t+1}")
    for d, p, t in items:
        e(f"v_cos_f32 v{d}, v{t+1}"); e(f"v_sin_f32 v{d+1}, v{t+1}")
    e("v_nop")
    for d, p, t in items:
        e(f"v_mul_f32 v{d}, v{d}, v{t}"); e(f"v_mul_f32 v{d+1}, v{d+1}, v{t}")
    def cm(d, x, y):
        return [f"v_mul_f32 v{d}, v{x}, v{y}", f"v_mul_f32 v{d+1}, v{x}, v{y+1}",
                f"v_fma_f32 v{d}, -v{x+1}, v{y+1}, v{d}", f"v_fma_f32 v{d+1}, v{x+1}, v{y}, v{d+1}"]
    def put(vec, pr):
        return [f"v_cvt_pk_bf16_f32 v{KS+vec}, v{pr}, {'-' if vec < 32 else ''}v{pr+1}"]
    for d, x, y in ((Z2, Z1, Z1), (Z512, Z256, Z256), (CB, CO, Z256), (Z4, Z2, Z2), (DB0, CO, Z512)):
        out += cm(d, x, y)
    sA = [('p', 32, A0)]; cur, oth = A0, A1
    for b in range(1, 16):
        sA += [('m', oth, cur, Z8), ('p', 32 + b, oth)]; cur, oth = oth, cur
    sB = [('p', 48, B0)]; cur, oth = B0, B1
    for b in range(17, 32):
        sB += [('m', oth, cur, Z8), ('p', 32 + b, oth)]; cur, oth = oth, cur
    sC = [('p', 0, CO)]; cur = CO
    for ee in range(1, 8):
        d = (C0, C1_)[ee % 2]; sC += [('m', d, cur, Z1), ('p', ee, d)]; cur = d
    sC += [('p', 8, CB), ('m', C0, CB, Z2), ('p', 9, C0), ('m', C1_, C0, Z2), ('p', 10, C1_), ('p', 12, C1_),
           ('m', C0, C1_, Z2), ('p', 13, C0), ('m', C1_, C0, Z2), ('p', 14, C1_)]
    sD = [('p', 16, DB0), ('m', D0, DB0, Z4), ('p', 17, D0), ('p', 20, D0), ('m', D1, D0, Z4), ('p', 21, D1),
          ('m', DB1, DB0, Z256), ('p', 18, DB1), ('m', D0, DB1, Z4), ('p', 19, D0), ('p', 22, D0), ('m', D1, D0, Z4), ('p', 23, D1)]
    prev, nxt = DB1, DB0
    for q in range(4):
        sD += [('m', nxt, prev, Z256), ('p', 24 + q, nxt), ('m', (D0, D1)[q % 2], nxt, Z8), ('p', 28 + q, (D0, D1)[q % 2])]
        prev, nxt = nxt, prev
    seqs = [sA, sB, sC, sD]; pos = [0]*4
    while any(pos[q] < len(seqs[q]) for q in range(4)):
        for q in range(4):
            if pos[q] < len(seqs[q]):
                st = seqs[q][pos[q]]; pos[q] += 1
                out += put(st[1], st[2]) if st[0] == 'p' else cm(st[1], st[2], st[3])
    return out

def kv_writes():
    pre = [f"s_mul_i32 s{S_T0}, s{S_CH}, {KV_CH}", f"s_lshl_b32 s{S_T1}, s{S_MH}, 8", f"s_add_u32 s{S_T0}, s{S_T0}, s{S_T1}",
           f"s_add_u32 s{S_T0}, s{S_T0}, {L_KV}", f"v_lshl_add_u32 v58, v{V_LANE}, 2, s{S_T0}"]
    return pre + [f"ds_write_b32 v58, v{KS+v} offset:{v*528}" for v in range(64) if v not in (11, 15)]

def wd_touch(a):
    a.e(f"s_mul_i32 s{S_T0}, s{S_WG}, 5504")
    a.e(f"s_lshl_b32 s{S_T1}, s{S_W}, 10")
    a.e(f"s_add_u32 s{S_T0}, s{S_T0}, s{S_T1}")
    a.e(f"v_lshl_add_u32 v52, v{V_LANE}, 4, s{S_T0}")
    mk_srd(a, SRD_WD, P_WD, 1376 * 1024)
    a.vm(f"buffer_load_dwordx4 v[136:139], v52, s[{SRD_WD}:{SRD_WD+3}], 0 offen", "pf")
    a.e(f"v_add_u32 v52, 4096, v52")
    a.vm(f"buffer_load_dwordx4 v[136:139], v52, s[{SRD_WD}:{SRD_WD+3}], 0 offen", "pf")

def y_clear(a):
    a.e(f"s_and_b32 s{S_T0}, s{S_WG}, 7")
    a.e(f"s_lshr_b32 s{S_T1}, s{S_WG}, 3")
    a.e(f"s_lshl_b32 s{S_T0}, s{S_T0}, 6")
    a.e(f"s_lshl_b32 s{S_T1}, s{S_T1}, 1")
    a.e(f"s_add_u32 s{S_T0}, s{S_T0}, s{S_T1}")
    a.e(f"s_lshl_b32 s{S_T0}, s{S_T0}, 7")
    a.e(f"s_add_u32 s{S_T0}, s{S_T0}, {WS_Y}")
    a.e(f"s_lshl_b32 s{S_T1}, s{S_W}, 6")
    a.e(f"v_add_u32 v52, s{S_T1}, v{V_LANE}")
    a.e(f"v_lshrrev_b32 v53, 4, v52")
    a.e(f"v_lshlrev_b32 v53, 16, v53")
    a.e(f"v_and_b32 v52, 15, v52")
    a.e(f"v_lshl_add_u32 v52, v52, 4, v53")
    a.e(f"v_add_u32 v52, s{S_T0}, v52")
    a.e(f"v_add_u32 v53, {16*65536}, v52")
    for q in range(4): a.e(f"v_mov_b32 v{128+q}, -1")
    a.vm(f"global_store_dwordx4 v52, v[128:131], s[{P_WS}:{P_WS+1}] sc1", "ycl")
    a.vm(f"global_store_dwordx4 v53, v[128:131], s[{P_WS}:{P_WS+1}] sc1", "ycl")

def xt_loads(a):
    a.e(f"s_and_b32 s{S_T0}, s{S_WG}, 7")
    a.e(f"s_lshr_b32 s{S_T1}, s{S_WG}, 3")
    a.e(f"s_lshl_b32 s{S_T0}, s{S_T0}, 6")
    a.e(f"s_lshl_b32 s{S_T1}, s{S_T1}, 1")
    a.e(f"s_add_u32 s{S_T0}, s{S_T0}, s{S_T1}")
    a.e(f"s_lshl_b32 s{S_T0}, s{S_T0}, 4")
    a.e(f"s_lshl_b32 s{S_T1}, s{S_W}, 19")
    a.e(f"s_add_u32 s{S_T0}, s{S_T0}, s{S_T1}")
    a.e(f"s_add_u32 s{S_T0}, s{S_T0}, {WS_XT}")
    a.e(f"v_lshrrev_b32 v52, 1, v{V_LANE}")
    a.e(f"v_lshlrev_b32 v52, 13, v52")
    a.e(f"v_and_b32 v53, 1, v{V_LANE}")
    a.e(f"v_lshl_add_u32 v52, v53, 4, v52")
    a.e(f"v_add_u32 v52, s{S_T0}, v52")
    a.vm(f"global_load_dwordx4 {vr(C_XT,4)}, v52, s[{P_WS}:{P_WS+1}] sc1", "xt")
    a.e(f"v_add_u32 v52, {32*8192}, v52")
    a.vm(f"global_load_dwordx4 {vr(C_XT+4,4)}, v52, s[{P_WS}:{P_WS+1}] sc1", "xt")
    a.e(f"s_add_u32 s{S_T0}, s{S_T0}, {64*8192}")
    a.e(f"v_lshl_add_u32 v53, v53, 4, s{S_T0}")
    a.vm(f"global_load_dword v160, v53, s[{P_WS}:{P_WS+1}] sc1", "xt")

def u_build(a):
    a.vm_wait("xt")
    O = 132
    a.e(f"v_add_u32 v48, 2, v{V_LANE}")
    a.e("v_and_b32 v48, 63, v48")
    a.e("v_lshlrev_b32 v48, 2, v48")
    a.e(f"ds_bpermute_b32 v49, v48, v{C_XT}")
    a.e(f"ds_bpermute_b32 v50, v48, v{C_XT+4}")
    for q in range(2):
        X = C_XT + 4*q
        for k in range(3):
            a.e(f"v_alignbit_b32 v{O+4*q+k}, v{X+k+1}, v{X+k}, 16")
    a.e(f"v_and_b32 v51, 1, v{V_LANE}")
    a.e(f"v_mul_u32_u24 v51, {UU_CH}, v51")
    a.e(f"v_lshrrev_b32 v48, 1, v{V_LANE}")
    a.e("v_lshl_add_u32 v51, v48, 4, v51")
    a.e(f"s_lshl_b32 s{S_T0}, s{S_W}, 10")
    a.e(f"s_add_u32 s{S_T0}, s{S_T0}, {L_UU + 32}")
    a.e(f"v_cmp_gt_u32 vcc, 62, v{V_LANE}")
    a.e(f"v_add_u32 v51, s{S_T0}, v51")
    a.e("s_waitcnt lgkmcnt(0)")
    a.e("v_cndmask_b32 v49, v50, v49, vcc")
    a.e("v_cndmask_b32 v50, v160, v50, vcc")
    a.e(f"v_alignbit_b32 v{O+3}, v49, v{C_XT+3}, 16")
    a.e(f"v_alignbit_b32 v{O+7}, v50, v{C_XT+7}, 16")
    a.e(f"ds_write_b128 v51, {vr(C_XT,4)}")
    a.e(f"ds_write_b128 v51, {vr(C_XT+4,4)} offset:512")
    a.e(f"ds_write_b128 v51, {vr(O,4)} offset:4160")
    a.e(f"ds_write_b128 v51, {vr(O+4,4)} offset:{4160+512}")
    lab = a.label("nopad")
    a.e(f"s_cmp_lg_u32 s{S_W}, 0")
    a.e(f"s_cbranch_scc1 {lab}")
    a.e(f"v_lshlrev_b32 v48, 16, v{C_XT}")
    a.e(f"v_lshrrev_b32 v49, 3, v{V_LANE}")
    a.e(f"v_mul_u32_u24 v49, {UU_CH}, v49")
    a.e(f"v_and_b32 v50, 7, v{V_LANE}")
    a.e("v_lshl_add_u32 v49, v50, 2, v49")
    a.e(f"v_add_u32 v49, {L_UU}, v49")
    a.e("v_mov_b32 v50, 0")
    a.e(f"s_mov_b64 s[{S_EXEC}:{S_EXEC+1}], exec")
    a.e("s_mov_b64 exec, 0xffff")
    a.e("ds_write_b32 v49, v50")
    a.e("s_mov_b64 exec, 0x7f7f")
    a.e("ds_write_b32 v49, v50 offset:4160")
    a.e("s_mov_b64 exec, 3")
    a.e(f"ds_write_b32 v51, v48 offset:{4160 - 4}")
    a.e(f"s_mov_b64 exec, s[{S_EXEC}:{S_EXEC+1}]")
    a.e(f"{lab}:")

CV_A, CV_B, CV_ACC = [16, 80], [48, 112], 144
CVA, CVB, V_DSK = 2, 10, 11
def conv_addr(a):
    t = 12
    a.e(f"v_and_b32 v{t}, 15, v{V_LANE}")
    a.e(f"v_lshrrev_b32 v{t+1}, 4, v{V_LANE}")
    a.e(f"v_and_b32 v{t+2}, 1, v{t+1}")
    a.e(f"v_lshrrev_b32 v{t+1}, 1, v{t+1}")
    a.e(f"v_lshlrev_b32 v{t+3}, 5, v{t+1}")
    a.e(f"v_lshlrev_b32 v{t+2}, 4, v{t+2}")
    a.e(f"v_sub_u32 v{t+3}, v{t+3}, v{t+2}")
    a.e(f"s_lshl_b32 s{S_T2}, s{S_MH}, 6")
    a.e(f"s_mul_i32 s{S_T0}, s{S_CH}, {KR_CH}")
    a.e(f"s_add_u32 s{S_T0}, s{S_T0}, {L_KR + 496}")
    a.e(f"s_add_u32 s{S_T0}, s{S_T0}, s{S_T2}")
    a.e(f"v_lshlrev_b32 v{t+2}, 5, v{t}")
    a.e(f"v_sub_u32 v{t+2}, v{t+3}, v{t+2}")
    a.e(f"v_add_u32 v{CVB}, s{S_T0}, v{t+2}")
    a.e(f"s_mul_i32 s{S_T0}, s{S_CH}, {UU_CH}")
    a.e(f"s_add_u32 s{S_T0}, s{S_T0}, {L_UU}")
    a.e(f"s_add_u32 s{S_T0}, s{S_T0}, s{S_T2}")
    a.e(f"v_and_b32 v{t+2}, 1, v{t}")
    a.e(f"v_cmp_eq_u32 vcc, 1, v{t+2}")
    a.e(f"v_mov_b32 v{t+2}, {4160+16}")
    a.e(f"v_lshl_add_u32 v{t+3}, v{t}, 1, v{t+3}")
    a.e(f"v_mov_b32 v{t+1}, 18")
    a.e(f"v_cndmask_b32 v{t+2}, v{t+2}, v{t+1}, vcc")
    a.e(f"v_add_u32 v{t+3}, v{t+3}, v{t+2}")
    a.e(f"v_add_u32 v{CVA}, s{S_T0}, v{t+3}")
    for al in range(1, 8):
        a.e(f"v_add_u32 v{CVA+al}, {512*al}, v{CVA}")

def k_part(a):
    FR, KD = 16, 144
    a.e(f"v_and_b32 v12, 31, v{V_LANE}")
    a.e("v_mul_u32_u24 v13, 528, v12")
    a.e(f"v_lshrrev_b32 v14, 5, v{V_LANE}")
    a.e("v_lshl_add_u32 v13, v14, 4, v13")
    a.e(f"s_mul_i32 s{S_T0}, s{S_CH}, {KV_CH}")
    a.e(f"s_add_u32 s{S_T0}, s{S_T0}, {L_KV}")
    a.e(f"v_add_u32 v13, s{S_T0}, v13")
    for k in range(16):
        a.e(f"ds_read_b128 {vr(FR+8*k,4)}, v13 offset:{k*32}")
        a.e(f"ds_read_b128 {vr(FR+8*k+4,4)}, v13 offset:{32*528 + k*32}")
    a.e(f"s_mul_i32 s{S_T0}, s{S_CH}, {KR_CH}")
    a.e(f"s_add_u32 s{S_T0}, s{S_T0}, {L_KR + 504}")
    a.e("v_lshlrev_b32 v12, 4, v12")
    a.e("v_lshl_add_u32 v12, v14, 3, v12")
    a.e(f"v_sub_u32 v12, s{S_T0}, v12")
    a.e(f"s_add_u32 s{S_T0}, s{S_T0}, {4096 - 504}")
    a.e(f"v_lshl_add_u32 v15, v{V_LANE}, 4, s{S_T0}")
    a.e("s_waitcnt lgkmcnt(0)")
    for k in range(16):
        a.e(f"v_mfma_f32_32x32x16_bf16 {vr(KD,16)}, {vr(FR+8*k,4)}, {vr(FR+8*k+4,4)}, {'0' if k == 0 else vr(KD,16)}")
    lab1, lab2 = a.label("ex1"), a.label("ex2")
    a.e(f"v_cmp_le_u32 vcc, 32, v{V_LANE}")
    a.e(f"v_and_b32 v16, 1, v{V_LANE}")
    a.e(f"v_cmp_eq_u32 s[{S_TMP}:{S_TMP+1}], 1, v16")
    for q in range(4): a.e(f"v_mov_b32 v{24+q}, 0")
    a.e("s_nop 4")
    a.e(f"s_cmp_eq_u32 s{S_MH}, 0")
    a.e(f"s_cbranch_scc0 {lab1}")
    D = KD
    a.e(f"v_cvt_pk_bf16_f32 v20, v{D+3}, v{D+2}")
    a.e(f"v_cvt_pk_bf16_f32 v21, v{D+1}, v{D}")
    a.e(f"v_cvt_pk_bf16_f32 v22, v{D+6}, v{D+5}")
    a.e(f"v_cvt_pk_bf16_f32 v23, v{D+4}, v{D+4}")
    a.e("ds_write_b64 v12, v[20:21] offset:3584")
    a.e("ds_write_b64 v12, v[22:23] offset:3072")
    a.e(f"s_mov_b64 s[{S_EXEC}:{S_EXEC+1}], exec")
    a.e("s_mov_b64 exec, 0x3fffffff")
    a.e("ds_write_b128 v15, v[24:27]")
    a.e(f"s_mov_b64 exec, s[{S_EXEC}:{S_EXEC+1}]")
    a.e(f"s_branch {lab2}")
    a.e(f"{lab1}:")
    D = KD + 8
    for q in range(4):
        a.e(f"v_mov_b32 v{28+2*q}, v{D+4+q}")
        a.e(f"v_mov_b32 v{29+2*q}, v{D+4+q}")
    for q in range(2):
        A_, B_ = D + 2*q, D + 2*q + 1
        a.e(f"v_cndmask_b32 v24, v{A_}, v{B_}, vcc")
        a.e(f"v_cvt_pk_bf16_f32 v{20+2*q+0}, v{B_}, v24")
        a.e(f"v_cvt_pk_bf16_f32 v{20+2*q+1}, v{A_}, v{A_}")
    for q in range(4):
        a.e(f"v_permlane32_swap_b32 v{28+2*q}, v{29+2*q}")
    a.e("ds_write_b64 v12, v[20:21] offset:2560")
    a.e("ds_write_b64 v12, v[22:23] offset:2048")
    for q in range(4):
        a.e(f"v_cndmask_b32 v{28+2*q}, v{28+2*q}, v{D+4+q}, s[{S_TMP}:{S_TMP+1}]")
    for q in range(4):
        a.e(f"v_cvt_pk_bf16_f32 v{36+2*q}, v{D+4+q}, v{D+4+q}")
        a.e(f"v_cvt_pk_bf16_f32 v{37+2*q}, v{D+4+q}, v{28+2*q}")
    for q in range(4):
        a.e(f"ds_write_b64 v12, {vr(36+2*q,2)} offset:{1536 - 512*q}")
    a.e(f"{lab2}:")

def conv_main(a, late, dmas):
    def reads(st, q):
        r = [f"ds_read_b128 {vr(CV_B[st]+4*al,4)}, v{CVB} offset:{512*(7-al) + 128*q}" for al in range(8)]
        for al in range(8):
            r.append(f"ds_read2_b32 {vr(CV_A[st]+4*al,2)}, v{CVA+al} offset0:{32*q} offset1:{32*q+1}")
            r.append(f"ds_read2_b32 {vr(CV_A[st]+4*al+2,2)}, v{CVA+al} offset0:{32*q+2} offset1:{32*q+3}")
        return r
    for x in reads(0, 0): a.e(x)
    st = 0
    for q in range(4):
        a.e("s_waitcnt lgkmcnt(0)" if q else "s_waitcnt lgkmcnt(14)")
        mf = []
        for al in range(8):
            for be in range(8 - al):
                I = al + be
                mf.append(f"v_mfma_f32_16x16x32_bf16 {vr(CV_ACC+4*I,4)}, {vr(CV_A[st]+4*al,4)}, {vr(CV_B[st]+4*be,4)}, {'0' if (q == 0 and al == 0) else vr(CV_ACC+4*I,4)}")
        slots = {i: [] for i in range(36)}
        if q == 0: slots[7].append("s_waitcnt lgkmcnt(0)")
        if q < 3:
            base = 8 if q == 0 else 0
            for k, x in enumerate(reads(st ^ 1, q + 1)): slots[base + k].append(x)
        for sl, it in late.get(q, []): slots[sl].append(it)
        dl = dmas.get(q, [])
        for k, g in enumerate(dl): place(slots, 1 + (k * 33) // len(dl), g)
        stamp(a, f"cv{q}")
        sched(a, mf, slots)
        st ^= 1

def conv_finish(a):
    a.e(f"s_lshl_b32 s{S_T0}, s{S_W}, 12")
    a.e(f"s_add_u32 s{S_T0}, s{S_T0}, {L_CX}")
    a.e(f"v_lshl_add_u32 v2, v{V_LANE}, 4, s{S_T0}")
    a.e(f"s_xor_b32 s{S_T1}, s{S_W}, 1")
    a.e(f"s_lshl_b32 s{S_T1}, s{S_T1}, 12")
    a.e(f"s_add_u32 s{S_T1}, s{S_T1}, {L_CX}")
    a.e(f"v_lshl_add_u32 v3, v{V_LANE}, 4, s{S_T1}")
    a.e(f"s_mul_i32 s{S_T0}, s{S_CH}, {UU_CH}")
    a.e(f"s_add_u32 s{S_T0}, s{S_T0}, {L_UU + 32}")
    a.e(f"s_lshl_b32 s{S_T1}, s{S_MH}, 11")
    a.e(f"s_add_u32 s{S_T0}, s{S_T0}, s{S_T1}")
    a.e(f"v_and_b32 v4, 15, v{V_LANE}")
    a.e(f"v_lshrrev_b32 v5, 4, v{V_LANE}")
    a.e(f"v_lshlrev_b32 v6, 5, v4")
    a.e(f"v_lshl_add_u32 v6, v5, 3, v6")
    a.e(f"v_add_u32 v6, s{S_T0}, v6")
    lab1, lab2 = a.label("cx1"), a.label("cx2")
    a.e(f"s_cmp_eq_u32 s{S_MH}, 0")
    a.e(f"s_cbranch_scc1 {lab1}")
    for k in range(4):
        a.e(f"ds_write_b128 v2, {vr(CV_ACC+4*k,4)} offset:{1024*k}")
    for q in range(8):
        a.e(f"v_pk_mul_f32 {vr(CV_ACC+2*q,2)}, {vr(CV_ACC+16+2*q,2)}, 1.0 op_sel_hi:[1,0]")
    a.e(f"s_branch {lab2}")
    a.e(f"{lab1}:")
    for k in range(4):
        a.e(f"ds_write_b128 v2, {vr(CV_ACC+16+4*k,4)} offset:{1024*k}")
    a.e(f"{lab2}:")
    for k in range(4):
        a.e(f"ds_read_b64 {vr(16+2*k,2)}, v6 offset:{512*k}")
    a.e(f"s_lshl_b32 s{S_T0}, s{S_MH}, 20")
    a.e(f"s_lshl_b32 s{S_T1}, s{S_D}, 7")
    a.e(f"s_add_u32 s{S_T0}, s{S_T0}, s{S_T1}")
    a.e(f"s_add_u32 s{S_T0}, s{S_T0}, {WS_Y}")
    a.e(f"v_lshrrev_b32 v7, 2, v4")
    a.e(f"v_lshlrev_b32 v7, 16, v7")
    a.e(f"v_and_b32 v8, 3, v4")
    a.e(f"v_lshl_add_u32 v7, v8, 5, v7")
    a.e(f"v_lshl_add_u32 v7, v5, 3, v7")
    a.e(f"v_add_u32 v7, s{S_T0}, v7")
    a.e("s_waitcnt lgkmcnt(0)")
    a.bar("cx")
    for k in range(4):
        a.e(f"ds_read_b128 {vr(64+4*k,4)}, v3 offset:{1024*k}")
    U = 32
    for k in range(4):
        a.e(f"v_lshlrev_b32 v{U+4*k}, 16, v{16+2*k}")
        a.e(f"v_and_b32 v{U+4*k+1}, 0xffff0000, v{16+2*k}")
        a.e(f"v_lshlrev_b32 v{U+4*k+2}, 16, v{17+2*k}")
        a.e(f"v_and_b32 v{U+4*k+3}, 0xffff0000, v{17+2*k}")
    a.e(f"v_mov_b32 v10, v{V_DSK}")
    for k in range(8):
        a.e(f"v_pk_fma_f32 {vr(CV_ACC+2*k,2)}, {vr(U+2*k,2)}, v[10:11], {vr(CV_ACC+2*k,2)}")
    a.vm_wait("wd3", "wd6")
    a.e("s_waitcnt lgkmcnt(0)")
    a.bar("cd")
    for k in range(8):
        a.e(f"v_pk_add_f32 {vr(CV_ACC+2*k,2)}, {vr(CV_ACC+2*k,2)}, {vr(64+2*k,2)}")
    for k in range(8):
        a.e(f"v_cvt_pk_bf16_f32 v{16+k}, v{CV_ACC+2*k}, v{CV_ACC+2*k+1}")
    for k in range(4):
        a.vm(f"global_store_dwordx2 v7, {vr(16+2*k,2)}, s[{P_WS}:{P_WS+1}] sc1", "pubY")
        if k < 3: a.e(f"v_add_u32 v7, {4*65536}, v7")


def role_c(a):
    a.e("L_role_c:")
    c_setup(a)
    a_read_addr(a, C_AADDR, 12)
    a.e("s_waitcnt lgkmcnt(0)")
    a.e(f"s_mov_b32 s{S_ROLE}, 1")
    stamp(a, 0, real=True); stamp(a, 1)
    mk_srd(a, SRD_X, P_X, 2048 * 1024)
    mk_srd(a, SRD_WG, P_WG, 512 * 2752)
    mk_srd(a, SRD_WU, P_WU, 512 * 2752)
    epoch_load(a, 13, 54)
    for g in stage_dma(0): emit(a, g)
    d1 = stage_dma(1)
    n1 = OPT.get("n1", 4)
    for g in d1[:n1]: emit(a, g)
    a.vm_wait("st0")
    a.bar("b0")
    stamp(a, "b0")
    for g in d1[n1:]: emit(a, g)
    epoch_finish(a, 54)
    if not OPT.get("csg", 0): cs_block(a)
    for g in stage_dma(2): emit(a, g)
    kgen_loads(a)
    prog = [lambda a: a.vm_wait("kp")] + kgen_prog()
    nst = 4
    per = (len(prog) + nst - 1) // nst
    pos = 0
    for stage in range(7):
        a.e("s_waitcnt lgkmcnt(0)")
        a.vm_wait(f"st{stage+1}")
        a.bar(f"s{stage}")
        stamp(a, f"cs{stage}")
        if OPT.get("cprio_stage") == stage: a.e(f"s_setprio {OPT.get('cprio', 2)}")
        dm = stage_dma(stage + 3) if stage + 3 < 8 else []
        if stage == OPT.get("touchstage", 2) and OPT.get("wdtouch", 1):
            wd_touch(a)
        if stage == OPT.get("yclrstage", 3):
            y_clear(a)
        work = []
        if 1 <= stage <= nst:
            work = prog[pos:pos + per]; pos += per
        if stage == 5 and OPT.get("kvearly", 1):
            work = kv_writes()[:OPT.get("kvsplit", 35)]
        if stage == 6:
            work = (kv_writes()[OPT.get("kvsplit", 35):] if OPT.get("kvearly", 1) else [])
        if stage == OPT.get("cpoll", 5):
            if OPT.get("pollfirst", 1): work = [lambda a: ln_poll_issue(a, 59, 132)] + work
            else: work = work + [lambda a: ln_poll_issue(a, 59, 132)]
        if stage == OPT.get("cchk", 6):
            work = [lambda a: ln_poll_check(a, 59, 132), xt_loads] + work
        step = max(1, len(work) // max(1, len(dm))) if dm else len(work)
        while dm or work:
            if dm: emit(a, dm.pop(0))
            for _ in range(step if dm else len(work)):
                if work: emit(a, work.pop(0))
    assert pos >= len(prog)
    a.e(f"v_mov_b32 v{V_DSK}, v{C_P+7}")
    a.e("s_waitcnt lgkmcnt(0)")
    a.bar("rf")
    stamp(a, "crf")
    if OPT.get("cprio2") is not None: a.e(f"s_setprio {OPT['cprio2']}")
    if OPT.get("cchk", 6) > 6:
        ln_poll_check(a, 59, 132)
        xt_loads(a)
    if not OPT.get("kvearly", 1):
        for x in kv_writes(): a.e(x)
        a.e("s_waitcnt lgkmcnt(0)")
        a.bar("kv")
    stamp(a, "ckv")
    wd_setup(a, 52, 161)
    for g in wd_groups(1, 161) + wd_groups(2, 161): emit(a, g)
    k_part(a)
    stamp(a, "ckp")
    u_build(a)
    stamp(a, "cub")
    conv_addr(a)
    a.e("v_mov_b32 v12, v161")
    a.vm_wait("wd1", "wd2", "ycl")
    a.e("s_waitcnt lgkmcnt(0)")
    a.bar("k")
    stamp(a, "ck")
    conv_main(a, {OPT.get("pbar", 2): [(OPT.get("pslot", 20), lambda a: a.bar("p"))]},
              {0: wd_groups(3, 12) + wd_groups(6, 12)[:2], 1: wd_groups(6, 12)[2:]})
    stamp(a, "convm")
    conv_finish(a)
    stamp(a, "conv")
    a.e("s_waitcnt vmcnt(0)")
    stamp(a, 9, real=True)
    prof_store(a)
    a.e("s_endpgm")


def main():
    global PROF
    PROF = "prof" in sys.argv
    for x in sys.argv[1:]:
        if "=" in x:
            k, v = x.split("=")
            if k == "stamps": STAMPS[:] = v.split(",")
            else: OPT[k] = int(v)
    shared = [0]
    a0 = A2(shared); entry(a0)
    g = A2(shared); g.vmq = list(a0.vmq); role_g(g)
    c = A2(shared); c.vmq = list(a0.vmq); role_c(c)
    gb = [b for b in g.bars if b not in ("fin", "rd")]
    assert gb == c.bars, (gb, c.bars)
    out = [HDR, f"; @launch grid=(256,1,1) block=(512,1,1) lds={LDS_BYTES}",
           '.amdgcn_target "amdgcn-amd-amdhsa--gfx950"', '.text', a0.text(), g.text(), c.text(),
           "L_end:", "  s_endpgm", "  .fill 8448, 4, 0xbf800000", '.section .rodata,"a"', kd(NAME, 176, 80)]
    print('\n'.join(out))

if __name__ == "__main__":
    main()
```

```python
import sys, math
from asmlib import *

NAME = "parallel_sum__ssm_conv_s4__geglu_ffn__prompt_kernel"
OPT = {}
PROF = False
STAMPS = []
HDR = open('parallel_sum__ssm_conv_s4__geglu_ffn__prompt.s.ref').read().split('; Override')[0].rstrip()

WS_FLAG_LN, WS_FLAG_H, WS_FLAG_Y = 4096, 8192, 12288
WS_STATS, WS_CS = 65536, 131072
WS_XT, WS_Y, WS_H = 1 << 20, 4 << 20, 8 << 20
WS_DUMMY, WS_PROF = 15 << 20, 16 << 20
SPIN_MAX = 1 << 17

S_WG, S_W, S_I, S_J, S_TW, S_FW, S_U0, S_KC = 2, 3, 4, 5, 6, 7, 8, 9
S_T0, S_T1, S_T2, S_SPIN, S_TAG, S_WDL = 10, 11, 12, 13, 14, 15
P_X, P_ARE, P_AIM, P_BRE, P_BIM, P_CRE, P_CIM, P_LDT = 16, 18, 20, 22, 24, 26, 28, 30
P_DSK, P_BX, P_WG, P_WU, P_WD, P_OUT, P_DBG, P_WS = 32, 34, 36, 38, 40, 42, 44, 46
S_EP, S_ROLE = 34, 35
SRD_X, SRD_WG, SRD_WU, SRD_WD = 48, 52, 56, 60
S_XW, S_WW, S_XO, S_WO, S_LX, S_LW = 64, 65, 66, 67, 68, 69
S_EXEC = 70
S_NU, S_CSH = 72, 73
S_WDS = 73
S_TMP = 74
S_D, S_CH, S_MH, S_TH, S_NT, S_WDO = 76, 77, 78, 79, 80, 81
S_PROF = 82

LDS_BYTES = 163840
SLOT = 41216
L_X, L_G, L_U = 0, 16384, 28704
L_LN = 3 * SLOT
KV_CH, KR_CH, UU_CH = 64 * 528, 4608, 8320
L_KV = 2 * SLOT
L_KR = 150016
L_UU = 24576
L_CX = 131584
WD = {1: (0, 6144, 0, 3), 2: (SLOT, 10240, 3, 5),
      4: (0, 6144, 8, 3), 5: (SLOT, 10240, 11, 5),
      3: (115200, 4096, 16, 2),
      6: (2 * SLOT, 8192, 18, 4)}
def wd_areg(q): return 8 * q if q < 8 else 64 + 8 * (q - 16)
def wd_in_agpr(q): return q < 8 or q in (16, 17)
RED_UNIT = [4096 * u for u in range(12)]
L_YB = 49152

V_LANE = 1


def stamp(a, idx, real=False):
    if PROF:
        if isinstance(idx, str):
            if idx not in STAMPS: return
            idx = 2 + STAMPS.index(idx)
        a.e(f"{'s_memrealtime' if real else 's_memtime'} s[{S_PROF+2*idx}:{S_PROF+2*idx+1}]")

def prof_store(a):
    if not PROF: return
    a.e("s_waitcnt lgkmcnt(0)")
    if OPT.get("dbgwg") is not None:
        lab = a.label("nodbg")
        a.e(f"s_lshl_b32 s{S_T0}, s{S_WG}, 3")
        a.e(f"s_lshl_b32 s{S_T1}, s{S_ROLE}, 2")
        a.e(f"s_add_u32 s{S_T0}, s{S_T0}, s{S_T1}")
        a.e(f"s_add_u32 s{S_T0}, s{S_T0}, s{S_W}")
        a.e(f"s_cmp_lg_u32 s{S_T0}, {OPT['dbgwg']*8 + OPT.get('dbgw', 0)}")
        a.e(f"s_cbranch_scc1 {lab}")
        a.e(f"s_sub_u32 s{S_PROF+18}, s{S_PROF+18}, s{S_PROF}")
        for q in range(2, 9):
            a.e(f"s_sub_u32 s{S_PROF+2*q}, s{S_PROF+2*q}, s{S_PROF+2}")
        for q in range(10):
            a.e(f"v_mov_b32 v{4+q}, s{S_PROF+2*q}")
        a.e("v_mov_b32 v2, 0")
        a.e("s_mov_b64 exec, 1")
        a.e(f"global_store_dwordx4 v2, v[4:7], s[{P_DBG}:{P_DBG+1}]")
        a.e(f"global_store_dwordx4 v2, v[8:11], s[{P_DBG}:{P_DBG+1}] offset:16")
        a.e(f"global_store_dwordx2 v2, v[12:13], s[{P_DBG}:{P_DBG+1}] offset:32")
        a.e(f"{lab}:")
        return
    for q in range(10):
        a.e(f"v_mov_b32 v{4+q}, s{S_PROF+2*q}")
    a.e(f"s_lshl_b32 s{S_T0}, s{S_ROLE}, 2")
    a.e(f"s_add_u32 s{S_T0}, s{S_T0}, s{S_W}")
    a.e(f"s_lshl_b32 s{S_T1}, s{S_WG}, 3")
    a.e(f"s_add_u32 s{S_T0}, s{S_T0}, s{S_T1}")
    a.e(f"s_lshl_b32 s{S_T0}, s{S_T0}, 6")
    a.e(f"s_add_u32 s{S_T0}, s{S_T0}, {WS_PROF}")
    a.e(f"v_mov_b32 v2, s{S_T0}")
    a.e("s_mov_b64 exec, 1")
    a.e(f"global_store_dwordx4 v2, v[4:7], s[{P_WS}:{P_WS+1}]")
    a.e(f"global_store_dwordx4 v2, v[8:11], s[{P_WS}:{P_WS+1}] offset:16")
    a.e(f"global_store_dwordx2 v2, v[12:13], s[{P_WS}:{P_WS+1}] offset:32")


class A2(Asm):
    def __init__(self, shared):
        super().__init__()
        self.bars = []
        self.shared = shared
    def label(self, base):
        self.shared[0] += 1
        return f"L_{base}_{self.shared[0]}"
    def bar(self, name):
        self.e("s_barrier")
        self.bars.append(name)


class Rec:
    def __init__(self, a):
        self.ops = []; self.a = a
    def e(self, s):
        for l in s.split('\n'):
            if l.strip(): self.ops.append(('e', l.strip()))
    def vm(self, s, tag): self.ops.append(('vm', s, tag))
    def vm_wait(self, *tags): self.ops.append(('wait', tags))
    def label(self, b): return self.a.label(b)
    def bar(self, name): self.ops.append(('bar', name))

def replay(a, ops, fillers, every, start=0):
    fill = list(fillers); n = 0
    for o in ops:
        if o[0] == 'e': a.e(o[1])
        elif o[0] == 'vm': a.vm(o[1], o[2])
        elif o[0] == 'wait': a.vm_wait(*o[1])
        elif o[0] == 'bar': a.bar(o[1])
        n += 1
        if fill and n >= start and (n - start) % every == 0:
            emit(a, fill.pop(0))
    for g in fill: emit(a, g)

def emit(a, g):
    if callable(g): g(a)
    elif isinstance(g, tuple): a.vm(g[0], g[1])
    elif isinstance(g, list):
        for t in g: emit(a, t)
    else: a.e(g)

class Dma(list):
    def __init__(self, pre, m0, ld, post=()):
        super().__init__(list(pre) + [m0, "s_nop 0", ld] + list(post))
        self.head = list(pre) + [m0]
        self.tail = [ld] + list(post)

def place(slots, p, g):
    if isinstance(g, Dma) and p >= 1:
        slots[p - 1].append(g.head); slots[p].insert(0, g.tail)
    else:
        slots[p].append(g)

def sched(a, mf, slots):
    for i, m in enumerate(mf):
        a.e(m)
        for it in slots.get(i, []): emit(a, it)

def mk_srd(a, srd, ptr, nbytes):
    a.e(f"s_mov_b32 s{srd}, s{ptr}")
    a.e(f"s_and_b32 s{srd+1}, s{ptr+1}, 0xffff")
    a.e(f"s_mov_b32 s{srd+2}, {nbytes}")
    a.e(f"s_mov_b32 s{srd+3}, 0x20000")

def dpp_reduce(a, regs):
    steps = ["quad_perm:[1,0,3,2] row_mask:0xf bank_mask:0xf", "quad_perm:[2,3,0,1] row_mask:0xf bank_mask:0xf",
             "row_half_mirror row_mask:0xf bank_mask:0xf", "row_mirror row_mask:0xf bank_mask:0xf",
             "row_bcast:15 row_mask:0xa bank_mask:0xf", "row_bcast:31 row_mask:0xc bank_mask:0xf"]
    assert len(regs) >= 3
    for st in steps:
        for r in regs:
            a.e(f"v_add_f32_dpp v{r}, v{r}, v{r} {st}")
    a.e("s_nop 1")


def entry(a):
    a.e(f".globl {NAME}\n.p2align 8\n.type {NAME},@function\n{NAME}:")
    a.e(f"s_cmp_ge_u32 s{S_WG}, 256")
    a.e(f"s_cbranch_scc1 L_end")
    a.e("s_load_dwordx16 s[16:31], s[0:1], 0")
    a.e("s_load_dwordx16 s[32:47], s[0:1], 64")
    a.e("s_getpc_b64 s[74:75]")
    a.e(f"s_lshr_b32 s{S_T1}, s{S_WG}, 3")
    a.e(f"s_and_b32 s{S_T2}, s{S_T1}, 15")
    a.e(f"s_lshl_b32 s{S_T2}, s{S_T2}, 11")
    a.e(f"v_lshl_add_u32 v2, v0, 2, s{S_T2}")
    a.vm(f"global_load_dword v175, v2, s[74:75]", "pf")
    a.e(f"v_and_b32 v{V_LANE}, 63, v0")
    a.e(f"v_lshrrev_b32 v3, 6, v0")
    a.e(f"s_and_b32 s{S_T0}, s{S_WG}, 7")
    a.e(f"v_readfirstlane_b32 s{S_W}, v3")
    a.e(f"s_lshr_b32 s{S_I}, s{S_T0}, 1")
    a.e(f"s_lshl_b32 s{S_I}, s{S_I}, 2")
    a.e(f"s_lshr_b32 s{S_T2}, s{S_T1}, 3")
    a.e(f"s_add_u32 s{S_I}, s{S_I}, s{S_T2}")
    a.e(f"s_and_b32 s{S_J}, s{S_T0}, 1")
    a.e(f"s_lshl_b32 s{S_J}, s{S_J}, 3")
    a.e(f"s_and_b32 s{S_T2}, s{S_T1}, 7")
    a.e(f"s_add_u32 s{S_J}, s{S_J}, s{S_T2}")
    a.e(f"s_lshr_b32 s{S_TMP}, s{S_W}, 2")
    a.e(f"s_and_b32 s{S_W}, s{S_W}, 3")
    a.e(f"s_lshr_b32 s{S_TW}, s{S_W}, 1")
    a.e(f"s_and_b32 s{S_FW}, s{S_W}, 1")
    a.e(f"s_mul_i32 s{S_U0}, s{S_J}, 3")
    a.e(f"s_lshl_b32 s{S_T2}, s{S_J}, 1")
    a.e(f"s_add_u32 s{S_T2}, s{S_T2}, 11")
    a.e(f"s_min_u32 s{S_U0}, s{S_U0}, s{S_T2}")
    a.e(f"s_cmp_lt_u32 s{S_J}, 11")
    a.e(f"s_cselect_b32 s{S_NU}, 6, 4")
    a.e(f"s_lshr_b32 s{S_CSH}, s{S_I}, 3")
    a.e(f"s_lshl_b32 s{S_D}, s{S_T0}, 6")
    a.e(f"s_lshl_b32 s{S_T1}, s{S_T1}, 1")
    a.e(f"s_add_u32 s{S_D}, s{S_D}, s{S_T1}")
    a.e(f"s_add_u32 s{S_D}, s{S_D}, s{S_TW}")
    a.e(f"s_mov_b32 s{S_CH}, s{S_TW}")
    a.e(f"s_mov_b32 s{S_MH}, s{S_FW}")
    a.e(f"s_lshr_b32 s{S_TH}, s{S_J}, 3")
    if OPT.get("ntoff"):
        a.e(f"s_add_u32 s{S_NT}, s{S_J}, {OPT['ntoff']}")
        a.e(f"s_and_b32 s{S_NT}, s{S_NT}, 7")
    else:
        a.e(f"s_and_b32 s{S_NT}, s{S_J}, 7")
    a.e(f"s_cmp_lg_u32 s{S_TMP}, 0")
    a.e(f"s_cbranch_scc1 L_role_c")

def epoch_load(a, vtmp, vdst):
    a.e(f"v_mov_b32 v{vtmp}, 0")
    a.vm(f"global_load_dword v{vdst}, v{vtmp}, s[{P_WS}:{P_WS+1}] sc1", "ep")

def epoch_finish(a, vdst):
    a.vm_wait("ep")
    a.e("s_nop 0")
    a.e(f"v_readfirstlane_b32 s{S_EP}, v{vdst}")
    a.e("s_nop 3")
    a.e(f"s_mul_i32 s{S_TAG}, s{S_EP}, 0x9e3779b1")
    a.e(f"s_add_u32 s{S_TAG}, s{S_TAG}, 0x3c6ef373")

def flag_store(a, region, idx_code, va, vb):
    lab = a.label("nofl")
    a.e(f"s_cmp_lg_u32 s{S_W}, 0")
    a.e(f"s_cbranch_scc1 {lab}")
    idx_code(a)
    a.e(f"s_lshl_b32 s{S_T0}, s{S_T0}, 2")
    a.e(f"s_add_u32 s{S_T0}, s{S_T0}, {region}")
    a.e(f"v_mov_b32 v{va}, s{S_T0}")
    a.e(f"v_mov_b32 v{vb}, s{S_TAG}")
    a.e(f"s_mov_b64 s[{S_EXEC}:{S_EXEC+1}], exec")
    a.e("s_mov_b64 exec, 1")
    a.e(f"global_store_dword v{va}, v{vb}, s[{P_WS}:{P_WS+1}] sc1")
    a.e(f"s_mov_b64 exec, s[{S_EXEC}:{S_EXEC+1}]")
    a.e(f"{lab}:")

def idx_ln(a): a.e(f"s_mov_b32 s{S_T0}, s{S_WG}")
def idx_h(a):
    a.e(f"s_lshl_b32 s{S_T0}, s{S_I}, 4")
    a.e(f"s_add_u32 s{S_T0}, s{S_T0}, s{S_J}")
def idx_y(a):
    a.e(f"s_and_b32 s{S_T0}, s{S_WG}, 7")
    a.e(f"s_lshl_b32 s{S_T0}, s{S_T0}, 5")
    a.e(f"s_lshr_b32 s{S_T1}, s{S_WG}, 3")
    a.e(f"s_add_u32 s{S_T0}, s{S_T0}, s{S_T1}")

def spin_tail(a, top, ok, reloads, sleep=None):
    a.e(f"s_cmp_eq_u64 vcc, 0")
    a.e(f"s_cbranch_scc1 {ok}")
    a.e(f"s_add_u32 s{S_SPIN}, s{S_SPIN}, 1")
    a.e(f"s_cmp_gt_u32 s{S_SPIN}, {SPIN_MAX}")
    a.e(f"s_cbranch_scc1 {ok}")
    a.e(f"s_sleep {sleep if sleep is not None else OPT.get('sleep', 8)}")
    for r in reloads: a.e(r)
    a.e("s_waitcnt vmcnt(0)")
    a.e(f"s_branch {top}")
    a.e(f"{ok}:")

def ln_poll_issue(a, vaddr, vdst):
    a.e(f"v_lshlrev_b32 v{vaddr}, 4, v{V_LANE}")
    a.e(f"v_add_u32 v{vaddr}, {WS_FLAG_LN}, v{vaddr}")
    a.vm(f"global_load_dwordx4 {vr(vdst,4)}, v{vaddr}, s[{P_WS}:{P_WS+1}] sc1", "pl")

def ln_poll_check(a, vaddr, vdst):
    top, ok = a.label("poll"), a.label("pollok")
    a.vm_wait("pl")
    a.e(f"s_mov_b32 s{S_SPIN}, 0")
    a.e(f"{top}:")
    a.e(f"v_cmp_ne_u32 vcc, s{S_TAG}, v{vdst}")
    for q in range(1, 4):
        a.e(f"v_cmp_ne_u32 s[74:75], s{S_TAG}, v{vdst+q}")
        a.e("s_nop 0")
        a.e("s_or_b64 vcc, vcc, s[74:75]")
    a.e("s_nop 1")
    spin_tail(a, top, ok, [f"global_load_dwordx4 {vr(vdst,4)}, v{vaddr}, s[{P_WS}:{P_WS+1}] sc1"])


G_ACC = 16
def acc(tt, ap): return G_ACC + 16 * (3 * tt + ap)
G_FR = [112, 132]
def fB(st, tt): return G_FR[st] + 4 * tt
def fA(st, ap): return G_FR[st] + 8 + 4 * ap
G_BADDR, G_AADDR = 160, 164

def a_read_addr(a, dst, t0):
    a.e(f"v_lshrrev_b32 v{t0}, 4, v{V_LANE}")
    a.e(f"v_and_b32 v{t0+1}, 1, v{t0}")
    a.e(f"v_lshrrev_b32 v{t0}, 1, v{t0}")
    a.e(f"v_bfe_u32 v{t0+2}, v{V_LANE}, 2, 2")
    a.e(f"v_lshl_add_u32 v{t0+2}, v{t0}, 3, v{t0+2}")
    a.e(f"v_mul_u32_u24 v{t0+2}, 192, v{t0+2}")
    a.e(f"v_and_b32 v{t0+3}, 3, v{V_LANE}")
    a.e(f"v_lshl_add_u32 v{t0+2}, v{t0+3}, 3, v{t0+2}")
    a.e(f"v_mul_u32_u24 v{t0+1}, {L_U - L_G}, v{t0+1}")
    a.e(f"v_add_u32 v{t0+2}, v{t0+2}, v{t0+1}")
    a.e(f"s_mul_i32 s{S_T0}, s{S_FW}, 96")
    a.e(f"s_add_u32 s{S_T0}, s{S_T0}, {L_G}")
    a.e(f"v_add_u32 v{dst}, s{S_T0}, v{t0+2}")

def g_setup(a):
    a.e(f"v_and_b32 v12, 31, v{V_LANE}")
    a.e(f"v_lshrrev_b32 v13, 5, v{V_LANE}")
    a.e(f"v_bfe_u32 v14, v12, 1, 3")
    a.e(f"s_lshl_b32 s{S_T0}, s{S_TW}, 13")
    a.e(f"v_lshl_add_u32 v15, v12, 7, s{S_T0}")
    for s_ in range(4):
        a.e(f"v_add_u32 v11, {2*s_}, v13")
        a.e(f"v_xor_b32 v11, v11, v14")
        a.e(f"v_lshl_add_u32 v{G_BADDR+s_}, v11, 4, v15")
    a_read_addr(a, G_AADDR, 12)
    a.e(f"s_lshl_b32 s{S_T0}, s{S_I}, 7")
    a.e(f"s_lshl_b32 s{S_T1}, s{S_J}, 3")
    a.e(f"s_add_u32 s{S_T0}, s{S_T0}, s{S_T1}")
    a.e(f"s_lshl_b32 s{S_T1}, s{S_W}, 1")
    a.e(f"s_add_u32 s{S_T0}, s{S_T0}, s{S_T1}")
    a.e(f"s_lshl_b32 s{S_T0}, s{S_T0}, 10")
    a.e(f"v_lshl_add_u32 v7, v{V_LANE}, 4, s{S_T0}")

def ln_first(a):
    a.vm_wait("ln")
    for r in range(2):
        for d in range(4):
            a.e(f"v_lshlrev_b32 v{16+8*r+2*d}, 16, v{44+4*r+d}")
            a.e(f"v_and_b32 v{17+8*r+2*d}, 0xffff0000, v{44+4*r+d}")
    for r in range(2):
        b, t = 16 + 8*r, 36 + 4*r
        a.e(f"v_pk_add_f32 {vr(t,2)}, {vr(b,2)}, {vr(b+2,2)}")
        a.e(f"v_pk_mul_f32 {vr(t+2,2)}, {vr(b,2)}, {vr(b,2)}")
    for r in range(2):
        b, t = 16 + 8*r, 36 + 4*r
        a.e(f"v_pk_add_f32 {vr(t,2)}, {vr(t,2)}, {vr(b+4,2)}")
        a.e(f"v_pk_fma_f32 {vr(t+2,2)}, {vr(b+2,2)}, {vr(b+2,2)}, {vr(t+2,2)}")
    for r in range(2):
        b, t = 16 + 8*r, 36 + 4*r
        a.e(f"v_pk_add_f32 {vr(t,2)}, {vr(t,2)}, {vr(b+6,2)}")
        a.e(f"v_pk_fma_f32 {vr(t+2,2)}, {vr(b+4,2)}, {vr(b+4,2)}, {vr(t+2,2)}")
    for r in range(2):
        b, t = 16 + 8*r, 36 + 4*r
        a.e(f"v_pk_fma_f32 {vr(t+2,2)}, {vr(b+6,2)}, {vr(b+6,2)}, {vr(t+2,2)}")
        a.e(f"v_add_f32 v{32+r}, v{t}, v{t+1}")
    for r in range(2):
        t = 36 + 4*r
        a.e(f"v_add_f32 v{34+r}, v{t+2}, v{t+3}")
    a.e("s_nop 0")
    dpp_reduce(a, [32, 33, 34, 35])
    for q, sr_ in enumerate((74, 75, 12, 13)):
        a.e(f"v_readlane_b32 s{sr_}, v{32+q}, 63")
    a.e("s_nop 1")
    for q, sr_ in enumerate((74, 75, 12, 13)):
        a.e(f"v_mov_b32 v{32+q}, s{sr_}")
    a.e("v_mov_b32 v36, 0x3b000000")
    a.e("v_pk_mul_f32 v[32:33], v[32:33], v[36:37] op_sel_hi:[1,0]")
    a.e("v_pk_mul_f32 v[34:35], v[34:35], v[36:37] op_sel_hi:[1,0]")
    a.e("v_pk_fma_f32 v[34:35], v[32:33], v[32:33], v[34:35] neg_lo:[1,0,0] neg_hi:[1,0,0]")
    a.e("v_max_f32 v34, 0, v34")
    a.e("v_max_f32 v35, 0, v35")
    a.e("v_cvt_pk_bf16_f32 v36, v34, v35")
    a.e("v_cvt_pk_bf16_f32 v37, v32, v33")
    a.e("v_lshlrev_b32 v34, 16, v36")
    a.e("v_and_b32 v35, 0xffff0000, v36")
    a.e("v_lshlrev_b32 v32, 16, v37")
    a.e("v_and_b32 v33, 0xffff0000, v37")
    a.e("v_add_f32 v34, 0x3727c5ac, v34")
    a.e("v_add_f32 v35, 0x3727c5ac, v35")
    a.e("v_cvt_pk_bf16_f32 v36, v34, v35")
    a.e("v_lshlrev_b32 v34, 16, v36")
    a.e("v_and_b32 v35, 0xffff0000, v36")
    a.e("v_sqrt_f32 v34, v34")
    a.e("v_sqrt_f32 v35, v35")
    a.e("s_nop 0")
    a.e("v_cvt_pk_bf16_f32 v36, v34, v35")
    a.e("v_lshlrev_b32 v34, 16, v36")
    a.e("v_and_b32 v35, 0xffff0000, v36")
    a.e("v_rcp_f32 v34, v34")
    a.e("v_rcp_f32 v35, v35")
    for r in range(2):
        b = 16 + 8*r
        sel = "op_sel_hi:[1,0]" if r == 0 else "op_sel:[0,1] op_sel_hi:[1,1]"
        for d in range(4):
            a.e(f"v_pk_add_f32 {vr(b+2*d,2)}, {vr(b+2*d,2)}, v[32:33] {sel} neg_lo:[0,1] neg_hi:[0,1]")
    for r in range(2):
        b = 16 + 8*r
        for d in range(4):
            a.e(f"v_cvt_pk_bf16_f32 v{44+4*r+d}, v{b+2*d}, v{b+2*d+1}")
    for r in range(2):
        b = 16 + 8*r
        for d in range(4):
            a.e(f"v_lshlrev_b32 v{b+2*d}, 16, v{44+4*r+d}")
            a.e(f"v_and_b32 v{b+2*d+1}, 0xffff0000, v{44+4*r+d}")
    for r in range(2):
        b = 16 + 8*r
        sel = "op_sel_hi:[1,0]" if r == 0 else "op_sel:[0,1] op_sel_hi:[1,1]"
        for d in range(4):
            a.e(f"v_pk_mul_f32 {vr(b+2*d,2)}, {vr(b+2*d,2)}, v[34:35] {sel}")
    for r in range(2):
        b = 16 + 8*r
        for d in range(4):
            a.e(f"v_cvt_pk_bf16_f32 v{44+4*r+d}, v{b+2*d}, v{b+2*d+1}")
    a.e(f"s_mul_i32 s{S_T0}, s{S_W}, {2*1088}")
    a.e(f"s_add_u32 s{S_T0}, s{S_T0}, {L_LN}")
    a.e(f"v_lshl_add_u32 v2, v{V_LANE}, 4, s{S_T0}")
    a.e("ds_write_b128 v2, v[44:47]")
    a.e("ds_write_b128 v2, v[48:51] offset:1088")
    a.e("v_mov_b32 v40, v34")
    a.e("v_cvt_pk_bf16_f32 v41, -v32, -v32")
    a.e("v_mov_b32 v42, v35")
    a.e("v_cvt_pk_bf16_f32 v43, -v33, -v33")
    a.e(f"s_lshl_b32 s{S_T0}, s{S_I}, 7")
    a.e(f"s_lshl_b32 s{S_T1}, s{S_J}, 3")
    a.e(f"s_add_u32 s{S_T0}, s{S_T0}, s{S_T1}")
    a.e(f"s_lshl_b32 s{S_T1}, s{S_W}, 1")
    a.e(f"s_add_u32 s{S_T1}, s{S_T0}, s{S_T1}")
    a.e(f"s_lshl_b32 s{S_T1}, s{S_T1}, 3")
    a.e(f"s_add_u32 s{S_T1}, s{S_T1}, {WS_STATS}")
    a.e(f"v_mov_b32 v3, s{S_T1}")
    a.e(f"s_mov_b64 s[{S_EXEC}:{S_EXEC+1}], exec")
    a.e("s_mov_b64 exec, 1")
    a.vm(f"global_store_dwordx4 v3, v[40:43], s[{P_WS}:{P_WS+1}] sc1", "pubA")
    a.e(f"s_mov_b64 exec, s[{S_EXEC}:{S_EXEC+1}]")
    a.e(f"v_bfe_u32 v2, v{V_LANE}, 2, 2")
    a.e(f"v_mul_u32_u24 v2, 1088, v2")
    a.e(f"v_lshrrev_b32 v3, 4, v{V_LANE}")
    a.e(f"v_lshl_add_u32 v2, v3, 5, v2")
    a.e(f"v_and_b32 v3, 3, v{V_LANE}")
    a.e(f"v_lshl_add_u32 v2, v3, 3, v2")
    a.e(f"s_lshl_b32 s{S_T1}, s{S_W}, 8")
    a.e(f"s_add_u32 s{S_T1}, s{S_T1}, {L_LN}")
    a.e(f"v_add_u32 v2, s{S_T1}, v2")
    a.e(f"s_lshl_b32 s{S_T0}, s{S_T0}, 10")
    a.e(f"s_lshl_b32 s{S_T1}, s{S_W}, 11")
    a.e(f"s_add_u32 s{S_T0}, s{S_T0}, s{S_T1}")
    a.e(f"s_add_u32 s{S_T0}, s{S_T0}, {WS_XT}")
    a.e(f"v_lshl_add_u32 v3, v{V_LANE}, 4, s{S_T0}")

def g1_reads(st, s):
    r = [f"ds_read_b128 {vr(fB(st,tt),4)}, v{G_BADDR+s} offset:{tt*4096}" for tt in range(2)]
    for ap in range(3):
        for h in range(2):
            r.append(f"ds_read_b64_tr_b16 {vr(fA(st,ap)+2*h,2)}, v{G_AADDR} offset:{s*3072 + h*768 + ap*32}")
    return r

def g1_mfmas(st, first):
    return [f"v_mfma_f32_32x32x16_bf16 {vr(acc(tt,ap),16)}, {vr(fA(st,ap),4)}, {vr(fB(st,tt),4)}, {'0' if first else vr(acc(tt,ap),16)}"
            for ap in range(3) for tt in range(2)]

def g1_main(a, hooks):
    st = 0
    for stage in range(8):
        for s in range(4):
            last = (stage == 7 and s == 3)
            a.e("s_waitcnt lgkmcnt(0)")
            mf = g1_mfmas(st, stage == 0 and s == 0)
            slots = {i: [] for i in range(6)}
            if stage == 0 and OPT.get("csg", 0):
                lab = a.label("nocs")
                a.e(f"s_or_b32 s{S_T0}, s{S_TW}, s{S_CSH}")
                a.e(f"s_cmp_lg_u32 s{S_T0}, 0")
                a.e(f"s_cbranch_scc1 {lab}")
                for ap in range(3):
                    a.e(f"v_mfma_f32_32x32x16_bf16 {ar(16*ap,16)}, v[168:171], {vr(fA(st,ap),4)}, {'0' if s == 0 else ar(16*ap,16)}")
                a.e(f"{lab}:")
            if s == 3 and not last:
                d = SLOT if (stage + 1) % 3 != 0 else -2 * SLOT
                slots[0] += [f"v_add_u32 v{G_BADDR+q}, {d & 0xffffffff}, v{G_BADDR+q}" for q in range(4)]
                slots[0] += [f"v_add_u32 v{G_AADDR}, {d & 0xffffffff}, v{G_AADDR}"]
                for hk in hooks.get(("pre", stage), []): slots[1].append(hk)
                slots[1].append(lambda a, stage=stage: a.bar(f"s{stage}"))
                rd = g1_reads(st ^ 1, 0)
                slots[1] += rd[:3]; slots[2] += rd[3:6]; slots[3] += rd[6:]
                for hk in hooks.get(("post", stage), []): slots[4].append(hk)
            elif last:
                slots[0].append(lambda a: a.bar("rf"))
            else:
                rd = g1_reads(st ^ 1, s + 1)
                slots[0] += rd[:3]; slots[1] += rd[3:6]; slots[2] += rd[6:]
            sh = hooks.get(("shadow", stage, s), [])
            for k, x in enumerate(sh):
                slots[2 + (k * 4) // len(sh)].append(x)
            sched(a, mf, slots)
            st ^= 1
        stamp(a, f"gs{stage}")

CSL = [152, 156, 168]
def cs_store_g(a):
    lab = a.label("nocsst")
    a.e(f"s_or_b32 s{S_T0}, s{S_TW}, s{S_CSH}")
    a.e(f"s_cmp_lg_u32 s{S_T0}, 0")
    a.e(f"s_cbranch_scc1 {lab}")
    for ap in range(3):
        a.e(f"v_accvgpr_read_b32 v{8+ap}, a{16*ap}")
    a.e(f"s_mul_i32 s{S_T0}, s{S_J}, 6")
    a.e(f"s_mul_i32 s{S_T1}, s{S_FW}, 3")
    a.e(f"s_add_u32 s{S_T0}, s{S_T0}, s{S_T1}")
    a.e(f"s_lshl_b32 s{S_T0}, s{S_T0}, 10")
    a.e(f"s_lshl_b32 s{S_T1}, s{S_I}, 2")
    a.e(f"s_add_u32 s{S_T0}, s{S_T0}, s{S_T1}")
    a.e(f"s_add_u32 s{S_T0}, s{S_T0}, {WS_CS}")
    a.e(f"v_lshl_add_u32 v6, v{V_LANE}, 5, s{S_T0}")
    a.e(f"s_mov_b64 s[{S_EXEC}:{S_EXEC+1}], exec")
    a.e("s_mov_b64 exec, 0xffffffff")
    for ap in range(3):
        a.e(f"global_store_dword v6, v{8+ap}, s[{P_WS}:{P_WS+1}] offset:{1024*ap} sc1")
    a.e(f"s_mov_b64 exec, s[{S_EXEC}:{S_EXEC+1}]")
    a.e(f"{lab}:")

def g1_post_loads(a):
    a.e(f"s_lshl_b32 s{S_T0}, s{S_I}, 7")
    a.e(f"s_lshl_b32 s{S_T1}, s{S_TW}, 6")
    a.e(f"s_add_u32 s{S_T0}, s{S_T0}, s{S_T1}")
    a.e(f"s_lshl_b32 s{S_T0}, s{S_T0}, 3")
    a.e(f"s_add_u32 s{S_T0}, s{S_T0}, {WS_STATS}")
    a.e(f"v_and_b32 v6, 31, v{V_LANE}")
    a.e(f"v_lshl_add_u32 v7, v6, 3, s{S_T0}")
    a.vm(f"global_load_dwordx2 v[2:3], v7, s[{P_WS}:{P_WS+1}] sc1", "post")
    a.vm(f"global_load_dwordx2 v[4:5], v7, s[{P_WS}:{P_WS+1}] offset:256 sc1", "post")
    a.e(f"s_mul_i32 s{S_T0}, s{S_J}, 6")
    a.e(f"s_mul_i32 s{S_T1}, s{S_FW}, 3")
    a.e(f"s_add_u32 s{S_T0}, s{S_T0}, s{S_T1}")
    a.e(f"s_lshl_b32 s{S_T0}, s{S_T0}, 10")
    a.e(f"s_add_u32 s{S_T0}, s{S_T0}, {WS_CS}")
    a.e(f"v_lshl_add_u32 v7, v6, 5, s{S_T0}")
    a.e(f"v_lshrrev_b32 v8, 5, v{V_LANE}")
    a.e(f"v_lshl_add_u32 v7, v8, 4, v7")
    for ap in range(3):
        a.vm(f"global_load_dwordx4 {vr(CSL[ap],4)}, v7, s[{P_WS}:{P_WS+1}] offset:{1024*ap} sc1", "post")

def g1_corr_prep():
    r = [lambda a: a.vm_wait("post")]
    e = r.append
    for b in CSL:
        e(f"v_add_f32 v{b}, v{b}, v{b+2}")
        e(f"v_add_f32 v{b+1}, v{b+1}, v{b+3}")
    for b in CSL: e(f"v_add_f32 v{b}, v{b}, v{b+1}")
    for b in CSL: e(f"v_mov_b32 v{b+1}, v{b}")
    e(f"v_cmp_gt_u32 vcc, 32, v{V_LANE}")
    e("v_nop")
    for b in CSL: e(f"v_permlane32_swap_b32 v{b}, v{b+1}")
    for b in CSL: e(f"v_add_f32 v{b}, v{b}, v{b+1}")
    for b in CSL: e(f"v_cvt_pk_bf16_f32 v{b+1}, v{b}, v{b}")
    for b in CSL: e(f"v_lshlrev_b32 v{b+2}, 16, v{b+1}")
    for b in CSL: e(f"v_sub_f32 v{b+2}, v{b}, v{b+2}")
    for b in CSL: e(f"v_cvt_pk_bf16_f32 v{b}, v{b}, v{b+2}")
    for b in CSL:
        e(f"v_cndmask_b32 v{b}, 0, v{b}, vcc")
        e(f"v_mov_b32 v{b+1}, 0"); e(f"v_mov_b32 v{b+2}, 0"); e(f"v_mov_b32 v{b+3}, 0")
    for tt in range(2):
        e(f"v_cndmask_b32 v{8+4*tt}, 0, v{3+2*tt}, vcc")
        for d in range(1, 4): e(f"v_mov_b32 v{8+4*tt+d}, 0")
    return r

def g1_corr_mfma(a):
    a.e("s_nop 1")
    for ap in range(3):
        for tt in range(2):
            a.e(f"v_mfma_f32_32x32x16_bf16 {vr(acc(tt,ap),16)}, {vr(CSL[ap],4)}, {vr(8+4*tt,4)}, {vr(acc(tt,ap),16)}")

C1 = -2.0 * math.sqrt(2.0 / math.pi) * math.log2(math.e)
C2 = C1 * 0.044715
def g1_epilogue(a):
    for tt in range(2):
        r_, b = 2 + 2*tt, 160 + 4*tt
        a.e(f"v_mul_f32 v{b+2}, v{r_}, v{r_}")
        a.e(f"v_mul_f32 v{b}, {fhex(C1)}, v{r_}")
        a.e(f"v_mul_f32 v{b+1}, {fhex(C2)}, v{r_}")
        a.e(f"v_mul_f32 v{b+1}, v{b+1}, v{b+2}")
        a.e(f"v_rcp_f32 v{b+2}, v{b+2}")
    a.e(f"s_lshl_b32 s{S_T0}, s{S_I}, 2")
    a.e(f"s_lshl_b32 s{S_T1}, s{S_TW}, 1")
    a.e(f"s_add_u32 s{S_T0}, s{S_T0}, s{S_T1}")
    a.e(f"s_mul_i32 s{S_T0}, s{S_T0}, 86")
    a.e(f"s_lshl_b32 s{S_T1}, s{S_U0}, 1")
    a.e(f"s_add_u32 s{S_T0}, s{S_T0}, s{S_T1}")
    a.e(f"s_mul_i32 s{S_T1}, s{S_FW}, 3")
    a.e(f"s_add_u32 s{S_T0}, s{S_T0}, s{S_T1}")
    a.e(f"s_lshl_b32 s{S_T0}, s{S_T0}, 10")
    a.e(f"s_add_u32 s{S_T0}, s{S_T0}, {WS_H}")
    a.e(f"v_lshl_add_u32 v168, v{V_LANE}, 4, s{S_T0}")
    a.e(f"v_add_u32 v169, {86*1024}, v168")
    a.e(f"s_sub_u32 s{S_T2}, s{S_NU}, s{S_T1}")
    a.e(f"s_lshl_b32 s{S_T0}, s{S_WG}, 12")
    a.e(f"s_add_u32 s{S_T0}, s{S_T0}, {WS_DUMMY}")
    a.e(f"v_lshl_add_u32 v170, v{V_LANE}, 4, s{S_T0}")
    a.e(f"s_cmp_gt_u32 s{S_T2}, 1")
    a.e(f"s_cselect_b64 s[74:75], -1, 0")
    a.e(f"v_cndmask_b32 v171, v170, v169, s[74:75]")
    a.e(f"v_cndmask_b32 v170, v170, v168, s[74:75]")
    T, Gq, X = 112, 120, 128
    for ap in range(3):
        for tt in range(2):
            c = acc(tt, ap); KK = 160 + 4*tt; S2 = 162 + 4*tt
            for p in range(4):
                a.e(f"v_pk_mul_f32 {vr(T+2*p,2)}, {vr(c+2*p,2)}, {vr(c+2*p,2)}")
            for p in range(4):
                a.e(f"v_pk_fma_f32 {vr(T+2*p,2)}, {vr(T+2*p,2)}, {vr(KK,2)}, {vr(KK,2)} op_sel:[0,1,0] op_sel_hi:[1,1,0]")
            for p in range(4):
                a.e(f"v_pk_mul_f32 {vr(T+2*p,2)}, {vr(T+2*p,2)}, {vr(c+2*p,2)}")
            for p in range(8):
                a.e(f"v_exp_f32 v{T+p}, v{T+p}")
            for p in range(4):
                a.e(f"v_pk_mul_f32 {vr(Gq+2*p,2)}, {vr(c+2*p,2)}, {vr(c+8+2*p,2)}")
            for p in range(4):
                a.e(f"v_pk_fma_f32 {vr(T+2*p,2)}, {vr(T+2*p,2)}, {vr(S2,2)}, {vr(S2,2)} op_sel_hi:[1,0,0]")
            for p in range(8):
                a.e(f"v_rcp_f32 v{T+p}, v{T+p}")
            a.e("s_nop 0")
            for p in range(4):
                a.e(f"v_pk_mul_f32 {vr(Gq+2*p,2)}, {vr(Gq+2*p,2)}, {vr(T+2*p,2)}")
            O = X + 4 * ((2 * ap + tt) % 2)
            for p in range(4):
                a.e(f"v_cvt_pk_bf16_f32 v{O+p}, v{Gq+2*p}, v{Gq+2*p+1}")
            adr = (168 + tt) if ap == 0 else (170 + tt)
            a.vm(f"global_store_dwordx4 v{adr}, {vr(O,4)}, s[{P_WS}:{P_WS+1}] offset:{1024*ap} sc1", "pubH")

V_WDOFF, V_WDL, V_WDA = 172, 173, 166
def wd_setup(a, t0, voff=V_WDOFF):
    mk_srd(a, SRD_WD, P_WD, 1376 * 1024)
    a.e(f"s_mul_i32 s{S_WDO}, s{S_W}, {352 * 1024}")
    a.e(f"s_lshl_b32 s{S_T0}, s{S_NT}, 7")
    a.e(f"s_add_u32 s{S_WDO}, s{S_WDO}, s{S_T0}")
    t = t0
    a.e(f"v_lshrrev_b32 v{t}, 3, v{V_LANE}")
    a.e(f"v_and_b32 v{t+1}, 7, v{V_LANE}")
    a.e(f"v_bfe_u32 v{t+2}, v{t}, 1, 1")
    a.e(f"v_lshlrev_b32 v{t+2}, 2, v{t+2}")
    a.e(f"v_xor_b32 v{t+1}, v{t+1}, v{t+2}")
    a.e(f"v_lshlrev_b32 v{t+1}, 4, v{t+1}")
    a.e(f"v_lshl_add_u32 v{voff}, v{t}, 10, v{t+1}")

def wd_lane_parts(a, t0):
    t = t0
    a.e(f"v_lshrrev_b32 v{t}, 4, v{V_LANE}")
    a.e(f"v_and_b32 v{t+1}, 1, v{t}")
    a.e(f"v_lshrrev_b32 v{t}, 1, v{t}")
    a.e(f"v_bfe_u32 v{t+2}, v{V_LANE}, 2, 2")
    a.e(f"v_lshl_add_u32 v{t+2}, v{t}, 2, v{t+2}")
    a.e(f"v_lshlrev_b32 v{t+2}, 7, v{t+2}")
    a.e(f"v_lshl_add_u32 v{t+2}, v{t+1}, 5, v{t+2}")
    a.e(f"v_and_b32 v{t+1}, 3, v{V_LANE}")
    a.e(f"v_lshl_add_u32 v{t+2}, v{t+1}, 3, v{t+2}")
    a.e(f"v_bfe_u32 v{t+1}, v{V_LANE}, 3, 1")
    a.e(f"v_lshlrev_b32 v{t+1}, 6, v{t+1}")
    a.e(f"v_add_u32 v{V_WDL}, v{t+2}, v{t+1}")
    a.e(f"v_xor_b32 v{t+1}, 64, v{t+1}")
    a.e(f"v_add_u32 v{V_WDL+1}, v{t+2}, v{t+1}")

def wd_groups(rnd, voff=V_WDOFF):
    lb, wsz, ks0, n = WD[rnd]
    out = []
    for q in range(2 * n):
        pre = [f"s_mul_i32 s{S_WDL}, s{S_W}, {wsz}", f"s_add_u32 s{S_WDS}, s{S_WDO}, {ks0*16384}"] if q == 0 else []
        out.append(Dma(pre, f"s_add_u32 m0, s{S_WDL}, {lb + q*1024}",
                       (f"buffer_load_dwordx4 v{voff}, s[{SRD_WD}:{SRD_WD+3}], s{S_WDS} offen lds", f"wd{rnd}"),
                       [f"s_add_u32 s{S_WDS}, s{S_WDS}, 8192"]))
    return out

def wd_addr(rnd):
    lb, wsz, ks0, n = WD[rnd]
    return [f"s_mul_i32 s{S_T0}, s{S_W}, {wsz}", f"s_add_u32 s{S_T0}, s{S_T0}, {lb}",
            f"v_add_u32 v{V_WDA}, s{S_T0}, v{V_WDL}", f"v_add_u32 v{V_WDA+1}, s{S_T0}, v{V_WDL+1}"]

def wd_tr_agpr(rnd):
    lb, wsz, ks0, n = WD[rnd]
    return [f"ds_read_b64_tr_b16 {ar(wd_areg(ks0+k) + 4*t + 2*h, 2)}, v{V_WDA+t} offset:{k*2048 + h*1024}"
            for k in range(n) for t in range(2) for h in range(2)]

G2_ACC, G2_H, G2_RING, G2_W = 16, 80, 8, 144
V_HA = 160
def acc2(t, tt): return G2_ACC + 16 * (2 * t + tt)

def h_setup(a):
    a.e(f"s_lshl_b32 s{S_T0}, s{S_I}, 2")
    a.e(f"s_lshl_b32 s{S_T1}, s{S_TH}, 1")
    a.e(f"s_add_u32 s{S_T0}, s{S_T0}, s{S_T1}")
    a.e(f"s_mul_i32 s{S_T0}, s{S_T0}, 86")
    a.e(f"s_mul_i32 s{S_T1}, s{S_W}, 22")
    a.e(f"s_add_u32 s{S_T0}, s{S_T0}, s{S_T1}")
    a.e(f"s_lshl_b32 s{S_T0}, s{S_T0}, 10")
    a.e(f"s_add_u32 s{S_T0}, s{S_T0}, {WS_H}")
    a.e(f"v_lshl_add_u32 v{V_HA}, v{V_LANE}, 4, s{S_T0}")
    a.e(f"v_add_u32 v{V_HA+1}, {86*1024}, v{V_HA}")
    a.e(f"s_movk_i32 s66, {4*1024}")
    a.e(f"s_movk_i32 s67, {5*1024}")
    a.e(f"s_cmp_eq_u32 s{S_W}, 3")
    a.e(f"s_cselect_b32 s66, {3*1024}, s66")
    a.e(f"s_cselect_b32 s67, {3*1024}, s67")

def h_load(q):
    R = G2_H + 8 * (q % G2_RING)
    it = []
    if q < 20:
        if q % 4 == 0 and q > 0:
            it += [f"v_add_u32 v{V_HA}, 4096, v{V_HA}", f"v_add_u32 v{V_HA+1}, 4096, v{V_HA+1}"]
        off = (q % 4) * 1024
        it += [(f"global_load_dwordx4 {vr(R,4)}, v{V_HA}, s[{P_WS}:{P_WS+1}] offset:{off} sc1", f"h{q}"),
               (f"global_load_dwordx4 {vr(R+4,4)}, v{V_HA+1}, s[{P_WS}:{P_WS+1}] offset:{off} sc1", f"h{q}")]
    else:
        sreg = 66 + (q - 20)
        it += [f"v_add_u32 v162, s{sreg}, v{V_HA}", f"v_add_u32 v163, s{sreg}, v{V_HA+1}",
               (f"global_load_dwordx4 {vr(R,4)}, v162, s[{P_WS}:{P_WS+1}] sc1", f"h{q}"),
               (f"global_load_dwordx4 {vr(R+4,4)}, v163, s[{P_WS}:{P_WS+1}] sc1", f"h{q}")]
    return it

def hy_poll_issue(a):
    a.e(f"s_lshl_b32 s{S_T0}, s{S_I}, 6")
    a.e(f"s_add_u32 s{S_T0}, s{S_T0}, {WS_FLAG_H}")
    a.e(f"v_and_b32 v8, 15, v{V_LANE}")
    a.e(f"v_lshl_add_u32 v8, v8, 2, s{S_T0}")
    a.e(f"s_lshl_b32 s{S_T0}, s{S_NT}, 7")
    a.e(f"s_add_u32 s{S_T0}, s{S_T0}, {WS_FLAG_Y}")
    a.e(f"v_and_b32 v9, 31, v{V_LANE}")
    a.e(f"v_lshl_add_u32 v9, v9, 2, s{S_T0}")
    a.vm(f"global_load_dword v10, v8, s[{P_WS}:{P_WS+1}] sc1", "ph")
    a.vm(f"global_load_dword v11, v9, s[{P_WS}:{P_WS+1}] sc1", "ph")

def hy_poll_check(a):
    top, ok = a.label("poll"), a.label("pollok")
    a.vm_wait("ph")
    a.e(f"s_mov_b32 s{S_SPIN}, 0")
    a.e(f"{top}:")
    a.e(f"v_cmp_ne_u32 vcc, s{S_TAG}, v10")
    a.e(f"v_cmp_ne_u32 s[74:75], s{S_TAG}, v11")
    a.e("s_nop 1")
    a.e("s_or_b64 vcc, vcc, s[74:75]")
    spin_tail(a, top, ok, [f"global_load_dword v10, v8, s[{P_WS}:{P_WS+1}] sc1", f"global_load_dword v11, v9, s[{P_WS}:{P_WS+1}] sc1"], OPT.get("hsleep", 8))

def res_reads(q):
    for rnd in (4, 5, 6):
        lb, wsz, ks0, n = WD[rnd]
        if ks0 <= q < ks0 + n:
            pre = wd_addr(rnd) if q == ks0 else []
            B = G2_W + 8 * (q % 2)
            return pre + [f"ds_read_b64_tr_b16 {vr(B + 4*t + 2*h, 2)}, v{V_WDA+t} offset:{(q-ks0)*2048 + h*1024}" for t in range(2) for h in range(2)]

def g2_main(a, hooks, n0):
    la = OPT.get("g2la", 7)
    nxt = n0
    for q in range(22):
        a.vm_wait(f"h{q}")
        if q >= 8:
            a.e("s_waitcnt lgkmcnt(0)")
        stamp(a, f"g2q{q}")
        R = G2_H + 8 * (q % G2_RING)
        mf = []
        for t in range(2):
            A = ar(wd_areg(q) + 4*t, 4) if wd_in_agpr(q) else vr(G2_W + 8*(q % 2) + 4*t, 4)
            for tt in range(2):
                mf.append(f"v_mfma_f32_32x32x16_bf16 {vr(acc2(t,tt),16)}, {A}, {vr(R+4*tt,4)}, {'0' if q == 0 else vr(acc2(t,tt),16)}")
        slots = {i: [] for i in range(4)}
        if q + 1 < 22 and not wd_in_agpr(q + 1):
            rr = res_reads(q + 1)
            if q + 1 == 8: rr = [lambda a: a.vm_wait("wd4", "wd5")] + rr
            slots[0] += rr
        k = 0
        while nxt < 22 and nxt - q <= la and k < 2 and nxt < q + G2_RING:
            slots[1 if k == 0 else 3].append(h_load(nxt)); nxt += 1; k += 1
        for hk in hooks.get(q, []): slots[2].append(hk)
        sched(a, mf, slots)

V_OUT = 14
V_X = 168
def x_loads(a):
    a.e(f"s_lshl_b32 s{S_T0}, s{S_I}, 7")
    a.e(f"s_lshl_b32 s{S_T1}, s{S_TH}, 6")
    a.e(f"s_add_u32 s{S_T0}, s{S_T0}, s{S_T1}")
    a.e(f"s_and_b32 s{S_T1}, s{S_W}, 1")
    a.e(f"s_lshl_b32 s{S_T1}, s{S_T1}, 5")
    a.e(f"s_add_u32 s{S_T0}, s{S_T0}, s{S_T1}")
    a.e(f"s_lshl_b32 s{S_T0}, s{S_T0}, 10")
    a.e(f"s_lshl_b32 s{S_T1}, s{S_NT}, 7")
    a.e(f"s_add_u32 s{S_T0}, s{S_T0}, s{S_T1}")
    a.e(f"s_lshr_b32 s{S_T1}, s{S_W}, 1")
    a.e(f"s_lshl_b32 s{S_T1}, s{S_T1}, 6")
    a.e(f"s_add_u32 s{S_T0}, s{S_T0}, s{S_T1}")
    a.e(f"v_and_b32 v12, 31, v{V_LANE}")
    a.e(f"v_lshlrev_b32 v12, 10, v12")
    a.e(f"v_lshrrev_b32 v13, 5, v{V_LANE}")
    a.e(f"v_lshl_add_u32 v12, v13, 3, v12")
    a.e(f"v_add_u32 v{V_OUT}, s{S_T0}, v12")
    for q in range(4):
        a.vm(f"global_load_dwordx2 {vr(V_X+2*q,2)}, v{V_OUT}, s[{P_X}:{P_X+1}] offset:{16*q}", "fx")
    a.e(f"v_lshl_add_u32 v{V_OUT}, v13, 3, v{V_OUT}")

def y_loads(a):
    a.e(f"s_lshl_b32 s{S_T0}, s{S_I}, 1")
    a.e(f"s_add_u32 s{S_T0}, s{S_T0}, s{S_TH}")
    a.e(f"s_lshl_b32 s{S_T0}, s{S_T0}, 16")
    a.e(f"s_lshl_b32 s{S_T1}, s{S_NT}, 13")
    a.e(f"s_add_u32 s{S_T0}, s{S_T0}, s{S_T1}")
    a.e(f"s_add_u32 s{S_T0}, s{S_T0}, {WS_Y}")
    a.e(f"v_lshl_add_u32 v10, v0, 4, s{S_T0}")
    a.e(f"v_add_u32 v11, 4096, v10")
    a.vm(f"global_load_dwordx4 v[2:5], v10, s[{P_WS}:{P_WS+1}] sc1", "fy")
    a.vm(f"global_load_dwordx4 v[6:9], v11, s[{P_WS}:{P_WS+1}] sc1", "fy")

def y_check(a):
    top, ok = a.label("ychk"), a.label("yok")
    a.vm_wait("fy")
    a.e(f"s_mov_b32 s{S_SPIN}, 0")
    a.e(f"{top}:")
    a.e("v_max3_u32 v12, v2, v3, v4")
    a.e("v_max3_u32 v13, v5, v6, v7")
    a.e("v_max3_u32 v12, v12, v8, v9")
    a.e("v_max_u32 v12, v12, v13")
    a.e("v_cmp_eq_u32 vcc, -1, v12")
    a.e("s_nop 1")
    spin_tail(a, top, ok, [f"global_load_dwordx4 v[2:5], v10, s[{P_WS}:{P_WS+1}] sc1", f"global_load_dwordx4 v[6:9], v11, s[{P_WS}:{P_WS+1}] sc1"])

def final_prep(a):
    a.e(f"v_lshlrev_b32 v162, 4, v{V_LANE}")
    a.e(f"s_mul_i32 s{S_T0}, s{S_W}, {3*4096}")
    a.e(f"v_add_u32 v163, s{S_T0}, v162")
    a.e(f"v_lshrrev_b32 v12, 3, v0")
    a.e(f"v_mul_u32_u24 v12, 192, v12")
    a.e(f"v_and_b32 v13, 7, v0")
    a.e(f"v_lshl_add_u32 v164, v13, 4, v12")
    a.e(f"v_add_u32 v164, {L_YB}, v164")
    a.e(f"v_lshrrev_b32 v12, 4, v{V_LANE}")
    a.e(f"v_and_b32 v13, 1, v12")
    a.e(f"v_lshrrev_b32 v12, 1, v12")
    a.e(f"v_bfe_u32 v165, v{V_LANE}, 2, 2")
    a.e(f"v_lshl_add_u32 v165, v12, 2, v165")
    a.e(f"v_mul_u32_u24 v165, 192, v165")
    a.e(f"v_lshl_add_u32 v165, v13, 5, v165")
    a.e(f"v_and_b32 v13, 3, v{V_LANE}")
    a.e(f"v_lshl_add_u32 v165, v13, 3, v165")
    a.e(f"s_lshr_b32 s{S_T0}, s{S_W}, 1")
    a.e(f"s_mul_i32 s{S_T0}, s{S_T0}, {32*192}")
    a.e(f"s_and_b32 s{S_T1}, s{S_W}, 1")
    a.e(f"s_lshl_b32 s{S_T1}, s{S_T1}, 6")
    a.e(f"s_add_u32 s{S_T0}, s{S_T0}, s{S_T1}")
    a.e(f"s_add_u32 s{S_T0}, s{S_T0}, {L_YB}")
    a.e(f"v_add_u32 v165, s{S_T0}, v165")

def red_ref(u, q):
    return 162, RED_UNIT[u] + q * 1024

def final(a):
    OWN, XF = 80, 96
    P = 112
    end = a.label("redend")
    labs = [a.label("redw") for _ in range(4)]
    for w in range(1, 4):
        a.e(f"s_cmp_eq_u32 s{S_W}, {w}")
        a.e(f"s_cbranch_scc1 {labs[w]}")
    for w in range(4):
        a.e(f"{labs[w]}:")
        a.e("s_nop 9")
        for o in range(4):
            if o == w: continue
            u = 3*o + ((w - o - 1) & 3)
            for q in range(4):
                r_, off = red_ref(u, q)
                a.e(f"ds_write_b128 v{r_}, {vr(G2_ACC+16*o+4*q,4)} offset:{off}")
        for q in range(8):
            a.e(f"v_pk_mul_f32 {vr(OWN+2*q,2)}, {vr(G2_ACC+16*w+2*q,2)}, 1.0 op_sel_hi:[1,0]")
        if w < 3: a.e(f"s_branch {end}")
    a.e(f"{end}:")
    y_check(a)
    stamp(a, "fy")
    a.e("ds_write_b128 v164, v[2:5]")
    a.e(f"ds_write_b128 v164, v[6:9] offset:{32*192}")
    a.vm_wait("fx")
    for q in range(8):
        a.e(f"v_lshlrev_b32 v{XF+2*q}, 16, v{V_X+q}")
        a.e(f"v_and_b32 v{XF+2*q+1}, 0xffff0000, v{V_X+q}")
    for q in range(8):
        a.e(f"v_pk_add_f32 {vr(OWN+2*q,2)}, {vr(OWN+2*q,2)}, {vr(XF+2*q,2)}")
    a.e("s_waitcnt lgkmcnt(0)")
    a.bar("fin")
    for q in range(4):
        a.e(f"ds_read_b64_tr_b16 {vr(2+2*q,2)}, v165 offset:{1536*q}")
    for sl in range(3):
        for q in range(4):
            a.e(f"ds_read_b128 {vr(P+16*sl+4*q,4)}, v163 offset:{4096*sl + 1024*q}")
    a.e("s_waitcnt lgkmcnt(12)")
    for q in range(8):
        a.e(f"v_lshlrev_b32 v{XF+2*q}, 16, v{2+q}")
        a.e(f"v_and_b32 v{XF+2*q+1}, 0xffff0000, v{2+q}")
    for q in range(8):
        a.e(f"v_pk_add_f32 {vr(OWN+2*q,2)}, {vr(OWN+2*q,2)}, {vr(XF+2*q,2)}")
    for sl in range(3):
        a.e(f"s_waitcnt lgkmcnt({8 - 4*sl})")
        for q in range(8):
            a.e(f"v_pk_add_f32 {vr(OWN+2*q,2)}, {vr(OWN+2*q,2)}, {vr(P+16*sl+2*q,2)}")
    for q in range(8):
        a.e(f"v_cvt_pk_bf16_f32 v{2+q}, v{OWN+2*q}, v{OWN+2*q+1}")
    a.e("s_nop 1")
    for p in range(2):
        a.e(f"v_permlane32_swap_b32 v{2+4*p}, v{4+4*p}")
        a.e(f"v_permlane32_swap_b32 v{3+4*p}, v{5+4*p}")
    for p in range(2):
        a.vm(f"global_store_dwordx4 v{V_OUT}, {vr(2+4*p,4)}, s[{P_OUT}:{P_OUT+1}] offset:{32*p} nt", "out")


def xw_touch(a):
    mk_srd(a, SRD_X, P_X, 2048 * 1024)
    mk_srd(a, SRD_WG, P_WG, 512 * 2752)
    mk_srd(a, SRD_WU, P_WU, 512 * 2752)
    a.e(f"s_lshl_b32 s{S_T0}, s{S_WG}, 13")
    a.e(f"s_lshl_b32 s{S_T1}, s{S_W}, 11")
    a.e(f"s_add_u32 s{S_T0}, s{S_T0}, s{S_T1}")
    a.e(f"v_lshl_add_u32 v60, v{V_LANE}, 4, s{S_T0}")
    a.e(f"s_mul_i32 s{S_T0}, s{S_WG}, 5504")
    a.e(f"s_mul_i32 s{S_T1}, s{S_W}, 1376")
    a.e(f"s_add_u32 s{S_T0}, s{S_T0}, s{S_T1}")
    a.e(f"v_lshl_add_u32 v61, v{V_LANE}, 4, s{S_T0}")
    a.vm(f"buffer_load_dwordx4 v[64:67], v61, s[{SRD_WG}:{SRD_WG+3}], 0 offen", "pf")
    a.vm(f"buffer_load_dwordx4 v[64:67], v61, s[{SRD_WU}:{SRD_WU+3}], 0 offen", "pf")
    a.vm(f"buffer_load_dwordx4 v[64:67], v60, s[{SRD_X}:{SRD_X+3}], 0 offen", "pf")
    a.vm(f"buffer_load_dwordx4 v[64:67], v61, s[{SRD_WG}:{SRD_WG+3}], 0 offen offset:1024", "pf")
    a.vm(f"buffer_load_dwordx4 v[64:67], v61, s[{SRD_WU}:{SRD_WU+3}], 0 offen offset:1024", "pf")
    a.vm(f"buffer_load_dwordx4 v[64:67], v60, s[{SRD_X}:{SRD_X+3}], 0 offen offset:1024", "pf")

def role_g(a):
    if OPT.get("prio", 1): a.e("s_setprio 1")
    g_setup(a)
    a.e("s_waitcnt lgkmcnt(0)")
    a.e(f"s_mov_b32 s{S_ROLE}, 0")
    a.vm("global_load_dwordx4 v[44:47], v7, s[16:17]", "ln")
    a.vm("global_load_dwordx4 v[48:51], v7, s[16:17] offset:1024", "ln")
    epoch_load(a, 3, 6)
    if OPT.get("xwtouch"): xw_touch(a)
    stamp(a, 0, real=True); stamp(a, 1)
    epoch_finish(a, 6)
    ln_first(a)
    stamp(a, "ln")
    a.e("s_waitcnt lgkmcnt(0)")
    a.bar("b0")
    stamp(a, "b0")
    for x in g1_reads(0, 0)[:0]: a.e(x)
    for q in range(2):
        a.e(f"ds_read_b64_tr_b16 v[{8+4*q}:{9+4*q}], v2 offset:{128*q}")
        a.e(f"ds_read_b64_tr_b16 v[{10+4*q}:{11+4*q}], v2 offset:{128*q + 4*1088}")
    for x in g1_reads(0, 0): a.e(x)
    a.e("s_waitcnt lgkmcnt(8)")
    a.vm(f"global_store_dwordx4 v3, v[8:11], s[{P_WS}:{P_WS+1}] sc1", "pubA")
    a.vm(f"global_store_dwordx4 v3, v[12:15], s[{P_WS}:{P_WS+1}] offset:1024 sc1", "pubA")
    PS = OPT.get("pubstage", 1)
    def bump(a):
        lab = a.label("nobump")
        a.e(f"s_or_b32 s{S_T0}, s{S_WG}, s{S_W}")
        a.e(f"s_cmp_lg_u32 s{S_T0}, 0")
        a.e(f"s_cbranch_scc1 {lab}")
        a.e(f"s_add_u32 s{S_T0}, s{S_EP}, 1")
        a.e("v_mov_b32 v6, 0")
        a.e(f"v_mov_b32 v7, s{S_T0}")
        a.e(f"s_mov_b64 s[{S_EXEC}:{S_EXEC+1}], exec")
        a.e("s_mov_b64 exec, 1")
        a.e(f"global_store_dword v6, v7, s[{P_WS}:{P_WS+1}] sc1")
        a.e(f"s_mov_b64 exec, s[{S_EXEC}:{S_EXEC+1}]")
        a.e(f"{lab}:")
    def chk(a):
        stamp(a, "chk0")
        ln_poll_check(a, 165, 152)
        stamp(a, "chk1")
        bump(a)
        g1_post_loads(a)
    if OPT.get("csg", 0):
        for r_ in range(4): a.e(f"v_mov_b32 v{168+r_}, 0x3f803f80")
    def pre_pub(a):
        if OPT.get("csg", 0):
            a.e("s_waitcnt vmcnt(0)"); a.vmq = []
        else:
            a.vm_wait("pubA")
    hooks = {("pre", PS): [pre_pub],
             ("post", PS): [lambda a: flag_store(a, WS_FLAG_LN, idx_ln, 6, 7)],
             ("post", OPT.get("pollstage", 5)): [lambda a: ln_poll_issue(a, 165, 152)],
             ("post", 6): [chk],
             ("shadow", 7, 2): g1_corr_prep()}
    if OPT.get("csg", 0):
        hooks[("shadow", 1, 0)] = [cs_store_g]
    rw = Rec(a); wd_setup(rw, 6); wd_lane_parts(rw, 6)
    hooks[("shadow", 4, 1)] = [o[1] for o in rw.ops]
    g1_main(a, hooks)
    stamp(a, "loop")
    if OPT.get("gprio2") is not None: a.e(f"s_setprio {OPT['gprio2']}")
    g1_corr_mfma(a)
    r = Rec(a)
    g1_epilogue(r)
    replay(a, r.ops, [], every=16, start=34)
    stamp(a, "epi")
    h_setup(a)
    a.vm_wait("pubH")
    a.bar("k")
    stamp(a, "bk")
    flag_store(a, WS_FLAG_H, idx_h, 6, 7)
    flag_store(a, WS_FLAG_Y, idx_y, 6, 7)
    stamp(a, "hpub")
    for x in wd_addr(1) + wd_tr_agpr(1) + wd_addr(2) + wd_tr_agpr(2): a.e(x)
    a.e("s_waitcnt lgkmcnt(0)")
    for g in wd_groups(4) + wd_groups(5): emit(a, g)
    a.bar("p")
    hy_poll_issue(a)
    hy_poll_check(a)
    stamp(a, "hflag")
    N0 = OPT.get("g2n0", 4)
    for q in range(N0): emit(a, h_load(q))
    a.e("s_waitcnt lgkmcnt(0)")
    hk = {}
    def after_cd(a):
        a.bar("cd")
        for x in wd_addr(3) + wd_tr_agpr(3): a.e(x.replace(f"v{V_WDA+1}", "v13").replace(f"v{V_WDA}", "v12"))
    for q, f in ((OPT.get("cxq", 2), lambda a: a.bar("cx")), (OPT.get("cdq", 4), after_cd), (OPT.get("xld", 18), x_loads), (OPT.get("fprep", 19), final_prep), (OPT.get("yld", 13), y_loads), (17, lambda a: a.bar("rd"))):
        hk.setdefault(q, []).append(f)
    g2_main(a, hk, N0)
    stamp(a, "g2")
    final(a)
    stamp(a, "fin")
    a.e("s_waitcnt vmcnt(0)")
    stamp(a, 9, real=True)
    prof_store(a)
    a.e("s_endpgm")


C_XOFF, C_WOFF = 2, 6
C_AADDR = 9
C_P = 160
C_XT = 168
def c_setup(a):
    a.e(f"s_lshl_b32 s{S_T0}, s{S_I}, 7")
    a.e(f"s_lshl_b32 s{S_T1}, s{S_W}, 5")
    a.e(f"s_add_u32 s{S_T0}, s{S_T0}, s{S_T1}")
    a.e(f"s_lshl_b32 s{S_XW}, s{S_T0}, 10")
    a.e(f"s_lshl_b32 s{S_LX}, s{S_W}, 12")
    a.e(f"s_add_u32 s{S_KC}, s{S_I}, s{S_J}")
    a.e(f"s_and_b32 s{S_KC}, s{S_KC}, 7")
    a.e(f"s_mul_i32 s{S_WW}, s{S_W}, {16 * 2752}")
    a.e(f"s_lshl_b32 s{S_T0}, s{S_U0}, 6")
    a.e(f"s_add_u32 s{S_WW}, s{S_WW}, s{S_T0}")
    a.e(f"s_mul_i32 s{S_LW}, s{S_W}, 3072")
    a.e(f"v_lshrrev_b32 v12, 3, v{V_LANE}")
    a.e(f"v_and_b32 v13, 7, v{V_LANE}")
    a.e(f"v_lshrrev_b32 v14, 1, v12")
    a.e(f"v_xor_b32 v15, v14, v13")
    a.e(f"v_lshlrev_b32 v16, 4, v15")
    a.e(f"v_lshl_add_u32 v{C_XOFF}, v12, 10, v16")
    a.e(f"v_xor_b32 v17, 64, v{C_XOFF}")
    a.e(f"v_add_u32 v{C_XOFF+1}, 8192, v17")
    a.e(f"v_add_u32 v{C_XOFF+2}, 16384, v{C_XOFF}")
    a.e(f"v_add_u32 v{C_XOFF+3}, 16384, v{C_XOFF+1}")
    for q in range(3):
        a.e(f"v_add_u32 v12, {64*q}, v{V_LANE}")
        a.e(f"v_mul_u32_u24 v13, 5462, v12")
        a.e(f"v_lshrrev_b32 v13, 16, v13")
        a.e(f"v_mul_u32_u24 v14, 12, v13")
        a.e(f"v_sub_u32 v14, v12, v14")
        a.e(f"v_mul_u32_u24 v13, 2752, v13")
        a.e(f"v_lshl_add_u32 v{C_WOFF+q}, v14, 4, v13")

def stage_offsets():
    return [f"s_lshl_b32 s{S_XO}, s{S_KC}, 7", f"s_add_u32 s{S_XO}, s{S_XO}, s{S_XW}",
            f"s_mul_i32 s{S_WO}, s{S_KC}, {64 * 2752}", f"s_add_u32 s{S_WO}, s{S_WO}, s{S_WW}",
            f"s_add_u32 s{S_KC}, s{S_KC}, 1", f"s_and_b32 s{S_KC}, s{S_KC}, 7"]

def stage_dma(stage):
    S = (stage % 3) * SLOT; tag = f"st{stage}"
    out = []
    for q in range(4):
        out.append(Dma([], f"s_add_u32 m0, s{S_LX}, {S + L_X + q * 1024}", (f"buffer_load_dwordx4 v{C_XOFF+q}, s[{SRD_X}:{SRD_X+3}], s{S_XO} offen lds", tag)))
    for q in range(3):
        out.append(Dma([], f"s_add_u32 m0, s{S_LW}, {S + L_G + q * 1024}", (f"buffer_load_dwordx4 v{C_WOFF+q}, s[{SRD_WG}:{SRD_WG+3}], s{S_WO} offen lds", tag)))
        out.append(Dma([], f"s_add_u32 m0, s{S_LW}, {S + L_U + q * 1024}", (f"buffer_load_dwordx4 v{C_WOFF+q}, s[{SRD_WU}:{SRD_WU+3}], s{S_WO} offen lds", tag)))
    out[0] = stage_offsets() + list(out[0])
    return out

def cs_block(a):
    lab = a.label("nocs")
    a.e(f"s_cmp_lg_u32 s{S_CSH}, 0")
    a.e(f"s_cbranch_scc1 {lab}")
    FRG, ACC, ON = 64, 112, 60
    for r in range(4): a.e(f"v_mov_b32 v{ON+r}, 0x3f803f80")
    for s in range(4):
        for ap in range(3):
            for h in range(2):
                a.e(f"ds_read_b64_tr_b16 {vr(FRG+12*s+4*ap+2*h,2)}, v{C_AADDR} offset:{s*3072 + h*768 + ap*32}")
    a.e("s_waitcnt lgkmcnt(0)")
    for s in range(4):
        for ap in range(3):
            a.e(f"v_mfma_f32_32x32x16_bf16 {vr(ACC+16*ap,16)}, {vr(ON,4)}, {vr(FRG+12*s+4*ap,4)}, {'0' if s == 0 else vr(ACC+16*ap,16)}")
    a.e(f"s_mul_i32 s{S_T0}, s{S_J}, 6")
    a.e(f"s_mul_i32 s{S_T1}, s{S_FW}, 3")
    a.e(f"s_add_u32 s{S_T0}, s{S_T0}, s{S_T1}")
    a.e(f"s_lshl_b32 s{S_T0}, s{S_T0}, 10")
    a.e(f"s_lshl_b32 s{S_T1}, s{S_I}, 2")
    a.e(f"s_add_u32 s{S_T0}, s{S_T0}, s{S_T1}")
    a.e(f"s_add_u32 s{S_T0}, s{S_T0}, {WS_CS}")
    a.e(f"v_lshl_add_u32 v59, v{V_LANE}, 5, s{S_T0}")
    lab2 = a.label("nocsst")
    a.e(f"s_cmp_ge_u32 s{S_W}, 2")
    a.e(f"s_cbranch_scc1 {lab2}")
    a.e("s_nop 7")
    a.e(f"s_mov_b64 s[{S_EXEC}:{S_EXEC+1}], exec")
    a.e("s_mov_b64 exec, 0xffffffff")
    for ap in range(3):
        a.e(f"global_store_dword v59, v{ACC+16*ap}, s[{P_WS}:{P_WS+1}] offset:{1024*ap} sc1")
    a.e(f"s_mov_b64 exec, s[{S_EXEC}:{S_EXEC+1}]")
    a.e(f"{lab2}:")
    a.e(f"{lab}:")

def kgen_loads(a):
    a.e(f"s_lshl_b32 s{S_T0}, s{S_D}, 8")
    a.e(f"s_lshl_b32 s{S_T1}, s{S_MH}, 7")
    a.e(f"s_add_u32 s{S_T0}, s{S_T0}, s{S_T1}")
    a.e(f"v_lshl_add_u32 v12, v{V_LANE}, 1, s{S_T0}")
    for q, p in enumerate([P_ARE, P_AIM, P_BRE, P_BIM, P_CRE, P_CIM]):
        a.vm(f"global_load_ushort v{C_P+q}, v12, s[{p}:{p+1}]", "kp")
    a.e(f"s_lshl_b32 s{S_T0}, s{S_D}, 1")
    a.e(f"v_mov_b32 v13, s{S_T0}")
    a.vm(f"global_load_ushort v{C_P+6}, v13, s[{P_LDT}:{P_LDT+1}]", "kp")
    a.vm(f"global_load_ushort v{C_P+7}, v13, s[{P_DSK}:{P_DSK+1}]", "kp")

KS = 64
def kgen_prog():
    out = []; e = out.append
    P = C_P
    AL, BE, CO = 10, 11, 12
    Z1, Z2, Z4, Z8, Z256, Z512 = 14, 16, 18, 20, 22, 24
    A0, A1, B0, B1, C0, C1_, CB, D0, D1, DB0, DB1 = 26, 28, 30, 32, 34, 36, 38, 40, 42, 44, 46
    T = 48
    for q in range(8): e(f"v_lshlrev_b32 v{P+q}, 16, v{P+q}")
    e(f"v_mul_f32 v58, 0x3fb8aa3b, v{P+6}")
    e("v_exp_f32 v58, v58")
    e(f"v_mov_b32 v{A0}, 1.0")
    e(f"v_cvt_pk_bf16_f32 v58, v58, v58")
    e(f"v_mov_b32 v{A0+1}, 0")
    e(f"v_lshlrev_b32 v58, 16, v58")
    e(f"v_mul_f32 v{AL}, v58, v{P}"); e(f"v_mul_f32 v{BE}, v58, v{P+1}")
    e(f"v_mul_f32 v56, v58, v{P+2}"); e(f"v_mul_f32 v57, v58, v{P+3}")
    e(f"v_mul_f32 v{AL}, 0x3fb8aa3b, v{AL}"); e(f"v_mul_f32 v{BE}, 0.15915494, v{BE}")
    e(f"v_mul_f32 v{CO}, v{P+4}, v56"); e(f"v_mul_f32 v{CO+1}, v{P+4}, v57")
    e(f"v_fma_f32 v{CO}, -v{P+5}, v57, v{CO}"); e(f"v_fma_f32 v{CO+1}, v{P+5}, v56, v{CO+1}")
    items = [(Z1, 1, T), (Z8, 8, T+2), (Z256, 256, T+4), (B0, 128, T+6)]
    for d, p, t in items:
        e(f"v_mul_f32 v{t}, {fhex(float(p))}, v{AL}"); e(f"v_mul_f32 v{t+1}, {fhex(float(p))}, v{BE}")
    for d, p, t in items:
        e(f"v_exp_f32 v{t}, v{t}"); e(f"v_fract_f32 v{t+1}, v{t+1}")
    for d, p, t in items:
        e(f"v_cos_f32 v{d}, v{t+1}"); e(f"v_sin_f32 v{d+1}, v{t+1}")
    e("v_nop")
    for d, p, t in items:
        e(f"v_mul_f32 v{d}, v{d}, v{t}"); e(f"v_mul_f32 v{d+1}, v{d+1}, v{t}")
    def cm(d, x, y):
        return [f"v_mul_f32 v{d}, v{x}, v{y}", f"v_mul_f32 v{d+1}, v{x}, v{y+1}",
                f"v_fma_f32 v{d}, -v{x+1}, v{y+1}, v{d}", f"v_fma_f32 v{d+1}, v{x+1}, v{y}, v{d+1}"]
    def put(vec, pr):
        return [f"v_cvt_pk_bf16_f32 v{KS+vec}, v{pr}, {'-' if vec < 32 else ''}v{pr+1}"]
    for d, x, y in ((Z2, Z1, Z1), (Z512, Z256, Z256), (CB, CO, Z256), (Z4, Z2, Z2), (DB0, CO, Z512)):
        out += cm(d, x, y)
    sA = [('p', 32, A0)]; cur, oth = A0, A1
    for b in range(1, 16):
        sA += [('m', oth, cur, Z8), ('p', 32 + b, oth)]; cur, oth = oth, cur
    sB = [('p', 48, B0)]; cur, oth = B0, B1
    for b in range(17, 32):
        sB += [('m', oth, cur, Z8), ('p', 32 + b, oth)]; cur, oth = oth, cur
    sC = [('p', 0, CO)]; cur = CO
    for ee in range(1, 8):
        d = (C0, C1_)[ee % 2]; sC += [('m', d, cur, Z1), ('p', ee, d)]; cur = d
    sC += [('p', 8, CB), ('m', C0, CB, Z2), ('p', 9, C0), ('m', C1_, C0, Z2), ('p', 10, C1_), ('p', 12, C1_),
           ('m', C0, C1_, Z2), ('p', 13, C0), ('m', C1_, C0, Z2), ('p', 14, C1_)]
    sD = [('p', 16, DB0), ('m', D0, DB0, Z4), ('p', 17, D0), ('p', 20, D0), ('m', D1, D0, Z4), ('p', 21, D1),
          ('m', DB1, DB0, Z256), ('p', 18, DB1), ('m', D0, DB1, Z4), ('p', 19, D0), ('p', 22, D0), ('m', D1, D0, Z4), ('p', 23, D1)]
    prev, nxt = DB1, DB0
    for q in range(4):
        sD += [('m', nxt, prev, Z256), ('p', 24 + q, nxt), ('m', (D0, D1)[q % 2], nxt, Z8), ('p', 28 + q, (D0, D1)[q % 2])]
        prev, nxt = nxt, prev
    seqs = [sA, sB, sC, sD]; pos = [0]*4
    while any(pos[q] < len(seqs[q]) for q in range(4)):
        for q in range(4):
            if pos[q] < len(seqs[q]):
                st = seqs[q][pos[q]]; pos[q] += 1
                out += put(st[1], st[2]) if st[0] == 'p' else cm(st[1], st[2], st[3])
    return out

def kv_writes():
    pre = [f"s_mul_i32 s{S_T0}, s{S_CH}, {KV_CH}", f"s_lshl_b32 s{S_T1}, s{S_MH}, 8", f"s_add_u32 s{S_T0}, s{S_T0}, s{S_T1}",
           f"s_add_u32 s{S_T0}, s{S_T0}, {L_KV}", f"v_lshl_add_u32 v58, v{V_LANE}, 2, s{S_T0}"]
    return pre + [f"ds_write_b32 v58, v{KS+v} offset:{v*528}" for v in range(64) if v not in (11, 15)]

def wd_touch(a):
    a.e(f"s_mul_i32 s{S_T0}, s{S_WG}, 5504")
    a.e(f"s_lshl_b32 s{S_T1}, s{S_W}, 10")
    a.e(f"s_add_u32 s{S_T0}, s{S_T0}, s{S_T1}")
    a.e(f"v_lshl_add_u32 v52, v{V_LANE}, 4, s{S_T0}")
    mk_srd(a, SRD_WD, P_WD, 1376 * 1024)
    a.vm(f"buffer_load_dwordx4 v[136:139], v52, s[{SRD_WD}:{SRD_WD+3}], 0 offen", "pf")
    a.e(f"v_add_u32 v52, 4096, v52")
    a.vm(f"buffer_load_dwordx4 v[136:139], v52, s[{SRD_WD}:{SRD_WD+3}], 0 offen", "pf")

def y_clear(a):
    a.e(f"s_and_b32 s{S_T0}, s{S_WG}, 7")
    a.e(f"s_lshr_b32 s{S_T1}, s{S_WG}, 3")
    a.e(f"s_lshl_b32 s{S_T0}, s{S_T0}, 6")
    a.e(f"s_lshl_b32 s{S_T1}, s{S_T1}, 1")
    a.e(f"s_add_u32 s{S_T0}, s{S_T0}, s{S_T1}")
    a.e(f"s_lshl_b32 s{S_T0}, s{S_T0}, 7")
    a.e(f"s_add_u32 s{S_T0}, s{S_T0}, {WS_Y}")
    a.e(f"s_lshl_b32 s{S_T1}, s{S_W}, 6")
    a.e(f"v_add_u32 v52, s{S_T1}, v{V_LANE}")
    a.e(f"v_lshrrev_b32 v53, 4, v52")
    a.e(f"v_lshlrev_b32 v53, 16, v53")
    a.e(f"v_and_b32 v52, 15, v52")
    a.e(f"v_lshl_add_u32 v52, v52, 4, v53")
    a.e(f"v_add_u32 v52, s{S_T0}, v52")
    a.e(f"v_add_u32 v53, {16*65536}, v52")
    for q in range(4): a.e(f"v_mov_b32 v{128+q}, -1")
    a.vm(f"global_store_dwordx4 v52, v[128:131], s[{P_WS}:{P_WS+1}] sc1", "ycl")
    a.vm(f"global_store_dwordx4 v53, v[128:131], s[{P_WS}:{P_WS+1}] sc1", "ycl")

def xt_loads(a):
    a.e(f"s_and_b32 s{S_T0}, s{S_WG}, 7")
    a.e(f"s_lshr_b32 s{S_T1}, s{S_WG}, 3")
    a.e(f"s_lshl_b32 s{S_T0}, s{S_T0}, 6")
    a.e(f"s_lshl_b32 s{S_T1}, s{S_T1}, 1")
    a.e(f"s_add_u32 s{S_T0}, s{S_T0}, s{S_T1}")
    a.e(f"s_lshl_b32 s{S_T0}, s{S_T0}, 4")
    a.e(f"s_lshl_b32 s{S_T1}, s{S_W}, 19")
    a.e(f"s_add_u32 s{S_T0}, s{S_T0}, s{S_T1}")
    a.e(f"s_add_u32 s{S_T0}, s{S_T0}, {WS_XT}")
    a.e(f"v_lshrrev_b32 v52, 1, v{V_LANE}")
    a.e(f"v_lshlrev_b32 v52, 13, v52")
    a.e(f"v_and_b32 v53, 1, v{V_LANE}")
    a.e(f"v_lshl_add_u32 v52, v53, 4, v52")
    a.e(f"v_add_u32 v52, s{S_T0}, v52")
    a.vm(f"global_load_dwordx4 {vr(C_XT,4)}, v52, s[{P_WS}:{P_WS+1}] sc1", "xt")
    a.e(f"v_add_u32 v52, {32*8192}, v52")
    a.vm(f"global_load_dwordx4 {vr(C_XT+4,4)}, v52, s[{P_WS}:{P_WS+1}] sc1", "xt")
    a.e(f"s_add_u32 s{S_T0}, s{S_T0}, {64*8192}")
    a.e(f"v_lshl_add_u32 v53, v53, 4, s{S_T0}")
    a.vm(f"global_load_dword v160, v53, s[{P_WS}:{P_WS+1}] sc1", "xt")

def u_build(a):
    a.vm_wait("xt")
    O = 132
    a.e(f"v_add_u32 v48, 2, v{V_LANE}")
    a.e("v_and_b32 v48, 63, v48")
    a.e("v_lshlrev_b32 v48, 2, v48")
    a.e(f"ds_bpermute_b32 v49, v48, v{C_XT}")
    a.e(f"ds_bpermute_b32 v50, v48, v{C_XT+4}")
    for q in range(2):
        X = C_XT + 4*q
        for k in range(3):
            a.e(f"v_alignbit_b32 v{O+4*q+k}, v{X+k+1}, v{X+k}, 16")
    a.e(f"v_and_b32 v51, 1, v{V_LANE}")
    a.e(f"v_mul_u32_u24 v51, {UU_CH}, v51")
    a.e(f"v_lshrrev_b32 v48, 1, v{V_LANE}")
    a.e("v_lshl_add_u32 v51, v48, 4, v51")
    a.e(f"s_lshl_b32 s{S_T0}, s{S_W}, 10")
    a.e(f"s_add_u32 s{S_T0}, s{S_T0}, {L_UU + 32}")
    a.e(f"v_cmp_gt_u32 vcc, 62, v{V_LANE}")
    a.e(f"v_add_u32 v51, s{S_T0}, v51")
    a.e("s_waitcnt lgkmcnt(0)")
    a.e("v_cndmask_b32 v49, v50, v49, vcc")
    a.e("v_cndmask_b32 v50, v160, v50, vcc")
    a.e(f"v_alignbit_b32 v{O+3}, v49, v{C_XT+3}, 16")
    a.e(f"v_alignbit_b32 v{O+7}, v50, v{C_XT+7}, 16")
    a.e(f"ds_write_b128 v51, {vr(C_XT,4)}")
    a.e(f"ds_write_b128 v51, {vr(C_XT+4,4)} offset:512")
    a.e(f"ds_write_b128 v51, {vr(O,4)} offset:4160")
    a.e(f"ds_write_b128 v51, {vr(O+4,4)} offset:{4160+512}")
    lab = a.label("nopad")
    a.e(f"s_cmp_lg_u32 s{S_W}, 0")
    a.e(f"s_cbranch_scc1 {lab}")
    a.e(f"v_lshlrev_b32 v48, 16, v{C_XT}")
    a.e(f"v_lshrrev_b32 v49, 3, v{V_LANE}")
    a.e(f"v_mul_u32_u24 v49, {UU_CH}, v49")
    a.e(f"v_and_b32 v50, 7, v{V_LANE}")
    a.e("v_lshl_add_u32 v49, v50, 2, v49")
    a.e(f"v_add_u32 v49, {L_UU}, v49")
    a.e("v_mov_b32 v50, 0")
    a.e(f"s_mov_b64 s[{S_EXEC}:{S_EXEC+1}], exec")
    a.e("s_mov_b64 exec, 0xffff")
    a.e("ds_write_b32 v49, v50")
    a.e("s_mov_b64 exec, 0x7f7f")
    a.e("ds_write_b32 v49, v50 offset:4160")
    a.e("s_mov_b64 exec, 3")
    a.e(f"ds_write_b32 v51, v48 offset:{4160 - 4}")
    a.e(f"s_mov_b64 exec, s[{S_EXEC}:{S_EXEC+1}]")
    a.e(f"{lab}:")

CV_A, CV_B, CV_ACC = [16, 80], [48, 112], 144
CVA, CVB, V_DSK = 2, 10, 11
def conv_addr(a):
    t = 12
    a.e(f"v_and_b32 v{t}, 15, v{V_LANE}")
    a.e(f"v_lshrrev_b32 v{t+1}, 4, v{V_LANE}")
    a.e(f"v_and_b32 v{t+2}, 1, v{t+1}")
    a.e(f"v_lshrrev_b32 v{t+1}, 1, v{t+1}")
    a.e(f"v_lshlrev_b32 v{t+3}, 5, v{t+1}")
    a.e(f"v_lshlrev_b32 v{t+2}, 4, v{t+2}")
    a.e(f"v_sub_u32 v{t+3}, v{t+3}, v{t+2}")
    a.e(f"s_lshl_b32 s{S_T2}, s{S_MH}, 6")
    a.e(f"s_mul_i32 s{S_T0}, s{S_CH}, {KR_CH}")
    a.e(f"s_add_u32 s{S_T0}, s{S_T0}, {L_KR + 496}")
    a.e(f"s_add_u32 s{S_T0}, s{S_T0}, s{S_T2}")
    a.e(f"v_lshlrev_b32 v{t+2}, 5, v{t}")
    a.e(f"v_sub_u32 v{t+2}, v{t+3}, v{t+2}")
    a.e(f"v_add_u32 v{CVB}, s{S_T0}, v{t+2}")
    a.e(f"s_mul_i32 s{S_T0}, s{S_CH}, {UU_CH}")
    a.e(f"s_add_u32 s{S_T0}, s{S_T0}, {L_UU}")
    a.e(f"s_add_u32 s{S_T0}, s{S_T0}, s{S_T2}")
    a.e(f"v_and_b32 v{t+2}, 1, v{t}")
    a.e(f"v_cmp_eq_u32 vcc, 1, v{t+2}")
    a.e(f"v_mov_b32 v{t+2}, {4160+16}")
    a.e(f"v_lshl_add_u32 v{t+3}, v{t}, 1, v{t+3}")
    a.e(f"v_mov_b32 v{t+1}, 18")
    a.e(f"v_cndmask_b32 v{t+2}, v{t+2}, v{t+1}, vcc")
    a.e(f"v_add_u32 v{t+3}, v{t+3}, v{t+2}")
    a.e(f"v_add_u32 v{CVA}, s{S_T0}, v{t+3}")
    for al in range(1, 8):
        a.e(f"v_add_u32 v{CVA+al}, {512*al}, v{CVA}")

def k_part(a):
    FR, KD = 16, 144
    a.e(f"v_and_b32 v12, 31, v{V_LANE}")
    a.e("v_mul_u32_u24 v13, 528, v12")
    a.e(f"v_lshrrev_b32 v14, 5, v{V_LANE}")
    a.e("v_lshl_add_u32 v13, v14, 4, v13")
    a.e(f"s_mul_i32 s{S_T0}, s{S_CH}, {KV_CH}")
    a.e(f"s_add_u32 s{S_T0}, s{S_T0}, {L_KV}")
    a.e(f"v_add_u32 v13, s{S_T0}, v13")
    for k in range(16):
        a.e(f"ds_read_b128 {vr(FR+8*k,4)}, v13 offset:{k*32}")
        a.e(f"ds_read_b128 {vr(FR+8*k+4,4)}, v13 offset:{32*528 + k*32}")
    a.e(f"s_mul_i32 s{S_T0}, s{S_CH}, {KR_CH}")
    a.e(f"s_add_u32 s{S_T0}, s{S_T0}, {L_KR + 504}")
    a.e("v_lshlrev_b32 v12, 4, v12")
    a.e("v_lshl_add_u32 v12, v14, 3, v12")
    a.e(f"v_sub_u32 v12, s{S_T0}, v12")
    a.e(f"s_add_u32 s{S_T0}, s{S_T0}, {4096 - 504}")
    a.e(f"v_lshl_add_u32 v15, v{V_LANE}, 4, s{S_T0}")
    a.e("s_waitcnt lgkmcnt(0)")
    for k in range(16):
        a.e(f"v_mfma_f32_32x32x16_bf16 {vr(KD,16)}, {vr(FR+8*k,4)}, {vr(FR+8*k+4,4)}, {'0' if k == 0 else vr(KD,16)}")
    lab1, lab2 = a.label("ex1"), a.label("ex2")
    a.e(f"v_cmp_le_u32 vcc, 32, v{V_LANE}")
    a.e(f"v_and_b32 v16, 1, v{V_LANE}")
    a.e(f"v_cmp_eq_u32 s[{S_TMP}:{S_TMP+1}], 1, v16")
    for q in range(4): a.e(f"v_mov_b32 v{24+q}, 0")
    a.e("s_nop 4")
    a.e(f"s_cmp_eq_u32 s{S_MH}, 0")
    a.e(f"s_cbranch_scc0 {lab1}")
    D = KD
    a.e(f"v_cvt_pk_bf16_f32 v20, v{D+3}, v{D+2}")
    a.e(f"v_cvt_pk_bf16_f32 v21, v{D+1}, v{D}")
    a.e(f"v_cvt_pk_bf16_f32 v22, v{D+6}, v{D+5}")
    a.e(f"v_cvt_pk_bf16_f32 v23, v{D+4}, v{D+4}")
    a.e("ds_write_b64 v12, v[20:21] offset:3584")
    a.e("ds_write_b64 v12, v[22:23] offset:3072")
    a.e(f"s_mov_b64 s[{S_EXEC}:{S_EXEC+1}], exec")
    a.e("s_mov_b64 exec, 0x3fffffff")
    a.e("ds_write_b128 v15, v[24:27]")
    a.e(f"s_mov_b64 exec, s[{S_EXEC}:{S_EXEC+1}]")
    a.e(f"s_branch {lab2}")
    a.e(f"{lab1}:")
    D = KD + 8
    for q in range(4):
        a.e(f"v_mov_b32 v{28+2*q}, v{D+4+q}")
        a.e(f"v_mov_b32 v{29+2*q}, v{D+4+q}")
    for q in range(2):
        A_, B_ = D + 2*q, D + 2*q + 1
        a.e(f"v_cndmask_b32 v24, v{A_}, v{B_}, vcc")
        a.e(f"v_cvt_pk_bf16_f32 v{20+2*q+0}, v{B_}, v24")
        a.e(f"v_cvt_pk_bf16_f32 v{20+2*q+1}, v{A_}, v{A_}")
    for q in range(4):
        a.e(f"v_permlane32_swap_b32 v{28+2*q}, v{29+2*q}")
    a.e("ds_write_b64 v12, v[20:21] offset:2560")
    a.e("ds_write_b64 v12, v[22:23] offset:2048")
    for q in range(4):
        a.e(f"v_cndmask_b32 v{28+2*q}, v{28+2*q}, v{D+4+q}, s[{S_TMP}:{S_TMP+1}]")
    for q in range(4):
        a.e(f"v_cvt_pk_bf16_f32 v{36+2*q}, v{D+4+q}, v{D+4+q}")
        a.e(f"v_cvt_pk_bf16_f32 v{37+2*q}, v{D+4+q}, v{28+2*q}")
    for q in range(4):
        a.e(f"ds_write_b64 v12, {vr(36+2*q,2)} offset:{1536 - 512*q}")
    a.e(f"{lab2}:")

def conv_main(a, late, dmas):
    def reads(st, q):
        r = [f"ds_read_b128 {vr(CV_B[st]+4*al,4)}, v{CVB} offset:{512*(7-al) + 128*q}" for al in range(8)]
        for al in range(8):
            r.append(f"ds_read2_b32 {vr(CV_A[st]+4*al,2)}, v{CVA+al} offset0:{32*q} offset1:{32*q+1}")
            r.append(f"ds_read2_b32 {vr(CV_A[st]+4*al+2,2)}, v{CVA+al} offset0:{32*q+2} offset1:{32*q+3}")
        return r
    for x in reads(0, 0): a.e(x)
    st = 0
    for q in range(4):
        a.e("s_waitcnt lgkmcnt(0)" if q else "s_waitcnt lgkmcnt(14)")
        mf = []
        for al in range(8):
            for be in range(8 - al):
                I = al + be
                mf.append(f"v_mfma_f32_16x16x32_bf16 {vr(CV_ACC+4*I,4)}, {vr(CV_A[st]+4*al,4)}, {vr(CV_B[st]+4*be,4)}, {'0' if (q == 0 and al == 0) else vr(CV_ACC+4*I,4)}")
        slots = {i: [] for i in range(36)}
        if q == 0: slots[7].append("s_waitcnt lgkmcnt(0)")
        if q < 3:
            base = 8 if q == 0 else 0
            for k, x in enumerate(reads(st ^ 1, q + 1)): slots[base + k].append(x)
        for sl, it in late.get(q, []): slots[sl].append(it)
        dl = dmas.get(q, [])
        for k, g in enumerate(dl): place(slots, 1 + (k * 33) // len(dl), g)
        stamp(a, f"cv{q}")
        sched(a, mf, slots)
        st ^= 1

def conv_finish(a):
    a.e(f"s_lshl_b32 s{S_T0}, s{S_W}, 12")
    a.e(f"s_add_u32 s{S_T0}, s{S_T0}, {L_CX}")
    a.e(f"v_lshl_add_u32 v2, v{V_LANE}, 4, s{S_T0}")
    a.e(f"s_xor_b32 s{S_T1}, s{S_W}, 1")
    a.e(f"s_lshl_b32 s{S_T1}, s{S_T1}, 12")
    a.e(f"s_add_u32 s{S_T1}, s{S_T1}, {L_CX}")
    a.e(f"v_lshl_add_u32 v3, v{V_LANE}, 4, s{S_T1}")
    a.e(f"s_mul_i32 s{S_T0}, s{S_CH}, {UU_CH}")
    a.e(f"s_add_u32 s{S_T0}, s{S_T0}, {L_UU + 32}")
    a.e(f"s_lshl_b32 s{S_T1}, s{S_MH}, 11")
    a.e(f"s_add_u32 s{S_T0}, s{S_T0}, s{S_T1}")
    a.e(f"v_and_b32 v4, 15, v{V_LANE}")
    a.e(f"v_lshrrev_b32 v5, 4, v{V_LANE}")
    a.e(f"v_lshlrev_b32 v6, 5, v4")
    a.e(f"v_lshl_add_u32 v6, v5, 3, v6")
    a.e(f"v_add_u32 v6, s{S_T0}, v6")
    lab1, lab2 = a.label("cx1"), a.label("cx2")
    a.e(f"s_cmp_eq_u32 s{S_MH}, 0")
    a.e(f"s_cbranch_scc1 {lab1}")
    for k in range(4):
        a.e(f"ds_write_b128 v2, {vr(CV_ACC+4*k,4)} offset:{1024*k}")
    for q in range(8):
        a.e(f"v_pk_mul_f32 {vr(CV_ACC+2*q,2)}, {vr(CV_ACC+16+2*q,2)}, 1.0 op_sel_hi:[1,0]")
    a.e(f"s_branch {lab2}")
    a.e(f"{lab1}:")
    for k in range(4):
        a.e(f"ds_write_b128 v2, {vr(CV_ACC+16+4*k,4)} offset:{1024*k}")
    a.e(f"{lab2}:")
    for k in range(4):
        a.e(f"ds_read_b64 {vr(16+2*k,2)}, v6 offset:{512*k}")
    a.e(f"s_lshl_b32 s{S_T0}, s{S_MH}, 20")
    a.e(f"s_lshl_b32 s{S_T1}, s{S_D}, 7")
    a.e(f"s_add_u32 s{S_T0}, s{S_T0}, s{S_T1}")
    a.e(f"s_add_u32 s{S_T0}, s{S_T0}, {WS_Y}")
    a.e(f"v_lshrrev_b32 v7, 2, v4")
    a.e(f"v_lshlrev_b32 v7, 16, v7")
    a.e(f"v_and_b32 v8, 3, v4")
    a.e(f"v_lshl_add_u32 v7, v8, 5, v7")
    a.e(f"v_lshl_add_u32 v7, v5, 3, v7")
    a.e(f"v_add_u32 v7, s{S_T0}, v7")
    a.e("s_waitcnt lgkmcnt(0)")
    a.bar("cx")
    for k in range(4):
        a.e(f"ds_read_b128 {vr(64+4*k,4)}, v3 offset:{1024*k}")
    U = 32
    for k in range(4):
        a.e(f"v_lshlrev_b32 v{U+4*k}, 16, v{16+2*k}")
        a.e(f"v_and_b32 v{U+4*k+1}, 0xffff0000, v{16+2*k}")
        a.e(f"v_lshlrev_b32 v{U+4*k+2}, 16, v{17+2*k}")
        a.e(f"v_and_b32 v{U+4*k+3}, 0xffff0000, v{17+2*k}")
    a.e(f"v_mov_b32 v10, v{V_DSK}")
    for k in range(8):
        a.e(f"v_pk_fma_f32 {vr(CV_ACC+2*k,2)}, {vr(U+2*k,2)}, v[10:11], {vr(CV_ACC+2*k,2)}")
    a.vm_wait("wd3", "wd6")
    a.e("s_waitcnt lgkmcnt(0)")
    a.bar("cd")
    for k in range(8):
        a.e(f"v_pk_add_f32 {vr(CV_ACC+2*k,2)}, {vr(CV_ACC+2*k,2)}, {vr(64+2*k,2)}")
    for k in range(8):
        a.e(f"v_cvt_pk_bf16_f32 v{16+k}, v{CV_ACC+2*k}, v{CV_ACC+2*k+1}")
    for k in range(4):
        a.vm(f"global_store_dwordx2 v7, {vr(16+2*k,2)}, s[{P_WS}:{P_WS+1}] sc1", "pubY")
        if k < 3: a.e(f"v_add_u32 v7, {4*65536}, v7")


def role_c(a):
    a.e("L_role_c:")
    c_setup(a)
    a_read_addr(a, C_AADDR, 12)
    a.e("s_waitcnt lgkmcnt(0)")
    a.e(f"s_mov_b32 s{S_ROLE}, 1")
    stamp(a, 0, real=True); stamp(a, 1)
    mk_srd(a, SRD_X, P_X, 2048 * 1024)
    mk_srd(a, SRD_WG, P_WG, 512 * 2752)
    mk_srd(a, SRD_WU, P_WU, 512 * 2752)
    epoch_load(a, 13, 54)
    for g in stage_dma(0): emit(a, g)
    d1 = stage_dma(1)
    n1 = OPT.get("n1", 4)
    for g in d1[:n1]: emit(a, g)
    a.vm_wait("st0")
    a.bar("b0")
    stamp(a, "b0")
    for g in d1[n1:]: emit(a, g)
    epoch_finish(a, 54)
    if not OPT.get("csg", 0): cs_block(a)
    for g in stage_dma(2): emit(a, g)
    kgen_loads(a)
    prog = [lambda a: a.vm_wait("kp")] + kgen_prog()
    nst = 4
    per = (len(prog) + nst - 1) // nst
    pos = 0
    for stage in range(7):
        a.e("s_waitcnt lgkmcnt(0)")
        a.vm_wait(f"st{stage+1}")
        a.bar(f"s{stage}")
        stamp(a, f"cs{stage}")
        if OPT.get("cprio_stage") == stage: a.e(f"s_setprio {OPT.get('cprio', 2)}")
        dm = stage_dma(stage + 3) if stage + 3 < 8 else []
        if stage == OPT.get("touchstage", 2) and OPT.get("wdtouch", 1):
            wd_touch(a)
        if stage == OPT.get("yclrstage", 3):
            y_clear(a)
        work = []
        if 1 <= stage <= nst:
            work = prog[pos:pos + per]; pos += per
        if stage == 5 and OPT.get("kvearly", 1):
            work = kv_writes()[:OPT.get("kvsplit", 35)]
        if stage == 6:
            work = (kv_writes()[OPT.get("kvsplit", 35):] if OPT.get("kvearly", 1) else [])
        if stage == OPT.get("cpoll", 5):
            if OPT.get("pollfirst", 1): work = [lambda a: ln_poll_issue(a, 59, 132)] + work
            else: work = work + [lambda a: ln_poll_issue(a, 59, 132)]
        if stage == OPT.get("cchk", 6):
            work = [lambda a: ln_poll_check(a, 59, 132), xt_loads] + work
        step = max(1, len(work) // max(1, len(dm))) if dm else len(work)
        while dm or work:
            if dm: emit(a, dm.pop(0))
            for _ in range(step if dm else len(work)):
                if work: emit(a, work.pop(0))
    assert pos >= len(prog)
    a.e(f"v_mov_b32 v{V_DSK}, v{C_P+7}")
    a.e("s_waitcnt lgkmcnt(0)")
    a.bar("rf")
    stamp(a, "crf")
    if OPT.get("cprio2") is not None: a.e(f"s_setprio {OPT['cprio2']}")
    if OPT.get("cchk", 6) > 6:
        ln_poll_check(a, 59, 132)
        xt_loads(a)
    if not OPT.get("kvearly", 1):
        for x in kv_writes(): a.e(x)
        a.e("s_waitcnt lgkmcnt(0)")
        a.bar("kv")
    stamp(a, "ckv")
    wd_setup(a, 52, 161)
    for g in wd_groups(1, 161) + wd_groups(2, 161): emit(a, g)
    k_part(a)
    stamp(a, "ckp")
    u_build(a)
    stamp(a, "cub")
    conv_addr(a)
    a.e("v_mov_b32 v12, v161")
    a.vm_wait("wd1", "wd2", "ycl")
    a.e("s_waitcnt lgkmcnt(0)")
    a.bar("k")
    stamp(a, "ck")
    conv_main(a, {OPT.get("pbar", 2): [(OPT.get("pslot", 20), lambda a: a.bar("p"))]},
              {0: wd_groups(3, 12) + wd_groups(6, 12)[:2], 1: wd_groups(6, 12)[2:]})
    stamp(a, "convm")
    conv_finish(a)
    stamp(a, "conv")
    a.e("s_waitcnt vmcnt(0)")
    stamp(a, 9, real=True)
    prof_store(a)
    a.e("s_endpgm")


def main():
    global PROF
    PROF = "prof" in sys.argv
    for x in sys.argv[1:]:
        if "=" in x:
            k, v = x.split("=")
            if k == "stamps": STAMPS[:] = v.split(",")
            else: OPT[k] = int(v)
    shared = [0]
    a0 = A2(shared); entry(a0)
    g = A2(shared); g.vmq = list(a0.vmq); role_g(g)
    c = A2(shared); c.vmq = list(a0.vmq); role_c(c)
    gb = [b for b in g.bars if b not in ("fin", "rd")]
    assert gb == c.bars, (gb, c.bars)
    out = [HDR, f"; @launch grid=(256,1,1) block=(512,1,1) lds={LDS_BYTES}",
           '.amdgcn_target "amdgcn-amd-amdhsa--gfx950"', '.text', a0.text(), g.text(), c.text(),
           "L_end:", "  s_endpgm", "  .fill 8448, 4, 0xbf800000", '.section .rodata,"a"', kd(NAME, 176, 80)]
    print('\n'.join(out))

if __name__ == "__main__":
    main()
```

```python
import sys, math
from asmlib import *

NAME = "parallel_sum__ssm_conv_s4__geglu_ffn__prompt_kernel"
OPT = {}
PROF = False
STAMPS = []
HDR = open('parallel_sum__ssm_conv_s4__geglu_ffn__prompt.s.ref').read().split('; Override')[0].rstrip()

WS_FLAG_LN, WS_FLAG_H, WS_FLAG_Y = 4096, 8192, 12288
WS_STATS, WS_CS = 65536, 131072
WS_XT, WS_Y, WS_H = 1 << 20, 4 << 20, 8 << 20
WS_DUMMY, WS_PROF = 15 << 20, 16 << 20
SPIN_MAX = 1 << 17

S_WG, S_W, S_I, S_J, S_TW, S_FW, S_U0, S_KC = 2, 3, 4, 5, 6, 7, 8, 9
S_T0, S_T1, S_T2, S_SPIN, S_TAG, S_WDL = 10, 11, 12, 13, 14, 15
P_X, P_ARE, P_AIM, P_BRE, P_BIM, P_CRE, P_CIM, P_LDT = 16, 18, 20, 22, 24, 26, 28, 30
P_DSK, P_BX, P_WG, P_WU, P_WD, P_OUT, P_DBG, P_WS = 32, 34, 36, 38, 40, 42, 44, 46
S_EP, S_ROLE = 34, 35
SRD_X, SRD_WG, SRD_WU, SRD_WD = 48, 52, 56, 60
S_XW, S_WW, S_XO, S_WO, S_LX, S_LW = 64, 65, 66, 67, 68, 69
S_EXEC = 70
S_NU, S_CSH = 72, 73
S_WDS = 73
S_TMP = 74
S_D, S_CH, S_MH, S_TH, S_NT, S_WDO = 76, 77, 78, 79, 80, 81
S_PROF = 82

LDS_BYTES = 163840
SLOT = 41216
L_X, L_G, L_U = 0, 16384, 28704
L_LN = 3 * SLOT
KV_CH, KR_CH, UU_CH = 64 * 528, 4608, 8320
L_KV = 2 * SLOT
L_KR = 150016
L_UU = 24576
L_CX = 131584
WD = {1: (0, 6144, 0, 3), 2: (SLOT, 10240, 3, 5),
      4: (0, 6144, 8, 3), 5: (SLOT, 10240, 11, 5),
      3: (115200, 4096, 16, 2),
      6: (2 * SLOT, 8192, 18, 4)}
def wd_areg(q): return 8 * q if q < 8 else 64 + 8 * (q - 16)
def wd_in_agpr(q): return q < 8 or q in (16, 17)
RED_UNIT = [4096 * u for u in range(12)]
L_YB = 49152
L_XB = 61440

V_LANE = 1


def stamp(a, idx, real=False):
    if PROF:
        if isinstance(idx, str):
            if idx not in STAMPS: return
            idx = 2 + STAMPS.index(idx)
        a.e(f"{'s_memrealtime' if real else 's_memtime'} s[{S_PROF+2*idx}:{S_PROF+2*idx+1}]")

def prof_store(a):
    if not PROF: return
    a.e("s_waitcnt lgkmcnt(0)")
    if OPT.get("dbgwg") is not None:
        lab = a.label("nodbg")
        a.e(f"s_lshl_b32 s{S_T0}, s{S_WG}, 3")
        a.e(f"s_lshl_b32 s{S_T1}, s{S_ROLE}, 2")
        a.e(f"s_add_u32 s{S_T0}, s{S_T0}, s{S_T1}")
        a.e(f"s_add_u32 s{S_T0}, s{S_T0}, s{S_W}")
        a.e(f"s_cmp_lg_u32 s{S_T0}, {OPT['dbgwg']*8 + OPT.get('dbgw', 0)}")
        a.e(f"s_cbranch_scc1 {lab}")
        a.e(f"s_sub_u32 s{S_PROF+18}, s{S_PROF+18}, s{S_PROF}")
        for q in range(2, 9):
            a.e(f"s_sub_u32 s{S_PROF+2*q}, s{S_PROF+2*q}, s{S_PROF+2}")
        for q in range(10):
            a.e(f"v_mov_b32 v{4+q}, s{S_PROF+2*q}")
        a.e("v_mov_b32 v2, 0")
        a.e("s_mov_b64 exec, 1")
        a.e(f"global_store_dwordx4 v2, v[4:7], s[{P_DBG}:{P_DBG+1}]")
        a.e(f"global_store_dwordx4 v2, v[8:11], s[{P_DBG}:{P_DBG+1}] offset:16")
        a.e(f"global_store_dwordx2 v2, v[12:13], s[{P_DBG}:{P_DBG+1}] offset:32")
        a.e(f"{lab}:")
        return
    for q in range(10):
        a.e(f"v_mov_b32 v{4+q}, s{S_PROF+2*q}")
    a.e(f"s_lshl_b32 s{S_T0}, s{S_ROLE}, 2")
    a.e(f"s_add_u32 s{S_T0}, s{S_T0}, s{S_W}")
    a.e(f"s_lshl_b32 s{S_T1}, s{S_WG}, 3")
    a.e(f"s_add_u32 s{S_T0}, s{S_T0}, s{S_T1}")
    a.e(f"s_lshl_b32 s{S_T0}, s{S_T0}, 6")
    a.e(f"s_add_u32 s{S_T0}, s{S_T0}, {WS_PROF}")
    a.e(f"v_mov_b32 v2, s{S_T0}")
    a.e("s_mov_b64 exec, 1")
    a.e(f"global_store_dwordx4 v2, v[4:7], s[{P_WS}:{P_WS+1}]")
    a.e(f"global_store_dwordx4 v2, v[8:11], s[{P_WS}:{P_WS+1}] offset:16")
    a.e(f"global_store_dwordx2 v2, v[12:13], s[{P_WS}:{P_WS+1}] offset:32")


class A2(Asm):
    def __init__(self, shared):
        super().__init__()
        self.bars = []
        self.shared = shared
    def label(self, base):
        self.shared[0] += 1
        return f"L_{base}_{self.shared[0]}"
    def bar(self, name):
        self.e("s_barrier")
        self.bars.append(name)


class Rec:
    def __init__(self, a):
        self.ops = []; self.a = a
    def e(self, s):
        for l in s.split('\n'):
            if l.strip(): self.ops.append(('e', l.strip()))
    def vm(self, s, tag): self.ops.append(('vm', s, tag))
    def vm_wait(self, *tags): self.ops.append(('wait', tags))
    def label(self, b): return self.a.label(b)
    def bar(self, name): self.ops.append(('bar', name))

def replay(a, ops, fillers, every, start=0):
    fill = list(fillers); n = 0
    for o in ops:
        if o[0] == 'e': a.e(o[1])
        elif o[0] == 'vm': a.vm(o[1], o[2])
        elif o[0] == 'wait': a.vm_wait(*o[1])
        elif o[0] == 'bar': a.bar(o[1])
        n += 1
        if fill and n >= start and (n - start) % every == 0:
            emit(a, fill.pop(0))
    for g in fill: emit(a, g)

def emit(a, g):
    if callable(g): g(a)
    elif isinstance(g, tuple): a.vm(g[0], g[1])
    elif isinstance(g, list):
        for t in g: emit(a, t)
    else: a.e(g)

class Dma(list):
    def __init__(self, pre, m0, ld, post=()):
        super().__init__(list(pre) + [m0, "s_nop 0", ld] + list(post))
        self.head = list(pre) + [m0]
        self.tail = [ld] + list(post)

def place(slots, p, g):
    if isinstance(g, Dma) and p >= 1:
        slots[p - 1].append(g.head); slots[p].insert(0, g.tail)
    else:
        slots[p].append(g)

def sched(a, mf, slots):
    for i, m in enumerate(mf):
        a.e(m)
        for it in slots.get(i, []): emit(a, it)

def mk_srd(a, srd, ptr, nbytes):
    a.e(f"s_mov_b32 s{srd}, s{ptr}")
    a.e(f"s_and_b32 s{srd+1}, s{ptr+1}, 0xffff")
    a.e(f"s_mov_b32 s{srd+2}, {nbytes}")
    a.e(f"s_mov_b32 s{srd+3}, 0x20000")

def dpp_reduce(a, regs):
    steps = ["quad_perm:[1,0,3,2] row_mask:0xf bank_mask:0xf", "quad_perm:[2,3,0,1] row_mask:0xf bank_mask:0xf",
             "row_half_mirror row_mask:0xf bank_mask:0xf", "row_mirror row_mask:0xf bank_mask:0xf",
             "row_bcast:15 row_mask:0xa bank_mask:0xf", "row_bcast:31 row_mask:0xc bank_mask:0xf"]
    assert len(regs) >= 3
    for st in steps:
        for r in regs:
            a.e(f"v_add_f32_dpp v{r}, v{r}, v{r} {st}")
    a.e("s_nop 1")


def entry(a):
    a.e(f".globl {NAME}\n.p2align 8\n.type {NAME},@function\n{NAME}:")
    a.e(f"s_cmp_ge_u32 s{S_WG}, 256")
    a.e(f"s_cbranch_scc1 L_end")
    a.e("s_load_dwordx16 s[16:31], s[0:1], 0")
    a.e("s_load_dwordx16 s[32:47], s[0:1], 64")
    a.e("s_getpc_b64 s[74:75]")
    a.e(f"s_lshr_b32 s{S_T1}, s{S_WG}, 3")
    a.e(f"s_and_b32 s{S_T2}, s{S_T1}, 15")
    a.e(f"s_lshl_b32 s{S_T2}, s{S_T2}, 11")
    a.e(f"v_lshl_add_u32 v2, v0, 2, s{S_T2}")
    a.vm(f"global_load_dword v175, v2, s[74:75]", "pf")
    a.e(f"v_and_b32 v{V_LANE}, 63, v0")
    a.e(f"v_lshrrev_b32 v3, 6, v0")
    a.e(f"s_and_b32 s{S_T0}, s{S_WG}, 7")
    a.e(f"v_readfirstlane_b32 s{S_W}, v3")
    a.e(f"s_lshr_b32 s{S_I}, s{S_T0}, 1")
    a.e(f"s_lshl_b32 s{S_I}, s{S_I}, 2")
    a.e(f"s_lshr_b32 s{S_T2}, s{S_T1}, 3")
    a.e(f"s_add_u32 s{S_I}, s{S_I}, s{S_T2}")
    a.e(f"s_and_b32 s{S_J}, s{S_T0}, 1")
    a.e(f"s_lshl_b32 s{S_J}, s{S_J}, 3")
    a.e(f"s_and_b32 s{S_T2}, s{S_T1}, 7")
    a.e(f"s_add_u32 s{S_J}, s{S_J}, s{S_T2}")
    a.e(f"s_lshr_b32 s{S_TMP}, s{S_W}, 2")
    a.e(f"s_and_b32 s{S_W}, s{S_W}, 3")
    a.e(f"s_lshr_b32 s{S_TW}, s{S_W}, 1")
    a.e(f"s_and_b32 s{S_FW}, s{S_W}, 1")
    a.e(f"s_mul_i32 s{S_U0}, s{S_J}, 3")
    a.e(f"s_lshl_b32 s{S_T2}, s{S_J}, 1")
    a.e(f"s_add_u32 s{S_T2}, s{S_T2}, 11")
    a.e(f"s_min_u32 s{S_U0}, s{S_U0}, s{S_T2}")
    a.e(f"s_cmp_lt_u32 s{S_J}, 11")
    a.e(f"s_cselect_b32 s{S_NU}, 6, 4")
    a.e(f"s_lshr_b32 s{S_CSH}, s{S_I}, 3")
    a.e(f"s_lshl_b32 s{S_D}, s{S_T0}, 6")
    a.e(f"s_lshl_b32 s{S_T1}, s{S_T1}, 1")
    a.e(f"s_add_u32 s{S_D}, s{S_D}, s{S_T1}")
    a.e(f"s_add_u32 s{S_D}, s{S_D}, s{S_TW}")
    a.e(f"s_mov_b32 s{S_CH}, s{S_TW}")
    a.e(f"s_mov_b32 s{S_MH}, s{S_FW}")
    a.e(f"s_lshr_b32 s{S_TH}, s{S_J}, 3")
    if OPT.get("ntoff"):
        a.e(f"s_add_u32 s{S_NT}, s{S_J}, {OPT['ntoff']}")
        a.e(f"s_and_b32 s{S_NT}, s{S_NT}, 7")
    else:
        a.e(f"s_and_b32 s{S_NT}, s{S_J}, 7")
    a.e(f"s_cmp_lg_u32 s{S_TMP}, 0")
    a.e(f"s_cbranch_scc1 L_role_c")

def epoch_load(a, vtmp, vdst):
    a.e(f"v_mov_b32 v{vtmp}, 0")
    a.vm(f"global_load_dword v{vdst}, v{vtmp}, s[{P_WS}:{P_WS+1}] sc1", "ep")

def epoch_finish(a, vdst):
    a.vm_wait("ep")
    a.e("s_nop 0")
    a.e(f"v_readfirstlane_b32 s{S_EP}, v{vdst}")
    a.e("s_nop 3")
    a.e(f"s_mul_i32 s{S_TAG}, s{S_EP}, 0x9e3779b1")
    a.e(f"s_add_u32 s{S_TAG}, s{S_TAG}, 0x3c6ef373")

def flag_store(a, region, idx_code, va, vb):
    lab = a.label("nofl")
    a.e(f"s_cmp_lg_u32 s{S_W}, 0")
    a.e(f"s_cbranch_scc1 {lab}")
    idx_code(a)
    a.e(f"s_lshl_b32 s{S_T0}, s{S_T0}, 2")
    a.e(f"s_add_u32 s{S_T0}, s{S_T0}, {region}")
    a.e(f"v_mov_b32 v{va}, s{S_T0}")
    a.e(f"v_mov_b32 v{vb}, s{S_TAG}")
    a.e(f"s_mov_b64 s[{S_EXEC}:{S_EXEC+1}], exec")
    a.e("s_mov_b64 exec, 1")
    a.e(f"global_store_dword v{va}, v{vb}, s[{P_WS}:{P_WS+1}] sc1")
    a.e(f"s_mov_b64 exec, s[{S_EXEC}:{S_EXEC+1}]")
    a.e(f"{lab}:")

def idx_ln(a): a.e(f"s_mov_b32 s{S_T0}, s{S_WG}")
def idx_h(a):
    a.e(f"s_lshl_b32 s{S_T0}, s{S_I}, 4")
    a.e(f"s_add_u32 s{S_T0}, s{S_T0}, s{S_J}")
def idx_y(a):
    a.e(f"s_and_b32 s{S_T0}, s{S_WG}, 7")
    a.e(f"s_lshl_b32 s{S_T0}, s{S_T0}, 5")
    a.e(f"s_lshr_b32 s{S_T1}, s{S_WG}, 3")
    a.e(f"s_add_u32 s{S_T0}, s{S_T0}, s{S_T1}")

def spin_tail(a, top, ok, reloads, sleep=None):
    a.e(f"s_cmp_eq_u64 vcc, 0")
    a.e(f"s_cbranch_scc1 {ok}")
    a.e(f"s_add_u32 s{S_SPIN}, s{S_SPIN}, 1")
    a.e(f"s_cmp_gt_u32 s{S_SPIN}, {SPIN_MAX}")
    a.e(f"s_cbranch_scc1 {ok}")
    a.e(f"s_sleep {sleep if sleep is not None else OPT.get('sleep', 8)}")
    for r in reloads: a.e(r)
    a.e("s_waitcnt vmcnt(0)")
    a.e(f"s_branch {top}")
    a.e(f"{ok}:")

def ln_poll_issue(a, vaddr, vdst):
    a.e(f"v_lshlrev_b32 v{vaddr}, 4, v{V_LANE}")
    a.e(f"v_add_u32 v{vaddr}, {WS_FLAG_LN}, v{vaddr}")
    a.vm(f"global_load_dwordx4 {vr(vdst,4)}, v{vaddr}, s[{P_WS}:{P_WS+1}] sc1", "pl")

def ln_poll_check(a, vaddr, vdst):
    top, ok = a.label("poll"), a.label("pollok")
    a.vm_wait("pl")
    a.e(f"s_mov_b32 s{S_SPIN}, 0")
    a.e(f"{top}:")
    a.e(f"v_cmp_ne_u32 vcc, s{S_TAG}, v{vdst}")
    for q in range(1, 4):
        a.e(f"v_cmp_ne_u32 s[74:75], s{S_TAG}, v{vdst+q}")
        a.e("s_nop 0")
        a.e("s_or_b64 vcc, vcc, s[74:75]")
    a.e("s_nop 1")
    spin_tail(a, top, ok, [f"global_load_dwordx4 {vr(vdst,4)}, v{vaddr}, s[{P_WS}:{P_WS+1}] sc1"])


G_ACC = 16
def acc(tt, ap): return G_ACC + 16 * (3 * tt + ap)
G_FR = [112, 132]
def fB(st, tt): return G_FR[st] + 4 * tt
def fA(st, ap): return G_FR[st] + 8 + 4 * ap
G_BADDR, G_AADDR = 160, 164

def a_read_addr(a, dst, t0):
    a.e(f"v_lshrrev_b32 v{t0}, 4, v{V_LANE}")
    a.e(f"v_and_b32 v{t0+1}, 1, v{t0}")
    a.e(f"v_lshrrev_b32 v{t0}, 1, v{t0}")
    a.e(f"v_bfe_u32 v{t0+2}, v{V_LANE}, 2, 2")
    a.e(f"v_lshl_add_u32 v{t0+2}, v{t0}, 3, v{t0+2}")
    a.e(f"v_mul_u32_u24 v{t0+2}, 192, v{t0+2}")
    a.e(f"v_and_b32 v{t0+3}, 3, v{V_LANE}")
    a.e(f"v_lshl_add_u32 v{t0+2}, v{t0+3}, 3, v{t0+2}")
    a.e(f"v_mul_u32_u24 v{t0+1}, {L_U - L_G}, v{t0+1}")
    a.e(f"v_add_u32 v{t0+2}, v{t0+2}, v{t0+1}")
    a.e(f"s_mul_i32 s{S_T0}, s{S_FW}, 96")
    a.e(f"s_add_u32 s{S_T0}, s{S_T0}, {L_G}")
    a.e(f"v_add_u32 v{dst}, s{S_T0}, v{t0+2}")

def g_setup(a):
    a.e(f"v_and_b32 v12, 31, v{V_LANE}")
    a.e(f"v_lshrrev_b32 v13, 5, v{V_LANE}")
    a.e(f"v_bfe_u32 v14, v12, 1, 3")
    a.e(f"s_lshl_b32 s{S_T0}, s{S_TW}, 13")
    a.e(f"v_lshl_add_u32 v15, v12, 7, s{S_T0}")
    for s_ in range(4):
        a.e(f"v_add_u32 v11, {2*s_}, v13")
        a.e(f"v_xor_b32 v11, v11, v14")
        a.e(f"v_lshl_add_u32 v{G_BADDR+s_}, v11, 4, v15")
    a_read_addr(a, G_AADDR, 12)
    a.e(f"s_lshl_b32 s{S_T0}, s{S_I}, 7")
    a.e(f"s_lshl_b32 s{S_T1}, s{S_J}, 3")
    a.e(f"s_add_u32 s{S_T0}, s{S_T0}, s{S_T1}")
    a.e(f"s_lshl_b32 s{S_T1}, s{S_W}, 1")
    a.e(f"s_add_u32 s{S_T0}, s{S_T0}, s{S_T1}")
    a.e(f"s_lshl_b32 s{S_T0}, s{S_T0}, 10")
    a.e(f"v_lshl_add_u32 v7, v{V_LANE}, 4, s{S_T0}")

def ln_first(a):
    a.vm_wait("ln")
    for r in range(2):
        for d in range(4):
            a.e(f"v_lshlrev_b32 v{16+8*r+2*d}, 16, v{44+4*r+d}")
            a.e(f"v_and_b32 v{17+8*r+2*d}, 0xffff0000, v{44+4*r+d}")
    for r in range(2):
        b, t = 16 + 8*r, 36 + 4*r
        a.e(f"v_pk_add_f32 {vr(t,2)}, {vr(b,2)}, {vr(b+2,2)}")
        a.e(f"v_pk_mul_f32 {vr(t+2,2)}, {vr(b,2)}, {vr(b,2)}")
    for r in range(2):
        b, t = 16 + 8*r, 36 + 4*r
        a.e(f"v_pk_add_f32 {vr(t,2)}, {vr(t,2)}, {vr(b+4,2)}")
        a.e(f"v_pk_fma_f32 {vr(t+2,2)}, {vr(b+2,2)}, {vr(b+2,2)}, {vr(t+2,2)}")
    for r in range(2):
        b, t = 16 + 8*r, 36 + 4*r
        a.e(f"v_pk_add_f32 {vr(t,2)}, {vr(t,2)}, {vr(b+6,2)}")
        a.e(f"v_pk_fma_f32 {vr(t+2,2)}, {vr(b+4,2)}, {vr(b+4,2)}, {vr(t+2,2)}")
    for r in range(2):
        b, t = 16 + 8*r, 36 + 4*r
        a.e(f"v_pk_fma_f32 {vr(t+2,2)}, {vr(b+6,2)}, {vr(b+6,2)}, {vr(t+2,2)}")
        a.e(f"v_add_f32 v{32+r}, v{t}, v{t+1}")
    for r in range(2):
        t = 36 + 4*r
        a.e(f"v_add_f32 v{34+r}, v{t+2}, v{t+3}")
    a.e("s_nop 0")
    dpp_reduce(a, [32, 33, 34, 35])
    for q, sr_ in enumerate((74, 75, 12, 13)):
        a.e(f"v_readlane_b32 s{sr_}, v{32+q}, 63")
    a.e("s_nop 1")
    for q, sr_ in enumerate((74, 75, 12, 13)):
        a.e(f"v_mov_b32 v{32+q}, s{sr_}")
    a.e("v_mov_b32 v36, 0x3b000000")
    a.e("v_pk_mul_f32 v[32:33], v[32:33], v[36:37] op_sel_hi:[1,0]")
    a.e("v_pk_mul_f32 v[34:35], v[34:35], v[36:37] op_sel_hi:[1,0]")
    a.e("v_pk_fma_f32 v[34:35], v[32:33], v[32:33], v[34:35] neg_lo:[1,0,0] neg_hi:[1,0,0]")
    a.e("v_max_f32 v34, 0, v34")
    a.e("v_max_f32 v35, 0, v35")
    a.e("v_cvt_pk_bf16_f32 v36, v34, v35")
    a.e("v_cvt_pk_bf16_f32 v37, v32, v33")
    a.e("v_lshlrev_b32 v34, 16, v36")
    a.e("v_and_b32 v35, 0xffff0000, v36")
    a.e("v_lshlrev_b32 v32, 16, v37")
    a.e("v_and_b32 v33, 0xffff0000, v37")
    a.e("v_add_f32 v34, 0x3727c5ac, v34")
    a.e("v_add_f32 v35, 0x3727c5ac, v35")
    a.e("v_cvt_pk_bf16_f32 v36, v34, v35")
    a.e("v_lshlrev_b32 v34, 16, v36")
    a.e("v_and_b32 v35, 0xffff0000, v36")
    a.e("v_sqrt_f32 v34, v34")
    a.e("v_sqrt_f32 v35, v35")
    a.e("s_nop 0")
    a.e("v_cvt_pk_bf16_f32 v36, v34, v35")
    a.e("v_lshlrev_b32 v34, 16, v36")
    a.e("v_and_b32 v35, 0xffff0000, v36")
    a.e("v_rcp_f32 v34, v34")
    a.e("v_rcp_f32 v35, v35")
    for r in range(2):
        b = 16 + 8*r
        sel = "op_sel_hi:[1,0]" if r == 0 else "op_sel:[0,1] op_sel_hi:[1,1]"
        for d in range(4):
            a.e(f"v_pk_add_f32 {vr(b+2*d,2)}, {vr(b+2*d,2)}, v[32:33] {sel} neg_lo:[0,1] neg_hi:[0,1]")
    for r in range(2):
        b = 16 + 8*r
        for d in range(4):
            a.e(f"v_cvt_pk_bf16_f32 v{44+4*r+d}, v{b+2*d}, v{b+2*d+1}")
    for r in range(2):
        b = 16 + 8*r
        for d in range(4):
            a.e(f"v_lshlrev_b32 v{b+2*d}, 16, v{44+4*r+d}")
            a.e(f"v_and_b32 v{b+2*d+1}, 0xffff0000, v{44+4*r+d}")
    for r in range(2):
        b = 16 + 8*r
        sel = "op_sel_hi:[1,0]" if r == 0 else "op_sel:[0,1] op_sel_hi:[1,1]"
        for d in range(4):
            a.e(f"v_pk_mul_f32 {vr(b+2*d,2)}, {vr(b+2*d,2)}, v[34:35] {sel}")
    for r in range(2):
        b = 16 + 8*r
        for d in range(4):
            a.e(f"v_cvt_pk_bf16_f32 v{44+4*r+d}, v{b+2*d}, v{b+2*d+1}")
    a.e(f"s_mul_i32 s{S_T0}, s{S_W}, {2*1088}")
    a.e(f"s_add_u32 s{S_T0}, s{S_T0}, {L_LN}")
    a.e(f"v_lshl_add_u32 v2, v{V_LANE}, 4, s{S_T0}")
    a.e("ds_write_b128 v2, v[44:47]")
    a.e("ds_write_b128 v2, v[48:51] offset:1088")
    a.e("v_mov_b32 v40, v34")
    a.e("v_cvt_pk_bf16_f32 v41, -v32, -v32")
    a.e("v_mov_b32 v42, v35")
    a.e("v_cvt_pk_bf16_f32 v43, -v33, -v33")
    a.e(f"s_lshl_b32 s{S_T0}, s{S_I}, 7")
    a.e(f"s_lshl_b32 s{S_T1}, s{S_J}, 3")
    a.e(f"s_add_u32 s{S_T0}, s{S_T0}, s{S_T1}")
    a.e(f"s_lshl_b32 s{S_T1}, s{S_W}, 1")
    a.e(f"s_add_u32 s{S_T1}, s{S_T0}, s{S_T1}")
    a.e(f"s_lshl_b32 s{S_T1}, s{S_T1}, 3")
    a.e(f"s_add_u32 s{S_T1}, s{S_T1}, {WS_STATS}")
    a.e(f"v_mov_b32 v3, s{S_T1}")
    a.e(f"s_mov_b64 s[{S_EXEC}:{S_EXEC+1}], exec")
    a.e("s_mov_b64 exec, 1")
    a.vm(f"global_store_dwordx4 v3, v[40:43], s[{P_WS}:{P_WS+1}] sc1", "pubA")
    a.e(f"s_mov_b64 exec, s[{S_EXEC}:{S_EXEC+1}]")
    a.e(f"v_bfe_u32 v2, v{V_LANE}, 2, 2")
    a.e(f"v_mul_u32_u24 v2, 1088, v2")
    a.e(f"v_lshrrev_b32 v3, 4, v{V_LANE}")
    a.e(f"v_lshl_add_u32 v2, v3, 5, v2")
    a.e(f"v_and_b32 v3, 3, v{V_LANE}")
    a.e(f"v_lshl_add_u32 v2, v3, 3, v2")
    a.e(f"s_lshl_b32 s{S_T1}, s{S_W}, 8")
    a.e(f"s_add_u32 s{S_T1}, s{S_T1}, {L_LN}")
    a.e(f"v_add_u32 v2, s{S_T1}, v2")
    a.e(f"s_lshl_b32 s{S_T0}, s{S_T0}, 10")
    a.e(f"s_lshl_b32 s{S_T1}, s{S_W}, 11")
    a.e(f"s_add_u32 s{S_T0}, s{S_T0}, s{S_T1}")
    a.e(f"s_add_u32 s{S_T0}, s{S_T0}, {WS_XT}")
    a.e(f"v_lshl_add_u32 v3, v{V_LANE}, 4, s{S_T0}")

def g1_reads(st, s):
    r = [f"ds_read_b128 {vr(fB(st,tt),4)}, v{G_BADDR+s} offset:{tt*4096}" for tt in range(2)]
    for ap in range(3):
        for h in range(2):
            r.append(f"ds_read_b64_tr_b16 {vr(fA(st,ap)+2*h,2)}, v{G_AADDR} offset:{s*3072 + h*768 + ap*32}")
    return r

def g1_mfmas(st, first):
    return [f"v_mfma_f32_32x32x16_bf16 {vr(acc(tt,ap),16)}, {vr(fA(st,ap),4)}, {vr(fB(st,tt),4)}, {'0' if first else vr(acc(tt,ap),16)}"
            for ap in range(3) for tt in range(2)]

def g1_main(a, hooks):
    st = 0
    for stage in range(8):
        for s in range(4):
            last = (stage == 7 and s == 3)
            a.e("s_waitcnt lgkmcnt(0)")
            mf = g1_mfmas(st, stage == 0 and s == 0)
            slots = {i: [] for i in range(6)}
            if stage == 0 and OPT.get("csg", 0):
                lab = a.label("nocs")
                a.e(f"s_or_b32 s{S_T0}, s{S_TW}, s{S_CSH}")
                a.e(f"s_cmp_lg_u32 s{S_T0}, 0")
                a.e(f"s_cbranch_scc1 {lab}")
                for ap in range(3):
                    a.e(f"v_mfma_f32_32x32x16_bf16 {ar(16*ap,16)}, v[168:171], {vr(fA(st,ap),4)}, {'0' if s == 0 else ar(16*ap,16)}")
                a.e(f"{lab}:")
            if s == 3 and not last:
                d = SLOT if (stage + 1) % 3 != 0 else -2 * SLOT
                slots[0] += [f"v_add_u32 v{G_BADDR+q}, {d & 0xffffffff}, v{G_BADDR+q}" for q in range(4)]
                slots[0] += [f"v_add_u32 v{G_AADDR}, {d & 0xffffffff}, v{G_AADDR}"]
                for hk in hooks.get(("pre", stage), []): slots[1].append(hk)
                slots[1].append(lambda a, stage=stage: a.bar(f"s{stage}"))
                rd = g1_reads(st ^ 1, 0)
                slots[1] += rd[:3]; slots[2] += rd[3:6]; slots[3] += rd[6:]
                for hk in hooks.get(("post", stage), []): slots[4].append(hk)
            elif last:
                slots[0].append(lambda a: a.bar("rf"))
            else:
                rd = g1_reads(st ^ 1, s + 1)
                slots[0] += rd[:3]; slots[1] += rd[3:6]; slots[2] += rd[6:]
            sh = hooks.get(("shadow", stage, s), [])
            for k, x in enumerate(sh):
                slots[2 + (k * 4) // len(sh)].append(x)
            sched(a, mf, slots)
            st ^= 1
        stamp(a, f"gs{stage}")

CSL = [152, 156, 168]
def cs_store_g(a):
    lab = a.label("nocsst")
    a.e(f"s_or_b32 s{S_T0}, s{S_TW}, s{S_CSH}")
    a.e(f"s_cmp_lg_u32 s{S_T0}, 0")
    a.e(f"s_cbranch_scc1 {lab}")
    for ap in range(3):
        a.e(f"v_accvgpr_read_b32 v{8+ap}, a{16*ap}")
    a.e(f"s_mul_i32 s{S_T0}, s{S_J}, 6")
    a.e(f"s_mul_i32 s{S_T1}, s{S_FW}, 3")
    a.e(f"s_add_u32 s{S_T0}, s{S_T0}, s{S_T1}")
    a.e(f"s_lshl_b32 s{S_T0}, s{S_T0}, 10")
    a.e(f"s_lshl_b32 s{S_T1}, s{S_I}, 2")
    a.e(f"s_add_u32 s{S_T0}, s{S_T0}, s{S_T1}")
    a.e(f"s_add_u32 s{S_T0}, s{S_T0}, {WS_CS}")
    a.e(f"v_lshl_add_u32 v6, v{V_LANE}, 5, s{S_T0}")
    a.e(f"s_mov_b64 s[{S_EXEC}:{S_EXEC+1}], exec")
    a.e("s_mov_b64 exec, 0xffffffff")
    for ap in range(3):
        a.e(f"global_store_dword v6, v{8+ap}, s[{P_WS}:{P_WS+1}] offset:{1024*ap} sc1")
    a.e(f"s_mov_b64 exec, s[{S_EXEC}:{S_EXEC+1}]")
    a.e(f"{lab}:")

def g1_post_loads(a):
    a.e(f"s_lshl_b32 s{S_T0}, s{S_I}, 7")
    a.e(f"s_lshl_b32 s{S_T1}, s{S_TW}, 6")
    a.e(f"s_add_u32 s{S_T0}, s{S_T0}, s{S_T1}")
    a.e(f"s_lshl_b32 s{S_T0}, s{S_T0}, 3")
    a.e(f"s_add_u32 s{S_T0}, s{S_T0}, {WS_STATS}")
    a.e(f"v_and_b32 v6, 31, v{V_LANE}")
    a.e(f"v_lshl_add_u32 v7, v6, 3, s{S_T0}")
    a.vm(f"global_load_dwordx2 v[2:3], v7, s[{P_WS}:{P_WS+1}] sc1", "post")
    a.vm(f"global_load_dwordx2 v[4:5], v7, s[{P_WS}:{P_WS+1}] offset:256 sc1", "post")
    a.e(f"s_mul_i32 s{S_T0}, s{S_J}, 6")
    a.e(f"s_mul_i32 s{S_T1}, s{S_FW}, 3")
    a.e(f"s_add_u32 s{S_T0}, s{S_T0}, s{S_T1}")
    a.e(f"s_lshl_b32 s{S_T0}, s{S_T0}, 10")
    a.e(f"s_add_u32 s{S_T0}, s{S_T0}, {WS_CS}")
    a.e(f"v_lshl_add_u32 v7, v6, 5, s{S_T0}")
    a.e(f"v_lshrrev_b32 v8, 5, v{V_LANE}")
    a.e(f"v_lshl_add_u32 v7, v8, 4, v7")
    for ap in range(3):
        a.vm(f"global_load_dwordx4 {vr(CSL[ap],4)}, v7, s[{P_WS}:{P_WS+1}] offset:{1024*ap} sc1", "post")

def g1_corr_prep():
    r = [lambda a: a.vm_wait("post")]
    e = r.append
    for b in CSL:
        e(f"v_add_f32 v{b}, v{b}, v{b+2}")
        e(f"v_add_f32 v{b+1}, v{b+1}, v{b+3}")
    for b in CSL: e(f"v_add_f32 v{b}, v{b}, v{b+1}")
    for b in CSL: e(f"v_mov_b32 v{b+1}, v{b}")
    e(f"v_cmp_gt_u32 vcc, 32, v{V_LANE}")
    e("v_nop")
    for b in CSL: e(f"v_permlane32_swap_b32 v{b}, v{b+1}")
    for b in CSL: e(f"v_add_f32 v{b}, v{b}, v{b+1}")
    for b in CSL: e(f"v_cvt_pk_bf16_f32 v{b+1}, v{b}, v{b}")
    for b in CSL: e(f"v_lshlrev_b32 v{b+2}, 16, v{b+1}")
    for b in CSL: e(f"v_sub_f32 v{b+2}, v{b}, v{b+2}")
    for b in CSL: e(f"v_cvt_pk_bf16_f32 v{b}, v{b}, v{b+2}")
    for b in CSL:
        e(f"v_cndmask_b32 v{b}, 0, v{b}, vcc")
        e(f"v_mov_b32 v{b+1}, 0"); e(f"v_mov_b32 v{b+2}, 0"); e(f"v_mov_b32 v{b+3}, 0")
    for tt in range(2):
        e(f"v_cndmask_b32 v{8+4*tt}, 0, v{3+2*tt}, vcc")
        for d in range(1, 4): e(f"v_mov_b32 v{8+4*tt+d}, 0")
    return r

def g1_corr_mfma(a):
    a.e("s_nop 1")
    for ap in range(3):
        for tt in range(2):
            a.e(f"v_mfma_f32_32x32x16_bf16 {vr(acc(tt,ap),16)}, {vr(CSL[ap],4)}, {vr(8+4*tt,4)}, {vr(acc(tt,ap),16)}")

C1 = -2.0 * math.sqrt(2.0 / math.pi) * math.log2(math.e)
C2 = C1 * 0.044715
def g1_epilogue(a):
    for tt in range(2):
        r_, b = 2 + 2*tt, 160 + 4*tt
        a.e(f"v_mul_f32 v{b+2}, v{r_}, v{r_}")
        a.e(f"v_mul_f32 v{b}, {fhex(C1)}, v{r_}")
        a.e(f"v_mul_f32 v{b+1}, {fhex(C2)}, v{r_}")
        a.e(f"v_mul_f32 v{b+1}, v{b+1}, v{b+2}")
        a.e(f"v_rcp_f32 v{b+2}, v{b+2}")
    a.e(f"s_lshl_b32 s{S_T0}, s{S_I}, 2")
    a.e(f"s_lshl_b32 s{S_T1}, s{S_TW}, 1")
    a.e(f"s_add_u32 s{S_T0}, s{S_T0}, s{S_T1}")
    a.e(f"s_mul_i32 s{S_T0}, s{S_T0}, 86")
    a.e(f"s_lshl_b32 s{S_T1}, s{S_U0}, 1")
    a.e(f"s_add_u32 s{S_T0}, s{S_T0}, s{S_T1}")
    a.e(f"s_mul_i32 s{S_T1}, s{S_FW}, 3")
    a.e(f"s_add_u32 s{S_T0}, s{S_T0}, s{S_T1}")
    a.e(f"s_lshl_b32 s{S_T0}, s{S_T0}, 10")
    a.e(f"s_add_u32 s{S_T0}, s{S_T0}, {WS_H}")
    a.e(f"v_lshl_add_u32 v168, v{V_LANE}, 4, s{S_T0}")
    a.e(f"v_add_u32 v169, {86*1024}, v168")
    a.e(f"s_sub_u32 s{S_T2}, s{S_NU}, s{S_T1}")
    a.e(f"s_lshl_b32 s{S_T0}, s{S_WG}, 12")
    a.e(f"s_add_u32 s{S_T0}, s{S_T0}, {WS_DUMMY}")
    a.e(f"v_lshl_add_u32 v170, v{V_LANE}, 4, s{S_T0}")
    a.e(f"s_cmp_gt_u32 s{S_T2}, 1")
    a.e(f"s_cselect_b64 s[74:75], -1, 0")
    a.e(f"v_cndmask_b32 v171, v170, v169, s[74:75]")
    a.e(f"v_cndmask_b32 v170, v170, v168, s[74:75]")
    T, Gq, X = 112, 120, 128
    for ap in range(3):
        for tt in range(2):
            c = acc(tt, ap); KK = 160 + 4*tt; S2 = 162 + 4*tt
            for p in range(4):
                a.e(f"v_pk_mul_f32 {vr(T+2*p,2)}, {vr(c+2*p,2)}, {vr(c+2*p,2)}")
            for p in range(4):
                a.e(f"v_pk_fma_f32 {vr(T+2*p,2)}, {vr(T+2*p,2)}, {vr(KK,2)}, {vr(KK,2)} op_sel:[0,1,0] op_sel_hi:[1,1,0]")
            for p in range(4):
                a.e(f"v_pk_mul_f32 {vr(T+2*p,2)}, {vr(T+2*p,2)}, {vr(c+2*p,2)}")
            for p in range(8):
                a.e(f"v_exp_f32 v{T+p}, v{T+p}")
            for p in range(4):
                a.e(f"v_pk_mul_f32 {vr(Gq+2*p,2)}, {vr(c+2*p,2)}, {vr(c+8+2*p,2)}")
            for p in range(4):
                a.e(f"v_pk_fma_f32 {vr(T+2*p,2)}, {vr(T+2*p,2)}, {vr(S2,2)}, {vr(S2,2)} op_sel_hi:[1,0,0]")
            for p in range(8):
                a.e(f"v_rcp_f32 v{T+p}, v{T+p}")
            a.e("s_nop 0")
            for p in range(4):
                a.e(f"v_pk_mul_f32 {vr(Gq+2*p,2)}, {vr(Gq+2*p,2)}, {vr(T+2*p,2)}")
            O = X + 4 * ((2 * ap + tt) % 2)
            for p in range(4):
                a.e(f"v_cvt_pk_bf16_f32 v{O+p}, v{Gq+2*p}, v{Gq+2*p+1}")
            adr = (168 + tt) if ap == 0 else (170 + tt)
            a.vm(f"global_store_dwordx4 v{adr}, {vr(O,4)}, s[{P_WS}:{P_WS+1}] offset:{1024*ap} sc1", "pubH")

V_WDOFF, V_WDL, V_WDA = 172, 173, 166
def wd_setup(a, t0, voff=V_WDOFF):
    mk_srd(a, SRD_WD, P_WD, 1376 * 1024)
    a.e(f"s_mul_i32 s{S_WDO}, s{S_W}, {352 * 1024}")
    a.e(f"s_lshl_b32 s{S_T0}, s{S_NT}, 7")
    a.e(f"s_add_u32 s{S_WDO}, s{S_WDO}, s{S_T0}")
    t = t0
    a.e(f"v_lshrrev_b32 v{t}, 3, v{V_LANE}")
    a.e(f"v_and_b32 v{t+1}, 7, v{V_LANE}")
    a.e(f"v_bfe_u32 v{t+2}, v{t}, 1, 1")
    a.e(f"v_lshlrev_b32 v{t+2}, 2, v{t+2}")
    a.e(f"v_xor_b32 v{t+1}, v{t+1}, v{t+2}")
    a.e(f"v_lshlrev_b32 v{t+1}, 4, v{t+1}")
    a.e(f"v_lshl_add_u32 v{voff}, v{t}, 10, v{t+1}")

def wd_lane_parts(a, t0):
    t = t0
    a.e(f"v_lshrrev_b32 v{t}, 4, v{V_LANE}")
    a.e(f"v_and_b32 v{t+1}, 1, v{t}")
    a.e(f"v_lshrrev_b32 v{t}, 1, v{t}")
    a.e(f"v_bfe_u32 v{t+2}, v{V_LANE}, 2, 2")
    a.e(f"v_lshl_add_u32 v{t+2}, v{t}, 2, v{t+2}")
    a.e(f"v_lshlrev_b32 v{t+2}, 7, v{t+2}")
    a.e(f"v_lshl_add_u32 v{t+2}, v{t+1}, 5, v{t+2}")
    a.e(f"v_and_b32 v{t+1}, 3, v{V_LANE}")
    a.e(f"v_lshl_add_u32 v{t+2}, v{t+1}, 3, v{t+2}")
    a.e(f"v_bfe_u32 v{t+1}, v{V_LANE}, 3, 1")
    a.e(f"v_lshlrev_b32 v{t+1}, 6, v{t+1}")
    a.e(f"v_add_u32 v{V_WDL}, v{t+2}, v{t+1}")
    a.e(f"v_xor_b32 v{t+1}, 64, v{t+1}")
    a.e(f"v_add_u32 v{V_WDL+1}, v{t+2}, v{t+1}")

def wd_groups(rnd, voff=V_WDOFF):
    lb, wsz, ks0, n = WD[rnd]
    out = []
    for q in range(2 * n):
        pre = [f"s_mul_i32 s{S_WDL}, s{S_W}, {wsz}", f"s_add_u32 s{S_WDS}, s{S_WDO}, {ks0*16384}"] if q == 0 else []
        out.append(Dma(pre, f"s_add_u32 m0, s{S_WDL}, {lb + q*1024}",
                       (f"buffer_load_dwordx4 v{voff}, s[{SRD_WD}:{SRD_WD+3}], s{S_WDS} offen lds", f"wd{rnd}"),
                       [f"s_add_u32 s{S_WDS}, s{S_WDS}, 8192"]))
    return out

def wd_addr(rnd):
    lb, wsz, ks0, n = WD[rnd]
    return [f"s_mul_i32 s{S_T0}, s{S_W}, {wsz}", f"s_add_u32 s{S_T0}, s{S_T0}, {lb}",
            f"v_add_u32 v{V_WDA}, s{S_T0}, v{V_WDL}", f"v_add_u32 v{V_WDA+1}, s{S_T0}, v{V_WDL+1}"]

def wd_tr_agpr(rnd):
    lb, wsz, ks0, n = WD[rnd]
    return [f"ds_read_b64_tr_b16 {ar(wd_areg(ks0+k) + 4*t + 2*h, 2)}, v{V_WDA+t} offset:{k*2048 + h*1024}"
            for k in range(n) for t in range(2) for h in range(2)]

G2_ACC, G2_H, G2_RING, G2_W = 16, 80, 8, 144
V_HA = 160
def acc2(t, tt): return G2_ACC + 16 * (2 * t + tt)

def h_setup(a):
    a.e(f"s_lshl_b32 s{S_T0}, s{S_I}, 2")
    a.e(f"s_lshl_b32 s{S_T1}, s{S_TH}, 1")
    a.e(f"s_add_u32 s{S_T0}, s{S_T0}, s{S_T1}")
    a.e(f"s_mul_i32 s{S_T0}, s{S_T0}, 86")
    a.e(f"s_mul_i32 s{S_T1}, s{S_W}, 22")
    a.e(f"s_add_u32 s{S_T0}, s{S_T0}, s{S_T1}")
    a.e(f"s_lshl_b32 s{S_T0}, s{S_T0}, 10")
    a.e(f"s_add_u32 s{S_T0}, s{S_T0}, {WS_H}")
    a.e(f"v_lshl_add_u32 v{V_HA}, v{V_LANE}, 4, s{S_T0}")
    a.e(f"v_add_u32 v{V_HA+1}, {86*1024}, v{V_HA}")
    a.e(f"s_movk_i32 s66, {4*1024}")
    a.e(f"s_movk_i32 s67, {5*1024}")
    a.e(f"s_cmp_eq_u32 s{S_W}, 3")
    a.e(f"s_cselect_b32 s66, {3*1024}, s66")
    a.e(f"s_cselect_b32 s67, {3*1024}, s67")

def h_load(q):
    R = G2_H + 8 * (q % G2_RING)
    it = []
    if q < 20:
        if q % 4 == 0 and q > 0:
            it += [f"v_add_u32 v{V_HA}, 4096, v{V_HA}", f"v_add_u32 v{V_HA+1}, 4096, v{V_HA+1}"]
        off = (q % 4) * 1024
        it += [(f"global_load_dwordx4 {vr(R,4)}, v{V_HA}, s[{P_WS}:{P_WS+1}] offset:{off} sc1", f"h{q}"),
               (f"global_load_dwordx4 {vr(R+4,4)}, v{V_HA+1}, s[{P_WS}:{P_WS+1}] offset:{off} sc1", f"h{q}")]
    else:
        sreg = 66 + (q - 20)
        it += [f"v_add_u32 v162, s{sreg}, v{V_HA}", f"v_add_u32 v163, s{sreg}, v{V_HA+1}",
               (f"global_load_dwordx4 {vr(R,4)}, v162, s[{P_WS}:{P_WS+1}] sc1", f"h{q}"),
               (f"global_load_dwordx4 {vr(R+4,4)}, v163, s[{P_WS}:{P_WS+1}] sc1", f"h{q}")]
    return it

def hy_poll_issue(a):
    a.e(f"s_lshl_b32 s{S_T0}, s{S_I}, 6")
    a.e(f"s_add_u32 s{S_T0}, s{S_T0}, {WS_FLAG_H}")
    a.e(f"v_and_b32 v8, 15, v{V_LANE}")
    a.e(f"v_lshl_add_u32 v8, v8, 2, s{S_T0}")
    a.e(f"s_lshl_b32 s{S_T0}, s{S_NT}, 7")
    a.e(f"s_add_u32 s{S_T0}, s{S_T0}, {WS_FLAG_Y}")
    a.e(f"v_and_b32 v9, 31, v{V_LANE}")
    a.e(f"v_lshl_add_u32 v9, v9, 2, s{S_T0}")
    a.vm(f"global_load_dword v10, v8, s[{P_WS}:{P_WS+1}] sc1", "ph")
    a.vm(f"global_load_dword v11, v9, s[{P_WS}:{P_WS+1}] sc1", "ph")

def hy_poll_check(a):
    top, ok = a.label("poll"), a.label("pollok")
    a.vm_wait("ph")
    a.e(f"s_mov_b32 s{S_SPIN}, 0")
    a.e(f"{top}:")
    a.e(f"v_cmp_ne_u32 vcc, s{S_TAG}, v10")
    a.e(f"v_cmp_ne_u32 s[74:75], s{S_TAG}, v11")
    a.e("s_nop 1")
    a.e("s_or_b64 vcc, vcc, s[74:75]")
    spin_tail(a, top, ok, [f"global_load_dword v10, v8, s[{P_WS}:{P_WS+1}] sc1", f"global_load_dword v11, v9, s[{P_WS}:{P_WS+1}] sc1"], OPT.get("hsleep", 8))

def res_reads(q):
    for rnd in (4, 5, 6):
        lb, wsz, ks0, n = WD[rnd]
        if ks0 <= q < ks0 + n:
            pre = wd_addr(rnd) if q == ks0 else []
            B = G2_W + 8 * (q % 2)
            return pre + [f"ds_read_b64_tr_b16 {vr(B + 4*t + 2*h, 2)}, v{V_WDA+t} offset:{(q-ks0)*2048 + h*1024}" for t in range(2) for h in range(2)]

def g2_main(a, hooks, n0):
    la = OPT.get("g2la", 7)
    nxt = n0
    for q in range(22):
        a.vm_wait(f"h{q}")
        if q >= 8:
            a.e("s_waitcnt lgkmcnt(0)")
        stamp(a, f"g2q{q}")
        R = G2_H + 8 * (q % G2_RING)
        mf = []
        for t in range(2):
            A = ar(wd_areg(q) + 4*t, 4) if wd_in_agpr(q) else vr(G2_W + 8*(q % 2) + 4*t, 4)
            for tt in range(2):
                mf.append(f"v_mfma_f32_32x32x16_bf16 {vr(acc2(t,tt),16)}, {A}, {vr(R+4*tt,4)}, {'0' if q == 0 else vr(acc2(t,tt),16)}")
        slots = {i: [] for i in range(4)}
        if q + 1 < 22 and not wd_in_agpr(q + 1):
            rr = res_reads(q + 1)
            if q + 1 == 8: rr = [lambda a: a.vm_wait("wd4", "wd5")] + rr
            slots[0] += rr
        k = 0
        while nxt < 22 and nxt - q <= la and k < 2 and nxt < q + G2_RING:
            slots[1 if k == 0 else 3].append(h_load(nxt)); nxt += 1; k += 1
        for hk in hooks.get(q, []): slots[2].append(hk)
        sched(a, mf, slots)

V_OUT = 14
V_X = 168
def x_loads(a):
    a.e(f"s_lshl_b32 s{S_T0}, s{S_I}, 7")
    a.e(f"s_lshl_b32 s{S_T1}, s{S_TH}, 6")
    a.e(f"s_add_u32 s{S_T0}, s{S_T0}, s{S_T1}")
    a.e(f"s_and_b32 s{S_T1}, s{S_W}, 1")
    a.e(f"s_lshl_b32 s{S_T1}, s{S_T1}, 5")
    a.e(f"s_add_u32 s{S_T0}, s{S_T0}, s{S_T1}")
    a.e(f"s_lshl_b32 s{S_T0}, s{S_T0}, 10")
    a.e(f"s_lshl_b32 s{S_T1}, s{S_NT}, 7")
    a.e(f"s_add_u32 s{S_T0}, s{S_T0}, s{S_T1}")
    a.e(f"s_lshr_b32 s{S_T1}, s{S_W}, 1")
    a.e(f"s_lshl_b32 s{S_T1}, s{S_T1}, 6")
    a.e(f"s_add_u32 s{S_T0}, s{S_T0}, s{S_T1}")
    a.e(f"v_and_b32 v12, 31, v{V_LANE}")
    a.e(f"v_lshlrev_b32 v12, 10, v12")
    a.e(f"v_lshrrev_b32 v13, 5, v{V_LANE}")
    a.e(f"v_lshl_add_u32 v12, v13, 3, v12")
    a.e(f"v_add_u32 v{V_OUT}, s{S_T0}, v12")
    if not OPT.get("xlds", 1):
        for q in range(4):
            a.vm(f"global_load_dwordx2 {vr(V_X+2*q,2)}, v{V_OUT}, s[{P_X}:{P_X+1}] offset:{16*q}", "fx")
    a.e(f"v_lshl_add_u32 v{V_OUT}, v13, 3, v{V_OUT}")
    if OPT.get("xlds", 1):
        a.e(f"s_lshl_b32 s{S_T0}, s{S_I}, 7")
        a.e(f"s_lshl_b32 s{S_T1}, s{S_TH}, 6")
        a.e(f"s_add_u32 s{S_T0}, s{S_T0}, s{S_T1}")
        a.e(f"s_lshl_b32 s{S_T0}, s{S_T0}, 10")
        a.e(f"s_lshl_b32 s{S_T1}, s{S_NT}, 7")
        a.e(f"s_add_u32 s{S_T0}, s{S_T0}, s{S_T1}")
        a.e(f"v_lshrrev_b32 v12, 3, v0")
        a.e(f"v_lshlrev_b32 v12, 10, v12")
        a.e(f"v_and_b32 v13, 7, v0")
        a.e(f"v_lshl_add_u32 v12, v13, 4, v12")
        a.e(f"v_add_u32 v12, s{S_T0}, v12")
        a.vm(f"global_load_dwordx4 {vr(V_X,4)}, v12, s[{P_X}:{P_X+1}]", "fx")
        a.e(f"v_add_u32 v12, {32*1024}, v12")
        a.vm(f"global_load_dwordx4 {vr(V_X+4,4)}, v12, s[{P_X}:{P_X+1}]", "fx")

def y_loads(a):
    a.e(f"s_lshl_b32 s{S_T0}, s{S_I}, 1")
    a.e(f"s_add_u32 s{S_T0}, s{S_T0}, s{S_TH}")
    a.e(f"s_lshl_b32 s{S_T0}, s{S_T0}, 16")
    a.e(f"s_lshl_b32 s{S_T1}, s{S_NT}, 13")
    a.e(f"s_add_u32 s{S_T0}, s{S_T0}, s{S_T1}")
    a.e(f"s_add_u32 s{S_T0}, s{S_T0}, {WS_Y}")
    a.e(f"v_lshl_add_u32 v10, v0, 4, s{S_T0}")
    a.e(f"v_add_u32 v11, 4096, v10")
    a.vm(f"global_load_dwordx4 v[2:5], v10, s[{P_WS}:{P_WS+1}] sc1", "fy")
    a.vm(f"global_load_dwordx4 v[6:9], v11, s[{P_WS}:{P_WS+1}] sc1", "fy")

def y_check(a):
    top, ok = a.label("ychk"), a.label("yok")
    a.vm_wait("fy")
    a.e(f"s_mov_b32 s{S_SPIN}, 0")
    a.e(f"{top}:")
    a.e("v_max3_u32 v12, v2, v3, v4")
    a.e("v_max3_u32 v13, v5, v6, v7")
    a.e("v_max3_u32 v12, v12, v8, v9")
    a.e("v_max_u32 v12, v12, v13")
    a.e("v_cmp_eq_u32 vcc, -1, v12")
    a.e("s_nop 1")
    spin_tail(a, top, ok, [f"global_load_dwordx4 v[2:5], v10, s[{P_WS}:{P_WS+1}] sc1", f"global_load_dwordx4 v[6:9], v11, s[{P_WS}:{P_WS+1}] sc1"])

def final_prep(a):
    a.e(f"v_lshlrev_b32 v162, 4, v{V_LANE}")
    a.e(f"s_mul_i32 s{S_T0}, s{S_W}, {3*4096}")
    a.e(f"v_add_u32 v163, s{S_T0}, v162")
    a.e(f"v_lshrrev_b32 v12, 3, v0")
    a.e(f"v_mul_u32_u24 v12, 192, v12")
    a.e(f"v_and_b32 v13, 7, v0")
    a.e(f"v_lshl_add_u32 v164, v13, 4, v12")
    a.e(f"v_add_u32 v164, {L_YB}, v164")
    a.e(f"v_lshrrev_b32 v12, 4, v{V_LANE}")
    a.e(f"v_and_b32 v13, 1, v12")
    a.e(f"v_lshrrev_b32 v12, 1, v12")
    a.e(f"v_bfe_u32 v165, v{V_LANE}, 2, 2")
    a.e(f"v_lshl_add_u32 v165, v12, 2, v165")
    a.e(f"v_mul_u32_u24 v165, 192, v165")
    a.e(f"v_lshl_add_u32 v165, v13, 5, v165")
    a.e(f"v_and_b32 v13, 3, v{V_LANE}")
    a.e(f"v_lshl_add_u32 v165, v13, 3, v165")
    a.e(f"s_lshr_b32 s{S_T0}, s{S_W}, 1")
    a.e(f"s_mul_i32 s{S_T0}, s{S_T0}, {32*192}")
    a.e(f"s_and_b32 s{S_T1}, s{S_W}, 1")
    a.e(f"s_lshl_b32 s{S_T1}, s{S_T1}, 6")
    a.e(f"s_add_u32 s{S_T0}, s{S_T0}, s{S_T1}")
    a.e(f"s_add_u32 s{S_T0}, s{S_T0}, {L_YB}")
    a.e(f"v_add_u32 v165, s{S_T0}, v165")

def red_ref(u, q):
    return 162, RED_UNIT[u] + q * 1024

def final(a):
    OWN, XF = 80, 96
    P = 112
    end = a.label("redend")
    labs = [a.label("redw") for _ in range(4)]
    for w in range(1, 4):
        a.e(f"s_cmp_eq_u32 s{S_W}, {w}")
        a.e(f"s_cbranch_scc1 {labs[w]}")
    for w in range(4):
        a.e(f"{labs[w]}:")
        a.e("s_nop 9")
        for o in range(4):
            if o == w: continue
            u = 3*o + ((w - o - 1) & 3)
            for q in range(4):
                r_, off = red_ref(u, q)
                a.e(f"ds_write_b128 v{r_}, {vr(G2_ACC+16*o+4*q,4)} offset:{off}")
        for q in range(8):
            a.e(f"v_pk_mul_f32 {vr(OWN+2*q,2)}, {vr(G2_ACC+16*w+2*q,2)}, 1.0 op_sel_hi:[1,0]")
        if w < 3: a.e(f"s_branch {end}")
    a.e(f"{end}:")
    y_check(a)
    stamp(a, "fy")
    a.e("ds_write_b128 v164, v[2:5]")
    a.e(f"ds_write_b128 v164, v[6:9] offset:{32*192}")
    a.vm_wait("fx")
    if OPT.get("xlds", 1):
        a.e(f"v_lshrrev_b32 v12, 3, v0")
        a.e(f"v_mul_u32_u24 v12, 144, v12")
        a.e(f"v_and_b32 v13, 7, v0")
        a.e(f"v_lshl_add_u32 v12, v13, 4, v12")
        a.e(f"ds_write_b128 v12, {vr(V_X,4)} offset:{L_XB}")
        a.e(f"ds_write_b128 v12, {vr(V_X+4,4)} offset:{L_XB + 32*144}")
        a.e(f"v_and_b32 v12, 31, v{V_LANE}")
        a.e(f"s_and_b32 s{S_T0}, s{S_W}, 1")
        a.e(f"s_lshl_b32 s{S_T0}, s{S_T0}, 5")
        a.e(f"v_add_u32 v12, s{S_T0}, v12")
        a.e(f"v_mul_u32_u24 v12, 144, v12")
        a.e(f"v_lshrrev_b32 v13, 5, v{V_LANE}")
        a.e(f"v_lshl_add_u32 v12, v13, 3, v12")
        a.e(f"s_lshr_b32 s{S_T0}, s{S_W}, 1")
        a.e(f"s_lshl_b32 s{S_T0}, s{S_T0}, 6")
        a.e(f"v_add_u32 v12, s{S_T0}, v12")
    else:
        for q in range(8):
            a.e(f"v_lshlrev_b32 v{XF+2*q}, 16, v{V_X+q}")
            a.e(f"v_and_b32 v{XF+2*q+1}, 0xffff0000, v{V_X+q}")
        for q in range(8):
            a.e(f"v_pk_add_f32 {vr(OWN+2*q,2)}, {vr(OWN+2*q,2)}, {vr(XF+2*q,2)}")
    a.e("s_waitcnt lgkmcnt(0)")
    a.bar("fin")
    for q in range(4):
        a.e(f"ds_read_b64_tr_b16 {vr(2+2*q,2)}, v165 offset:{1536*q}")
    if OPT.get("xlds", 1):
        for q in range(4):
            a.e(f"ds_read_b64 {vr(V_X+2*q,2)}, v12 offset:{L_XB + 16*q}")
    for sl in range(3):
        for q in range(4):
            a.e(f"ds_read_b128 {vr(P+16*sl+4*q,4)}, v163 offset:{4096*sl + 1024*q}")
    a.e("s_waitcnt lgkmcnt(12)")
    for q in range(8):
        a.e(f"v_lshlrev_b32 v{XF+2*q}, 16, v{2+q}")
        a.e(f"v_and_b32 v{XF+2*q+1}, 0xffff0000, v{2+q}")
    for q in range(8):
        a.e(f"v_pk_add_f32 {vr(OWN+2*q,2)}, {vr(OWN+2*q,2)}, {vr(XF+2*q,2)}")
    if OPT.get("xlds", 1):
        for q in range(8):
            a.e(f"v_lshlrev_b32 v{XF+2*q}, 16, v{V_X+q}")
            a.e(f"v_and_b32 v{XF+2*q+1}, 0xffff0000, v{V_X+q}")
        for q in range(8):
            a.e(f"v_pk_add_f32 {vr(OWN+2*q,2)}, {vr(OWN+2*q,2)}, {vr(XF+2*q,2)}")
    for sl in range(3):
        a.e(f"s_waitcnt lgkmcnt({8 - 4*sl})")
        for q in range(8):
            a.e(f"v_pk_add_f32 {vr(OWN+2*q,2)}, {vr(OWN+2*q,2)}, {vr(P+16*sl+2*q,2)}")
    for q in range(8):
        a.e(f"v_cvt_pk_bf16_f32 v{2+q}, v{OWN+2*q}, v{OWN+2*q+1}")
    a.e("s_nop 1")
    for p in range(2):
        a.e(f"v_permlane32_swap_b32 v{2+4*p}, v{4+4*p}")
        a.e(f"v_permlane32_swap_b32 v{3+4*p}, v{5+4*p}")
    for p in range(2):
        a.vm(f"global_store_dwordx4 v{V_OUT}, {vr(2+4*p,4)}, s[{P_OUT}:{P_OUT+1}] offset:{32*p} nt", "out")


def xw_touch(a):
    mk_srd(a, SRD_X, P_X, 2048 * 1024)
    mk_srd(a, SRD_WG, P_WG, 512 * 2752)
    mk_srd(a, SRD_WU, P_WU, 512 * 2752)
    a.e(f"s_lshl_b32 s{S_T0}, s{S_WG}, 13")
    a.e(f"s_lshl_b32 s{S_T1}, s{S_W}, 11")
    a.e(f"s_add_u32 s{S_T0}, s{S_T0}, s{S_T1}")
    a.e(f"v_lshl_add_u32 v60, v{V_LANE}, 4, s{S_T0}")
    a.e(f"s_mul_i32 s{S_T0}, s{S_WG}, 5504")
    a.e(f"s_mul_i32 s{S_T1}, s{S_W}, 1376")
    a.e(f"s_add_u32 s{S_T0}, s{S_T0}, s{S_T1}")
    a.e(f"v_lshl_add_u32 v61, v{V_LANE}, 4, s{S_T0}")
    a.vm(f"buffer_load_dwordx4 v[172:175], v61, s[{SRD_WG}:{SRD_WG+3}], 0 offen", "pf")
    a.vm(f"buffer_load_dwordx4 v[172:175], v61, s[{SRD_WU}:{SRD_WU+3}], 0 offen", "pf")
    a.vm(f"buffer_load_dwordx4 v[172:175], v60, s[{SRD_X}:{SRD_X+3}], 0 offen", "pf")
    a.vm(f"buffer_load_dwordx4 v[172:175], v61, s[{SRD_WG}:{SRD_WG+3}], 0 offen offset:1024", "pf")
    a.vm(f"buffer_load_dwordx4 v[172:175], v61, s[{SRD_WU}:{SRD_WU+3}], 0 offen offset:1024", "pf")
    a.vm(f"buffer_load_dwordx4 v[172:175], v60, s[{SRD_X}:{SRD_X+3}], 0 offen offset:1024", "pf")

def role_g(a):
    if OPT.get("prio", 1): a.e("s_setprio 1")
    g_setup(a)
    a.e("s_waitcnt lgkmcnt(0)")
    a.e(f"s_mov_b32 s{S_ROLE}, 0")
    a.vm("global_load_dwordx4 v[44:47], v7, s[16:17]", "ln")
    a.vm("global_load_dwordx4 v[48:51], v7, s[16:17] offset:1024", "ln")
    epoch_load(a, 3, 6)
    if OPT.get("xwtouch"): xw_touch(a)
    stamp(a, 0, real=True); stamp(a, 1)
    epoch_finish(a, 6)
    ln_first(a)
    stamp(a, "ln")
    a.e("s_waitcnt lgkmcnt(0)")
    a.bar("b0")
    stamp(a, "b0")
    for x in g1_reads(0, 0)[:0]: a.e(x)
    for q in range(2):
        a.e(f"ds_read_b64_tr_b16 v[{8+4*q}:{9+4*q}], v2 offset:{128*q}")
        a.e(f"ds_read_b64_tr_b16 v[{10+4*q}:{11+4*q}], v2 offset:{128*q + 4*1088}")
    for x in g1_reads(0, 0): a.e(x)
    a.e("s_waitcnt lgkmcnt(8)")
    a.vm(f"global_store_dwordx4 v3, v[8:11], s[{P_WS}:{P_WS+1}] sc1", "pubA")
    a.vm(f"global_store_dwordx4 v3, v[12:15], s[{P_WS}:{P_WS+1}] offset:1024 sc1", "pubA")
    PS = OPT.get("pubstage", 1)
    def bump(a):
        lab = a.label("nobump")
        a.e(f"s_or_b32 s{S_T0}, s{S_WG}, s{S_W}")
        a.e(f"s_cmp_lg_u32 s{S_T0}, 0")
        a.e(f"s_cbranch_scc1 {lab}")
        a.e(f"s_add_u32 s{S_T0}, s{S_EP}, 1")
        a.e("v_mov_b32 v6, 0")
        a.e(f"v_mov_b32 v7, s{S_T0}")
        a.e(f"s_mov_b64 s[{S_EXEC}:{S_EXEC+1}], exec")
        a.e("s_mov_b64 exec, 1")
        a.e(f"global_store_dword v6, v7, s[{P_WS}:{P_WS+1}] sc1")
        a.e(f"s_mov_b64 exec, s[{S_EXEC}:{S_EXEC+1}]")
        a.e(f"{lab}:")
    def chk(a):
        stamp(a, "chk0")
        ln_poll_check(a, 165, 152)
        stamp(a, "chk1")
        bump(a)
        g1_post_loads(a)
    if OPT.get("csg", 0):
        for r_ in range(4): a.e(f"v_mov_b32 v{168+r_}, 0x3f803f80")
    def pre_pub(a):
        if OPT.get("csg", 0):
            a.e("s_waitcnt vmcnt(0)"); a.vmq = []
        else:
            a.vm_wait("pubA")
    hooks = {("pre", PS): [pre_pub],
             ("post", PS): [lambda a: flag_store(a, WS_FLAG_LN, idx_ln, 6, 7)],
             ("post", OPT.get("pollstage", 5)): [lambda a: ln_poll_issue(a, 165, 152)],
             ("post", 6): [chk],
             ("shadow", 7, 2): g1_corr_prep()}
    if OPT.get("csg", 0):
        hooks[("shadow", 1, 0)] = [cs_store_g]
    rw = Rec(a); wd_setup(rw, 6); wd_lane_parts(rw, 6)
    hooks[("shadow", 4, 1)] = [o[1] for o in rw.ops]
    g1_main(a, hooks)
    stamp(a, "loop")
    if OPT.get("gprio2") is not None: a.e(f"s_setprio {OPT['gprio2']}")
    g1_corr_mfma(a)
    r = Rec(a)
    g1_epilogue(r)
    replay(a, r.ops, [], every=16, start=34)
    stamp(a, "epi")
    h_setup(a)
    a.vm_wait("pubH")
    a.bar("k")
    stamp(a, "bk")
    flag_store(a, WS_FLAG_H, idx_h, 6, 7)
    flag_store(a, WS_FLAG_Y, idx_y, 6, 7)
    stamp(a, "hpub")
    for x in wd_addr(1) + wd_tr_agpr(1) + wd_addr(2) + wd_tr_agpr(2): a.e(x)
    a.e("s_waitcnt lgkmcnt(0)")
    for g in wd_groups(4) + wd_groups(5): emit(a, g)
    a.bar("p")
    hy_poll_issue(a)
    hy_poll_check(a)
    stamp(a, "hflag")
    N0 = OPT.get("g2n0", 4)
    for q in range(N0): emit(a, h_load(q))
    a.e("s_waitcnt lgkmcnt(0)")
    hk = {}
    def after_cd(a):
        a.bar("cd")
        for x in wd_addr(3) + wd_tr_agpr(3): a.e(x.replace(f"v{V_WDA+1}", "v13").replace(f"v{V_WDA}", "v12"))
    for q, f in ((OPT.get("cxq", 2), lambda a: a.bar("cx")), (OPT.get("cdq", 4), after_cd), (OPT.get("xld", 18), x_loads), (OPT.get("fprep", 19), final_prep), (OPT.get("yld", 13), y_loads), (17, lambda a: a.bar("rd"))):
        hk.setdefault(q, []).append(f)
    g2_main(a, hk, N0)
    stamp(a, "g2")
    final(a)
    stamp(a, "fin")
    a.e("s_waitcnt vmcnt(0)")
    stamp(a, 9, real=True)
    prof_store(a)
    a.e("s_endpgm")


C_XOFF, C_WOFF = 2, 6
C_AADDR = 9
C_P = 160
C_XT = 168
def c_setup(a):
    a.e(f"s_lshl_b32 s{S_T0}, s{S_I}, 7")
    a.e(f"s_lshl_b32 s{S_T1}, s{S_W}, 5")
    a.e(f"s_add_u32 s{S_T0}, s{S_T0}, s{S_T1}")
    a.e(f"s_lshl_b32 s{S_XW}, s{S_T0}, 10")
    a.e(f"s_lshl_b32 s{S_LX}, s{S_W}, 12")
    a.e(f"s_add_u32 s{S_KC}, s{S_I}, s{S_J}")
    a.e(f"s_and_b32 s{S_KC}, s{S_KC}, 7")
    a.e(f"s_mul_i32 s{S_WW}, s{S_W}, {16 * 2752}")
    a.e(f"s_lshl_b32 s{S_T0}, s{S_U0}, 6")
    a.e(f"s_add_u32 s{S_WW}, s{S_WW}, s{S_T0}")
    a.e(f"s_mul_i32 s{S_LW}, s{S_W}, 3072")
    a.e(f"v_lshrrev_b32 v12, 3, v{V_LANE}")
    a.e(f"v_and_b32 v13, 7, v{V_LANE}")
    a.e(f"v_lshrrev_b32 v14, 1, v12")
    a.e(f"v_xor_b32 v15, v14, v13")
    a.e(f"v_lshlrev_b32 v16, 4, v15")
    a.e(f"v_lshl_add_u32 v{C_XOFF}, v12, 10, v16")
    a.e(f"v_xor_b32 v17, 64, v{C_XOFF}")
    a.e(f"v_add_u32 v{C_XOFF+1}, 8192, v17")
    a.e(f"v_add_u32 v{C_XOFF+2}, 16384, v{C_XOFF}")
    a.e(f"v_add_u32 v{C_XOFF+3}, 16384, v{C_XOFF+1}")
    for q in range(3):
        a.e(f"v_add_u32 v12, {64*q}, v{V_LANE}")
        a.e(f"v_mul_u32_u24 v13, 5462, v12")
        a.e(f"v_lshrrev_b32 v13, 16, v13")
        a.e(f"v_mul_u32_u24 v14, 12, v13")
        a.e(f"v_sub_u32 v14, v12, v14")
        a.e(f"v_mul_u32_u24 v13, 2752, v13")
        a.e(f"v_lshl_add_u32 v{C_WOFF+q}, v14, 4, v13")

def stage_offsets():
    return [f"s_lshl_b32 s{S_XO}, s{S_KC}, 7", f"s_add_u32 s{S_XO}, s{S_XO}, s{S_XW}",
            f"s_mul_i32 s{S_WO}, s{S_KC}, {64 * 2752}", f"s_add_u32 s{S_WO}, s{S_WO}, s{S_WW}",
            f"s_add_u32 s{S_KC}, s{S_KC}, 1", f"s_and_b32 s{S_KC}, s{S_KC}, 7"]

def stage_dma(stage):
    S = (stage % 3) * SLOT; tag = f"st{stage}"
    out = []
    for q in range(4):
        out.append(Dma([], f"s_add_u32 m0, s{S_LX}, {S + L_X + q * 1024}", (f"buffer_load_dwordx4 v{C_XOFF+q}, s[{SRD_X}:{SRD_X+3}], s{S_XO} offen lds", tag)))
    for q in range(3):
        out.append(Dma([], f"s_add_u32 m0, s{S_LW}, {S + L_G + q * 1024}", (f"buffer_load_dwordx4 v{C_WOFF+q}, s[{SRD_WG}:{SRD_WG+3}], s{S_WO} offen lds", tag)))
        out.append(Dma([], f"s_add_u32 m0, s{S_LW}, {S + L_U + q * 1024}", (f"buffer_load_dwordx4 v{C_WOFF+q}, s[{SRD_WU}:{SRD_WU+3}], s{S_WO} offen lds", tag)))
    out[0] = stage_offsets() + list(out[0])
    return out

def cs_block(a):
    lab = a.label("nocs")
    a.e(f"s_cmp_lg_u32 s{S_CSH}, 0")
    a.e(f"s_cbranch_scc1 {lab}")
    FRG, ACC, ON = 64, 112, 60
    for r in range(4): a.e(f"v_mov_b32 v{ON+r}, 0x3f803f80")
    for s in range(4):
        for ap in range(3):
            for h in range(2):
                a.e(f"ds_read_b64_tr_b16 {vr(FRG+12*s+4*ap+2*h,2)}, v{C_AADDR} offset:{s*3072 + h*768 + ap*32}")
    a.e("s_waitcnt lgkmcnt(0)")
    for s in range(4):
        for ap in range(3):
            a.e(f"v_mfma_f32_32x32x16_bf16 {vr(ACC+16*ap,16)}, {vr(ON,4)}, {vr(FRG+12*s+4*ap,4)}, {'0' if s == 0 else vr(ACC+16*ap,16)}")
    a.e(f"s_mul_i32 s{S_T0}, s{S_J}, 6")
    a.e(f"s_mul_i32 s{S_T1}, s{S_FW}, 3")
    a.e(f"s_add_u32 s{S_T0}, s{S_T0}, s{S_T1}")
    a.e(f"s_lshl_b32 s{S_T0}, s{S_T0}, 10")
    a.e(f"s_lshl_b32 s{S_T1}, s{S_I}, 2")
    a.e(f"s_add_u32 s{S_T0}, s{S_T0}, s{S_T1}")
    a.e(f"s_add_u32 s{S_T0}, s{S_T0}, {WS_CS}")
    a.e(f"v_lshl_add_u32 v59, v{V_LANE}, 5, s{S_T0}")
    lab2 = a.label("nocsst")
    a.e(f"s_cmp_ge_u32 s{S_W}, 2")
    a.e(f"s_cbranch_scc1 {lab2}")
    a.e("s_nop 7")
    a.e(f"s_mov_b64 s[{S_EXEC}:{S_EXEC+1}], exec")
    a.e("s_mov_b64 exec, 0xffffffff")
    for ap in range(3):
        a.e(f"global_store_dword v59, v{ACC+16*ap}, s[{P_WS}:{P_WS+1}] offset:{1024*ap} sc1")
    a.e(f"s_mov_b64 exec, s[{S_EXEC}:{S_EXEC+1}]")
    a.e(f"{lab2}:")
    a.e(f"{lab}:")

def kgen_loads(a):
    a.e(f"s_lshl_b32 s{S_T0}, s{S_D}, 8")
    a.e(f"s_lshl_b32 s{S_T1}, s{S_MH}, 7")
    a.e(f"s_add_u32 s{S_T0}, s{S_T0}, s{S_T1}")
    a.e(f"v_lshl_add_u32 v12, v{V_LANE}, 1, s{S_T0}")
    for q, p in enumerate([P_ARE, P_AIM, P_BRE, P_BIM, P_CRE, P_CIM]):
        a.vm(f"global_load_ushort v{C_P+q}, v12, s[{p}:{p+1}]", "kp")
    a.e(f"s_lshl_b32 s{S_T0}, s{S_D}, 1")
    a.e(f"v_mov_b32 v13, s{S_T0}")
    a.vm(f"global_load_ushort v{C_P+6}, v13, s[{P_LDT}:{P_LDT+1}]", "kp")
    a.vm(f"global_load_ushort v{C_P+7}, v13, s[{P_DSK}:{P_DSK+1}]", "kp")

KS = 64
def kgen_prog():
    out = []; e = out.append
    P = C_P
    AL, BE, CO = 10, 11, 12
    Z1, Z2, Z4, Z8, Z256, Z512 = 14, 16, 18, 20, 22, 24
    A0, A1, B0, B1, C0, C1_, CB, D0, D1, DB0, DB1 = 26, 28, 30, 32, 34, 36, 38, 40, 42, 44, 46
    T = 48
    for q in range(8): e(f"v_lshlrev_b32 v{P+q}, 16, v{P+q}")
    e(f"v_mul_f32 v58, 0x3fb8aa3b, v{P+6}")
    e("v_exp_f32 v58, v58")
    e(f"v_mov_b32 v{A0}, 1.0")
    e(f"v_cvt_pk_bf16_f32 v58, v58, v58")
    e(f"v_mov_b32 v{A0+1}, 0")
    e(f"v_lshlrev_b32 v58, 16, v58")
    e(f"v_mul_f32 v{AL}, v58, v{P}"); e(f"v_mul_f32 v{BE}, v58, v{P+1}")
    e(f"v_mul_f32 v56, v58, v{P+2}"); e(f"v_mul_f32 v57, v58, v{P+3}")
    e(f"v_mul_f32 v{AL}, 0x3fb8aa3b, v{AL}"); e(f"v_mul_f32 v{BE}, 0.15915494, v{BE}")
    e(f"v_mul_f32 v{CO}, v{P+4}, v56"); e(f"v_mul_f32 v{CO+1}, v{P+4}, v57")
    e(f"v_fma_f32 v{CO}, -v{P+5}, v57, v{CO}"); e(f"v_fma_f32 v{CO+1}, v{P+5}, v56, v{CO+1}")
    items = [(Z1, 1, T), (Z8, 8, T+2), (Z256, 256, T+4), (B0, 128, T+6)]
    for d, p, t in items:
        e(f"v_mul_f32 v{t}, {fhex(float(p))}, v{AL}"); e(f"v_mul_f32 v{t+1}, {fhex(float(p))}, v{BE}")
    for d, p, t in items:
        e(f"v_exp_f32 v{t}, v{t}"); e(f"v_fract_f32 v{t+1}, v{t+1}")
    for d, p, t in items:
        e(f"v_cos_f32 v{d}, v{t+1}"); e(f"v_sin_f32 v{d+1}, v{t+1}")
    e("v_nop")
    for d, p, t in items:
        e(f"v_mul_f32 v{d}, v{d}, v{t}"); e(f"v_mul_f32 v{d+1}, v{d+1}, v{t}")
    def cm(d, x, y):
        return [f"v_mul_f32 v{d}, v{x}, v{y}", f"v_mul_f32 v{d+1}, v{x}, v{y+1}",
                f"v_fma_f32 v{d}, -v{x+1}, v{y+1}, v{d}", f"v_fma_f32 v{d+1}, v{x+1}, v{y}, v{d+1}"]
    def put(vec, pr):
        return [f"v_cvt_pk_bf16_f32 v{KS+vec}, v{pr}, {'-' if vec < 32 else ''}v{pr+1}"]
    for d, x, y in ((Z2, Z1, Z1), (Z512, Z256, Z256), (CB, CO, Z256), (Z4, Z2, Z2), (DB0, CO, Z512)):
        out += cm(d, x, y)
    sA = [('p', 32, A0)]; cur, oth = A0, A1
    for b in range(1, 16):
        sA += [('m', oth, cur, Z8), ('p', 32 + b, oth)]; cur, oth = oth, cur
    sB = [('p', 48, B0)]; cur, oth = B0, B1
    for b in range(17, 32):
        sB += [('m', oth, cur, Z8), ('p', 32 + b, oth)]; cur, oth = oth, cur
    sC = [('p', 0, CO)]; cur = CO
    for ee in range(1, 8):
        d = (C0, C1_)[ee % 2]; sC += [('m', d, cur, Z1), ('p', ee, d)]; cur = d
    sC += [('p', 8, CB), ('m', C0, CB, Z2), ('p', 9, C0), ('m', C1_, C0, Z2), ('p', 10, C1_), ('p', 12, C1_),
           ('m', C0, C1_, Z2), ('p', 13, C0), ('m', C1_, C0, Z2), ('p', 14, C1_)]
    sD = [('p', 16, DB0), ('m', D0, DB0, Z4), ('p', 17, D0), ('p', 20, D0), ('m', D1, D0, Z4), ('p', 21, D1),
          ('m', DB1, DB0, Z256), ('p', 18, DB1), ('m', D0, DB1, Z4), ('p', 19, D0), ('p', 22, D0), ('m', D1, D0, Z4), ('p', 23, D1)]
    prev, nxt = DB1, DB0
    for q in range(4):
        sD += [('m', nxt, prev, Z256), ('p', 24 + q, nxt), ('m', (D0, D1)[q % 2], nxt, Z8), ('p', 28 + q, (D0, D1)[q % 2])]
        prev, nxt = nxt, prev
    seqs = [sA, sB, sC, sD]; pos = [0]*4
    while any(pos[q] < len(seqs[q]) for q in range(4)):
        for q in range(4):
            if pos[q] < len(seqs[q]):
                st = seqs[q][pos[q]]; pos[q] += 1
                out += put(st[1], st[2]) if st[0] == 'p' else cm(st[1], st[2], st[3])
    return out

def kv_writes():
    pre = [f"s_mul_i32 s{S_T0}, s{S_CH}, {KV_CH}", f"s_lshl_b32 s{S_T1}, s{S_MH}, 8", f"s_add_u32 s{S_T0}, s{S_T0}, s{S_T1}",
           f"s_add_u32 s{S_T0}, s{S_T0}, {L_KV}", f"v_lshl_add_u32 v58, v{V_LANE}, 2, s{S_T0}"]
    return pre + [f"ds_write_b32 v58, v{KS+v} offset:{v*528}" for v in range(64) if v not in (11, 15)]

def wd_touch(a):
    a.e(f"s_mul_i32 s{S_T0}, s{S_WG}, 5504")
    a.e(f"s_lshl_b32 s{S_T1}, s{S_W}, 10")
    a.e(f"s_add_u32 s{S_T0}, s{S_T0}, s{S_T1}")
    a.e(f"v_lshl_add_u32 v52, v{V_LANE}, 4, s{S_T0}")
    mk_srd(a, SRD_WD, P_WD, 1376 * 1024)
    a.vm(f"buffer_load_dwordx4 v[136:139], v52, s[{SRD_WD}:{SRD_WD+3}], 0 offen", "pf")
    a.e(f"v_add_u32 v52, 4096, v52")
    a.vm(f"buffer_load_dwordx4 v[136:139], v52, s[{SRD_WD}:{SRD_WD+3}], 0 offen", "pf")

def y_clear(a):
    a.e(f"s_and_b32 s{S_T0}, s{S_WG}, 7")
    a.e(f"s_lshr_b32 s{S_T1}, s{S_WG}, 3")
    a.e(f"s_lshl_b32 s{S_T0}, s{S_T0}, 6")
    a.e(f"s_lshl_b32 s{S_T1}, s{S_T1}, 1")
    a.e(f"s_add_u32 s{S_T0}, s{S_T0}, s{S_T1}")
    a.e(f"s_lshl_b32 s{S_T0}, s{S_T0}, 7")
    a.e(f"s_add_u32 s{S_T0}, s{S_T0}, {WS_Y}")
    a.e(f"s_lshl_b32 s{S_T1}, s{S_W}, 6")
    a.e(f"v_add_u32 v52, s{S_T1}, v{V_LANE}")
    a.e(f"v_lshrrev_b32 v53, 4, v52")
    a.e(f"v_lshlrev_b32 v53, 16, v53")
    a.e(f"v_and_b32 v52, 15, v52")
    a.e(f"v_lshl_add_u32 v52, v52, 4, v53")
    a.e(f"v_add_u32 v52, s{S_T0}, v52")
    a.e(f"v_add_u32 v53, {16*65536}, v52")
    for q in range(4): a.e(f"v_mov_b32 v{128+q}, -1")
    a.vm(f"global_store_dwordx4 v52, v[128:131], s[{P_WS}:{P_WS+1}] sc1", "ycl")
    a.vm(f"global_store_dwordx4 v53, v[128:131], s[{P_WS}:{P_WS+1}] sc1", "ycl")

def xt_loads(a):
    a.e(f"s_and_b32 s{S_T0}, s{S_WG}, 7")
    a.e(f"s_lshr_b32 s{S_T1}, s{S_WG}, 3")
    a.e(f"s_lshl_b32 s{S_T0}, s{S_T0}, 6")
    a.e(f"s_lshl_b32 s{S_T1}, s{S_T1}, 1")
    a.e(f"s_add_u32 s{S_T0}, s{S_T0}, s{S_T1}")
    a.e(f"s_lshl_b32 s{S_T0}, s{S_T0}, 4")
    a.e(f"s_lshl_b32 s{S_T1}, s{S_W}, 19")
    a.e(f"s_add_u32 s{S_T0}, s{S_T0}, s{S_T1}")
    a.e(f"s_add_u32 s{S_T0}, s{S_T0}, {WS_XT}")
    a.e(f"v_lshrrev_b32 v52, 1, v{V_LANE}")
    a.e(f"v_lshlrev_b32 v52, 13, v52")
    a.e(f"v_and_b32 v53, 1, v{V_LANE}")
    a.e(f"v_lshl_add_u32 v52, v53, 4, v52")
    a.e(f"v_add_u32 v52, s{S_T0}, v52")
    a.vm(f"global_load_dwordx4 {vr(C_XT,4)}, v52, s[{P_WS}:{P_WS+1}] sc1", "xt")
    a.e(f"v_add_u32 v52, {32*8192}, v52")
    a.vm(f"global_load_dwordx4 {vr(C_XT+4,4)}, v52, s[{P_WS}:{P_WS+1}] sc1", "xt")
    a.e(f"s_add_u32 s{S_T0}, s{S_T0}, {64*8192}")
    a.e(f"v_lshl_add_u32 v53, v53, 4, s{S_T0}")
    a.vm(f"global_load_dword v160, v53, s[{P_WS}:{P_WS+1}] sc1", "xt")

def u_build(a):
    a.vm_wait("xt")
    O = 132
    a.e(f"v_add_u32 v48, 2, v{V_LANE}")
    a.e("v_and_b32 v48, 63, v48")
    a.e("v_lshlrev_b32 v48, 2, v48")
    a.e(f"ds_bpermute_b32 v49, v48, v{C_XT}")
    a.e(f"ds_bpermute_b32 v50, v48, v{C_XT+4}")
    for q in range(2):
        X = C_XT + 4*q
        for k in range(3):
            a.e(f"v_alignbit_b32 v{O+4*q+k}, v{X+k+1}, v{X+k}, 16")
    a.e(f"v_and_b32 v51, 1, v{V_LANE}")
    a.e(f"v_mul_u32_u24 v51, {UU_CH}, v51")
    a.e(f"v_lshrrev_b32 v48, 1, v{V_LANE}")
    a.e("v_lshl_add_u32 v51, v48, 4, v51")
    a.e(f"s_lshl_b32 s{S_T0}, s{S_W}, 10")
    a.e(f"s_add_u32 s{S_T0}, s{S_T0}, {L_UU + 32}")
    a.e(f"v_cmp_gt_u32 vcc, 62, v{V_LANE}")
    a.e(f"v_add_u32 v51, s{S_T0}, v51")
    a.e("s_waitcnt lgkmcnt(0)")
    a.e("v_cndmask_b32 v49, v50, v49, vcc")
    a.e("v_cndmask_b32 v50, v160, v50, vcc")
    a.e(f"v_alignbit_b32 v{O+3}, v49, v{C_XT+3}, 16")
    a.e(f"v_alignbit_b32 v{O+7}, v50, v{C_XT+7}, 16")
    a.e(f"ds_write_b128 v51, {vr(C_XT,4)}")
    a.e(f"ds_write_b128 v51, {vr(C_XT+4,4)} offset:512")
    a.e(f"ds_write_b128 v51, {vr(O,4)} offset:4160")
    a.e(f"ds_write_b128 v51, {vr(O+4,4)} offset:{4160+512}")
    lab = a.label("nopad")
    a.e(f"s_cmp_lg_u32 s{S_W}, 0")
    a.e(f"s_cbranch_scc1 {lab}")
    a.e(f"v_lshlrev_b32 v48, 16, v{C_XT}")
    a.e(f"v_lshrrev_b32 v49, 3, v{V_LANE}")
    a.e(f"v_mul_u32_u24 v49, {UU_CH}, v49")
    a.e(f"v_and_b32 v50, 7, v{V_LANE}")
    a.e("v_lshl_add_u32 v49, v50, 2, v49")
    a.e(f"v_add_u32 v49, {L_UU}, v49")
    a.e("v_mov_b32 v50, 0")
    a.e(f"s_mov_b64 s[{S_EXEC}:{S_EXEC+1}], exec")
    a.e("s_mov_b64 exec, 0xffff")
    a.e("ds_write_b32 v49, v50")
    a.e("s_mov_b64 exec, 0x7f7f")
    a.e("ds_write_b32 v49, v50 offset:4160")
    a.e("s_mov_b64 exec, 3")
    a.e(f"ds_write_b32 v51, v48 offset:{4160 - 4}")
    a.e(f"s_mov_b64 exec, s[{S_EXEC}:{S_EXEC+1}]")
    a.e(f"{lab}:")

CV_A, CV_B, CV_ACC = [16, 80], [48, 112], 144
CVA, CVB, V_DSK = 2, 10, 11
def conv_addr(a):
    t = 12
    a.e(f"v_and_b32 v{t}, 15, v{V_LANE}")
    a.e(f"v_lshrrev_b32 v{t+1}, 4, v{V_LANE}")
    a.e(f"v_and_b32 v{t+2}, 1, v{t+1}")
    a.e(f"v_lshrrev_b32 v{t+1}, 1, v{t+1}")
    a.e(f"v_lshlrev_b32 v{t+3}, 5, v{t+1}")
    a.e(f"v_lshlrev_b32 v{t+2}, 4, v{t+2}")
    a.e(f"v_sub_u32 v{t+3}, v{t+3}, v{t+2}")
    a.e(f"s_lshl_b32 s{S_T2}, s{S_MH}, 6")
    a.e(f"s_mul_i32 s{S_T0}, s{S_CH}, {KR_CH}")
    a.e(f"s_add_u32 s{S_T0}, s{S_T0}, {L_KR + 496}")
    a.e(f"s_add_u32 s{S_T0}, s{S_T0}, s{S_T2}")
    a.e(f"v_lshlrev_b32 v{t+2}, 5, v{t}")
    a.e(f"v_sub_u32 v{t+2}, v{t+3}, v{t+2}")
    a.e(f"v_add_u32 v{CVB}, s{S_T0}, v{t+2}")
    a.e(f"s_mul_i32 s{S_T0}, s{S_CH}, {UU_CH}")
    a.e(f"s_add_u32 s{S_T0}, s{S_T0}, {L_UU}")
    a.e(f"s_add_u32 s{S_T0}, s{S_T0}, s{S_T2}")
    a.e(f"v_and_b32 v{t+2}, 1, v{t}")
    a.e(f"v_cmp_eq_u32 vcc, 1, v{t+2}")
    a.e(f"v_mov_b32 v{t+2}, {4160+16}")
    a.e(f"v_lshl_add_u32 v{t+3}, v{t}, 1, v{t+3}")
    a.e(f"v_mov_b32 v{t+1}, 18")
    a.e(f"v_cndmask_b32 v{t+2}, v{t+2}, v{t+1}, vcc")
    a.e(f"v_add_u32 v{t+3}, v{t+3}, v{t+2}")
    a.e(f"v_add_u32 v{CVA}, s{S_T0}, v{t+3}")
    for al in range(1, 8):
        a.e(f"v_add_u32 v{CVA+al}, {512*al}, v{CVA}")

def k_part(a):
    FR, KD = 16, 144
    a.e(f"v_and_b32 v12, 31, v{V_LANE}")
    a.e("v_mul_u32_u24 v13, 528, v12")
    a.e(f"v_lshrrev_b32 v14, 5, v{V_LANE}")
    a.e("v_lshl_add_u32 v13, v14, 4, v13")
    a.e(f"s_mul_i32 s{S_T0}, s{S_CH}, {KV_CH}")
    a.e(f"s_add_u32 s{S_T0}, s{S_T0}, {L_KV}")
    a.e(f"v_add_u32 v13, s{S_T0}, v13")
    for k in range(16):
        a.e(f"ds_read_b128 {vr(FR+8*k,4)}, v13 offset:{k*32}")
        a.e(f"ds_read_b128 {vr(FR+8*k+4,4)}, v13 offset:{32*528 + k*32}")
    a.e(f"s_mul_i32 s{S_T0}, s{S_CH}, {KR_CH}")
    a.e(f"s_add_u32 s{S_T0}, s{S_T0}, {L_KR + 504}")
    a.e("v_lshlrev_b32 v12, 4, v12")
    a.e("v_lshl_add_u32 v12, v14, 3, v12")
    a.e(f"v_sub_u32 v12, s{S_T0}, v12")
    a.e(f"s_add_u32 s{S_T0}, s{S_T0}, {4096 - 504}")
    a.e(f"v_lshl_add_u32 v15, v{V_LANE}, 4, s{S_T0}")
    a.e("s_waitcnt lgkmcnt(0)")
    for k in range(16):
        a.e(f"v_mfma_f32_32x32x16_bf16 {vr(KD,16)}, {vr(FR+8*k,4)}, {vr(FR+8*k+4,4)}, {'0' if k == 0 else vr(KD,16)}")
    lab1, lab2 = a.label("ex1"), a.label("ex2")
    a.e(f"v_cmp_le_u32 vcc, 32, v{V_LANE}")
    a.e(f"v_and_b32 v16, 1, v{V_LANE}")
    a.e(f"v_cmp_eq_u32 s[{S_TMP}:{S_TMP+1}], 1, v16")
    for q in range(4): a.e(f"v_mov_b32 v{24+q}, 0")
    a.e("s_nop 4")
    a.e(f"s_cmp_eq_u32 s{S_MH}, 0")
    a.e(f"s_cbranch_scc0 {lab1}")
    D = KD
    a.e(f"v_cvt_pk_bf16_f32 v20, v{D+3}, v{D+2}")
    a.e(f"v_cvt_pk_bf16_f32 v21, v{D+1}, v{D}")
    a.e(f"v_cvt_pk_bf16_f32 v22, v{D+6}, v{D+5}")
    a.e(f"v_cvt_pk_bf16_f32 v23, v{D+4}, v{D+4}")
    a.e("ds_write_b64 v12, v[20:21] offset:3584")
    a.e("ds_write_b64 v12, v[22:23] offset:3072")
    a.e(f"s_mov_b64 s[{S_EXEC}:{S_EXEC+1}], exec")
    a.e("s_mov_b64 exec, 0x3fffffff")
    a.e("ds_write_b128 v15, v[24:27]")
    a.e(f"s_mov_b64 exec, s[{S_EXEC}:{S_EXEC+1}]")
    a.e(f"s_branch {lab2}")
    a.e(f"{lab1}:")
    D = KD + 8
    for q in range(4):
        a.e(f"v_mov_b32 v{28+2*q}, v{D+4+q}")
        a.e(f"v_mov_b32 v{29+2*q}, v{D+4+q}")
    for q in range(2):
        A_, B_ = D + 2*q, D + 2*q + 1
        a.e(f"v_cndmask_b32 v24, v{A_}, v{B_}, vcc")
        a.e(f"v_cvt_pk_bf16_f32 v{20+2*q+0}, v{B_}, v24")
        a.e(f"v_cvt_pk_bf16_f32 v{20+2*q+1}, v{A_}, v{A_}")
    for q in range(4):
        a.e(f"v_permlane32_swap_b32 v{28+2*q}, v{29+2*q}")
    a.e("ds_write_b64 v12, v[20:21] offset:2560")
    a.e("ds_write_b64 v12, v[22:23] offset:2048")
    for q in range(4):
        a.e(f"v_cndmask_b32 v{28+2*q}, v{28+2*q}, v{D+4+q}, s[{S_TMP}:{S_TMP+1}]")
    for q in range(4):
        a.e(f"v_cvt_pk_bf16_f32 v{36+2*q}, v{D+4+q}, v{D+4+q}")
        a.e(f"v_cvt_pk_bf16_f32 v{37+2*q}, v{D+4+q}, v{28+2*q}")
    for q in range(4):
        a.e(f"ds_write_b64 v12, {vr(36+2*q,2)} offset:{1536 - 512*q}")
    a.e(f"{lab2}:")

def conv_main(a, late, dmas):
    def reads(st, q):
        r = [f"ds_read_b128 {vr(CV_B[st]+4*al,4)}, v{CVB} offset:{512*(7-al) + 128*q}" for al in range(8)]
        for al in range(8):
            r.append(f"ds_read2_b32 {vr(CV_A[st]+4*al,2)}, v{CVA+al} offset0:{32*q} offset1:{32*q+1}")
            r.append(f"ds_read2_b32 {vr(CV_A[st]+4*al+2,2)}, v{CVA+al} offset0:{32*q+2} offset1:{32*q+3}")
        return r
    for x in reads(0, 0): a.e(x)
    st = 0
    for q in range(4):
        a.e("s_waitcnt lgkmcnt(0)" if q else "s_waitcnt lgkmcnt(14)")
        mf = []
        for al in range(8):
            for be in range(8 - al):
                I = al + be
                mf.append(f"v_mfma_f32_16x16x32_bf16 {vr(CV_ACC+4*I,4)}, {vr(CV_A[st]+4*al,4)}, {vr(CV_B[st]+4*be,4)}, {'0' if (q == 0 and al == 0) else vr(CV_ACC+4*I,4)}")
        slots = {i: [] for i in range(36)}
        if q == 0: slots[7].append("s_waitcnt lgkmcnt(0)")
        if q < 3:
            base = 8 if q == 0 else 0
            for k, x in enumerate(reads(st ^ 1, q + 1)): slots[base + k].append(x)
        for sl, it in late.get(q, []): slots[sl].append(it)
        dl = dmas.get(q, [])
        for k, g in enumerate(dl): place(slots, 1 + (k * 33) // len(dl), g)
        stamp(a, f"cv{q}")
        sched(a, mf, slots)
        st ^= 1

def conv_finish(a):
    a.e(f"s_lshl_b32 s{S_T0}, s{S_W}, 12")
    a.e(f"s_add_u32 s{S_T0}, s{S_T0}, {L_CX}")
    a.e(f"v_lshl_add_u32 v2, v{V_LANE}, 4, s{S_T0}")
    a.e(f"s_xor_b32 s{S_T1}, s{S_W}, 1")
    a.e(f"s_lshl_b32 s{S_T1}, s{S_T1}, 12")
    a.e(f"s_add_u32 s{S_T1}, s{S_T1}, {L_CX}")
    a.e(f"v_lshl_add_u32 v3, v{V_LANE}, 4, s{S_T1}")
    a.e(f"s_mul_i32 s{S_T0}, s{S_CH}, {UU_CH}")
    a.e(f"s_add_u32 s{S_T0}, s{S_T0}, {L_UU + 32}")
    a.e(f"s_lshl_b32 s{S_T1}, s{S_MH}, 11")
    a.e(f"s_add_u32 s{S_T0}, s{S_T0}, s{S_T1}")
    a.e(f"v_and_b32 v4, 15, v{V_LANE}")
    a.e(f"v_lshrrev_b32 v5, 4, v{V_LANE}")
    a.e(f"v_lshlrev_b32 v6, 5, v4")
    a.e(f"v_lshl_add_u32 v6, v5, 3, v6")
    a.e(f"v_add_u32 v6, s{S_T0}, v6")
    lab1, lab2 = a.label("cx1"), a.label("cx2")
    a.e(f"s_cmp_eq_u32 s{S_MH}, 0")
    a.e(f"s_cbranch_scc1 {lab1}")
    for k in range(4):
        a.e(f"ds_write_b128 v2, {vr(CV_ACC+4*k,4)} offset:{1024*k}")
    for q in range(8):
        a.e(f"v_pk_mul_f32 {vr(CV_ACC+2*q,2)}, {vr(CV_ACC+16+2*q,2)}, 1.0 op_sel_hi:[1,0]")
    a.e(f"s_branch {lab2}")
    a.e(f"{lab1}:")
    for k in range(4):
        a.e(f"ds_write_b128 v2, {vr(CV_ACC+16+4*k,4)} offset:{1024*k}")
    a.e(f"{lab2}:")
    for k in range(4):
        a.e(f"ds_read_b64 {vr(16+2*k,2)}, v6 offset:{512*k}")
    a.e(f"s_lshl_b32 s{S_T0}, s{S_MH}, 20")
    a.e(f"s_lshl_b32 s{S_T1}, s{S_D}, 7")
    a.e(f"s_add_u32 s{S_T0}, s{S_T0}, s{S_T1}")
    a.e(f"s_add_u32 s{S_T0}, s{S_T0}, {WS_Y}")
    a.e(f"v_lshrrev_b32 v7, 2, v4")
    a.e(f"v_lshlrev_b32 v7, 16, v7")
    a.e(f"v_and_b32 v8, 3, v4")
    a.e(f"v_lshl_add_u32 v7, v8, 5, v7")
    a.e(f"v_lshl_add_u32 v7, v5, 3, v7")
    a.e(f"v_add_u32 v7, s{S_T0}, v7")
    a.e("s_waitcnt lgkmcnt(0)")
    a.bar("cx")
    for k in range(4):
        a.e(f"ds_read_b128 {vr(64+4*k,4)}, v3 offset:{1024*k}")
    U = 32
    for k in range(4):
        a.e(f"v_lshlrev_b32 v{U+4*k}, 16, v{16+2*k}")
        a.e(f"v_and_b32 v{U+4*k+1}, 0xffff0000, v{16+2*k}")
        a.e(f"v_lshlrev_b32 v{U+4*k+2}, 16, v{17+2*k}")
        a.e(f"v_and_b32 v{U+4*k+3}, 0xffff0000, v{17+2*k}")
    a.e(f"v_mov_b32 v10, v{V_DSK}")
    for k in range(8):
        a.e(f"v_pk_fma_f32 {vr(CV_ACC+2*k,2)}, {vr(U+2*k,2)}, v[10:11], {vr(CV_ACC+2*k,2)}")
    a.vm_wait("wd3", "wd6")
    a.e("s_waitcnt lgkmcnt(0)")
    a.bar("cd")
    for k in range(8):
        a.e(f"v_pk_add_f32 {vr(CV_ACC+2*k,2)}, {vr(CV_ACC+2*k,2)}, {vr(64+2*k,2)}")
    for k in range(8):
        a.e(f"v_cvt_pk_bf16_f32 v{16+k}, v{CV_ACC+2*k}, v{CV_ACC+2*k+1}")
    for k in range(4):
        a.vm(f"global_store_dwordx2 v7, {vr(16+2*k,2)}, s[{P_WS}:{P_WS+1}] sc1", "pubY")
        if k < 3: a.e(f"v_add_u32 v7, {4*65536}, v7")


def role_c(a):
    a.e("L_role_c:")
    c_setup(a)
    a_read_addr(a, C_AADDR, 12)
    a.e("s_waitcnt lgkmcnt(0)")
    a.e(f"s_mov_b32 s{S_ROLE}, 1")
    stamp(a, 0, real=True); stamp(a, 1)
    mk_srd(a, SRD_X, P_X, 2048 * 1024)
    mk_srd(a, SRD_WG, P_WG, 512 * 2752)
    mk_srd(a, SRD_WU, P_WU, 512 * 2752)
    epoch_load(a, 13, 54)
    for g in stage_dma(0): emit(a, g)
    d1 = stage_dma(1)
    n1 = OPT.get("n1", 4)
    for g in d1[:n1]: emit(a, g)
    a.vm_wait("st0")
    a.bar("b0")
    stamp(a, "b0")
    for g in d1[n1:]: emit(a, g)
    epoch_finish(a, 54)
    if not OPT.get("csg", 0): cs_block(a)
    for g in stage_dma(2): emit(a, g)
    kgen_loads(a)
    prog = [lambda a: a.vm_wait("kp")] + kgen_prog()
    nst = 4
    per = (len(prog) + nst - 1) // nst
    pos = 0
    for stage in range(7):
        a.e("s_waitcnt lgkmcnt(0)")
        a.vm_wait(f"st{stage+1}")
        a.bar(f"s{stage}")
        stamp(a, f"cs{stage}")
        if OPT.get("cprio_stage") == stage: a.e(f"s_setprio {OPT.get('cprio', 2)}")
        dm = stage_dma(stage + 3) if stage + 3 < 8 else []
        if stage == OPT.get("touchstage", 2) and OPT.get("wdtouch", 1):
            wd_touch(a)
        if stage == OPT.get("yclrstage", 3):
            y_clear(a)
        work = []
        if 1 <= stage <= nst:
            work = prog[pos:pos + per]; pos += per
        if stage == 5 and OPT.get("kvearly", 1):
            work = kv_writes()[:OPT.get("kvsplit", 35)]
        if stage == 6:
            work = (kv_writes()[OPT.get("kvsplit", 35):] if OPT.get("kvearly", 1) else [])
        if stage == OPT.get("cpoll", 5):
            if OPT.get("pollfirst", 1): work = [lambda a: ln_poll_issue(a, 59, 132)] + work
            else: work = work + [lambda a: ln_poll_issue(a, 59, 132)]
        if stage == OPT.get("cchk", 6):
            work = [lambda a: ln_poll_check(a, 59, 132), xt_loads] + work
        step = max(1, len(work) // max(1, len(dm))) if dm else len(work)
        while dm or work:
            if dm: emit(a, dm.pop(0))
            for _ in range(step if dm else len(work)):
                if work: emit(a, work.pop(0))
    assert pos >= len(prog)
    a.e(f"v_mov_b32 v{V_DSK}, v{C_P+7}")
    a.e("s_waitcnt lgkmcnt(0)")
    a.bar("rf")
    stamp(a, "crf")
    if OPT.get("cprio2") is not None: a.e(f"s_setprio {OPT['cprio2']}")
    if OPT.get("cchk", 6) > 6:
        ln_poll_check(a, 59, 132)
        xt_loads(a)
    if not OPT.get("kvearly", 1):
        for x in kv_writes(): a.e(x)
        a.e("s_waitcnt lgkmcnt(0)")
        a.bar("kv")
    stamp(a, "ckv")
    wd_setup(a, 52, 161)
    for g in wd_groups(1, 161) + wd_groups(2, 161): emit(a, g)
    k_part(a)
    stamp(a, "ckp")
    u_build(a)
    stamp(a, "cub")
    conv_addr(a)
    a.e("v_mov_b32 v12, v161")
    a.vm_wait("wd1", "wd2", "ycl")
    a.e("s_waitcnt lgkmcnt(0)")
    a.bar("k")
    stamp(a, "ck")
    conv_main(a, {OPT.get("pbar", 2): [(OPT.get("pslot", 20), lambda a: a.bar("p"))]},
              {0: wd_groups(3, 12) + wd_groups(6, 12)[:2], 1: wd_groups(6, 12)[2:]})
    stamp(a, "convm")
    conv_finish(a)
    stamp(a, "conv")
    a.e("s_waitcnt vmcnt(0)")
    stamp(a, 9, real=True)
    prof_store(a)
    a.e("s_endpgm")


def main():
    global PROF
    PROF = "prof" in sys.argv
    for x in sys.argv[1:]:
        if "=" in x:
            k, v = x.split("=")
            if k == "stamps": STAMPS[:] = v.split(",")
            else: OPT[k] = int(v)
    shared = [0]
    a0 = A2(shared); entry(a0)
    g = A2(shared); g.vmq = list(a0.vmq); role_g(g)
    c = A2(shared); c.vmq = list(a0.vmq); role_c(c)
    gb = [b for b in g.bars if b not in ("fin", "rd")]
    assert gb == c.bars, (gb, c.bars)
    out = [HDR, f"; @launch grid=(256,1,1) block=(512,1,1) lds={LDS_BYTES}",
           '.amdgcn_target "amdgcn-amd-amdhsa--gfx950"', '.text', a0.text(), g.text(), c.text(),
           "L_end:", "  s_endpgm", "  .fill 8448, 4, 0xbf800000", '.section .rodata,"a"', kd(NAME, 176, 80)]
    print('\n'.join(out))

if __name__ == "__main__":
    main()
```
